```python
import torch

def _softmax(x, axis=-1):
    return torch.softmax(x, dim=axis)

def _gelu(x):
    return torch.nn.functional.gelu(x, approximate='tanh')

def _silu(x):
    return torch.nn.functional.silu(x)

def _sigmoid(x):
    return torch.sigmoid(x)

def _layernorm(x, axis=-1, eps=1e-05):
    m = x.mean(dim=axis, keepdim=True)
    v = x.var(dim=axis, keepdim=True, unbiased=False)
    return (x - m) / torch.sqrt(v + eps)

def _scatter_add(tgt, idx, src, axis=0):
    return tgt.clone().index_add_(axis, idx, src)

def _segment_sum(src, seg, n):
    out = torch.zeros((n,) + src.shape[1:], dtype=src.dtype)
    return out.index_add_(0, seg, src)

def _pad(x, pw):
    flat = tuple((v for pair in reversed(pw) for v in pair))
    return torch.nn.functional.pad(x, flat)
kernel_name = 'adaLN_cond__gqa_block_cached__swiglu_ffn__decode'

def setup_inputs():

    _w = lambda a: (lambda t: t.to(torch.bfloat16) if t.is_floating_point() else t)(torch.as_tensor(a))

    def _A_setup():
        B, Sq, D = (1, 1, 640)
        Hq, Hkv, Sk, Dh = (32, 32, 16384, 128)
        assert Hq % Hkv == 0, (Hq, Hkv)
        return {'x': _w((lambda *s: torch.randn(*s, dtype=torch.bfloat16) * 0.05)(B, Sq, D)), 'k_cache': _w((lambda *s: torch.randn(*s, dtype=torch.bfloat16) * 0.8)(B, Hkv, Sk, Dh)), 'v_cache': _w((lambda *s: torch.randn(*s, dtype=torch.bfloat16) * 1.6)(B, Hkv, Sk, Dh)), 'wq': _w((lambda *s: torch.randn(*s, dtype=torch.bfloat16) * 0.8)(D, Hq * Dh) * D ** (-0.5)), 'wo': _w((lambda *s: torch.randn(*s, dtype=torch.bfloat16) * 1.6)(Hq * Dh, D) * (Hq * Dh) ** (-0.5))}
    _A_in = _A_setup()

    def _B_setup():
        B, S, D, F = (1, 1, 640, 1728)
        return {'x': _w((lambda *s: torch.randn(*s, dtype=torch.bfloat16) * 0.05)(B, S, D)), 'w_gate': _w((lambda *s: torch.randn(*s, dtype=torch.bfloat16) * 0.05)(D, F)), 'w_up': _w((lambda *s: torch.randn(*s, dtype=torch.bfloat16) * 0.05)(D, F)), 'w_down': _w((lambda *s: torch.randn(*s, dtype=torch.bfloat16) * 0.05)(F, D))}
    _B_in = _B_setup()
    return {'A_x': _A_in['x'], 'A_k_cache': _A_in['k_cache'], 'A_v_cache': _A_in['v_cache'], 'A_wq': _A_in['wq'], 'A_wo': _A_in['wo'], 'B_x': _B_in['x'], 'B_w_gate': _B_in['w_gate'], 'B_w_up': _B_in['w_up'], 'B_w_down': _B_in['w_down'], 'c': _w((lambda *s: torch.randn(*s, dtype=torch.bfloat16) * 0.2)(1, 640) * 8.0), 'w_mod': _w((lambda *s: torch.randn(*s, dtype=torch.bfloat16) * 0.2)(640, 6 * 640) * 640 ** (-0.5) * 8.0)}

def reference(A_x, A_k_cache, A_v_cache, A_wq, A_wo, B_x, B_w_gate, B_w_up, B_w_down, c, w_mod):

    def _A_ref(x, k_cache, v_cache, wq, wo):
        B, Sq, D = x.shape
        Hq, Dh = (32, 128)
        Hkv = k_cache.shape[1]
        rep = Hq // Hkv
        q = (lambda x, *d: x.permute(*d))((x @ wq).reshape(B, Sq, Hq, Dh), 0, 2, 1, 3)
        k = (lambda x, n, axis: torch.repeat_interleave(x, n, dim=axis))(k_cache, rep, axis=1)
        v = (lambda x, n, axis: torch.repeat_interleave(x, n, dim=axis))(v_cache, rep, axis=1)
        scores = torch.einsum('bhqd,bhkd->bhqk', q, k) * Dh ** (-0.5)
        p = _softmax(scores, axis=-1)
        o = torch.einsum('bhqk,bhkd->bhqd', p, v)
        return (lambda x, *d: x.permute(*d))(o, 0, 2, 1, 3).reshape(B, Sq, Hq * Dh) @ wo

    def _B_ref(x, w_gate, w_up, w_down):
        g = _silu(x @ w_gate)
        u = x @ w_up
        return g * u @ w_down
    x = A_x
    mod = (_silu(c) @ w_mod).reshape(c.shape[0], 6, 1, -1)
    sa, ca, ga, sb, cb, gb = (mod[:, 0].clone(), mod[:, 1].clone(), mod[:, 2].clone(), mod[:, 3].clone(), mod[:, 4].clone(), mod[:, 5].clone())
    h = _layernorm(x, axis=-1) * (1 + ca) + sa
    x = x + ga * _A_ref(h, A_k_cache, A_v_cache, A_wq, A_wo)
    h = _layernorm(x, axis=-1) * (1 + cb) + sb
    x = x + gb * _B_ref(h, B_w_gate, B_w_up, B_w_down)
    return x
```

```python
import re

TRANS = ("v_exp_f32", "v_log_f32", "v_rcp_f32", "v_rsq_f32", "v_sqrt_f32", "v_sin_f32", "v_cos_f32", "v_rcp_iflag_f32")

def _regs(tok):
    tok = tok.strip()
    tok = tok.lstrip("-")
    m = re.fullmatch(r"abs\((.*)\)", tok)
    if m: tok = m.group(1)
    m = re.fullmatch(r"\|(.*)\|", tok)
    if m: tok = m.group(1)
    m = re.fullmatch(r"([vsa])(\d+)", tok)
    if m: return {(m.group(1), int(m.group(2)))}
    m = re.fullmatch(r"([vsa])\[(\d+):(\d+)\]", tok)
    if m: return {(m.group(1), i) for i in range(int(m.group(2)), int(m.group(3)) + 1)}
    if tok == "vcc": return {("s", "vcc_lo"), ("s", "vcc_hi")}
    if tok in ("vcc_lo", "vcc_hi"): return {("s", tok)}
    if tok == "exec": return {("s", "exec")}
    if tok == "m0": return {("s", "m0")}
    return set()

class Ins:
    def __init__(self, text):
        self.text = text
        t = text.split(";")[0].strip()
        self.label = None
        self.op = None
        self.w = set(); self.r = set()
        self.kind = None
        if t.endswith(":"):
            self.label = t[:-1]; self.kind = "label"; return
        if t.startswith(".") or not t:
            self.kind = "dir"; return
        parts = t.split(None, 1)
        op = parts[0]; self.op = op
        rest = parts[1] if len(parts) > 1 else ""
        ops = []; depth = 0; cur = ""
        for ch in rest:
            if ch in "[(": depth += 1
            if ch in "])": depth -= 1
            if ch == "," and depth == 0: ops.append(cur.strip()); cur = ""
            else: cur += ch
        if cur.strip(): ops.append(cur.strip())
        mods = ""
        if ops:
            sp = ops[-1].split(None, 1)
            ops[-1] = sp[0]
            if len(sp) > 1: mods = sp[1]
        self.ops = ops; self.mods = mods
        base = re.sub(r"_(e32|e64|dpp|sdwa)$", "", op)
        self.base = base
        self.dpp = op.endswith("_dpp") or any(k in mods for k in ("row_", "quad_perm", "row_newbcast"))
        self.sdwa = op.endswith("_sdwa")
        R = [_regs(o) for o in ops]
        allr = lambda idx: set().union(*[R[i] for i in idx]) if idx else set()
        n = len(ops)
        if op.startswith("v_mfma"):
            self.kind = "mfma"; self.w = R[0]; self.r = allr(range(1, n)); self.srcA = R[1]; self.srcB = R[2]; self.srcC = R[3]
            self.passes = 4 if "16x16x32" in op or "16x16x16" in op else 8
        elif op.startswith("v_"):
            self.kind = "valu"
            if base.startswith("v_cmpx"):
                self.w = R[0] | {("s", "exec")}; self.r = allr(range(1, n))
            elif base.startswith("v_cmp"):
                self.w = R[0]; self.r = allr(range(1, n))
            elif base.startswith("v_permlane") and "swap" in base:
                self.w = R[0] | R[1]; self.r = R[0] | R[1]
            elif base in ("v_add_co_u32", "v_sub_co_u32", "v_addc_co_u32", "v_subb_co_u32", "v_div_scale_f32", "v_mad_u64_u32"):
                self.w = R[0] | R[1]; self.r = allr(range(2, n))
            else:
                self.w = R[0]; self.r = allr(range(1, n))
                if base in ("v_fmac_f32", "v_dot2c_f32_bf16", "v_writelane_b32") or ("bank_mask" in mods and "bank_mask:0xf" not in mods) or ("row_mask" in mods and "row_mask:0xf" not in mods):
                    self.r |= R[0]
                if base == "v_div_fmas_f32": self.r |= _regs("vcc")
            self.trans = base in TRANS
            self.dot = base.startswith("v_dot")
        elif op.startswith("buffer_") or op.startswith("global_") or op.startswith("flat_"):
            self.kind = "vmem"
            if op in ("buffer_wbl2", "buffer_inv"):
                pass
            elif "store" in op:
                self.r = allr(range(n))
                self.sdata = R[0] if op.startswith("buffer_") else R[1]
                self.wide = op.endswith("x4") or op.endswith("x3")
            elif "atomic" in op:
                self.r = allr(range(n))
                if "sc0" in mods: self.w = R[0]
            elif " lds" in (" " + mods) or "_lds_" in op:
                self.r = allr(range(n)) | {("s", "m0")}; self.ldsdma = True
            else:
                self.w = R[0]; self.r = allr(range(1, n))
        elif op.startswith("ds_"):
            self.kind = "ds"
            if "write" in op or (op.startswith("ds_add") and "rtn" not in op) or (op.startswith("ds_max") and "rtn" not in op):
                self.r = allr(range(n))
            else:
                self.w = R[0]; self.r = allr(range(1, n))
        elif op.startswith("s_"):
            self.kind = "salu"
            if op.startswith("s_cbranch") or op == "s_branch":
                self.kind = "branch"; self.target = ops[0]
            elif op == "s_endpgm": self.kind = "end"
            elif op == "s_nop": self.kind = "nop"; self.n = int(ops[0], 0) + 1
            elif op.startswith("s_cmp") or op in ("s_waitcnt", "s_barrier", "s_sleep", "s_setprio", "s_bitcmp0_b32", "s_bitcmp1_b32"):
                self.r = allr(range(n))
            elif op.startswith("s_load") or op.startswith("s_memrealtime") or op.startswith("s_memtime"):
                self.kind = "smem"; self.w = R[0]; self.r = allr(range(1, n))
            else:
                self.w = R[0]; self.r = allr(range(1, n))
                if "saveexec" in op: self.w |= {("s", "exec")}
        else:
            raise ValueError("unknown instr " + text)

    def states(self):
        if self.kind in ("label", "dir"): return 0
        if self.kind == "nop": return self.n
        return 1

def vset(s): return {x for x in s if x[0] in ("v", "a")}
def sset(s): return {x for x in s if x[0] == "s"}

def required(p, c):
    need = 0
    pk, ck = p.kind, c.kind
    if pk == "valu":
        pw = vset(p.w); ps = sset(p.w)
        if ck == "valu":
            if c.dpp and pw & c.r: need = max(need, 2)
            if c.base.startswith("v_permlane") and pw & c.r: need = max(need, 2)
            if c.base in ("v_readlane_b32", "v_readfirstlane_b32") and pw & c.r: need = max(need, 1)
            if p.trans and not c.trans and pw & c.r: need = max(need, 1)
            if p.trans and c.trans and pw & c.r: need = max(need, 1)
            if p.sdwa and pw & (c.r | c.w): need = max(need, 1)
            if ps & c.r:
                need = max(need, 2)
                if c.base in ("v_readlane_b32", "v_writelane_b32"): need = max(need, 4)
                if c.base == "v_div_fmas_f32": need = max(need, 4)
            if ("s", "exec") in ps:
                if c.dpp: need = max(need, 5)
                if c.base.startswith("v_permlane") or c.base in ("v_readlane_b32", "v_readfirstlane_b32", "v_writelane_b32"): need = max(need, 4)
            if p.dot and pw & (c.r | c.w):
                samec = (c.base == p.base) and not (pw & set().union(*[_regs(o) for o in c.ops[1:3]]))
                if not samec: need = max(need, 3)
        if ck == "mfma":
            if pw & c.r: need = max(need, 3 if p.dot else 2)
            if ("s", "exec") in ps: need = max(need, 4)
        if ck == "vmem":
            if ps & c.r: need = max(need, 5)
            if p.dot and pw & c.r: need = max(need, 3)
        if ck == "ds":
            if p.dot and pw & c.r: need = max(need, 3)
    if pk == "mfma":
        D = p.w
        tab_c = {4: 6, 8: 10}[p.passes]; tab_ab = {4: 8, 8: 12}[p.passes]; war = {4: 3, 8: 7}[p.passes]
        if ck == "mfma":
            if D & (c.srcA | c.srcB): need = max(need, tab_ab)
            if D & c.srcC and not (D == c.srcC and c.passes == p.passes): need = max(need, tab_c)
            if D & c.w and not (D == c.srcC): need = max(need, tab_ab)
        elif ck in ("valu", "vmem", "ds"):
            if D & (c.r | c.w): need = max(need, tab_ab)
            if ck == "valu" and p.srcC & c.w: need = max(need, war)
    if pk == "vmem" and getattr(p, "wide", False):
        if p.sdata & c.w: need = max(need, 2 if ck == "valu" else 1)
    if pk == "salu" and ("s", "m0") in p.w:
        if getattr(c, "ldsdma", False): need = max(need, 1)
    return need

class Asm:
    def __init__(self):
        self.lines = []
    def __call__(self, text):
        for t in text.split("\n"):
            t = t.strip()
            if t: self.lines.append(t)
    def label(self, name): self.lines.append(name + ":")
    def finalize(self, verbose=False):
        ins = [Ins(t) for t in self.lines]
        MAXW = 12
        nins = 0
        changed = True
        while changed:
            changed = False
            def maps():
                labels = {x.label: i for i, x in enumerate(ins) if x.kind == "label"}
                jumps = {}
                for i, x in enumerate(ins):
                    if x.kind == "branch": jumps.setdefault(labels[x.target], []).append(i)
                return jumps
            jumps = maps()
            i = 0
            while i < len(ins):
                c = ins[i]
                if c.kind in ("valu", "mfma", "vmem", "ds"):
                    worst = 0
                    stack = [(i - 1, 0)]
                    seen = set()
                    while stack:
                        j, dist = stack.pop()
                        while j >= 0 and dist < MAXW:
                            if (j, dist) in seen: break
                            seen.add((j, dist))
                            p = ins[j]
                            if p.kind == "label":
                                for b in jumps.get(j, []): stack.append((b, dist))
                                k = j - 1
                                while k >= 0 and ins[k].kind in ("label", "dir"):
                                    if ins[k].kind == "label":
                                        for b in jumps.get(k, []): stack.append((b, dist))
                                    k -= 1
                                if k >= 0 and (ins[k].kind == "end" or (ins[k].kind == "branch" and ins[k].op == "s_branch")): break
                                j = k; continue
                            need = required(p, c)
                            if need > dist: worst = max(worst, need - dist)
                            dist += p.states()
                            j -= 1
                    if worst > 0:
                        ins.insert(i, Ins("s_nop %d" % (worst - 1)))
                        nins += 1
                        changed = True
                        jumps = maps()
                        i += 1
                i += 1
        if verbose: print("; inserted %d s_nop" % nins)
        out = []
        for x in ins:
            out.append(x.text if x.kind in ("label", "dir") else "    " + x.text)
        return "\n".join(out) + "\n"
```

```python
import sys, struct
from asmdsl import Asm
KN = "adaLN_cond__gqa_block_cached__swiglu_ffn__decode_kernel"

def f2u(x): return struct.unpack("<I", struct.pack("<f", x))[0]
LOG2E = 1.4426950408889634
SCALE = 128 ** -0.5

WS_MODP = 0x1000
WS_QP   = WS_MODP + 30*8*512
WS_OP   = WS_QP + 32*5*512
WS_ML   = WS_OP + 32*8*512
WS_YP   = WS_ML + 32*128
WS_DP   = WS_YP + 32*2560
WS_END  = WS_DP + 54*2560
WS_STAMP = 0x10000000
L_TICKET = 0
L_Q = 16
L_PO = 0x200
L_PML = 0x1200
L_MOD = 0x1400
L_X2 = 0x3C00
L_RED = 0x4600
L_END = 0x5000

DPPF = "row_mask:0xf bank_mask:0xf"

def gen(stamps=False, NE=4, tiles=None, pol="nt"):
    A = Asm()
    uid = [0]
    def U(p):
        uid[0] += 1; return f"L_{p}_{uid[0]}"
    sWAVE, sHD, sS, sTAG = "s3", "s32", "s33", "s34"
    sT = ["s34", "s35", "s36", "s37"]
    SK, SV, SWS, SA, SB = "s[40:43]", "s[44:47]", "s[48:51]", "s[52:55]", "s[56:59]"
    sNT, sTK = "s60", "s61"
    sL2E, sSC = "s62", "s63"
    sTO = "s64"
    sF = "s65"
    st_used = []
    def stamp(k):
        if stamps:
            A(f"s_memrealtime s[{70+2*k}:{71+2*k}]")
    def stamp_dump(slots, xcc=False):
        if not stamps: return
        A("s_waitcnt lgkmcnt(0)")
        A("s_mov_b64 exec, 1")
        A(f"s_lshl_b32 s66, s2, 7"); A(f"s_add_u32 s66, s66, {WS_STAMP}")
        A("s_mov_b32 s50, 0x20000000")
        A("v_mov_b32 v2, 0")
        for k in slots:
            A(f"v_mov_b32 v4, s{70+2*k}"); A(f"v_mov_b32 v5, s{71+2*k}")
            A(f"buffer_store_dwordx2 v[4:5], v2, {SWS}, s66 offen offset:{k*8}")
            A("s_nop 1")
        if xcc:
            A("s_getreg_b32 s67, hwreg(HW_REG_XCC_ID)")
            A("v_mov_b32 v4, s67"); A("v_mov_b32 v5, 0")
            A(f"buffer_store_dwordx2 v[4:5], v2, {SWS}, s66 offen offset:120")
        A("s_waitcnt vmcnt(0)")
    def srd(S, lo, hi, n):
        b = int(S[2:S.index(":")])
        A(f"s_mov_b32 s{b}, {lo}"); A(f"s_mov_b32 s{b+1}, {hi}"); A(f"s_mov_b32 s{b+2}, {n}"); A(f"s_mov_b32 s{b+3}, 0x20000")
    def v4(b): return f"v[{b}:{b+3}]"
    def wave_red(op, v, t):
        A(f"{op}_dpp v{v}, v{v}, v{v} quad_perm:[1,0,3,2] {DPPF}")
        A(f"{op}_dpp v{v}, v{v}, v{v} quad_perm:[2,3,0,1] {DPPF}")
        row_red(op, v, t)
    def row_red(op, v, t):
        A(f"{op}_dpp v{v}, v{v}, v{v} row_ror:4 {DPPF}")
        A(f"{op}_dpp v{v}, v{v}, v{v} row_ror:8 {DPPF}")
        A(f"v_mov_b32 v{t}, v{v}"); A(f"v_permlane16_swap_b32 v{v}, v{t}"); A(f"{op} v{v}, v{v}, v{t}")
        A(f"v_mov_b32 v{t}, v{v}"); A(f"v_permlane32_swap_b32 v{v}, v{t}"); A(f"{op} v{v}, v{v}, v{t}")
    def rbf(d, s):
        A(f"v_cvt_pk_bf16_f32 v{d}, v{s}, v{s}"); A(f"v_and_b32 v{d}, 0xffff0000, v{d}")
    def rbf2(a, b):
        A(f"v_cvt_pk_bf16_f32 v{b}, v{a}, v{b}"); A(f"v_lshlrev_b32 v{a}, 16, v{b}"); A(f"v_and_b32 v{b}, 0xffff0000, v{b}")
    vLANE16, vZERO, vONE, vTKT, vADDR, vM, vML, vL = 1, 2, 3, 4, 5, 6, 7, 8
    vFF, vLANE, vPUB = 9, 10, 11
    vQ, vMASK, vACC = 12, 16, 20
    vR, vA_, vB_, vC_, vE_ = 24, 28, 29, 30, 31
    vAOP = 32
    vT = 48
    RING = 64
    def tagit(b):
        for r in range(4): A(f"v_bfi_b32 v{b+r}, v{vFF}, {sT[r]}, v{b+r}")
    def publish(b, soff_reg, imm=0):
        tagit(b)
        A("s_mov_b32 exec_hi, 0")
        A(f"buffer_store_dwordx4 {v4(b)}, v{vPUB}, {SWS}, {soff_reg} offen offset:{imm} sc1")
        A("s_mov_b64 exec, -1")
    def poll(loads, pre=None):
        L = U("poll"); Ld = U("polld")
        A(f"s_mov_b32 {sTO}, 0x40000")
        A.label(L)
        for (d, vo, so, imm, em) in loads:
            if em is not None: A(f"s_mov_b64 exec, {em}")
            A(f"buffer_load_dwordx4 {v4(d)}, v{vo}, {SWS}, {so} offen offset:{imm} sc1")
            if em is not None: A("s_mov_b64 exec, -1")
        b = vT + 12
        n = len(loads)
        for i, (d, vo, so, imm, em) in enumerate(loads):
            A(f"s_waitcnt vmcnt({n-1-i})")
            for r in range(4):
                if i == 0: A(f"v_xor_b32 v{b+r}, {sT[r]}, v{d+r}")
                else: A(f"v_bitop3_b32 v{b+r}, v{b+r}, v{d+r}, {sT[r]} bitop3:0xf6")
        A(f"v_or3_b32 v{b}, v{b}, v{b+1}, v{b+2}")
        A(f"v_or_b32 v{b}, v{b}, v{b+3}")
        A(f"v_and_b32 v{b}, v{vFF}, v{b}")
        A(f"v_cmp_ne_u32 vcc, 0, v{b}")
        A(f"s_cbranch_vccz {Ld}")
        A(f"s_sub_u32 {sTO}, {sTO}, 1")
        A(f"s_cmp_lg_u32 {sTO}, 0")
        A(f"s_cbranch_scc1 {L}")
        A.label(Ld)
    def gemv(acc, items, first_zero=True):
        for n, (x, ctl, w, wc) in enumerate(items):
            a = vAOP + 4 * (n % 4)
            for t in range(4): A(f"v_and_b32_dpp v{a+t}, v{x}, v{vMASK+t} {ctl} {DPPF}")
            if n >= 1:
                (x0, c0, w0, wc0) = items[n-1]
                if wc0 is not None: A(f"s_waitcnt vmcnt({wc0})")
                a0 = vAOP + 4 * ((n-1) % 4)
                A(f"v_mfma_f32_16x16x32_bf16 {v4(acc)}, {v4(a0)}, {v4(w0)}, {'0' if (n == 1 and first_zero) else v4(acc)}")
        n = len(items)
        (x0, c0, w0, wc0) = items[n-1]
        if wc0 is not None: A(f"s_waitcnt vmcnt({wc0})")
        a0 = vAOP + 4 * ((n-1) % 4)
        A(f"v_mfma_f32_16x16x32_bf16 {v4(acc)}, {v4(a0)}, {v4(w0)}, {'0' if (n == 1 and first_zero) else v4(acc)}")
    def sum_to_x(bases, d0, d1):
        b0 = bases[0]
        for b in bases[1:]:
            for r in range(4): A(f"v_add_f32 v{b0+r}, v{b0+r}, v{b+r}")
        A(f"v_permlane32_swap_b32 v{b0}, v{b0+2}"); A(f"v_permlane32_swap_b32 v{b0+1}, v{b0+3}")
        A(f"v_add_f32 v{d0}, v{b0}, v{b0+2}"); A(f"v_add_f32 v{d1}, v{b0+1}, v{b0+3}")
    def layernorm(a, x0, x1, t):
        A(f"v_add_f32 v{t}, v{a}, v{a+1}")
        for i in range(2, 10): A(f"v_add_f32 v{t}, v{t}, v{a+i}")
        wave_red("v_add_f32", t, t+1)
        A(f"v_mul_f32 v{t}, {hex(f2u(1.0/640))}, v{t}")
        for i in range(10): A(f"v_sub_f32 v{a+i}, v{a+i}, v{t}")
        A(f"v_mul_f32 v{t+2}, v{a}, v{a}")
        for i in range(1, 10): A(f"v_fmac_f32 v{t+2}, v{a+i}, v{a+i}")
        wave_red("v_add_f32", t+2, t+1)
        A(f"v_mul_f32 v{t+2}, {hex(f2u(1.0/640))}, v{t+2}")
        rbf2(t, t+2)
        A(f"v_add_f32 v{t+2}, {hex(f2u(1e-5))}, v{t+2}"); rbf(t+2, t+2)
        A(f"v_sqrt_f32 v{t+2}, v{t+2}"); rbf(t+2, t+2)
        A(f"v_rcp_f32 v{t+2}, v{t+2}")
    def ln_apply(x0, x1, t):
        A(f"v_sub_f32 v{x0}, v{x0}, v{t}"); A(f"v_sub_f32 v{x1}, v{x1}, v{t}"); rbf2(x0, x1)
        A(f"v_mul_f32 v{x0}, v{x0}, v{t+2}"); A(f"v_mul_f32 v{x1}, v{x1}, v{t+2}"); rbf2(x0, x1)
    def modulate(x0, x1, c0, c1, s0, s1):
        A(f"v_add_f32 v{c0}, 1.0, v{c0}"); A(f"v_add_f32 v{c1}, 1.0, v{c1}"); rbf2(c0, c1)
        A(f"v_mul_f32 v{x0}, v{x0}, v{c0}"); A(f"v_mul_f32 v{x1}, v{x1}, v{c1}"); rbf2(x0, x1)
        A(f"v_add_f32 v{x0}, v{x0}, v{s0}"); A(f"v_add_f32 v{x1}, v{x1}, v{s1}")
        A(f"v_cvt_pk_bf16_f32 v{x0}, v{x0}, v{x0}"); A(f"v_cvt_pk_bf16_f32 v{x1}, v{x1}, v{x1}")
    def silu(x, t):
        A(f"v_mul_f32 v{t}, {hex(f2u(-LOG2E))}, v{x}"); A(f"v_exp_f32 v{t}, v{t}")
        A(f"v_add_f32 v{t}, 1.0, v{t}"); A(f"v_rcp_f32 v{t}, v{t}"); A(f"v_mul_f32 v{x}, v{x}, v{t}")
    def row128_voff(d, stride):
        A(f"v_bfe_u32 v{vT}, v{vLANE}, 4, 1"); A(f"v_lshlrev_b32 v{vT}, 6, v{vT}")
        A(f"v_lshrrev_b32 v{vT+1}, 5, v{vLANE}"); A(f"v_lshl_add_u32 v{vT}, v{vT+1}, 1, v{vT}")
        A(f"v_mul_u32_u24 v{vT}, {stride}, v{vT}")
        A(f"v_and_b32 v{vT+1}, 15, v{vLANE}"); A(f"v_lshl_add_u32 v{d}, v{vT+1}, 4, v{vT}")
    def load_block128(wb, S, voff, sbase, stride):
        for n in range(32):
            u, j = n // 16, n % 16
            A(f"s_add_u32 s68, {sbase}, {(j*4+u)*stride}")
            A(f"buffer_load_dwordx4 {v4(wb+4*n)}, v{voff}, {S}, s68 offen {pol}")
    def gemv_block128(acc, x0, x1, wb):
        gemv(acc, [((x0, x1)[n // 16], f"row_newbcast:{n % 16}", wb + 4*n, None) for n in range(32)])
    def combine(ob, mlb, mstride, t, final_x):
        m = [mlb + n*mstride for n in range(4)]
        A(f"v_max3_f32 v{t}, v{m[0]}, v{m[1]}, v{m[2]}"); A(f"v_max_f32 v{t}, v{t}, v{m[3]}")
        A(f"v_mov_b32 v{t+1}, v{t}"); A(f"v_permlane32_swap_b32 v{t}, v{t+1}"); A(f"v_max_f32 v{t}, v{t}, v{t+1}")
        for n in range(4): A(f"v_sub_f32 v{m[n]}, v{m[n]}, v{t}")
        for n in range(4): A(f"v_mul_f32 v{m[n]}, {sL2E}, v{m[n]}")
        for n in range(4): A(f"v_exp_f32 v{m[n]}, v{m[n]}")
        A(f"v_mul_f32 v{t+1}, v{m[0]}, v{m[0]+1}")
        for n in range(1, 4): A(f"v_fmac_f32 v{t+1}, v{m[n]}, v{m[n]+1}")
        for r in range(4): A(f"v_mul_f32 v{ob+r}, v{m[0]}, v{ob+r}")
        for n in range(1, 4):
            for r in range(4): A(f"v_fmac_f32 v{ob+r}, v{m[n]}, v{ob+4*n+r}")
        A(f"v_mov_b32 v{t+2}, v{t+1}"); A(f"v_permlane32_swap_b32 v{t+1}, v{t+2}"); A(f"v_add_f32 v{t+1}, v{t+1}, v{t+2}")
        A(f"v_permlane32_swap_b32 v{ob}, v{ob+2}"); A(f"v_permlane32_swap_b32 v{ob+1}, v{ob+3}")
        A(f"v_add_f32 v{ob}, v{ob}, v{ob+2}"); A(f"v_add_f32 v{ob+1}, v{ob+1}, v{ob+3}")
        if final_x:
            A(f"v_rcp_f32 v{t+2}, v{t+1}")
            A(f"v_mul_f32 v{ob}, v{ob}, v{t+2}"); A(f"v_mul_f32 v{ob+1}, v{ob+1}, v{t+2}")
        else:
            A(f"v_permlane32_swap_b32 v{ob}, v{ob+2}"); A(f"v_permlane32_swap_b32 v{ob+1}, v{ob+3}")
    def mod_task(scb, srb):
        wb = RING
        srd(SA, "s24", "s25", 640*7680); srd(SB, "s22", "s23", 1280)
        A(f"v_lshrrev_b32 v{vT}, 4, v{vLANE}"); A(f"v_mul_u32_u24 v{vT}, 20, v{vT}")
        A(f"v_and_b32 v{vT+1}, 15, v{vLANE}"); A(f"v_add_u32 v{vT+2}, v{vT}, v{vT+1}"); A(f"v_lshlrev_b32 v{vT+2}, 1, v{vT+2}")
        A(f"v_and_b32 v{vT+3}, 3, v{vLANE}"); A(f"v_add_u32 v{vT+3}, v{vT}, v{vT+3}"); A(f"v_lshlrev_b32 v{vT+3}, 1, v{vT+3}")
        A(f"s_mul_i32 s69, {srb}, 160")
        A(f"buffer_load_ushort v{vT+4}, v{vT+2}, {SB}, s69 offen")
        A(f"buffer_load_ushort v{vT+5}, v{vT+3}, {SB}, s69 offen offset:32")
        A(f"v_mul_u32_u24 v{vT}, 7680, v{vT}"); A(f"v_lshl_add_u32 v{vT}, v{vT+1}, 4, v{vT}")
        A(f"s_mul_i32 s69, {srb}, {80*7680}"); A(f"s_lshl_b32 s68, {scb}, 8"); A("s_add_u32 s69, s69, s68")
        for t in range(20):
            A(f"s_add_u32 s68, s69, {t*7680}")
            A(f"buffer_load_dwordx4 {v4(wb+4*t)}, v{vT}, {SA}, s68 offen {pol}")
        A("s_waitcnt vmcnt(20)")
        for k in (4, 5):
            A(f"v_lshlrev_b32 v{vT+k}, 16, v{vT+k}"); silu(vT+k, vT+6); A(f"v_cvt_pk_bf16_f32 v{vT+k}, v{vT+k}, v{vT+k}")
        gemv(vACC, [(vT+4 if t < 16 else vT+5, f"row_newbcast:{t % 16}", wb+4*t, 19-t) for t in range(20)])
        A(f"s_lshl_b32 s68, {scb}, 3"); A(f"s_add_u32 s68, s68, {srb}"); A("s_lshl_b32 s68, s68, 9"); A(f"s_add_u32 s68, s68, {WS_MODP}")
        publish(vACC, "s68")

    A(f"; @launch grid=(256,1,1) block=(512,1,1) lds={L_END}")
    A('.amdgcn_target "amdgcn-amd-amdhsa--gfx950"')
    A(".text"); A(f".globl {KN}"); A(".p2align 8"); A(f".type {KN},@function"); A.label(KN)
    stamp(0)
    A("s_cmp_ge_u32 s2, 256"); A("s_cbranch_scc1 L_end")
    A("s_load_dwordx16 s[4:19], s[0:1], 0")
    A("s_load_dwordx8 s[20:27], s[0:1], 64")
    A("s_load_dwordx4 s[28:31], s[0:1], 96")
    A("v_lshrrev_b32 v1, 6, v0"); A(f"v_and_b32 v{vLANE}, 63, v0")
    A(f"v_readfirstlane_b32 {sWAVE}, v1")
    A(f"v_lshlrev_b32 v{vLANE16}, 4, v{vLANE}")
    A(f"s_and_b32 {sHD}, s2, 31"); A(f"s_lshr_b32 {sS}, s2, 5")
    A(f"s_mov_b32 {sL2E}, {hex(f2u(LOG2E))}"); A(f"s_mov_b32 {sSC}, {hex(f2u(SCALE))}")
    A(f"s_sub_u32 {sF}, s2, 160")
    A(f"v_mov_b32 v{vZERO}, 0"); A(f"v_mov_b32 v{vONE}, 1"); A(f"v_mov_b32 v{vFF}, 0xff")
    A(f"s_cmp_eq_u32 {sWAVE}, 0"); A("s_cbranch_scc1 L_ctrl0")
    A(f"s_mov_b32 {sNT}, 128"); A(f"s_lshl_b32 s68, {sS}, 19")
    A(f"s_lshl_b32 s69, {sHD}, 22"); A("s_add_u32 s68, s68, s69")
    A(f"s_sub_u32 s69, {sWAVE}, 1"); A(f"s_mul_i32 s69, s69, {(2+NE)*4096}")
    A(f"v_add_u32 v{vADDR}, s69, v{vLANE16}")
    A("s_waitcnt lgkmcnt(0)")
    A("s_add_u32 s40, s6, s68"); A("s_addc_u32 s41, s7, 0"); A(f"s_lshl_b32 s42, {sNT}, 12"); A("s_mov_b32 s43, 0x20000")
    A("s_add_u32 s44, s8, s68"); A("s_addc_u32 s45, s9, 0"); A(f"s_lshl_b32 s46, {sNT}, 12"); A("s_mov_b32 s47, 0x20000")
    def loadK(slot):
        for u in range(4): A(f"buffer_load_dwordx4 {v4(RING+32*slot+4*u)}, v{vADDR}, {SK}, 0 offen offset:{u*1024} {pol}")
    def loadV(slot):
        for u in range(4): A(f"buffer_load_dwordx4 {v4(RING+32*slot+16+4*u)}, v{vADDR}, {SV}, 0 offen offset:{u*1024} {pol}")
    for k in range(2 + NE):
        loadK(k); loadV(k)
        if k < 1 + NE: A(f"v_add_u32 v{vADDR}, 0x1000, v{vADDR}")
    def common_setup():
        A(f"s_load_dword {sTAG}, s[30:31], 0")
        srd(SWS, "s30", "s31", WS_END)
        A(f"v_and_b32 v{vT}, 1, v{vLANE}"); A(f"v_lshlrev_b32 v{vT}, 4, v{vT}"); A(f"v_mov_b32 v{vT+1}, 0xffff"); A(f"v_lshlrev_b32 v{vT}, v{vT}, v{vT+1}")
        A(f"v_bfe_u32 v{vT+1}, v{vLANE}, 1, 2")
        for t in range(4):
            A(f"v_cmp_eq_u32 vcc, {t}, v{vT+1}"); A(f"v_cndmask_b32 v{vMASK+t}, 0, v{vT}, vcc")
        A(f"v_and_b32 v{vT}, 15, v{vLANE}"); A(f"v_lshlrev_b32 v{vT}, 5, v{vT}"); A(f"v_and_b32 v{vT+1}, 16, v{vLANE}"); A(f"v_add_u32 v{vPUB}, v{vT}, v{vT+1}")
    def tag_finish():
        A("s_waitcnt lgkmcnt(0)")
        A(f"s_add_u32 {sTAG}, {sTAG}, 0x01010101")
        A(f"s_lshr_b32 {sT[1]}, {sTAG}, 8"); A(f"s_lshr_b32 {sT[2]}, {sTAG}, 16"); A(f"s_lshr_b32 {sT[3]}, {sTAG}, 24")
    common_setup(); tag_finish()

    A(f"v_mov_b32 v{vM}, {hex(f2u(-1e30))}"); A(f"v_mov_b32 v{vML}, {hex(f2u(-1e30))}"); A(f"v_mov_b32 v{vL}, 0")
    for r in range(4): A(f"v_mov_b32 v{vACC+r}, 0")
    A("s_barrier")
    A(f"v_and_b32 v{vT}, 15, v{vLANE}"); A(f"v_lshlrev_b32 v{vT}, 4, v{vT}")
    A(f"ds_read_b128 {v4(vQ)}, v{vT} offset:{L_Q}")
    def req_ticket():
        A("s_mov_b64 exec, 1"); A(f"ds_add_rtn_u32 v{vTKT}, v{vZERO}, v{vONE} offset:{L_TICKET}"); A("s_mov_b64 exec, -1")
    req_ticket()
    rescue = []
    def process(slot, wk, wv, refill, sv=None):
        kb, vb = RING + 32*slot, RING + 32*slot + 16
        if refill:
            A("s_waitcnt lgkmcnt(0)")
            A(f"v_readfirstlane_b32 {sv}, v{vTKT}")
            req_ticket()
            A(f"s_lshl_b32 s68, {sv}, 12")
            A(f"v_add_u32 v{vADDR}, s68, v{vLANE16}")
        A(f"s_waitcnt vmcnt({wk})")
        for t in range(4):
            for u in range(4):
                if t == 0: A(f"v_dot2_f32_bf16 v{vR+u}, v{kb+4*u}, v{vQ}, 0")
                else: A(f"v_dot2c_f32_bf16 v{vR+u}, v{kb+4*u+t}, v{vQ+t}")
        if refill: loadK(slot)
        A(f"v_add_f32_dpp v{vA_}, v{vR}, v{vR} row_ror:8 row_mask:0xf bank_mask:0x3")
        A(f"v_add_f32_dpp v{vB_}, v{vR+2}, v{vR+2} row_ror:8 row_mask:0xf bank_mask:0x3")
        A(f"v_add_f32_dpp v{vA_}, v{vR+1}, v{vR+1} row_ror:8 row_mask:0xf bank_mask:0xc")
        A(f"v_add_f32_dpp v{vB_}, v{vR+3}, v{vR+3} row_ror:8 row_mask:0xf bank_mask:0xc")
        A(f"v_add_f32_dpp v{vC_}, v{vA_}, v{vA_} row_shl:4 row_mask:0xf bank_mask:0x5")
        A(f"v_add_f32_dpp v{vC_}, v{vB_}, v{vB_} row_shr:4 row_mask:0xf bank_mask:0xa")
        A(f"v_add_f32_dpp v{vC_}, v{vC_}, v{vC_} quad_perm:[1,0,3,2] {DPPF}")
        A(f"v_add_f32_dpp v{vC_}, v{vC_}, v{vC_} quad_perm:[2,3,0,1] {DPPF}")
        rbf(vC_, vC_)
        A(f"v_mul_f32 v{vC_}, {sSC}, v{vC_}")
        rbf(vC_, vC_)
        Lr, Lb = U("resc"), U("back")
        A(f"v_cmp_gt_f32 vcc, v{vC_}, v{vM}")
        A(f"s_cbranch_vccnz {Lr}")
        A.label(Lb)
        rescue.append((Lr, Lb))
        A(f"v_fma_f32 v{vE_}, v{vC_}, {sL2E}, -v{vML}")
        A(f"v_exp_f32 v{vE_}, v{vE_}")
        A(f"v_add_f32 v{vL}, v{vL}, v{vE_}")
        A(f"v_cvt_pk_bf16_f32 v{vE_}, v{vE_}, v{vE_}")
        lane_of = [0, 8, 4, 12]
        for u in range(4):
            for t in range(4): A(f"v_and_b32_dpp v{vAOP+4*u+t}, v{vE_}, v{vMASK+t} row_newbcast:{lane_of[u]} {DPPF}")
        A(f"s_waitcnt vmcnt({wv})")
        for u in range(4):
            A(f"v_mfma_f32_16x16x32_bf16 {v4(vACC)}, {v4(vAOP+4*u)}, {v4(vb+4*u)}, {v4(vACC)}")
        if refill: loadV(slot)
    n0 = 8 * (2 + NE) - 4
    sVA, sVB = "s66", "s67"
    process(0, n0, n0, True, sVA)
    process(1, n0, n0, True, sVB)
    for k in range(NE):
        process(2 + k, n0 - 8*k, n0 - 8*k - 4, False)
    WG_, WD_ = RING + 64, RING + 128
    A(f"s_cmp_ge_u32 {sF}, 54"); A("s_cbranch_scc1 L_loop")
    A(f"s_cmp_gt_u32 {sWAVE}, 5"); A("s_cbranch_scc1 L_loop")
    A(f"v_bfe_u32 v{vT}, v{vLANE}, 4, 1"); A(f"v_lshlrev_b32 v{vT}, 6, v{vT}")
    A(f"v_lshrrev_b32 v{vT+1}, 5, v{vLANE}"); A(f"v_lshl_add_u32 v{vT}, v{vT+1}, 1, v{vT}")
    A(f"v_bfe_u32 v{vT+1}, v{vLANE}, 3, 1"); A(f"v_lshl_add_u32 v{vT}, v{vT+1}, 5, v{vT}")
    A(f"s_sub_u32 s68, {sWAVE}, 1"); A("s_lshl_b32 s69, s68, 7"); A(f"v_add_u32 v{vT}, s69, v{vT}")
    A(f"v_mul_u32_u24 v{vT}, 3456, v{vT}")
    A(f"v_and_b32 v{vT+1}, 3, v{vLANE}"); A(f"v_lshl_add_u32 v{vT}, v{vT+1}, 4, v{vT}")
    A(f"s_lshl_b32 s69, {sF}, 6"); A(f"v_add_u32 v{vT}, s69, v{vT}")
    srd(SA, "s16", "s17", 640*3456); srd(SB, "s18", "s19", 640*3456)
    for n in range(16):
        u, hh, k = n // 8, (n // 4) % 2, n % 4
        A(f"s_mov_b32 s69, {(u + 16*hh + 4*k) * 3456}")
        A("s_mov_b64 exec, s[98:99]" if False else "s_mov_b32 exec_lo, 0x0f0f0f0f"); A("s_mov_b32 exec_hi, 0x0f0f0f0f")
        A(f"buffer_load_dwordx4 {v4(WG_+4*n)}, v{vT}, {SA}, s69 offen {pol}")
        A("s_mov_b32 exec_lo, 0xf0f0f0f0"); A("s_mov_b32 exec_hi, 0xf0f0f0f0")
        A(f"buffer_load_dwordx4 {v4(WG_+4*n)}, v{vT}, {SB}, s69 offen {pol}")
    A("s_mov_b64 exec, -1")
    srd(SA, "s20", "s21", 1728*1280)
    A(f"v_lshrrev_b32 v{vT}, 4, v{vLANE}"); A(f"v_mul_u32_u24 v{vT}, {8*1280}, v{vT}")
    A(f"v_and_b32 v{vT+1}, 15, v{vLANE}"); A(f"v_lshl_add_u32 v{vT}, v{vT+1}, 4, v{vT}")
    A(f"s_mul_i32 s69, {sF}, {32*1280}"); A("s_lshl_b32 s68, s68, 8"); A("s_add_u32 s69, s69, s68")
    for t in range(8):
        A(f"s_add_u32 s68, s69, {t*1280}")
        A(f"buffer_load_dwordx4 {v4(WD_+4*t)}, v{vT}, {SA}, s68 offen {pol}")
    A.label("L_loop")
    A(f"s_cmp_ge_u32 {sVA}, {sNT}"); A("s_cbranch_scc1 L_sdone")
    process(0, 12, 12, True, sVA)
    A(f"s_cmp_ge_u32 {sVB}, {sNT}"); A("s_cbranch_scc1 L_sdone")
    process(1, 12, 12, True, sVB)
    A("s_branch L_loop")
    for (Lr, Lb) in rescue:
        A.label(Lr)
        A(f"v_max_f32 v{vA_}, v{vC_}, v{vM}")
        row_red("v_max_f32", vA_, vB_)
        A(f"v_sub_f32 v{vB_}, v{vM}, v{vA_}"); A(f"v_mul_f32 v{vB_}, {sL2E}, v{vB_}"); A(f"v_exp_f32 v{vB_}, v{vB_}")
        A(f"v_mov_b32 v{vM}, v{vA_}"); A(f"v_mul_f32 v{vML}, {sL2E}, v{vA_}")
        A(f"v_mul_f32 v{vL}, v{vL}, v{vB_}")
        for r in range(4): A(f"v_mul_f32 v{vACC+r}, v{vACC+r}, v{vB_}")
        A(f"s_branch {Lb}")
    A.label("L_sdone")
    row_red("v_add_f32", vL, vA_)
    A(f"s_sub_u32 s68, {sWAVE}, 1"); A("s_lshl_b32 s69, s68, 9"); A(f"v_add_u32 v{vT}, s69, v{vPUB}")
    A("s_lshl_b32 s69, s68, 3"); A(f"v_mov_b32 v{vT+1}, s69")
    A(f"v_mov_b32 v{vML}, v{vL}")
    A("s_mov_b32 exec_hi, 0")
    A(f"ds_write_b128 v{vT}, {v4(vACC)} offset:{L_PO}")
    A(f"ds_write_b64 v{vT+1}, v[{vM}:{vML}] offset:{L_PML}")
    A("s_mov_b64 exec, -1")
    A("s_waitcnt lgkmcnt(0)")
    A("s_barrier")
    A(f"s_cmp_ge_u32 {sF}, 54"); A("s_cbranch_scc1 L_end")
    A(f"s_cmp_gt_u32 {sWAVE}, 5"); A("s_cbranch_scc1 L_end")
    sCB = "s61"
    A(f"s_sub_u32 {sCB}, {sWAVE}, 1")
    X0, X1 = 24, 25
    GA, SBv, CBv = 26, 28, 30
    srd(SB, "s4", "s5", 1280)
    A(f"v_bfe_u32 v{vT}, v{vLANE}, 4, 1"); A(f"v_lshlrev_b32 v{vT}, 7, v{vT}")
    A(f"v_lshrrev_b32 v{vT+1}, 5, v{vLANE}"); A(f"v_lshl_add_u32 v{vT}, v{vT+1}, 2, v{vT}")
    A(f"v_and_b32 v{vT+1}, 15, v{vLANE}"); A(f"v_lshl_add_u32 v{vT}, v{vT+1}, 3, v{vT}")
    A(f"s_lshl_b32 s68, {sCB}, 8")
    A(f"buffer_load_dword v{X1}, v{vT}, {SB}, s68 offen")
    A(f"s_lshl_b32 s68, {sCB}, 9"); A(f"v_lshlrev_b32 v{vT+2}, 3, v{vLANE}"); A(f"v_add_u32 v{vT+3}, s68, v{vT+2}")
    A(f"ds_read_b64 v[{GA}:{GA+1}], v{vT+3} offset:{L_MOD}")
    A(f"ds_read_b64 v[{SBv}:{SBv+1}], v{vT+3} offset:{L_MOD+5*512}")
    A(f"ds_read_b64 v[{CBv}:{CBv+1}], v{vT+3} offset:{L_MOD+10*512}")
    A(f"v_lshrrev_b32 v{vT+4}, 5, v{vLANE}"); A(f"v_mul_u32_u24 v{vT+4}, 2560, v{vT+4}")
    A(f"v_and_b32 v{vT+5}, 31, v{vLANE}"); A(f"v_lshl_add_u32 v{vT+4}, v{vT+5}, 4, v{vT+4}")
    A(f"v_add_u32 v{vT+4}, s68, v{vT+4}")
    for n in range(16): A(f"s_mov_b32 s{74+n if not stamps else 4+n}, {WS_YP + n*5120}")
    sb = 74 if not stamps else 4
    A("s_waitcnt vmcnt(0)")
    A(f"v_lshlrev_b32 v{X0}, 16, v{X1}"); A(f"v_and_b32 v{X1}, 0xffff0000, v{X1}")
    stamp(8)
    poll([(RING+4*n, vT+4, f"s{sb+n}", 0, None) for n in range(16)])
    stamp(9)
    sum_to_x([RING+4*n for n in range(16)], RING, RING+1)
    rbf2(RING, RING+1)
    A("s_waitcnt lgkmcnt(0)")
    A(f"v_mul_f32 v{RING}, v{RING}, v{GA}"); A(f"v_mul_f32 v{RING+1}, v{RING+1}, v{GA+1}"); rbf2(RING, RING+1)
    A(f"v_add_f32 v{X0}, v{X0}, v{RING}"); A(f"v_add_f32 v{X1}, v{X1}, v{RING+1}"); rbf2(X0, X1)
    A(f"ds_write_b64 v{vT+3}, v[{X0}:{X1}] offset:{L_X2}")
    A("s_waitcnt lgkmcnt(0)")
    A("s_barrier")
    for k in range(5): A(f"ds_read_b64 v[{RING+2*k}:{RING+2*k+1}], v{vT+2} offset:{L_X2+k*512}")
    A("s_waitcnt lgkmcnt(0)")
    layernorm(RING, X0, X1, vT+8)
    ln_apply(X0, X1, vT+8)
    modulate(X0, X1, CBv, CBv+1, SBv, SBv+1)
    Y = RING
    for u in range(2):
        x = (X0, X1)[u]
        A(f"v_mov_b32 v{Y+2*u}, v{x}"); A(f"v_mov_b32 v{Y+2*u+1}, v{x}")
        A(f"v_mov_b32_dpp v{Y+2*u}, v{x} row_shr:4 row_mask:0xf bank_mask:0xa")
        A(f"v_mov_b32_dpp v{Y+2*u+1}, v{x} row_shl:4 row_mask:0xf bank_mask:0x5")
    gemv(vACC, [(Y + n // 4, f"quad_perm:[{n%4},{n%4},{n%4},{n%4}]", WG_+4*n, None) for n in range(16)])
    A(f"v_and_b32 v{vT}, 7, v{vLANE}"); A(f"v_lshlrev_b32 v{vT}, 5, v{vT}")
    A(f"v_and_b32 v{vT+1}, 16, v{vLANE}"); A(f"v_add_u32 v{vT}, v{vT}, v{vT+1}")
    A(f"v_lshrrev_b32 v{vT+1}, 5, v{vLANE}"); A(f"v_lshl_add_u32 v{vT}, v{vT+1}, 8, v{vT}")
    A(f"s_lshl_b32 s68, {sCB}, 9"); A(f"v_add_u32 v{vT}, s68, v{vT}")
    A("s_mov_b32 exec_lo, 0x00ff00ff"); A("s_mov_b32 exec_hi, 0xff00ff00")
    A(f"ds_write_b128 v{vT}, {v4(vACC)} offset:{L_RED}")
    A("s_mov_b64 exec, -1")
    A(f"v_lshrrev_b32 v{vT}, 4, v{vLANE}"); A(f"v_lshlrev_b32 v{vT}, 3, v{vT}")
    A(f"v_and_b32 v{vT+1}, 7, v{vLANE}"); A(f"v_add_u32 v{vT}, v{vT}, v{vT+1}")
    A(f"v_bfe_u32 v{vT+1}, v{vLANE}, 3, 1"); A(f"v_lshl_add_u32 v{vT}, v{vT+1}, 5, v{vT}")
    A(f"v_lshlrev_b32 v{vT}, 2, v{vT}"); A(f"v_add_u32 v{vT}, {L_RED}, v{vT}")
    A("s_waitcnt lgkmcnt(0)")
    A("s_barrier")
    for k in range(5): A(f"ds_read2st64_b32 v[{RING+2*k}:{RING+2*k+1}], v{vT} offset0:{2*k} offset1:{2*k+1}")
    A("s_waitcnt lgkmcnt(0)")
    for k in range(1, 10): A(f"v_add_f32 v{RING}, v{RING}, v{RING+k}")
    rbf(RING, RING)
    A(f"v_mov_b32_dpp v{RING+1}, v{RING} row_ror:8 {DPPF}")
    silu(RING, RING+2); rbf(RING, RING)
    A(f"v_mul_f32 v{RING}, v{RING}, v{RING+1}")
    A(f"v_cvt_pk_bf16_f32 v{RING}, v{RING}, v{RING}")
    gemv(vACC, [(RING, f"row_newbcast:{t}", WD_+4*t, None) for t in range(8)])
    A(f"s_mul_i32 s68, {sF}, 2560"); A(f"s_lshl_b32 s69, {sCB}, 9"); A("s_add_u32 s68, s68, s69"); A(f"s_add_u32 s68, s68, {WS_DP}")
    publish(vACC, "s68")
    stamp(10)
    A(f"s_cmp_lg_u32 {sWAVE}, 1"); A("s_cbranch_scc1 L_end")
    A(f"s_cmp_ge_u32 {sF}, 20"); A("s_cbranch_scc1 L_fin_dump")
    A(f"v_and_b32 v{vT}, 7, v{vLANE}"); A(f"v_lshlrev_b32 v{vT}, 2, v{vT}")
    A(f"v_lshrrev_b32 v{vT+1}, 5, v{vLANE}"); A(f"v_lshl_add_u32 v{vT}, v{vT+1}, 1, v{vT}")
    A(f"v_bfe_u32 v{vT+1}, v{vLANE}, 4, 1"); A(f"v_add_u32 v{vT}, v{vT}, v{vT+1}")
    A(f"s_lshl_b32 s68, {sF}, 5"); A(f"v_add_u32 v{vT}, s68, v{vT}")
    A(f"v_lshrrev_b32 v{vT+1}, 7, v{vT}"); A(f"v_lshlrev_b32 v{vT+1}, 9, v{vT+1}")
    A(f"v_bfe_u32 v{vT+2}, v{vT}, 6, 1"); A(f"v_lshl_add_u32 v{vT+1}, v{vT+2}, 7, v{vT+1}")
    A(f"v_bfe_u32 v{vT+2}, v{vT}, 1, 1"); A(f"v_lshl_add_u32 v{vT+1}, v{vT+2}, 8, v{vT+1}")
    A(f"v_bfe_u32 v{vT+2}, v{vT}, 2, 4"); A(f"v_lshl_add_u32 v{vT+1}, v{vT+2}, 3, v{vT+1}")
    A(f"v_and_b32 v{vT+2}, 1, v{vT}"); A(f"v_lshl_add_u32 v{vT+1}, v{vT+2}, 2, v{vT+1}")
    A(f"ds_read_b32 v{X0}, v{vT+1} offset:{L_X2}")
    A(f"ds_read_b32 v{X1}, v{vT+1} offset:{L_MOD+15*512}")
    A(f"v_lshlrev_b32 v{vT}, 1, v{vT}")
    A(f"v_lshrrev_b32 v{vT+4}, 3, v{vLANE}"); A(f"v_mul_u32_u24 v{vT+4}, 2560, v{vT+4}")
    A(f"v_and_b32 v{vT+5}, 7, v{vLANE}"); A(f"v_lshl_add_u32 v{vT+4}, v{vT+5}, 4, v{vT+4}")
    A(f"s_lshl_b32 s68, {sF}, 7"); A(f"v_add_u32 v{vT+4}, s68, v{vT+4}")
    for n in range(7): A(f"s_mov_b32 s{sb+n}, {WS_DP + n*8*2560}")
    for r in range(4): A(f"v_and_b32 v{RING+24+r}, {sT[r]}, v{vFF}")
    A("s_mov_b32 s68, -1"); A("s_mov_b32 s69, 0xffff")
    poll([(RING+4*n, vT+4, f"s{sb+n}", 0, None if n < 6 else "s[68:69]") for n in range(7)])
    stamp(11)
    for n in range(1, 7):
        for r in range(4): A(f"v_add_f32 v{RING+r}, v{RING+r}, v{RING+4*n+r}")
    A(f"v_permlane32_swap_b32 v{RING}, v{RING+2}"); A(f"v_permlane32_swap_b32 v{RING+1}, v{RING+3}")
    A(f"v_add_f32 v{RING}, v{RING}, v{RING+2}"); A(f"v_add_f32 v{RING+1}, v{RING+1}, v{RING+3}")
    A(f"v_permlane16_swap_b32 v{RING}, v{RING+1}"); A(f"v_add_f32 v{RING}, v{RING}, v{RING+1}")
    A(f"v_add_f32_dpp v{RING}, v{RING}, v{RING} row_ror:8 {DPPF}")
    rbf(RING, RING)
    A("s_waitcnt lgkmcnt(0)")
    A(f"v_mul_f32 v{RING}, v{RING}, v{X1}"); rbf(RING, RING)
    A(f"v_add_f32 v{RING}, v{RING}, v{X0}"); A(f"v_cvt_pk_bf16_f32 v{RING}, v{RING}, v{RING}")
    srd(SB, "s26", "s27", 1280)
    A("s_mov_b32 exec_lo, 0x00ff00ff"); A("s_mov_b32 exec_hi, 0x00ff00ff")
    A(f"buffer_store_short v{RING}, v{vT}, {SB}, 0 offen")
    A(f"s_cmp_lg_u32 {sF}, 0"); A("s_cbranch_scc1 L_fin_dump")
    A("s_mov_b64 exec, 1"); A(f"v_mov_b32 v{RING+1}, {sTAG}")
    A(f"buffer_store_dword v{RING+1}, v{vZERO}, {SWS}, 0 offen sc1")
    A.label("L_fin_dump")
    if stamps:
        A("s_waitcnt vmcnt(0)"); stamp(12)
        stamp_dump([8, 9, 10, 11, 12])
    A("s_endpgm")

    A.label("L_ctrl0")
    A("s_setprio 3")
    A("s_waitcnt lgkmcnt(0)")
    common_setup(); tag_finish()
    A(f"v_mov_b32 v{vT}, {7*(2+NE)}"); A(f"ds_write_b32 v{vZERO}, v{vT} offset:{L_TICKET}")
    for r in range(4): A(f"v_mov_b32 v{vT+4+r}, 0")
    A(f"ds_write_b128 v{vPUB}, {v4(vT+4)} offset:{L_PO+7*512}")
    A(f"v_mov_b32 v{vT+4}, {hex(f2u(-1e30))}"); A(f"ds_write_b64 v{vZERO}, v[{vT+4}:{vT+5}] offset:{L_PML+56}")
    A("s_cmp_lt_u32 s2, 160"); A("s_cbranch_scc1 L_ctrl_q")
    A("s_cmp_ge_u32 s2, 240"); A("s_cbranch_scc1 L_hop2")
    A(f"s_lshr_b32 s38, {sF}, 3"); A(f"s_and_b32 s39, {sF}, 7")
    mod_task("s38", "s39")
    stamp(1)
    A("s_branch L_hop2")
    A.label("L_ctrl_q")
    WQ = RING + 64
    XA = RING
    X0, X1 = 24, 25
    srd(SB, "s4", "s5", 1280); srd(SA, "s10", "s11", 640*8192)
    A(f"v_lshlrev_b32 v{vT+2}, 2, v{vLANE}")
    for k in range(5): A(f"buffer_load_dword v{XA+2*k+1}, v{vT+2}, {SB}, 0 offen offset:{k*256}")
    A(f"v_bfe_u32 v{vT}, v{vLANE}, 4, 1"); A(f"v_lshlrev_b32 v{vT}, 7, v{vT}")
    A(f"v_lshrrev_b32 v{vT+1}, 5, v{vLANE}"); A(f"v_lshl_add_u32 v{vT}, v{vT+1}, 2, v{vT}")
    A(f"v_and_b32 v{vT+1}, 15, v{vLANE}"); A(f"v_lshl_add_u32 v{vT}, v{vT+1}, 3, v{vT}")
    A(f"s_lshl_b32 s68, {sS}, 8")
    A(f"buffer_load_dword v{X1}, v{vT}, {SB}, s68 offen")
    row128_voff(vT+3, 8192)
    A(f"s_lshl_b32 s69, {sS}, 20"); A(f"s_lshl_b32 s68, {sHD}, 8"); A("s_add_u32 s69, s69, s68")
    load_block128(WQ, SA, vT+3, "s69", 8192)
    A("s_waitcnt vmcnt(32)")
    for k in range(5):
        A(f"v_lshlrev_b32 v{XA+2*k}, 16, v{XA+2*k+1}"); A(f"v_and_b32 v{XA+2*k+1}, 0xffff0000, v{XA+2*k+1}")
    A(f"v_lshlrev_b32 v{X0}, 16, v{X1}"); A(f"v_and_b32 v{X1}, 0xffff0000, v{X1}")
    layernorm(XA, X0, X1, vT+8)
    ln_apply(X0, X1, vT+8)
    A(f"s_lshl_b32 s38, {sS}, 12"); A(f"s_add_u32 s38, s38, {WS_MODP}"); A(f"s_add_u32 s39, s38, {5*4096}")
    stamp(1)
    poll([(RING+4*n, vLANE16, "s38" if n < 4 else "s39", (n % 4)*1024, None) for n in range(8)])
    stamp(2)
    sum_to_x([RING+4*n for n in range(4)], RING, RING+1)
    sum_to_x([RING+16+4*n for n in range(4)], RING+16, RING+17)
    rbf2(RING, RING+1); rbf2(RING+16, RING+17)
    modulate(X0, X1, RING+16, RING+17, RING, RING+1)
    gemv_block128(vACC, X0, X1, WQ)
    A(f"s_mul_i32 s68, {sHD}, 5"); A(f"s_add_u32 s68, s68, {sS}"); A("s_lshl_b32 s68, s68, 9"); A(f"s_add_u32 s68, s68, {WS_QP}")
    publish(vACC, "s68")
    A.label("L_hop2")
    stamp(3)
    A(f"v_and_b32 v{vT+3}, 15, v{vLANE}"); A(f"v_lshlrev_b32 v{vT+3}, 5, v{vT+3}")
    A(f"s_mul_i32 s38, {sHD}, 2560"); A(f"s_add_u32 s38, s38, {WS_QP}")
    poll([(RING+4*n, vT+3, "s38", (n // 2)*512 + (n % 2)*16, None) for n in range(10)])
    for p in range(1, 5):
        for r in range(8): A(f"v_add_f32 v{RING+r}, v{RING+r}, v{RING+8*p+r}")
    for t in range(4): A(f"v_cvt_pk_bf16_f32 v{vQ+t}, v{RING+2*t}, v{RING+2*t+1}")
    A("s_mov_b64 exec, 0xffff")
    A(f"ds_write_b128 v{vLANE16}, {v4(vQ)} offset:{L_Q}")
    A("s_mov_b64 exec, -1")
    A("s_waitcnt lgkmcnt(0)")
    stamp(4)
    A("s_barrier")
    A("s_setprio 0")
    A("s_cmp_lt_u32 s2, 160"); A("s_cbranch_scc0 L_ctrl_b")
    A("s_lshr_b32 s38, s2, 3"); A("s_add_u32 s38, s38, 10"); A("s_and_b32 s39, s2, 7")
    mod_task("s38", "s39")
    srd(SA, "s12", "s13", 4096*1280)
    row128_voff(vT+3, 1280)
    A(f"s_mul_i32 s69, {sHD}, {128*1280}"); A(f"s_lshl_b32 s68, {sS}, 8"); A("s_add_u32 s69, s69, s68")
    load_block128(WQ, SA, vT+3, "s69", 1280)
    A("s_branch L_ctrl_wait")
    A.label("L_ctrl_b")
    A(f"s_cmp_ge_u32 {sF}, 54"); A("s_cbranch_scc1 L_ctrl_wait")
    A(f"s_mov_b32 s38, {WS_MODP + 10*4096}"); A(f"v_lshlrev_b32 v{vT+3}, 3, v{vLANE}")
    A.label("L_modrest")
    poll([(RING+4*n, vLANE16, "s38", n*1024, None) for n in range(4)])
    sum_to_x([RING+4*n for n in range(4)], RING, RING+1)
    rbf2(RING, RING+1)
    A(f"ds_write_b64 v{vT+3}, v[{RING}:{RING+1}] offset:{L_MOD}")
    A(f"v_add_u32 v{vT+3}, 512, v{vT+3}")
    A("s_add_u32 s38, s38, 4096"); A(f"s_cmp_lt_u32 s38, {WS_MODP + 30*4096}"); A("s_cbranch_scc1 L_modrest")
    A.label("L_ctrl_wait")
    A(f"v_lshrrev_b32 v{vT+5}, 5, v{vLANE}"); A(f"v_lshlrev_b32 v{vT+5}, 3, v{vT+5}")
    A("s_waitcnt lgkmcnt(0)")
    stamp(5)
    A("s_barrier")
    A("s_setprio 3")
    stamp(6)
    OB, MLB = RING, RING + 16
    for n in range(4): A(f"ds_read_b64 v[{MLB+4*n}:{MLB+4*n+1}], v{vT+5} offset:{L_PML+16*n}")
    for n in range(4): A(f"ds_read_b128 {v4(OB+4*n)}, v{vLANE16} offset:{L_PO+1024*n}")
    A("s_waitcnt lgkmcnt(0)")
    combine(OB, MLB, 4, vT+8, False)
    A(f"s_lshl_b32 s38, {sHD}, 12"); A(f"s_add_u32 s38, s38, {WS_OP}"); A(f"s_lshl_b32 s68, {sS}, 9"); A("s_add_u32 s68, s68, s38")
    A(f"s_lshl_b32 s39, {sHD}, 7"); A(f"s_add_u32 s39, s39, {WS_ML}"); A(f"s_lshl_b32 s69, {sS}, 4"); A("s_add_u32 s69, s69, s39")
    tagit(OB); tagit(vT+8)
    A("s_mov_b32 exec_hi, 0")
    A(f"buffer_store_dwordx4 {v4(OB)}, v{vLANE16}, {SWS}, s68 offen sc1")
    A("s_mov_b64 exec, 1")
    A(f"buffer_store_dwordx4 {v4(vT+8)}, v{vZERO}, {SWS}, s69 offen sc1")
    A("s_mov_b64 exec, -1")
    A("s_cmp_lt_u32 s2, 160"); A("s_cbranch_scc0 L_ctrl_end")
    A(f"v_lshlrev_b32 v{vT+5}, 1, v{vT+5}")
    poll([(OB+4*n, vLANE16, "s38", n*1024, None) for n in range(4)] + [(MLB+4*n, vT+5, "s39", n*32, None) for n in range(4)])
    stamp(7)
    for n in range(4): A(f"v_and_b32 v{MLB+4*n}, 0xffffff00, v{MLB+4*n}")
    combine(OB, MLB, 4, vT+8, True)
    A(f"v_cvt_pk_bf16_f32 v{OB}, v{OB}, v{OB}"); A(f"v_cvt_pk_bf16_f32 v{OB+1}, v{OB+1}, v{OB+1}")
    gemv_block128(vACC, OB, OB+1, WQ)
    A(f"s_mul_i32 s68, {sHD}, 2560"); A(f"s_lshl_b32 s69, {sS}, 9"); A("s_add_u32 s68, s68, s69"); A(f"s_add_u32 s68, s68, {WS_YP}")
    publish(vACC, "s68")
    A.label("L_ctrl_end")
    if stamps:
        stamp(13)
        stamp_dump([0, 1, 2, 3, 4, 5, 6, 7, 13], xcc=True)
    A.label("L_end")
    A("s_endpgm")
    A('.section .rodata,"a"'); A(".p2align 6"); A(f".amdhsa_kernel {KN}")
    A(".amdhsa_next_free_vgpr 256"); A(".amdhsa_next_free_sgpr 100"); A(".amdhsa_accum_offset 256")
    A(".amdhsa_group_segment_fixed_size 0"); A(".amdhsa_kernarg_size 112"); A(".amdhsa_user_sgpr_count 2")
    A(".amdhsa_user_sgpr_kernarg_segment_ptr 1"); A(".amdhsa_system_sgpr_workgroup_id_x 1")
    A(".amdhsa_float_denorm_mode_32 3")
    A(".end_amdhsa_kernel")
    return A.finalize()

if __name__ == "__main__":
    out = sys.argv[1]
    kw = {}
    for a in sys.argv[2:]:
        k, v = a.split("=")
        kw[k] = eval(v)
    open(out, "w").write(gen(**kw))
```

```python
import re

TRANS = ("v_exp_f32", "v_log_f32", "v_rcp_f32", "v_rsq_f32", "v_sqrt_f32", "v_sin_f32", "v_cos_f32", "v_rcp_iflag_f32")

def _regs(tok):
    tok = tok.strip()
    tok = tok.lstrip("-")
    m = re.fullmatch(r"abs\((.*)\)", tok)
    if m: tok = m.group(1)
    m = re.fullmatch(r"\|(.*)\|", tok)
    if m: tok = m.group(1)
    m = re.fullmatch(r"([vsa])(\d+)", tok)
    if m: return {(m.group(1), int(m.group(2)))}
    m = re.fullmatch(r"([vsa])\[(\d+):(\d+)\]", tok)
    if m: return {(m.group(1), i) for i in range(int(m.group(2)), int(m.group(3)) + 1)}
    if tok == "vcc": return {("s", "vcc_lo"), ("s", "vcc_hi")}
    if tok in ("vcc_lo", "vcc_hi"): return {("s", tok)}
    if tok == "exec": return {("s", "exec")}
    if tok == "m0": return {("s", "m0")}
    return set()

class Ins:
    def __init__(self, text):
        self.text = text
        t = text.split(";")[0].strip()
        self.label = None
        self.op = None
        self.w = set(); self.r = set()
        self.kind = None
        if t.endswith(":"):
            self.label = t[:-1]; self.kind = "label"; return
        if t.startswith(".") or not t:
            self.kind = "dir"; return
        parts = t.split(None, 1)
        op = parts[0]; self.op = op
        rest = parts[1] if len(parts) > 1 else ""
        ops = []; depth = 0; cur = ""
        for ch in rest:
            if ch in "[(": depth += 1
            if ch in "])": depth -= 1
            if ch == "," and depth == 0: ops.append(cur.strip()); cur = ""
            else: cur += ch
        if cur.strip(): ops.append(cur.strip())
        mods = ""
        if ops:
            sp = ops[-1].split(None, 1)
            ops[-1] = sp[0]
            if len(sp) > 1: mods = sp[1]
        self.ops = ops; self.mods = mods
        base = re.sub(r"_(e32|e64|dpp|sdwa)$", "", op)
        self.base = base
        self.dpp = op.endswith("_dpp") or any(k in mods for k in ("row_", "quad_perm", "row_newbcast"))
        self.sdwa = op.endswith("_sdwa")
        R = [_regs(o) for o in ops]
        allr = lambda idx: set().union(*[R[i] for i in idx]) if idx else set()
        n = len(ops)
        if op.startswith("v_mfma"):
            self.kind = "mfma"; self.w = R[0]; self.r = allr(range(1, n)); self.srcA = R[1]; self.srcB = R[2]; self.srcC = R[3]
            self.passes = 4 if "16x16x32" in op or "16x16x16" in op else 8
        elif op.startswith("v_"):
            self.kind = "valu"
            if base.startswith("v_cmpx"):
                self.w = R[0] | {("s", "exec")}; self.r = allr(range(1, n))
            elif base.startswith("v_cmp"):
                self.w = R[0]; self.r = allr(range(1, n))
            elif base.startswith("v_permlane") and "swap" in base:
                self.w = R[0] | R[1]; self.r = R[0] | R[1]
            elif base in ("v_add_co_u32", "v_sub_co_u32", "v_addc_co_u32", "v_subb_co_u32", "v_div_scale_f32", "v_mad_u64_u32"):
                self.w = R[0] | R[1]; self.r = allr(range(2, n))
            else:
                self.w = R[0]; self.r = allr(range(1, n))
                if base in ("v_fmac_f32", "v_dot2c_f32_bf16", "v_writelane_b32") or ("bank_mask" in mods and "bank_mask:0xf" not in mods) or ("row_mask" in mods and "row_mask:0xf" not in mods):
                    self.r |= R[0]
                if base == "v_div_fmas_f32": self.r |= _regs("vcc")
            self.trans = base in TRANS
            self.dot = base.startswith("v_dot")
        elif op.startswith("buffer_") or op.startswith("global_") or op.startswith("flat_"):
            self.kind = "vmem"
            if op in ("buffer_wbl2", "buffer_inv"):
                pass
            elif "store" in op:
                self.r = allr(range(n))
                self.sdata = R[0] if op.startswith("buffer_") else R[1]
                self.wide = op.endswith("x4") or op.endswith("x3")
            elif "atomic" in op:
                self.r = allr(range(n))
                if "sc0" in mods: self.w = R[0]
            elif " lds" in (" " + mods) or "_lds_" in op:
                self.r = allr(range(n)) | {("s", "m0")}; self.ldsdma = True
            else:
                self.w = R[0]; self.r = allr(range(1, n))
        elif op.startswith("ds_"):
            self.kind = "ds"
            if "write" in op or (op.startswith("ds_add") and "rtn" not in op) or (op.startswith("ds_max") and "rtn" not in op):
                self.r = allr(range(n))
            else:
                self.w = R[0]; self.r = allr(range(1, n))
        elif op.startswith("s_"):
            self.kind = "salu"
            if op.startswith("s_cbranch") or op == "s_branch":
                self.kind = "branch"; self.target = ops[0]
            elif op == "s_endpgm": self.kind = "end"
            elif op == "s_nop": self.kind = "nop"; self.n = int(ops[0], 0) + 1
            elif op.startswith("s_cmp") or op in ("s_waitcnt", "s_barrier", "s_sleep", "s_wakeup", "s_setprio", "s_bitcmp0_b32", "s_bitcmp1_b32"):
                self.r = allr(range(n))
            elif op.startswith("s_load") or op.startswith("s_atomic") or op.startswith("s_memrealtime") or op.startswith("s_memtime"):
                self.kind = "smem"; self.w = R[0]; self.r = allr(range(1, n))
            else:
                self.w = R[0]; self.r = allr(range(1, n))
                if "saveexec" in op: self.w |= {("s", "exec")}
        else:
            raise ValueError("unknown instr " + text)

    def states(self):
        if self.kind in ("label", "dir"): return 0
        if self.kind == "nop": return self.n
        return 1

def vset(s): return {x for x in s if x[0] in ("v", "a")}
def sset(s): return {x for x in s if x[0] == "s"}

def required(p, c):
    need = 0
    pk, ck = p.kind, c.kind
    if pk == "valu":
        pw = vset(p.w); ps = sset(p.w)
        if ck == "valu":
            if c.dpp and pw & c.r: need = max(need, 2)
            if c.base.startswith("v_permlane") and pw & c.r: need = max(need, 2)
            if c.base in ("v_readlane_b32", "v_readfirstlane_b32") and pw & c.r: need = max(need, 1)
            if p.trans and not c.trans and pw & c.r: need = max(need, 1)
            if p.trans and c.trans and pw & c.r: need = max(need, 1)
            if p.sdwa and pw & (c.r | c.w): need = max(need, 1)
            if ps & c.r:
                need = max(need, 2)
                if c.base in ("v_readlane_b32", "v_writelane_b32"): need = max(need, 4)
                if c.base == "v_div_fmas_f32": need = max(need, 4)
            if ("s", "exec") in ps:
                if c.dpp: need = max(need, 5)
                if c.base.startswith("v_permlane") or c.base in ("v_readlane_b32", "v_readfirstlane_b32", "v_writelane_b32"): need = max(need, 4)
            if p.dot and pw & (c.r | c.w):
                samec = (c.base == p.base) and not (pw & set().union(*[_regs(o) for o in c.ops[1:3]]))
                if not samec: need = max(need, 3)
        if ck == "mfma":
            if pw & c.r: need = max(need, 3 if p.dot else 2)
            if ("s", "exec") in ps: need = max(need, 4)
        if ck == "vmem":
            if ps & c.r: need = max(need, 5)
            if p.dot and pw & c.r: need = max(need, 3)
        if ck == "ds":
            if p.dot and pw & c.r: need = max(need, 3)
    if pk == "mfma":
        D = p.w
        tab_c = {4: 6, 8: 10}[p.passes]; tab_ab = {4: 8, 8: 12}[p.passes]; war = {4: 3, 8: 7}[p.passes]
        if ck == "mfma":
            if D & (c.srcA | c.srcB): need = max(need, tab_ab)
            if D & c.srcC and not (D == c.srcC and c.passes == p.passes): need = max(need, tab_c)
            if D & c.w and not (D == c.srcC): need = max(need, tab_ab)
        elif ck in ("valu", "vmem", "ds"):
            if D & (c.r | c.w): need = max(need, tab_ab)
            if ck == "valu" and p.srcC & c.w: need = max(need, war)
    if pk == "vmem" and getattr(p, "wide", False):
        if p.sdata & c.w: need = max(need, 2 if ck == "valu" else 1)
    if pk == "salu" and ("s", "m0") in p.w:
        if getattr(c, "ldsdma", False): need = max(need, 1)
    return need

_INL = {"0.5", "-0.5", "1.0", "-1.0", "2.0", "-2.0", "4.0", "-4.0"}
def _is_lit(tok):
    if tok in _INL: return False
    try:
        v = int(tok, 0)
    except ValueError:
        return False
    return not (-16 <= v <= 64)
VOP3ONLY = ("v_fma_f32", "v_bfi_b32", "v_bfe_u32", "v_lshl_add_u32", "v_cvt_pk_bf16_f32", "v_max3_f32", "v_or3_b32", "v_bitop3_b32", "v_perm_b32",
            "v_dot2_f32_bf16", "v_mul_lo_u32", "v_add3_u32", "v_and_or_b32", "v_readlane_b32", "v_writelane_b32", "v_mad_u32_u24", "v_lshl_or_b32", "v_add_lshl_u32", "v_pk_mul_f32", "v_pk_add_f32", "v_pk_fma_f32")
def isize(x):
    if x.kind in ("label", "dir"): return 0
    if x.kind in ("mfma", "vmem", "ds", "smem"): return 8
    if x.kind in ("branch", "end", "nop"): return 4
    lit = any(_is_lit(o) for o in x.ops)
    if x.kind == "salu":
        if x.op in ("s_waitcnt", "s_barrier", "s_sleep", "s_wakeup", "s_setprio", "s_getreg_b32"): return 4
        return 8 if lit else 4
    if x.dpp or x.sdwa or x.base in VOP3ONLY or x.op.endswith("_e64"): return 8
    if x.base.startswith("v_cmp") and x.ops[0] != "vcc": return 8
    if any(o.startswith("-") and not o[1:2].isdigit() for o in x.ops[1:]): return 8
    if len(x.ops) >= 3 and not x.ops[2].startswith("v"): return 8
    return 8 if lit else 4

class Asm:
    def __init__(self):
        self.lines = []
    def __call__(self, text):
        for t in text.split("\n"):
            t = t.strip()
            if t: self.lines.append(t)
    def label(self, name): self.lines.append(name + ":")
    def finalize(self, verbose=False):
        ins = [Ins(t) for t in self.lines]
        MAXW = 12
        nins = 0
        changed = True
        while changed:
            changed = False
            def maps():
                labels = {x.label: i for i, x in enumerate(ins) if x.kind == "label"}
                jumps = {}
                for i, x in enumerate(ins):
                    if x.kind == "branch" and x.target in labels: jumps.setdefault(labels[x.target], []).append(i)
                return jumps
            jumps = maps()
            i = 0
            while i < len(ins):
                c = ins[i]
                if c.kind in ("valu", "mfma", "vmem", "ds"):
                    worst = 0
                    stack = [(i - 1, 0)]
                    seen = set()
                    while stack:
                        j, dist = stack.pop()
                        while j >= 0 and dist < MAXW:
                            if (j, dist) in seen: break
                            seen.add((j, dist))
                            p = ins[j]
                            if p.kind == "label":
                                for b in jumps.get(j, []): stack.append((b, dist))
                                k = j - 1
                                while k >= 0 and ins[k].kind in ("label", "dir"):
                                    if ins[k].kind == "label":
                                        for b in jumps.get(k, []): stack.append((b, dist))
                                    k -= 1
                                if k >= 0 and (ins[k].kind == "end" or (ins[k].kind == "branch" and ins[k].op == "s_branch")): break
                                j = k; continue
                            need = required(p, c)
                            if need > dist: worst = max(worst, need - dist)
                            dist += p.states()
                            j -= 1
                    if worst > 0:
                        ins.insert(i, Ins("s_nop %d" % (worst - 1)))
                        nins += 1
                        changed = True
                        jumps = maps()
                        i += 1
                i += 1
        res = []; active = None; cnt = 0; acc = 0
        for x in ins:
            if x.kind == "dir" and x.text.startswith(".warm_begin"):
                _, name, step = x.text.split(); active = name; step = int(step); cnt = 0; acc = 0
                res.append(Ins(f"{name}:")); res.append(Ins(f"s_cbranch_execz {name}_1")); cnt = 1; acc = 4
                continue
            if x.kind == "dir" and x.text.startswith(".warm_end"):
                ret = x.text.split()[1]
                res.append(Ins(f"{active}_{cnt}:")); res.append(Ins(f"s_cbranch_execz {ret}")); active = None
                continue
            if active is not None:
                sz = isize(x)
                if acc + sz > step:
                    res.append(Ins(f"{active}_{cnt}:")); res.append(Ins(f"s_cbranch_execz {active}_{cnt+1}")); cnt += 1; acc = 4
                acc += sz
            res.append(x)
        ins = res
        self.total = sum(isize(x) for x in ins)
        if verbose: print("; inserted %d s_nop" % nins)
        out = []
        for x in ins:
            out.append(x.text if x.kind in ("label", "dir") else "    " + x.text)
        return "\n".join(out) + "\n"
```

```python
import sys, struct
from asmdsl import Asm
KN = "adaLN_cond__gqa_block_cached__swiglu_ffn__decode_kernel"

def f2u(x): return struct.unpack("<I", struct.pack("<f", x))[0]
def fh(x): return hex(f2u(x))
LOG2E = 1.4426950408889634
SCALE = 128 ** -0.5

WS_MODP = 0x1000
WS_QP   = WS_MODP + 30*8*1024
WS_OP   = WS_QP + 32*5*1024
WS_YP   = WS_OP + 32*8*1024
WS_DP   = WS_YP + 8*5120
WS_MR   = WS_DP + 54*5120
WS_CNT  = WS_MR + 10*1024
WS_END  = WS_CNT + 32*256
WS_STAMP = 0x10000000
L_TICKET = 0
L_FLAG = 4
L_Q = 0x100
L_ST = 0x200
L_PART = 0x400
L_ACC = 0x2000
L_X2 = 0x3000
L_W = 0x3C00
L_END = L_W + 120*1024
DPPF = "row_mask:0xf bank_mask:0xf"

def tile_bounds(extra):
    res = []
    for a in range(4):
        e = [extra[a + 4*s] for s in range(8)]
        tgt = (1024 + sum(e)) / 8.0
        b = [0]; acc = 0.0
        for s in range(8):
            acc += tgt - e[s]; b.append(int(round(acc)))
        assert b[8] == 1024
        res.append(b)
    return res

def gen(stamps=False, NE=5, pol="nt", TH=0, e_wq=8, e_mod=2, e_wo=8, e_ffn=24, DMAD=8, DA=1, DB=1, DC=1, touch=False, dry=False, spoll=True, NS=112, ROT=160, NWS=7):
    A = Asm()
    uid = [0]
    def U(p):
        uid[0] += 1; return f"L_{p}_{uid[0]}"
    sWAVE, sHD, sS, sTAG, sK, sG = "s3", "s32", "s33", "s34", "s35", "s36"
    SK, SV, SWS, SA, SB = "s[40:43]", "s[44:47]", "s[48:51]", "s[52:55]", "s[56:59]"
    sNT, sL2E, sSC, sTO, sF, sTK = "s60", "s62", "s63", "s64", "s65", "s66"
    sROT, sST, sCNT = "s37", "s61", "s38"
    def stamp(k):
        if stamps: A(f"s_memrealtime s[{70+2*k}:{71+2*k}]")
    def fstamp(k):
        if stamps == 2: A(f"s_memrealtime s[{70+2*k}:{71+2*k}]")
    def stamp_dump(slots, xcc=False, final=True):
        if not stamps: return
        A("s_waitcnt lgkmcnt(0)")
        A("s_mov_b64 exec, 1")
        A(f"s_lshl_b32 s39, s2, 7"); A(f"s_add_u32 s39, s39, {WS_STAMP}")
        A("s_mov_b32 s50, 0x20000000")
        for k in slots:
            A(f"v_mov_b32 v{vT+10}, s{70+2*k}"); A(f"v_mov_b32 v{vT+11}, s{71+2*k}")
            A(f"buffer_store_dwordx2 v[{vT+10}:{vT+11}], v{vZERO}, {SWS}, s39 offen offset:{k*8}")
            A("s_nop 1")
        if xcc:
            A("s_getreg_b32 s68, hwreg(HW_REG_XCC_ID)")
            A(f"v_mov_b32 v{vT+10}, s68"); A(f"v_mov_b32 v{vT+11}, 0")
            A(f"buffer_store_dwordx2 v[{vT+10}:{vT+11}], v{vZERO}, {SWS}, s39 offen offset:120")
        if not final: A("s_mov_b64 exec, -1")
    def srd(S, lo, hi, n):
        b = int(S[2:S.index(":")])
        A(f"s_mov_b32 s{b}, {lo}"); A(f"s_mov_b32 s{b+1}, {hi}"); A(f"s_mov_b32 s{b+2}, {n}"); A(f"s_mov_b32 s{b+3}, 0x20000")
    def v4(b): return f"v[{b}:{b+3}]"
    def v2(b): return f"v[{b}:{b+1}]"
    def dpp_red(op, vs, ctls):
        for ctl in ctls:
            for v in vs: A(f"{op}_dpp v{v}, v{v}, v{v} {ctl}")
    QUAD = [f"quad_perm:[1,0,3,2] {DPPF}", f"quad_perm:[2,3,0,1] {DPPF}"]
    BANK = [f"row_ror:4 {DPPF}", f"row_ror:8 {DPPF}"]
    BCAST = ["row_bcast:15 row_mask:0xa bank_mask:0xf", "row_bcast:31 row_mask:0xc bank_mask:0xf"]
    def xrow(op, v, t, which):
        A(f"v_mov_b32 v{t}, v{v}"); A(f"v_permlane{which}_swap_b32 v{v}, v{t}"); A(f"{op} v{v}, v{v}, v{t}")
    def row_red(op, v, t):
        dpp_red(op, [v], BANK); xrow(op, v, t, 16); xrow(op, v, t, 32)
    def wave_red(op, v, t):
        dpp_red(op, [v], QUAD); row_red(op, v, t)
    def rbf(d, s):
        A(f"v_cvt_pk_bf16_f32 v{d}, v{s}, v{s}"); A(f"v_and_b32 v{d}, 0xffff0000, v{d}")
    def rbf2(a, b):
        A(f"v_cvt_pk_bf16_f32 v{b}, v{a}, v{b}"); A(f"v_lshlrev_b32 v{a}, 16, v{b}"); A(f"v_and_b32 v{b}, 0xffff0000, v{b}")
    vLANE16, vZERO, vONE, vTKT, vADDR, vM, vML, vL = 1, 2, 3, 4, 5, 6, 7, 8
    vLANE, vNAT, vBAD = 9, 10, 11
    vQ, vM2, vACC = 12, 16, 20
    vR, vA_, vB_, vC_, vE_ = 24, 28, 29, 30, 31
    vAOP = 32
    vT = 48
    vM1 = 60
    RING = 64
    def publish(b, voff, soff):
        A(f"v_mov_b32 v{b+3}, {sTAG}")
        A(f"buffer_store_dwordx4 {v4(b)}, v{voff}, {SWS}, {soff} offen sc1")
    def poll(loads, base, D=1, consume=None):
        n = len(loads)
        L = U("poll"); Lj = U("pjoin"); Ld = [U("pdone") for _ in range(D)]
        def issue(i):
            for idx, (vo, so, imm, em) in enumerate(loads):
                if em is not None: A(f"s_mov_b64 exec, {em}")
                A(f"buffer_load_dwordx4 {v4(base + 4*(i*n + idx))}, v{vo}, {SWS}, {so} offen offset:{imm} sc1")
                if em is not None: A("s_mov_b64 exec, -1")
        A(f"s_mov_b32 {sTO}, 0x40000")
        for i in range(D - 1): issue(i)
        A.label(L)
        for i in range(D):
            issue((i + D - 1) % D)
            for idx in range(n):
                d = base + 4*(i*n + idx)
                A(f"s_waitcnt vmcnt({(D-1)*n + n-1-idx})")
                if idx == 0: A(f"v_xor_b32 v{vBAD}, {sTAG}, v{d+3}")
                else: A(f"v_bitop3_b32 v{vBAD}, v{vBAD}, v{d+3}, {sTAG} bitop3:0xf6")
            A(f"v_cmp_ne_u32 vcc, 0, v{vBAD}")
            A(f"s_cbranch_vccz {Ld[i]}")
        A(f"s_sub_u32 {sTO}, {sTO}, 1")
        A(f"s_cmp_lg_u32 {sTO}, 0")
        A(f"s_cbranch_scc1 {L}")
        for i in range(D):
            A.label(Ld[i])
            if consume: consume(base + 4*i*n)
            if i < D - 1: A(f"s_branch {Lj}")
        A.label(Lj)
    def spre(sbase, offs):
        if not spoll: return
        R = [40, 41, 42, 43, 44, 45, 46, 47, 14, 15, 28, 29, 60, 61, 66, 67]
        L = U("spoll"); Ld = U("spd")
        A(f"s_add_u32 s68, s30, {sbase}"); A("s_addc_u32 s69, s31, 0")
        A(f"s_mov_b32 {sTO}, 0x40000")
        A.label(L)
        for i, o in enumerate(offs): A(f"s_load_dword s{R[i]}, s[68:69], {o + 1020} glc")
        A(f"s_sub_u32 {sTO}, {sTO}, 1"); A(f"s_cmp_eq_u32 {sTO}, 0"); A(f"s_cbranch_scc1 {Ld}")
        A("s_waitcnt lgkmcnt(0)")
        for i, o in enumerate(offs):
            A(f"s_cmp_lg_u32 s{R[i]}, {sTAG}"); A(f"s_cbranch_scc1 {L}")
        A.label(Ld)
        A("s_waitcnt lgkmcnt(0)")
    def sum2(bases, dst=None):
        bs = list(bases)
        while len(bs) > 1:
            nb = []
            for i in range(0, len(bs) - 1, 2):
                d = dst if (dst is not None and len(bs) == 2) else bs[i]
                A(f"v_pk_add_f32 {v2(d)}, {v2(bs[i])}, {v2(bs[i+1])}"); nb.append(d)
            if len(bs) % 2: nb.append(bs[-1])
            bs = nb
    def gemv(acc, mask, items, acc2=None, w2=None):
        def mf(n):
            (x0, c0, w0, wc0) = items[n]
            if wc0 is not None: A(f"s_waitcnt vmcnt({wc0})")
            A(f"v_mfma_f32_16x16x32_bf16 {v4(acc)}, {v4(vAOP + 4*(n % 4))}, {v4(w0)}, {'0' if n == 0 else v4(acc)}")
            if acc2 is not None:
                A(f"v_mfma_f32_16x16x32_bf16 {v4(acc2)}, {v4(vAOP + 4*(n % 4))}, {v4(w2+4*n)}, {'0' if n == 0 else v4(acc2)}")
        for n, (x, ctl, w, wc) in enumerate(items):
            a = vAOP + 4 * (n % 4)
            for t in range(4): A(f"v_and_b32_dpp v{a+t}, v{x}, v{mask+t} {ctl} {DPPF}")
            if n >= 1: mf(n-1)
        mf(len(items) - 1)
    def ysplit(xs, y):
        for i, x in enumerate(xs): A(f"v_mov_b32 v{y+2*i}, v{x}"); A(f"v_mov_b32 v{y+2*i+1}, v{x}")
        for i, x in enumerate(xs):
            A(f"v_mov_b32_dpp v{y+2*i}, v{x} row_shr:4 row_mask:0xf bank_mask:0xa")
            A(f"v_mov_b32_dpp v{y+2*i+1}, v{x} row_shl:4 row_mask:0xf bank_mask:0x5")
    qp = lambda k: f"quad_perm:[{k},{k},{k},{k}]"
    def silu(x, t):
        A(f"v_mul_f32 v{t}, {fh(-LOG2E)}, v{x}"); A(f"v_exp_f32 v{t}, v{t}")
        A(f"v_add_f32 v{t}, 1.0, v{t}"); A(f"v_rcp_f32 v{t}, v{t}"); A(f"v_mul_f32 v{x}, v{x}, v{t}")
    def acc_addr(d):
        A(f"v_and_b32 v{d}, 7, v{vLANE}"); A(f"v_lshlrev_b32 v{d}, 5, v{d}")
        A(f"v_and_b32 v{vT+11}, 16, v{vLANE}"); A(f"v_add_u32 v{d}, v{d}, v{vT+11}")
        A(f"v_lshrrev_b32 v{vT+11}, 5, v{vLANE}"); A(f"v_lshl_add_u32 v{d}, v{vT+11}, 8, v{d}")
        A(f"s_lshl_b32 s68, {sWAVE}, 9"); A(f"v_add_u32 v{d}, s68, v{d}")
    def acc_write(d):
        A("s_mov_b32 exec_lo, 0x00ff00ff"); A("s_mov_b32 exec_hi, 0xff00ff00")
        A(f"ds_write_b128 v{d}, {v4(vACC)} offset:{L_ACC}")
        A("s_mov_b64 exec, -1")
    def mod_loads(scb, srb):
        wb = RING
        srd(SA, "s24", "s25", 640*7680); srd(SB, "s22", "s23", 1280)
        A(f"v_lshrrev_b32 v{vT}, 4, v{vLANE}"); A(f"v_mul_u32_u24 v{vT}, 20, v{vT}")
        A(f"v_and_b32 v{vT+1}, 15, v{vLANE}"); A(f"v_add_u32 v{vT+2}, v{vT}, v{vT+1}"); A(f"v_lshlrev_b32 v{vT+2}, 1, v{vT+2}")
        A(f"v_and_b32 v{vT+3}, 3, v{vLANE}"); A(f"v_add_u32 v{vT+3}, v{vT}, v{vT+3}"); A(f"v_lshlrev_b32 v{vT+3}, 1, v{vT+3}")
        A(f"s_mul_i32 s69, {srb}, 160")
        A(f"buffer_load_ushort v{vR}, v{vT+2}, {SB}, s69 offen")
        A(f"buffer_load_ushort v{vR+1}, v{vT+3}, {SB}, s69 offen offset:32")
        A(f"v_mul_u32_u24 v{vT}, 7680, v{vT}"); A(f"v_lshl_add_u32 v{vT}, v{vT+1}, 4, v{vT}")
        A(f"s_mul_i32 s69, {srb}, {80*7680}"); A(f"s_lshl_b32 s68, {scb}, 8"); A("s_add_u32 s69, s69, s68")
        for t in range(20):
            A(f"s_add_u32 s68, s69, {t*7680}")
            A(f"buffer_load_dwordx4 {v4(wb+4*t)}, v{vT}, {SA}, s68 offen {pol}")
    def mod_compute(scb, srb):
        wb = RING
        A("s_waitcnt vmcnt(20)")
        for k in (0, 1):
            A(f"v_lshlrev_b32 v{vR+k}, 16, v{vR+k}"); silu(vR+k, vR+2); A(f"v_cvt_pk_bf16_f32 v{vR+k}, v{vR+k}, v{vR+k}")
        gemv(vACC, vM2, [(vR if t < 16 else vR+1, f"row_newbcast:{t % 16}", wb+4*t, 19-t) for t in range(20)])
        A(f"s_lshl_b32 s68, {scb}, 3"); A(f"s_add_u32 s68, s68, {srb}"); A("s_lshl_b32 s68, s68, 10"); A(f"s_add_u32 s68, s68, {WS_MODP}")
        publish(vACC, vNAT, "s68")
    def common_setup():
        A(f"s_load_dword {sTAG}, s[30:31], 0")
        srd(SWS, "s30", "s31", WS_END)
        A(f"v_and_b32 v{vT}, 1, v{vLANE}"); A(f"v_lshlrev_b32 v{vT}, 4, v{vT}"); A(f"v_mov_b32 v{vT+1}, 0xffff"); A(f"v_lshlrev_b32 v{vT}, v{vT}, v{vT+1}")
        A(f"v_bfe_u32 v{vT+1}, v{vLANE}, 1, 2")
        A(f"v_bfe_u32 v{vT+2}, v{vLANE}, 1, 3")
        for t in range(4):
            A(f"v_cmp_eq_u32 vcc, {t}, v{vT+1}"); A(f"v_cndmask_b32 v{vM1+t}, 0, v{vT}, vcc")
            A(f"v_cmp_eq_u32 vcc, {2*t}, v{vT+2}"); A(f"v_cndmask_b32 v{vM2+t}, 0, v{vT}, vcc")
        A(f"v_and_b32 v{vT}, 15, v{vLANE}"); A(f"v_lshlrev_b32 v{vT}, 6, v{vT}"); A(f"v_and_b32 v{vT+1}, 48, v{vLANE}"); A(f"v_add_u32 v{vNAT}, v{vT}, v{vT+1}")
    def tag_finish():
        A("s_waitcnt lgkmcnt(0)")
        A(f"s_add_u32 {sTAG}, {sTAG}, 0x01010101")
    def dma_loop(voff, soff, step, count):
        L = U("dma")
        A(f"s_mov_b32 s69, {count}")
        A.label(L)
        A(f"buffer_load_dwordx4 v{voff}, {SA}, {soff} offen {pol} lds")
        A(f"s_add_u32 {soff}, {soff}, {step}"); A("s_add_u32 m0, m0, 0x400")
        A(f"s_waitcnt vmcnt({DMAD-1})")
        A("s_sub_u32 s69, s69, 1"); A("s_cmp_lg_u32 s69, 0"); A(f"s_cbranch_scc1 {L}")

    A(f"; @launch grid=(256,1,1) block=(512,1,1) lds={L_END}")
    A('.amdgcn_target "amdgcn-amd-amdhsa--gfx950"')
    A(".text"); A(f".globl {KN}"); A(".p2align 8"); A(f".type {KN},@function"); A.label(KN)
    stamp(0)
    A("s_cmp_ge_u32 s2, 256"); A("s_cbranch_scc1 L_end")
    A("s_load_dwordx16 s[4:19], s[0:1], 0")
    A("s_load_dwordx8 s[20:27], s[0:1], 64")
    A("s_load_dwordx4 s[28:31], s[0:1], 96")
    A("v_lshrrev_b32 v1, 6, v0"); A(f"v_and_b32 v{vLANE}, 63, v0")
    A(f"v_readfirstlane_b32 {sWAVE}, v1")
    A(f"v_lshlrev_b32 v{vLANE16}, 4, v{vLANE}")
    A(f"s_lshr_b32 {sHD}, s2, 3"); A(f"s_and_b32 {sG}, s2, 7"); A(f"s_lshl_b32 {sK}, {sG}, 2"); A(f"s_add_u32 {sK}, {sK}, {sHD}"); A(f"s_and_b32 {sK}, {sK}, 31"); A(f"s_lshr_b32 {sS}, {sK}, 2")
    A(f"s_mov_b32 {sL2E}, {fh(LOG2E)}"); A(f"s_mov_b32 {sSC}, {fh(SCALE)}")
    A(f"s_sub_u32 s68, {sK}, 10"); A(f"s_mul_i32 {sF}, {sG}, 7"); A(f"s_add_u32 {sF}, {sF}, s68")
    A("s_cmp_lt_u32 s68, 7"); A(f"s_cselect_b32 {sF}, {sF}, 63")
    A(f"v_mov_b32 v{vZERO}, 0"); A(f"v_mov_b32 v{vONE}, 1")
    A(f"s_cmp_eq_u32 {sWAVE}, 0"); A("s_cbranch_scc1 L_ctrl0")
    extra = [(e_wq if (k < 5 or k >= 17) else e_mod if k < 15 else 0.0) + (e_wo if k < 10 else e_ffn if k < 17 else 0.0) for k in range(32)]
    nst = [int(NS - e) for e in extra]
    assert min(nst) >= 7*(1+2*NE)
    B = []
    for a in range(4):
        b = [0]
        for sp in range(8): b.append(b[-1] + nst[a + 4*sp])
        B.append(b)
    DYN0 = [b[8] for b in B]
    def pack(b): return sum(((NS*(sp+1) - b[sp+1]) & 0xff) << (8*sp) for sp in range(8))
    for b in B: assert NS*8 - b[8] < 256
    P = [pack(b) for b in B]
    A(f"s_mov_b32 s38, {hex(P[0] & 0xffffffff)}"); A(f"s_mov_b32 s39, {hex(P[0] >> 32)}")
    A(f"s_and_b32 s68, {sK}, 3")
    for a in range(1, 4):
        if P[a] != P[0]:
            A(f"s_cmp_eq_u32 s68, {a}"); A(f"s_cselect_b32 s38, {hex(P[a] & 0xffffffff)}, s38"); A(f"s_cselect_b32 s39, {hex(P[a] >> 32)}, s39")
    A(f"s_lshl_b32 s68, {sS}, 3")
    A("s_lshr_b64 s[66:67], s[38:39], s68"); A("s_and_b32 s66, s66, 0xff")
    A("s_lshl_b64 s[38:39], s[38:39], 8")
    A("s_lshr_b64 s[38:39], s[38:39], s68"); A("s_and_b32 s38, s38, 0xff")
    A(f"s_sub_u32 {sNT}, s38, s66"); A(f"s_add_u32 {sNT}, {sNT}, {NS}")
    A(f"s_mul_i32 {sROT}, {sHD}, {ROT}")
    A(f"s_mul_i32 {sST}, {sS}, {NS}"); A(f"s_sub_u32 {sST}, {sST}, s38"); A(f"s_add_u32 {sST}, {sST}, {sROT}")
    A(f"s_lshl_b32 s68, {sHD}, 22")
    def tile_addr(sreg, add):
        A(f"s_add_u32 s69, {sreg}, {add}"); A("s_and_b32 s69, s69, 1023"); A("s_lshl_b32 s69, s69, 12")
        A(f"v_add_u32 v{vADDR}, s69, v{vLANE16}")
    A(f"s_add_u32 s67, {sST}, {sWAVE}"); A("s_sub_u32 s67, s67, 1")
    tile_addr("s67", 0)
    A(f"s_lshl_b32 {sCNT}, {sHD}, 8"); A(f"s_add_u32 {sCNT}, {sCNT}, {WS_CNT}")
    A("s_waitcnt lgkmcnt(0)")
    A("s_add_u32 s40, s6, s68"); A("s_addc_u32 s41, s7, 0"); A("s_mov_b32 s42, 0x400000"); A("s_mov_b32 s43, 0x20000")
    A("s_add_u32 s44, s8, s68"); A("s_addc_u32 s45, s9, 0"); A("s_mov_b32 s46, 0x400000"); A("s_mov_b32 s47, 0x20000")
    def loadK(slot):
        for u in range(4): A(f"buffer_load_dwordx4 {v4(RING+32*slot+4*u)}, v{vADDR}, {SK}, 0 offen offset:{u*1024} {pol}")
    def loadV(slot):
        for u in range(4): A(f"buffer_load_dwordx4 {v4(RING+32*slot+16+4*u)}, v{vADDR}, {SV}, 0 offen offset:{u*1024} {pol}")
    loadK(1)
    common_setup(); tag_finish()
    A(f"v_mov_b32 v{vM}, {fh(-1e30)}"); A(f"v_mov_b32 v{vML}, {fh(-1e30)}"); A(f"v_mov_b32 v{vL}, 0")
    for r in range(4): A(f"v_mov_b32 v{vACC+r}, 0")
    A("s_barrier")
    A(f"s_waitcnt vmcnt({TH})"); loadV(1)
    for i, k in enumerate(list(range(2, 1 + NE)) + [0]):
        tile_addr("s67", 7*(i+1))
        A(f"s_waitcnt vmcnt({TH})"); loadK(k)
        if k: A(f"s_waitcnt vmcnt({TH})"); loadV(k)
    if stamps:
        A(f"s_cmp_lg_u32 {sWAVE}, 1"); A("s_cbranch_scc1 L_ns14")
        stamp(14); stamp_dump([14], final=False)
        A.label("L_ns14")
    A(f"v_and_b32 v{vT}, 15, v{vLANE}"); A(f"v_lshlrev_b32 v{vT}, 4, v{vT}")
    A(f"s_mov_b32 {sTO}, 0x400000")
    A.label("L_qwait")
    A(f"ds_read_b32 v{vT+1}, v{vZERO} offset:{L_FLAG}")
    A(f"s_sub_u32 {sTO}, {sTO}, 1"); A(f"s_cmp_eq_u32 {sTO}, 0"); A("s_cbranch_scc1 L_qgo")
    A("s_waitcnt lgkmcnt(0)")
    A(f"v_cmp_eq_u32 vcc, 0, v{vT+1}")
    A("s_cbranch_vccnz L_qwait")
    A.label("L_qgo")
    A(f"ds_read_b128 {v4(vQ)}, v{vT} offset:{L_Q}")
    def req_ticket():
        A("s_mov_b64 exec, 1"); A(f"ds_add_rtn_u32 v{vTKT}, v{vZERO}, v{vONE} offset:{L_TICKET}"); A("s_mov_b64 exec, -1")
    rescue = []
    def qk(slot):
        kb = RING + 32*slot
        for t in range(4):
            for u in range(4):
                if t == 0: A(f"v_dot2_f32_bf16 v{vR+u}, v{kb+4*u}, v{vQ}, 0")
                else: A(f"v_dot2c_f32_bf16 v{vR+u}, v{kb+4*u+t}, v{vQ+t}")
        A(f"v_add_f32_dpp v{vA_}, v{vR}, v{vR} row_ror:8 row_mask:0xf bank_mask:0x3")
        A(f"v_add_f32_dpp v{vB_}, v{vR+2}, v{vR+2} row_ror:8 row_mask:0xf bank_mask:0x3")
        A(f"v_add_f32_dpp v{vA_}, v{vR+1}, v{vR+1} row_ror:8 row_mask:0xf bank_mask:0xc")
        A(f"v_add_f32_dpp v{vB_}, v{vR+3}, v{vR+3} row_ror:8 row_mask:0xf bank_mask:0xc")
        A(f"v_add_f32_dpp v{vC_}, v{vA_}, v{vA_} row_shl:4 row_mask:0xf bank_mask:0x5")
        A(f"v_add_f32_dpp v{vC_}, v{vB_}, v{vB_} row_shr:4 row_mask:0xf bank_mask:0xa")
        dpp_red("v_add_f32", [vC_], QUAD)
        rbf(vC_, vC_)
        A(f"v_mul_f32 v{vC_}, {sSC}, v{vC_}")
        rbf(vC_, vC_)
        Lr, Lb = U("resc"), U("back")
        A(f"v_cmp_gt_f32 vcc, v{vC_}, v{vM}")
        A(f"s_cbranch_vccnz {Lr}")
        A.label(Lb)
        rescue.append((Lr, Lb))
        A(f"v_fma_f32 v{vE_}, v{vC_}, {sL2E}, -v{vML}")
        A(f"v_exp_f32 v{vE_}, v{vE_}")
        A(f"v_add_f32 v{vL}, v{vL}, v{vE_}")
        A(f"v_cvt_pk_bf16_f32 v{vE_}, v{vE_}, v{vE_}")
        lane_of = [0, 8, 4, 12]
        for u in range(4):
            for t in range(4): A(f"v_and_b32_dpp v{vAOP+4*u+t}, v{vE_}, v{vM2+t} row_newbcast:{lane_of[u]} {DPPF}")
    def pv(slot):
        vb = RING + 32*slot + 16
        for u in range(4):
            A(f"v_mfma_f32_16x16x32_bf16 {v4(vACC)}, {v4(vAOP+4*u)}, {v4(vb+4*u)}, {v4(vACC)}")
    A("s_waitcnt lgkmcnt(0)")
    for k in range(1, 1 + NE):
        A("s_waitcnt vmcnt(0)")
        loadV(0)
        tile_addr("s67", 7*(NE+k))
        qk(0)
        A("s_waitcnt vmcnt(0)")
        loadK(0)
        pv(0)
        qk(k); pv(k)
    if NWS < 7:
        A(f"s_cmp_gt_u32 {sWAVE}, {NWS}"); A("s_cbranch_scc0 L_go")
        A("s_waitcnt vmcnt(0)"); loadV(0); qk(0); A("s_waitcnt vmcnt(0)"); A("s_branch L_last")
        A.label("L_go")
    req_ticket()
    A.label("L_loop")
    A("s_waitcnt vmcnt(0) lgkmcnt(0)")
    loadV(0)
    A(f"v_readfirstlane_b32 {sTK}, v{vTKT}")
    A(f"s_cmp_ge_u32 {sTK}, {sNT}"); A("s_cbranch_scc1 L_dyn_in")
    req_ticket()
    tile_addr(sTK, sST)
    qk(0)
    A("s_waitcnt vmcnt(0)")
    loadK(0)
    pv(0)
    A("s_branch L_loop")
    A.label("L_dyn")
    A("s_waitcnt vmcnt(0)")
    loadV(0)
    A.label("L_dyn_in")
    A("s_mov_b64 exec, 1"); A(f"v_mov_b32 v{vTKT}, 1")
    A(f"buffer_atomic_add v{vTKT}, v{vZERO}, {SWS}, {sCNT} offen sc0 sc1")
    A("s_mov_b64 exec, -1")
    qk(0)
    A("s_waitcnt vmcnt(0)")
    A(f"v_readfirstlane_b32 {sTK}, v{vTKT}")
    A(f"s_cmp_ge_u32 {sTK}, 1024"); A("s_cbranch_scc1 L_last")
    tile_addr(sTK, sROT)
    loadK(0)
    pv(0)
    A("s_branch L_dyn")
    A.label("L_last")
    pv(0)
    row_red("v_add_f32", vL, vA_)
    A(f"s_lshl_b32 s69, {sWAVE}, 10"); A(f"v_add_u32 v{vT}, s69, v{vNAT}")
    A(f"v_mov_b32 v{vACC+2}, v{vML}"); A(f"v_mov_b32 v{vACC+3}, v{vL}")
    A(f"ds_write_b128 v{vT}, {v4(vACC)} offset:{L_PART-1024}")
    A("s_waitcnt lgkmcnt(0)")
    A("s_barrier")
    A.label("L_tail")
    A(f"s_cmp_lt_u32 {sK}, 10"); A("s_cbranch_scc1 L_wo")
    A(f"s_cmp_ge_u32 {sF}, 54"); A("s_cbranch_scc1 L_exit")
    WT = RING + 120
    WD = WT + 40
    WD2 = RING + 64
    ACC2 = RING + 60
    X0, GA, C1, SBv = 24, 26, 28, 30
    TMP = RING + 112
    A(f"v_lshrrev_b32 v{vT}, 3, v{vLANE}"); A(f"v_mul_u32_u24 v{vT}, 5, v{vT}")
    A(f"s_mul_i32 s68, {sWAVE}, 40"); A(f"v_add_u32 v{vT}, s68, v{vT}")
    A(f"v_lshlrev_b32 v{vT+2}, 7, v{vT}"); A(f"v_and_b32 v{vT+1}, 3, v{vLANE}"); A(f"v_lshl_add_u32 v{vT+2}, v{vT+1}, 4, v{vT+2}")
    A(f"v_bfe_u32 v{vT+1}, v{vLANE}, 2, 1"); A(f"v_mul_u32_u24 v{vT+1}, 40960, v{vT+1}"); A(f"v_add_u32 v{vT+2}, v{vT+2}, v{vT+1}")
    for u in range(2):
        for m in range(5): A(f"ds_read_b128 {v4(WT+4*(u*5+m))}, v{vT+2} offset:{L_W + (2*m+u)*64}")
    A(f"v_and_b32 v{vT+1}, 7, v{vLANE}"); A(f"v_cmp_gt_u32 vcc, 5, v{vT+1}"); A(f"v_min_u32 v{vT+1}, 4, v{vT+1}")
    A(f"v_cndmask_b32 v{vT+7}, 0, 1.0, vcc")
    A(f"v_add_u32 v{vT}, v{vT}, v{vT+1}")
    A(f"v_lshlrev_b32 v{vT+4}, 4, v{vT}"); A(f"v_lshlrev_b32 v{vT+3}, 3, v{vT}"); A(f"v_lshlrev_b32 v{vT+2}, 2, v{vT}")
    srd(SB, "s4", "s5", 1280)
    A(f"buffer_load_dword v{X0+1}, v{vT+2}, {SB}, 0 offen")
    A(f"v_lshrrev_b32 v{vT}, 4, v{vLANE}"); A(f"v_mul_u32_u24 v{vT}, {8*1280}, v{vT}")
    A(f"v_and_b32 v{vT+1}, 15, v{vLANE}"); A(f"v_lshl_add_u32 v{vT}, v{vT+1}, 4, v{vT}")
    A(f"v_add_u32 v{vT+1}, {L_W + 81920 + 1024}, v{vT}")
    A(f"s_min_u32 s68, {sWAVE}, 3"); A("s_lshl_b32 s68, s68, 8"); A(f"s_add_u32 s68, s68, {L_W + 81920}"); A(f"v_add_u32 v{vT}, s68, v{vT}")
    A("s_waitcnt lgkmcnt(4)")
    for t in range(8): A(f"ds_read_b128 {v4(WD+4*t)}, v{vT} offset:{t*1280}")
    A("s_waitcnt lgkmcnt(4)")
    for t in range(8): A(f"ds_read_b128 {v4(WD2+4*t)}, v{vT+1} offset:{t*1280}")
    for n in range(8): A(f"s_mov_b32 s{4+n}, {WS_YP + n*5120}")
    acc_addr(vT+5)
    A(f"v_lshrrev_b32 v{vT+6}, 4, v{vLANE}"); A(f"v_lshlrev_b32 v{vT+6}, 3, v{vT+6}")
    A(f"v_and_b32 v{vT+1}, 7, v{vLANE}"); A(f"v_add_u32 v{vT+6}, v{vT+6}, v{vT+1}")
    A(f"v_bfe_u32 v{vT+1}, v{vLANE}, 3, 1"); A(f"v_lshl_add_u32 v{vT+6}, v{vT+1}, 5, v{vT+6}"); A(f"v_lshlrev_b32 v{vT+6}, 2, v{vT+6}")
    A(f"v_add_u32 v{vT+6}, {L_ACC}, v{vT+6}")
    A(f"s_mul_i32 s12, {sF}, 5120"); A(f"s_lshl_b32 s69, {sWAVE}, 10"); A("s_add_u32 s12, s12, s69"); A(f"s_add_u32 s12, s12, {WS_DP}")
    A(f"s_lshl_b32 s68, {sWAVE}, 3"); A(f"v_mov_b32 v{vADDR}, s68")
    A(f"s_min_u32 s21, {sF}, 39")
    A(f"v_lshrrev_b32 v{vT+8}, 3, v{vLANE}"); A(f"v_mul_u32_u24 v{vT+8}, 5120, v{vT+8}")
    A(f"v_and_b32 v{vT+9}, 7, v{vLANE}"); A(f"v_lshl_add_u32 v{vT+8}, v{vT+9}, 4, v{vT+8}")
    A(f"s_lshl_b32 s68, s21, 7"); A(f"v_add_u32 v{vT+8}, s68, v{vT+8}")
    A(f"v_lshl_add_u32 v{vT+1}, v{vT+9}, 4, s68")
    A(f"v_lshrrev_b32 v{vTKT}, 5, v{vLANE}"); A(f"v_lshl_add_u32 v{vT+9}, v{vT+9}, 1, v{vTKT}")
    A(f"s_lshl_b32 s68, s21, 4"); A(f"v_add_u32 v{vT+9}, s68, v{vT+9}")
    A(f"v_lshlrev_b32 v{vTKT}, 2, v{vT+9}"); A(f"v_lshlrev_b32 v{vT+9}, 1, v{vT+9}")
    for n in range(7): A(f"s_mov_b32 s{13+n}, {WS_DP + n*8*5120}")
    A(f"s_mov_b32 s20, {WS_MR}"); A(f"s_mov_b32 s21, {WS_MR+5120}")
    poll([(vT+4, "s20", 0, None), (vT+1, "s21", 0, None)], RING)
    GB = vM
    A(f"v_lshlrev_b32 v{X0}, 16, v{X0+1}"); A(f"v_and_b32 v{X0+1}, 0xffff0000, v{X0+1}")
    for (d, r) in ((GA, 0), (SBv, 1), (C1, 2)):
        A(f"v_lshlrev_b32 v{d}, 16, v{RING+r}"); A(f"v_and_b32 v{d+1}, 0xffff0000, v{RING+r}")
    A(f"v_add_f32 v{C1}, 1.0, v{C1}"); A(f"v_add_f32 v{C1+1}, 1.0, v{C1+1}"); rbf2(C1, C1+1)
    A(f"v_mov_b32 v{GB}, v{RING+4}"); A("s_mov_b32 exec_lo, 0"); A(f"v_mov_b32 v{GB}, v{RING+5}"); A("s_mov_b64 exec, -1")
    srd(SB, "s26", "s27", 1280)
    if touch: A(f"buffer_load_ushort v{vL}, v{vT+9}, {SB}, 0 offen")
    A("s_waitcnt lgkmcnt(0)")
    X2, HH = 12, 14
    RD = RING + 96
    stamp(8)
    poll([(vT+4, f"s{4+n}", 0, None) for n in range(8)], RING, DB, lambda b: sum2([b+4*n for n in range(8)], TMP))
    stamp(9)
    A.label("L_ffn_body")
    A(f"v_pk_fma_f32 {v2(X2)}, {v2(TMP)}, {v2(GA)}, {v2(X0)}")
    A(f"v_add_f32 v{TMP}, v{X2}, v{X2+1}"); A(f"v_mul_f32 v{TMP+1}, v{X2}, v{X2}"); A(f"v_fmac_f32 v{TMP+1}, v{X2+1}, v{X2+1}")
    A(f"v_mul_f32 v{TMP}, v{TMP}, v{vT+7}"); A(f"v_mul_f32 v{TMP+1}, v{TMP+1}, v{vT+7}")
    A(f"ds_write_b64 v{vT+3}, {v2(X2)} offset:{L_X2}")
    dpp_red("v_add_f32", [TMP, TMP+1], QUAD + BANK + BCAST)
    A("s_mov_b32 exec_lo, 0"); A("s_brev_b32 exec_hi, 1")
    A(f"ds_write_b64 v{vADDR}, {v2(TMP)} offset:{L_ST}")
    A("s_mov_b64 exec, -1")
    fstamp(1)
    A("s_waitcnt lgkmcnt(0)")
    A("s_barrier")
    fstamp(3)
    ST = vAOP
    for n in range(4): A(f"ds_read_b128 {v4(ST+4*n)}, v{vZERO} offset:{L_ST+16*n}")
    A(f"v_mov_b32 v{TMP+2}, {fh(1e-5)}")
    A("s_waitcnt lgkmcnt(0)")
    sum2([ST+2*n for n in range(8)], TMP)
    A(f"v_mul_f32 v{TMP}, {fh(1.0/640)}, v{TMP}")
    A(f"v_fmac_f32 v{TMP+2}, {fh(1.0/640)}, v{TMP+1}")
    A(f"v_fma_f32 v{TMP+2}, -v{TMP}, v{TMP}, v{TMP+2}")
    A(f"v_max_f32 v{TMP+2}, {fh(1e-5)}, v{TMP+2}")
    A(f"v_rsq_f32 v{TMP+2}, v{TMP+2}")
    A(f"v_sub_f32 v{X2}, v{X2}, v{TMP}"); A(f"v_sub_f32 v{X2+1}, v{X2+1}, v{TMP}")
    A(f"v_mul_f32 v{HH}, v{C1}, v{TMP+2}"); A(f"v_mul_f32 v{HH+1}, v{C1+1}, v{TMP+2}")
    A(f"v_pk_fma_f32 {v2(HH)}, {v2(X2)}, {v2(HH)}, {v2(SBv)}")
    A(f"v_cvt_pk_bf16_f32 v{HH}, v{HH}, v{HH}"); A(f"v_cvt_pk_bf16_f32 v{HH+1}, v{HH+1}, v{HH+1}")
    ysplit([HH, HH+1], TMP)
    fstamp(4)
    gemv(vACC, vM1, [(TMP + 2*u + m // 4, qp(m % 4), WT+4*(u*5+m), None) for u in range(2) for m in range(5)])
    acc_write(vT+5)
    fstamp(5)
    A("s_waitcnt lgkmcnt(0)")
    A("s_barrier")
    fstamp(7)
    A(f"s_cmp_gt_u32 {sWAVE}, 3"); A("s_cbranch_scc1 L_final")
    for k in range(8): A(f"ds_read2st64_b32 {v2(RD+2*k)}, v{vT+6} offset0:{2*k} offset1:{2*k+1}")
    A("s_waitcnt lgkmcnt(0)")
    sum2([RD+2*k for k in range(8)])
    A(f"v_add_f32 v{RD}, v{RD}, v{RD+1}")
    A(f"v_mov_b32_dpp v{RD+1}, v{RD} row_ror:8 {DPPF}")
    silu(RD, RD+2)
    A(f"v_mul_f32 v{RD}, v{RD}, v{RD+1}")
    A(f"v_cvt_pk_bf16_f32 v{RD}, v{RD}, v{RD}")
    A(f"s_cmp_eq_u32 {sWAVE}, 1"); A("s_cbranch_scc1 L_down2")
    gemv(vACC, vM2, [(RD, f"row_newbcast:{t}", WD+4*t, None) for t in range(8)])
    publish(vACC, vNAT, "s12")
    A("s_branch L_exit")
    A.label("L_down2")
    gemv(vACC, vM2, [(RD, f"row_newbcast:{t}", WD+4*t, None) for t in range(8)], ACC2, WD2)
    A(f"v_mov_b32 v{vACC+3}, {sTAG}"); A(f"v_mov_b32 v{ACC2+3}, {sTAG}")
    A(f"buffer_store_dwordx4 {v4(vACC)}, v{vNAT}, {SWS}, s12 offen sc1")
    A(f"buffer_store_dwordx4 {v4(ACC2)}, v{vNAT}, {SWS}, s12 offen offset:3072 sc1")
    if stamps:
        stamp(10)
        stamp_dump([8, 9, 10] + ([1, 3, 4, 5, 7] if stamps == 2 else []))
    A("s_endpgm")
    A.label("L_final")
    A(f"s_cmp_lg_u32 {sWAVE}, 7"); A("s_cbranch_scc1 L_end")
    A(f"s_cmp_ge_u32 {sF}, 40"); A("s_cbranch_scc1 L_end")
    A(f"ds_read_b32 v{X0}, v{vTKT} offset:{L_X2}")
    A("s_waitcnt vmcnt(0)")
    for i in range(DC):
        b = RING + 28*i + 24
        A(f"v_mov_b32 v{b}, 0"); A(f"v_mov_b32 v{b+1}, 0"); A(f"v_mov_b32 v{b+3}, {sTAG}")
    A("s_mov_b32 s68, -1"); A("s_mov_b32 s69, 0xffff")
    poll([(vT+8, f"s{13+n}", 0, None if n < 6 else "s[68:69]") for n in range(7)], RING, DC, lambda b: sum2([b+4*n for n in range(7)], GA))
    stamp(11)
    A(f"v_permlane32_swap_b32 v{GA}, v{GA+1}"); A(f"v_add_f32 v{GA}, v{GA}, v{GA+1}")
    xrow("v_add_f32", GA, GA+1, 16)
    A(f"v_add_f32_dpp v{GA}, v{GA}, v{GA} row_ror:8 {DPPF}")
    A("s_waitcnt lgkmcnt(0)")
    A(f"v_fma_f32 v{GA}, v{GA}, v{GB}, v{X0}"); A(f"v_cvt_pk_bf16_f32 v{GA}, v{GA}, v{GA}")
    A("s_mov_b32 exec_lo, 0xff"); A("s_mov_b32 exec_hi, 0xff")
    A(f"buffer_store_short v{GA}, v{vT+9}, {SB}, 0 offen")
    A(f"s_cmp_lg_u32 {sF}, 0"); A("s_cbranch_scc1 L_fin_dump")
    A("s_mov_b64 exec, 1"); A(f"v_mov_b32 v{GA+1}, {sTAG}")
    A(f"buffer_store_dword v{GA+1}, v{vZERO}, {SWS}, 0 offen sc1")
    A.label("L_fin_dump")
    if stamps:
        A("s_waitcnt vmcnt(0)"); stamp(12)
        stamp_dump([11, 12])
    A("s_endpgm")
    A.label("L_wo")
    A(f"v_lshrrev_b32 v{vT+4}, 5, v{vLANE}"); A(f"v_lshlrev_b32 v{vT+4}, 10, v{vT+4}")
    A(f"v_and_b32 v{vT+6}, 31, v{vLANE}"); A(f"v_lshl_add_u32 v{vT+4}, v{vT+6}, 4, v{vT+4}")
    A(f"s_lshr_b32 s4, {sWAVE}, 1"); A("s_lshl_b32 s4, s4, 3"); A(f"s_add_u32 s4, s4, {sG}"); A("s_lshl_b32 s4, s4, 13")
    A(f"s_and_b32 s5, {sWAVE}, 1"); A("s_lshl_b32 s5, s5, 9"); A("s_add_u32 s4, s4, s5"); A(f"s_add_u32 s4, s4, {WS_OP}"); A("s_add_u32 s5, s4, 4096")
    A(f"v_bfe_u32 v{vT}, v{vLANE}, 4, 1"); A(f"v_lshlrev_b32 v{vT}, 5, v{vT}")
    A(f"v_lshrrev_b32 v{vT+1}, 5, v{vLANE}"); A(f"v_add_u32 v{vT}, v{vT}, v{vT+1}")
    A(f"v_bfe_u32 v{vT+1}, v{vLANE}, 3, 1"); A(f"v_lshl_add_u32 v{vT}, v{vT+1}, 4, v{vT}")
    A(f"v_lshlrev_b32 v{vT}, 7, v{vT}")
    A(f"v_and_b32 v{vT+1}, 7, v{vLANE}"); A(f"v_lshl_add_u32 v{vT}, v{vT+1}, 4, v{vT}")
    A(f"s_lshl_b32 s68, {sWAVE}, 13"); A(f"v_add_u32 v{vT}, s68, v{vT}")
    for n in range(8): A(f"ds_read_b128 {v4(WT+4*n)}, v{vT} offset:{L_W + 2*n*128}")
    acc_addr(vT+5)
    A(f"v_lshrrev_b32 v{vT+7}, 5, v{vLANE}"); A(f"v_lshlrev_b32 v{vT+7}, 11, v{vT+7}"); A(f"v_lshl_add_u32 v{vT+7}, v{vT+6}, 3, v{vT+7}")
    A(f"s_mul_i32 s6, {sG}, 5120"); A(f"s_lshl_b32 s7, {sK}, 9"); A("s_add_u32 s6, s6, s7"); A(f"s_add_u32 s6, s6, {WS_YP}")
    def wo_combine(b):
        lam = [b+4*n+2 for n in range(4)]
        t = TMP + 2
        A(f"v_max3_f32 v{t}, v{lam[0]}, v{lam[1]}, v{lam[2]}"); A(f"v_max_f32 v{t}, v{t}, v{lam[3]}")
        xrow("v_max_f32", t, t+1, 32)
        for n in range(4): A(f"v_sub_f32 v{lam[n]}, v{lam[n]}, v{t}")
        for n in range(4): A(f"v_exp_f32 v{lam[n]}, v{lam[n]}")
        A(f"v_add_f32 v{t}, v{lam[0]}, v{lam[1]}"); A(f"v_add_f32 v{t+1}, v{lam[2]}, v{lam[3]}")
        for r in range(2): A(f"v_mul_f32 v{TMP+r}, v{lam[0]}, v{b+r}")
        A(f"v_add_f32 v{t}, v{t}, v{t+1}")
        for n in range(1, 4):
            for r in range(2): A(f"v_fmac_f32 v{TMP+r}, v{lam[n]}, v{b+4*n+r}")
    poll([(vT+4, "s4" if n < 2 else "s5", (n % 2)*2048, None) for n in range(4)], RING, DA, wo_combine)
    stamp(7)
    t = TMP + 2
    xrow("v_add_f32", t, t+1, 32)
    A(f"v_permlane32_swap_b32 v{TMP}, v{TMP+1}")
    A(f"v_rcp_f32 v{t}, v{t}")
    A(f"v_add_f32 v{TMP}, v{TMP}, v{TMP+1}")
    A(f"v_mul_f32 v{TMP}, v{TMP}, v{t}")
    A(f"v_cvt_pk_bf16_f32 v{TMP}, v{TMP}, v{TMP}")
    ysplit([TMP], TMP+2)
    A("s_waitcnt lgkmcnt(0)")
    gemv(vACC, vM1, [(TMP + 2 + n // 4, qp(n % 4), WT+4*n, None) for n in range(8)])
    acc_write(vT+5)
    A("s_waitcnt lgkmcnt(0)")
    A("s_barrier")
    A(f"s_cmp_lg_u32 {sWAVE}, 0"); A("s_cbranch_scc1 L_end")
    for n in range(8): A(f"ds_read_b64 {v2(WT+2*n)}, v{vT+7} offset:{L_ACC+256*n}")
    A("s_waitcnt lgkmcnt(0)")
    sum2([WT+2*n for n in range(8)])
    A(f"v_mov_b32 v{WT+2}, v{WT}"); A(f"v_mov_b32 v{WT+3}, v{WT+1}")
    A(f"v_permlane32_swap_b32 v{WT}, v{WT+2}"); A(f"v_permlane32_swap_b32 v{WT+1}, v{WT+3}")
    A(f"v_pk_add_f32 {v2(WT)}, {v2(WT)}, {v2(WT+2)}")
    A("s_mov_b32 exec_hi, 0")
    publish(WT, vLANE16, "s6")
    stamp(13)
    A.label("L_exit")
    if stamps:
        A(f"s_cmp_lg_u32 {sWAVE}, 0"); A("s_cbranch_scc1 L_end")
        stamp_dump([0, 13, 6, 2] + ([1, 3, 4, 5, 7] if stamps != 2 else []), xcc=True)
    A("s_endpgm")
    for (Lr, Lb) in rescue:
        A.label(Lr)
        A(f"v_max_f32 v{vA_}, v{vC_}, v{vM}")
        row_red("v_max_f32", vA_, vB_)
        A(f"v_sub_f32 v{vB_}, v{vM}, v{vA_}"); A(f"v_mul_f32 v{vB_}, {sL2E}, v{vB_}"); A(f"v_exp_f32 v{vB_}, v{vB_}")
        A(f"v_mov_b32 v{vM}, v{vA_}"); A(f"v_mul_f32 v{vML}, {sL2E}, v{vA_}")
        A(f"v_mul_f32 v{vL}, v{vL}, v{vB_}")
        for r in range(2): A(f"v_mul_f32 v{vACC+r}, v{vACC+r}, v{vB_}")
        A(f"s_branch {Lb}")

    A.label("L_ctrl0")
    A("s_setprio 3")
    A("s_waitcnt lgkmcnt(0)")
    def ctrl_init():
        common_setup()
        A(f"v_mov_b32 v{vT+4}, {7*(1+2*NE)}"); A(f"v_mov_b32 v{vT+5}, 0")
        A(f"ds_write_b64 v{vZERO}, {v2(vT+4)} offset:{L_TICKET}")
        tag_finish()
        A("s_barrier")
    A(f"s_sub_u32 s37, {sK}, 17"); A(f"s_add_u32 s68, {sK}, 15"); A(f"s_cmp_lt_u32 {sK}, 5"); A("s_cselect_b32 s37, s68, s37")
    A("s_cmp_lt_u32 s37, 20"); A("s_cbranch_scc1 L_ctrl_q")
    A(f"s_cmp_ge_u32 {sK}, 15"); A("s_cbranch_scc1 L_ctrl_none")
    A(f"s_sub_u32 s38, {sK}, 5")
    mod_loads("s38", sG)
    ctrl_init()
    mod_compute("s38", sG)
    stamp(1)
    A("s_branch L_hop2")
    A.label("L_ctrl_none")
    ctrl_init()
    A("s_branch L_hop2")
    A.label("L_ctrl_q")
    WQ = RING + 64
    XA = RING
    X0, X1 = 24, 25
    A("s_mul_i32 s38, s37, 52"); A("s_lshr_b32 s38, s38, 8"); A("s_mul_i32 s68, s38, 5"); A("s_sub_u32 s39, s37, s68")
    A("s_lshl_b32 s38, s38, 3"); A(f"s_add_u32 s38, s38, {sG}")
    srd(SB, "s4", "s5", 1280); srd(SA, "s10", "s11", 640*8192)
    A(f"v_lshlrev_b32 v{vT+2}, 2, v{vLANE}")
    for k in range(5): A(f"buffer_load_dword v{XA+2*k+1}, v{vT+2}, {SB}, 0 offen offset:{k*256}")
    A("s_lshl_b32 s68, s39, 8")
    A(f"buffer_load_dword v{X1}, v{vT+2}, {SB}, s68 offen")
    A(f"v_lshrrev_b32 v{vT}, 4, v{vLANE}"); A(f"v_lshlrev_b32 v{vT}, 18, v{vT}")
    A(f"v_and_b32 v{vT+1}, 15, v{vLANE}"); A(f"v_lshl_add_u32 v{vT+3}, v{vT+1}, 4, v{vT}")
    A("s_lshl_b32 s69, s39, 20"); A("s_lshl_b32 s68, s38, 8"); A("s_add_u32 s69, s69, s68")
    for n in range(32):
        u, j = n // 16, n % 16
        A(f"s_add_u32 s68, s69, {(2*j+u)*8192}")
        A(f"buffer_load_dwordx4 {v4(WQ+4*n)}, v{vT+3}, {SA}, s68 offen {pol}")
    ctrl_init()
    A("s_and_b32 s68, s38, 3"); A(f"s_mov_b32 s69, {DYN0[0]}")
    for a in range(1, 4):
        A(f"s_cmp_eq_u32 s68, {a}"); A(f"s_cselect_b32 s69, {DYN0[a]}, s69")
    A(f"v_mov_b32 v{vT}, s69"); A("s_lshl_b32 s68, s38, 8"); A(f"s_add_u32 s68, s68, {WS_CNT}")
    A("s_cmp_lg_u32 s39, 0"); A("s_cbranch_scc1 L_nocnt")
    A("s_mov_b64 exec, 1")
    A(f"buffer_store_dword v{vT}, v{vZERO}, {SWS}, s68 offen sc1")
    A("s_mov_b64 exec, -1")
    A("s_waitcnt vmcnt(33)")
    A("s_branch L_cntj")
    A.label("L_nocnt")
    A("s_waitcnt vmcnt(32)")
    A.label("L_cntj")
    for k in range(5):
        A(f"v_lshlrev_b32 v{XA+2*k}, 16, v{XA+2*k+1}"); A(f"v_and_b32 v{XA+2*k+1}, 0xffff0000, v{XA+2*k+1}")
    A(f"v_lshlrev_b32 v{X0}, 16, v{X1}"); A(f"v_and_b32 v{X1}, 0xffff0000, v{X1}")
    t = vT + 8; a = XA
    A(f"v_add_f32 v{t}, v{a}, v{a+1}")
    for i in range(2, 10): A(f"v_add_f32 v{t}, v{t}, v{a+i}")
    wave_red("v_add_f32", t, t+1)
    A(f"v_mul_f32 v{t}, {fh(1.0/640)}, v{t}")
    for i in range(10): A(f"v_sub_f32 v{a+i}, v{a+i}, v{t}")
    A(f"v_mul_f32 v{t+2}, v{a}, v{a}")
    for i in range(1, 10): A(f"v_fmac_f32 v{t+2}, v{a+i}, v{a+i}")
    wave_red("v_add_f32", t+2, t+1)
    A(f"v_mul_f32 v{t+2}, {fh(1.0/640)}, v{t+2}")
    rbf2(t, t+2)
    A(f"v_add_f32 v{t+2}, {fh(1e-5)}, v{t+2}"); rbf(t+2, t+2)
    A(f"v_sqrt_f32 v{t+2}, v{t+2}"); rbf(t+2, t+2)
    A(f"v_rcp_f32 v{t+2}, v{t+2}")
    A(f"v_sub_f32 v{X0}, v{X0}, v{t}"); A(f"v_sub_f32 v{X1}, v{X1}, v{t}"); rbf2(X0, X1)
    A(f"v_mul_f32 v{X0}, v{X0}, v{t+2}"); A(f"v_mul_f32 v{X1}, v{X1}, v{t+2}"); rbf2(X0, X1)
    A("s_lshl_b32 s6, s39, 13"); A(f"s_add_u32 s6, s6, {WS_MODP}"); A("s_add_u32 s7, s6, 4096"); A(f"s_add_u32 s8, s6, {5*8192}"); A("s_add_u32 s9, s8, 4096")
    stamp(1)
    spre("s6", [(n // 8)*5*8192 + (n % 8)*1024 for n in range(16)])
    poll([(vLANE16, f"s{6+n//4}", (n % 4)*1024, None) for n in range(16)], RING)
    stamp(2)
    sum2([RING+4*n for n in range(8)]); sum2([RING+32+4*n for n in range(8)])
    rbf2(RING, RING+1); rbf2(RING+32, RING+33)
    c0, c1, s0, s1 = RING+32, RING+33, RING, RING+1
    A(f"v_add_f32 v{c0}, 1.0, v{c0}"); A(f"v_add_f32 v{c1}, 1.0, v{c1}"); rbf2(c0, c1)
    A(f"v_mul_f32 v{X0}, v{X0}, v{c0}"); A(f"v_mul_f32 v{X1}, v{X1}, v{c1}"); rbf2(X0, X1)
    A(f"v_add_f32 v{X0}, v{X0}, v{s0}"); A(f"v_add_f32 v{X1}, v{X1}, v{s1}")
    A(f"v_cvt_pk_bf16_f32 v{X0}, v{X0}, v{X0}"); A(f"v_cvt_pk_bf16_f32 v{X1}, v{X1}, v{X1}")
    gemv(vACC, vM2, [((X0, X1)[n // 16], f"row_newbcast:{n % 16}", WQ + 4*n, None) for n in range(32)])
    A("s_mul_i32 s68, s38, 5"); A("s_add_u32 s68, s68, s39"); A("s_lshl_b32 s68, s68, 10"); A(f"s_add_u32 s68, s68, {WS_QP}")
    publish(vACC, vNAT, "s68")
    A.label("L_hop2")
    stamp(3)
    A(f"s_mul_i32 s6, {sHD}, 5120"); A(f"s_add_u32 s6, s6, {WS_QP}"); A("s_add_u32 s7, s6, 4096")
    spre("s6", [n*1024 for n in range(5)])
    poll([(vLANE16, "s6" if n < 4 else "s7", (n % 4)*1024, None) for n in range(5)], RING)
    sum2([RING+4*n for n in range(5)])
    A(f"v_cvt_pk_bf16_f32 v{RING}, v{RING}, v{RING+1}")
    A(f"v_lshlrev_b32 v{vT}, 2, v{vLANE}")
    A(f"ds_write_b32 v{vT}, v{RING} offset:{L_Q}")
    A("s_waitcnt lgkmcnt(0)")
    A(f"ds_write_b32 v{vZERO}, v{vONE} offset:{L_FLAG}")
    stamp(4)
    A("s_setprio 0")
    A("s_cmp_lt_u32 s37, 20"); A("s_cbranch_scc0 L_ctrl_b")
    A("s_add_u32 s38, s37, 10")
    mod_loads("s38", sG)
    mod_compute("s38", sG)
    A.label("L_ctrl_b")
    A(f"s_cmp_lg_u32 {sK}, 31"); A("s_cbranch_scc1 L_ctrl_c")
    A(f"s_cmp_ge_u32 {sG}, 5"); A("s_cbranch_scc1 L_ctrl_c")
    A(f"s_lshl_b32 s6, {sG}, 13"); A(f"s_add_u32 s6, s6, {WS_MODP + 10*8192}")
    for b in range(1, 8): A(f"s_add_u32 s{6+b}, s6, {(b//2)*5*8192 + (b%2)*4096}")
    spre("s6", [(n // 8)*5*8192 + (n % 8)*1024 for n in range(16)])
    spre("s6", [(n // 8)*5*8192 + (n % 8)*1024 for n in range(16, 32)])
    poll([(vLANE16, f"s{6+n//4}", (n % 4)*1024, None) for n in range(32)], RING)
    for b in range(4): sum2([RING+32*b+4*n for n in range(8)])
    for b in range(3): A(f"v_cvt_pk_bf16_f32 v{vACC+b}, v{RING+32*b}, v{RING+32*b+1}")
    rbf2(RING+96, RING+97)
    A(f"s_lshl_b32 s6, {sG}, 10"); A(f"s_add_u32 s6, s6, {WS_MR}"); A("s_add_u32 s7, s6, 5120")
    publish(vACC, vLANE16, "s6"); publish(RING+96, vLANE16, "s7")
    A("s_branch L_ctrl_w")
    A.label("L_ctrl_c")
    A(f"s_mov_b32 m0, {L_W}")
    A(f"s_cmp_lt_u32 {sK}, 10"); A("s_cbranch_scc1 L_dma_wo")
    A(f"s_cmp_ge_u32 {sF}, 54"); A("s_cbranch_scc1 L_ctrl_w")
    A(f"v_lshrrev_b32 v{vT}, 2, v{vLANE}"); A(f"v_mul_u32_u24 v{vT}, 3456, v{vT}")
    A(f"v_and_b32 v{vT+1}, 3, v{vLANE}"); A(f"v_lshl_add_u32 v{vT}, v{vT+1}, 4, v{vT}")
    for (lo, hi) in (("s16", "s17"), ("s18", "s19")):
        srd(SA, lo, hi, 640*3456)
        A(f"s_lshl_b32 s68, {sF}, 6")
        dma_loop(vT, "s68", 16*3456, 40)
    srd(SA, "s20", "s21", 1728*1280)
    A(f"s_mul_i32 s68, {sF}, {32*1280}")
    dma_loop(vLANE16, "s68", 1024, 40)
    A("s_branch L_ctrl_w")
    A.label("L_dma_wo")
    srd(SA, "s12", "s13", 4096*1280)
    A(f"v_lshrrev_b32 v{vT}, 3, v{vLANE}"); A(f"v_mul_u32_u24 v{vT}, 1280, v{vT}")
    A(f"v_and_b32 v{vT+1}, 7, v{vLANE}"); A(f"v_lshl_add_u32 v{vT}, v{vT+1}, 4, v{vT}")
    for a in range(4):
        A(f"s_add_u32 s68, {sG}, {8*a}"); A(f"s_mul_i32 s68, s68, {128*1280}"); A(f"s_lshl_b32 s69, {sK}, 7"); A("s_add_u32 s68, s68, s69")
        dma_loop(vT, "s68", 8*1280, 16)
    A.label("L_ctrl_w")
    A(f"s_lshl_b32 s8, {sHD}, 3"); A(f"s_add_u32 s8, s8, {sS}"); A("s_lshl_b32 s8, s8, 10"); A(f"s_add_u32 s8, s8, {WS_OP}")
    A("s_waitcnt vmcnt(0) lgkmcnt(0)")
    stamp(5)
    A("s_barrier")
    stamp(6)
    for w in range(7): A(f"ds_read_b128 {v4(RING+4*w)}, v{vLANE16} offset:{L_PART+1024*w}")
    m = [RING+4*w+2 for w in range(7)]
    t = RING + 28
    A("s_waitcnt lgkmcnt(4)")
    A(f"v_max3_f32 v{t}, v{m[0]}, v{m[1]}, v{m[2]}")
    A("s_waitcnt lgkmcnt(2)")
    A(f"v_max3_f32 v{t}, v{t}, v{m[3]}, v{m[4]}")
    A("s_waitcnt lgkmcnt(0)")
    A(f"v_max3_f32 v{t}, v{t}, v{m[5]}, v{m[6]}")
    for w in range(7): A(f"v_sub_f32 v{m[w]}, v{m[w]}, v{t}")
    for w in range(7): A(f"v_exp_f32 v{m[w]}, v{m[w]}")
    O = RING + 32
    for r in (3, 0, 1): A(f"v_mul_f32 v{O+r}, v{m[0]}, v{RING+r}")
    for w in range(1, 7): A(f"v_fmac_f32 v{O+3}, v{m[w]}, v{RING+4*w+3}")
    A(f"v_rcp_f32 v{t+1}, v{O+3}"); A(f"v_log_f32 v{O+2}, v{O+3}")
    for w in range(1, 7):
        for r in range(2): A(f"v_fmac_f32 v{O+r}, v{m[w]}, v{RING+4*w+r}")
    A(f"v_add_f32 v{O+2}, v{O+2}, v{t}")
    A(f"v_mul_f32 v{O}, v{O}, v{t+1}"); A(f"v_mul_f32 v{O+1}, v{O+1}, v{t+1}")
    publish(O, vLANE16, "s8")
    stamp(13)
    A("s_branch L_tail")
    A.label("L_end")
    A("s_endpgm")
    A('.section .rodata,"a"'); A(".p2align 6"); A(f".amdhsa_kernel {KN}")
    A(".amdhsa_next_free_vgpr 256"); A(".amdhsa_next_free_sgpr 100"); A(".amdhsa_accum_offset 256")
    A(".amdhsa_group_segment_fixed_size 0"); A(".amdhsa_kernarg_size 112"); A(".amdhsa_user_sgpr_count 2")
    A(".amdhsa_user_sgpr_kernarg_segment_ptr 1"); A(".amdhsa_system_sgpr_workgroup_id_x 1")
    A(".amdhsa_float_denorm_mode_32 3")
    A(".end_amdhsa_kernel")
    return A.finalize()

def check_inter(w, inter):
    import numpy as np
    def cmp(name, got, exp):
        err = np.abs(got - exp).max(); rel = np.linalg.norm(got - exp) / np.linalg.norm(exp)
        print("   inter %-5s maxabs %.4e (scale %.3e) relL2 %.3e nan=%d" % (name, err, np.abs(exp).max(), rel, int(np.isnan(got).sum())), got[:4], exp[:4])
    def bf(x):
        u = x.astype(np.float32).view(np.uint32); u = (u + 0x7fff + ((u >> 16) & 1)) & 0xffff0000
        return u.view(np.float32)
    gr = lambda off, n: w[off // 4: off // 4 + n*4].reshape(n, 4)
    md = gr(WS_MODP, 30*8*64)[:, :2].reshape(30, 8, 128).sum(1).reshape(-1)
    cmp("mod", md, inter["mod"]); print("      mod bf16 mismatches", int((bf(md) != inter["mod"]).sum()))
    q = gr(WS_QP, 32*5*64)[:, :2].reshape(32, 5, 128).sum(1).reshape(-1)
    cmp("q", q, inter["q"]); print("      q bf16 mismatches", int((bf(q) != inter["q"]).sum()))
    g = gr(WS_OP, 32*8*64).astype(np.float64); op = g[:, :2].reshape(32, 8, 128); lam = g[:, 2].reshape(32, 8, 64)[:, :, 0]
    wt = np.exp2(lam - lam.max(1, keepdims=True))
    cmp("o", ((op * wt[:, :, None]).sum(1) / wt.sum(1)[:, None]).reshape(-1), inter["o"])
    cmp("at", gr(WS_YP, 8*320)[:, :2].reshape(8, 640).sum(0), inter["at"])
    cmp("dn", gr(WS_DP, 54*320)[:, :2].reshape(54, 640).sum(0), inter["dn"])

if __name__ == "__main__":
    out = sys.argv[1]
    kw = {}
    for a in sys.argv[2:]:
        k, v = a.split("=")
        kw[k] = eval(v)
    open(out, "w").write(gen(**kw))
```

```python
import sys, struct
from asmdsl import Asm
KN = "adaLN_cond__gqa_block_cached__swiglu_ffn__decode_kernel"

def f2u(x): return struct.unpack("<I", struct.pack("<f", x))[0]
def fh(x): return hex(f2u(x))
LOG2E = 1.4426950408889634
SCALE = 128 ** -0.5

WS_MODP = 0x1000
WS_QP   = WS_MODP + 30*8*1024
WS_OP   = WS_QP + 32*5*1024
WS_YP   = WS_OP + 32*8*1024
WS_DP   = WS_YP + 8*5120
WS_MR   = WS_DP + 54*5120
WS_CNT  = WS_MR + 10*1024
WS_END  = WS_CNT + 32*256
WS_STAMP = 0x10000000
L_TICKET = 0
L_FLAG = 4
L_Q = 0x100
L_ST = 0x200
L_PART = 0x400
L_ACC = 0x2000
L_X2 = 0x3000
L_W = 0x3C00
L_END = L_W + 120*1024
DPPF = "row_mask:0xf bank_mask:0xf"

def tile_bounds(extra):
    res = []
    for a in range(4):
        e = [extra[a + 4*s] for s in range(8)]
        tgt = (1024 + sum(e)) / 8.0
        b = [0]; acc = 0.0
        for s in range(8):
            acc += tgt - e[s]; b.append(int(round(acc)))
        assert b[8] == 1024
        res.append(b)
    return res

def gen(stamps=False, NE=5, pol="nt", TH=0, e_wq=8, e_mod=2, e_wo=8, e_ffn=24, DMAD=8, DA=1, DB=1, DC=1, touch=False, dry=False, spoll=True, NS=112, ROT=160, NWS=7, diag_hold=0, diag_wg=None):
    A = Asm()
    uid = [0]
    def U(p):
        uid[0] += 1; return f"L_{p}_{uid[0]}"
    sWAVE, sHD, sS, sTAG, sK, sG = "s3", "s32", "s33", "s34", "s35", "s36"
    SK, SV, SWS, SA, SB = "s[40:43]", "s[44:47]", "s[48:51]", "s[52:55]", "s[56:59]"
    sNT, sL2E, sSC, sTO, sF, sTK = "s60", "s62", "s63", "s64", "s65", "s66"
    sROT, sST, sCNT = "s37", "s61", "s38"
    def stamp(k):
        if stamps: A(f"s_memrealtime s[{70+2*k}:{71+2*k}]")
    def fstamp(k):
        if stamps == 2: A(f"s_memrealtime s[{70+2*k}:{71+2*k}]")
    def stamp_dump(slots, xcc=False, final=True):
        if not stamps: return
        A("s_waitcnt lgkmcnt(0)")
        A("s_mov_b64 exec, 1")
        A(f"s_lshl_b32 s39, s2, 7"); A(f"s_add_u32 s39, s39, {WS_STAMP}")
        A("s_mov_b32 s50, 0x20000000")
        for k in slots:
            A(f"v_mov_b32 v{vT+10}, s{70+2*k}"); A(f"v_mov_b32 v{vT+11}, s{71+2*k}")
            A(f"buffer_store_dwordx2 v[{vT+10}:{vT+11}], v{vZERO}, {SWS}, s39 offen offset:{k*8}")
            A("s_nop 1")
        if xcc:
            A("s_getreg_b32 s68, hwreg(HW_REG_XCC_ID)")
            A(f"v_mov_b32 v{vT+10}, s68"); A(f"v_mov_b32 v{vT+11}, 0")
            A(f"buffer_store_dwordx2 v[{vT+10}:{vT+11}], v{vZERO}, {SWS}, s39 offen offset:120")
        if not final: A("s_mov_b64 exec, -1")
    def srd(S, lo, hi, n):
        b = int(S[2:S.index(":")])
        A(f"s_mov_b32 s{b}, {lo}"); A(f"s_mov_b32 s{b+1}, {hi}"); A(f"s_mov_b32 s{b+2}, {n}"); A(f"s_mov_b32 s{b+3}, 0x20000")
    def v4(b): return f"v[{b}:{b+3}]"
    def v2(b): return f"v[{b}:{b+1}]"
    def dpp_red(op, vs, ctls):
        for ctl in ctls:
            for v in vs: A(f"{op}_dpp v{v}, v{v}, v{v} {ctl}")
    QUAD = [f"quad_perm:[1,0,3,2] {DPPF}", f"quad_perm:[2,3,0,1] {DPPF}"]
    BANK = [f"row_ror:4 {DPPF}", f"row_ror:8 {DPPF}"]
    BCAST = ["row_bcast:15 row_mask:0xa bank_mask:0xf", "row_bcast:31 row_mask:0xc bank_mask:0xf"]
    def xrow(op, v, t, which):
        A(f"v_mov_b32 v{t}, v{v}"); A(f"v_permlane{which}_swap_b32 v{v}, v{t}"); A(f"{op} v{v}, v{v}, v{t}")
    def row_red(op, v, t):
        dpp_red(op, [v], BANK); xrow(op, v, t, 16); xrow(op, v, t, 32)
    def wave_red(op, v, t):
        dpp_red(op, [v], QUAD); row_red(op, v, t)
    def rbf(d, s):
        A(f"v_cvt_pk_bf16_f32 v{d}, v{s}, v{s}"); A(f"v_and_b32 v{d}, 0xffff0000, v{d}")
    def rbf2(a, b):
        A(f"v_cvt_pk_bf16_f32 v{b}, v{a}, v{b}"); A(f"v_lshlrev_b32 v{a}, 16, v{b}"); A(f"v_and_b32 v{b}, 0xffff0000, v{b}")
    vLANE16, vZERO, vONE, vTKT, vADDR, vM, vML, vL = 1, 2, 3, 4, 5, 6, 7, 8
    vLANE, vNAT, vBAD = 9, 10, 11
    vQ, vM2, vACC = 12, 16, 20
    vR, vA_, vB_, vC_, vE_ = 24, 28, 29, 30, 31
    vAOP = 32
    vT = 48
    vM1 = 60
    RING = 64
    def publish(b, voff, soff):
        A(f"v_mov_b32 v{b+3}, {sTAG}")
        A(f"buffer_store_dwordx4 {v4(b)}, v{voff}, {SWS}, {soff} offen sc1")
    def poll(loads, base, D=1, consume=None):
        n = len(loads)
        L = U("poll"); Lj = U("pjoin"); Ld = [U("pdone") for _ in range(D)]
        def issue(i):
            for idx, (vo, so, imm, em) in enumerate(loads):
                if em is not None: A(f"s_mov_b64 exec, {em}")
                A(f"buffer_load_dwordx4 {v4(base + 4*(i*n + idx))}, v{vo}, {SWS}, {so} offen offset:{imm} sc1")
                if em is not None: A("s_mov_b64 exec, -1")
        A(f"s_mov_b32 {sTO}, 0x40000")
        for i in range(D - 1): issue(i)
        A.label(L)
        for i in range(D):
            issue((i + D - 1) % D)
            for idx in range(n):
                d = base + 4*(i*n + idx)
                A(f"s_waitcnt vmcnt({(D-1)*n + n-1-idx})")
                if idx == 0: A(f"v_xor_b32 v{vBAD}, {sTAG}, v{d+3}")
                else: A(f"v_bitop3_b32 v{vBAD}, v{vBAD}, v{d+3}, {sTAG} bitop3:0xf6")
            A(f"v_cmp_ne_u32 vcc, 0, v{vBAD}")
            A(f"s_cbranch_vccz {Ld[i]}")
        A(f"s_sub_u32 {sTO}, {sTO}, 1")
        A(f"s_cmp_lg_u32 {sTO}, 0")
        A(f"s_cbranch_scc1 {L}")
        for i in range(D):
            A.label(Ld[i])
            if consume: consume(base + 4*i*n)
            if i < D - 1: A(f"s_branch {Lj}")
        A.label(Lj)
    def spre(sbase, offs):
        if not spoll: return
        R = [40, 41, 42, 43, 44, 45, 46, 47, 14, 15, 28, 29, 60, 61, 66, 67]
        L = U("spoll"); Ld = U("spd")
        A(f"s_add_u32 s68, s30, {sbase}"); A("s_addc_u32 s69, s31, 0")
        A(f"s_mov_b32 {sTO}, 0x40000")
        A.label(L)
        for i, o in enumerate(offs): A(f"s_load_dword s{R[i]}, s[68:69], {o + 1020} glc")
        A(f"s_sub_u32 {sTO}, {sTO}, 1"); A(f"s_cmp_eq_u32 {sTO}, 0"); A(f"s_cbranch_scc1 {Ld}")
        A("s_waitcnt lgkmcnt(0)")
        for i, o in enumerate(offs):
            A(f"s_cmp_lg_u32 s{R[i]}, {sTAG}"); A(f"s_cbranch_scc1 {L}")
        A.label(Ld)
        A("s_waitcnt lgkmcnt(0)")
    def sum2(bases, dst=None):
        bs = list(bases)
        while len(bs) > 1:
            nb = []
            for i in range(0, len(bs) - 1, 2):
                d = dst if (dst is not None and len(bs) == 2) else bs[i]
                A(f"v_pk_add_f32 {v2(d)}, {v2(bs[i])}, {v2(bs[i+1])}"); nb.append(d)
            if len(bs) % 2: nb.append(bs[-1])
            bs = nb
    def gemv(acc, mask, items, acc2=None, w2=None):
        def mf(n):
            (x0, c0, w0, wc0) = items[n]
            if wc0 is not None: A(f"s_waitcnt vmcnt({wc0})")
            A(f"v_mfma_f32_16x16x32_bf16 {v4(acc)}, {v4(vAOP + 4*(n % 4))}, {v4(w0)}, {'0' if n == 0 else v4(acc)}")
            if acc2 is not None:
                A(f"v_mfma_f32_16x16x32_bf16 {v4(acc2)}, {v4(vAOP + 4*(n % 4))}, {v4(w2+4*n)}, {'0' if n == 0 else v4(acc2)}")
        for n, (x, ctl, w, wc) in enumerate(items):
            a = vAOP + 4 * (n % 4)
            for t in range(4): A(f"v_and_b32_dpp v{a+t}, v{x}, v{mask+t} {ctl} {DPPF}")
            if n >= 1: mf(n-1)
        mf(len(items) - 1)
    def ysplit(xs, y):
        for i, x in enumerate(xs): A(f"v_mov_b32 v{y+2*i}, v{x}"); A(f"v_mov_b32 v{y+2*i+1}, v{x}")
        for i, x in enumerate(xs):
            A(f"v_mov_b32_dpp v{y+2*i}, v{x} row_shr:4 row_mask:0xf bank_mask:0xa")
            A(f"v_mov_b32_dpp v{y+2*i+1}, v{x} row_shl:4 row_mask:0xf bank_mask:0x5")
    qp = lambda k: f"quad_perm:[{k},{k},{k},{k}]"
    def silu(x, t):
        A(f"v_mul_f32 v{t}, {fh(-LOG2E)}, v{x}"); A(f"v_exp_f32 v{t}, v{t}")
        A(f"v_add_f32 v{t}, 1.0, v{t}"); A(f"v_rcp_f32 v{t}, v{t}"); A(f"v_mul_f32 v{x}, v{x}, v{t}")
    def acc_addr(d):
        A(f"v_and_b32 v{d}, 7, v{vLANE}"); A(f"v_lshlrev_b32 v{d}, 5, v{d}")
        A(f"v_and_b32 v{vT+11}, 16, v{vLANE}"); A(f"v_add_u32 v{d}, v{d}, v{vT+11}")
        A(f"v_lshrrev_b32 v{vT+11}, 5, v{vLANE}"); A(f"v_lshl_add_u32 v{d}, v{vT+11}, 8, v{d}")
        A(f"s_lshl_b32 s68, {sWAVE}, 9"); A(f"v_add_u32 v{d}, s68, v{d}")
    def acc_write(d):
        A("s_mov_b32 exec_lo, 0x00ff00ff"); A("s_mov_b32 exec_hi, 0xff00ff00")
        A(f"ds_write_b128 v{d}, {v4(vACC)} offset:{L_ACC}")
        A("s_mov_b64 exec, -1")
    def mod_loads(scb, srb):
        wb = RING
        srd(SA, "s24", "s25", 640*7680); srd(SB, "s22", "s23", 1280)
        A(f"v_lshrrev_b32 v{vT}, 4, v{vLANE}"); A(f"v_mul_u32_u24 v{vT}, 20, v{vT}")
        A(f"v_and_b32 v{vT+1}, 15, v{vLANE}"); A(f"v_add_u32 v{vT+2}, v{vT}, v{vT+1}"); A(f"v_lshlrev_b32 v{vT+2}, 1, v{vT+2}")
        A(f"v_and_b32 v{vT+3}, 3, v{vLANE}"); A(f"v_add_u32 v{vT+3}, v{vT}, v{vT+3}"); A(f"v_lshlrev_b32 v{vT+3}, 1, v{vT+3}")
        A(f"s_mul_i32 s69, {srb}, 160")
        A(f"buffer_load_ushort v{vR}, v{vT+2}, {SB}, s69 offen")
        A(f"buffer_load_ushort v{vR+1}, v{vT+3}, {SB}, s69 offen offset:32")
        A(f"v_mul_u32_u24 v{vT}, 7680, v{vT}"); A(f"v_lshl_add_u32 v{vT}, v{vT+1}, 4, v{vT}")
        A(f"s_mul_i32 s69, {srb}, {80*7680}"); A(f"s_lshl_b32 s68, {scb}, 8"); A("s_add_u32 s69, s69, s68")
        for t in range(20):
            A(f"s_add_u32 s68, s69, {t*7680}")
            A(f"buffer_load_dwordx4 {v4(wb+4*t)}, v{vT}, {SA}, s68 offen {pol}")
    def mod_compute(scb, srb):
        wb = RING
        A("s_waitcnt vmcnt(20)")
        for k in (0, 1):
            A(f"v_lshlrev_b32 v{vR+k}, 16, v{vR+k}"); silu(vR+k, vR+2); A(f"v_cvt_pk_bf16_f32 v{vR+k}, v{vR+k}, v{vR+k}")
        gemv(vACC, vM2, [(vR if t < 16 else vR+1, f"row_newbcast:{t % 16}", wb+4*t, 19-t) for t in range(20)])
        A(f"s_lshl_b32 s68, {scb}, 3"); A(f"s_add_u32 s68, s68, {srb}"); A("s_lshl_b32 s68, s68, 10"); A(f"s_add_u32 s68, s68, {WS_MODP}")
        publish(vACC, vNAT, "s68")
    def common_setup():
        A(f"s_load_dword {sTAG}, s[30:31], 0")
        srd(SWS, "s30", "s31", WS_END)
        A(f"v_and_b32 v{vT}, 1, v{vLANE}"); A(f"v_lshlrev_b32 v{vT}, 4, v{vT}"); A(f"v_mov_b32 v{vT+1}, 0xffff"); A(f"v_lshlrev_b32 v{vT}, v{vT}, v{vT+1}")
        A(f"v_bfe_u32 v{vT+1}, v{vLANE}, 1, 2")
        A(f"v_bfe_u32 v{vT+2}, v{vLANE}, 1, 3")
        for t in range(4):
            A(f"v_cmp_eq_u32 vcc, {t}, v{vT+1}"); A(f"v_cndmask_b32 v{vM1+t}, 0, v{vT}, vcc")
            A(f"v_cmp_eq_u32 vcc, {2*t}, v{vT+2}"); A(f"v_cndmask_b32 v{vM2+t}, 0, v{vT}, vcc")
        A(f"v_and_b32 v{vT}, 15, v{vLANE}"); A(f"v_lshlrev_b32 v{vT}, 6, v{vT}"); A(f"v_and_b32 v{vT+1}, 48, v{vLANE}"); A(f"v_add_u32 v{vNAT}, v{vT}, v{vT+1}")
    def tag_finish():
        A("s_waitcnt lgkmcnt(0)")
        A(f"s_add_u32 {sTAG}, {sTAG}, 0x01010101")
    def dma_loop(voff, soff, step, count):
        L = U("dma")
        A(f"s_mov_b32 s69, {count}")
        A.label(L)
        A(f"buffer_load_dwordx4 v{voff}, {SA}, {soff} offen {pol} lds")
        A(f"s_add_u32 {soff}, {soff}, {step}"); A("s_add_u32 m0, m0, 0x400")
        A(f"s_waitcnt vmcnt({DMAD-1})")
        A("s_sub_u32 s69, s69, 1"); A("s_cmp_lg_u32 s69, 0"); A(f"s_cbranch_scc1 {L}")

    A(f"; @launch grid=(256,1,1) block=(512,1,1) lds={L_END}")
    A('.amdgcn_target "amdgcn-amd-amdhsa--gfx950"')
    A(".text"); A(f".globl {KN}"); A(".p2align 8"); A(f".type {KN},@function"); A.label(KN)
    stamp(0)
    if diag_hold: A("s_memrealtime s[96:97]")
    A("s_cmp_ge_u32 s2, 256"); A("s_cbranch_scc1 L_end")
    A("s_load_dwordx16 s[4:19], s[0:1], 0")
    A("s_load_dwordx8 s[20:27], s[0:1], 64")
    A("s_load_dwordx4 s[28:31], s[0:1], 96")
    A("v_lshrrev_b32 v1, 6, v0"); A(f"v_and_b32 v{vLANE}, 63, v0")
    A(f"v_readfirstlane_b32 {sWAVE}, v1")
    A(f"v_lshlrev_b32 v{vLANE16}, 4, v{vLANE}")
    A(f"s_lshr_b32 {sHD}, s2, 3"); A(f"s_and_b32 {sG}, s2, 7"); A(f"s_lshl_b32 {sK}, {sG}, 2"); A(f"s_add_u32 {sK}, {sK}, {sHD}"); A(f"s_and_b32 {sK}, {sK}, 31"); A(f"s_lshr_b32 {sS}, {sK}, 2")
    A(f"s_mov_b32 {sL2E}, {fh(LOG2E)}"); A(f"s_mov_b32 {sSC}, {fh(SCALE)}")
    A(f"s_sub_u32 s68, {sK}, 10"); A(f"s_mul_i32 {sF}, {sG}, 7"); A(f"s_add_u32 {sF}, {sF}, s68")
    A("s_cmp_lt_u32 s68, 7"); A(f"s_cselect_b32 {sF}, {sF}, 63")
    A(f"v_mov_b32 v{vZERO}, 0"); A(f"v_mov_b32 v{vONE}, 1")
    A(f"s_cmp_eq_u32 {sWAVE}, 0"); A("s_cbranch_scc1 L_ctrl0")
    extra = [(e_wq if (k < 5 or k >= 17) else e_mod if k < 15 else 0.0) + (e_wo if k < 10 else e_ffn if k < 17 else 0.0) for k in range(32)]
    nst = [int(NS - e) for e in extra]
    assert min(nst) >= 7*(1+2*NE)
    B = []
    for a in range(4):
        b = [0]
        for sp in range(8): b.append(b[-1] + nst[a + 4*sp])
        B.append(b)
    DYN0 = [b[8] for b in B]
    def pack(b): return sum(((NS*(sp+1) - b[sp+1]) & 0xff) << (8*sp) for sp in range(8))
    for b in B: assert NS*8 - b[8] < 256
    P = [pack(b) for b in B]
    A(f"s_mov_b32 s38, {hex(P[0] & 0xffffffff)}"); A(f"s_mov_b32 s39, {hex(P[0] >> 32)}")
    A(f"s_and_b32 s68, {sK}, 3")
    for a in range(1, 4):
        if P[a] != P[0]:
            A(f"s_cmp_eq_u32 s68, {a}"); A(f"s_cselect_b32 s38, {hex(P[a] & 0xffffffff)}, s38"); A(f"s_cselect_b32 s39, {hex(P[a] >> 32)}, s39")
    A(f"s_lshl_b32 s68, {sS}, 3")
    A("s_lshr_b64 s[66:67], s[38:39], s68"); A("s_and_b32 s66, s66, 0xff")
    A("s_lshl_b64 s[38:39], s[38:39], 8")
    A("s_lshr_b64 s[38:39], s[38:39], s68"); A("s_and_b32 s38, s38, 0xff")
    A(f"s_sub_u32 {sNT}, s38, s66"); A(f"s_add_u32 {sNT}, {sNT}, {NS}")
    A(f"s_mul_i32 {sROT}, {sHD}, {ROT}")
    A(f"s_mul_i32 {sST}, {sS}, {NS}"); A(f"s_sub_u32 {sST}, {sST}, s38"); A(f"s_add_u32 {sST}, {sST}, {sROT}")
    A(f"s_lshl_b32 s68, {sHD}, 22")
    def tile_addr(sreg, add):
        A(f"s_add_u32 s69, {sreg}, {add}"); A("s_and_b32 s69, s69, 1023"); A("s_lshl_b32 s69, s69, 12")
        A(f"v_add_u32 v{vADDR}, s69, v{vLANE16}")
    A(f"s_add_u32 s67, {sST}, {sWAVE}"); A("s_sub_u32 s67, s67, 1")
    tile_addr("s67", 0)
    A(f"s_lshl_b32 {sCNT}, {sHD}, 8"); A(f"s_add_u32 {sCNT}, {sCNT}, {WS_CNT}")
    A("s_waitcnt lgkmcnt(0)")
    A("s_add_u32 s40, s6, s68"); A("s_addc_u32 s41, s7, 0"); A("s_mov_b32 s42, 0x400000"); A("s_mov_b32 s43, 0x20000")
    A("s_add_u32 s44, s8, s68"); A("s_addc_u32 s45, s9, 0"); A("s_mov_b32 s46, 0x400000"); A("s_mov_b32 s47, 0x20000")
    def loadK(slot):
        for u in range(4): A(f"buffer_load_dwordx4 {v4(RING+32*slot+4*u)}, v{vADDR}, {SK}, 0 offen offset:{u*1024} {pol}")
    def loadV(slot):
        for u in range(4): A(f"buffer_load_dwordx4 {v4(RING+32*slot+16+4*u)}, v{vADDR}, {SV}, 0 offen offset:{u*1024} {pol}")
    loadK(1)
    common_setup(); tag_finish()
    A(f"v_mov_b32 v{vM}, {fh(-1e30)}"); A(f"v_mov_b32 v{vML}, {fh(-1e30)}"); A(f"v_mov_b32 v{vL}, 0")
    for r in range(4): A(f"v_mov_b32 v{vACC+r}, 0")
    A("s_barrier")
    A(f"s_waitcnt vmcnt({TH})"); loadV(1)
    for i, k in enumerate(list(range(2, 1 + NE)) + [0]):
        tile_addr("s67", 7*(i+1))
        A(f"s_waitcnt vmcnt({TH})"); loadK(k)
        if k: A(f"s_waitcnt vmcnt({TH})"); loadV(k)
    if stamps:
        A(f"s_cmp_lg_u32 {sWAVE}, 1"); A("s_cbranch_scc1 L_ns14")
        stamp(14); stamp_dump([14], final=False)
        A.label("L_ns14")
    A(f"v_and_b32 v{vT}, 15, v{vLANE}"); A(f"v_lshlrev_b32 v{vT}, 4, v{vT}")
    A(f"s_mov_b32 {sTO}, 0x400000")
    A.label("L_qwait")
    A(f"ds_read_b32 v{vT+1}, v{vZERO} offset:{L_FLAG}")
    A(f"s_sub_u32 {sTO}, {sTO}, 1"); A(f"s_cmp_eq_u32 {sTO}, 0"); A("s_cbranch_scc1 L_qgo")
    A("s_waitcnt lgkmcnt(0)")
    A(f"v_cmp_eq_u32 vcc, 0, v{vT+1}")
    A("s_cbranch_vccnz L_qwait")
    A.label("L_qgo")
    A(f"ds_read_b128 {v4(vQ)}, v{vT} offset:{L_Q}")
    def req_ticket():
        A("s_mov_b64 exec, 1"); A(f"ds_add_rtn_u32 v{vTKT}, v{vZERO}, v{vONE} offset:{L_TICKET}"); A("s_mov_b64 exec, -1")
    rescue = []
    def qk(slot):
        kb = RING + 32*slot
        for t in range(4):
            for u in range(4):
                if t == 0: A(f"v_dot2_f32_bf16 v{vR+u}, v{kb+4*u}, v{vQ}, 0")
                else: A(f"v_dot2c_f32_bf16 v{vR+u}, v{kb+4*u+t}, v{vQ+t}")
        A(f"v_add_f32_dpp v{vA_}, v{vR}, v{vR} row_ror:8 row_mask:0xf bank_mask:0x3")
        A(f"v_add_f32_dpp v{vB_}, v{vR+2}, v{vR+2} row_ror:8 row_mask:0xf bank_mask:0x3")
        A(f"v_add_f32_dpp v{vA_}, v{vR+1}, v{vR+1} row_ror:8 row_mask:0xf bank_mask:0xc")
        A(f"v_add_f32_dpp v{vB_}, v{vR+3}, v{vR+3} row_ror:8 row_mask:0xf bank_mask:0xc")
        A(f"v_add_f32_dpp v{vC_}, v{vA_}, v{vA_} row_shl:4 row_mask:0xf bank_mask:0x5")
        A(f"v_add_f32_dpp v{vC_}, v{vB_}, v{vB_} row_shr:4 row_mask:0xf bank_mask:0xa")
        dpp_red("v_add_f32", [vC_], QUAD)
        rbf(vC_, vC_)
        A(f"v_mul_f32 v{vC_}, {sSC}, v{vC_}")
        rbf(vC_, vC_)
        Lr, Lb = U("resc"), U("back")
        A(f"v_cmp_gt_f32 vcc, v{vC_}, v{vM}")
        A(f"s_cbranch_vccnz {Lr}")
        A.label(Lb)
        rescue.append((Lr, Lb))
        A(f"v_fma_f32 v{vE_}, v{vC_}, {sL2E}, -v{vML}")
        A(f"v_exp_f32 v{vE_}, v{vE_}")
        A(f"v_add_f32 v{vL}, v{vL}, v{vE_}")
        A(f"v_cvt_pk_bf16_f32 v{vE_}, v{vE_}, v{vE_}")
        lane_of = [0, 8, 4, 12]
        for u in range(4):
            for t in range(4): A(f"v_and_b32_dpp v{vAOP+4*u+t}, v{vE_}, v{vM2+t} row_newbcast:{lane_of[u]} {DPPF}")
    def pv(slot):
        vb = RING + 32*slot + 16
        for u in range(4):
            A(f"v_mfma_f32_16x16x32_bf16 {v4(vACC)}, {v4(vAOP+4*u)}, {v4(vb+4*u)}, {v4(vACC)}")
    A("s_waitcnt lgkmcnt(0)")
    for k in range(1, 1 + NE):
        A("s_waitcnt vmcnt(0)")
        loadV(0)
        tile_addr("s67", 7*(NE+k))
        qk(0)
        A("s_waitcnt vmcnt(0)")
        loadK(0)
        pv(0)
        qk(k); pv(k)
    if NWS < 7:
        A(f"s_cmp_gt_u32 {sWAVE}, {NWS}"); A("s_cbranch_scc0 L_go")
        A("s_waitcnt vmcnt(0)"); loadV(0); qk(0); A("s_waitcnt vmcnt(0)"); A("s_branch L_last")
        A.label("L_go")
    req_ticket()
    A.label("L_loop")
    A("s_waitcnt vmcnt(0) lgkmcnt(0)")
    loadV(0)
    A(f"v_readfirstlane_b32 {sTK}, v{vTKT}")
    A(f"s_cmp_ge_u32 {sTK}, {sNT}"); A("s_cbranch_scc1 L_dyn_in")
    req_ticket()
    tile_addr(sTK, sST)
    qk(0)
    A("s_waitcnt vmcnt(0)")
    loadK(0)
    pv(0)
    A("s_branch L_loop")
    A.label("L_dyn")
    A("s_waitcnt vmcnt(0)")
    loadV(0)
    A.label("L_dyn_in")
    A("s_mov_b64 exec, 1"); A(f"v_mov_b32 v{vTKT}, 1")
    A(f"buffer_atomic_add v{vTKT}, v{vZERO}, {SWS}, {sCNT} offen sc0 sc1")
    A("s_mov_b64 exec, -1")
    qk(0)
    A("s_waitcnt vmcnt(0)")
    A(f"v_readfirstlane_b32 {sTK}, v{vTKT}")
    A(f"s_cmp_ge_u32 {sTK}, 1024"); A("s_cbranch_scc1 L_last")
    tile_addr(sTK, sROT)
    loadK(0)
    pv(0)
    A("s_branch L_dyn")
    A.label("L_last")
    pv(0)
    row_red("v_add_f32", vL, vA_)
    A(f"s_lshl_b32 s69, {sWAVE}, 10"); A(f"v_add_u32 v{vT}, s69, v{vNAT}")
    A(f"v_mov_b32 v{vACC+2}, v{vML}"); A(f"v_mov_b32 v{vACC+3}, v{vL}")
    A(f"ds_write_b128 v{vT}, {v4(vACC)} offset:{L_PART-1024}")
    A("s_waitcnt lgkmcnt(0)")
    A("s_barrier")
    A.label("L_tail")
    A(f"s_cmp_lt_u32 {sK}, 10"); A("s_cbranch_scc1 L_wo")
    A(f"s_cmp_ge_u32 {sF}, 54"); A("s_cbranch_scc1 L_exit")
    WT = RING + 120
    WD = WT + 40
    WD2 = RING + 64
    ACC2 = RING + 60
    X0, GA, C1, SBv = 24, 26, 28, 30
    TMP = RING + 112
    A(f"v_lshrrev_b32 v{vT}, 3, v{vLANE}"); A(f"v_mul_u32_u24 v{vT}, 5, v{vT}")
    A(f"s_mul_i32 s68, {sWAVE}, 40"); A(f"v_add_u32 v{vT}, s68, v{vT}")
    A(f"v_lshlrev_b32 v{vT+2}, 7, v{vT}"); A(f"v_and_b32 v{vT+1}, 3, v{vLANE}"); A(f"v_lshl_add_u32 v{vT+2}, v{vT+1}, 4, v{vT+2}")
    A(f"v_bfe_u32 v{vT+1}, v{vLANE}, 2, 1"); A(f"v_mul_u32_u24 v{vT+1}, 40960, v{vT+1}"); A(f"v_add_u32 v{vT+2}, v{vT+2}, v{vT+1}")
    for u in range(2):
        for m in range(5): A(f"ds_read_b128 {v4(WT+4*(u*5+m))}, v{vT+2} offset:{L_W + (2*m+u)*64}")
    A(f"v_and_b32 v{vT+1}, 7, v{vLANE}"); A(f"v_cmp_gt_u32 vcc, 5, v{vT+1}"); A(f"v_min_u32 v{vT+1}, 4, v{vT+1}")
    A(f"v_cndmask_b32 v{vT+7}, 0, 1.0, vcc")
    A(f"v_add_u32 v{vT}, v{vT}, v{vT+1}")
    A(f"v_lshlrev_b32 v{vT+4}, 4, v{vT}"); A(f"v_lshlrev_b32 v{vT+3}, 3, v{vT}"); A(f"v_lshlrev_b32 v{vT+2}, 2, v{vT}")
    srd(SB, "s4", "s5", 1280)
    A(f"buffer_load_dword v{X0+1}, v{vT+2}, {SB}, 0 offen")
    A(f"v_lshrrev_b32 v{vT}, 4, v{vLANE}"); A(f"v_mul_u32_u24 v{vT}, {8*1280}, v{vT}")
    A(f"v_and_b32 v{vT+1}, 15, v{vLANE}"); A(f"v_lshl_add_u32 v{vT}, v{vT+1}, 4, v{vT}")
    A(f"v_add_u32 v{vT+1}, {L_W + 81920 + 1024}, v{vT}")
    A(f"s_min_u32 s68, {sWAVE}, 3"); A("s_lshl_b32 s68, s68, 8"); A(f"s_add_u32 s68, s68, {L_W + 81920}"); A(f"v_add_u32 v{vT}, s68, v{vT}")
    A("s_waitcnt lgkmcnt(4)")
    for t in range(8): A(f"ds_read_b128 {v4(WD+4*t)}, v{vT} offset:{t*1280}")
    A("s_waitcnt lgkmcnt(4)")
    for t in range(8): A(f"ds_read_b128 {v4(WD2+4*t)}, v{vT+1} offset:{t*1280}")
    for n in range(8): A(f"s_mov_b32 s{4+n}, {WS_YP + n*5120}")
    acc_addr(vT+5)
    A(f"v_lshrrev_b32 v{vT+6}, 4, v{vLANE}"); A(f"v_lshlrev_b32 v{vT+6}, 3, v{vT+6}")
    A(f"v_and_b32 v{vT+1}, 7, v{vLANE}"); A(f"v_add_u32 v{vT+6}, v{vT+6}, v{vT+1}")
    A(f"v_bfe_u32 v{vT+1}, v{vLANE}, 3, 1"); A(f"v_lshl_add_u32 v{vT+6}, v{vT+1}, 5, v{vT+6}"); A(f"v_lshlrev_b32 v{vT+6}, 2, v{vT+6}")
    A(f"v_add_u32 v{vT+6}, {L_ACC}, v{vT+6}")
    A(f"s_mul_i32 s12, {sF}, 5120"); A(f"s_lshl_b32 s69, {sWAVE}, 10"); A("s_add_u32 s12, s12, s69"); A(f"s_add_u32 s12, s12, {WS_DP}")
    A(f"s_lshl_b32 s68, {sWAVE}, 3"); A(f"v_mov_b32 v{vADDR}, s68")
    A(f"s_min_u32 s21, {sF}, 39")
    A(f"v_lshrrev_b32 v{vT+8}, 3, v{vLANE}"); A(f"v_mul_u32_u24 v{vT+8}, 5120, v{vT+8}")
    A(f"v_and_b32 v{vT+9}, 7, v{vLANE}"); A(f"v_lshl_add_u32 v{vT+8}, v{vT+9}, 4, v{vT+8}")
    A(f"s_lshl_b32 s68, s21, 7"); A(f"v_add_u32 v{vT+8}, s68, v{vT+8}")
    A(f"v_lshl_add_u32 v{vT+1}, v{vT+9}, 4, s68")
    A(f"v_lshrrev_b32 v{vTKT}, 5, v{vLANE}"); A(f"v_lshl_add_u32 v{vT+9}, v{vT+9}, 1, v{vTKT}")
    A(f"s_lshl_b32 s68, s21, 4"); A(f"v_add_u32 v{vT+9}, s68, v{vT+9}")
    A(f"v_lshlrev_b32 v{vTKT}, 2, v{vT+9}"); A(f"v_lshlrev_b32 v{vT+9}, 1, v{vT+9}")
    for n in range(7): A(f"s_mov_b32 s{13+n}, {WS_DP + n*8*5120}")
    A(f"s_mov_b32 s20, {WS_MR}"); A(f"s_mov_b32 s21, {WS_MR+5120}")
    poll([(vT+4, "s20", 0, None), (vT+1, "s21", 0, None)], RING)
    GB = vM
    A(f"v_lshlrev_b32 v{X0}, 16, v{X0+1}"); A(f"v_and_b32 v{X0+1}, 0xffff0000, v{X0+1}")
    for (d, r) in ((GA, 0), (SBv, 1), (C1, 2)):
        A(f"v_lshlrev_b32 v{d}, 16, v{RING+r}"); A(f"v_and_b32 v{d+1}, 0xffff0000, v{RING+r}")
    A(f"v_add_f32 v{C1}, 1.0, v{C1}"); A(f"v_add_f32 v{C1+1}, 1.0, v{C1+1}"); rbf2(C1, C1+1)
    A(f"v_mov_b32 v{GB}, v{RING+4}"); A("s_mov_b32 exec_lo, 0"); A(f"v_mov_b32 v{GB}, v{RING+5}"); A("s_mov_b64 exec, -1")
    srd(SB, "s26", "s27", 1280)
    if touch: A(f"buffer_load_ushort v{vL}, v{vT+9}, {SB}, 0 offen")
    A("s_waitcnt lgkmcnt(0)")
    X2, HH = 12, 14
    RD = RING + 96
    stamp(8)
    poll([(vT+4, f"s{4+n}", 0, None) for n in range(8)], RING, DB, lambda b: sum2([b+4*n for n in range(8)], TMP))
    stamp(9)
    A.label("L_ffn_body")
    A(f"v_pk_fma_f32 {v2(X2)}, {v2(TMP)}, {v2(GA)}, {v2(X0)}")
    A(f"v_add_f32 v{TMP}, v{X2}, v{X2+1}"); A(f"v_mul_f32 v{TMP+1}, v{X2}, v{X2}"); A(f"v_fmac_f32 v{TMP+1}, v{X2+1}, v{X2+1}")
    A(f"v_mul_f32 v{TMP}, v{TMP}, v{vT+7}"); A(f"v_mul_f32 v{TMP+1}, v{TMP+1}, v{vT+7}")
    A(f"ds_write_b64 v{vT+3}, {v2(X2)} offset:{L_X2}")
    dpp_red("v_add_f32", [TMP, TMP+1], QUAD + BANK + BCAST)
    A("s_mov_b32 exec_lo, 0"); A("s_brev_b32 exec_hi, 1")
    A(f"ds_write_b64 v{vADDR}, {v2(TMP)} offset:{L_ST}")
    A("s_mov_b64 exec, -1")
    fstamp(1)
    A("s_waitcnt lgkmcnt(0)")
    A("s_barrier")
    fstamp(3)
    ST = vAOP
    for n in range(4): A(f"ds_read_b128 {v4(ST+4*n)}, v{vZERO} offset:{L_ST+16*n}")
    A(f"v_mov_b32 v{TMP+2}, {fh(1e-5)}")
    A("s_waitcnt lgkmcnt(0)")
    sum2([ST+2*n for n in range(8)], TMP)
    A(f"v_mul_f32 v{TMP}, {fh(1.0/640)}, v{TMP}")
    A(f"v_fmac_f32 v{TMP+2}, {fh(1.0/640)}, v{TMP+1}")
    A(f"v_fma_f32 v{TMP+2}, -v{TMP}, v{TMP}, v{TMP+2}")
    A(f"v_max_f32 v{TMP+2}, {fh(1e-5)}, v{TMP+2}")
    A(f"v_rsq_f32 v{TMP+2}, v{TMP+2}")
    A(f"v_sub_f32 v{X2}, v{X2}, v{TMP}"); A(f"v_sub_f32 v{X2+1}, v{X2+1}, v{TMP}")
    A(f"v_mul_f32 v{HH}, v{C1}, v{TMP+2}"); A(f"v_mul_f32 v{HH+1}, v{C1+1}, v{TMP+2}")
    A(f"v_pk_fma_f32 {v2(HH)}, {v2(X2)}, {v2(HH)}, {v2(SBv)}")
    A(f"v_cvt_pk_bf16_f32 v{HH}, v{HH}, v{HH}"); A(f"v_cvt_pk_bf16_f32 v{HH+1}, v{HH+1}, v{HH+1}")
    ysplit([HH, HH+1], TMP)
    fstamp(4)
    gemv(vACC, vM1, [(TMP + 2*u + m // 4, qp(m % 4), WT+4*(u*5+m), None) for u in range(2) for m in range(5)])
    acc_write(vT+5)
    fstamp(5)
    A("s_waitcnt lgkmcnt(0)")
    A("s_barrier")
    fstamp(7)
    A(f"s_cmp_gt_u32 {sWAVE}, 3"); A("s_cbranch_scc1 L_final")
    for k in range(8): A(f"ds_read2st64_b32 {v2(RD+2*k)}, v{vT+6} offset0:{2*k} offset1:{2*k+1}")
    A("s_waitcnt lgkmcnt(0)")
    sum2([RD+2*k for k in range(8)])
    A(f"v_add_f32 v{RD}, v{RD}, v{RD+1}")
    A(f"v_mov_b32_dpp v{RD+1}, v{RD} row_ror:8 {DPPF}")
    silu(RD, RD+2)
    A(f"v_mul_f32 v{RD}, v{RD}, v{RD+1}")
    A(f"v_cvt_pk_bf16_f32 v{RD}, v{RD}, v{RD}")
    A(f"s_cmp_eq_u32 {sWAVE}, 1"); A("s_cbranch_scc1 L_down2")
    gemv(vACC, vM2, [(RD, f"row_newbcast:{t}", WD+4*t, None) for t in range(8)])
    publish(vACC, vNAT, "s12")
    A("s_branch L_exit")
    A.label("L_down2")
    gemv(vACC, vM2, [(RD, f"row_newbcast:{t}", WD+4*t, None) for t in range(8)], ACC2, WD2)
    A(f"v_mov_b32 v{vACC+3}, {sTAG}"); A(f"v_mov_b32 v{ACC2+3}, {sTAG}")
    A(f"buffer_store_dwordx4 {v4(vACC)}, v{vNAT}, {SWS}, s12 offen sc1")
    A(f"buffer_store_dwordx4 {v4(ACC2)}, v{vNAT}, {SWS}, s12 offen offset:3072 sc1")
    if stamps:
        stamp(10)
        stamp_dump([8, 9, 10] + ([1, 3, 4, 5, 7] if stamps == 2 else []))
    A("s_endpgm")
    A.label("L_final")
    A(f"s_cmp_lg_u32 {sWAVE}, 7"); A("s_cbranch_scc1 L_end")
    A(f"s_cmp_ge_u32 {sF}, 40"); A("s_cbranch_scc1 L_end")
    A(f"ds_read_b32 v{X0}, v{vTKT} offset:{L_X2}")
    A("s_waitcnt vmcnt(0)")
    for i in range(DC):
        b = RING + 28*i + 24
        A(f"v_mov_b32 v{b}, 0"); A(f"v_mov_b32 v{b+1}, 0"); A(f"v_mov_b32 v{b+3}, {sTAG}")
    A("s_mov_b32 s68, -1"); A("s_mov_b32 s69, 0xffff")
    poll([(vT+8, f"s{13+n}", 0, None if n < 6 else "s[68:69]") for n in range(7)], RING, DC, lambda b: sum2([b+4*n for n in range(7)], GA))
    stamp(11)
    A(f"v_permlane32_swap_b32 v{GA}, v{GA+1}"); A(f"v_add_f32 v{GA}, v{GA}, v{GA+1}")
    xrow("v_add_f32", GA, GA+1, 16)
    A(f"v_add_f32_dpp v{GA}, v{GA}, v{GA} row_ror:8 {DPPF}")
    A("s_waitcnt lgkmcnt(0)")
    A(f"v_fma_f32 v{GA}, v{GA}, v{GB}, v{X0}"); A(f"v_cvt_pk_bf16_f32 v{GA}, v{GA}, v{GA}")
    A("s_mov_b32 exec_lo, 0xff"); A("s_mov_b32 exec_hi, 0xff")
    A(f"buffer_store_short v{GA}, v{vT+9}, {SB}, 0 offen")
    A(f"s_cmp_lg_u32 {sF}, 0"); A("s_cbranch_scc1 L_fin_dump")
    A("s_mov_b64 exec, 1"); A(f"v_mov_b32 v{GA+1}, {sTAG}")
    A(f"buffer_store_dword v{GA+1}, v{vZERO}, {SWS}, 0 offen sc1")
    A.label("L_fin_dump")
    if diag_hold and diag_wg is None:
        A.label("L_hold")
        A("s_memrealtime s[94:95]"); A("s_waitcnt lgkmcnt(0)"); A("s_sub_u32 s94, s94, s96"); A(f"s_cmp_lt_u32 s94, {diag_hold}"); A("s_cbranch_scc1 L_hold")
    if stamps:
        A("s_waitcnt vmcnt(0)"); stamp(12)
        stamp_dump([11, 12])
    A("s_endpgm")
    A.label("L_wo")
    A(f"v_lshrrev_b32 v{vT+4}, 5, v{vLANE}"); A(f"v_lshlrev_b32 v{vT+4}, 10, v{vT+4}")
    A(f"v_and_b32 v{vT+6}, 31, v{vLANE}"); A(f"v_lshl_add_u32 v{vT+4}, v{vT+6}, 4, v{vT+4}")
    A(f"s_lshr_b32 s4, {sWAVE}, 1"); A("s_lshl_b32 s4, s4, 3"); A(f"s_add_u32 s4, s4, {sG}"); A("s_lshl_b32 s4, s4, 13")
    A(f"s_and_b32 s5, {sWAVE}, 1"); A("s_lshl_b32 s5, s5, 9"); A("s_add_u32 s4, s4, s5"); A(f"s_add_u32 s4, s4, {WS_OP}"); A("s_add_u32 s5, s4, 4096")
    A(f"v_bfe_u32 v{vT}, v{vLANE}, 4, 1"); A(f"v_lshlrev_b32 v{vT}, 5, v{vT}")
    A(f"v_lshrrev_b32 v{vT+1}, 5, v{vLANE}"); A(f"v_add_u32 v{vT}, v{vT}, v{vT+1}")
    A(f"v_bfe_u32 v{vT+1}, v{vLANE}, 3, 1"); A(f"v_lshl_add_u32 v{vT}, v{vT+1}, 4, v{vT}")
    A(f"v_lshlrev_b32 v{vT}, 7, v{vT}")
    A(f"v_and_b32 v{vT+1}, 7, v{vLANE}"); A(f"v_lshl_add_u32 v{vT}, v{vT+1}, 4, v{vT}")
    A(f"s_lshl_b32 s68, {sWAVE}, 13"); A(f"v_add_u32 v{vT}, s68, v{vT}")
    for n in range(8): A(f"ds_read_b128 {v4(WT+4*n)}, v{vT} offset:{L_W + 2*n*128}")
    acc_addr(vT+5)
    A(f"v_lshrrev_b32 v{vT+7}, 5, v{vLANE}"); A(f"v_lshlrev_b32 v{vT+7}, 11, v{vT+7}"); A(f"v_lshl_add_u32 v{vT+7}, v{vT+6}, 3, v{vT+7}")
    A(f"s_mul_i32 s6, {sG}, 5120"); A(f"s_lshl_b32 s7, {sK}, 9"); A("s_add_u32 s6, s6, s7"); A(f"s_add_u32 s6, s6, {WS_YP}")
    def wo_combine(b):
        lam = [b+4*n+2 for n in range(4)]
        t = TMP + 2
        A(f"v_max3_f32 v{t}, v{lam[0]}, v{lam[1]}, v{lam[2]}"); A(f"v_max_f32 v{t}, v{t}, v{lam[3]}")
        xrow("v_max_f32", t, t+1, 32)
        for n in range(4): A(f"v_sub_f32 v{lam[n]}, v{lam[n]}, v{t}")
        for n in range(4): A(f"v_exp_f32 v{lam[n]}, v{lam[n]}")
        A(f"v_add_f32 v{t}, v{lam[0]}, v{lam[1]}"); A(f"v_add_f32 v{t+1}, v{lam[2]}, v{lam[3]}")
        for r in range(2): A(f"v_mul_f32 v{TMP+r}, v{lam[0]}, v{b+r}")
        A(f"v_add_f32 v{t}, v{t}, v{t+1}")
        for n in range(1, 4):
            for r in range(2): A(f"v_fmac_f32 v{TMP+r}, v{lam[n]}, v{b+4*n+r}")
    poll([(vT+4, "s4" if n < 2 else "s5", (n % 2)*2048, None) for n in range(4)], RING, DA, wo_combine)
    stamp(7)
    t = TMP + 2
    xrow("v_add_f32", t, t+1, 32)
    A(f"v_permlane32_swap_b32 v{TMP}, v{TMP+1}")
    A(f"v_rcp_f32 v{t}, v{t}")
    A(f"v_add_f32 v{TMP}, v{TMP}, v{TMP+1}")
    A(f"v_mul_f32 v{TMP}, v{TMP}, v{t}")
    A(f"v_cvt_pk_bf16_f32 v{TMP}, v{TMP}, v{TMP}")
    ysplit([TMP], TMP+2)
    A("s_waitcnt lgkmcnt(0)")
    gemv(vACC, vM1, [(TMP + 2 + n // 4, qp(n % 4), WT+4*n, None) for n in range(8)])
    acc_write(vT+5)
    A("s_waitcnt lgkmcnt(0)")
    A("s_barrier")
    A(f"s_cmp_lg_u32 {sWAVE}, 0"); A("s_cbranch_scc1 L_end")
    for n in range(8): A(f"ds_read_b64 {v2(WT+2*n)}, v{vT+7} offset:{L_ACC+256*n}")
    A("s_waitcnt lgkmcnt(0)")
    sum2([WT+2*n for n in range(8)])
    A(f"v_mov_b32 v{WT+2}, v{WT}"); A(f"v_mov_b32 v{WT+3}, v{WT+1}")
    A(f"v_permlane32_swap_b32 v{WT}, v{WT+2}"); A(f"v_permlane32_swap_b32 v{WT+1}, v{WT+3}")
    A(f"v_pk_add_f32 {v2(WT)}, {v2(WT)}, {v2(WT+2)}")
    A("s_mov_b32 exec_hi, 0")
    publish(WT, vLANE16, "s6")
    stamp(13)
    A.label("L_exit")
    if stamps:
        A(f"s_cmp_lg_u32 {sWAVE}, 0"); A("s_cbranch_scc1 L_end")
        stamp_dump([0, 13, 6, 2] + ([1, 3, 4, 5, 7] if stamps != 2 else []), xcc=True)
    A("s_endpgm")
    for (Lr, Lb) in rescue:
        A.label(Lr)
        A(f"v_max_f32 v{vA_}, v{vC_}, v{vM}")
        row_red("v_max_f32", vA_, vB_)
        A(f"v_sub_f32 v{vB_}, v{vM}, v{vA_}"); A(f"v_mul_f32 v{vB_}, {sL2E}, v{vB_}"); A(f"v_exp_f32 v{vB_}, v{vB_}")
        A(f"v_mov_b32 v{vM}, v{vA_}"); A(f"v_mul_f32 v{vML}, {sL2E}, v{vA_}")
        A(f"v_mul_f32 v{vL}, v{vL}, v{vB_}")
        for r in range(2): A(f"v_mul_f32 v{vACC+r}, v{vACC+r}, v{vB_}")
        A(f"s_branch {Lb}")

    A.label("L_ctrl0")
    A("s_setprio 3")
    A("s_waitcnt lgkmcnt(0)")
    def ctrl_init():
        common_setup()
        A(f"v_mov_b32 v{vT+4}, {7*(1+2*NE)}"); A(f"v_mov_b32 v{vT+5}, 0")
        A(f"ds_write_b64 v{vZERO}, {v2(vT+4)} offset:{L_TICKET}")
        tag_finish()
        A("s_barrier")
    A(f"s_sub_u32 s37, {sK}, 17"); A(f"s_add_u32 s68, {sK}, 15"); A(f"s_cmp_lt_u32 {sK}, 5"); A("s_cselect_b32 s37, s68, s37")
    A("s_cmp_lt_u32 s37, 20"); A("s_cbranch_scc1 L_ctrl_q")
    A(f"s_cmp_ge_u32 {sK}, 15"); A("s_cbranch_scc1 L_ctrl_none")
    A(f"s_sub_u32 s38, {sK}, 5")
    mod_loads("s38", sG)
    ctrl_init()
    mod_compute("s38", sG)
    stamp(1)
    A("s_branch L_hop2")
    A.label("L_ctrl_none")
    ctrl_init()
    A("s_branch L_hop2")
    A.label("L_ctrl_q")
    WQ = RING + 64
    XA = RING
    X0, X1 = 24, 25
    A("s_mul_i32 s38, s37, 52"); A("s_lshr_b32 s38, s38, 8"); A("s_mul_i32 s68, s38, 5"); A("s_sub_u32 s39, s37, s68")
    A("s_lshl_b32 s38, s38, 3"); A(f"s_add_u32 s38, s38, {sG}")
    srd(SB, "s4", "s5", 1280); srd(SA, "s10", "s11", 640*8192)
    A(f"v_lshlrev_b32 v{vT+2}, 2, v{vLANE}")
    for k in range(5): A(f"buffer_load_dword v{XA+2*k+1}, v{vT+2}, {SB}, 0 offen offset:{k*256}")
    A("s_lshl_b32 s68, s39, 8")
    A(f"buffer_load_dword v{X1}, v{vT+2}, {SB}, s68 offen")
    A(f"v_lshrrev_b32 v{vT}, 4, v{vLANE}"); A(f"v_lshlrev_b32 v{vT}, 18, v{vT}")
    A(f"v_and_b32 v{vT+1}, 15, v{vLANE}"); A(f"v_lshl_add_u32 v{vT+3}, v{vT+1}, 4, v{vT}")
    A("s_lshl_b32 s69, s39, 20"); A("s_lshl_b32 s68, s38, 8"); A("s_add_u32 s69, s69, s68")
    for n in range(32):
        u, j = n // 16, n % 16
        A(f"s_add_u32 s68, s69, {(2*j+u)*8192}")
        A(f"buffer_load_dwordx4 {v4(WQ+4*n)}, v{vT+3}, {SA}, s68 offen {pol}")
    ctrl_init()
    A("s_and_b32 s68, s38, 3"); A(f"s_mov_b32 s69, {DYN0[0]}")
    for a in range(1, 4):
        A(f"s_cmp_eq_u32 s68, {a}"); A(f"s_cselect_b32 s69, {DYN0[a]}, s69")
    A(f"v_mov_b32 v{vT}, s69"); A("s_lshl_b32 s68, s38, 8"); A(f"s_add_u32 s68, s68, {WS_CNT}")
    A("s_cmp_lg_u32 s39, 0"); A("s_cbranch_scc1 L_nocnt")
    A("s_mov_b64 exec, 1")
    A(f"buffer_store_dword v{vT}, v{vZERO}, {SWS}, s68 offen sc1")
    A("s_mov_b64 exec, -1")
    A("s_waitcnt vmcnt(33)")
    A("s_branch L_cntj")
    A.label("L_nocnt")
    A("s_waitcnt vmcnt(32)")
    A.label("L_cntj")
    for k in range(5):
        A(f"v_lshlrev_b32 v{XA+2*k}, 16, v{XA+2*k+1}"); A(f"v_and_b32 v{XA+2*k+1}, 0xffff0000, v{XA+2*k+1}")
    A(f"v_lshlrev_b32 v{X0}, 16, v{X1}"); A(f"v_and_b32 v{X1}, 0xffff0000, v{X1}")
    t = vT + 8; a = XA
    A(f"v_add_f32 v{t}, v{a}, v{a+1}")
    for i in range(2, 10): A(f"v_add_f32 v{t}, v{t}, v{a+i}")
    wave_red("v_add_f32", t, t+1)
    A(f"v_mul_f32 v{t}, {fh(1.0/640)}, v{t}")
    for i in range(10): A(f"v_sub_f32 v{a+i}, v{a+i}, v{t}")
    A(f"v_mul_f32 v{t+2}, v{a}, v{a}")
    for i in range(1, 10): A(f"v_fmac_f32 v{t+2}, v{a+i}, v{a+i}")
    wave_red("v_add_f32", t+2, t+1)
    A(f"v_mul_f32 v{t+2}, {fh(1.0/640)}, v{t+2}")
    rbf2(t, t+2)
    A(f"v_add_f32 v{t+2}, {fh(1e-5)}, v{t+2}"); rbf(t+2, t+2)
    A(f"v_sqrt_f32 v{t+2}, v{t+2}"); rbf(t+2, t+2)
    A(f"v_rcp_f32 v{t+2}, v{t+2}")
    A(f"v_sub_f32 v{X0}, v{X0}, v{t}"); A(f"v_sub_f32 v{X1}, v{X1}, v{t}"); rbf2(X0, X1)
    A(f"v_mul_f32 v{X0}, v{X0}, v{t+2}"); A(f"v_mul_f32 v{X1}, v{X1}, v{t+2}"); rbf2(X0, X1)
    A("s_lshl_b32 s6, s39, 13"); A(f"s_add_u32 s6, s6, {WS_MODP}"); A("s_add_u32 s7, s6, 4096"); A(f"s_add_u32 s8, s6, {5*8192}"); A("s_add_u32 s9, s8, 4096")
    stamp(1)
    spre("s6", [(n // 8)*5*8192 + (n % 8)*1024 for n in range(16)])
    poll([(vLANE16, f"s{6+n//4}", (n % 4)*1024, None) for n in range(16)], RING)
    stamp(2)
    sum2([RING+4*n for n in range(8)]); sum2([RING+32+4*n for n in range(8)])
    rbf2(RING, RING+1); rbf2(RING+32, RING+33)
    c0, c1, s0, s1 = RING+32, RING+33, RING, RING+1
    A(f"v_add_f32 v{c0}, 1.0, v{c0}"); A(f"v_add_f32 v{c1}, 1.0, v{c1}"); rbf2(c0, c1)
    A(f"v_mul_f32 v{X0}, v{X0}, v{c0}"); A(f"v_mul_f32 v{X1}, v{X1}, v{c1}"); rbf2(X0, X1)
    A(f"v_add_f32 v{X0}, v{X0}, v{s0}"); A(f"v_add_f32 v{X1}, v{X1}, v{s1}")
    A(f"v_cvt_pk_bf16_f32 v{X0}, v{X0}, v{X0}"); A(f"v_cvt_pk_bf16_f32 v{X1}, v{X1}, v{X1}")
    gemv(vACC, vM2, [((X0, X1)[n // 16], f"row_newbcast:{n % 16}", WQ + 4*n, None) for n in range(32)])
    A("s_mul_i32 s68, s38, 5"); A("s_add_u32 s68, s68, s39"); A("s_lshl_b32 s68, s68, 10"); A(f"s_add_u32 s68, s68, {WS_QP}")
    publish(vACC, vNAT, "s68")
    A.label("L_hop2")
    stamp(3)
    A(f"s_mul_i32 s6, {sHD}, 5120"); A(f"s_add_u32 s6, s6, {WS_QP}"); A("s_add_u32 s7, s6, 4096")
    spre("s6", [n*1024 for n in range(5)])
    poll([(vLANE16, "s6" if n < 4 else "s7", (n % 4)*1024, None) for n in range(5)], RING)
    sum2([RING+4*n for n in range(5)])
    A(f"v_cvt_pk_bf16_f32 v{RING}, v{RING}, v{RING+1}")
    A(f"v_lshlrev_b32 v{vT}, 2, v{vLANE}")
    A(f"ds_write_b32 v{vT}, v{RING} offset:{L_Q}")
    A("s_waitcnt lgkmcnt(0)")
    A(f"ds_write_b32 v{vZERO}, v{vONE} offset:{L_FLAG}")
    stamp(4)
    A("s_setprio 0")
    A("s_cmp_lt_u32 s37, 20"); A("s_cbranch_scc0 L_ctrl_b")
    A("s_add_u32 s38, s37, 10")
    mod_loads("s38", sG)
    mod_compute("s38", sG)
    A.label("L_ctrl_b")
    A(f"s_cmp_lg_u32 {sK}, 31"); A("s_cbranch_scc1 L_ctrl_c")
    A(f"s_cmp_ge_u32 {sG}, 5"); A("s_cbranch_scc1 L_ctrl_c")
    A(f"s_lshl_b32 s6, {sG}, 13"); A(f"s_add_u32 s6, s6, {WS_MODP + 10*8192}")
    for b in range(1, 8): A(f"s_add_u32 s{6+b}, s6, {(b//2)*5*8192 + (b%2)*4096}")
    spre("s6", [(n // 8)*5*8192 + (n % 8)*1024 for n in range(16)])
    spre("s6", [(n // 8)*5*8192 + (n % 8)*1024 for n in range(16, 32)])
    poll([(vLANE16, f"s{6+n//4}", (n % 4)*1024, None) for n in range(32)], RING)
    for b in range(4): sum2([RING+32*b+4*n for n in range(8)])
    for b in range(3): A(f"v_cvt_pk_bf16_f32 v{vACC+b}, v{RING+32*b}, v{RING+32*b+1}")
    rbf2(RING+96, RING+97)
    A(f"s_lshl_b32 s6, {sG}, 10"); A(f"s_add_u32 s6, s6, {WS_MR}"); A("s_add_u32 s7, s6, 5120")
    publish(vACC, vLANE16, "s6"); publish(RING+96, vLANE16, "s7")
    A("s_branch L_ctrl_w")
    A.label("L_ctrl_c")
    A(f"s_mov_b32 m0, {L_W}")
    A(f"s_cmp_lt_u32 {sK}, 10"); A("s_cbranch_scc1 L_dma_wo")
    A(f"s_cmp_ge_u32 {sF}, 54"); A("s_cbranch_scc1 L_ctrl_w")
    A(f"v_lshrrev_b32 v{vT}, 2, v{vLANE}"); A(f"v_mul_u32_u24 v{vT}, 3456, v{vT}")
    A(f"v_and_b32 v{vT+1}, 3, v{vLANE}"); A(f"v_lshl_add_u32 v{vT}, v{vT+1}, 4, v{vT}")
    for (lo, hi) in (("s16", "s17"), ("s18", "s19")):
        srd(SA, lo, hi, 640*3456)
        A(f"s_lshl_b32 s68, {sF}, 6")
        dma_loop(vT, "s68", 16*3456, 40)
    srd(SA, "s20", "s21", 1728*1280)
    A(f"s_mul_i32 s68, {sF}, {32*1280}")
    dma_loop(vLANE16, "s68", 1024, 40)
    A("s_branch L_ctrl_w")
    A.label("L_dma_wo")
    srd(SA, "s12", "s13", 4096*1280)
    A(f"v_lshrrev_b32 v{vT}, 3, v{vLANE}"); A(f"v_mul_u32_u24 v{vT}, 1280, v{vT}")
    A(f"v_and_b32 v{vT+1}, 7, v{vLANE}"); A(f"v_lshl_add_u32 v{vT}, v{vT+1}, 4, v{vT}")
    for a in range(4):
        A(f"s_add_u32 s68, {sG}, {8*a}"); A(f"s_mul_i32 s68, s68, {128*1280}"); A(f"s_lshl_b32 s69, {sK}, 7"); A("s_add_u32 s68, s68, s69")
        dma_loop(vT, "s68", 8*1280, 16)
    A.label("L_ctrl_w")
    A(f"s_lshl_b32 s8, {sHD}, 3"); A(f"s_add_u32 s8, s8, {sS}"); A("s_lshl_b32 s8, s8, 10"); A(f"s_add_u32 s8, s8, {WS_OP}")
    A("s_waitcnt vmcnt(0) lgkmcnt(0)")
    stamp(5)
    A("s_barrier")
    stamp(6)
    for w in range(7): A(f"ds_read_b128 {v4(RING+4*w)}, v{vLANE16} offset:{L_PART+1024*w}")
    m = [RING+4*w+2 for w in range(7)]
    t = RING + 28
    A("s_waitcnt lgkmcnt(4)")
    A(f"v_max3_f32 v{t}, v{m[0]}, v{m[1]}, v{m[2]}")
    A("s_waitcnt lgkmcnt(2)")
    A(f"v_max3_f32 v{t}, v{t}, v{m[3]}, v{m[4]}")
    A("s_waitcnt lgkmcnt(0)")
    A(f"v_max3_f32 v{t}, v{t}, v{m[5]}, v{m[6]}")
    for w in range(7): A(f"v_sub_f32 v{m[w]}, v{m[w]}, v{t}")
    for w in range(7): A(f"v_exp_f32 v{m[w]}, v{m[w]}")
    O = RING + 32
    for r in (3, 0, 1): A(f"v_mul_f32 v{O+r}, v{m[0]}, v{RING+r}")
    for w in range(1, 7): A(f"v_fmac_f32 v{O+3}, v{m[w]}, v{RING+4*w+3}")
    A(f"v_rcp_f32 v{t+1}, v{O+3}"); A(f"v_log_f32 v{O+2}, v{O+3}")
    for w in range(1, 7):
        for r in range(2): A(f"v_fmac_f32 v{O+r}, v{m[w]}, v{RING+4*w+r}")
    A(f"v_add_f32 v{O+2}, v{O+2}, v{t}")
    A(f"v_mul_f32 v{O}, v{O}, v{t+1}"); A(f"v_mul_f32 v{O+1}, v{O+1}, v{t+1}")
    publish(O, vLANE16, "s8")
    stamp(13)
    A("s_branch L_tail")
    A.label("L_end")
    if diag_wg is not None:
        A(f"s_cmp_lg_u32 s2, {diag_wg[0]}"); A("s_cbranch_scc1 L_end2"); A(f"s_cmp_lg_u32 s3, {diag_wg[1]}"); A("s_cbranch_scc1 L_end2")
        A.label("L_hold2")
        A("s_memrealtime s[94:95]"); A("s_waitcnt lgkmcnt(0)"); A("s_sub_u32 s94, s94, s96"); A(f"s_cmp_lt_u32 s94, {diag_hold}"); A("s_cbranch_scc1 L_hold2")
        A.label("L_end2")
    A("s_endpgm")
    A('.section .rodata,"a"'); A(".p2align 6"); A(f".amdhsa_kernel {KN}")
    A(".amdhsa_next_free_vgpr 256"); A(".amdhsa_next_free_sgpr 100"); A(".amdhsa_accum_offset 256")
    A(".amdhsa_group_segment_fixed_size 0"); A(".amdhsa_kernarg_size 112"); A(".amdhsa_user_sgpr_count 2")
    A(".amdhsa_user_sgpr_kernarg_segment_ptr 1"); A(".amdhsa_system_sgpr_workgroup_id_x 1")
    A(".amdhsa_float_denorm_mode_32 3")
    A(".end_amdhsa_kernel")
    return A.finalize()

def check_inter(w, inter):
    import numpy as np
    def cmp(name, got, exp):
        err = np.abs(got - exp).max(); rel = np.linalg.norm(got - exp) / np.linalg.norm(exp)
        print("   inter %-5s maxabs %.4e (scale %.3e) relL2 %.3e nan=%d" % (name, err, np.abs(exp).max(), rel, int(np.isnan(got).sum())), got[:4], exp[:4])
    def bf(x):
        u = x.astype(np.float32).view(np.uint32); u = (u + 0x7fff + ((u >> 16) & 1)) & 0xffff0000
        return u.view(np.float32)
    gr = lambda off, n: w[off // 4: off // 4 + n*4].reshape(n, 4)
    md = gr(WS_MODP, 30*8*64)[:, :2].reshape(30, 8, 128).sum(1).reshape(-1)
    cmp("mod", md, inter["mod"]); print("      mod bf16 mismatches", int((bf(md) != inter["mod"]).sum()))
    q = gr(WS_QP, 32*5*64)[:, :2].reshape(32, 5, 128).sum(1).reshape(-1)
    cmp("q", q, inter["q"]); print("      q bf16 mismatches", int((bf(q) != inter["q"]).sum()))
    g = gr(WS_OP, 32*8*64).astype(np.float64); op = g[:, :2].reshape(32, 8, 128); lam = g[:, 2].reshape(32, 8, 64)[:, :, 0]
    wt = np.exp2(lam - lam.max(1, keepdims=True))
    cmp("o", ((op * wt[:, :, None]).sum(1) / wt.sum(1)[:, None]).reshape(-1), inter["o"])
    cmp("at", gr(WS_YP, 8*320)[:, :2].reshape(8, 640).sum(0), inter["at"])
    cmp("dn", gr(WS_DP, 54*320)[:, :2].reshape(54, 640).sum(0), inter["dn"])

if __name__ == "__main__":
    out = sys.argv[1]
    kw = {}
    for a in sys.argv[2:]:
        k, v = a.split("=")
        kw[k] = eval(v)
    open(out, "w").write(gen(**kw))
```

```python
import sys, struct
from asmdsl import Asm
KN = "adaLN_cond__gqa_block_cached__swiglu_ffn__decode_kernel"

def f2u(x): return struct.unpack("<I", struct.pack("<f", x))[0]
def fh(x): return hex(f2u(x))
LOG2E = 1.4426950408889634
SCALE = 128 ** -0.5

WS_MODP = 0x1000
WS_QP   = WS_MODP + 30*8*1024
WS_OP   = WS_QP + 32*5*1024
WS_YP   = WS_OP + 32*8*1024
WS_DP   = WS_YP + 8*2560
WS_MR   = WS_DP + 54*5120
WS_CNT  = WS_MR + 10*1024
WS_END  = WS_CNT + 32*256
WS_STAMP = 0x10000000
L_TICKET = 0
L_FLAG = 4
L_RANK = 8
L_Q = 0x100
L_ST = 0x200
L_PART = 0x400
L_ACC = 0x2000
L_X2 = 0x3000
L_W = 0x3C00
L_END = L_W + 120*1024
DPPF = "row_mask:0xf bank_mask:0xf"

def tile_bounds(extra):
    res = []
    for a in range(4):
        e = [extra[a + 4*s] for s in range(8)]
        tgt = (1024 + sum(e)) / 8.0
        b = [0]; acc = 0.0
        for s in range(8):
            acc += tgt - e[s]; b.append(int(round(acc)))
        assert b[8] == 1024
        res.append(b)
    return res

def gen(stamps=False, NE=5, pol="nt", TH=0, e_wq=8, e_mod=2, e_wo=0, e_ffn=2, DMAD=8, DA=1, DB=1, DC=1, touch=False, dry=False, spoll=True, NS=112, ROT=160, NWS=6, diag_hold=0, diag_wg=None, late_wo=True, late_gu=True, late_dn=True, Q_wo=1024, Q_ffn=1024, wpol="", gpol="", pre_bar=False, pf=True, pfpol="", NR=4, pf2=True, SL=0, CSL=0, fin=1, TH0=0):
    A = Asm()
    uid = [0]
    def U(p):
        uid[0] += 1; return f"L_{p}_{uid[0]}"
    sWAVE, sHD, sS, sTAG, sK, sG = "s3", "s32", "s33", "s34", "s35", "s36"
    SK, SV, SWS, SA, SB = "s[40:43]", "s[44:47]", "s[48:51]", "s[52:55]", "s[56:59]"
    sNT, sL2E, sSC, sTO, sF, sTK = "s60", "s62", "s63", "s64", "s65", "s66"
    sROT, sST, sCNT, sQ = "s37", "s61", "s38", "s39"
    def stamp(k):
        if stamps: A(f"s_memrealtime s[{70+2*k}:{71+2*k}]")
    def fstamp(k):
        if stamps == 2: A(f"s_memrealtime s[{70+2*k}:{71+2*k}]")
    def stamp_dump(slots, xcc=False, final=True):
        if not stamps: return
        A("s_waitcnt lgkmcnt(0)")
        A("s_mov_b64 exec, 1")
        A(f"s_lshl_b32 s69, s2, 7"); A(f"s_add_u32 s69, s69, {WS_STAMP}")
        A("s_mov_b32 s50, 0x20000000")
        for k in slots:
            A(f"v_mov_b32 v{vT+10}, s{70+2*k}"); A(f"v_mov_b32 v{vT+11}, s{71+2*k}")
            A(f"buffer_store_dwordx2 v[{vT+10}:{vT+11}], v{vZERO}, {SWS}, s69 offen offset:{k*8}")
            A("s_nop 1")
        if xcc:
            A("s_getreg_b32 s68, hwreg(HW_REG_XCC_ID)")
            A(f"v_mov_b32 v{vT+10}, s68"); A(f"v_mov_b32 v{vT+11}, 0")
            A(f"buffer_store_dwordx2 v[{vT+10}:{vT+11}], v{vZERO}, {SWS}, s69 offen offset:120")
        if not final: A("s_mov_b64 exec, -1")
    def srd(S, lo, hi, n):
        b = int(S[2:S.index(":")])
        A(f"s_mov_b32 s{b}, {lo}"); A(f"s_mov_b32 s{b+1}, {hi}"); A(f"s_mov_b32 s{b+2}, {n}"); A(f"s_mov_b32 s{b+3}, 0x20000")
    def v4(b): return f"v[{b}:{b+3}]"
    def v2(b): return f"v[{b}:{b+1}]"
    def dpp_red(op, vs, ctls):
        for ctl in ctls:
            for v in vs: A(f"{op}_dpp v{v}, v{v}, v{v} {ctl}")
    QUAD = [f"quad_perm:[1,0,3,2] {DPPF}", f"quad_perm:[2,3,0,1] {DPPF}"]
    BANK = [f"row_ror:4 {DPPF}", f"row_ror:8 {DPPF}"]
    BCAST = ["row_bcast:15 row_mask:0xa bank_mask:0xf", "row_bcast:31 row_mask:0xc bank_mask:0xf"]
    def xrow(op, v, t, which):
        A(f"v_mov_b32 v{t}, v{v}"); A(f"v_permlane{which}_swap_b32 v{v}, v{t}"); A(f"{op} v{v}, v{v}, v{t}")
    def row_red(op, v, t):
        dpp_red(op, [v], BANK); xrow(op, v, t, 16); xrow(op, v, t, 32)
    def wave_red(op, v, t):
        dpp_red(op, [v], QUAD); row_red(op, v, t)
    def rbf(d, s):
        A(f"v_cvt_pk_bf16_f32 v{d}, v{s}, v{s}"); A(f"v_and_b32 v{d}, 0xffff0000, v{d}")
    def rbf2(a, b):
        A(f"v_cvt_pk_bf16_f32 v{b}, v{a}, v{b}"); A(f"v_lshlrev_b32 v{a}, 16, v{b}"); A(f"v_and_b32 v{b}, 0xffff0000, v{b}")
    vLANE16, vZERO, vONE, vTKT, vADDR, vM, vML, vL = 1, 2, 3, 4, 5, 6, 7, 8
    vLANE, vNAT, vBAD = 9, 10, 11
    vQ, vM2, vACC = 12, 16, 20
    vR, vA_, vB_, vC_, vE_ = 24, 28, 29, 30, 31
    vAOP = 32
    vT = 48
    vM1 = 60
    RING = 64
    WT = RING + 48
    WD = WT + 80
    WD2 = WD + 32
    TMP = RING + 32
    ACC2 = RING + 40
    PF = RING + 44
    def publish(b, voff, soff):
        A(f"v_mov_b32 v{b+3}, {sTAG}")
        A(f"buffer_store_dwordx4 {v4(b)}, v{voff}, {SWS}, {soff} offen sc1")
    def poll(loads, base, D=1, consume=None, ps=None, tags=(3,)):
        n = len(loads)
        L = U("poll"); Lj = U("pjoin"); Ld = [U("pdone") for _ in range(D)]
        def issue(i):
            for idx, (vo, so, imm, em) in enumerate(loads):
                if em is not None: A(f"s_mov_b64 exec, {em}")
                A(f"buffer_load_dwordx4 {v4(base + 4*(i*n + idx))}, v{vo}, {SWS}, {so} offen offset:{imm} sc1")
                if em is not None: A("s_mov_b64 exec, -1")
        A(f"s_mov_b32 {sTO}, 0x40000")
        for i in range(D - 1):
            issue(i)
            if SL: A(f"s_sleep {SL}")
        A.label(L)
        if ps is not None and stamps == 3: stamp(ps)
        for i in range(D):
            issue((i + D - 1) % D)
            if D > 1 and SL: A(f"s_sleep {SL}")
            first = True
            for idx in range(n):
                d = base + 4*(i*n + idx)
                A(f"s_waitcnt vmcnt({(D-1)*n + n-1-idx})")
                for tp in tags:
                    if first: A(f"v_xor_b32 v{vBAD}, {sTAG}, v{d+tp}"); first = False
                    else: A(f"v_bitop3_b32 v{vBAD}, v{vBAD}, v{d+tp}, {sTAG} bitop3:0xf6")
            A(f"v_cmp_ne_u32 vcc, 0, v{vBAD}")
            A(f"s_cbranch_vccz {Ld[i]}")
        A(f"s_sub_u32 {sTO}, {sTO}, 1")
        A(f"s_cmp_lg_u32 {sTO}, 0")
        A(f"s_cbranch_scc1 {L}")
        for i in range(D):
            A.label(Ld[i])
            if consume: consume(base + 4*i*n)
            if i < D - 1: A(f"s_branch {Lj}")
        A.label(Lj)
    def spre(sbase, offs):
        if not spoll: return
        R = [40, 41, 42, 43, 44, 45, 46, 47, 14, 15, 28, 29, 60, 61, 66, 67]
        L = U("spoll"); Ld = U("spd")
        A(f"s_add_u32 s68, s30, {sbase}"); A("s_addc_u32 s69, s31, 0")
        A(f"s_mov_b32 {sTO}, 0x40000")
        A.label(L)
        for i, o in enumerate(offs): A(f"s_load_dword s{R[i]}, s[68:69], {o + 1020} glc")
        A(f"s_sub_u32 {sTO}, {sTO}, 1"); A(f"s_cmp_eq_u32 {sTO}, 0"); A(f"s_cbranch_scc1 {Ld}")
        A("s_waitcnt lgkmcnt(0)")
        for i, o in enumerate(offs):
            A(f"s_cmp_lg_u32 s{R[i]}, {sTAG}"); A(f"s_cbranch_scc1 {L}")
        A.label(Ld)
        A("s_waitcnt lgkmcnt(0)")
    def sum2(bases, dst=None):
        bs = list(bases)
        while len(bs) > 1:
            nb = []
            for i in range(0, len(bs) - 1, 2):
                d = dst if (dst is not None and len(bs) == 2) else bs[i]
                A(f"v_pk_add_f32 {v2(d)}, {v2(bs[i])}, {v2(bs[i+1])}"); nb.append(d)
            if len(bs) % 2: nb.append(bs[-1])
            bs = nb
    def gemv(acc, mask, items, acc2=None, w2=None):
        def mf(n):
            (x0, c0, w0, wc0) = items[n]
            if wc0 is not None: A(f"s_waitcnt vmcnt({wc0})")
            A(f"v_mfma_f32_16x16x32_bf16 {v4(acc)}, {v4(vAOP + 4*(n % 4))}, {v4(w0)}, {'0' if n == 0 else v4(acc)}")
            if acc2 is not None:
                A(f"v_mfma_f32_16x16x32_bf16 {v4(acc2)}, {v4(vAOP + 4*(n % 4))}, {v4(w2+4*n)}, {'0' if n == 0 else v4(acc2)}")
        for n, (x, ctl, w, wc) in enumerate(items):
            a = vAOP + 4 * (n % 4)
            for t in range(4): A(f"v_and_b32_dpp v{a+t}, v{x}, v{mask+t} {ctl} {DPPF}")
            if n >= 1: mf(n-1)
        mf(len(items) - 1)
    def ysplit(xs, y):
        for i, x in enumerate(xs): A(f"v_mov_b32 v{y+2*i}, v{x}"); A(f"v_mov_b32 v{y+2*i+1}, v{x}")
        for i, x in enumerate(xs):
            A(f"v_mov_b32_dpp v{y+2*i}, v{x} row_shr:4 row_mask:0xf bank_mask:0xa")
            A(f"v_mov_b32_dpp v{y+2*i+1}, v{x} row_shl:4 row_mask:0xf bank_mask:0x5")
    qp = lambda k: f"quad_perm:[{k},{k},{k},{k}]"
    def silu(x, t):
        A(f"v_mul_f32 v{t}, {fh(-LOG2E)}, v{x}"); A(f"v_exp_f32 v{t}, v{t}")
        A(f"v_add_f32 v{t}, 1.0, v{t}"); A(f"v_rcp_f32 v{t}, v{t}"); A(f"v_mul_f32 v{x}, v{x}, v{t}")
    def acc_addr(d):
        A(f"v_and_b32 v{d}, 7, v{vLANE}"); A(f"v_lshlrev_b32 v{d}, 5, v{d}")
        A(f"v_and_b32 v{vT+11}, 16, v{vLANE}"); A(f"v_add_u32 v{d}, v{d}, v{vT+11}")
        A(f"v_lshrrev_b32 v{vT+11}, 5, v{vLANE}"); A(f"v_lshl_add_u32 v{d}, v{vT+11}, 8, v{d}")
        A(f"s_lshl_b32 s68, {sWAVE}, 9"); A(f"v_add_u32 v{d}, s68, v{d}")
    def acc_write(d):
        A("s_mov_b32 exec_lo, 0x00ff00ff"); A("s_mov_b32 exec_hi, 0xff00ff00")
        A(f"ds_write_b128 v{d}, {v4(vACC)} offset:{L_ACC}")
        A("s_mov_b64 exec, -1")
    def mod_loads(scb, srb):
        wb = RING
        srd(SA, "s24", "s25", 640*7680); srd(SB, "s22", "s23", 1280)
        A(f"v_lshrrev_b32 v{vT}, 4, v{vLANE}"); A(f"v_mul_u32_u24 v{vT}, 20, v{vT}")
        A(f"v_and_b32 v{vT+1}, 15, v{vLANE}"); A(f"v_add_u32 v{vT+2}, v{vT}, v{vT+1}"); A(f"v_lshlrev_b32 v{vT+2}, 1, v{vT+2}")
        A(f"v_and_b32 v{vT+3}, 3, v{vLANE}"); A(f"v_add_u32 v{vT+3}, v{vT}, v{vT+3}"); A(f"v_lshlrev_b32 v{vT+3}, 1, v{vT+3}")
        A(f"s_mul_i32 s69, {srb}, 160")
        A(f"buffer_load_ushort v{vR}, v{vT+2}, {SB}, s69 offen")
        A(f"buffer_load_ushort v{vR+1}, v{vT+3}, {SB}, s69 offen offset:32")
        A(f"v_mul_u32_u24 v{vT}, 7680, v{vT}"); A(f"v_lshl_add_u32 v{vT}, v{vT+1}, 4, v{vT}")
        A(f"s_mul_i32 s69, {srb}, {80*7680}"); A(f"s_lshl_b32 s68, {scb}, 8"); A("s_add_u32 s69, s69, s68")
        for t in range(20):
            A(f"s_add_u32 s68, s69, {t*7680}")
            A(f"buffer_load_dwordx4 {v4(wb+4*t)}, v{vT}, {SA}, s68 offen {pol}")
    def mod_compute(scb, srb):
        wb = RING
        A("s_waitcnt vmcnt(20)")
        for k in (0, 1):
            A(f"v_lshlrev_b32 v{vR+k}, 16, v{vR+k}"); silu(vR+k, vR+2); A(f"v_cvt_pk_bf16_f32 v{vR+k}, v{vR+k}, v{vR+k}")
        gemv(vACC, vM2, [(vR if t < 16 else vR+1, f"row_newbcast:{t % 16}", wb+4*t, 19-t) for t in range(20)])
        A(f"s_lshl_b32 s68, {scb}, 3"); A(f"s_add_u32 s68, s68, {srb}"); A("s_lshl_b32 s68, s68, 10"); A(f"s_add_u32 s68, s68, {WS_MODP}")
        publish(vACC, vNAT, "s68")
    def common_setup():
        A(f"s_load_dword {sTAG}, s[30:31], 0")
        srd(SWS, "s30", "s31", WS_END)
        A(f"v_and_b32 v{vT}, 1, v{vLANE}"); A(f"v_lshlrev_b32 v{vT}, 4, v{vT}"); A(f"v_mov_b32 v{vT+1}, 0xffff"); A(f"v_lshlrev_b32 v{vT}, v{vT}, v{vT+1}")
        A(f"v_bfe_u32 v{vT+1}, v{vLANE}, 1, 2")
        A(f"v_bfe_u32 v{vT+2}, v{vLANE}, 1, 3")
        for t in range(4):
            A(f"v_cmp_eq_u32 vcc, {t}, v{vT+1}"); A(f"v_cndmask_b32 v{vM1+t}, 0, v{vT}, vcc")
            A(f"v_cmp_eq_u32 vcc, {2*t}, v{vT+2}"); A(f"v_cndmask_b32 v{vM2+t}, 0, v{vT}, vcc")
        A(f"v_and_b32 v{vT}, 15, v{vLANE}"); A(f"v_lshlrev_b32 v{vT}, 6, v{vT}"); A(f"v_and_b32 v{vT+1}, 48, v{vLANE}"); A(f"v_add_u32 v{vNAT}, v{vT}, v{vT+1}")
    def tag_finish():
        A("s_waitcnt lgkmcnt(0)")
        A(f"s_add_u32 {sTAG}, {sTAG}, 0x01010101")
    def late_loads(lbl):
        Lw, Ld = U("lwo"), U("ldone")
        A(f"s_cmp_lt_u32 {sK}, 10"); A(f"s_cbranch_scc1 {Lw}")
        A(f"s_cmp_ge_u32 {sF}, 54"); A(f"s_cbranch_scc1 {Ld}")
        A(f"s_cmp_gt_u32 {sWAVE}, 3"); A(f"s_cbranch_scc1 {Ld}")
        if late_gu:
            A(f"v_and_b32 v{vT+2}, 4, v{vLANE}"); A(f"v_cmp_eq_u32 vcc, 0, v{vT+2}")
            A(f"v_mov_b32 v{vT+2}, s18"); A(f"v_mov_b32 v{vT+3}, s16"); A(f"v_cndmask_b32 v{vT+6}, v{vT+2}, v{vT+3}, vcc")
            A(f"v_mov_b32 v{vT+2}, s19"); A(f"v_mov_b32 v{vT+3}, s17"); A(f"v_cndmask_b32 v{vT+7}, v{vT+2}, v{vT+3}, vcc")
            A(f"s_mul_i32 s69, {sWAVE}, {160*3456}"); A(f"s_lshl_b32 s68, {sF}, 6"); A("s_add_u32 s69, s69, s68")
            A(f"v_and_b32 v{vT+4}, 3, v{vLANE}"); A(f"v_lshl_add_u32 v{vT+4}, v{vT+4}, 4, s69")
            A(f"v_lshrrev_b32 v{vT+5}, 3, v{vLANE}")
            for (mul, add, rows) in ((16*3456, 0, [(k, y) for k in range(4) for y in range(4)]), (4*3456, 128*3456, [(k, 4) for k in range(4)])):
                A(f"v_mul_u32_u24 v{vT+1}, {mul}, v{vT+5}"); A(f"v_add_u32 v{vT+1}, v{vT+1}, v{vT+4}")
                if add: A(f"v_add_u32 v{vT+1}, {add}, v{vT+1}")
                A(f"v_add_co_u32 v{vT+2}, vcc, v{vT+6}, v{vT+1}"); A(f"v_addc_co_u32 v{vT+3}, vcc, 0, v{vT+7}, vcc")
                for i, (k, y) in enumerate(rows):
                    A(f"global_load_dwordx4 {v4(WT+4*(y*4+k))}, {v2(vT+2)}, off offset:{(i%2)*3456} {gpol}")
                    if i % 2 == 1 and i < len(rows) - 1:
                        A(f"v_add_co_u32 v{vT+2}, vcc, {2*3456}, v{vT+2}"); A(f"v_addc_co_u32 v{vT+3}, vcc, 0, v{vT+3}, vcc")
        if late_dn:
            srd(SA, "s20", "s21", 1728*1280)
            A(f"v_lshrrev_b32 v{vT+1}, 4, v{vLANE}"); A(f"v_mul_u32_u24 v{vT+1}, {8*1280}, v{vT+1}")
            A(f"v_and_b32 v{vT+2}, 15, v{vLANE}"); A(f"v_lshl_add_u32 v{vT+1}, v{vT+2}, 4, v{vT+1}")
            A(f"s_mul_i32 s69, {sF}, {32*1280}"); A(f"s_lshl_b32 s68, {sWAVE}, 8"); A("s_add_u32 s69, s69, s68")
            for t in range(8):
                if t % 2 == 0: A(f"s_add_u32 s68, s69, {t*1280}")
                A(f"buffer_load_dwordx4 {v4(WD+4*t)}, v{vT+1}, {SA}, s68 offen offset:{(t%2)*1280} {wpol}")
            A(f"s_cmp_lg_u32 {sWAVE}, 1"); A(f"s_cbranch_scc1 {Ld}")
            for t in range(8):
                if t % 2 == 0: A(f"s_add_u32 s68, s69, {t*1280}")
                A(f"buffer_load_dwordx4 {v4(WD2+4*t)}, v{vT+1}, {SA}, s68 offen offset:{(t%2)*1280 + 768} {wpol}")
        A(f"s_branch {Ld}")
        A.label(Lw)
        if late_wo:
            srd(SA, "s12", "s13", 4096*1280)
            A(f"v_bfe_u32 v{vT+1}, v{vLANE}, 4, 1"); A(f"v_lshlrev_b32 v{vT+1}, 5, v{vT+1}")
            A(f"v_lshrrev_b32 v{vT+2}, 5, v{vLANE}"); A(f"v_add_u32 v{vT+1}, v{vT+1}, v{vT+2}")
            A(f"v_bfe_u32 v{vT+2}, v{vLANE}, 3, 1"); A(f"v_lshl_add_u32 v{vT+1}, v{vT+2}, 4, v{vT+1}")
            A(f"v_mul_u32_u24 v{vT+1}, 1280, v{vT+1}")
            A(f"v_and_b32 v{vT+2}, 7, v{vLANE}"); A(f"v_lshl_add_u32 v{vT+1}, v{vT+2}, 4, v{vT+1}")
            A(f"s_lshr_b32 s68, {sWAVE}, 1"); A("s_lshl_b32 s68, s68, 3"); A(f"s_add_u32 s68, s68, {sG}"); A("s_lshl_b32 s68, s68, 1")
            A(f"s_and_b32 s69, {sWAVE}, 1"); A("s_add_u32 s68, s68, s69"); A(f"s_mul_i32 s69, s68, {64*1280}")
            A(f"s_lshl_b32 s68, {sK}, 7"); A("s_add_u32 s69, s69, s68")
            for n in range(8):
                if n % 2 == 0: A(f"s_add_u32 s68, s69, {2*n*1280}")
                A(f"buffer_load_dwordx4 {v4(WT+4*n)}, v{vT+1}, {SA}, s68 offen offset:{(n%2)*2560} {wpol}")
        A.label(Ld)
    def dma_loop(voff, soff, step, count, pol):
        L = U("dma")
        A(f"s_mov_b32 s69, {count}")
        A.label(L)
        A(f"buffer_load_dwordx4 v{voff}, {SA}, {soff} offen {pol} lds")
        A(f"s_add_u32 {soff}, {soff}, {step}"); A("s_add_u32 m0, m0, 0x400")
        A(f"s_waitcnt vmcnt({DMAD-1})")
        A("s_sub_u32 s69, s69, 1"); A("s_cmp_lg_u32 s69, 0"); A(f"s_cbranch_scc1 {L}")

    A(f"; @launch grid=(256,1,1) block=(512,1,1) lds={L_W if (late_wo and late_gu and late_dn) else L_END}")
    A('.amdgcn_target "amdgcn-amd-amdhsa--gfx950"')
    A(".text"); A(f".globl {KN}"); A(".p2align 8"); A(f".type {KN},@function"); A.label(KN)
    stamp(0)
    if diag_hold: A("s_memrealtime s[96:97]")
    A("s_cmp_ge_u32 s2, 256"); A("s_cbranch_scc1 L_end")
    A("s_load_dwordx16 s[4:19], s[0:1], 0")
    A("s_load_dwordx8 s[20:27], s[0:1], 64")
    A("s_load_dwordx4 s[28:31], s[0:1], 96")
    A("v_lshrrev_b32 v1, 6, v0"); A(f"v_and_b32 v{vLANE}, 63, v0")
    A(f"v_readfirstlane_b32 {sWAVE}, v1")
    A(f"v_lshlrev_b32 v{vLANE16}, 4, v{vLANE}")
    A(f"s_lshr_b32 {sHD}, s2, 3"); A(f"s_and_b32 {sG}, s2, 7"); A(f"s_lshl_b32 {sK}, {sG}, 2"); A(f"s_add_u32 {sK}, {sK}, {sHD}"); A(f"s_and_b32 {sK}, {sK}, 31"); A(f"s_lshr_b32 {sS}, {sK}, 2")
    A(f"s_mov_b32 {sL2E}, {fh(LOG2E)}"); A(f"s_mov_b32 {sSC}, {fh(SCALE)}")
    A(f"s_sub_u32 s68, {sK}, 10"); A(f"s_mul_i32 {sF}, {sG}, 7"); A(f"s_add_u32 {sF}, {sF}, s68")
    A("s_cmp_lt_u32 s68, 7"); A(f"s_cselect_b32 {sF}, {sF}, 63")
    A(f"v_mov_b32 v{vZERO}, 0"); A(f"v_mov_b32 v{vONE}, 1")
    A(f"s_cmp_eq_u32 {sWAVE}, 0"); A("s_cbranch_scc1 L_ctrl0")
    extra = [(e_wq if (k < 5 or k >= 17) else e_mod if k < 15 else 0.0) + (e_wo if k < 10 else e_ffn if k < 17 else 0.0) for k in range(32)]
    nst = [int(NS - e) for e in extra]
    assert min(nst) >= 7*(1+2*NE)
    B = []
    for a in range(4):
        b = [0]
        for sp in range(8): b.append(b[-1] + nst[a + 4*sp])
        B.append(b)
    DYN0 = [b[8] for b in B]
    def pack(b): return sum(((NS*(sp+1) - b[sp+1]) & 0xff) << (8*sp) for sp in range(8))
    for b in B: assert NS*8 - b[8] < 256
    P = [pack(b) for b in B]
    A(f"s_mov_b32 s38, {hex(P[0] & 0xffffffff)}"); A(f"s_mov_b32 s39, {hex(P[0] >> 32)}")
    A(f"s_and_b32 s68, {sK}, 3")
    for a in range(1, 4):
        if P[a] != P[0]:
            A(f"s_cmp_eq_u32 s68, {a}"); A(f"s_cselect_b32 s38, {hex(P[a] & 0xffffffff)}, s38"); A(f"s_cselect_b32 s39, {hex(P[a] >> 32)}, s39")
    A(f"s_lshl_b32 s68, {sS}, 3")
    A("s_lshr_b64 s[66:67], s[38:39], s68"); A("s_and_b32 s66, s66, 0xff")
    A("s_lshl_b64 s[38:39], s[38:39], 8")
    A("s_lshr_b64 s[38:39], s[38:39], s68"); A("s_and_b32 s38, s38, 0xff")
    A(f"s_sub_u32 {sNT}, s38, s66"); A(f"s_add_u32 {sNT}, {sNT}, {NS}")
    A(f"s_mul_i32 {sROT}, {sHD}, {ROT}")
    A(f"s_mul_i32 {sST}, {sS}, {NS}"); A(f"s_sub_u32 {sST}, {sST}, s38"); A(f"s_add_u32 {sST}, {sST}, {sROT}")
    A(f"s_lshl_b32 s68, {sHD}, 22")
    def tile_addr(sreg, add):
        A(f"s_add_u32 s69, {sreg}, {add}"); A("s_and_b32 s69, s69, 1023"); A("s_lshl_b32 s69, s69, 12")
        A(f"v_add_u32 v{vADDR}, s69, v{vLANE16}")
    A(f"s_add_u32 s67, {sST}, {sWAVE}"); A("s_sub_u32 s67, s67, 1")
    tile_addr("s67", 0)
    A(f"s_lshl_b32 {sCNT}, {sHD}, 8"); A(f"s_add_u32 {sCNT}, {sCNT}, {WS_CNT}")
    A(f"s_mov_b32 {sQ}, 1024"); A(f"s_cmp_lt_u32 {sF}, 54"); A(f"s_cselect_b32 {sQ}, {Q_ffn}, {sQ}"); A(f"s_cmp_lt_u32 {sK}, 10"); A(f"s_cselect_b32 {sQ}, {Q_wo}, {sQ}")
    A("s_waitcnt lgkmcnt(0)")
    A("s_add_u32 s40, s6, s68"); A("s_addc_u32 s41, s7, 0"); A("s_mov_b32 s42, 0x400000"); A("s_mov_b32 s43, 0x20000")
    A("s_add_u32 s44, s8, s68"); A("s_addc_u32 s45, s9, 0"); A("s_mov_b32 s46, 0x400000"); A("s_mov_b32 s47, 0x20000")
    def loadK(slot):
        for u in range(4): A(f"buffer_load_dwordx4 {v4(RING+32*slot+4*u)}, v{vADDR}, {SK}, 0 offen offset:{u*1024} {pol}")
    def loadV(slot):
        for u in range(4): A(f"buffer_load_dwordx4 {v4(RING+32*slot+16+4*u)}, v{vADDR}, {SV}, 0 offen offset:{u*1024} {pol}")
    loadK(1)
    common_setup(); tag_finish()
    A(f"v_mov_b32 v{vM}, {fh(-1e30)}"); A(f"v_mov_b32 v{vML}, {fh(-1e30)}"); A(f"v_mov_b32 v{vL}, 0")
    for r in range(4): A(f"v_mov_b32 v{vACC+r}, 0")
    A("s_barrier")
    A(f"s_waitcnt vmcnt({TH0})")
    if stamps == 4: stamp(1)
    loadV(1)
    for i, k in enumerate(list(range(2, 1 + NE)) + [0]):
        tile_addr("s67", 7*(i+1))
        A(f"s_waitcnt vmcnt({TH})"); loadK(k)
        if k: A(f"s_waitcnt vmcnt({TH})"); loadV(k)
    if stamps == 4: stamp(2)
    if stamps and stamps < 3:
        A(f"s_cmp_lg_u32 {sWAVE}, 1"); A("s_cbranch_scc1 L_ns14")
        stamp(14); stamp_dump([14], final=False)
        A.label("L_ns14")
    A(f"v_and_b32 v{vT}, 15, v{vLANE}"); A(f"v_lshlrev_b32 v{vT}, 4, v{vT}")
    A(f"s_mov_b32 {sTO}, 0x400000")
    A.label("L_qwait")
    A(f"ds_read_b32 v{vT+1}, v{vZERO} offset:{L_FLAG}")
    A(f"s_sub_u32 {sTO}, {sTO}, 1"); A(f"s_cmp_eq_u32 {sTO}, 0"); A("s_cbranch_scc1 L_qgo")
    A("s_waitcnt lgkmcnt(0)")
    A(f"v_cmp_eq_u32 vcc, 0, v{vT+1}")
    A("s_cbranch_vccnz L_qwait")
    A.label("L_qgo")
    A(f"ds_read_b128 {v4(vQ)}, v{vT} offset:{L_Q}")
    def req_ticket():
        A("s_mov_b64 exec, 1"); A(f"ds_add_rtn_u32 v{vTKT}, v{vZERO}, v{vONE} offset:{L_TICKET}"); A("s_mov_b64 exec, -1")
    rescue = []
    def qk(slot):
        kb = RING + 32*slot
        for t in range(4):
            for u in range(4):
                if t == 0: A(f"v_dot2_f32_bf16 v{vR+u}, v{kb+4*u}, v{vQ}, 0")
                else: A(f"v_dot2c_f32_bf16 v{vR+u}, v{kb+4*u+t}, v{vQ+t}")
        A(f"v_add_f32_dpp v{vA_}, v{vR}, v{vR} row_ror:8 row_mask:0xf bank_mask:0x3")
        A(f"v_add_f32_dpp v{vB_}, v{vR+2}, v{vR+2} row_ror:8 row_mask:0xf bank_mask:0x3")
        A(f"v_add_f32_dpp v{vA_}, v{vR+1}, v{vR+1} row_ror:8 row_mask:0xf bank_mask:0xc")
        A(f"v_add_f32_dpp v{vB_}, v{vR+3}, v{vR+3} row_ror:8 row_mask:0xf bank_mask:0xc")
        A(f"v_add_f32_dpp v{vC_}, v{vA_}, v{vA_} row_shl:4 row_mask:0xf bank_mask:0x5")
        A(f"v_add_f32_dpp v{vC_}, v{vB_}, v{vB_} row_shr:4 row_mask:0xf bank_mask:0xa")
        dpp_red("v_add_f32", [vC_], QUAD)
        rbf(vC_, vC_)
        A(f"v_mul_f32 v{vC_}, {sSC}, v{vC_}")
        rbf(vC_, vC_)
        Lr, Lb = U("resc"), U("back")
        A(f"v_cmp_gt_f32 vcc, v{vC_}, v{vM}")
        A(f"s_cbranch_vccnz {Lr}")
        A.label(Lb)
        rescue.append((Lr, Lb))
        A(f"v_fma_f32 v{vE_}, v{vC_}, {sL2E}, -v{vML}")
        A(f"v_exp_f32 v{vE_}, v{vE_}")
        A(f"v_add_f32 v{vL}, v{vL}, v{vE_}")
        A(f"v_cvt_pk_bf16_f32 v{vE_}, v{vE_}, v{vE_}")
        lane_of = [0, 8, 4, 12]
        for u in range(4):
            for t in range(4): A(f"v_and_b32_dpp v{vAOP+4*u+t}, v{vE_}, v{vM2+t} row_newbcast:{lane_of[u]} {DPPF}")
    def pv(slot):
        vb = RING + 32*slot + 16
        for u in range(4):
            A(f"v_mfma_f32_16x16x32_bf16 {v4(vACC)}, {v4(vAOP+4*u)}, {v4(vb+4*u)}, {v4(vACC)}")
    A("s_waitcnt lgkmcnt(0)")
    for k in range(1, 1 + NE):
        A("s_waitcnt vmcnt(0)")
        loadV(0)
        tile_addr("s67", 7*(NE+k))
        qk(0)
        A("s_waitcnt vmcnt(0)")
        loadK(0)
        pv(0)
        qk(k); pv(k)
    if NWS < 7:
        A(f"s_cmp_gt_u32 {sWAVE}, {NWS}"); A("s_cbranch_scc1 L_quit")
    if stamps == 4: stamp(3)
    req_ticket()
    A.label("L_loop")
    A("s_waitcnt vmcnt(0) lgkmcnt(0)")
    loadV(0)
    A(f"v_readfirstlane_b32 {sTK}, v{vTKT}")
    if stamps == 4: stamp(4)
    A(f"s_cmp_ge_u32 {sTK}, {sNT}"); A("s_cbranch_scc1 L_dyn_in")
    req_ticket()
    tile_addr(sTK, sST)
    qk(0)
    A("s_waitcnt vmcnt(0)")
    loadK(0)
    pv(0)
    A("s_branch L_loop")
    A.label("L_dyn")
    A("s_waitcnt vmcnt(0)")
    loadV(0)
    A.label("L_dyn_in")
    A("s_mov_b64 exec, 1"); A(f"v_mov_b32 v{vTKT}, 1")
    A(f"buffer_atomic_add v{vTKT}, v{vZERO}, {SWS}, {sCNT} offen sc0 sc1")
    A("s_mov_b64 exec, -1")
    qk(0)
    A("s_waitcnt vmcnt(0)")
    A(f"v_readfirstlane_b32 {sTK}, v{vTKT}")
    A(f"s_cmp_ge_u32 {sTK}, 1024"); A("s_cbranch_scc1 L_last")
    tile_addr(sTK, sROT)
    loadK(0)
    pv(0)
    A(f"s_cmp_lt_u32 {sTK}, {sQ}"); A("s_cbranch_scc1 L_dyn")
    A.label("L_quit")
    A("s_waitcnt vmcnt(0)"); loadV(0); qk(0); A("s_waitcnt vmcnt(0)")
    A.label("L_last")
    if pf:
        A("s_mov_b64 exec, 1"); A(f"ds_add_rtn_u32 v{vTKT}, v{vZERO}, v{vONE} offset:{L_RANK}"); A("s_mov_b64 exec, -1")
    pv(0)
    row_red("v_add_f32", vL, vA_)
    A(f"s_lshl_b32 s69, {sWAVE}, 10"); A(f"v_add_u32 v{vT}, s69, v{vNAT}")
    A(f"v_mov_b32 v{vACC+2}, v{vML}"); A(f"v_mov_b32 v{vACC+3}, v{vL}")
    A(f"ds_write_b128 v{vT}, {v4(vACC)} offset:{L_PART-1024}")
    if pre_bar: late_loads("a")
    A("s_waitcnt lgkmcnt(0)")
    if pf and late_wo:
        per = 20 // NR
        A(f"v_readfirstlane_b32 s66, v{vTKT}")
        A(f"s_sub_u32 s66, s66, {7 - NWS}")
        A(f"s_cmp_ge_u32 s66, {NR}"); A("s_cbranch_scc1 L_pfdone")
        srd(SA, "s12", "s13", 4096*1280)
        A(f"s_and_b32 s68, {sHD}, 24"); A(f"s_add_u32 s68, s68, {sG}"); A(f"s_mul_i32 s68, s68, {128*1280}")
        A(f"s_and_b32 s69, {sHD}, 7"); A(f"s_mul_i32 s69, s69, {20*1024}"); A("s_add_u32 s68, s68, s69")
        A(f"s_mul_i32 s69, s66, {per*1024}"); A("s_add_u32 s68, s68, s69")
        for n in range(per):
            if n and n % 4 == 0: A("s_add_u32 s68, s68, 4096")
            A(f"buffer_load_dwordx4 {v4(PF)}, v{vLANE16}, {SA}, s68 offen offset:{(n%4)*1024} {pfpol}")
        A.label("L_pfdone")
    if stamps == 4:
        A(f"s_cmp_lg_u32 {sWAVE}, 1"); A("s_cbranch_scc1 L_ns4")
        stamp(5); stamp_dump([1, 2, 3, 4, 5], final=False)
        A.label("L_ns4")
    A("s_barrier")
    if pf2:
        A(f"s_cmp_lt_u32 {sK}, 17"); A("s_cbranch_scc1 L_pf2done")
        A(f"s_sub_u32 s66, {sK}, 17"); A("s_mul_i32 s66, s66, 7"); A(f"s_add_u32 s66, s66, {sWAVE}"); A("s_sub_u32 s66, s66, 1")
        A("s_cmp_ge_u32 s66, 80"); A("s_cbranch_scc1 L_pf2dn")
        srd(SA, "s16", "s17", 640*3456); srd(SB, "s18", "s19", 640*3456)
        A(f"v_lshrrev_b32 v{vT+1}, 5, v{vLANE}"); A(f"v_mul_u32_u24 v{vT+1}, 3456, v{vT+1}")
        A(f"v_and_b32 v{vT+2}, 31, v{vLANE}"); A(f"v_lshl_add_u32 v{vT+1}, v{vT+2}, 4, v{vT+1}")
        A(f"s_mul_i32 s68, {sG}, 7"); A("s_lshr_b32 s68, s68, 1"); A("s_min_u32 s68, s68, 23"); A("s_lshl_b32 s68, s68, 7")
        A(f"s_mul_i32 s69, s66, {8*3456}"); A("s_add_u32 s68, s68, s69")
        for n in range(4):
            A(f"buffer_load_dwordx4 {v4(PF)}, v{vT+1}, {SA}, s68 offen {pfpol}")
            A(f"buffer_load_dwordx4 {v4(PF)}, v{vT+1}, {SB}, s68 offen {pfpol}")
            if n < 3: A(f"s_add_u32 s68, s68, {2*3456}")
        A("s_waitcnt vmcnt(0)")
        A("s_endpgm")
        A.label("L_pf2dn")
        srd(SA, "s20", "s21", 1728*1280)
        A(f"s_mul_i32 s68, {sG}, {7*40960}"); A("s_sub_u32 s69, s66, 80"); A(f"s_mul_i32 s69, s69, {11520}"); A("s_add_u32 s68, s68, s69")
        A(f"v_add_u32 v{vT+1}, s68, v{vLANE16}")
        for n in range(12):
            if n and n % 4 == 0: A(f"v_add_u32 v{vT+1}, 0x1000, v{vT+1}")
            A(f"buffer_load_dwordx4 {v4(PF)}, v{vT+1}, {SA}, 0 offen offset:{(n%4)*1024} {pfpol}")
        A("s_waitcnt vmcnt(0)")
        A("s_endpgm")
        A.label("L_pf2done")
    if not pre_bar: late_loads("a")
    A.label("L_tail")
    A(f"s_cmp_lt_u32 {sK}, 10"); A("s_cbranch_scc1 L_wo")
    A(f"s_cmp_ge_u32 {sF}, 54"); A("s_cbranch_scc1 L_exit")
    X0, GA = 24, 26
    C1, SBv = 12, 6
    CC = [12, 13, 14, 15, 28]; SS = [RING+36, RING+37, RING+38, RING+39, 29]
    SEL0, SEL1, GB = 30, 31, 6
    A(f"s_mov_b32 s22, {WS_MR}")
    A(f"s_cmp_gt_u32 {sWAVE}, 3"); A("s_cbranch_scc1 L_gprep")
    A(f"v_lshrrev_b32 v{vT}, 3, v{vLANE}"); A(f"v_and_b32 v{vT+1}, 3, v{vLANE}"); A(f"v_lshl_add_u32 v{vT+1}, v{vT}, 2, v{vT+1}")
    if not late_gu:
        A(f"v_and_b32 v{vT+2}, 3, v{vLANE}"); A(f"v_lshlrev_b32 v{vT+2}, 4, v{vT+2}")
        A(f"v_bfe_u32 v{vT+3}, v{vLANE}, 2, 1"); A(f"v_mul_u32_u24 v{vT+3}, 40960, v{vT+3}"); A(f"v_add_u32 v{vT+2}, v{vT+2}, v{vT+3}")
        A(f"s_mul_i32 s68, {sWAVE}, {160*64}"); A(f"v_add_u32 v{vT+2}, s68, v{vT+2}")
        A(f"v_lshl_add_u32 v{vT+3}, v{vT}, 10, v{vT+2}"); A(f"v_lshl_add_u32 v{vT+2}, v{vT}, 8, v{vT+2}")
        for y in range(4):
            for k in range(4): A(f"ds_read_b128 {v4(WT+4*(y*4+k))}, v{vT+3} offset:{L_W + (4*k+y)*64}")
            A("s_waitcnt lgkmcnt(4)")
        for k in range(4): A(f"ds_read_b128 {v4(WT+64+4*k)}, v{vT+2} offset:{L_W + (128+k)*64}")
    if not late_dn:
        A(f"v_lshrrev_b32 v{vT+2}, 4, v{vLANE}"); A(f"v_mul_u32_u24 v{vT+2}, {8*1280}, v{vT+2}")
        A(f"v_and_b32 v{vT+3}, 15, v{vLANE}"); A(f"v_lshl_add_u32 v{vT+2}, v{vT+3}, 4, v{vT+2}")
        A(f"v_add_u32 v{vT+3}, {L_W + 81920 + 1024}, v{vT+2}")
        A(f"s_lshl_b32 s68, {sWAVE}, 8"); A(f"s_add_u32 s68, s68, {L_W + 81920}"); A(f"v_add_u32 v{vT+2}, s68, v{vT+2}")
        A("s_waitcnt lgkmcnt(4)")
        for t in range(8): A(f"ds_read_b128 {v4(WD+4*t)}, v{vT+2} offset:{t*1280}")
        A("s_waitcnt lgkmcnt(4)")
        for t in range(8): A(f"ds_read_b128 {v4(WD2+4*t)}, v{vT+3} offset:{t*1280}")
    A(f"s_mul_i32 s68, {sWAVE}, 640"); A(f"v_lshl_add_u32 v{vT+8}, v{vT+1}, 4, s68")
    A("s_add_u32 s68, s68, 512"); A(f"v_lshl_add_u32 v{vT+9}, v{vT+1}, 2, s68")
    A(f"v_lshlrev_b32 v{vT+2}, 1, v{vT+8}"); A(f"v_lshlrev_b32 v{vT+3}, 1, v{vT+9}"); A(f"v_and_b32 v{vT+3}, -16, v{vT+3}")
    acc_addr(vT+5)
    A(f"v_lshrrev_b32 v{vT+6}, 4, v{vLANE}"); A(f"v_lshlrev_b32 v{vT+6}, 3, v{vT+6}")
    A(f"v_and_b32 v{vT+7}, 7, v{vLANE}"); A(f"v_add_u32 v{vT+6}, v{vT+6}, v{vT+7}")
    A(f"v_bfe_u32 v{vT+7}, v{vLANE}, 3, 1"); A(f"v_lshl_add_u32 v{vT+6}, v{vT+7}, 5, v{vT+6}"); A(f"v_lshlrev_b32 v{vT+6}, 2, v{vT+6}")
    A(f"v_add_u32 v{vT+6}, {L_ACC}, v{vT+6}")
    A(f"s_mul_i32 s12, {sF}, 5120"); A(f"s_lshl_b32 s69, {sWAVE}, 10"); A("s_add_u32 s12, s12, s69"); A(f"s_add_u32 s12, s12, {WS_DP}")
    poll([(vT+2, "s22", 0, None), (vT+2, "s22", 16, None), (vT+3, "s22", 0, None)], RING)
    for i in range(2):
        A(f"v_lshlrev_b32 v{SS[2*i]}, 16, v{RING+4*i+1}"); A(f"v_and_b32 v{SS[2*i+1]}, 0xffff0000, v{RING+4*i+1}")
        A(f"v_lshlrev_b32 v{CC[2*i]}, 16, v{RING+4*i+2}"); A(f"v_and_b32 v{CC[2*i+1]}, 0xffff0000, v{RING+4*i+2}")
    A(f"v_and_b32 v{vT+7}, 1, v{vLANE}"); A(f"v_lshlrev_b32 v{vT+7}, 4, v{vT+7}")
    A(f"v_lshrrev_b32 v{SS[4]}, v{vT+7}, v{RING+9}"); A(f"v_lshlrev_b32 v{SS[4]}, 16, v{SS[4]}")
    A(f"v_lshrrev_b32 v{CC[4]}, v{vT+7}, v{RING+10}"); A(f"v_lshlrev_b32 v{CC[4]}, 16, v{CC[4]}")
    for c in CC: A(f"v_add_f32 v{c}, 1.0, v{c}")
    rbf2(CC[0], CC[1]); rbf2(CC[2], CC[3]); rbf(CC[4], CC[4])
    A("s_waitcnt vmcnt(0) lgkmcnt(0)")
    stamp(8)
    A(f"s_cmp_lg_u32 {sWAVE}, 0"); A("s_cbranch_scc1 L_gemv")
    A.label("L_gprep")
    A(f"s_and_b32 s23, {sWAVE}, 3"); A(f"s_cmp_eq_u32 {sWAVE}, 0"); A("s_cselect_b32 s23, 4, s23")
    A(f"v_and_b32 v{vT}, 31, v{vLANE}"); A(f"v_lshrrev_b32 v{vT+1}, 5, v{vLANE}")
    A(f"v_lshl_add_u32 v{vT+2}, v{vT}, 1, v{vT+1}"); A("s_lshl_b32 s68, s23, 6"); A(f"v_add_u32 v{vT+2}, s68, v{vT+2}")
    A(f"v_lshlrev_b32 v{vT+7}, 4, v{vT+2}"); A(f"v_lshlrev_b32 v{vT+3}, 3, v{vT+2}"); A(f"v_lshlrev_b32 v{vT+2}, 2, v{vT+2}")
    srd(SB, "s4", "s5", 1280)
    A(f"buffer_load_dword v{X0+1}, v{vT+2}, {SB}, 0 offen")
    A(f"v_mul_u32_u24 v{vT+4}, 2560, v{vT+1}"); A(f"v_lshl_add_u32 v{vT+4}, v{vT}, 4, v{vT+4}"); A("s_lshl_b32 s68, s23, 9"); A(f"v_add_u32 v{vT+4}, s68, v{vT+4}")
    for n in range(4): A(f"s_mov_b32 s{4+n}, {WS_YP + n*5120}")
    A("s_lshl_b32 s68, s23, 3"); A(f"v_mov_b32 v{vADDR}, s68")
    A(f"v_mov_b32 v{SEL0}, 0x3f80"); A(f"v_mov_b32 v{SEL1}, 0x3f800000")
    A(f"s_min_u32 s21, {sF}, 39")
    A(f"v_lshrrev_b32 v{vL}, 3, v{vLANE}"); A(f"v_mul_u32_u24 v{vL}, 5120, v{vL}")
    A(f"v_and_b32 v{vONE}, 7, v{vLANE}"); A(f"v_lshl_add_u32 v{vL}, v{vONE}, 4, v{vL}")
    A(f"s_lshl_b32 s68, s21, 7"); A(f"v_add_u32 v{vL}, s68, v{vL}")
    A(f"v_lshl_add_u32 v{vT}, v{vONE}, 4, s68")
    A(f"v_lshl_add_u32 v{vONE}, v{vONE}, 1, v{vT+1}")
    A(f"s_lshl_b32 s68, s21, 4"); A(f"v_add_u32 v{vONE}, s68, v{vONE}")
    A(f"v_lshlrev_b32 v{vTKT}, 2, v{vONE}"); A(f"v_lshlrev_b32 v{vONE}, 1, v{vONE}")
    for n in range(7): A(f"s_mov_b32 s{13+n}, {WS_DP + n*8*5120}")
    A(f"s_mov_b32 s21, {WS_MR+5120}")
    poll([(vT+7, "s22", 0, None), (vT, "s21", 0, None)], RING)
    A(f"v_lshlrev_b32 v{X0}, 16, v{X0+1}"); A(f"v_and_b32 v{X0+1}, 0xffff0000, v{X0+1}")
    A(f"v_lshlrev_b32 v{GA}, 16, v{RING}"); A(f"v_and_b32 v{GA+1}, 0xffff0000, v{RING}")
    A(f"v_mov_b32 v{GB}, v{RING+4}"); A("s_mov_b32 exec_lo, 0"); A(f"v_mov_b32 v{GB}, v{RING+5}"); A("s_mov_b64 exec, -1")
    srd(SB, "s26", "s27", 1280)
    def ysum(b):
        for n in range(4):
            for r in range(4):
                src, sel = b + 4*n + 2*(r // 2), (SEL0, SEL1)[r % 2]
                if n == 0: A(f"v_dot2_f32_bf16 v{TMP+r}, v{src}, v{sel}, 0")
                else: A(f"v_dot2c_f32_bf16 v{TMP+r}, v{src}, v{sel}")
    poll([(vT+4, f"s{4+n}", 0, None) for n in range(4)], RING, DB, ysum, ps=2, tags=(1, 3))
    stamp(9)
    A(f"v_permlane32_swap_b32 v{TMP}, v{TMP+2}"); A(f"v_permlane32_swap_b32 v{TMP+1}, v{TMP+3}")
    A(f"v_pk_add_f32 {v2(TMP)}, {v2(TMP)}, {v2(TMP+2)}")
    A(f"v_pk_fma_f32 {v2(X0)}, {v2(TMP)}, {v2(GA)}, {v2(X0)}")
    A(f"v_add_f32 v{TMP}, v{X0}, v{X0+1}"); A(f"v_mul_f32 v{TMP+1}, v{X0}, v{X0}"); A(f"v_fmac_f32 v{TMP+1}, v{X0+1}, v{X0+1}")
    A(f"ds_write_b64 v{vT+3}, {v2(X0)} offset:{L_X2}")
    dpp_red("v_add_f32", [TMP, TMP+1], QUAD + BANK + BCAST)
    A("s_mov_b32 exec_lo, 0"); A("s_brev_b32 exec_hi, 1")
    A(f"ds_write_b64 v{vADDR}, {v2(TMP)} offset:{L_ST}")
    A("s_mov_b64 exec, -1")
    A("s_waitcnt lgkmcnt(0)")
    A(f"s_cmp_lg_u32 {sWAVE}, 0"); A("s_cbranch_scc1 L_final")
    A.label("L_gemv")
    A("s_barrier")
    fstamp(3)
    ST = vAOP; XX = RING + 40
    A(f"ds_read_b128 {v4(ST)}, v{vZERO} offset:{L_ST}"); A(f"ds_read_b128 {v4(ST+4)}, v{vZERO} offset:{L_ST+16}"); A(f"ds_read_b64 {v2(ST+8)}, v{vZERO} offset:{L_ST+32}")
    A(f"ds_read_b128 {v4(XX)}, v{vT+8} offset:{L_X2}"); A(f"ds_read_b32 v{XX+4}, v{vT+9} offset:{L_X2}")
    A(f"v_mov_b32 v{TMP+2}, {fh(1e-5)}")
    A("s_waitcnt lgkmcnt(2)" if stamps != 2 else "s_waitcnt lgkmcnt(0)")
    sum2([ST+2*n for n in range(5)], TMP)
    A(f"v_mul_f32 v{TMP}, {fh(1.0/640)}, v{TMP}")
    A(f"v_fmac_f32 v{TMP+2}, {fh(1.0/640)}, v{TMP+1}")
    A(f"v_fma_f32 v{TMP+2}, -v{TMP}, v{TMP}, v{TMP+2}")
    A(f"v_max_f32 v{TMP+2}, {fh(1e-5)}, v{TMP+2}")
    A(f"v_rsq_f32 v{TMP+2}, v{TMP+2}")
    A("s_waitcnt lgkmcnt(0)")
    for y in range(5): A(f"v_sub_f32 v{XX+y}, v{XX+y}, v{TMP}")
    for y in range(5): A(f"v_mul_f32 v{CC[y]}, v{CC[y]}, v{TMP+2}")
    for y in range(5): A(f"v_fmac_f32 v{SS[y]}, v{XX+y}, v{CC[y]}")
    for y in range(5): A(f"v_cvt_pk_bf16_f32 v{SS[y]}, v{SS[y]}, v{SS[y]}")
    fstamp(4)
    gemv(vACC, vM1, [(SS[y], qp(k), WT+4*(y*4+k), None) for y in range(5) for k in range(4)])
    acc_write(vT+5)
    fstamp(5)
    A("s_waitcnt lgkmcnt(0)")
    A("s_barrier")
    fstamp(7)
    RD = WT
    for k in range(4): A(f"ds_read2st64_b32 {v2(RD+2*k)}, v{vT+6} offset0:{2*k} offset1:{2*k+1}")
    A("s_waitcnt lgkmcnt(0)")
    sum2([RD+2*k for k in range(4)])
    A(f"v_add_f32 v{RD}, v{RD}, v{RD+1}")
    A(f"v_mul_f32 v{RD+2}, {fh(-LOG2E)}, v{RD}"); A(f"v_exp_f32 v{RD+2}, v{RD+2}")
    A(f"v_mul_f32_dpp v{RD+1}, v{RD}, v{RD} row_ror:8 {DPPF}")
    A(f"v_add_f32 v{RD+2}, 1.0, v{RD+2}"); A(f"v_rcp_f32 v{RD+2}, v{RD+2}")
    A(f"v_mul_f32 v{RD}, v{RD+1}, v{RD+2}")
    A(f"v_cvt_pk_bf16_f32 v{RD}, v{RD}, v{RD}")
    A(f"s_cmp_eq_u32 {sWAVE}, 1"); A("s_cbranch_scc1 L_down2")
    gemv(vACC, vM2, [(RD, f"row_newbcast:{t}", WD+4*t, None) for t in range(8)])
    publish(vACC, vNAT, "s12")
    if fin == 2: A("s_waitcnt vmcnt(0)")
    A("s_branch L_exit")
    A.label("L_down2")
    gemv(vACC, vM2, [(RD, f"row_newbcast:{t}", WD+4*t, None) for t in range(8)], ACC2, WD2)
    A(f"v_mov_b32 v{vACC+3}, {sTAG}"); A(f"v_mov_b32 v{ACC2+3}, {sTAG}")
    A(f"buffer_store_dwordx4 {v4(vACC)}, v{vNAT}, {SWS}, s12 offen sc1")
    A(f"buffer_store_dwordx4 {v4(ACC2)}, v{vNAT}, {SWS}, s12 offen offset:3072 sc1")
    stamp(10)
    if fin:
        A("s_waitcnt vmcnt(0)")
        A("s_barrier")
    if stamps:
        stamp_dump([8, 10] + ([3, 4, 5, 7] if stamps == 2 else []))
    A("s_endpgm")
    A.label("L_final")
    A("s_barrier")
    A(f"s_cmp_lg_u32 {sWAVE}, 7"); A("s_cbranch_scc1 L_end")
    A(f"ds_read_b32 v{X0}, v{vTKT} offset:{L_X2}")
    FB = RING + 48
    for i in range(DC):
        b = FB + 28*i + 24
        A(f"v_mov_b32 v{b}, 0"); A(f"v_mov_b32 v{b+1}, 0"); A(f"v_mov_b32 v{b+3}, {sTAG}")
    A("s_mov_b32 s68, -1"); A("s_mov_b32 s69, 0xffff")
    A("s_waitcnt vmcnt(0) lgkmcnt(0)")
    A(f"s_cmp_ge_u32 {sF}, 40"); A("s_cbranch_scc1 L_fin_dump")
    A("s_barrier")
    if fin: A("s_barrier")
    if CSL: A(f"s_sleep {CSL}")
    poll([(vL, f"s{13+n}", 0, None if n < 6 else "s[68:69]") for n in range(7)], FB, DC, lambda b: sum2([b+4*n for n in range(7)], GA), ps=14)
    stamp(11)
    A(f"v_permlane32_swap_b32 v{GA}, v{GA+1}"); A(f"v_add_f32 v{GA}, v{GA}, v{GA+1}")
    xrow("v_add_f32", GA, GA+1, 16)
    A(f"v_add_f32_dpp v{GA}, v{GA}, v{GA} row_ror:8 {DPPF}")
    A(f"v_fma_f32 v{GA}, v{GA}, v{GB}, v{X0}"); A(f"v_cvt_pk_bf16_f32 v{GA}, v{GA}, v{GA}")
    A("s_mov_b32 exec_lo, 0xff"); A("s_mov_b32 exec_hi, 0xff")
    A(f"buffer_store_short v{GA}, v{vONE}, {SB}, 0 offen")
    A(f"s_cmp_lg_u32 {sF}, 0"); A("s_cbranch_scc1 L_fin_dump")
    A("s_mov_b64 exec, 1"); A(f"v_mov_b32 v{GA+1}, {sTAG}")
    A(f"buffer_store_dword v{GA+1}, v{vZERO}, {SWS}, 0 offen sc1")
    A.label("L_fin_dump")
    if stamps:
        A("s_waitcnt vmcnt(0)"); stamp(12)
        stamp_dump([9, 11, 12] + ([14, 2] if stamps == 3 else []))
    A("s_endpgm")
    A.label("L_wo")
    A(f"v_lshrrev_b32 v{vT+4}, 5, v{vLANE}"); A(f"v_lshlrev_b32 v{vT+4}, 10, v{vT+4}")
    A(f"v_and_b32 v{vT+6}, 31, v{vLANE}"); A(f"v_lshl_add_u32 v{vT+4}, v{vT+6}, 4, v{vT+4}")
    A(f"s_lshr_b32 s4, {sWAVE}, 1"); A("s_lshl_b32 s4, s4, 3"); A(f"s_add_u32 s4, s4, {sG}"); A("s_lshl_b32 s4, s4, 13")
    A(f"s_and_b32 s5, {sWAVE}, 1"); A("s_lshl_b32 s5, s5, 9"); A("s_add_u32 s4, s4, s5"); A(f"s_add_u32 s4, s4, {WS_OP}"); A("s_add_u32 s5, s4, 4096")
    A(f"v_bfe_u32 v{vT}, v{vLANE}, 4, 1"); A(f"v_lshlrev_b32 v{vT}, 5, v{vT}")
    A(f"v_lshrrev_b32 v{vT+1}, 5, v{vLANE}"); A(f"v_add_u32 v{vT}, v{vT}, v{vT+1}")
    A(f"v_bfe_u32 v{vT+1}, v{vLANE}, 3, 1"); A(f"v_lshl_add_u32 v{vT}, v{vT+1}, 4, v{vT}")
    A(f"v_lshlrev_b32 v{vT}, 7, v{vT}")
    A(f"v_and_b32 v{vT+1}, 7, v{vLANE}"); A(f"v_lshl_add_u32 v{vT}, v{vT+1}, 4, v{vT}")
    A(f"s_lshl_b32 s68, {sWAVE}, 13"); A(f"v_add_u32 v{vT}, s68, v{vT}")
    if not late_wo:
        for n in range(8): A(f"ds_read_b128 {v4(WT+4*n)}, v{vT} offset:{L_W + 2*n*128}")
    acc_addr(vT+5)
    A(f"v_lshrrev_b32 v{vT+7}, 5, v{vLANE}"); A(f"v_lshlrev_b32 v{vT+7}, 11, v{vT+7}"); A(f"v_lshl_add_u32 v{vT+7}, v{vT+6}, 3, v{vT+7}")
    A(f"v_lshlrev_b32 v{vT+8}, 3, v{vLANE}")
    A(f"s_mul_i32 s6, {sG}, 2560"); A(f"s_lshl_b32 s7, {sK}, 8"); A("s_add_u32 s6, s6, s7"); A(f"s_add_u32 s6, s6, {WS_YP}")
    def wo_combine(b):
        lam = [b+4*n+2 for n in range(4)]
        t = TMP + 2
        A(f"v_max3_f32 v{t}, v{lam[0]}, v{lam[1]}, v{lam[2]}"); A(f"v_max_f32 v{t}, v{t}, v{lam[3]}")
        xrow("v_max_f32", t, t+1, 32)
        for n in range(4): A(f"v_sub_f32 v{lam[n]}, v{lam[n]}, v{t}")
        for n in range(4): A(f"v_exp_f32 v{lam[n]}, v{lam[n]}")
        A(f"v_add_f32 v{t}, v{lam[0]}, v{lam[1]}"); A(f"v_add_f32 v{t+1}, v{lam[2]}, v{lam[3]}")
        for r in range(2): A(f"v_mul_f32 v{TMP+r}, v{lam[0]}, v{b+r}")
        A(f"v_add_f32 v{t}, v{t}, v{t+1}")
        for n in range(1, 4):
            for r in range(2): A(f"v_fmac_f32 v{TMP+r}, v{lam[n]}, v{b+4*n+r}")
    poll([(vT+4, "s4" if n < 2 else "s5", (n % 2)*2048, None) for n in range(4)], RING, DA, wo_combine, ps=5)
    stamp(7)
    t = TMP + 2
    xrow("v_add_f32", t, t+1, 32)
    A(f"v_permlane32_swap_b32 v{TMP}, v{TMP+1}")
    A(f"v_rcp_f32 v{t}, v{t}")
    A(f"v_add_f32 v{TMP}, v{TMP}, v{TMP+1}")
    A(f"v_mul_f32 v{TMP}, v{TMP}, v{t}")
    A(f"v_cvt_pk_bf16_f32 v{TMP}, v{TMP}, v{TMP}")
    ysplit([TMP], TMP+2)
    A("s_waitcnt lgkmcnt(0)")
    gemv(vACC, vM1, [(TMP + 2 + n // 4, qp(n % 4), WT+4*n, None) for n in range(8)])
    acc_write(vT+5)
    A("s_waitcnt lgkmcnt(0)")
    A("s_barrier")
    A(f"s_cmp_lg_u32 {sWAVE}, 0"); A("s_cbranch_scc1 L_end")
    for n in range(8): A(f"ds_read_b64 {v2(WT+2*n)}, v{vT+7} offset:{L_ACC+256*n}")
    A("s_waitcnt lgkmcnt(0)")
    sum2([WT+2*n for n in range(8)])
    A(f"v_mov_b32 v{WT+2}, v{WT}"); A(f"v_mov_b32 v{WT+3}, v{WT+1}")
    A(f"v_permlane32_swap_b32 v{WT}, v{WT+2}"); A(f"v_permlane32_swap_b32 v{WT+1}, v{WT+3}")
    A(f"v_pk_add_f32 {v2(WT)}, {v2(WT)}, {v2(WT+2)}")
    A(f"v_cvt_pk_bf16_f32 v{WT}, v{WT}, v{WT+1}"); A(f"v_mov_b32 v{WT+1}, {sTAG}")
    A("s_mov_b32 exec_hi, 0")
    A(f"buffer_store_dwordx2 {v2(WT)}, v{vT+8}, {SWS}, s6 offen sc1")
    stamp(13)
    A.label("L_exit")
    if stamps:
        A(f"s_cmp_lg_u32 {sWAVE}, 0"); A("s_cbranch_scc1 L_end")
        stamp_dump([0, 13, 6, 7] if stamps == 4 else [0, 13, 6, 1] + ([2] if stamps != 3 else []) + ([3, 4, 5, 7] if stamps != 2 else []), xcc=True)
    A("s_endpgm")
    for (Lr, Lb) in rescue:
        A.label(Lr)
        A(f"v_max_f32 v{vA_}, v{vC_}, v{vM}")
        row_red("v_max_f32", vA_, vB_)
        A(f"v_sub_f32 v{vB_}, v{vM}, v{vA_}"); A(f"v_mul_f32 v{vB_}, {sL2E}, v{vB_}"); A(f"v_exp_f32 v{vB_}, v{vB_}")
        A(f"v_mov_b32 v{vM}, v{vA_}"); A(f"v_mul_f32 v{vML}, {sL2E}, v{vA_}")
        A(f"v_mul_f32 v{vL}, v{vL}, v{vB_}")
        for r in range(2): A(f"v_mul_f32 v{vACC+r}, v{vACC+r}, v{vB_}")
        A(f"s_branch {Lb}")

    A.label("L_ctrl0")
    A("s_setprio 3")
    A("s_waitcnt lgkmcnt(0)")
    def ctrl_init():
        common_setup()
        A(f"v_mov_b32 v{vT+4}, {7*(1+2*NE)}")
        for r in range(1, 4): A(f"v_mov_b32 v{vT+4+r}, 0")
        A(f"ds_write_b128 v{vZERO}, {v4(vT+4)} offset:{L_TICKET}")
        tag_finish()
        A("s_barrier")
    A(f"s_sub_u32 s37, {sK}, 17"); A(f"s_add_u32 s68, {sK}, 15"); A(f"s_cmp_lt_u32 {sK}, 5"); A("s_cselect_b32 s37, s68, s37")
    A("s_cmp_lt_u32 s37, 20"); A("s_cbranch_scc1 L_ctrl_q")
    A(f"s_cmp_ge_u32 {sK}, 15"); A("s_cbranch_scc1 L_ctrl_none")
    A(f"s_sub_u32 s38, {sK}, 5")
    mod_loads("s38", sG)
    ctrl_init()
    mod_compute("s38", sG)
    stamp(1)
    A("s_branch L_hop2")
    A.label("L_ctrl_none")
    ctrl_init()
    A("s_branch L_hop2")
    A.label("L_ctrl_q")
    WQ = RING + 64
    XA = RING
    X0, X1 = 24, 25
    A("s_mul_i32 s38, s37, 52"); A("s_lshr_b32 s38, s38, 8"); A("s_mul_i32 s68, s38, 5"); A("s_sub_u32 s39, s37, s68")
    A("s_lshl_b32 s38, s38, 3"); A(f"s_add_u32 s38, s38, {sG}")
    srd(SB, "s4", "s5", 1280); srd(SA, "s10", "s11", 640*8192)
    A(f"v_lshlrev_b32 v{vT+2}, 2, v{vLANE}")
    for k in range(5): A(f"buffer_load_dword v{XA+2*k+1}, v{vT+2}, {SB}, 0 offen offset:{k*256}")
    A("s_lshl_b32 s68, s39, 8")
    A(f"buffer_load_dword v{X1}, v{vT+2}, {SB}, s68 offen")
    A(f"v_lshrrev_b32 v{vT}, 4, v{vLANE}"); A(f"v_lshlrev_b32 v{vT}, 18, v{vT}")
    A(f"v_and_b32 v{vT+1}, 15, v{vLANE}"); A(f"v_lshl_add_u32 v{vT+3}, v{vT+1}, 4, v{vT}")
    A("s_lshl_b32 s69, s39, 20"); A("s_lshl_b32 s68, s38, 8"); A("s_add_u32 s69, s69, s68")
    for n in range(32):
        u, j = n // 16, n % 16
        A(f"s_add_u32 s68, s69, {(2*j+u)*8192}")
        A(f"buffer_load_dwordx4 {v4(WQ+4*n)}, v{vT+3}, {SA}, s68 offen {pol}")
    ctrl_init()
    A("s_and_b32 s68, s38, 3"); A(f"s_mov_b32 s69, {DYN0[0]}")
    for a in range(1, 4):
        A(f"s_cmp_eq_u32 s68, {a}"); A(f"s_cselect_b32 s69, {DYN0[a]}, s69")
    A(f"v_mov_b32 v{vT}, s69"); A("s_lshl_b32 s68, s38, 8"); A(f"s_add_u32 s68, s68, {WS_CNT}")
    A("s_cmp_lg_u32 s39, 0"); A("s_cbranch_scc1 L_nocnt")
    A("s_mov_b64 exec, 1")
    A(f"buffer_store_dword v{vT}, v{vZERO}, {SWS}, s68 offen sc1")
    A("s_mov_b64 exec, -1")
    A("s_waitcnt vmcnt(33)")
    A("s_branch L_cntj")
    A.label("L_nocnt")
    A("s_waitcnt vmcnt(32)")
    A.label("L_cntj")
    for k in range(5):
        A(f"v_lshlrev_b32 v{XA+2*k}, 16, v{XA+2*k+1}"); A(f"v_and_b32 v{XA+2*k+1}, 0xffff0000, v{XA+2*k+1}")
    A(f"v_lshlrev_b32 v{X0}, 16, v{X1}"); A(f"v_and_b32 v{X1}, 0xffff0000, v{X1}")
    t = vT + 8; a = XA
    A(f"v_add_f32 v{t}, v{a}, v{a+1}")
    for i in range(2, 10): A(f"v_add_f32 v{t}, v{t}, v{a+i}")
    wave_red("v_add_f32", t, t+1)
    A(f"v_mul_f32 v{t}, {fh(1.0/640)}, v{t}")
    for i in range(10): A(f"v_sub_f32 v{a+i}, v{a+i}, v{t}")
    A(f"v_mul_f32 v{t+2}, v{a}, v{a}")
    for i in range(1, 10): A(f"v_fmac_f32 v{t+2}, v{a+i}, v{a+i}")
    wave_red("v_add_f32", t+2, t+1)
    A(f"v_mul_f32 v{t+2}, {fh(1.0/640)}, v{t+2}")
    rbf2(t, t+2)
    A(f"v_add_f32 v{t+2}, {fh(1e-5)}, v{t+2}"); rbf(t+2, t+2)
    A(f"v_sqrt_f32 v{t+2}, v{t+2}"); rbf(t+2, t+2)
    A(f"v_rcp_f32 v{t+2}, v{t+2}")
    A(f"v_sub_f32 v{X0}, v{X0}, v{t}"); A(f"v_sub_f32 v{X1}, v{X1}, v{t}"); rbf2(X0, X1)
    A(f"v_mul_f32 v{X0}, v{X0}, v{t+2}"); A(f"v_mul_f32 v{X1}, v{X1}, v{t+2}"); rbf2(X0, X1)
    A("s_lshl_b32 s6, s39, 13"); A(f"s_add_u32 s6, s6, {WS_MODP}"); A("s_add_u32 s7, s6, 4096"); A(f"s_add_u32 s8, s6, {5*8192}"); A("s_add_u32 s9, s8, 4096")
    stamp(1)
    spre("s6", [(n // 8)*5*8192 + (n % 8)*1024 for n in range(16)])
    poll([(vLANE16, f"s{6+n//4}", (n % 4)*1024, None) for n in range(16)], RING)
    stamp(2)
    sum2([RING+4*n for n in range(8)]); sum2([RING+32+4*n for n in range(8)])
    rbf2(RING, RING+1); rbf2(RING+32, RING+33)
    c0, c1, s0, s1 = RING+32, RING+33, RING, RING+1
    A(f"v_add_f32 v{c0}, 1.0, v{c0}"); A(f"v_add_f32 v{c1}, 1.0, v{c1}"); rbf2(c0, c1)
    A(f"v_mul_f32 v{X0}, v{X0}, v{c0}"); A(f"v_mul_f32 v{X1}, v{X1}, v{c1}"); rbf2(X0, X1)
    A(f"v_add_f32 v{X0}, v{X0}, v{s0}"); A(f"v_add_f32 v{X1}, v{X1}, v{s1}")
    A(f"v_cvt_pk_bf16_f32 v{X0}, v{X0}, v{X0}"); A(f"v_cvt_pk_bf16_f32 v{X1}, v{X1}, v{X1}")
    gemv(vACC, vM2, [((X0, X1)[n // 16], f"row_newbcast:{n % 16}", WQ + 4*n, None) for n in range(32)])
    A("s_mul_i32 s68, s38, 5"); A("s_add_u32 s68, s68, s39"); A("s_lshl_b32 s68, s68, 10"); A(f"s_add_u32 s68, s68, {WS_QP}")
    publish(vACC, vNAT, "s68")
    A.label("L_hop2")
    stamp(3)
    A(f"s_mul_i32 s6, {sHD}, 5120"); A(f"s_add_u32 s6, s6, {WS_QP}"); A("s_add_u32 s7, s6, 4096")
    spre("s6", [n*1024 for n in range(5)])
    poll([(vLANE16, "s6" if n < 4 else "s7", (n % 4)*1024, None) for n in range(5)], RING)
    sum2([RING+4*n for n in range(5)])
    A(f"v_cvt_pk_bf16_f32 v{RING}, v{RING}, v{RING+1}")
    A(f"v_lshlrev_b32 v{vT}, 2, v{vLANE}")
    A(f"ds_write_b32 v{vT}, v{RING} offset:{L_Q}")
    A("s_waitcnt lgkmcnt(0)")
    A(f"ds_write_b32 v{vZERO}, v{vONE} offset:{L_FLAG}")
    stamp(4)
    A("s_setprio 0")
    A("s_cmp_lt_u32 s37, 20"); A("s_cbranch_scc0 L_ctrl_b")
    A("s_add_u32 s38, s37, 10")
    mod_loads("s38", sG)
    mod_compute("s38", sG)
    A.label("L_ctrl_b")
    A(f"s_cmp_lg_u32 {sK}, 31"); A("s_cbranch_scc1 L_ctrl_c")
    A(f"s_cmp_ge_u32 {sG}, 5"); A("s_cbranch_scc1 L_ctrl_c")
    A(f"s_lshl_b32 s6, {sG}, 13"); A(f"s_add_u32 s6, s6, {WS_MODP + 10*8192}")
    for b in range(1, 8): A(f"s_add_u32 s{6+b}, s6, {(b//2)*5*8192 + (b%2)*4096}")
    spre("s6", [(n // 8)*5*8192 + (n % 8)*1024 for n in range(16)])
    spre("s6", [(n // 8)*5*8192 + (n % 8)*1024 for n in range(16, 32)])
    poll([(vLANE16, f"s{6+n//4}", (n % 4)*1024, None) for n in range(32)], RING)
    for b in range(4): sum2([RING+32*b+4*n for n in range(8)])
    for b in range(3): A(f"v_cvt_pk_bf16_f32 v{vACC+b}, v{RING+32*b}, v{RING+32*b+1}")
    rbf2(RING+96, RING+97)
    A(f"s_lshl_b32 s6, {sG}, 10"); A(f"s_add_u32 s6, s6, {WS_MR}"); A("s_add_u32 s7, s6, 5120")
    publish(vACC, vLANE16, "s6"); publish(RING+96, vLANE16, "s7")
    A("s_branch L_ctrl_w")
    A.label("L_ctrl_c")
    A(f"s_mov_b32 m0, {L_W}")
    A(f"s_cmp_lt_u32 {sK}, 10"); A("s_cbranch_scc1 L_dma_wo")
    A(f"s_cmp_ge_u32 {sF}, 54"); A("s_cbranch_scc1 L_ctrl_w")
    A(f"v_lshrrev_b32 v{vT}, 2, v{vLANE}"); A(f"v_mul_u32_u24 v{vT}, 3456, v{vT}")
    A(f"v_and_b32 v{vT+1}, 3, v{vLANE}"); A(f"v_lshl_add_u32 v{vT}, v{vT+1}, 4, v{vT}")
    for (lo, hi) in (("s16", "s17"), ("s18", "s19")):
        if late_gu: break
        srd(SA, lo, hi, 640*3456)
        A(f"s_lshl_b32 s68, {sF}, 6")
        dma_loop(vT, "s68", 16*3456, 40, gpol)
    if not late_dn:
        A(f"s_mov_b32 m0, {L_W + 81920}")
        srd(SA, "s20", "s21", 1728*1280)
        A(f"s_mul_i32 s68, {sF}, {32*1280}")
        dma_loop(vLANE16, "s68", 1024, 40, wpol)
    A("s_branch L_ctrl_w")
    A.label("L_dma_wo")
    srd(SA, "s12", "s13", 4096*1280)
    A(f"v_lshrrev_b32 v{vT}, 3, v{vLANE}"); A(f"v_mul_u32_u24 v{vT}, 1280, v{vT}")
    A(f"v_and_b32 v{vT+1}, 7, v{vLANE}"); A(f"v_lshl_add_u32 v{vT}, v{vT+1}, 4, v{vT}")
    for a in range(4):
        if late_wo: break
        A(f"s_add_u32 s68, {sG}, {8*a}"); A(f"s_mul_i32 s68, s68, {128*1280}"); A(f"s_lshl_b32 s69, {sK}, 7"); A("s_add_u32 s68, s68, s69")
        dma_loop(vT, "s68", 8*1280, 16, wpol)
    A.label("L_ctrl_w")
    late_loads("c")
    A(f"s_lshl_b32 s8, {sHD}, 3"); A(f"s_add_u32 s8, s8, {sS}"); A("s_lshl_b32 s8, s8, 10"); A(f"s_add_u32 s8, s8, {WS_OP}")
    A("s_waitcnt vmcnt(0) lgkmcnt(0)")
    stamp(5)
    A("s_barrier")
    stamp(6)
    for w in range(7): A(f"ds_read_b128 {v4(RING+4*w)}, v{vLANE16} offset:{L_PART+1024*w}")
    m = [RING+4*w+2 for w in range(7)]
    t = RING + 28
    A("s_waitcnt lgkmcnt(4)")
    A(f"v_max3_f32 v{t}, v{m[0]}, v{m[1]}, v{m[2]}")
    A("s_waitcnt lgkmcnt(2)")
    A(f"v_max3_f32 v{t}, v{t}, v{m[3]}, v{m[4]}")
    A("s_waitcnt lgkmcnt(0)")
    A(f"v_max3_f32 v{t}, v{t}, v{m[5]}, v{m[6]}")
    for w in range(7): A(f"v_sub_f32 v{m[w]}, v{m[w]}, v{t}")
    for w in range(7): A(f"v_exp_f32 v{m[w]}, v{m[w]}")
    O = RING + 32
    for r in (3, 0, 1): A(f"v_mul_f32 v{O+r}, v{m[0]}, v{RING+r}")
    for w in range(1, 7): A(f"v_fmac_f32 v{O+3}, v{m[w]}, v{RING+4*w+3}")
    A(f"v_rcp_f32 v{t+1}, v{O+3}"); A(f"v_log_f32 v{O+2}, v{O+3}")
    for w in range(1, 7):
        for r in range(2): A(f"v_fmac_f32 v{O+r}, v{m[w]}, v{RING+4*w+r}")
    A(f"v_add_f32 v{O+2}, v{O+2}, v{t}")
    A(f"v_mul_f32 v{O}, v{O}, v{t+1}"); A(f"v_mul_f32 v{O+1}, v{O+1}, v{t+1}")
    publish(O, vLANE16, "s8")
    stamp(13)
    A("s_branch L_tail")
    A.label("L_end")
    if diag_wg is not None:
        A(f"s_cmp_lg_u32 s2, {diag_wg[0]}"); A("s_cbranch_scc1 L_end2"); A(f"s_cmp_lg_u32 s3, {diag_wg[1]}"); A("s_cbranch_scc1 L_end2")
        A.label("L_hold2")
        A("s_memrealtime s[94:95]"); A("s_waitcnt lgkmcnt(0)"); A("s_sub_u32 s94, s94, s96"); A(f"s_cmp_lt_u32 s94, {diag_hold}"); A("s_cbranch_scc1 L_hold2")
        A.label("L_end2")
    A("s_endpgm")
    A('.section .rodata,"a"'); A(".p2align 6"); A(f".amdhsa_kernel {KN}")
    A(".amdhsa_next_free_vgpr 256"); A(".amdhsa_next_free_sgpr 100"); A(".amdhsa_accum_offset 256")
    A(".amdhsa_group_segment_fixed_size 0"); A(".amdhsa_kernarg_size 112"); A(".amdhsa_user_sgpr_count 2")
    A(".amdhsa_user_sgpr_kernarg_segment_ptr 1"); A(".amdhsa_system_sgpr_workgroup_id_x 1")
    A(".amdhsa_float_denorm_mode_32 3")
    A(".end_amdhsa_kernel")
    return A.finalize()

def check_inter(w, inter):
    import numpy as np
    def cmp(name, got, exp):
        err = np.abs(got - exp).max(); rel = np.linalg.norm(got - exp) / np.linalg.norm(exp)
        print("   inter %-5s maxabs %.4e (scale %.3e) relL2 %.3e nan=%d" % (name, err, np.abs(exp).max(), rel, int(np.isnan(got).sum())), got[:4], exp[:4])
    def bf(x):
        u = x.astype(np.float32).view(np.uint32); u = (u + 0x7fff + ((u >> 16) & 1)) & 0xffff0000
        return u.view(np.float32)
    gr = lambda off, n: w[off // 4: off // 4 + n*4].reshape(n, 4)
    md = gr(WS_MODP, 30*8*64)[:, :2].reshape(30, 8, 128).sum(1).reshape(-1)
    cmp("mod", md, inter["mod"]); print("      mod bf16 mismatches", int((bf(md) != inter["mod"]).sum()))
    q = gr(WS_QP, 32*5*64)[:, :2].reshape(32, 5, 128).sum(1).reshape(-1)
    cmp("q", q, inter["q"]); print("      q bf16 mismatches", int((bf(q) != inter["q"]).sum()))
    g = gr(WS_OP, 32*8*64).astype(np.float64); op = g[:, :2].reshape(32, 8, 128); lam = g[:, 2].reshape(32, 8, 64)[:, :, 0]
    wt = np.exp2(lam - lam.max(1, keepdims=True))
    cmp("o", ((op * wt[:, :, None]).sum(1) / wt.sum(1)[:, None]).reshape(-1), inter["o"])
    yp = w[WS_YP // 4: WS_YP // 4 + 8*640].view(np.uint32).reshape(8, 320, 2)[:, :, 0]
    ya = np.stack([(yp << 16).view(np.float32), (yp & 0xffff0000).view(np.float32)], axis=-1).reshape(8, 640)
    cmp("at", ya.sum(0), inter["at"])
    cmp("dn", gr(WS_DP, 54*320)[:, :2].reshape(54, 640).sum(0), inter["dn"])

if __name__ == "__main__":
    out = sys.argv[1]
    kw = {}
    for a in sys.argv[2:]:
        k, v = a.split("=")
        kw[k] = eval(v)
    open(out, "w").write(gen(**kw))
```

```python
import gen11, sys
KN = gen11.KN
base = gen11.gen(Q_wo=1005, diag_hold=9000, diag_wg=(0, 1))
first, rest = base.split("\n", 1)
rest_pre = rest.replace("L_hold2:\n", "    s_load_dwordx2 s[30:31], s[0:1], 104\n    s_waitcnt lgkmcnt(0)\n    s_load_dword s96, s[30:31], 0x800 glc\n    s_waitcnt lgkmcnt(0)\nL_hold2:\n")
def probe(V, body):
    return f"""
.text
.globl probe_kernel
.p2align 8
.type probe_kernel,@function
probe_kernel:
{body}
L_pend:
    s_endpgm
.section .rodata,"a"
.p2align 6
.amdhsa_kernel probe_kernel
.amdhsa_next_free_vgpr {V}
.amdhsa_next_free_sgpr 32
.amdhsa_accum_offset {min(256, (V+3)//4*4)}
.amdhsa_group_segment_fixed_size 0
.amdhsa_kernarg_size 112
.amdhsa_user_sgpr_count 2
.amdhsa_user_sgpr_kernarg_segment_ptr 1
.amdhsa_system_sgpr_workgroup_id_x 1
.end_amdhsa_kernel
"""
pre_body = """    s_memrealtime s[8:9]
    s_cmp_lg_u32 s2, 0
    s_cbranch_scc1 L_pend
    s_load_dwordx2 s[4:5], s[0:1], 104
    v_cmp_eq_u32 vcc, 0, v0
    s_and_saveexec_b64 s[10:11], vcc
    s_cbranch_execz L_pend
    s_waitcnt lgkmcnt(0)
    s_mov_b32 s6, 0x1000
    s_mov_b32 s7, 0x20000
    v_mov_b32 v1, s8
    v_mov_b32 v2, 0x800
    buffer_store_dword v1, v2, s[4:7], 0 offen sc1
    s_waitcnt vmcnt(0)"""
main = f"; @launch kernel={KN} grid=(256,1,1) block=(512,1,1) lds=15360"
for name, G, B, V, L in [("p1", 1, 64, 8, 0), ("p2", 256, 512, 256, 15360), ("p3", 256, 512, 256, 138240), ("p4", 256, 512, 64, 0), ("p5", 256, 256, 512, 0), ("p6", 256, 512, 256, 0)]:
    open(f"cdna_kernels/{name}.s", "w").write(f"; @launch kernel=probe_kernel grid=({G},1,1) block=({B},1,1) lds={L}\n" + main + "\n" + rest_pre + probe(V, pre_body))
```

```python
import sys, struct
from asmdsl import Asm
KN = "adaLN_cond__gqa_block_cached__swiglu_ffn__decode_kernel"

def f2u(x): return struct.unpack("<I", struct.pack("<f", x))[0]
def fh(x): return hex(f2u(x))
LOG2E = 1.4426950408889634
SCALE = 128 ** -0.5

WS_MODP = 0x1000
WS_QP   = WS_MODP + 30*8*1024
WS_OP   = WS_QP + 32*5*1024
WS_YP   = WS_OP + 32*8*1024
WS_DP   = WS_YP + 8*8*2560
WS_MR   = WS_DP + 54*5120
WS_CNT  = WS_MR + 10*1024
WS_FB   = WS_CNT + 32*256
WS_FC   = WS_FB + 80*128
WS_FA   = WS_FC + 256
WS_END  = WS_FA + 32*128
WS_STAMP = 0x10000000
L_TICKET = 0
L_FLAG = 4
L_RANK = 8
L_CNTA = 12
L_Q = 0x100
L_ST = 0x200
L_PART = 0x400
L_ACC = 0x2000
L_X2 = 0x3000
L_W = 0x3C00
L_END = L_W + 120*1024
DPPF = "row_mask:0xf bank_mask:0xf"

def tile_bounds(extra):
    res = []
    for a in range(4):
        e = [extra[a + 4*s] for s in range(8)]
        tgt = (1024 + sum(e)) / 8.0
        b = [0]; acc = 0.0
        for s in range(8):
            acc += tgt - e[s]; b.append(int(round(acc)))
        assert b[8] == 1024
        res.append(b)
    return res

def gen(stamps=False, NE=5, pol="nt", TH=0, e_wq=8, e_mod=2, e_wo=0, e_ffn=2, DMAD=8, DA=1, DB=1, DC=1, touch=False, dry=False, spoll=True, NS=112, ROT=160, NWS=6, diag_hold=0, diag_wg=None, late_wo=True, late_gu=True, late_dn=True, Q_wo=1005, Q_ffn=1024, wpol="", gpol="", pre_bar=False, pf=True, pfpol="", NR=4, pf2=True, SL=0, CSL=0, fin=1, TH0=0, abl=0, psl=0, PFTH=2, LTH=3, WSTEP=0, wo_pre=False, lpol="sc1", spol="sc1", ASL=0, BSL=0, wbar=False, early_w=(), R0=0, bar3=False, cprio=False, otouch=True, now=0, oldpf=True, opol="sc1", hb=False, hbpos=0, rep=True, XD=48):
    A = Asm()
    uid = [0]
    def U(p):
        uid[0] += 1; return f"L_{p}_{uid[0]}"
    sWAVE, sHD, sS, sTAG, sK, sG = "s3", "s32", "s33", "s34", "s35", "s36"
    SK, SV, SWS, SA, SB = "s[40:43]", "s[44:47]", "s[48:51]", "s[52:55]", "s[56:59]"
    sNT, sL2E, sSC, sTO, sF, sTK = "s60", "s62", "s63", "s64", "s65", "s66"
    sROT, sST, sCNT, sQ = "s37", "s61", "s38", "s39"
    def stamp(k):
        if stamps: A(f"s_memrealtime s[{70+2*k}:{71+2*k}]")
    def fstamp(k):
        if stamps == 2: A(f"s_memrealtime s[{70+2*k}:{71+2*k}]")
    def stamp_dump(slots, xcc=False, final=True):
        if not stamps: return
        A("s_waitcnt lgkmcnt(0)")
        A("s_mov_b64 exec, 1")
        A(f"s_lshl_b32 s69, s2, 7"); A(f"s_add_u32 s69, s69, {WS_STAMP}")
        A("s_mov_b32 s50, 0x20000000")
        for k in slots:
            A(f"v_mov_b32 v{vT+10}, s{70+2*k}"); A(f"v_mov_b32 v{vT+11}, s{71+2*k}")
            A(f"buffer_store_dwordx2 v[{vT+10}:{vT+11}], v{vZERO}, {SWS}, s69 offen offset:{k*8}")
            A("s_nop 1")
        if xcc:
            A("s_getreg_b32 s68, hwreg(HW_REG_XCC_ID)")
            A(f"v_mov_b32 v{vT+10}, s68"); A(f"v_mov_b32 v{vT+11}, 0")
            A(f"buffer_store_dwordx2 v[{vT+10}:{vT+11}], v{vZERO}, {SWS}, s69 offen offset:120")
        if not final: A("s_mov_b64 exec, -1")
    def srd(S, lo, hi, n):
        b = int(S[2:S.index(":")])
        A(f"s_mov_b32 s{b}, {lo}"); A(f"s_mov_b32 s{b+1}, {hi}"); A(f"s_mov_b32 s{b+2}, {n}"); A(f"s_mov_b32 s{b+3}, 0x20000")
    def v4(b): return f"v[{b}:{b+3}]"
    def v2(b): return f"v[{b}:{b+1}]"
    def dpp_red(op, vs, ctls):
        for ctl in ctls:
            for v in vs: A(f"{op}_dpp v{v}, v{v}, v{v} {ctl}")
    QUAD = [f"quad_perm:[1,0,3,2] {DPPF}", f"quad_perm:[2,3,0,1] {DPPF}"]
    BANK = [f"row_ror:4 {DPPF}", f"row_ror:8 {DPPF}"]
    BCAST = ["row_bcast:15 row_mask:0xa bank_mask:0xf", "row_bcast:31 row_mask:0xc bank_mask:0xf"]
    def xrow(op, v, t, which):
        A(f"v_mov_b32 v{t}, v{v}"); A(f"v_permlane{which}_swap_b32 v{v}, v{t}"); A(f"{op} v{v}, v{v}, v{t}")
    def row_red(op, v, t):
        dpp_red(op, [v], BANK); xrow(op, v, t, 16); xrow(op, v, t, 32)
    def wave_red(op, v, t):
        dpp_red(op, [v], QUAD); row_red(op, v, t)
    def rbf(d, s):
        A(f"v_cvt_pk_bf16_f32 v{d}, v{s}, v{s}"); A(f"v_and_b32 v{d}, 0xffff0000, v{d}")
    def rbf2(a, b):
        A(f"v_cvt_pk_bf16_f32 v{b}, v{a}, v{b}"); A(f"v_lshlrev_b32 v{a}, 16, v{b}"); A(f"v_and_b32 v{b}, 0xffff0000, v{b}")
    vLANE16, vZERO, vONE, vTKT, vADDR, vM, vML, vL = 1, 2, 3, 4, 5, 6, 7, 8
    vLANE, vNAT, vBAD = 9, 10, 11
    vQ, vM2, vACC = 12, 16, 20
    vR, vA_, vB_, vC_, vE_ = 24, 28, 29, 30, 31
    vAOP = 32
    vT = 48
    vM1 = 60
    RING = 64
    WT = RING + 48
    WD = WT + 80
    WD2 = WD + 32
    TMP = RING + 32
    ACC2 = RING + 40
    PF = RING + 44
    def publish(b, voff, soff):
        A(f"v_mov_b32 v{b+3}, {sTAG}")
        A(f"buffer_store_dwordx4 {v4(b)}, v{voff}, {SWS}, {soff} offen {spol}")
    def poll(loads, base, D=1, consume=None, ps=None, tags=(3,), back=0):
        n = len(loads)
        L = U("poll"); Lj = U("pjoin"); Ld = [U("pdone") for _ in range(D)]
        def issue(i):
            for idx, (vo, so, imm, em) in enumerate(loads):
                if em is not None: A(f"s_mov_b64 exec, {em}")
                A(f"buffer_load_dwordx4 {v4(base + 4*(i*n + idx))}, v{vo}, {SWS}, {so} offen offset:{imm} {lpol}")
                if em is not None: A("s_mov_b64 exec, -1")
        A(f"s_mov_b32 {sTO}, {1 if abl == 3 else 0x40000}")
        for i in range(D - 1):
            issue(i)
            if SL: A(f"s_sleep {SL}")
        A.label(L)
        if ps is not None and stamps in (3, 5): stamp(ps)
        for i in range(D):
            issue((i + D - 1) % D)
            if D > 1 and SL: A(f"s_sleep {SL}")
            first = True
            for idx in range(n):
                d = base + 4*(i*n + idx)
                A(f"s_waitcnt vmcnt({(D-1)*n + n-1-idx})")
                for tp in tags:
                    if first: A(f"v_xor_b32 v{vBAD}, {sTAG}, v{d+tp}"); first = False
                    else: A(f"v_bitop3_b32 v{vBAD}, v{vBAD}, v{d+tp}, {sTAG} bitop3:0xf6")
            A(f"v_cmp_ne_u32 vcc, 0, v{vBAD}")
            A(f"s_cbranch_vccz {Ld[i]}")
        if back: A(f"s_sleep {back}")
        A(f"s_sub_u32 {sTO}, {sTO}, 1")
        A(f"s_cmp_lg_u32 {sTO}, 0")
        A(f"s_cbranch_scc1 {L}")
        for i in range(D):
            A.label(Ld[i])
            if consume: consume(base + 4*i*n)
            if i < D - 1: A(f"s_branch {Lj}")
        A.label(Lj)
    def spre(sbase, offs):
        if not spoll or abl == 3: return
        R = [40, 41, 42, 43, 44, 45, 46, 47, 14, 15, 28, 29, 60, 61, 66, 67]
        L = U("spoll"); Ld = U("spd")
        A(f"s_add_u32 s68, s30, {sbase}"); A("s_addc_u32 s69, s31, 0")
        A(f"s_mov_b32 {sTO}, 0x40000")
        A.label(L)
        if psl: A(f"s_sleep {psl}")
        for i, o in enumerate(offs): A(f"s_load_dword s{R[i]}, s[68:69], {o + 1020} glc")
        A(f"s_sub_u32 {sTO}, {sTO}, 1"); A(f"s_cmp_eq_u32 {sTO}, 0"); A(f"s_cbranch_scc1 {Ld}")
        A("s_waitcnt lgkmcnt(0)")
        for i, o in enumerate(offs):
            A(f"s_cmp_lg_u32 s{R[i]}, {sTAG}"); A(f"s_cbranch_scc1 {L}")
        A.label(Ld)
        A("s_waitcnt lgkmcnt(0)")
    def flagwait(soff, n):
        L = U("fw"); Ld = U("fwd")
        A(f"v_min_u32 v{vBAD}, {n-1}, v{vLANE}"); A(f"v_lshlrev_b32 v{vBAD}, 7, v{vBAD}")
        A(f"s_mov_b32 {sTO}, 0x40000")
        A.label(L)
        A(f"buffer_load_dword v{RING}, v{vBAD}, {SWS}, {soff} offen sc1")
        A(f"s_sub_u32 {sTO}, {sTO}, 1"); A(f"s_cmp_eq_u32 {sTO}, 0"); A(f"s_cbranch_scc1 {Ld}")
        A("s_waitcnt vmcnt(0)")
        A(f"v_cmp_ne_u32 vcc, {sTAG}, v{RING}")
        A(f"s_cbranch_vccnz {L}")
        A.label(Ld)
    def sum2(bases, dst=None):
        bs = list(bases)
        while len(bs) > 1:
            nb = []
            for i in range(0, len(bs) - 1, 2):
                d = dst if (dst is not None and len(bs) == 2) else bs[i]
                A(f"v_pk_add_f32 {v2(d)}, {v2(bs[i])}, {v2(bs[i+1])}"); nb.append(d)
            if len(bs) % 2: nb.append(bs[-1])
            bs = nb
    def gemv(acc, mask, items, acc2=None, w2=None):
        def mf(n):
            (x0, c0, w0, wc0) = items[n]
            if wc0 is not None: A(f"s_waitcnt vmcnt({wc0})")
            A(f"v_mfma_f32_16x16x32_bf16 {v4(acc)}, {v4(vAOP + 4*(n % 4))}, {v4(w0)}, {'0' if n == 0 else v4(acc)}")
            if acc2 is not None:
                A(f"v_mfma_f32_16x16x32_bf16 {v4(acc2)}, {v4(vAOP + 4*(n % 4))}, {v4(w2+4*n)}, {'0' if n == 0 else v4(acc2)}")
        for n, (x, ctl, w, wc) in enumerate(items):
            a = vAOP + 4 * (n % 4)
            for t in range(4): A(f"v_and_b32_dpp v{a+t}, v{x}, v{mask+t} {ctl} {DPPF}")
            if n >= 1: mf(n-1)
        mf(len(items) - 1)
    def ysplit(xs, y):
        for i, x in enumerate(xs): A(f"v_mov_b32 v{y+2*i}, v{x}"); A(f"v_mov_b32 v{y+2*i+1}, v{x}")
        for i, x in enumerate(xs):
            A(f"v_mov_b32_dpp v{y+2*i}, v{x} row_shr:4 row_mask:0xf bank_mask:0xa")
            A(f"v_mov_b32_dpp v{y+2*i+1}, v{x} row_shl:4 row_mask:0xf bank_mask:0x5")
    qp = lambda k: f"quad_perm:[{k},{k},{k},{k}]"
    def silu(x, t):
        A(f"v_mul_f32 v{t}, {fh(-LOG2E)}, v{x}"); A(f"v_exp_f32 v{t}, v{t}")
        A(f"v_add_f32 v{t}, 1.0, v{t}"); A(f"v_rcp_f32 v{t}, v{t}"); A(f"v_mul_f32 v{x}, v{x}, v{t}")
    def acc_addr(d):
        A(f"v_and_b32 v{d}, 7, v{vLANE}"); A(f"v_lshlrev_b32 v{d}, 5, v{d}")
        A(f"v_and_b32 v{vT+11}, 16, v{vLANE}"); A(f"v_add_u32 v{d}, v{d}, v{vT+11}")
        A(f"v_lshrrev_b32 v{vT+11}, 5, v{vLANE}"); A(f"v_lshl_add_u32 v{d}, v{vT+11}, 8, v{d}")
        A(f"s_lshl_b32 s68, {sWAVE}, 9"); A(f"v_add_u32 v{d}, s68, v{d}")
    def acc_write(d):
        A("s_mov_b32 exec_lo, 0x00ff00ff"); A("s_mov_b32 exec_hi, 0xff00ff00")
        A(f"ds_write_b128 v{d}, {v4(vACC)} offset:{L_ACC}")
        A("s_mov_b64 exec, -1")
    def mod_loads(scb, srb):
        wb = RING
        srd(SA, "s24", "s25", 640*7680); srd(SB, "s22", "s23", 1280)
        A(f"v_lshrrev_b32 v{vT}, 4, v{vLANE}"); A(f"v_mul_u32_u24 v{vT}, 20, v{vT}")
        A(f"v_and_b32 v{vT+1}, 15, v{vLANE}"); A(f"v_add_u32 v{vT+2}, v{vT}, v{vT+1}"); A(f"v_lshlrev_b32 v{vT+2}, 1, v{vT+2}")
        A(f"v_and_b32 v{vT+3}, 3, v{vLANE}"); A(f"v_add_u32 v{vT+3}, v{vT}, v{vT+3}"); A(f"v_lshlrev_b32 v{vT+3}, 1, v{vT+3}")
        A(f"s_mul_i32 s69, {srb}, 160")
        A(f"buffer_load_ushort v{vR}, v{vT+2}, {SB}, s69 offen")
        A(f"buffer_load_ushort v{vR+1}, v{vT+3}, {SB}, s69 offen offset:32")
        A(f"v_mul_u32_u24 v{vT}, 7680, v{vT}"); A(f"v_lshl_add_u32 v{vT}, v{vT+1}, 4, v{vT}")
        A(f"s_mul_i32 s69, {srb}, {80*7680}"); A(f"s_lshl_b32 s68, {scb}, 8"); A("s_add_u32 s69, s69, s68")
        for t in range(20):
            A(f"s_add_u32 s68, s69, {t*7680}")
            A(f"buffer_load_dwordx4 {v4(wb+4*t)}, v{vT}, {SA}, s68 offen {pol}")
    def mod_compute(scb, srb):
        wb = RING
        A("s_waitcnt vmcnt(20)")
        for k in (0, 1):
            A(f"v_lshlrev_b32 v{vR+k}, 16, v{vR+k}"); silu(vR+k, vR+2); A(f"v_cvt_pk_bf16_f32 v{vR+k}, v{vR+k}, v{vR+k}")
        gemv(vACC, vM2, [(vR if t < 16 else vR+1, f"row_newbcast:{t % 16}", wb+4*t, 19-t) for t in range(20)])
        A(f"s_lshl_b32 s68, {scb}, 3"); A(f"s_add_u32 s68, s68, {srb}"); A("s_lshl_b32 s68, s68, 10"); A(f"s_add_u32 s68, s68, {WS_MODP}")
        publish(vACC, vNAT, "s68")
    def common_setup():
        A(f"s_load_dword {sTAG}, s[30:31], 0")
        srd(SWS, "s30", "s31", WS_END)
        A(f"v_and_b32 v{vT}, 1, v{vLANE}"); A(f"v_lshlrev_b32 v{vT}, 4, v{vT}"); A(f"v_mov_b32 v{vT+1}, 0xffff"); A(f"v_lshlrev_b32 v{vT}, v{vT}, v{vT+1}")
        A(f"v_bfe_u32 v{vT+1}, v{vLANE}, 1, 2")
        A(f"v_bfe_u32 v{vT+2}, v{vLANE}, 1, 3")
        for t in range(4):
            A(f"v_cmp_eq_u32 vcc, {t}, v{vT+1}"); A(f"v_cndmask_b32 v{vM1+t}, 0, v{vT}, vcc")
            A(f"v_cmp_eq_u32 vcc, {2*t}, v{vT+2}"); A(f"v_cndmask_b32 v{vM2+t}, 0, v{vT}, vcc")
        A(f"v_and_b32 v{vT}, 15, v{vLANE}"); A(f"v_lshlrev_b32 v{vT}, 6, v{vT}"); A(f"v_and_b32 v{vT+1}, 48, v{vLANE}"); A(f"v_add_u32 v{vNAT}, v{vT}, v{vT+1}")
    def tag_finish():
        A("s_waitcnt lgkmcnt(0)")
        A(f"s_add_u32 {sTAG}, {sTAG}, 0x01010101")
    def late_loads(lbl, ffn=True, wo=True):
        Lw, Ld = U("lwo"), U("ldone")
        A(f"s_cmp_lt_u32 {sK}, 10"); A(f"s_cbranch_scc1 {Lw if wo else Ld}")
        if ffn and not (now & 1): ffn_late(Ld)
        A(f"s_branch {Ld}")
        A.label(Lw)
        if wo and not (now & 2): wo_late()
        A.label(Ld)
    def ffn_late(Ld):
        A(f"s_cmp_ge_u32 {sF}, 54"); A(f"s_cbranch_scc1 {Ld}")
        A(f"s_cmp_gt_u32 {sWAVE}, 3"); A(f"s_cbranch_scc1 {Ld}")
        if late_gu:
            A(f"v_and_b32 v{vT+2}, 4, v{vLANE}"); A(f"v_cmp_eq_u32 vcc, 0, v{vT+2}")
            A(f"v_mov_b32 v{vT+2}, s18"); A(f"v_mov_b32 v{vT+3}, s16"); A(f"v_cndmask_b32 v{vT+6}, v{vT+2}, v{vT+3}, vcc")
            A(f"v_mov_b32 v{vT+2}, s19"); A(f"v_mov_b32 v{vT+3}, s17"); A(f"v_cndmask_b32 v{vT+7}, v{vT+2}, v{vT+3}, vcc")
            A(f"s_mul_i32 s69, {sWAVE}, {160*3456}"); A(f"s_lshl_b32 s68, {sF}, 6"); A("s_add_u32 s69, s69, s68")
            A(f"v_and_b32 v{vT+4}, 3, v{vLANE}"); A(f"v_lshl_add_u32 v{vT+4}, v{vT+4}, 4, s69")
            A(f"v_lshrrev_b32 v{vT+5}, 3, v{vLANE}")
            for (mul, add, rows) in ((16*3456, 0, [(k, y) for k in range(4) for y in range(4)]), (4*3456, 128*3456, [(k, 4) for k in range(4)])):
                A(f"v_mul_u32_u24 v{vT+1}, {mul}, v{vT+5}"); A(f"v_add_u32 v{vT+1}, v{vT+1}, v{vT+4}")
                if add: A(f"v_add_u32 v{vT+1}, {add}, v{vT+1}")
                A(f"v_add_co_u32 v{vT+2}, vcc, v{vT+6}, v{vT+1}"); A(f"v_addc_co_u32 v{vT+3}, vcc, 0, v{vT+7}, vcc")
                for i, (k, y) in enumerate(rows):
                    A(f"global_load_dwordx4 {v4(WT+4*(y*4+k))}, {v2(vT+2)}, off offset:{(i%2)*3456} {gpol}")
                    if LTH < 63: A(f"s_waitcnt vmcnt({LTH})")
                    if i % 2 == 1 and i < len(rows) - 1:
                        A(f"v_add_co_u32 v{vT+2}, vcc, {2*3456}, v{vT+2}"); A(f"v_addc_co_u32 v{vT+3}, vcc, 0, v{vT+3}, vcc")
        if late_dn:
            srd(SA, "s20", "s21", 1728*1280)
            A(f"v_lshrrev_b32 v{vT+1}, 4, v{vLANE}"); A(f"v_mul_u32_u24 v{vT+1}, {8*1280}, v{vT+1}")
            A(f"v_and_b32 v{vT+2}, 15, v{vLANE}"); A(f"v_lshl_add_u32 v{vT+1}, v{vT+2}, 4, v{vT+1}")
            A(f"s_mul_i32 s69, {sF}, {32*1280}"); A(f"s_lshl_b32 s68, {sWAVE}, 8"); A("s_add_u32 s69, s69, s68")
            for t in range(8):
                if t % 2 == 0: A(f"s_add_u32 s68, s69, {t*1280}")
                A(f"buffer_load_dwordx4 {v4(WD+4*t)}, v{vT+1}, {SA}, s68 offen offset:{(t%2)*1280} {wpol}")
            A(f"s_cmp_lg_u32 {sWAVE}, 1"); A(f"s_cbranch_scc1 {Ld}")
            for t in range(8):
                if t % 2 == 0: A(f"s_add_u32 s68, s69, {t*1280}")
                A(f"buffer_load_dwordx4 {v4(WD2+4*t)}, v{vT+1}, {SA}, s68 offen offset:{(t%2)*1280 + 768} {wpol}")
    def wo_late():
        if late_wo:
            srd(SA, "s12", "s13", 4096*1280)
            A(f"v_bfe_u32 v{vT+1}, v{vLANE}, 4, 1"); A(f"v_lshlrev_b32 v{vT+1}, 5, v{vT+1}")
            A(f"v_lshrrev_b32 v{vT+2}, 5, v{vLANE}"); A(f"v_add_u32 v{vT+1}, v{vT+1}, v{vT+2}")
            A(f"v_bfe_u32 v{vT+2}, v{vLANE}, 3, 1"); A(f"v_lshl_add_u32 v{vT+1}, v{vT+2}, 4, v{vT+1}")
            A(f"v_mul_u32_u24 v{vT+1}, 1280, v{vT+1}")
            A(f"v_and_b32 v{vT+2}, 7, v{vLANE}"); A(f"v_lshl_add_u32 v{vT+1}, v{vT+2}, 4, v{vT+1}")
            A(f"s_lshr_b32 s68, {sWAVE}, 1"); A("s_lshl_b32 s68, s68, 3"); A(f"s_add_u32 s68, s68, {sG}"); A("s_lshl_b32 s68, s68, 1")
            A(f"s_and_b32 s69, {sWAVE}, 1"); A("s_add_u32 s68, s68, s69"); A(f"s_mul_i32 s69, s68, {64*1280}")
            A(f"s_lshl_b32 s68, {sK}, 7"); A("s_add_u32 s69, s69, s68")
            for n in range(8):
                if n % 2 == 0: A(f"s_add_u32 s68, s69, {2*n*1280}")
                A(f"buffer_load_dwordx4 {v4(WT+4*n)}, v{vT+1}, {SA}, s68 offen offset:{(n%2)*2560} {wpol}")
        if wo_pre: wo_prep()
    def wo_prep():
        A(f"v_lshrrev_b32 v{vT+4}, 5, v{vLANE}"); A(f"v_lshlrev_b32 v{vT+4}, 10, v{vT+4}")
        A(f"v_and_b32 v{vT+6}, 31, v{vLANE}"); A(f"v_lshl_add_u32 v{vT+4}, v{vT+6}, 4, v{vT+4}")
        A(f"s_lshr_b32 s4, {sWAVE}, 1"); A("s_lshl_b32 s4, s4, 3"); A(f"s_add_u32 s4, s4, {sG}"); A("s_lshl_b32 s4, s4, 13")
        A(f"s_and_b32 s5, {sWAVE}, 1"); A("s_lshl_b32 s5, s5, 9"); A("s_add_u32 s4, s4, s5"); A(f"s_add_u32 s4, s4, {WS_OP}"); A("s_add_u32 s5, s4, 4096")
        A(f"v_bfe_u32 v{vT}, v{vLANE}, 4, 1"); A(f"v_lshlrev_b32 v{vT}, 5, v{vT}")
        A(f"v_lshrrev_b32 v{vT+1}, 5, v{vLANE}"); A(f"v_add_u32 v{vT}, v{vT}, v{vT+1}")
        A(f"v_bfe_u32 v{vT+1}, v{vLANE}, 3, 1"); A(f"v_lshl_add_u32 v{vT}, v{vT+1}, 4, v{vT}")
        A(f"v_lshlrev_b32 v{vT}, 7, v{vT}")
        A(f"v_and_b32 v{vT+1}, 7, v{vLANE}"); A(f"v_lshl_add_u32 v{vT}, v{vT+1}, 4, v{vT}")
        A(f"s_lshl_b32 s68, {sWAVE}, 13"); A(f"v_add_u32 v{vT}, s68, v{vT}")
        if not late_wo:
            for n in range(8): A(f"ds_read_b128 {v4(WT+4*n)}, v{vT} offset:{L_W + 2*n*128}")
        acc_addr(vT+5)
        A(f"v_lshrrev_b32 v{vT+7}, 5, v{vLANE}"); A(f"v_lshlrev_b32 v{vT+7}, 11, v{vT+7}"); A(f"v_lshl_add_u32 v{vT+7}, v{vT+6}, 3, v{vT+7}")
        A(f"v_lshlrev_b32 v{vT+8}, 3, v{vLANE}")
        if rep:
            A(f"v_lshrrev_b32 v{vT+8}, 5, v{vLANE}"); A(f"v_mul_u32_u24 v{vT+8}, 20480, v{vT+8}"); A(f"v_lshl_add_u32 v{vT+8}, v{vT+6}, 3, v{vT+8}")
        A(f"s_mul_i32 s6, {sG}, 2560"); A(f"s_lshl_b32 s7, {sK}, 8"); A("s_add_u32 s6, s6, s7"); A(f"s_add_u32 s6, s6, {WS_YP}")
        if rep:
            for c in range(1, 4): A(f"s_add_u32 s{12+c}, s6, {c*40960}")
    def dma_loop(voff, soff, step, count, pol):
        L = U("dma")
        A(f"s_mov_b32 s69, {count}")
        A.label(L)
        A(f"buffer_load_dwordx4 v{voff}, {SA}, {soff} offen {pol} lds")
        A(f"s_add_u32 {soff}, {soff}, {step}"); A("s_add_u32 m0, m0, 0x400")
        A(f"s_waitcnt vmcnt({DMAD-1})")
        A("s_sub_u32 s69, s69, 1"); A("s_cmp_lg_u32 s69, 0"); A(f"s_cbranch_scc1 {L}")

    A(f"; @launch grid=(256,1,1) block=(512,1,1) lds={L_W if (late_wo and late_gu and late_dn) else L_END}")
    A('.amdgcn_target "amdgcn-amd-amdhsa--gfx950"')
    A(".text"); A(f".globl {KN}"); A(".p2align 8"); A(f".type {KN},@function"); A.label(KN)
    stamp(0)
    if diag_hold: A("s_memrealtime s[96:97]")
    A("s_cmp_ge_u32 s2, 256"); A("s_cbranch_scc1 L_end")
    A("s_load_dwordx16 s[4:19], s[0:1], 0")
    A("s_load_dwordx8 s[20:27], s[0:1], 64")
    A("s_load_dwordx4 s[28:31], s[0:1], 96")
    A("v_lshrrev_b32 v1, 6, v0"); A(f"v_and_b32 v{vLANE}, 63, v0")
    A(f"v_readfirstlane_b32 {sWAVE}, v1")
    A(f"v_lshlrev_b32 v{vLANE16}, 4, v{vLANE}")
    A(f"s_lshr_b32 {sHD}, s2, 3"); A(f"s_and_b32 {sG}, s2, 7"); A(f"s_lshl_b32 {sK}, {sG}, 2"); A(f"s_add_u32 {sK}, {sK}, {sHD}"); A(f"s_and_b32 {sK}, {sK}, 31"); A(f"s_lshr_b32 {sS}, {sK}, 2")
    A(f"s_mov_b32 {sL2E}, {fh(LOG2E)}"); A(f"s_mov_b32 {sSC}, {fh(SCALE)}")
    A(f"s_sub_u32 s68, {sK}, 10"); A(f"s_mul_i32 {sF}, {sG}, 7"); A(f"s_add_u32 {sF}, {sF}, s68")
    A("s_cmp_lt_u32 s68, 7"); A(f"s_cselect_b32 {sF}, {sF}, 63")
    A(f"v_mov_b32 v{vZERO}, 0"); A(f"v_mov_b32 v{vONE}, 1")
    A(f"s_cmp_eq_u32 {sWAVE}, 0"); A("s_cbranch_scc1 L_ctrl0")
    extra = [(e_wq if (k < 5 or k >= 17) else e_mod if k < 15 else 0.0) + (e_wo if k < 10 else e_ffn if k < 17 else 0.0) for k in range(32)]
    nst = [int(NS - e) for e in extra]
    assert min(nst) >= 7*(1+2*NE)
    B = []
    for a in range(4):
        b = [0]
        for sp in range(8): b.append(b[-1] + nst[a + 4*sp])
        B.append(b)
    DYN0 = [b[8] for b in B]
    def pack(b): return sum(((NS*(sp+1) - b[sp+1]) & 0xff) << (8*sp) for sp in range(8))
    for b in B: assert NS*8 - b[8] < 256
    P = [pack(b) for b in B]
    A(f"s_mov_b32 s38, {hex(P[0] & 0xffffffff)}"); A(f"s_mov_b32 s39, {hex(P[0] >> 32)}")
    A(f"s_and_b32 s68, {sK}, 3")
    for a in range(1, 4):
        if P[a] != P[0]:
            A(f"s_cmp_eq_u32 s68, {a}"); A(f"s_cselect_b32 s38, {hex(P[a] & 0xffffffff)}, s38"); A(f"s_cselect_b32 s39, {hex(P[a] >> 32)}, s39")
    A(f"s_lshl_b32 s68, {sS}, 3")
    A("s_lshr_b64 s[66:67], s[38:39], s68"); A("s_and_b32 s66, s66, 0xff")
    A("s_lshl_b64 s[38:39], s[38:39], 8")
    A("s_lshr_b64 s[38:39], s[38:39], s68"); A("s_and_b32 s38, s38, 0xff")
    A(f"s_sub_u32 {sNT}, s38, s66"); A(f"s_add_u32 {sNT}, {sNT}, {NS}")
    A(f"s_mul_i32 {sROT}, {sHD}, {ROT}")
    A(f"s_mul_i32 {sST}, {sS}, {NS}"); A(f"s_sub_u32 {sST}, {sST}, s38"); A(f"s_add_u32 {sST}, {sST}, {sROT}")
    A(f"s_lshl_b32 s68, {sHD}, 22")
    def tile_addr(sreg, add):
        A(f"s_add_u32 s69, {sreg}, {add}"); A("s_and_b32 s69, s69, 1023"); A("s_lshl_b32 s69, s69, 12")
        A(f"v_add_u32 v{vADDR}, s69, v{vLANE16}")
    A(f"s_add_u32 s67, {sST}, {sWAVE}"); A("s_sub_u32 s67, s67, 1")
    tile_addr("s67", 0)
    A(f"s_lshl_b32 {sCNT}, {sHD}, 8"); A(f"s_add_u32 {sCNT}, {sCNT}, {WS_CNT}")
    A(f"s_mov_b32 {sQ}, 1024"); A(f"s_cmp_lt_u32 {sF}, 54"); A(f"s_cselect_b32 {sQ}, {Q_ffn}, {sQ}"); A(f"s_cmp_lt_u32 {sK}, 10"); A(f"s_cselect_b32 {sQ}, {Q_wo}, {sQ}")
    A("s_waitcnt lgkmcnt(0)")
    A("s_add_u32 s40, s6, s68"); A("s_addc_u32 s41, s7, 0"); A("s_mov_b32 s42, 0x400000"); A("s_mov_b32 s43, 0x20000")
    A("s_add_u32 s44, s8, s68"); A("s_addc_u32 s45, s9, 0"); A("s_mov_b32 s46, 0x400000"); A("s_mov_b32 s47, 0x20000")
    def loadK(slot):
        for u in range(4): A(f"buffer_load_dwordx4 {v4(RING+32*slot+4*u)}, v{vADDR}, {SK}, 0 offen offset:{u*1024} {pol}")
    def loadV(slot):
        for u in range(4): A(f"buffer_load_dwordx4 {v4(RING+32*slot+16+4*u)}, v{vADDR}, {SV}, 0 offen offset:{u*1024} {pol}")
    loadK(1)
    common_setup(); tag_finish()
    A(f"v_mov_b32 v{vM}, {fh(-1e30)}"); A(f"v_mov_b32 v{vML}, {fh(-1e30)}"); A(f"v_mov_b32 v{vL}, 0")
    for r in range(4): A(f"v_mov_b32 v{vACC+r}, 0")
    A("s_barrier")
    A(f"s_waitcnt vmcnt({TH0})")
    if stamps == 4: stamp(1)
    loadV(1)
    for i, k in enumerate(list(range(2, 1 + NE)) + [0]):
        tile_addr("s67", 7*(i+1))
        A(f"s_waitcnt vmcnt({TH})"); loadK(k)
        if k: A(f"s_waitcnt vmcnt({TH})"); loadV(k)
    if stamps == 4: stamp(2)
    if stamps and stamps < 3:
        A(f"s_cmp_lg_u32 {sWAVE}, 1"); A("s_cbranch_scc1 L_ns14")
        stamp(14); stamp_dump([14], final=False)
        A.label("L_ns14")
    A(f"v_and_b32 v{vT}, 15, v{vLANE}"); A(f"v_lshlrev_b32 v{vT}, 4, v{vT}")
    A(f"s_mov_b32 {sTO}, 0x400000")
    A.label("L_qwait")
    A(f"ds_read_b32 v{vT+1}, v{vZERO} offset:{L_FLAG}")
    A(f"s_sub_u32 {sTO}, {sTO}, 1"); A(f"s_cmp_eq_u32 {sTO}, 0"); A("s_cbranch_scc1 L_qgo")
    A("s_waitcnt lgkmcnt(0)")
    A(f"v_cmp_eq_u32 vcc, 0, v{vT+1}")
    A("s_cbranch_vccnz L_qwait")
    A.label("L_qgo")
    A(f"ds_read_b128 {v4(vQ)}, v{vT} offset:{L_Q}")
    def req_ticket():
        A("s_mov_b64 exec, 1"); A(f"ds_add_rtn_u32 v{vTKT}, v{vZERO}, v{vONE} offset:{L_TICKET}"); A("s_mov_b64 exec, -1")
    rescue = []
    def qk(slot):
        kb = RING + 32*slot
        for t in range(4):
            for u in range(4):
                if t == 0: A(f"v_dot2_f32_bf16 v{vR+u}, v{kb+4*u}, v{vQ}, 0")
                else: A(f"v_dot2c_f32_bf16 v{vR+u}, v{kb+4*u+t}, v{vQ+t}")
        A(f"v_add_f32_dpp v{vA_}, v{vR}, v{vR} row_ror:8 row_mask:0xf bank_mask:0x3")
        A(f"v_add_f32_dpp v{vB_}, v{vR+2}, v{vR+2} row_ror:8 row_mask:0xf bank_mask:0x3")
        A(f"v_add_f32_dpp v{vA_}, v{vR+1}, v{vR+1} row_ror:8 row_mask:0xf bank_mask:0xc")
        A(f"v_add_f32_dpp v{vB_}, v{vR+3}, v{vR+3} row_ror:8 row_mask:0xf bank_mask:0xc")
        A(f"v_add_f32_dpp v{vC_}, v{vA_}, v{vA_} row_shl:4 row_mask:0xf bank_mask:0x5")
        A(f"v_add_f32_dpp v{vC_}, v{vB_}, v{vB_} row_shr:4 row_mask:0xf bank_mask:0xa")
        dpp_red("v_add_f32", [vC_], QUAD)
        rbf(vC_, vC_)
        A(f"v_mul_f32 v{vC_}, {sSC}, v{vC_}")
        rbf(vC_, vC_)
        Lr, Lb = U("resc"), U("back")
        A(f"v_cmp_gt_f32 vcc, v{vC_}, v{vM}")
        A(f"s_cbranch_vccnz {Lr}")
        A.label(Lb)
        rescue.append((Lr, Lb))
        A(f"v_fma_f32 v{vE_}, v{vC_}, {sL2E}, -v{vML}")
        A(f"v_exp_f32 v{vE_}, v{vE_}")
        A(f"v_add_f32 v{vL}, v{vL}, v{vE_}")
        A(f"v_cvt_pk_bf16_f32 v{vE_}, v{vE_}, v{vE_}")
        lane_of = [0, 8, 4, 12]
        for u in range(4):
            for t in range(4): A(f"v_and_b32_dpp v{vAOP+4*u+t}, v{vE_}, v{vM2+t} row_newbcast:{lane_of[u]} {DPPF}")
    def pv(slot):
        vb = RING + 32*slot + 16
        for u in range(4):
            A(f"v_mfma_f32_16x16x32_bf16 {v4(vACC)}, {v4(vAOP+4*u)}, {v4(vb+4*u)}, {v4(vACC)}")
    A("s_waitcnt lgkmcnt(0)")
    for k in range(1, 1 + NE):
        A("s_waitcnt vmcnt(0)")
        loadV(0)
        tile_addr("s67", 7*(NE+k))
        qk(0)
        A("s_waitcnt vmcnt(0)")
        loadK(0)
        pv(0)
        qk(k); pv(k)
    if NWS < 7:
        A(f"s_cmp_gt_u32 {sWAVE}, {NWS}"); A("s_cbranch_scc1 L_quit")
    if early_w:
        for w in early_w:
            A(f"s_cmp_eq_u32 {sWAVE}, {w}"); A("s_cbranch_scc1 L_ew")
        A("s_branch L_ewd")
        A.label("L_ew")
        late_loads("e", wo=False)
        A.label("L_ewd")
    if stamps == 4: stamp(3)
    req_ticket()
    A.label("L_loop")
    A("s_waitcnt vmcnt(0) lgkmcnt(0)")
    loadV(0)
    A(f"v_readfirstlane_b32 {sTK}, v{vTKT}")
    if stamps == 4: stamp(4)
    A(f"s_cmp_ge_u32 {sTK}, {sNT}"); A("s_cbranch_scc1 L_dyn_in")
    req_ticket()
    tile_addr(sTK, sST)
    qk(0)
    A("s_waitcnt vmcnt(0)")
    loadK(0)
    pv(0)
    A("s_branch L_loop")
    A.label("L_dyn")
    if XD:
        A(f"s_cmp_ge_u32 {sTK}, {1024 - XD}"); A("s_cbranch_scc1 L_deep")
    A("s_waitcnt vmcnt(0)")
    A.label("L_deep")
    loadV(0)
    A.label("L_dyn_in")
    A("s_mov_b64 exec, 1"); A(f"v_mov_b32 v{vTKT}, 1")
    A(f"buffer_atomic_add v{vTKT}, v{vZERO}, {SWS}, {sCNT} offen sc0 sc1")
    A("s_mov_b64 exec, -1")
    if XD: A("s_waitcnt vmcnt(5)")
    qk(0)
    A("s_waitcnt vmcnt(0)")
    A(f"v_readfirstlane_b32 {sTK}, v{vTKT}")
    A(f"s_cmp_ge_u32 {sTK}, 1024"); A("s_cbranch_scc1 L_last")
    tile_addr(sTK, sROT)
    loadK(0)
    pv(0)
    A(f"s_cmp_lt_u32 {sTK}, {sQ}"); A("s_cbranch_scc1 L_dyn")
    A.label("L_quit")
    if WSTEP: A(f".warm_begin L_w1 {WSTEP}")
    if XD: loadV(0); A("s_waitcnt vmcnt(4)")
    else: A("s_waitcnt vmcnt(0)"); loadV(0)
    qk(0); A("s_waitcnt vmcnt(0)")
    A.label("L_last")
    if pf:
        A("s_mov_b64 exec, 1"); A(f"ds_add_rtn_u32 v{vTKT}, v{vZERO}, v{vONE} offset:{L_RANK}"); A("s_mov_b64 exec, -1")
    pv(0)
    row_red("v_add_f32", vL, vA_)
    A(f"s_lshl_b32 s69, {sWAVE}, 10"); A(f"v_add_u32 v{vT}, s69, v{vNAT}")
    A(f"v_mov_b32 v{vACC+2}, v{vML}"); A(f"v_mov_b32 v{vACC+3}, v{vL}")
    A(f"ds_write_b128 v{vT}, {v4(vACC)} offset:{L_PART-1024}")
    A("s_waitcnt lgkmcnt(0)")
    if pf and late_wo:
      if oldpf:
        per = 20 // NR
        A(f"v_readfirstlane_b32 s66, v{vTKT}")
        A(f"s_sub_u32 s66, s66, {7 - NWS}")
        A(f"s_cmp_ge_u32 s66, {NR}"); A("s_cbranch_scc1 L_pfdone")
        srd(SA, "s12", "s13", 4096*1280)
        A(f"s_and_b32 s68, {sHD}, 24"); A(f"s_add_u32 s68, s68, {sG}"); A(f"s_mul_i32 s68, s68, {128*1280}")
        A(f"s_and_b32 s69, {sHD}, 7"); A(f"s_mul_i32 s69, s69, {20*1024}"); A("s_add_u32 s68, s68, s69")
        A(f"s_mul_i32 s69, s66, {per*1024}"); A("s_add_u32 s68, s68, s69")
        for n in range(per):
            if n and n % 4 == 0: A("s_add_u32 s68, s68, 4096")
            A(f"buffer_load_dwordx4 {v4(PF)}, v{vLANE16}, {SA}, s68 offen offset:{(n%4)*1024} {pfpol}")
      else:
        assert NWS == 6
        A(f"v_readfirstlane_b32 s66, v{vTKT}")
        A(f"s_sub_u32 s66, s66, {1 + R0}")
        A(f"s_cmp_ge_u32 s66, 3"); A("s_cbranch_scc1 L_pfdone")
        srd(SA, "s12", "s13", 4096*1280)
        A(f"s_mul_i32 s68, {sHD}, 3"); A("s_add_u32 s66, s66, s68")
        A("s_lshr_b32 s68, s66, 4"); A("s_add_u32 s68, s68, 1")
        A("s_and_b32 s69, s68, 1"); A("s_lshr_b32 s68, s68, 1"); A("s_lshl_b32 s68, s68, 3"); A(f"s_add_u32 s68, s68, {sG}")
        A("s_lshl_b32 s68, s68, 1"); A("s_add_u32 s68, s68, s69"); A(f"s_mul_i32 s68, s68, {80*1024}")
        A("s_and_b32 s69, s66, 15"); A(f"s_mul_i32 s69, s69, {5*1024}"); A("s_add_u32 s68, s68, s69")
        for n in range(5):
            if n and n % 4 == 0: A("s_add_u32 s68, s68, 4096")
            A(f"buffer_load_dwordx4 {v4(PF)}, v{vLANE16}, {SA}, s68 offen offset:{(n%4)*1024} {pfpol}")
      A.label("L_pfdone")
    if wo_pre: late_loads("p", ffn=False)
    if stamps == 4:
        A(f"s_cmp_lg_u32 {sWAVE}, 1"); A("s_cbranch_scc1 L_ns4")
        stamp(5); stamp_dump([1, 2, 3, 4, 5], final=False)
        A.label("L_ns4")
    A("s_barrier")
    if abl: A("s_endpgm"); A.label("L_abl_dead")
    if bar3: A("s_barrier")
    if pf2:
        A(f"s_cmp_lt_u32 {sK}, 17"); A("s_cbranch_scc1 L_pf2done")
        A(f"s_sub_u32 s66, {sK}, 17"); A("s_mul_i32 s66, s66, 7"); A(f"s_add_u32 s66, s66, {sWAVE}"); A("s_sub_u32 s66, s66, 1")
        row0 = 160 * (1 + len(early_w)); npair = (640 - row0) // 160
        A("s_cmp_ge_u32 s66, 80"); A("s_cbranch_scc1 L_pf2dn")
        srd(SA, "s16", "s17", 640*3456); srd(SB, "s18", "s19", 640*3456)
        A(f"v_lshrrev_b32 v{vT+1}, 5, v{vLANE}"); A(f"v_mul_u32_u24 v{vT+1}, 3456, v{vT+1}")
        A(f"v_and_b32 v{vT+2}, 31, v{vLANE}"); A(f"v_lshl_add_u32 v{vT+1}, v{vT+2}, 4, v{vT+1}")
        A(f"s_mul_i32 s68, {sG}, 7"); A("s_lshr_b32 s68, s68, 1"); A("s_min_u32 s68, s68, 23"); A("s_lshl_b32 s68, s68, 7")
        A(f"s_mul_i32 s69, s66, {2*npair*3456}"); A("s_add_u32 s68, s68, s69"); A(f"s_add_u32 s68, s68, {row0*3456}")
        for n in range(npair):
            A(f"buffer_load_dwordx4 {v4(PF)}, v{vT+1}, {SA}, s68 offen {pfpol}")
            if PFTH < 63: A(f"s_waitcnt vmcnt({PFTH})")
            A(f"buffer_load_dwordx4 {v4(PF)}, v{vT+1}, {SB}, s68 offen {pfpol}")
            if PFTH < 63: A(f"s_waitcnt vmcnt({PFTH})")
            if n < npair - 1: A(f"s_add_u32 s68, s68, {2*3456}")
        A("s_waitcnt vmcnt(0)")
        A("s_endpgm")
        A.label("L_pf2dn")
        srd(SA, "s20", "s21", 1728*1280)
        A(f"s_mul_i32 s68, {sG}, {7*40960}"); A("s_sub_u32 s69, s66, 80"); A(f"s_mul_i32 s69, s69, {11520}"); A("s_add_u32 s68, s68, s69")
        A(f"v_add_u32 v{vT+1}, s68, v{vLANE16}")
        for n in range(12):
            if n and n % 4 == 0: A(f"v_add_u32 v{vT+1}, 0x1000, v{vT+1}")
            A(f"buffer_load_dwordx4 {v4(PF)}, v{vT+1}, {SA}, 0 offen offset:{(n%4)*1024} {pfpol}")
            if PFTH < 63: A(f"s_waitcnt vmcnt({PFTH+1})")
        A("s_waitcnt vmcnt(0)")
        A("s_endpgm")
        A.label("L_pf2done")
    if early_w:
        A(f"s_cmp_lt_u32 {sK}, 10"); A("s_cbranch_scc1 L_lb")
        for w in early_w:
            A(f"s_cmp_eq_u32 {sWAVE}, {w}"); A("s_cbranch_scc1 L_tail")
        A.label("L_lb")
    late_loads("a", wo=not wo_pre)
    A.label("L_tail")
    A(f"s_cmp_lt_u32 {sK}, 10"); A("s_cbranch_scc1 L_wo")
    A(f"s_cmp_ge_u32 {sF}, 54"); A("s_cbranch_scc1 L_exit")
    X0, GA = 24, 26
    C1, SBv = 12, 6
    CC = [12, 13, 14, 15, 28]; SS = [RING+36, RING+37, RING+38, RING+39, 29]
    SEL0, SEL1, GB = 30, 31, 6
    A(f"s_mov_b32 s22, {WS_MR}")
    A(f"s_cmp_gt_u32 {sWAVE}, 3"); A("s_cbranch_scc1 L_gprep")
    A(f"v_lshrrev_b32 v{vT}, 3, v{vLANE}"); A(f"v_and_b32 v{vT+1}, 3, v{vLANE}"); A(f"v_lshl_add_u32 v{vT+1}, v{vT}, 2, v{vT+1}")
    if not late_gu:
        A(f"v_and_b32 v{vT+2}, 3, v{vLANE}"); A(f"v_lshlrev_b32 v{vT+2}, 4, v{vT+2}")
        A(f"v_bfe_u32 v{vT+3}, v{vLANE}, 2, 1"); A(f"v_mul_u32_u24 v{vT+3}, 40960, v{vT+3}"); A(f"v_add_u32 v{vT+2}, v{vT+2}, v{vT+3}")
        A(f"s_mul_i32 s68, {sWAVE}, {160*64}"); A(f"v_add_u32 v{vT+2}, s68, v{vT+2}")
        A(f"v_lshl_add_u32 v{vT+3}, v{vT}, 10, v{vT+2}"); A(f"v_lshl_add_u32 v{vT+2}, v{vT}, 8, v{vT+2}")
        for y in range(4):
            for k in range(4): A(f"ds_read_b128 {v4(WT+4*(y*4+k))}, v{vT+3} offset:{L_W + (4*k+y)*64}")
            A("s_waitcnt lgkmcnt(4)")
        for k in range(4): A(f"ds_read_b128 {v4(WT+64+4*k)}, v{vT+2} offset:{L_W + (128+k)*64}")
    if not late_dn:
        A(f"v_lshrrev_b32 v{vT+2}, 4, v{vLANE}"); A(f"v_mul_u32_u24 v{vT+2}, {8*1280}, v{vT+2}")
        A(f"v_and_b32 v{vT+3}, 15, v{vLANE}"); A(f"v_lshl_add_u32 v{vT+2}, v{vT+3}, 4, v{vT+2}")
        A(f"v_add_u32 v{vT+3}, {L_W + 81920 + 1024}, v{vT+2}")
        A(f"s_lshl_b32 s68, {sWAVE}, 8"); A(f"s_add_u32 s68, s68, {L_W + 81920}"); A(f"v_add_u32 v{vT+2}, s68, v{vT+2}")
        A("s_waitcnt lgkmcnt(4)")
        for t in range(8): A(f"ds_read_b128 {v4(WD+4*t)}, v{vT+2} offset:{t*1280}")
        A("s_waitcnt lgkmcnt(4)")
        for t in range(8): A(f"ds_read_b128 {v4(WD2+4*t)}, v{vT+3} offset:{t*1280}")
    A(f"s_mul_i32 s68, {sWAVE}, 640"); A(f"v_lshl_add_u32 v{vT+8}, v{vT+1}, 4, s68")
    A("s_add_u32 s68, s68, 512"); A(f"v_lshl_add_u32 v{vT+9}, v{vT+1}, 2, s68")
    A(f"v_lshlrev_b32 v{vT+2}, 1, v{vT+8}"); A(f"v_lshlrev_b32 v{vT+3}, 1, v{vT+9}"); A(f"v_and_b32 v{vT+3}, -16, v{vT+3}")
    acc_addr(vT+5)
    A(f"v_lshrrev_b32 v{vT+6}, 4, v{vLANE}"); A(f"v_lshlrev_b32 v{vT+6}, 3, v{vT+6}")
    A(f"v_and_b32 v{vT+7}, 7, v{vLANE}"); A(f"v_add_u32 v{vT+6}, v{vT+6}, v{vT+7}")
    A(f"v_bfe_u32 v{vT+7}, v{vLANE}, 3, 1"); A(f"v_lshl_add_u32 v{vT+6}, v{vT+7}, 5, v{vT+6}"); A(f"v_lshlrev_b32 v{vT+6}, 2, v{vT+6}")
    A(f"v_add_u32 v{vT+6}, {L_ACC}, v{vT+6}")
    A(f"s_mul_i32 s12, {sF}, 5120"); A(f"s_lshl_b32 s69, {sWAVE}, 10"); A("s_add_u32 s12, s12, s69"); A(f"s_add_u32 s12, s12, {WS_DP}")
    poll([(vT+2, "s22", 0, None), (vT+2, "s22", 16, None), (vT+3, "s22", 0, None)], RING)
    for i in range(2):
        A(f"v_lshlrev_b32 v{SS[2*i]}, 16, v{RING+4*i+1}"); A(f"v_and_b32 v{SS[2*i+1]}, 0xffff0000, v{RING+4*i+1}")
        A(f"v_lshlrev_b32 v{CC[2*i]}, 16, v{RING+4*i+2}"); A(f"v_and_b32 v{CC[2*i+1]}, 0xffff0000, v{RING+4*i+2}")
    A(f"v_and_b32 v{vT+7}, 1, v{vLANE}"); A(f"v_lshlrev_b32 v{vT+7}, 4, v{vT+7}")
    A(f"v_lshrrev_b32 v{SS[4]}, v{vT+7}, v{RING+9}"); A(f"v_lshlrev_b32 v{SS[4]}, 16, v{SS[4]}")
    A(f"v_lshrrev_b32 v{CC[4]}, v{vT+7}, v{RING+10}"); A(f"v_lshlrev_b32 v{CC[4]}, 16, v{CC[4]}")
    for c in CC: A(f"v_add_f32 v{c}, 1.0, v{c}")
    rbf2(CC[0], CC[1]); rbf2(CC[2], CC[3]); rbf(CC[4], CC[4])
    A("s_waitcnt vmcnt(0) lgkmcnt(0)")
    stamp(8)
    A(f"s_cmp_lg_u32 {sWAVE}, 0"); A(f"s_cbranch_scc1 {'L_gemv0' if wbar else 'L_gemv'}")
    A.label("L_gprep")
    A(f"s_and_b32 s23, {sWAVE}, 3"); A(f"s_cmp_eq_u32 {sWAVE}, 0"); A("s_cselect_b32 s23, 4, s23")
    A(f"v_and_b32 v{vT}, 31, v{vLANE}"); A(f"v_lshrrev_b32 v{vT+1}, 5, v{vLANE}")
    A(f"v_lshl_add_u32 v{vT+2}, v{vT}, 1, v{vT+1}"); A("s_lshl_b32 s68, s23, 6"); A(f"v_add_u32 v{vT+2}, s68, v{vT+2}")
    A(f"v_lshlrev_b32 v{vT+7}, 4, v{vT+2}"); A(f"v_lshlrev_b32 v{vT+3}, 3, v{vT+2}"); A(f"v_lshlrev_b32 v{vT+2}, 2, v{vT+2}")
    srd(SB, "s4", "s5", 1280)
    A(f"buffer_load_dword v{X0+1}, v{vT+2}, {SB}, 0 offen")
    A(f"v_mul_u32_u24 v{vT+4}, 2560, v{vT+1}"); A(f"v_lshl_add_u32 v{vT+4}, v{vT}, 4, v{vT+4}"); A("s_lshl_b32 s68, s23, 9"); A(f"v_add_u32 v{vT+4}, s68, v{vT+4}")
    A(f"s_mul_i32 s68, {sG}, {20480 if rep else 0}")
    for n in range(4): A(f"s_add_u32 s{4+n}, s68, {WS_YP + n*5120}")
    A("s_lshl_b32 s68, s23, 3"); A(f"v_mov_b32 v{vADDR}, s68")
    A(f"v_mov_b32 v{SEL0}, 0x3f80"); A(f"v_mov_b32 v{SEL1}, 0x3f800000")
    A(f"s_min_u32 s21, {sF}, 39")
    A(f"v_lshrrev_b32 v{vL}, 3, v{vLANE}"); A(f"v_mul_u32_u24 v{vL}, 5120, v{vL}")
    A(f"v_and_b32 v{vONE}, 7, v{vLANE}"); A(f"v_lshl_add_u32 v{vL}, v{vONE}, 4, v{vL}")
    A(f"s_lshl_b32 s68, s21, 7"); A(f"v_add_u32 v{vL}, s68, v{vL}")
    A(f"v_lshl_add_u32 v{vT}, v{vONE}, 4, s68")
    A(f"v_lshl_add_u32 v{vONE}, v{vONE}, 1, v{vT+1}")
    A(f"s_lshl_b32 s68, s21, 4"); A(f"v_add_u32 v{vONE}, s68, v{vONE}")
    A(f"v_lshlrev_b32 v{vTKT}, 2, v{vONE}"); A(f"v_lshlrev_b32 v{vONE}, 1, v{vONE}")
    for n in range(7): A(f"s_mov_b32 s{13+n}, {WS_DP + n*8*5120}")
    A(f"s_mov_b32 s21, {WS_MR+5120}")
    poll([(vT+7, "s22", 0, None), (vT, "s21", 0, None)], RING)
    A(f"v_lshlrev_b32 v{X0}, 16, v{X0+1}"); A(f"v_and_b32 v{X0+1}, 0xffff0000, v{X0+1}")
    A(f"v_lshlrev_b32 v{GA}, 16, v{RING}"); A(f"v_and_b32 v{GA+1}, 0xffff0000, v{RING}")
    A(f"v_mov_b32 v{GB}, v{RING+4}"); A("s_mov_b32 exec_lo, 0"); A(f"v_mov_b32 v{GB}, v{RING+5}"); A("s_mov_b64 exec, -1")
    srd(SB, "s26", "s27", 1280)
    if otouch: A(f"buffer_load_ushort v{vT}, v{vONE}, {SB}, 0 offen")
    if hb:
        A(f"s_lshl_b32 s23, s23, 11"); A(f"s_add_u32 s23, s23, {WS_FB}")
        flagwait("s23", 16)
    def ysum(b):
        for n in range(4):
            for r in range(4):
                src, sel = b + 4*n + 2*(r // 2), (SEL0, SEL1)[r % 2]
                if n == 0: A(f"v_dot2_f32_bf16 v{TMP+r}, v{src}, v{sel}, 0")
                else: A(f"v_dot2c_f32_bf16 v{TMP+r}, v{src}, v{sel}")
    if wbar: A("s_barrier")
    poll([(vT+4, f"s{4+n}", 0, None) for n in range(4)], RING, DB, ysum, ps=2 if stamps == 3 else None, tags=(1, 3), back=BSL)
    stamp(9)
    A(f"v_permlane32_swap_b32 v{TMP}, v{TMP+2}"); A(f"v_permlane32_swap_b32 v{TMP+1}, v{TMP+3}")
    A(f"v_pk_add_f32 {v2(TMP)}, {v2(TMP)}, {v2(TMP+2)}")
    A(f"v_pk_fma_f32 {v2(X0)}, {v2(TMP)}, {v2(GA)}, {v2(X0)}")
    A(f"v_add_f32 v{TMP}, v{X0}, v{X0+1}"); A(f"v_mul_f32 v{TMP+1}, v{X0}, v{X0}"); A(f"v_fmac_f32 v{TMP+1}, v{X0+1}, v{X0+1}")
    A(f"ds_write_b64 v{vT+3}, {v2(X0)} offset:{L_X2}")
    dpp_red("v_add_f32", [TMP, TMP+1], QUAD + BANK + BCAST)
    A("s_mov_b32 exec_lo, 0"); A("s_brev_b32 exec_hi, 1")
    A(f"ds_write_b64 v{vADDR}, {v2(TMP)} offset:{L_ST}")
    A("s_mov_b64 exec, -1")
    A("s_waitcnt lgkmcnt(0)")
    A(f"s_cmp_lg_u32 {sWAVE}, 0"); A("s_cbranch_scc1 L_final")
    if wbar:
        A("s_branch L_gemv")
        A.label("L_gemv0")
        A("s_barrier")
    A.label("L_gemv")
    A("s_barrier")
    fstamp(3)
    ST = vAOP; XX = RING + 40
    A(f"ds_read_b128 {v4(ST)}, v{vZERO} offset:{L_ST}"); A(f"ds_read_b128 {v4(ST+4)}, v{vZERO} offset:{L_ST+16}"); A(f"ds_read_b64 {v2(ST+8)}, v{vZERO} offset:{L_ST+32}")
    A(f"ds_read_b128 {v4(XX)}, v{vT+8} offset:{L_X2}"); A(f"ds_read_b32 v{XX+4}, v{vT+9} offset:{L_X2}")
    A(f"v_mov_b32 v{TMP+2}, {fh(1e-5)}")
    A("s_waitcnt lgkmcnt(2)" if stamps != 2 else "s_waitcnt lgkmcnt(0)")
    sum2([ST+2*n for n in range(5)], TMP)
    A(f"v_mul_f32 v{TMP}, {fh(1.0/640)}, v{TMP}")
    A(f"v_fmac_f32 v{TMP+2}, {fh(1.0/640)}, v{TMP+1}")
    A(f"v_fma_f32 v{TMP+2}, -v{TMP}, v{TMP}, v{TMP+2}")
    A(f"v_max_f32 v{TMP+2}, {fh(1e-5)}, v{TMP+2}")
    A(f"v_rsq_f32 v{TMP+2}, v{TMP+2}")
    A("s_waitcnt lgkmcnt(0)")
    for y in range(5): A(f"v_sub_f32 v{XX+y}, v{XX+y}, v{TMP}")
    for y in range(5): A(f"v_mul_f32 v{CC[y]}, v{CC[y]}, v{TMP+2}")
    for y in range(5): A(f"v_fmac_f32 v{SS[y]}, v{XX+y}, v{CC[y]}")
    for y in range(5): A(f"v_cvt_pk_bf16_f32 v{SS[y]}, v{SS[y]}, v{SS[y]}")
    fstamp(4)
    gemv(vACC, vM1, [(SS[y], qp(k), WT+4*(y*4+k), None) for y in range(5) for k in range(4)])
    acc_write(vT+5)
    fstamp(5)
    A("s_waitcnt lgkmcnt(0)")
    A("s_barrier")
    fstamp(7)
    RD = WT
    for k in range(4): A(f"ds_read2st64_b32 {v2(RD+2*k)}, v{vT+6} offset0:{2*k} offset1:{2*k+1}")
    A("s_waitcnt lgkmcnt(0)")
    sum2([RD+2*k for k in range(4)])
    A(f"v_add_f32 v{RD}, v{RD}, v{RD+1}")
    A(f"v_mul_f32 v{RD+2}, {fh(-LOG2E)}, v{RD}"); A(f"v_exp_f32 v{RD+2}, v{RD+2}")
    A(f"v_mul_f32_dpp v{RD+1}, v{RD}, v{RD} row_ror:8 {DPPF}")
    A(f"v_add_f32 v{RD+2}, 1.0, v{RD+2}"); A(f"v_rcp_f32 v{RD+2}, v{RD+2}")
    A(f"v_mul_f32 v{RD}, v{RD+1}, v{RD+2}")
    A(f"v_cvt_pk_bf16_f32 v{RD}, v{RD}, v{RD}")
    A(f"s_cmp_eq_u32 {sWAVE}, 1"); A("s_cbranch_scc1 L_down2")
    gemv(vACC, vM2, [(RD, f"row_newbcast:{t}", WD+4*t, None) for t in range(8)])
    publish(vACC, vNAT, "s12")
    if fin == 2: A("s_waitcnt vmcnt(0)")
    A("s_branch L_exit")
    A.label("L_down2")
    gemv(vACC, vM2, [(RD, f"row_newbcast:{t}", WD+4*t, None) for t in range(8)], ACC2, WD2)
    A(f"v_mov_b32 v{vACC+3}, {sTAG}"); A(f"v_mov_b32 v{ACC2+3}, {sTAG}")
    A(f"buffer_store_dwordx4 {v4(vACC)}, v{vNAT}, {SWS}, s12 offen {spol}")
    A(f"buffer_store_dwordx4 {v4(ACC2)}, v{vNAT}, {SWS}, s12 offen offset:3072 {spol}")
    stamp(10)
    if fin:
        A("s_waitcnt vmcnt(0)")
        A("s_barrier")
    if stamps:
        stamp_dump([8, 10] + ([3, 4, 5, 7] if stamps == 2 else []))
    A("s_endpgm")
    A.label("L_final")
    A("s_barrier")
    A(f"s_cmp_lg_u32 {sWAVE}, 7"); A("s_cbranch_scc1 L_end")
    A(f"ds_read_b32 v{X0}, v{vTKT} offset:{L_X2}")
    FB = RING + 48
    for i in range(DC):
        b = FB + 28*i + 24
        A(f"v_mov_b32 v{b}, 0"); A(f"v_mov_b32 v{b+1}, 0"); A(f"v_mov_b32 v{b+3}, {sTAG}")
    A("s_mov_b32 s68, -1"); A("s_mov_b32 s69, 0xffff")
    srd(SB, "s26", "s27", 1280)
    A("s_waitcnt vmcnt(0) lgkmcnt(0)")
    A(f"s_cmp_ge_u32 {sF}, 40"); A("s_cbranch_scc1 L_fin_dump")
    A("s_barrier")
    if fin: A("s_barrier")
    if CSL: A(f"s_sleep {CSL}")
    poll([(vL, f"s{13+n}", 0, None if n < 6 else "s[68:69]") for n in range(7)], FB, DC, lambda b: sum2([b+4*n for n in range(7)], GA), ps=14 if stamps == 3 else None)
    stamp(11)
    A(f"v_permlane32_swap_b32 v{GA}, v{GA+1}"); A(f"v_add_f32 v{GA}, v{GA}, v{GA+1}")
    xrow("v_add_f32", GA, GA+1, 16)
    A(f"v_add_f32_dpp v{GA}, v{GA}, v{GA} row_ror:8 {DPPF}")
    A(f"v_fma_f32 v{GA}, v{GA}, v{GB}, v{X0}"); A(f"v_cvt_pk_bf16_f32 v{GA}, v{GA}, v{GA}")
    A("s_mov_b32 exec_lo, 0xff"); A("s_mov_b32 exec_hi, 0xff")
    A(f"buffer_store_short v{GA}, v{vONE}, {SB}, 0 offen {opol}")
    A(f"s_cmp_lg_u32 {sF}, 0"); A("s_cbranch_scc1 L_fin_dump")
    A("s_mov_b64 exec, 1"); A(f"v_mov_b32 v{GA+1}, {sTAG}")
    A(f"buffer_store_dword v{GA+1}, v{vZERO}, {SWS}, 0 offen sc1")
    A.label("L_fin_dump")
    if stamps:
        A("s_waitcnt vmcnt(0)"); stamp(12)
        stamp_dump([9, 11, 12] + ([14, 2] if stamps == 3 else []))
    A("s_endpgm")
    A.label("L_wo")
    if not wo_pre: wo_prep()
    if hb:
        A(f"s_lshr_b32 s8, {sK}, 1"); A("s_lshl_b32 s8, s8, 11"); A(f"s_and_b32 s9, {sK}, 1"); A(f"s_lshl_b32 s10, {sG}, 1"); A("s_add_u32 s9, s9, s10"); A("s_lshl_b32 s9, s9, 7")
        A("s_add_u32 s8, s8, s9"); A(f"s_add_u32 s8, s8, {WS_FB}"); A(f"v_mov_b32 v{vT+9}, {sTAG}")
    def hb_send():
        A("s_waitcnt lgkmcnt(0)")
        A(f"v_readfirstlane_b32 s9, v{vTKT}")
        A("s_cmp_lg_u32 s9, 7"); A("s_cbranch_scc1 L_nohb")
        A("s_mov_b64 exec, 0xff")
        A(f"buffer_store_dwordx4 {v4(PF)}, v{vLANE16}, {SWS}, s8 offen sc1")
        A("s_mov_b64 exec, -1")
        A.label("L_nohb")
    def wo_combine(b):
        if hb:
            A(f"v_mov_b32 v{PF}, {sTAG}")
            A("s_mov_b64 exec, 1"); A(f"ds_add_rtn_u32 v{vTKT}, v{vZERO}, v{vONE} offset:{L_CNTA}"); A("s_mov_b64 exec, -1")
        lam = [b+4*n+2 for n in range(4)]
        t = TMP + 2
        A(f"v_max3_f32 v{t}, v{lam[0]}, v{lam[1]}, v{lam[2]}"); A(f"v_max_f32 v{t}, v{t}, v{lam[3]}")
        xrow("v_max_f32", t, t+1, 32)
        for n in range(4): A(f"v_sub_f32 v{lam[n]}, v{lam[n]}, v{t}")
        for n in range(4): A(f"v_exp_f32 v{lam[n]}, v{lam[n]}")
        A(f"v_add_f32 v{t}, v{lam[0]}, v{lam[1]}"); A(f"v_add_f32 v{t+1}, v{lam[2]}, v{lam[3]}")
        for r in range(2): A(f"v_mul_f32 v{TMP+r}, v{lam[0]}, v{b+r}")
        A(f"v_add_f32 v{t}, v{t}, v{t+1}")
        for n in range(1, 4):
            for r in range(2): A(f"v_fmac_f32 v{TMP+r}, v{lam[n]}, v{b+4*n+r}")
    if stamps == 5:
        stamp(1); A("s_waitcnt vmcnt(0)"); stamp(2)
    poll([(vT+4, "s4" if n < 2 else "s5", (n % 2)*2048, None) for n in range(4)], RING, DA, wo_combine, ps=5, back=ASL)
    stamp(7)
    if hb and hbpos == 0: hb_send()
    t = TMP + 2
    xrow("v_add_f32", t, t+1, 32)
    A(f"v_permlane32_swap_b32 v{TMP}, v{TMP+1}")
    A(f"v_rcp_f32 v{t}, v{t}")
    A(f"v_add_f32 v{TMP}, v{TMP}, v{TMP+1}")
    A(f"v_mul_f32 v{TMP}, v{TMP}, v{t}")
    A(f"v_cvt_pk_bf16_f32 v{TMP}, v{TMP}, v{TMP}")
    ysplit([TMP], TMP+2)
    if hb and hbpos == 1: hb_send()
    A("s_waitcnt lgkmcnt(0)")
    gemv(vACC, vM1, [(TMP + 2 + n // 4, qp(n % 4), WT+4*n, None) for n in range(8)])
    acc_write(vT+5)
    if hb and hbpos == 2: hb_send()
    if stamps == 5: stamp(3)
    A("s_waitcnt lgkmcnt(0)")
    A("s_barrier")
    if stamps == 5:
        stamp(4)
        A(f"s_cmp_lg_u32 {sWAVE}, 5"); A("s_cbranch_scc1 L_ns5")
        stamp_dump([1, 2, 3, 4, 5, 7]); A("s_endpgm")
        A.label("L_ns5")
    A(f"s_cmp_lg_u32 {sWAVE}, 0"); A("s_cbranch_scc1 L_end")
    for n in range(8): A(f"ds_read_b64 {v2(WT+2*n)}, v{vT+7} offset:{L_ACC+256*n}")
    A("s_waitcnt lgkmcnt(0)")
    sum2([WT+2*n for n in range(8)])
    A(f"v_mov_b32 v{WT+2}, v{WT}"); A(f"v_mov_b32 v{WT+3}, v{WT+1}")
    A(f"v_permlane32_swap_b32 v{WT}, v{WT+2}"); A(f"v_permlane32_swap_b32 v{WT+1}, v{WT+3}")
    A(f"v_pk_add_f32 {v2(WT)}, {v2(WT)}, {v2(WT+2)}")
    A(f"v_cvt_pk_bf16_f32 v{WT}, v{WT}, v{WT+1}"); A(f"v_mov_b32 v{WT+1}, {sTAG}")
    if not rep: A("s_mov_b32 exec_hi, 0")
    A(f"buffer_store_dwordx2 {v2(WT)}, v{vT+8}, {SWS}, s6 offen {spol}")
    if rep:
        for c in range(1, 4): A(f"buffer_store_dwordx2 {v2(WT)}, v{vT+8}, {SWS}, s{12+c} offen {spol}")
    stamp(13)
    A.label("L_exit")
    if WSTEP: A(".warm_end L_w2")
    if stamps:
        A(f"s_cmp_lg_u32 {sWAVE}, 0"); A("s_cbranch_scc1 L_end")
        stamp_dump([0, 13, 6, 14] if stamps == 5 else [0, 13, 6, 7] if stamps == 4 else [0, 13, 6, 1] + ([2] if stamps != 3 else []) + ([3, 4, 5, 7] if stamps != 2 else []), xcc=True)
    A("s_endpgm")
    for (Lr, Lb) in rescue:
        A.label(Lr)
        A(f"v_max_f32 v{vA_}, v{vC_}, v{vM}")
        row_red("v_max_f32", vA_, vB_)
        A(f"v_sub_f32 v{vB_}, v{vM}, v{vA_}"); A(f"v_mul_f32 v{vB_}, {sL2E}, v{vB_}"); A(f"v_exp_f32 v{vB_}, v{vB_}")
        A(f"v_mov_b32 v{vM}, v{vA_}"); A(f"v_mul_f32 v{vML}, {sL2E}, v{vA_}")
        A(f"v_mul_f32 v{vL}, v{vL}, v{vB_}")
        for r in range(2): A(f"v_mul_f32 v{vACC+r}, v{vACC+r}, v{vB_}")
        A(f"s_branch {Lb}")

    A.label("L_ctrl0")
    A("s_setprio 3")
    A("s_waitcnt lgkmcnt(0)")
    def ctrl_init():
        common_setup()
        A(f"v_mov_b32 v{vT+4}, {7*(1+2*NE)}")
        for r in range(1, 4): A(f"v_mov_b32 v{vT+4+r}, 0")
        A(f"ds_write_b128 v{vZERO}, {v4(vT+4)} offset:{L_TICKET}")
        tag_finish()
        A("s_barrier")
    if abl == 2:
        ctrl_init()
        A(f"s_and_b32 s68, {sHD}, 3"); A(f"s_mov_b32 s69, {DYN0[0]}")
        for a in range(1, 4):
            A(f"s_cmp_eq_u32 s68, {a}"); A(f"s_cselect_b32 s69, {DYN0[a]}, s69")
        A(f"v_mov_b32 v{vT}, s69"); A(f"s_lshl_b32 s68, {sHD}, 8"); A(f"s_add_u32 s68, s68, {WS_CNT}")
        A("s_mov_b64 exec, 1")
        A(f"buffer_store_dword v{vT}, v{vZERO}, {SWS}, s68 offen sc1")
        A("s_mov_b64 exec, -1")
        A(f"v_lshlrev_b32 v{vT}, 2, v{vLANE}"); A(f"v_mov_b32 v{vT+1}, 0x3f803f80"); A(f"ds_write_b32 v{vT}, v{vT+1} offset:{L_Q}"); A("s_waitcnt lgkmcnt(0)")
        A(f"ds_write_b32 v{vZERO}, v{vONE} offset:{L_FLAG}")
        A("s_branch L_ctrl_w")
        A.label("L_abl_dead3")
    A(f"s_sub_u32 s37, {sK}, 17"); A(f"s_add_u32 s68, {sK}, 15"); A(f"s_cmp_lt_u32 {sK}, 5"); A("s_cselect_b32 s37, s68, s37")
    A("s_cmp_lt_u32 s37, 20"); A("s_cbranch_scc1 L_ctrl_q")
    A(f"s_cmp_ge_u32 {sK}, 15"); A("s_cbranch_scc1 L_ctrl_none")
    A(f"s_sub_u32 s38, {sK}, 5")
    mod_loads("s38", sG)
    ctrl_init()
    mod_compute("s38", sG)
    stamp(1)
    A("s_branch L_hop2")
    A.label("L_ctrl_none")
    ctrl_init()
    A("s_branch L_hop2")
    A.label("L_ctrl_q")
    WQ = RING + 64
    XA = RING
    X0, X1 = 24, 25
    A("s_mul_i32 s38, s37, 52"); A("s_lshr_b32 s38, s38, 8"); A("s_mul_i32 s68, s38, 5"); A("s_sub_u32 s39, s37, s68")
    A("s_lshl_b32 s38, s38, 3"); A(f"s_add_u32 s38, s38, {sG}")
    srd(SB, "s4", "s5", 1280); srd(SA, "s10", "s11", 640*8192)
    A(f"v_lshlrev_b32 v{vT+2}, 2, v{vLANE}")
    for k in range(5): A(f"buffer_load_dword v{XA+2*k+1}, v{vT+2}, {SB}, 0 offen offset:{k*256}")
    A("s_lshl_b32 s68, s39, 8")
    A(f"buffer_load_dword v{X1}, v{vT+2}, {SB}, s68 offen")
    A(f"v_lshrrev_b32 v{vT}, 4, v{vLANE}"); A(f"v_lshlrev_b32 v{vT}, 18, v{vT}")
    A(f"v_and_b32 v{vT+1}, 15, v{vLANE}"); A(f"v_lshl_add_u32 v{vT+3}, v{vT+1}, 4, v{vT}")
    A("s_lshl_b32 s69, s39, 20"); A("s_lshl_b32 s68, s38, 8"); A("s_add_u32 s69, s69, s68")
    for n in range(32):
        u, j = n // 16, n % 16
        A(f"s_add_u32 s68, s69, {(2*j+u)*8192}")
        A(f"buffer_load_dwordx4 {v4(WQ+4*n)}, v{vT+3}, {SA}, s68 offen {pol}")
    ctrl_init()
    A("s_and_b32 s68, s38, 3"); A(f"s_mov_b32 s69, {DYN0[0]}")
    for a in range(1, 4):
        A(f"s_cmp_eq_u32 s68, {a}"); A(f"s_cselect_b32 s69, {DYN0[a]}, s69")
    A(f"v_mov_b32 v{vT}, s69"); A("s_lshl_b32 s68, s38, 8"); A(f"s_add_u32 s68, s68, {WS_CNT}")
    A("s_cmp_lg_u32 s39, 0"); A("s_cbranch_scc1 L_nocnt")
    A("s_mov_b64 exec, 1")
    A(f"buffer_store_dword v{vT}, v{vZERO}, {SWS}, s68 offen sc1")
    A("s_mov_b64 exec, -1")
    A("s_waitcnt vmcnt(33)")
    A("s_branch L_cntj")
    A.label("L_nocnt")
    A("s_waitcnt vmcnt(32)")
    A.label("L_cntj")
    for k in range(5):
        A(f"v_lshlrev_b32 v{XA+2*k}, 16, v{XA+2*k+1}"); A(f"v_and_b32 v{XA+2*k+1}, 0xffff0000, v{XA+2*k+1}")
    A(f"v_lshlrev_b32 v{X0}, 16, v{X1}"); A(f"v_and_b32 v{X1}, 0xffff0000, v{X1}")
    t = vT + 8; a = XA
    A(f"v_add_f32 v{t}, v{a}, v{a+1}")
    for i in range(2, 10): A(f"v_add_f32 v{t}, v{t}, v{a+i}")
    wave_red("v_add_f32", t, t+1)
    A(f"v_mul_f32 v{t}, {fh(1.0/640)}, v{t}")
    for i in range(10): A(f"v_sub_f32 v{a+i}, v{a+i}, v{t}")
    A(f"v_mul_f32 v{t+2}, v{a}, v{a}")
    for i in range(1, 10): A(f"v_fmac_f32 v{t+2}, v{a+i}, v{a+i}")
    wave_red("v_add_f32", t+2, t+1)
    A(f"v_mul_f32 v{t+2}, {fh(1.0/640)}, v{t+2}")
    rbf2(t, t+2)
    A(f"v_add_f32 v{t+2}, {fh(1e-5)}, v{t+2}"); rbf(t+2, t+2)
    A(f"v_sqrt_f32 v{t+2}, v{t+2}"); rbf(t+2, t+2)
    A(f"v_rcp_f32 v{t+2}, v{t+2}")
    A(f"v_sub_f32 v{X0}, v{X0}, v{t}"); A(f"v_sub_f32 v{X1}, v{X1}, v{t}"); rbf2(X0, X1)
    A(f"v_mul_f32 v{X0}, v{X0}, v{t+2}"); A(f"v_mul_f32 v{X1}, v{X1}, v{t+2}"); rbf2(X0, X1)
    A("s_lshl_b32 s6, s39, 13"); A(f"s_add_u32 s6, s6, {WS_MODP}"); A("s_add_u32 s7, s6, 4096"); A(f"s_add_u32 s8, s6, {5*8192}"); A("s_add_u32 s9, s8, 4096")
    stamp(1)
    spre("s6", [(n // 8)*5*8192 + (n % 8)*1024 for n in range(16)])
    poll([(vLANE16, f"s{6+n//4}", (n % 4)*1024, None) for n in range(16)], RING)
    stamp(2)
    sum2([RING+4*n for n in range(8)]); sum2([RING+32+4*n for n in range(8)])
    rbf2(RING, RING+1); rbf2(RING+32, RING+33)
    c0, c1, s0, s1 = RING+32, RING+33, RING, RING+1
    A(f"v_add_f32 v{c0}, 1.0, v{c0}"); A(f"v_add_f32 v{c1}, 1.0, v{c1}"); rbf2(c0, c1)
    A(f"v_mul_f32 v{X0}, v{X0}, v{c0}"); A(f"v_mul_f32 v{X1}, v{X1}, v{c1}"); rbf2(X0, X1)
    A(f"v_add_f32 v{X0}, v{X0}, v{s0}"); A(f"v_add_f32 v{X1}, v{X1}, v{s1}")
    A(f"v_cvt_pk_bf16_f32 v{X0}, v{X0}, v{X0}"); A(f"v_cvt_pk_bf16_f32 v{X1}, v{X1}, v{X1}")
    gemv(vACC, vM2, [((X0, X1)[n // 16], f"row_newbcast:{n % 16}", WQ + 4*n, None) for n in range(32)])
    A("s_mul_i32 s68, s38, 5"); A("s_add_u32 s68, s68, s39"); A("s_lshl_b32 s68, s68, 10"); A(f"s_add_u32 s68, s68, {WS_QP}")
    publish(vACC, vNAT, "s68")
    A.label("L_hop2")
    stamp(3)
    A(f"s_mul_i32 s6, {sHD}, 5120"); A(f"s_add_u32 s6, s6, {WS_QP}"); A("s_add_u32 s7, s6, 4096")
    spre("s6", [n*1024 for n in range(5)])
    poll([(vLANE16, "s6" if n < 4 else "s7", (n % 4)*1024, None) for n in range(5)], RING)
    sum2([RING+4*n for n in range(5)])
    A(f"v_cvt_pk_bf16_f32 v{RING}, v{RING}, v{RING+1}")
    A(f"v_lshlrev_b32 v{vT}, 2, v{vLANE}")
    A(f"ds_write_b32 v{vT}, v{RING} offset:{L_Q}")
    A("s_waitcnt lgkmcnt(0)")
    A(f"ds_write_b32 v{vZERO}, v{vONE} offset:{L_FLAG}")
    stamp(4)
    A("s_setprio 0")
    A("s_cmp_lt_u32 s37, 20"); A("s_cbranch_scc0 L_ctrl_b")
    A("s_add_u32 s38, s37, 10")
    mod_loads("s38", sG)
    mod_compute("s38", sG)
    A.label("L_ctrl_b")
    A(f"s_cmp_lg_u32 {sK}, 31"); A("s_cbranch_scc1 L_ctrl_c")
    A(f"s_cmp_ge_u32 {sG}, 5"); A("s_cbranch_scc1 L_ctrl_c")
    A(f"s_lshl_b32 s6, {sG}, 13"); A(f"s_add_u32 s6, s6, {WS_MODP + 10*8192}")
    for b in range(1, 8): A(f"s_add_u32 s{6+b}, s6, {(b//2)*5*8192 + (b%2)*4096}")
    spre("s6", [(n // 8)*5*8192 + (n % 8)*1024 for n in range(16)])
    spre("s6", [(n // 8)*5*8192 + (n % 8)*1024 for n in range(16, 32)])
    poll([(vLANE16, f"s{6+n//4}", (n % 4)*1024, None) for n in range(32)], RING)
    for b in range(4): sum2([RING+32*b+4*n for n in range(8)])
    for b in range(3): A(f"v_cvt_pk_bf16_f32 v{vACC+b}, v{RING+32*b}, v{RING+32*b+1}")
    rbf2(RING+96, RING+97)
    A(f"s_lshl_b32 s6, {sG}, 10"); A(f"s_add_u32 s6, s6, {WS_MR}"); A("s_add_u32 s7, s6, 5120")
    publish(vACC, vLANE16, "s6"); publish(RING+96, vLANE16, "s7")
    A("s_branch L_ctrl_w")
    A.label("L_ctrl_c")
    A(f"s_mov_b32 m0, {L_W}")
    A(f"s_cmp_lt_u32 {sK}, 10"); A("s_cbranch_scc1 L_dma_wo")
    A(f"s_cmp_ge_u32 {sF}, 54"); A("s_cbranch_scc1 L_ctrl_w")
    A(f"v_lshrrev_b32 v{vT}, 2, v{vLANE}"); A(f"v_mul_u32_u24 v{vT}, 3456, v{vT}")
    A(f"v_and_b32 v{vT+1}, 3, v{vLANE}"); A(f"v_lshl_add_u32 v{vT}, v{vT+1}, 4, v{vT}")
    for (lo, hi) in (("s16", "s17"), ("s18", "s19")):
        if late_gu: break
        srd(SA, lo, hi, 640*3456)
        A(f"s_lshl_b32 s68, {sF}, 6")
        dma_loop(vT, "s68", 16*3456, 40, gpol)
    if not late_dn:
        A(f"s_mov_b32 m0, {L_W + 81920}")
        srd(SA, "s20", "s21", 1728*1280)
        A(f"s_mul_i32 s68, {sF}, {32*1280}")
        dma_loop(vLANE16, "s68", 1024, 40, wpol)
    A("s_branch L_ctrl_w")
    A.label("L_dma_wo")
    srd(SA, "s12", "s13", 4096*1280)
    A(f"v_lshrrev_b32 v{vT}, 3, v{vLANE}"); A(f"v_mul_u32_u24 v{vT}, 1280, v{vT}")
    A(f"v_and_b32 v{vT+1}, 7, v{vLANE}"); A(f"v_lshl_add_u32 v{vT}, v{vT+1}, 4, v{vT}")
    for a in range(4):
        if late_wo: break
        A(f"s_add_u32 s68, {sG}, {8*a}"); A(f"s_mul_i32 s68, s68, {128*1280}"); A(f"s_lshl_b32 s69, {sK}, 7"); A("s_add_u32 s68, s68, s69")
        dma_loop(vT, "s68", 8*1280, 16, wpol)
    A.label("L_ctrl_w")
    if abl: A("s_barrier"); A("s_endpgm"); A.label("L_abl_dead2")
    late_loads("c")
    A(f"s_lshl_b32 s8, {sHD}, 3"); A(f"s_add_u32 s8, s8, {sS}"); A("s_lshl_b32 s8, s8, 10"); A(f"s_add_u32 s8, s8, {WS_OP}")
    if WSTEP:
        A("s_mov_b64 exec, 0"); A("s_branch L_w1")
        A.label("L_wret"); A("s_mov_b64 exec, -1")
    A("s_waitcnt vmcnt(0) lgkmcnt(0)")
    stamp(5)
    if cprio: A("s_setprio 3")
    A("s_barrier")
    stamp(6)
    if WSTEP: A(f".warm_begin L_w2 {WSTEP}")
    for w in range(7): A(f"ds_read_b128 {v4(RING+4*w)}, v{vLANE16} offset:{L_PART+1024*w}")
    m = [RING+4*w+2 for w in range(7)]
    t = RING + 28
    A("s_waitcnt lgkmcnt(4)")
    A(f"v_max3_f32 v{t}, v{m[0]}, v{m[1]}, v{m[2]}")
    A("s_waitcnt lgkmcnt(2)")
    A(f"v_max3_f32 v{t}, v{t}, v{m[3]}, v{m[4]}")
    A("s_waitcnt lgkmcnt(0)")
    A(f"v_max3_f32 v{t}, v{t}, v{m[5]}, v{m[6]}")
    for w in range(7): A(f"v_sub_f32 v{m[w]}, v{m[w]}, v{t}")
    for w in range(7): A(f"v_exp_f32 v{m[w]}, v{m[w]}")
    O = RING + 32
    for r in (3, 0, 1): A(f"v_mul_f32 v{O+r}, v{m[0]}, v{RING+r}")
    for w in range(1, 7): A(f"v_fmac_f32 v{O+3}, v{m[w]}, v{RING+4*w+3}")
    A(f"v_rcp_f32 v{t+1}, v{O+3}"); A(f"v_log_f32 v{O+2}, v{O+3}")
    for w in range(1, 7):
        for r in range(2): A(f"v_fmac_f32 v{O+r}, v{m[w]}, v{RING+4*w+r}")
    A(f"v_add_f32 v{O+2}, v{O+2}, v{t}")
    A(f"v_mul_f32 v{O}, v{O}, v{t+1}"); A(f"v_mul_f32 v{O+1}, v{O+1}, v{t+1}")
    publish(O, vLANE16, "s8")
    if bar3: A("s_barrier")
    if cprio: A("s_setprio 0")
    stamp(13)
    if stamps == 5: stamp(14)
    if WSTEP: A(".warm_end L_wret")
    A("s_branch L_tail")
    A.label("L_end")
    if diag_wg is not None:
        A(f"s_cmp_lg_u32 s2, {diag_wg[0]}"); A("s_cbranch_scc1 L_end2"); A(f"s_cmp_lg_u32 s3, {diag_wg[1]}"); A("s_cbranch_scc1 L_end2")
        A.label("L_hold2")
        A("s_memrealtime s[94:95]"); A("s_waitcnt lgkmcnt(0)"); A("s_sub_u32 s94, s94, s96"); A(f"s_cmp_lt_u32 s94, {diag_hold}"); A("s_cbranch_scc1 L_hold2")
        A.label("L_end2")
    A("s_endpgm")
    A('.section .rodata,"a"'); A(".p2align 6"); A(f".amdhsa_kernel {KN}")
    A(".amdhsa_next_free_vgpr 256"); A(".amdhsa_next_free_sgpr 100"); A(".amdhsa_accum_offset 256")
    A(".amdhsa_group_segment_fixed_size 0"); A(".amdhsa_kernarg_size 112"); A(".amdhsa_user_sgpr_count 2")
    A(".amdhsa_user_sgpr_kernarg_segment_ptr 1"); A(".amdhsa_system_sgpr_workgroup_id_x 1")
    A(".amdhsa_float_denorm_mode_32 3")
    A(".end_amdhsa_kernel")
    return A.finalize()

def check_inter(w, inter):
    import numpy as np
    def cmp(name, got, exp):
        err = np.abs(got - exp).max(); rel = np.linalg.norm(got - exp) / np.linalg.norm(exp)
        print("   inter %-5s maxabs %.4e (scale %.3e) relL2 %.3e nan=%d" % (name, err, np.abs(exp).max(), rel, int(np.isnan(got).sum())), got[:4], exp[:4])
    def bf(x):
        u = x.astype(np.float32).view(np.uint32); u = (u + 0x7fff + ((u >> 16) & 1)) & 0xffff0000
        return u.view(np.float32)
    gr = lambda off, n: w[off // 4: off // 4 + n*4].reshape(n, 4)
    md = gr(WS_MODP, 30*8*64)[:, :2].reshape(30, 8, 128).sum(1).reshape(-1)
    cmp("mod", md, inter["mod"]); print("      mod bf16 mismatches", int((bf(md) != inter["mod"]).sum()))
    q = gr(WS_QP, 32*5*64)[:, :2].reshape(32, 5, 128).sum(1).reshape(-1)
    cmp("q", q, inter["q"]); print("      q bf16 mismatches", int((bf(q) != inter["q"]).sum()))
    g = gr(WS_OP, 32*8*64).astype(np.float64); op = g[:, :2].reshape(32, 8, 128); lam = g[:, 2].reshape(32, 8, 64)[:, :, 0]
    wt = np.exp2(lam - lam.max(1, keepdims=True))
    cmp("o", ((op * wt[:, :, None]).sum(1) / wt.sum(1)[:, None]).reshape(-1), inter["o"])
    yp = w[WS_YP // 4: WS_YP // 4 + 8*640].view(np.uint32).reshape(8, 320, 2)[:, :, 0]
    ya = np.stack([(yp << 16).view(np.float32), (yp & 0xffff0000).view(np.float32)], axis=-1).reshape(8, 640)
    cmp("at", ya.sum(0), inter["at"])
    cmp("dn", gr(WS_DP, 54*320)[:, :2].reshape(54, 640).sum(0), inter["dn"])

if __name__ == "__main__":
    out = sys.argv[1]
    kw = {}
    for a in sys.argv[2:]:
        k, v = a.split("=")
        kw[k] = eval(v)
    open(out, "w").write(gen(**kw))
```

```python
import sys, struct
from asmdsl import Asm
KN = "adaLN_cond__gqa_block_cached__swiglu_ffn__decode_kernel"

def f2u(x): return struct.unpack("<I", struct.pack("<f", x))[0]
def fh(x): return hex(f2u(x))
LOG2E = 1.4426950408889634
SCALE = 128 ** -0.5

WS_MODP = 0x1000
WS_QP   = WS_MODP + 30*8*1024
WS_OP   = WS_QP + 32*5*1024
WS_YP   = WS_OP + 32*8*1024
WS_DP   = WS_YP + 8*8*2560
WS_MR   = WS_DP + 54*5120
WS_CNT  = WS_MR + 10*1024
WS_FB   = WS_CNT + 32*256
WS_FC   = WS_FB + 80*128
WS_FA   = WS_FC + 256
WS_END  = WS_FA + 32*128
WS_STAMP = 0x10000000
L_TICKET = 0
L_FLAG = 4
L_RANK = 8
L_CNTA = 12
L_Q = 0x100
L_ST = 0x200
L_PART = 0x400
L_ACC = 0x2000
L_X2 = 0x3000
L_W = 0x3C00
L_END = L_W + 120*1024
DPPF = "row_mask:0xf bank_mask:0xf"

def tile_bounds(extra):
    res = []
    for a in range(4):
        e = [extra[a + 4*s] for s in range(8)]
        tgt = (1024 + sum(e)) / 8.0
        b = [0]; acc = 0.0
        for s in range(8):
            acc += tgt - e[s]; b.append(int(round(acc)))
        assert b[8] == 1024
        res.append(b)
    return res

def gen(stamps=False, NE=5, pol="nt", TH=0, e_wq=4, e_mod=1, e_wo=0, e_ffn=1, DMAD=8, DA=1, DB=1, DC=1, touch=False, dry=False, spoll=True, NS=120, ROT=0, NWS=5, diag_hold=0, diag_wg=None, late_wo=True, late_gu=True, late_dn=True, Q_wo=1005, Q_ffn=1024, wpol="", gpol="", pre_bar=False, pf=True, pfpol="", NR=4, pf2=True, SL=0, CSL=0, fin=1, TH0=0, abl=0, psl=0, PFTH=2, LTH=3, WSTEP=0, wo_pre=False, lpol="sc1", spol="sc1", ASL=0, BSL=0, wbar=False, early_w=(), R0=0, bar3=False, cprio=False, otouch=True, now=0, oldpf=True, opol="sc1", hb=False, hbpos=0, rep=True, XD=40, pa=0, mpol=None, qpol=None, eb=True, dsplit=True, NL=5, NPW=5, LAY=1, SM=3):
    A = Asm()
    uid = [0]
    def U(p):
        uid[0] += 1; return f"L_{p}_{uid[0]}"
    sWAVE, sHD, sS, sTAG, sK, sG = "s3", "s32", "s33", "s34", "s35", "s36"
    SK, SV, SWS, SA, SB = "s[40:43]", "s[44:47]", "s[48:51]", "s[52:55]", "s[56:59]"
    sNT, sL2E, sSC, sTO, sF, sTK = "s60", "s62", "s63", "s64", "s65", "s66"
    sROT, sST, sQ = "s37", "s61", "s29"
    SCNT = "s[38:39]"
    def stamp(k):
        if stamps: A(f"s_memrealtime s[{70+2*k}:{71+2*k}]")
    def fstamp(k):
        if stamps == 2: A(f"s_memrealtime s[{70+2*k}:{71+2*k}]")
    def stamp_dump(slots, xcc=False, final=True):
        if not stamps: return
        A("s_waitcnt lgkmcnt(0)")
        A("s_mov_b64 exec, 1")
        A(f"s_lshl_b32 s69, s2, 7"); A(f"s_add_u32 s69, s69, {WS_STAMP}")
        A("s_mov_b32 s50, 0x20000000")
        for k in slots:
            A(f"v_mov_b32 v{vT+10}, s{70+2*k}"); A(f"v_mov_b32 v{vT+11}, s{71+2*k}")
            A(f"buffer_store_dwordx2 v[{vT+10}:{vT+11}], v{vZERO}, {SWS}, s69 offen offset:{k*8}")
            A("s_nop 1")
        if xcc:
            A("s_getreg_b32 s68, hwreg(HW_REG_XCC_ID)")
            A(f"v_mov_b32 v{vT+10}, s68"); A(f"v_mov_b32 v{vT+11}, 0")
            A(f"buffer_store_dwordx2 v[{vT+10}:{vT+11}], v{vZERO}, {SWS}, s69 offen offset:120")
        if not final: A("s_mov_b64 exec, -1")
    def srd(S, lo, hi, n):
        b = int(S[2:S.index(":")])
        A(f"s_mov_b32 s{b}, {lo}"); A(f"s_mov_b32 s{b+1}, {hi}"); A(f"s_mov_b32 s{b+2}, {n}"); A(f"s_mov_b32 s{b+3}, 0x20000")
    def v4(b): return f"v[{b}:{b+3}]"
    def v2(b): return f"v[{b}:{b+1}]"
    def dpp_red(op, vs, ctls):
        for ctl in ctls:
            for v in vs: A(f"{op}_dpp v{v}, v{v}, v{v} {ctl}")
    QUAD = [f"quad_perm:[1,0,3,2] {DPPF}", f"quad_perm:[2,3,0,1] {DPPF}"]
    BANK = [f"row_ror:4 {DPPF}", f"row_ror:8 {DPPF}"]
    BCAST = ["row_bcast:15 row_mask:0xa bank_mask:0xf", "row_bcast:31 row_mask:0xc bank_mask:0xf"]
    def xrow(op, v, t, which):
        A(f"v_mov_b32 v{t}, v{v}"); A(f"v_permlane{which}_swap_b32 v{v}, v{t}"); A(f"{op} v{v}, v{v}, v{t}")
    def row_red(op, v, t):
        dpp_red(op, [v], BANK); xrow(op, v, t, 16); xrow(op, v, t, 32)
    def wave_red(op, v, t):
        dpp_red(op, [v], QUAD); row_red(op, v, t)
    def rbf(d, s):
        A(f"v_cvt_pk_bf16_f32 v{d}, v{s}, v{s}"); A(f"v_and_b32 v{d}, 0xffff0000, v{d}")
    def rbf2(a, b):
        A(f"v_cvt_pk_bf16_f32 v{b}, v{a}, v{b}"); A(f"v_lshlrev_b32 v{a}, 16, v{b}"); A(f"v_and_b32 v{b}, 0xffff0000, v{b}")
    vLANE16, vZERO, vONE, vTKT, vADDR, vM, vML, vL = 1, 2, 3, 4, 5, 6, 7, 8
    vLANE, vNAT, vBAD = 9, 10, 11
    vQ, vM2, vACC = 12, 16, 20
    vR, vA_, vB_, vC_, vE_ = 24, 28, 29, 30, 31
    vAOP = 32
    vT = 48
    vM1 = 60
    RING = 64
    WT = RING + 48
    WD = WT + 80
    WD2 = WD + 32
    TMP = RING + 32
    ACC2 = RING + 40
    PF = RING + 44
    def publish(b, voff, soff):
        A(f"v_mov_b32 v{b+3}, {sTAG}")
        A(f"buffer_store_dwordx4 {v4(b)}, v{voff}, {SWS}, {soff} offen {spol}")
    def poll(loads, base, D=1, consume=None, ps=None, tags=(3,), back=0):
        n = len(loads)
        L = U("poll"); Lj = U("pjoin"); Ld = [U("pdone") for _ in range(D)]
        def issue(i):
            for idx, (vo, so, imm, em) in enumerate(loads):
                if em is not None: A(f"s_mov_b64 exec, {em}")
                A(f"buffer_load_dwordx4 {v4(base + 4*(i*n + idx))}, v{vo}, {SWS}, {so} offen offset:{imm} {lpol}")
                if em is not None: A("s_mov_b64 exec, -1")
        A(f"s_mov_b32 {sTO}, {1 if abl == 3 else 0x40000}")
        for i in range(D - 1):
            issue(i)
            if SL: A(f"s_sleep {SL}")
        A.label(L)
        if ps is not None and stamps in (3, 5): stamp(ps)
        for i in range(D):
            issue((i + D - 1) % D)
            if D > 1 and SL: A(f"s_sleep {SL}")
            first = True
            for idx in range(n):
                d = base + 4*(i*n + idx)
                A(f"s_waitcnt vmcnt({(D-1)*n + n-1-idx})")
                for tp in tags:
                    if first: A(f"v_xor_b32 v{vBAD}, {sTAG}, v{d+tp}"); first = False
                    else: A(f"v_bitop3_b32 v{vBAD}, v{vBAD}, v{d+tp}, {sTAG} bitop3:0xf6")
            A(f"v_cmp_ne_u32 vcc, 0, v{vBAD}")
            A(f"s_cbranch_vccz {Ld[i]}")
        if back: A(f"s_sleep {back}")
        A(f"s_sub_u32 {sTO}, {sTO}, 1")
        A(f"s_cmp_lg_u32 {sTO}, 0")
        A(f"s_cbranch_scc1 {L}")
        for i in range(D):
            A.label(Ld[i])
            if consume: consume(base + 4*i*n)
            if i < D - 1: A(f"s_branch {Lj}")
        A.label(Lj)
    def spre(sbase, offs):
        if not spoll or abl == 3: return
        R = [40, 41, 42, 43, 44, 45, 46, 47, 14, 15, 28, 29, 60, 61, 66, 67]
        L = U("spoll"); Ld = U("spd")
        A(f"s_add_u32 s68, s30, {sbase}"); A("s_addc_u32 s69, s31, 0")
        A(f"s_mov_b32 {sTO}, 0x40000")
        A.label(L)
        if psl: A(f"s_sleep {psl}")
        for i, o in enumerate(offs): A(f"s_load_dword s{R[i]}, s[68:69], {o + 1020} glc")
        A(f"s_sub_u32 {sTO}, {sTO}, 1"); A(f"s_cmp_eq_u32 {sTO}, 0"); A(f"s_cbranch_scc1 {Ld}")
        A("s_waitcnt lgkmcnt(0)")
        for i, o in enumerate(offs):
            A(f"s_cmp_lg_u32 s{R[i]}, {sTAG}"); A(f"s_cbranch_scc1 {L}")
        A.label(Ld)
        A("s_waitcnt lgkmcnt(0)")
    def flagwait(soff, n):
        L = U("fw"); Ld = U("fwd")
        A(f"v_min_u32 v{vBAD}, {n-1}, v{vLANE}"); A(f"v_lshlrev_b32 v{vBAD}, 7, v{vBAD}")
        A(f"s_mov_b32 {sTO}, 0x40000")
        A.label(L)
        A(f"buffer_load_dword v{RING}, v{vBAD}, {SWS}, {soff} offen sc1")
        A(f"s_sub_u32 {sTO}, {sTO}, 1"); A(f"s_cmp_eq_u32 {sTO}, 0"); A(f"s_cbranch_scc1 {Ld}")
        A("s_waitcnt vmcnt(0)")
        A(f"v_cmp_ne_u32 vcc, {sTAG}, v{RING}")
        A(f"s_cbranch_vccnz {L}")
        A.label(Ld)
    def sum2(bases, dst=None):
        bs = list(bases)
        while len(bs) > 1:
            nb = []
            for i in range(0, len(bs) - 1, 2):
                d = dst if (dst is not None and len(bs) == 2) else bs[i]
                A(f"v_pk_add_f32 {v2(d)}, {v2(bs[i])}, {v2(bs[i+1])}"); nb.append(d)
            if len(bs) % 2: nb.append(bs[-1])
            bs = nb
    def gemv(acc, mask, items, acc2=None, w2=None):
        def mf(n):
            (x0, c0, w0, wc0) = items[n]
            if wc0 is not None: A(f"s_waitcnt vmcnt({wc0})")
            A(f"v_mfma_f32_16x16x32_bf16 {v4(acc)}, {v4(vAOP + 4*(n % 4))}, {v4(w0)}, {'0' if n == 0 else v4(acc)}")
            if acc2 is not None:
                A(f"v_mfma_f32_16x16x32_bf16 {v4(acc2)}, {v4(vAOP + 4*(n % 4))}, {v4(w2+4*n)}, {'0' if n == 0 else v4(acc2)}")
        for n, (x, ctl, w, wc) in enumerate(items):
            a = vAOP + 4 * (n % 4)
            for t in range(4): A(f"v_and_b32_dpp v{a+t}, v{x}, v{mask+t} {ctl} {DPPF}")
            if n >= 1: mf(n-1)
        mf(len(items) - 1)
    def ysplit(xs, y):
        for i, x in enumerate(xs): A(f"v_mov_b32 v{y+2*i}, v{x}"); A(f"v_mov_b32 v{y+2*i+1}, v{x}")
        for i, x in enumerate(xs):
            A(f"v_mov_b32_dpp v{y+2*i}, v{x} row_shr:4 row_mask:0xf bank_mask:0xa")
            A(f"v_mov_b32_dpp v{y+2*i+1}, v{x} row_shl:4 row_mask:0xf bank_mask:0x5")
    qp = lambda k: f"quad_perm:[{k},{k},{k},{k}]"
    def silu(x, t):
        A(f"v_mul_f32 v{t}, {fh(-LOG2E)}, v{x}"); A(f"v_exp_f32 v{t}, v{t}")
        A(f"v_add_f32 v{t}, 1.0, v{t}"); A(f"v_rcp_f32 v{t}, v{t}"); A(f"v_mul_f32 v{x}, v{x}, v{t}")
    def acc_addr(d):
        A(f"v_and_b32 v{d}, 7, v{vLANE}"); A(f"v_lshlrev_b32 v{d}, 5, v{d}")
        A(f"v_and_b32 v{vT+11}, 16, v{vLANE}"); A(f"v_add_u32 v{d}, v{d}, v{vT+11}")
        A(f"v_lshrrev_b32 v{vT+11}, 5, v{vLANE}"); A(f"v_lshl_add_u32 v{d}, v{vT+11}, 8, v{d}")
        A(f"s_lshl_b32 s68, {sWAVE}, 9"); A(f"v_add_u32 v{d}, s68, v{d}")
    def acc_write(d):
        A("s_mov_b32 exec_lo, 0x00ff00ff"); A("s_mov_b32 exec_hi, 0xff00ff00")
        A(f"ds_write_b128 v{d}, {v4(vACC)} offset:{L_ACC}")
        A("s_mov_b64 exec, -1")
    def mod_loads(scb, srb):
        wb = RING
        srd(SA, "s24", "s25", 640*7680); srd(SB, "s22", "s23", 1280)
        A(f"v_lshrrev_b32 v{vT}, 4, v{vLANE}"); A(f"v_mul_u32_u24 v{vT}, 20, v{vT}")
        A(f"v_and_b32 v{vT+1}, 15, v{vLANE}"); A(f"v_add_u32 v{vT+2}, v{vT}, v{vT+1}"); A(f"v_lshlrev_b32 v{vT+2}, 1, v{vT+2}")
        A(f"v_and_b32 v{vT+3}, 3, v{vLANE}"); A(f"v_add_u32 v{vT+3}, v{vT}, v{vT+3}"); A(f"v_lshlrev_b32 v{vT+3}, 1, v{vT+3}")
        A(f"s_mul_i32 s69, {srb}, 160")
        A(f"buffer_load_ushort v{vR}, v{vT+2}, {SB}, s69 offen")
        A(f"buffer_load_ushort v{vR+1}, v{vT+3}, {SB}, s69 offen offset:32")
        A(f"v_mul_u32_u24 v{vT}, 7680, v{vT}"); A(f"v_lshl_add_u32 v{vT}, v{vT+1}, 4, v{vT}")
        A(f"s_mul_i32 s69, {srb}, {80*7680}"); A(f"s_lshl_b32 s68, {scb}, 8"); A("s_add_u32 s69, s69, s68")
        for t in range(20):
            A(f"s_add_u32 s68, s69, {t*7680}")
            if pa & 4: A("s_mov_b32 s54, 0")
            A(f"buffer_load_dwordx4 {v4(wb+4*t)}, v{vT}, {SA}, s68 offen {pol if mpol is None else mpol}")
    def mod_compute(scb, srb):
        wb = RING
        A("s_waitcnt vmcnt(20)")
        for k in (0, 1):
            A(f"v_lshlrev_b32 v{vR+k}, 16, v{vR+k}"); silu(vR+k, vR+2); A(f"v_cvt_pk_bf16_f32 v{vR+k}, v{vR+k}, v{vR+k}")
        gemv(vACC, vM2, [(vR if t < 16 else vR+1, f"row_newbcast:{t % 16}", wb+4*t, 19-t) for t in range(20)])
        A(f"s_lshl_b32 s68, {scb}, 3"); A(f"s_add_u32 s68, s68, {srb}"); A("s_lshl_b32 s68, s68, 10"); A(f"s_add_u32 s68, s68, {WS_MODP}")
        publish(vACC, vNAT, "s68")
    def common_setup():
        A(f"s_load_dword {sTAG}, s[30:31], 0")
        srd(SWS, "s30", "s31", WS_END)
        A(f"v_and_b32 v{vT}, 1, v{vLANE}"); A(f"v_lshlrev_b32 v{vT}, 4, v{vT}"); A(f"v_mov_b32 v{vT+1}, 0xffff"); A(f"v_lshlrev_b32 v{vT}, v{vT}, v{vT+1}")
        A(f"v_bfe_u32 v{vT+1}, v{vLANE}, 1, 2")
        A(f"v_bfe_u32 v{vT+2}, v{vLANE}, 1, 3")
        for t in range(4):
            A(f"v_cmp_eq_u32 vcc, {t}, v{vT+1}"); A(f"v_cndmask_b32 v{vM1+t}, 0, v{vT}, vcc")
            A(f"v_cmp_eq_u32 vcc, {2*t}, v{vT+2}"); A(f"v_cndmask_b32 v{vM2+t}, 0, v{vT}, vcc")
        A(f"v_and_b32 v{vT}, 15, v{vLANE}"); A(f"v_lshlrev_b32 v{vT}, 6, v{vT}"); A(f"v_and_b32 v{vT+1}, 48, v{vLANE}"); A(f"v_add_u32 v{vNAT}, v{vT}, v{vT+1}")
    def tag_finish():
        A("s_waitcnt lgkmcnt(0)")
        A(f"s_add_u32 {sTAG}, {sTAG}, 0x01010101")
    def late_loads(lbl, ffn=True, wo=True, dn=True):
        Lw, Ld = U("lwo"), U("ldone")
        A(f"s_cmp_lt_u32 {sK}, 10"); A(f"s_cbranch_scc1 {Lw if wo else Ld}")
        if ffn and not (now & 1):
            ffn_late(Ld)
            if dn: dn_late(Ld)
        A(f"s_branch {Ld}")
        A.label(Lw)
        if wo and not (now & 2): wo_late()
        A.label(Ld)
    def ffn_late(Ld):
        A(f"s_cmp_ge_u32 {sF}, 54"); A(f"s_cbranch_scc1 {Ld}")
        A(f"s_cmp_gt_u32 {sWAVE}, 3"); A(f"s_cbranch_scc1 {Ld}")
        if late_gu:
            A(f"v_and_b32 v{vT+2}, 4, v{vLANE}"); A(f"v_cmp_eq_u32 vcc, 0, v{vT+2}")
            A(f"v_mov_b32 v{vT+2}, s18"); A(f"v_mov_b32 v{vT+3}, s16"); A(f"v_cndmask_b32 v{vT+6}, v{vT+2}, v{vT+3}, vcc")
            A(f"v_mov_b32 v{vT+2}, s19"); A(f"v_mov_b32 v{vT+3}, s17"); A(f"v_cndmask_b32 v{vT+7}, v{vT+2}, v{vT+3}, vcc")
            A(f"s_mul_i32 s69, {sWAVE}, {160*3456}"); A(f"s_lshl_b32 s68, {sF}, 6"); A("s_add_u32 s69, s69, s68")
            A(f"v_and_b32 v{vT+4}, 3, v{vLANE}"); A(f"v_lshl_add_u32 v{vT+4}, v{vT+4}, 4, s69")
            A(f"v_lshrrev_b32 v{vT+5}, 3, v{vLANE}")
            for (mul, add, rows) in ((16*3456, 0, [(k, y) for k in range(4) for y in range(4)]), (4*3456, 128*3456, [(k, 4) for k in range(4)])):
                A(f"v_mul_u32_u24 v{vT+1}, {mul}, v{vT+5}"); A(f"v_add_u32 v{vT+1}, v{vT+1}, v{vT+4}")
                if add: A(f"v_add_u32 v{vT+1}, {add}, v{vT+1}")
                A(f"v_add_co_u32 v{vT+2}, vcc, v{vT+6}, v{vT+1}"); A(f"v_addc_co_u32 v{vT+3}, vcc, 0, v{vT+7}, vcc")
                for i, (k, y) in enumerate(rows):
                    A(f"global_load_dwordx4 {v4(WT+4*(y*4+k))}, {v2(vT+2)}, off offset:{(i%2)*3456} {gpol}")
                    if LTH < 63: A(f"s_waitcnt vmcnt({LTH})")
                    if i % 2 == 1 and i < len(rows) - 1:
                        A(f"v_add_co_u32 v{vT+2}, vcc, {2*3456}, v{vT+2}"); A(f"v_addc_co_u32 v{vT+3}, vcc, 0, v{vT+3}, vcc")
    def dn_late(Ld):
        if late_dn:
            srd(SA, "s20", "s21", 1728*1280)
            A(f"v_lshrrev_b32 v{vT+1}, 4, v{vLANE}"); A(f"v_mul_u32_u24 v{vT+1}, {8*1280}, v{vT+1}")
            A(f"v_and_b32 v{vT+2}, 15, v{vLANE}"); A(f"v_lshl_add_u32 v{vT+1}, v{vT+2}, 4, v{vT+1}")
            A(f"s_mul_i32 s69, {sF}, {32*1280}"); A(f"s_lshl_b32 s68, {sWAVE}, 8"); A("s_add_u32 s69, s69, s68")
            for t in range(8):
                if t % 2 == 0: A(f"s_add_u32 s68, s69, {t*1280}")
                A(f"buffer_load_dwordx4 {v4(WD+4*t)}, v{vT+1}, {SA}, s68 offen offset:{(t%2)*1280} {wpol}")
            A(f"s_cmp_lg_u32 {sWAVE}, 1"); A(f"s_cbranch_scc1 {Ld}")
            for t in range(8):
                if t % 2 == 0: A(f"s_add_u32 s68, s69, {t*1280}")
                A(f"buffer_load_dwordx4 {v4(WD2+4*t)}, v{vT+1}, {SA}, s68 offen offset:{(t%2)*1280 + 768} {wpol}")
    def wo_late():
        if late_wo:
            srd(SA, "s12", "s13", 4096*1280)
            A(f"v_bfe_u32 v{vT+1}, v{vLANE}, 4, 1"); A(f"v_lshlrev_b32 v{vT+1}, 5, v{vT+1}")
            A(f"v_lshrrev_b32 v{vT+2}, 5, v{vLANE}"); A(f"v_add_u32 v{vT+1}, v{vT+1}, v{vT+2}")
            A(f"v_bfe_u32 v{vT+2}, v{vLANE}, 3, 1"); A(f"v_lshl_add_u32 v{vT+1}, v{vT+2}, 4, v{vT+1}")
            A(f"v_mul_u32_u24 v{vT+1}, 1280, v{vT+1}")
            A(f"v_and_b32 v{vT+2}, 7, v{vLANE}"); A(f"v_lshl_add_u32 v{vT+1}, v{vT+2}, 4, v{vT+1}")
            A(f"s_lshr_b32 s68, {sWAVE}, 1"); A("s_lshl_b32 s68, s68, 3"); A(f"s_add_u32 s68, s68, {sG}"); A("s_lshl_b32 s68, s68, 1")
            A(f"s_and_b32 s69, {sWAVE}, 1"); A("s_add_u32 s68, s68, s69"); A(f"s_mul_i32 s69, s68, {64*1280}")
            A(f"s_lshl_b32 s68, {sK}, 7"); A("s_add_u32 s69, s69, s68")
            for n in range(8):
                if n % 2 == 0: A(f"s_add_u32 s68, s69, {2*n*1280}")
                A(f"buffer_load_dwordx4 {v4(WT+4*n)}, v{vT+1}, {SA}, s68 offen offset:{(n%2)*2560} {wpol}")
        if wo_pre: wo_prep()
    def wo_prep():
        A(f"v_lshrrev_b32 v{vT+4}, 5, v{vLANE}"); A(f"v_lshlrev_b32 v{vT+4}, 10, v{vT+4}")
        A(f"v_and_b32 v{vT+6}, 31, v{vLANE}"); A(f"v_lshl_add_u32 v{vT+4}, v{vT+6}, 4, v{vT+4}")
        A(f"s_lshr_b32 s4, {sWAVE}, 1"); A("s_lshl_b32 s4, s4, 3"); A(f"s_add_u32 s4, s4, {sG}"); A("s_lshl_b32 s4, s4, 13")
        A(f"s_and_b32 s5, {sWAVE}, 1"); A("s_lshl_b32 s5, s5, 9"); A("s_add_u32 s4, s4, s5"); A(f"s_add_u32 s4, s4, {WS_OP}"); A("s_add_u32 s5, s4, 4096")
        A(f"v_bfe_u32 v{vT}, v{vLANE}, 4, 1"); A(f"v_lshlrev_b32 v{vT}, 5, v{vT}")
        A(f"v_lshrrev_b32 v{vT+1}, 5, v{vLANE}"); A(f"v_add_u32 v{vT}, v{vT}, v{vT+1}")
        A(f"v_bfe_u32 v{vT+1}, v{vLANE}, 3, 1"); A(f"v_lshl_add_u32 v{vT}, v{vT+1}, 4, v{vT}")
        A(f"v_lshlrev_b32 v{vT}, 7, v{vT}")
        A(f"v_and_b32 v{vT+1}, 7, v{vLANE}"); A(f"v_lshl_add_u32 v{vT}, v{vT+1}, 4, v{vT}")
        A(f"s_lshl_b32 s68, {sWAVE}, 13"); A(f"v_add_u32 v{vT}, s68, v{vT}")
        if not late_wo:
            for n in range(8): A(f"ds_read_b128 {v4(WT+4*n)}, v{vT} offset:{L_W + 2*n*128}")
        acc_addr(vT+5)
        A(f"v_lshrrev_b32 v{vT+7}, 5, v{vLANE}"); A(f"v_lshlrev_b32 v{vT+7}, 11, v{vT+7}"); A(f"v_lshl_add_u32 v{vT+7}, v{vT+6}, 3, v{vT+7}")
        A(f"v_lshlrev_b32 v{vT+8}, 3, v{vLANE}")
        if rep:
            A(f"v_lshrrev_b32 v{vT+8}, 5, v{vLANE}"); A(f"v_mul_u32_u24 v{vT+8}, 20480, v{vT+8}"); A(f"v_lshl_add_u32 v{vT+8}, v{vT+6}, 3, v{vT+8}")
        A(f"s_mul_i32 s6, {sG}, 2560"); A(f"s_lshl_b32 s7, {sK}, 8"); A("s_add_u32 s6, s6, s7"); A(f"s_add_u32 s6, s6, {WS_YP}")
        if rep:
            for c in range(1, 4): A(f"s_add_u32 s{12+c}, s6, {c*40960}")
    def dma_loop(voff, soff, step, count, pol):
        L = U("dma")
        A(f"s_mov_b32 s69, {count}")
        A.label(L)
        A(f"buffer_load_dwordx4 v{voff}, {SA}, {soff} offen {pol} lds")
        A(f"s_add_u32 {soff}, {soff}, {step}"); A("s_add_u32 m0, m0, 0x400")
        A(f"s_waitcnt vmcnt({DMAD-1})")
        A("s_sub_u32 s69, s69, 1"); A("s_cmp_lg_u32 s69, 0"); A(f"s_cbranch_scc1 {L}")

    A(f"; @launch grid=(256,1,1) block=(512,1,1) lds={L_W if (late_wo and late_gu and late_dn) else L_END}")
    A('.amdgcn_target "amdgcn-amd-amdhsa--gfx950"')
    A(".text"); A(f".globl {KN}"); A(".p2align 8"); A(f".type {KN},@function"); A.label(KN)
    stamp(0)
    if diag_hold: A("s_memrealtime s[96:97]")
    A("s_cmp_ge_u32 s2, 256"); A("s_cbranch_scc1 L_end")
    A("s_load_dwordx16 s[4:19], s[0:1], 0")
    A("s_load_dwordx8 s[20:27], s[0:1], 64")
    A("s_load_dwordx4 s[28:31], s[0:1], 96")
    A("v_lshrrev_b32 v1, 6, v0"); A(f"v_and_b32 v{vLANE}, 63, v0")
    A(f"v_readfirstlane_b32 {sWAVE}, v1")
    A(f"v_lshlrev_b32 v{vLANE16}, 4, v{vLANE}")
    A(f"s_lshr_b32 {sHD}, s2, 3"); A(f"s_and_b32 {sG}, s2, 7"); A(f"s_lshl_b32 {sK}, {sG}, 2"); A(f"s_add_u32 {sK}, {sK}, {sHD}"); A(f"s_and_b32 {sK}, {sK}, 31"); A(f"s_lshr_b32 {sS}, {sK}, 2")
    if LAY and SM == 3: A(f"s_add_u32 {sS}, {sG}, {sHD}"); A(f"s_and_b32 {sS}, {sS}, 7")
    if LAY and SM == 0: A(f"s_mov_b32 {sS}, {sG}")
    A(f"s_mov_b32 {sL2E}, {fh(LOG2E)}"); A(f"s_mov_b32 {sSC}, {fh(SCALE)}")
    A(f"s_sub_u32 s68, {sK}, 10"); A(f"s_mul_i32 {sF}, {sG}, 7"); A(f"s_add_u32 {sF}, {sF}, s68")
    A("s_cmp_lt_u32 s68, 7"); A(f"s_cselect_b32 {sF}, {sF}, 63")
    A(f"v_mov_b32 v{vZERO}, 0"); A(f"v_mov_b32 v{vONE}, 1")
    A(f"s_cmp_eq_u32 {sWAVE}, 0"); A("s_cbranch_scc1 L_ctrl0")
    extra = [(e_wq if (k < 5 or k >= 17) else e_mod if k < 15 else 0.0) + (e_wo if k < 10 else e_ffn if k < 17 else 0.0) for k in range(32)]
    nst = [int(NS - e) for e in extra]
    NWS = NL
    assert min(nst) >= NPW*(1+NE) + NL*NE
    B = []
    for a in range(4):
        b = [0]
        for sp in range(8): b.append(b[-1] + nst[a + 4*sp])
        B.append(b)
    DYN0 = [b[8] for b in B]
    def pack(b): return sum(((NS*(sp+1) - b[sp+1]) & 0xff) << (8*sp) for sp in range(8))
    for b in B: assert NS*8 - b[8] < 256
    P = [pack(b) for b in B]
    if LAY:
        DYN0 = [8*NS]*4
        A(f"s_mov_b32 {sNT}, {NS}"); A(f"s_mul_i32 {sROT}, {sHD}, {ROT}"); A(f"s_lshl_b32 {sST}, {sS}, 7"); A(f"s_add_u32 {sST}, {sST}, {sROT}")
    else:
        A(f"s_mov_b32 s38, {hex(P[0] & 0xffffffff)}"); A(f"s_mov_b32 s39, {hex(P[0] >> 32)}")
        A(f"s_and_b32 s68, {sK}, 3")
        for a in range(1, 4):
            if P[a] != P[0]:
                A(f"s_cmp_eq_u32 s68, {a}"); A(f"s_cselect_b32 s38, {hex(P[a] & 0xffffffff)}, s38"); A(f"s_cselect_b32 s39, {hex(P[a] >> 32)}, s39")
        A(f"s_lshl_b32 s68, {sS}, 3")
        A("s_lshr_b64 s[66:67], s[38:39], s68"); A("s_and_b32 s66, s66, 0xff")
        A("s_lshl_b64 s[38:39], s[38:39], 8")
        A("s_lshr_b64 s[38:39], s[38:39], s68"); A("s_and_b32 s38, s38, 0xff")
        A(f"s_sub_u32 {sNT}, s38, s66"); A(f"s_add_u32 {sNT}, {sNT}, {NS}")
        A(f"s_mul_i32 {sROT}, {sHD}, {ROT}")
        A(f"s_mul_i32 {sST}, {sS}, {NS}"); A(f"s_sub_u32 {sST}, {sST}, s38"); A(f"s_add_u32 {sST}, {sST}, {sROT}")
    A(f"s_lshl_b32 s68, {sHD}, 22")
    def tile_addr(sreg, add):
        A(f"s_add_u32 s69, {sreg}, {add}"); A("s_and_b32 s69, s69, 1023"); A("s_lshl_b32 s69, s69, 12")
        A(f"v_add_u32 v{vADDR}, s69, v{vLANE16}")
    A(f"s_add_u32 s67, {sST}, {sWAVE}"); A("s_sub_u32 s67, s67, 1")
    tile_addr("s67", 0)
    A("s_waitcnt lgkmcnt(0)")
    A("s_add_u32 s40, s6, s68"); A("s_addc_u32 s41, s7, 0"); A("s_mov_b32 s42, 0x400000"); A("s_mov_b32 s43, 0x20000")
    A("s_add_u32 s44, s8, s68"); A("s_addc_u32 s45, s9, 0"); A("s_mov_b32 s46, 0x400000"); A("s_mov_b32 s47, 0x20000")
    def loadK(slot):
        for u in range(4): A(f"buffer_load_dwordx4 {v4(RING+32*slot+4*u)}, v{vADDR}, {SK}, 0 offen offset:{u*1024} {pol}")
    def loadV(slot):
        for u in range(4): A(f"buffer_load_dwordx4 {v4(RING+32*slot+16+4*u)}, v{vADDR}, {SV}, 0 offen offset:{u*1024} {pol}")
    if NPW < 7:
        A(f"s_cmp_gt_u32 {sWAVE}, {NPW}"); A("s_cbranch_scc1 L_idle")
    def stream_setup():
        A("s_barrier")
        common_setup()
        A(f"s_lshl_b32 s38, {sHD}, 8"); A(f"s_add_u32 s38, s38, {WS_CNT}"); A("s_add_u32 s38, s38, s30"); A("s_addc_u32 s39, s31, 0")
        A(f"s_mov_b32 {sQ}, 1024"); A(f"s_cmp_lt_u32 {sF}, 54"); A(f"s_cselect_b32 {sQ}, {Q_ffn}, {sQ}"); A(f"s_cmp_lt_u32 {sK}, 10"); A(f"s_cselect_b32 {sQ}, {Q_wo}, {sQ}")
        tag_finish()
        A(f"v_mov_b32 v{vM}, {fh(-1e30)}"); A(f"v_mov_b32 v{vML}, {fh(-1e30)}"); A(f"v_mov_b32 v{vL}, 0")
        for r in range(4): A(f"v_mov_b32 v{vACC+r}, 0")
    loadK(1)
    stream_setup()
    A(f"s_waitcnt vmcnt({TH0})")
    if stamps == 4: stamp(1)
    loadV(1)
    for i, k in enumerate(list(range(2, 1 + NE)) + [0]):
        tile_addr("s67", NPW*(i+1))
        A(f"s_waitcnt vmcnt({TH})"); loadK(k)
        A(f"s_waitcnt vmcnt({TH})"); loadV(k)
    if stamps == 4: stamp(2)
    if stamps and stamps < 3:
        A(f"s_cmp_lg_u32 {sWAVE}, 1"); A("s_cbranch_scc1 L_ns14")
        stamp(14); stamp_dump([14], final=False)
        A.label("L_ns14")
    A(f"v_and_b32 v{vT}, 15, v{vLANE}"); A(f"v_lshlrev_b32 v{vT}, 4, v{vT}")
    A(f"s_mov_b32 {sTO}, 0x400000")
    A.label("L_qwait")
    A(f"ds_read_b32 v{vT+1}, v{vZERO} offset:{L_FLAG}")
    A(f"s_sub_u32 {sTO}, {sTO}, 1"); A(f"s_cmp_eq_u32 {sTO}, 0"); A("s_cbranch_scc1 L_qgo")
    A("s_waitcnt lgkmcnt(0)")
    A(f"v_cmp_eq_u32 vcc, 0, v{vT+1}")
    A("s_cbranch_vccnz L_qwait")
    A.label("L_qgo")
    A(f"ds_read_b128 {v4(vQ)}, v{vT} offset:{L_Q}")
    def req_ticket():
        A("s_mov_b64 exec, 1"); A(f"ds_add_rtn_u32 v{vTKT}, v{vZERO}, v{vONE} offset:{L_TICKET}"); A("s_mov_b64 exec, -1")
    rescue = []
    def qk(slot):
        kb = RING + 32*slot
        for t in range(4):
            for u in range(4):
                if t == 0: A(f"v_dot2_f32_bf16 v{vR+u}, v{kb+4*u}, v{vQ}, 0")
                else: A(f"v_dot2c_f32_bf16 v{vR+u}, v{kb+4*u+t}, v{vQ+t}")
        A(f"v_add_f32_dpp v{vA_}, v{vR}, v{vR} row_ror:8 row_mask:0xf bank_mask:0x3")
        A(f"v_add_f32_dpp v{vB_}, v{vR+2}, v{vR+2} row_ror:8 row_mask:0xf bank_mask:0x3")
        A(f"v_add_f32_dpp v{vA_}, v{vR+1}, v{vR+1} row_ror:8 row_mask:0xf bank_mask:0xc")
        A(f"v_add_f32_dpp v{vB_}, v{vR+3}, v{vR+3} row_ror:8 row_mask:0xf bank_mask:0xc")
        A(f"v_add_f32_dpp v{vC_}, v{vA_}, v{vA_} row_shl:4 row_mask:0xf bank_mask:0x5")
        A(f"v_add_f32_dpp v{vC_}, v{vB_}, v{vB_} row_shr:4 row_mask:0xf bank_mask:0xa")
        dpp_red("v_add_f32", [vC_], QUAD)
        rbf(vC_, vC_)
        A(f"v_mul_f32 v{vC_}, {sSC}, v{vC_}")
        rbf(vC_, vC_)
        Lr, Lb = U("resc"), U("back")
        A(f"v_cmp_gt_f32 vcc, v{vC_}, v{vM}")
        A(f"s_cbranch_vccnz {Lr}")
        A.label(Lb)
        rescue.append((Lr, Lb))
        A(f"v_fma_f32 v{vE_}, v{vC_}, {sL2E}, -v{vML}")
        A(f"v_exp_f32 v{vE_}, v{vE_}")
        A(f"v_add_f32 v{vL}, v{vL}, v{vE_}")
        A(f"v_cvt_pk_bf16_f32 v{vE_}, v{vE_}, v{vE_}")
        lane_of = [0, 8, 4, 12]
        for u in range(4):
            for t in range(4): A(f"v_and_b32_dpp v{vAOP+4*u+t}, v{vE_}, v{vM2+t} row_newbcast:{lane_of[u]} {DPPF}")
    def pv(slot):
        vb = RING + 32*slot + 16
        for u in range(4):
            A(f"v_mfma_f32_16x16x32_bf16 {v4(vACC)}, {v4(vAOP+4*u)}, {v4(vb+4*u)}, {v4(vACC)}")
    A("s_waitcnt lgkmcnt(0)")
    if NL < NPW:
        A(f"s_cmp_gt_u32 {sWAVE}, {NL}"); A("s_cbranch_scc1 L_resv")
    for k in range(1, 1 + NE):
        if k > 1:
            A("s_waitcnt vmcnt(0)")
            loadV(0)
        tile_addr("s67", NPW*(NE+1) + NL*(k-1))
        qk(0)
        A("s_waitcnt vmcnt(0)")
        loadK(0)
        pv(0)
        qk(k); pv(k)
    if stamps == 4: stamp(3)
    req_ticket()
    A.label("L_loop")
    A("s_waitcnt vmcnt(0) lgkmcnt(0)")
    loadV(0)
    A(f"v_readfirstlane_b32 {sTK}, v{vTKT}")
    if stamps == 4: stamp(4)
    A(f"s_cmp_ge_u32 {sTK}, {sNT}"); A("s_cbranch_scc1 L_dyn_in")
    req_ticket()
    tile_addr(sTK, sST)
    qk(0)
    A("s_waitcnt vmcnt(0)")
    loadK(0)
    pv(0)
    A("s_branch L_loop")
    if NL < NPW:
        A.label("L_resv")
        for k in range(1, 1 + NE):
            qk(k); pv(k)
        A("s_branch L_fin")
    if NPW < 7:
        A.label("L_idle")
        stream_setup()
        A("s_branch L_part")
    A.label("L_dyn")
    A(f"s_cmp_ge_u32 {sTK}, {1024 - XD}"); A("s_cbranch_scc1 L_deep")
    A("s_waitcnt vmcnt(0)")
    A.label("L_deep")
    loadV(0)
    A.label("L_dyn_in")
    A(f"s_mov_b32 {sTK}, 1"); A(f"s_atomic_add {sTK}, {SCNT}, 0 glc")
    A("s_waitcnt vmcnt(4)")
    qk(0)
    A("s_waitcnt lgkmcnt(0)")
    A(f"s_cmp_ge_u32 {sTK}, 1024"); A("s_cbranch_scc1 L_fin2")
    if LAY:
        A(f"s_and_b32 s68, {sTK}, 7"); A("s_lshl_b32 s68, s68, 7"); A(f"s_lshr_b32 s69, {sTK}, 3"); A("s_add_u32 s68, s68, s69")
        tile_addr("s68", sROT)
    else: tile_addr(sTK, sROT)
    A("s_waitcnt vmcnt(0)")
    loadK(0)
    pv(0)
    A(f"s_cmp_lt_u32 {sTK}, {sQ}"); A("s_cbranch_scc1 L_dyn")
    loadV(0)
    A.label("L_fin")
    A("s_waitcnt vmcnt(4)")
    qk(0)
    A.label("L_fin2")
    row_red("v_add_f32", vL, vA_)
    A("s_waitcnt vmcnt(0)")
    A.label("L_last")
    pv(0)
    A.label("L_part")
    if pf:
        A("s_mov_b64 exec, 1"); A(f"ds_add_rtn_u32 v{vTKT}, v{vZERO}, v{vONE} offset:{L_RANK}"); A("s_mov_b64 exec, -1")
    A(f"s_lshl_b32 s69, {sWAVE}, 10"); A(f"v_add_u32 v{vT}, s69, v{vNAT}")
    A(f"v_mov_b32 v{vACC+2}, v{vML}"); A(f"v_mov_b32 v{vACC+3}, v{vL}")
    A(f"ds_write_b128 v{vT}, {v4(vACC)} offset:{L_PART-1024}")
    A("s_waitcnt lgkmcnt(0)")
    if pf and late_wo:
      if oldpf:
        per = 20 // NR
        A(f"v_readfirstlane_b32 s66, v{vTKT}")
        A(f"s_sub_u32 s66, s66, {7 - NWS}")
        A(f"s_cmp_ge_u32 s66, {NR}"); A("s_cbranch_scc1 L_pfdone")
        srd(SA, "s12", "s13", 4096*1280)
        A(f"s_and_b32 s68, {sHD}, 24"); A(f"s_add_u32 s68, s68, {sG}"); A(f"s_mul_i32 s68, s68, {128*1280}")
        A(f"s_and_b32 s69, {sHD}, 7"); A(f"s_mul_i32 s69, s69, {20*1024}"); A("s_add_u32 s68, s68, s69")
        A(f"s_mul_i32 s69, s66, {per*1024}"); A("s_add_u32 s68, s68, s69")
        for n in range(per):
            if n and n % 4 == 0: A("s_add_u32 s68, s68, 4096")
            A(f"buffer_load_dwordx4 {v4(PF)}, v{vLANE16}, {SA}, s68 offen offset:{(n%4)*1024} {pfpol}")
      else:
        assert NWS == 6
        A(f"v_readfirstlane_b32 s66, v{vTKT}")
        A(f"s_sub_u32 s66, s66, {1 + R0}")
        A(f"s_cmp_ge_u32 s66, 3"); A("s_cbranch_scc1 L_pfdone")
        srd(SA, "s12", "s13", 4096*1280)
        A(f"s_mul_i32 s68, {sHD}, 3"); A("s_add_u32 s66, s66, s68")
        A("s_lshr_b32 s68, s66, 4"); A("s_add_u32 s68, s68, 1")
        A("s_and_b32 s69, s68, 1"); A("s_lshr_b32 s68, s68, 1"); A("s_lshl_b32 s68, s68, 3"); A(f"s_add_u32 s68, s68, {sG}")
        A("s_lshl_b32 s68, s68, 1"); A("s_add_u32 s68, s68, s69"); A(f"s_mul_i32 s68, s68, {80*1024}")
        A("s_and_b32 s69, s66, 15"); A(f"s_mul_i32 s69, s69, {5*1024}"); A("s_add_u32 s68, s68, s69")
        for n in range(5):
            if n and n % 4 == 0: A("s_add_u32 s68, s68, 4096")
            A(f"buffer_load_dwordx4 {v4(PF)}, v{vLANE16}, {SA}, s68 offen offset:{(n%4)*1024} {pfpol}")
      A.label("L_pfdone")
    if wo_pre: late_loads("p", ffn=False)
    if stamps == 4:
        A(f"s_cmp_lg_u32 {sWAVE}, 1"); A("s_cbranch_scc1 L_ns4")
        stamp(5); stamp_dump([1, 2, 3, 4, 5], final=False)
        A.label("L_ns4")
    A("s_barrier")
    if abl: A("s_endpgm"); A.label("L_abl_dead")
    if bar3: A("s_barrier")
    if pf2:
        A(f"s_cmp_lt_u32 {sK}, 17"); A("s_cbranch_scc1 L_pf2done")
        A(f"s_sub_u32 s66, {sK}, 17"); A("s_mul_i32 s66, s66, 7"); A(f"s_add_u32 s66, s66, {sWAVE}"); A("s_sub_u32 s66, s66, 1")
        row0 = 160 * (1 + len(early_w)); npair = (640 - row0) // 160
        A("s_cmp_ge_u32 s66, 80"); A("s_cbranch_scc1 L_pf2dn")
        srd(SA, "s16", "s17", 640*3456); srd(SB, "s18", "s19", 640*3456)
        A(f"v_lshrrev_b32 v{vT+1}, 5, v{vLANE}"); A(f"v_mul_u32_u24 v{vT+1}, 3456, v{vT+1}")
        A(f"v_and_b32 v{vT+2}, 31, v{vLANE}"); A(f"v_lshl_add_u32 v{vT+1}, v{vT+2}, 4, v{vT+1}")
        A(f"s_mul_i32 s68, {sG}, 7"); A("s_lshr_b32 s68, s68, 1"); A("s_min_u32 s68, s68, 23"); A("s_lshl_b32 s68, s68, 7")
        A(f"s_mul_i32 s69, s66, {2*npair*3456}"); A("s_add_u32 s68, s68, s69"); A(f"s_add_u32 s68, s68, {row0*3456}")
        for n in range(npair):
            A(f"buffer_load_dwordx4 {v4(PF)}, v{vT+1}, {SA}, s68 offen {pfpol}")
            if PFTH < 63: A(f"s_waitcnt vmcnt({PFTH})")
            A(f"buffer_load_dwordx4 {v4(PF)}, v{vT+1}, {SB}, s68 offen {pfpol}")
            if PFTH < 63: A(f"s_waitcnt vmcnt({PFTH})")
            if n < npair - 1: A(f"s_add_u32 s68, s68, {2*3456}")
        A("s_waitcnt vmcnt(0)")
        A("s_endpgm")
        A.label("L_pf2dn")
        srd(SA, "s20", "s21", 1728*1280)
        A(f"s_mul_i32 s68, {sG}, {7*40960}"); A("s_sub_u32 s69, s66, 80"); A(f"s_mul_i32 s69, s69, {11520}"); A("s_add_u32 s68, s68, s69")
        A(f"v_add_u32 v{vT+1}, s68, v{vLANE16}")
        for n in range(12):
            if n and n % 4 == 0: A(f"v_add_u32 v{vT+1}, 0x1000, v{vT+1}")
            A(f"buffer_load_dwordx4 {v4(PF)}, v{vT+1}, {SA}, 0 offen offset:{(n%4)*1024} {pfpol}")
            if PFTH < 63: A(f"s_waitcnt vmcnt({PFTH+1})")
        A("s_waitcnt vmcnt(0)")
        A("s_endpgm")
        A.label("L_pf2done")
    if early_w:
        A(f"s_cmp_lt_u32 {sK}, 10"); A("s_cbranch_scc1 L_lb")
        for w in early_w:
            A(f"s_cmp_eq_u32 {sWAVE}, {w}"); A("s_cbranch_scc1 L_tail")
        A.label("L_lb")
    late_loads("a", wo=not wo_pre, dn=not dsplit)
    A.label("L_tail")
    A(f"s_cmp_lt_u32 {sK}, 10"); A("s_cbranch_scc1 L_wo")
    A(f"s_cmp_ge_u32 {sF}, 54"); A("s_cbranch_scc1 L_exit")
    X0, GA = 24, 26
    C1, SBv = 12, 6
    CC = [12, 13, 14, 15, 28]; SS = [RING+36, RING+37, RING+38, RING+39, 29]
    SEL0, SEL1, GB = 30, 31, 6
    A(f"s_mov_b32 s22, {WS_MR}")
    A(f"s_cmp_gt_u32 {sWAVE}, 3"); A("s_cbranch_scc1 L_gprep")
    A(f"v_lshrrev_b32 v{vT}, 3, v{vLANE}"); A(f"v_and_b32 v{vT+1}, 3, v{vLANE}"); A(f"v_lshl_add_u32 v{vT+1}, v{vT}, 2, v{vT+1}")
    if not late_gu:
        A(f"v_and_b32 v{vT+2}, 3, v{vLANE}"); A(f"v_lshlrev_b32 v{vT+2}, 4, v{vT+2}")
        A(f"v_bfe_u32 v{vT+3}, v{vLANE}, 2, 1"); A(f"v_mul_u32_u24 v{vT+3}, 40960, v{vT+3}"); A(f"v_add_u32 v{vT+2}, v{vT+2}, v{vT+3}")
        A(f"s_mul_i32 s68, {sWAVE}, {160*64}"); A(f"v_add_u32 v{vT+2}, s68, v{vT+2}")
        A(f"v_lshl_add_u32 v{vT+3}, v{vT}, 10, v{vT+2}"); A(f"v_lshl_add_u32 v{vT+2}, v{vT}, 8, v{vT+2}")
        for y in range(4):
            for k in range(4): A(f"ds_read_b128 {v4(WT+4*(y*4+k))}, v{vT+3} offset:{L_W + (4*k+y)*64}")
            A("s_waitcnt lgkmcnt(4)")
        for k in range(4): A(f"ds_read_b128 {v4(WT+64+4*k)}, v{vT+2} offset:{L_W + (128+k)*64}")
    if not late_dn:
        A(f"v_lshrrev_b32 v{vT+2}, 4, v{vLANE}"); A(f"v_mul_u32_u24 v{vT+2}, {8*1280}, v{vT+2}")
        A(f"v_and_b32 v{vT+3}, 15, v{vLANE}"); A(f"v_lshl_add_u32 v{vT+2}, v{vT+3}, 4, v{vT+2}")
        A(f"v_add_u32 v{vT+3}, {L_W + 81920 + 1024}, v{vT+2}")
        A(f"s_lshl_b32 s68, {sWAVE}, 8"); A(f"s_add_u32 s68, s68, {L_W + 81920}"); A(f"v_add_u32 v{vT+2}, s68, v{vT+2}")
        A("s_waitcnt lgkmcnt(4)")
        for t in range(8): A(f"ds_read_b128 {v4(WD+4*t)}, v{vT+2} offset:{t*1280}")
        A("s_waitcnt lgkmcnt(4)")
        for t in range(8): A(f"ds_read_b128 {v4(WD2+4*t)}, v{vT+3} offset:{t*1280}")
    A(f"s_mul_i32 s68, {sWAVE}, 640"); A(f"v_lshl_add_u32 v{vT+8}, v{vT+1}, 4, s68")
    A("s_add_u32 s68, s68, 512"); A(f"v_lshl_add_u32 v{vT+9}, v{vT+1}, 2, s68")
    A(f"v_lshlrev_b32 v{vT+2}, 1, v{vT+8}"); A(f"v_lshlrev_b32 v{vT+3}, 1, v{vT+9}"); A(f"v_and_b32 v{vT+3}, -16, v{vT+3}")
    acc_addr(vT+5)
    A(f"v_lshrrev_b32 v{vT+6}, 4, v{vLANE}"); A(f"v_lshlrev_b32 v{vT+6}, 3, v{vT+6}")
    A(f"v_and_b32 v{vT+7}, 7, v{vLANE}"); A(f"v_add_u32 v{vT+6}, v{vT+6}, v{vT+7}")
    A(f"v_bfe_u32 v{vT+7}, v{vLANE}, 3, 1"); A(f"v_lshl_add_u32 v{vT+6}, v{vT+7}, 5, v{vT+6}"); A(f"v_lshlrev_b32 v{vT+6}, 2, v{vT+6}")
    A(f"v_add_u32 v{vT+6}, {L_ACC}, v{vT+6}")
    A(f"s_mul_i32 s12, {sF}, 5120"); A(f"s_lshl_b32 s69, {sWAVE}, 10"); A("s_add_u32 s12, s12, s69"); A(f"s_add_u32 s12, s12, {WS_DP}")
    poll([(vT+2, "s22", 0, None), (vT+2, "s22", 16, None), (vT+3, "s22", 0, None)], RING)
    if dsplit and not (now & 1):
        A(f"s_cmp_eq_u32 {sWAVE}, 0"); A("s_cbranch_scc1 L_dnd")
        dn_late("L_dnd")
        A.label("L_dnd")
    for i in range(2):
        A(f"v_lshlrev_b32 v{SS[2*i]}, 16, v{RING+4*i+1}"); A(f"v_and_b32 v{SS[2*i+1]}, 0xffff0000, v{RING+4*i+1}")
        A(f"v_lshlrev_b32 v{CC[2*i]}, 16, v{RING+4*i+2}"); A(f"v_and_b32 v{CC[2*i+1]}, 0xffff0000, v{RING+4*i+2}")
    A(f"v_and_b32 v{vT+7}, 1, v{vLANE}"); A(f"v_lshlrev_b32 v{vT+7}, 4, v{vT+7}")
    A(f"v_lshrrev_b32 v{SS[4]}, v{vT+7}, v{RING+9}"); A(f"v_lshlrev_b32 v{SS[4]}, 16, v{SS[4]}")
    A(f"v_lshrrev_b32 v{CC[4]}, v{vT+7}, v{RING+10}"); A(f"v_lshlrev_b32 v{CC[4]}, 16, v{CC[4]}")
    for c in CC: A(f"v_add_f32 v{c}, 1.0, v{c}")
    rbf2(CC[0], CC[1]); rbf2(CC[2], CC[3]); rbf(CC[4], CC[4])
    A("s_waitcnt lgkmcnt(0)" if dsplit else "s_waitcnt vmcnt(0) lgkmcnt(0)")
    stamp(8)
    A(f"s_cmp_lg_u32 {sWAVE}, 0"); A(f"s_cbranch_scc1 {'L_gemv0' if wbar else 'L_gemv'}")
    A.label("L_gprep")
    A(f"s_and_b32 s23, {sWAVE}, 3"); A(f"s_cmp_eq_u32 {sWAVE}, 0"); A("s_cselect_b32 s23, 4, s23")
    A(f"v_and_b32 v{vT}, 31, v{vLANE}"); A(f"v_lshrrev_b32 v{vT+1}, 5, v{vLANE}")
    A(f"v_lshl_add_u32 v{vT+2}, v{vT}, 1, v{vT+1}"); A("s_lshl_b32 s68, s23, 6"); A(f"v_add_u32 v{vT+2}, s68, v{vT+2}")
    A(f"v_lshlrev_b32 v{vT+7}, 4, v{vT+2}"); A(f"v_lshlrev_b32 v{vT+3}, 3, v{vT+2}"); A(f"v_lshlrev_b32 v{vT+2}, 2, v{vT+2}")
    srd(SB, "s4", "s5", 1280)
    A(f"buffer_load_dword v{X0+1}, v{vT+2}, {SB}, 0 offen")
    A(f"v_mul_u32_u24 v{vT+4}, 2560, v{vT+1}"); A(f"v_lshl_add_u32 v{vT+4}, v{vT}, 4, v{vT+4}"); A("s_lshl_b32 s68, s23, 9"); A(f"v_add_u32 v{vT+4}, s68, v{vT+4}")
    A(f"s_mul_i32 s68, {sG}, {20480 if rep else 0}")
    for n in range(4): A(f"s_add_u32 s{4+n}, s68, {WS_YP + n*5120}")
    A("s_lshl_b32 s68, s23, 3"); A(f"v_mov_b32 v{vADDR}, s68")
    A(f"v_mov_b32 v{SEL0}, 0x3f80"); A(f"v_mov_b32 v{SEL1}, 0x3f800000")
    A(f"s_min_u32 s21, {sF}, 39")
    A(f"v_lshrrev_b32 v{vL}, 3, v{vLANE}"); A(f"v_mul_u32_u24 v{vL}, 5120, v{vL}")
    A(f"v_and_b32 v{vONE}, 7, v{vLANE}"); A(f"v_lshl_add_u32 v{vL}, v{vONE}, 4, v{vL}")
    A(f"s_lshl_b32 s68, s21, 7"); A(f"v_add_u32 v{vL}, s68, v{vL}")
    A(f"v_lshl_add_u32 v{vT}, v{vONE}, 4, s68")
    A(f"v_lshl_add_u32 v{vONE}, v{vONE}, 1, v{vT+1}")
    A(f"s_lshl_b32 s68, s21, 4"); A(f"v_add_u32 v{vONE}, s68, v{vONE}")
    A(f"v_lshlrev_b32 v{vTKT}, 2, v{vONE}"); A(f"v_lshlrev_b32 v{vONE}, 1, v{vONE}")
    for n in range(7): A(f"s_mov_b32 s{13+n}, {WS_DP + n*8*5120}")
    A(f"s_mov_b32 s21, {WS_MR+5120}")
    poll([(vT+7, "s22", 0, None), (vT, "s21", 0, None)], RING)
    A(f"v_lshlrev_b32 v{X0}, 16, v{X0+1}"); A(f"v_and_b32 v{X0+1}, 0xffff0000, v{X0+1}")
    A(f"v_lshlrev_b32 v{GA}, 16, v{RING}"); A(f"v_and_b32 v{GA+1}, 0xffff0000, v{RING}")
    A(f"v_mov_b32 v{GB}, v{RING+4}"); A("s_mov_b32 exec_lo, 0"); A(f"v_mov_b32 v{GB}, v{RING+5}"); A("s_mov_b64 exec, -1")
    srd(SB, "s26", "s27", 1280)
    if otouch: A(f"buffer_load_ushort v{vT}, v{vONE}, {SB}, 0 offen")
    if hb:
        A(f"s_lshl_b32 s23, s23, 11"); A(f"s_add_u32 s23, s23, {WS_FB}")
        flagwait("s23", 16)
    def ysum(b):
        for n in range(4):
            for r in range(4):
                src, sel = b + 4*n + 2*(r // 2), (SEL0, SEL1)[r % 2]
                if n == 0: A(f"v_dot2_f32_bf16 v{TMP+r}, v{src}, v{sel}, 0")
                else: A(f"v_dot2c_f32_bf16 v{TMP+r}, v{src}, v{sel}")
    if wbar: A("s_barrier")
    poll([(vT+4, f"s{4+n}", 0, None) for n in range(4)], RING, DB, ysum, ps=2 if stamps == 3 else None, tags=(1, 3), back=BSL)
    stamp(9)
    A(f"v_permlane32_swap_b32 v{TMP}, v{TMP+2}"); A(f"v_permlane32_swap_b32 v{TMP+1}, v{TMP+3}")
    A(f"v_pk_add_f32 {v2(TMP)}, {v2(TMP)}, {v2(TMP+2)}")
    A(f"v_pk_fma_f32 {v2(X0)}, {v2(TMP)}, {v2(GA)}, {v2(X0)}")
    A(f"v_add_f32 v{TMP}, v{X0}, v{X0+1}"); A(f"v_mul_f32 v{TMP+1}, v{X0}, v{X0}"); A(f"v_fmac_f32 v{TMP+1}, v{X0+1}, v{X0+1}")
    A(f"ds_write_b64 v{vT+3}, {v2(X0)} offset:{L_X2}")
    dpp_red("v_add_f32", [TMP, TMP+1], QUAD + BANK + BCAST)
    A("s_mov_b32 exec_lo, 0"); A("s_brev_b32 exec_hi, 1")
    A(f"ds_write_b64 v{vADDR}, {v2(TMP)} offset:{L_ST}")
    A("s_mov_b64 exec, -1")
    A("s_waitcnt lgkmcnt(0)")
    A(f"s_cmp_lg_u32 {sWAVE}, 0"); A("s_cbranch_scc1 L_final")
    if wbar:
        A("s_branch L_gemv")
        A.label("L_gemv0")
        A("s_barrier")
    A.label("L_gemv")
    A("s_barrier")
    fstamp(3)
    ST = vAOP; XX = RING + 40
    A(f"ds_read_b128 {v4(ST)}, v{vZERO} offset:{L_ST}"); A(f"ds_read_b128 {v4(ST+4)}, v{vZERO} offset:{L_ST+16}"); A(f"ds_read_b64 {v2(ST+8)}, v{vZERO} offset:{L_ST+32}")
    A(f"ds_read_b128 {v4(XX)}, v{vT+8} offset:{L_X2}"); A(f"ds_read_b32 v{XX+4}, v{vT+9} offset:{L_X2}")
    A(f"v_mov_b32 v{TMP+2}, {fh(1e-5)}")
    A("s_waitcnt lgkmcnt(2)" if stamps != 2 else "s_waitcnt lgkmcnt(0)")
    sum2([ST+2*n for n in range(5)], TMP)
    A(f"v_mul_f32 v{TMP}, {fh(1.0/640)}, v{TMP}")
    A(f"v_fmac_f32 v{TMP+2}, {fh(1.0/640)}, v{TMP+1}")
    A(f"v_fma_f32 v{TMP+2}, -v{TMP}, v{TMP}, v{TMP+2}")
    A(f"v_max_f32 v{TMP+2}, {fh(1e-5)}, v{TMP+2}")
    A(f"v_rsq_f32 v{TMP+2}, v{TMP+2}")
    A("s_waitcnt lgkmcnt(0)")
    for y in range(5): A(f"v_sub_f32 v{XX+y}, v{XX+y}, v{TMP}")
    for y in range(5): A(f"v_mul_f32 v{CC[y]}, v{CC[y]}, v{TMP+2}")
    for y in range(5): A(f"v_fmac_f32 v{SS[y]}, v{XX+y}, v{CC[y]}")
    for y in range(5): A(f"v_cvt_pk_bf16_f32 v{SS[y]}, v{SS[y]}, v{SS[y]}")
    fstamp(4)
    gemv(vACC, vM1, [(SS[y], qp(k), WT+4*(y*4+k), None) for y in range(5) for k in range(4)])
    acc_write(vT+5)
    fstamp(5)
    A("s_waitcnt lgkmcnt(0)")
    A("s_barrier")
    fstamp(7)
    RD = WT
    for k in range(4): A(f"ds_read2st64_b32 {v2(RD+2*k)}, v{vT+6} offset0:{2*k} offset1:{2*k+1}")
    A("s_waitcnt lgkmcnt(0)")
    sum2([RD+2*k for k in range(4)])
    A(f"v_add_f32 v{RD}, v{RD}, v{RD+1}")
    A(f"v_mul_f32 v{RD+2}, {fh(-LOG2E)}, v{RD}"); A(f"v_exp_f32 v{RD+2}, v{RD+2}")
    A(f"v_mul_f32_dpp v{RD+1}, v{RD}, v{RD} row_ror:8 {DPPF}")
    A(f"v_add_f32 v{RD+2}, 1.0, v{RD+2}"); A(f"v_rcp_f32 v{RD+2}, v{RD+2}")
    A(f"v_mul_f32 v{RD}, v{RD+1}, v{RD+2}")
    A(f"v_cvt_pk_bf16_f32 v{RD}, v{RD}, v{RD}")
    if dsplit: A("s_waitcnt vmcnt(0)")
    A(f"s_cmp_eq_u32 {sWAVE}, 1"); A("s_cbranch_scc1 L_down2")
    gemv(vACC, vM2, [(RD, f"row_newbcast:{t}", WD+4*t, None) for t in range(8)])
    publish(vACC, vNAT, "s12")
    if fin == 2: A("s_waitcnt vmcnt(0)")
    A("s_branch L_exit")
    A.label("L_down2")
    gemv(vACC, vM2, [(RD, f"row_newbcast:{t}", WD+4*t, None) for t in range(8)], ACC2, WD2)
    A(f"v_mov_b32 v{vACC+3}, {sTAG}"); A(f"v_mov_b32 v{ACC2+3}, {sTAG}")
    A(f"buffer_store_dwordx4 {v4(vACC)}, v{vNAT}, {SWS}, s12 offen {spol}")
    A(f"buffer_store_dwordx4 {v4(ACC2)}, v{vNAT}, {SWS}, s12 offen offset:3072 {spol}")
    stamp(10)
    if fin:
        A("s_waitcnt vmcnt(0)")
        A("s_barrier")
    if stamps:
        stamp_dump([8, 10] + ([3, 4, 5, 7] if stamps == 2 else []))
    A("s_endpgm")
    A.label("L_final")
    A("s_barrier")
    A(f"s_cmp_lg_u32 {sWAVE}, 7"); A("s_cbranch_scc1 L_end")
    A(f"ds_read_b32 v{X0}, v{vTKT} offset:{L_X2}")
    FB = RING + 48
    for i in range(DC):
        b = FB + 28*i + 24
        A(f"v_mov_b32 v{b}, 0"); A(f"v_mov_b32 v{b+1}, 0"); A(f"v_mov_b32 v{b+3}, {sTAG}")
    A("s_mov_b32 s68, -1"); A("s_mov_b32 s69, 0xffff")
    srd(SB, "s26", "s27", 1280)
    A("s_waitcnt vmcnt(0) lgkmcnt(0)")
    A(f"s_cmp_ge_u32 {sF}, 40"); A("s_cbranch_scc1 L_fin_dump")
    A("s_barrier")
    if fin: A("s_barrier")
    if CSL: A(f"s_sleep {CSL}")
    poll([(vL, f"s{13+n}", 0, None if n < 6 else "s[68:69]") for n in range(7)], FB, DC, lambda b: sum2([b+4*n for n in range(7)], GA), ps=14 if stamps == 3 else None)
    stamp(11)
    A(f"v_permlane32_swap_b32 v{GA}, v{GA+1}"); A(f"v_add_f32 v{GA}, v{GA}, v{GA+1}")
    xrow("v_add_f32", GA, GA+1, 16)
    A(f"v_add_f32_dpp v{GA}, v{GA}, v{GA} row_ror:8 {DPPF}")
    A(f"v_fma_f32 v{GA}, v{GA}, v{GB}, v{X0}"); A(f"v_cvt_pk_bf16_f32 v{GA}, v{GA}, v{GA}")
    A("s_mov_b32 exec_lo, 0xff"); A("s_mov_b32 exec_hi, 0xff")
    A(f"buffer_store_short v{GA}, v{vONE}, {SB}, 0 offen {opol}")
    A(f"s_cmp_lg_u32 {sF}, 0"); A("s_cbranch_scc1 L_fin_dump")
    A("s_mov_b64 exec, 1"); A(f"v_mov_b32 v{GA+1}, {sTAG}")
    A(f"buffer_store_dword v{GA+1}, v{vZERO}, {SWS}, 0 offen sc1")
    A.label("L_fin_dump")
    if stamps:
        A("s_waitcnt vmcnt(0)"); stamp(12)
        stamp_dump([9, 11, 12] + ([14, 2] if stamps == 3 else []))
    A("s_endpgm")
    A.label("L_wo")
    if not wo_pre: wo_prep()
    if hb:
        A(f"s_lshr_b32 s8, {sK}, 1"); A("s_lshl_b32 s8, s8, 11"); A(f"s_and_b32 s9, {sK}, 1"); A(f"s_lshl_b32 s10, {sG}, 1"); A("s_add_u32 s9, s9, s10"); A("s_lshl_b32 s9, s9, 7")
        A("s_add_u32 s8, s8, s9"); A(f"s_add_u32 s8, s8, {WS_FB}"); A(f"v_mov_b32 v{vT+9}, {sTAG}")
    def hb_send():
        A("s_waitcnt lgkmcnt(0)")
        A(f"v_readfirstlane_b32 s9, v{vTKT}")
        A("s_cmp_lg_u32 s9, 7"); A("s_cbranch_scc1 L_nohb")
        A("s_mov_b64 exec, 0xff")
        A(f"buffer_store_dwordx4 {v4(PF)}, v{vLANE16}, {SWS}, s8 offen sc1")
        A("s_mov_b64 exec, -1")
        A.label("L_nohb")
    def wo_combine(b):
        if hb:
            A(f"v_mov_b32 v{PF}, {sTAG}")
            A("s_mov_b64 exec, 1"); A(f"ds_add_rtn_u32 v{vTKT}, v{vZERO}, v{vONE} offset:{L_CNTA}"); A("s_mov_b64 exec, -1")
        lam = [b+4*n+2 for n in range(4)]
        t = TMP + 2
        A(f"v_max3_f32 v{t}, v{lam[0]}, v{lam[1]}, v{lam[2]}"); A(f"v_max_f32 v{t}, v{t}, v{lam[3]}")
        xrow("v_max_f32", t, t+1, 32)
        for n in range(4): A(f"v_sub_f32 v{lam[n]}, v{lam[n]}, v{t}")
        for n in range(4): A(f"v_exp_f32 v{lam[n]}, v{lam[n]}")
        A(f"v_add_f32 v{t}, v{lam[0]}, v{lam[1]}"); A(f"v_add_f32 v{t+1}, v{lam[2]}, v{lam[3]}")
        for r in range(2): A(f"v_mul_f32 v{TMP+r}, v{lam[0]}, v{b+r}")
        A(f"v_add_f32 v{t}, v{t}, v{t+1}")
        for n in range(1, 4):
            for r in range(2): A(f"v_fmac_f32 v{TMP+r}, v{lam[n]}, v{b+4*n+r}")
    if stamps == 5:
        stamp(1); A("s_waitcnt vmcnt(0)"); stamp(2)
    poll([(vT+4, "s4" if n < 2 else "s5", (n % 2)*2048, None) for n in range(4)], RING, DA, wo_combine, ps=5, back=ASL)
    stamp(7)
    if hb and hbpos == 0: hb_send()
    t = TMP + 2
    xrow("v_add_f32", t, t+1, 32)
    A(f"v_permlane32_swap_b32 v{TMP}, v{TMP+1}")
    A(f"v_rcp_f32 v{t}, v{t}")
    A(f"v_add_f32 v{TMP}, v{TMP}, v{TMP+1}")
    A(f"v_mul_f32 v{TMP}, v{TMP}, v{t}")
    A(f"v_cvt_pk_bf16_f32 v{TMP}, v{TMP}, v{TMP}")
    ysplit([TMP], TMP+2)
    if hb and hbpos == 1: hb_send()
    A("s_waitcnt lgkmcnt(0)")
    gemv(vACC, vM1, [(TMP + 2 + n // 4, qp(n % 4), WT+4*n, None) for n in range(8)])
    acc_write(vT+5)
    if hb and hbpos == 2: hb_send()
    if stamps == 5: stamp(3)
    A("s_waitcnt lgkmcnt(0)")
    A("s_barrier")
    if stamps == 5:
        stamp(4)
        A(f"s_cmp_lg_u32 {sWAVE}, 5"); A("s_cbranch_scc1 L_ns5")
        stamp_dump([1, 2, 3, 4, 5, 7]); A("s_endpgm")
        A.label("L_ns5")
    A(f"s_cmp_lg_u32 {sWAVE}, 0"); A("s_cbranch_scc1 L_end")
    for n in range(8): A(f"ds_read_b64 {v2(WT+2*n)}, v{vT+7} offset:{L_ACC+256*n}")
    A("s_waitcnt lgkmcnt(0)")
    sum2([WT+2*n for n in range(8)])
    A(f"v_mov_b32 v{WT+2}, v{WT}"); A(f"v_mov_b32 v{WT+3}, v{WT+1}")
    A(f"v_permlane32_swap_b32 v{WT}, v{WT+2}"); A(f"v_permlane32_swap_b32 v{WT+1}, v{WT+3}")
    A(f"v_pk_add_f32 {v2(WT)}, {v2(WT)}, {v2(WT+2)}")
    A(f"v_cvt_pk_bf16_f32 v{WT}, v{WT}, v{WT+1}"); A(f"v_mov_b32 v{WT+1}, {sTAG}")
    if not rep: A("s_mov_b32 exec_hi, 0")
    A(f"buffer_store_dwordx2 {v2(WT)}, v{vT+8}, {SWS}, s6 offen {spol}")
    if rep:
        for c in range(1, 4): A(f"buffer_store_dwordx2 {v2(WT)}, v{vT+8}, {SWS}, s{12+c} offen {spol}")
    stamp(13)
    A.label("L_exit")
    if WSTEP: A(".warm_end L_w2")
    if stamps:
        A(f"s_cmp_lg_u32 {sWAVE}, 0"); A("s_cbranch_scc1 L_end")
        stamp_dump([0, 13, 6, 14] if stamps == 5 else [0, 13, 6, 7] if stamps == 4 else [0, 13, 6, 1] + ([2] if stamps != 3 else []) + ([3, 4, 5, 7] if stamps != 2 else []), xcc=True)
    A("s_endpgm")
    for (Lr, Lb) in rescue:
        A.label(Lr)
        A(f"v_max_f32 v{vA_}, v{vC_}, v{vM}")
        row_red("v_max_f32", vA_, vB_)
        A(f"v_sub_f32 v{vB_}, v{vM}, v{vA_}"); A(f"v_mul_f32 v{vB_}, {sL2E}, v{vB_}"); A(f"v_exp_f32 v{vB_}, v{vB_}")
        A(f"v_mov_b32 v{vM}, v{vA_}"); A(f"v_mul_f32 v{vML}, {sL2E}, v{vA_}")
        A(f"v_mul_f32 v{vL}, v{vL}, v{vB_}")
        for r in range(2): A(f"v_mul_f32 v{vACC+r}, v{vACC+r}, v{vB_}")
        A(f"s_branch {Lb}")

    A.label("L_ctrl0")
    A("s_setprio 3")
    def lds_init():
        A(f"v_mov_b32 v{vT+4}, {NPW*(1+NE) + NL*NE}")
        for r in range(1, 4): A(f"v_mov_b32 v{vT+4+r}, 0")
        A(f"ds_write_b128 v{vZERO}, {v4(vT+4)} offset:{L_TICKET}")
    if eb: lds_init()
    A("s_waitcnt lgkmcnt(0)")
    if eb: A("s_barrier")
    def ctrl_init():
        common_setup()
        if not eb: lds_init()
        tag_finish()
        if not eb: A("s_barrier")
    if abl == 2:
        ctrl_init()
        A(f"s_and_b32 s68, {sHD}, 3"); A(f"s_mov_b32 s69, {DYN0[0]}")
        for a in range(1, 4):
            A(f"s_cmp_eq_u32 s68, {a}"); A(f"s_cselect_b32 s69, {DYN0[a]}, s69")
        A(f"v_mov_b32 v{vT}, s69"); A(f"s_lshl_b32 s68, {sHD}, 8"); A(f"s_add_u32 s68, s68, {WS_CNT}")
        A("s_mov_b64 exec, 1")
        A(f"buffer_store_dword v{vT}, v{vZERO}, {SWS}, s68 offen sc1")
        A("s_mov_b64 exec, -1")
        A(f"v_lshlrev_b32 v{vT}, 2, v{vLANE}"); A(f"v_mov_b32 v{vT+1}, 0x3f803f80"); A(f"ds_write_b32 v{vT}, v{vT+1} offset:{L_Q}"); A("s_waitcnt lgkmcnt(0)")
        A(f"ds_write_b32 v{vZERO}, v{vONE} offset:{L_FLAG}")
        A("s_branch L_ctrl_w")
        A.label("L_abl_dead3")
    A(f"s_sub_u32 s37, {sK}, 17"); A(f"s_add_u32 s68, {sK}, 15"); A(f"s_cmp_lt_u32 {sK}, 5"); A("s_cselect_b32 s37, s68, s37")
    A("s_cmp_lt_u32 s37, 20"); A("s_cbranch_scc1 L_ctrl_q")
    A(f"s_cmp_ge_u32 {sK}, 15"); A("s_cbranch_scc1 L_ctrl_none")
    A(f"s_sub_u32 s38, {sK}, 5")
    mod_loads("s38", sG)
    ctrl_init()
    mod_compute("s38", sG)
    stamp(1)
    A("s_branch L_hop2")
    A.label("L_ctrl_none")
    ctrl_init()
    A("s_branch L_hop2")
    A.label("L_ctrl_q")
    WQ = RING + 64
    XA = RING
    X0, X1 = 24, 25
    A("s_mul_i32 s38, s37, 52"); A("s_lshr_b32 s38, s38, 8"); A("s_mul_i32 s68, s38, 5"); A("s_sub_u32 s39, s37, s68")
    A("s_lshl_b32 s38, s38, 3"); A(f"s_add_u32 s38, s38, {sG}")
    srd(SB, "s4", "s5", 1280); srd(SA, "s10", "s11", 640*8192)
    A(f"v_lshlrev_b32 v{vT+2}, 2, v{vLANE}")
    for k in range(5): A(f"buffer_load_dword v{XA+2*k+1}, v{vT+2}, {SB}, 0 offen offset:{k*256}")
    A("s_lshl_b32 s68, s39, 8")
    A(f"buffer_load_dword v{X1}, v{vT+2}, {SB}, s68 offen")
    A(f"v_lshrrev_b32 v{vT}, 4, v{vLANE}"); A(f"v_lshlrev_b32 v{vT}, 18, v{vT}")
    A(f"v_and_b32 v{vT+1}, 15, v{vLANE}"); A(f"v_lshl_add_u32 v{vT+3}, v{vT+1}, 4, v{vT}")
    A("s_lshl_b32 s69, s39, 20"); A("s_lshl_b32 s68, s38, 8"); A("s_add_u32 s69, s69, s68")
    for n in range(32):
        u, j = n // 16, n % 16
        A(f"s_add_u32 s68, s69, {(2*j+u)*8192}")
        if pa & 2: A("s_mov_b32 s54, 0")
        A(f"buffer_load_dwordx4 {v4(WQ+4*n)}, v{vT+3}, {SA}, s68 offen {pol if qpol is None else qpol}")
    ctrl_init()
    A("s_and_b32 s68, s38, 3"); A(f"s_mov_b32 s69, {DYN0[0]}")
    for a in range(1, 4):
        A(f"s_cmp_eq_u32 s68, {a}"); A(f"s_cselect_b32 s69, {DYN0[a]}, s69")
    A(f"v_mov_b32 v{vT}, s69"); A("s_lshl_b32 s68, s38, 8"); A(f"s_add_u32 s68, s68, {WS_CNT}")
    A("s_cmp_lg_u32 s39, 0"); A("s_cbranch_scc1 L_nocnt")
    A("s_mov_b64 exec, 1")
    A(f"buffer_store_dword v{vT}, v{vZERO}, {SWS}, s68 offen sc1")
    A("s_mov_b64 exec, -1")
    A("s_waitcnt vmcnt(33)")
    A("s_branch L_cntj")
    A.label("L_nocnt")
    A("s_waitcnt vmcnt(32)")
    A.label("L_cntj")
    for k in range(5):
        A(f"v_lshlrev_b32 v{XA+2*k}, 16, v{XA+2*k+1}"); A(f"v_and_b32 v{XA+2*k+1}, 0xffff0000, v{XA+2*k+1}")
    A(f"v_lshlrev_b32 v{X0}, 16, v{X1}"); A(f"v_and_b32 v{X1}, 0xffff0000, v{X1}")
    t = vT + 8; a = XA
    A(f"v_add_f32 v{t}, v{a}, v{a+1}")
    for i in range(2, 10): A(f"v_add_f32 v{t}, v{t}, v{a+i}")
    wave_red("v_add_f32", t, t+1)
    A(f"v_mul_f32 v{t}, {fh(1.0/640)}, v{t}")
    for i in range(10): A(f"v_sub_f32 v{a+i}, v{a+i}, v{t}")
    A(f"v_mul_f32 v{t+2}, v{a}, v{a}")
    for i in range(1, 10): A(f"v_fmac_f32 v{t+2}, v{a+i}, v{a+i}")
    wave_red("v_add_f32", t+2, t+1)
    A(f"v_mul_f32 v{t+2}, {fh(1.0/640)}, v{t+2}")
    rbf2(t, t+2)
    A(f"v_add_f32 v{t+2}, {fh(1e-5)}, v{t+2}"); rbf(t+2, t+2)
    A(f"v_sqrt_f32 v{t+2}, v{t+2}"); rbf(t+2, t+2)
    A(f"v_rcp_f32 v{t+2}, v{t+2}")
    A(f"v_sub_f32 v{X0}, v{X0}, v{t}"); A(f"v_sub_f32 v{X1}, v{X1}, v{t}"); rbf2(X0, X1)
    A(f"v_mul_f32 v{X0}, v{X0}, v{t+2}"); A(f"v_mul_f32 v{X1}, v{X1}, v{t+2}"); rbf2(X0, X1)
    A("s_lshl_b32 s6, s39, 13"); A(f"s_add_u32 s6, s6, {WS_MODP}"); A("s_add_u32 s7, s6, 4096"); A(f"s_add_u32 s8, s6, {5*8192}"); A("s_add_u32 s9, s8, 4096")
    stamp(1)
    spre("s6", [(n // 8)*5*8192 + (n % 8)*1024 for n in range(16)])
    poll([(vLANE16, f"s{6+n//4}", (n % 4)*1024, None) for n in range(16)], RING)
    stamp(2)
    sum2([RING+4*n for n in range(8)]); sum2([RING+32+4*n for n in range(8)])
    rbf2(RING, RING+1); rbf2(RING+32, RING+33)
    c0, c1, s0, s1 = RING+32, RING+33, RING, RING+1
    A(f"v_add_f32 v{c0}, 1.0, v{c0}"); A(f"v_add_f32 v{c1}, 1.0, v{c1}"); rbf2(c0, c1)
    A(f"v_mul_f32 v{X0}, v{X0}, v{c0}"); A(f"v_mul_f32 v{X1}, v{X1}, v{c1}"); rbf2(X0, X1)
    A(f"v_add_f32 v{X0}, v{X0}, v{s0}"); A(f"v_add_f32 v{X1}, v{X1}, v{s1}")
    A(f"v_cvt_pk_bf16_f32 v{X0}, v{X0}, v{X0}"); A(f"v_cvt_pk_bf16_f32 v{X1}, v{X1}, v{X1}")
    gemv(vACC, vM2, [((X0, X1)[n // 16], f"row_newbcast:{n % 16}", WQ + 4*n, None) for n in range(32)])
    A("s_mul_i32 s68, s38, 5"); A("s_add_u32 s68, s68, s39"); A("s_lshl_b32 s68, s68, 10"); A(f"s_add_u32 s68, s68, {WS_QP}")
    publish(vACC, vNAT, "s68")
    A.label("L_hop2")
    stamp(3)
    A(f"s_mul_i32 s6, {sHD}, 5120"); A(f"s_add_u32 s6, s6, {WS_QP}"); A("s_add_u32 s7, s6, 4096")
    spre("s6", [n*1024 for n in range(5)])
    poll([(vLANE16, "s6" if n < 4 else "s7", (n % 4)*1024, None) for n in range(5)], RING)
    sum2([RING+4*n for n in range(5)])
    A(f"v_cvt_pk_bf16_f32 v{RING}, v{RING}, v{RING+1}")
    A(f"v_lshlrev_b32 v{vT}, 2, v{vLANE}")
    A(f"ds_write_b32 v{vT}, v{RING} offset:{L_Q}")
    A("s_waitcnt lgkmcnt(0)")
    A(f"ds_write_b32 v{vZERO}, v{vONE} offset:{L_FLAG}")
    stamp(4)
    A("s_setprio 0")
    if pa & 1: A("s_branch L_ctrl_w"); A.label("L_pa_dead")
    A("s_cmp_lt_u32 s37, 20"); A("s_cbranch_scc0 L_ctrl_b")
    A("s_add_u32 s38, s37, 10")
    mod_loads("s38", sG)
    mod_compute("s38", sG)
    A.label("L_ctrl_b")
    A(f"s_cmp_lg_u32 {sK}, 31"); A("s_cbranch_scc1 L_ctrl_c")
    A(f"s_cmp_ge_u32 {sG}, 5"); A("s_cbranch_scc1 L_ctrl_c")
    A(f"s_lshl_b32 s6, {sG}, 13"); A(f"s_add_u32 s6, s6, {WS_MODP + 10*8192}")
    for b in range(1, 8): A(f"s_add_u32 s{6+b}, s6, {(b//2)*5*8192 + (b%2)*4096}")
    spre("s6", [(n // 8)*5*8192 + (n % 8)*1024 for n in range(16)])
    spre("s6", [(n // 8)*5*8192 + (n % 8)*1024 for n in range(16, 32)])
    poll([(vLANE16, f"s{6+n//4}", (n % 4)*1024, None) for n in range(32)], RING)
    for b in range(4): sum2([RING+32*b+4*n for n in range(8)])
    for b in range(3): A(f"v_cvt_pk_bf16_f32 v{vACC+b}, v{RING+32*b}, v{RING+32*b+1}")
    rbf2(RING+96, RING+97)
    A(f"s_lshl_b32 s6, {sG}, 10"); A(f"s_add_u32 s6, s6, {WS_MR}"); A("s_add_u32 s7, s6, 5120")
    publish(vACC, vLANE16, "s6"); publish(RING+96, vLANE16, "s7")
    A("s_branch L_ctrl_w")
    A.label("L_ctrl_c")
    A(f"s_mov_b32 m0, {L_W}")
    A(f"s_cmp_lt_u32 {sK}, 10"); A("s_cbranch_scc1 L_dma_wo")
    A(f"s_cmp_ge_u32 {sF}, 54"); A("s_cbranch_scc1 L_ctrl_w")
    A(f"v_lshrrev_b32 v{vT}, 2, v{vLANE}"); A(f"v_mul_u32_u24 v{vT}, 3456, v{vT}")
    A(f"v_and_b32 v{vT+1}, 3, v{vLANE}"); A(f"v_lshl_add_u32 v{vT}, v{vT+1}, 4, v{vT}")
    for (lo, hi) in (("s16", "s17"), ("s18", "s19")):
        if late_gu: break
        srd(SA, lo, hi, 640*3456)
        A(f"s_lshl_b32 s68, {sF}, 6")
        dma_loop(vT, "s68", 16*3456, 40, gpol)
    if not late_dn:
        A(f"s_mov_b32 m0, {L_W + 81920}")
        srd(SA, "s20", "s21", 1728*1280)
        A(f"s_mul_i32 s68, {sF}, {32*1280}")
        dma_loop(vLANE16, "s68", 1024, 40, wpol)
    A("s_branch L_ctrl_w")
    A.label("L_dma_wo")
    srd(SA, "s12", "s13", 4096*1280)
    A(f"v_lshrrev_b32 v{vT}, 3, v{vLANE}"); A(f"v_mul_u32_u24 v{vT}, 1280, v{vT}")
    A(f"v_and_b32 v{vT+1}, 7, v{vLANE}"); A(f"v_lshl_add_u32 v{vT}, v{vT+1}, 4, v{vT}")
    for a in range(4):
        if late_wo: break
        A(f"s_add_u32 s68, {sG}, {8*a}"); A(f"s_mul_i32 s68, s68, {128*1280}"); A(f"s_lshl_b32 s69, {sK}, 7"); A("s_add_u32 s68, s68, s69")
        dma_loop(vT, "s68", 8*1280, 16, wpol)
    A.label("L_ctrl_w")
    if abl: A("s_barrier"); A("s_endpgm"); A.label("L_abl_dead2")
    late_loads("c")
    A(f"s_lshl_b32 s8, {sHD}, 3"); A(f"s_add_u32 s8, s8, {sS}"); A("s_lshl_b32 s8, s8, 10"); A(f"s_add_u32 s8, s8, {WS_OP}")
    if WSTEP:
        A("s_mov_b64 exec, 0"); A("s_branch L_w1")
        A.label("L_wret"); A("s_mov_b64 exec, -1")
    A("s_waitcnt vmcnt(0) lgkmcnt(0)")
    stamp(5)
    if cprio: A("s_setprio 3")
    A("s_barrier")
    stamp(6)
    if WSTEP: A(f".warm_begin L_w2 {WSTEP}")
    for w in range(7): A(f"ds_read_b128 {v4(RING+4*w)}, v{vLANE16} offset:{L_PART+1024*w}")
    m = [RING+4*w+2 for w in range(7)]
    t = RING + 28
    A("s_waitcnt lgkmcnt(4)")
    A(f"v_max3_f32 v{t}, v{m[0]}, v{m[1]}, v{m[2]}")
    A("s_waitcnt lgkmcnt(2)")
    A(f"v_max3_f32 v{t}, v{t}, v{m[3]}, v{m[4]}")
    A("s_waitcnt lgkmcnt(0)")
    A(f"v_max3_f32 v{t}, v{t}, v{m[5]}, v{m[6]}")
    for w in range(7): A(f"v_sub_f32 v{m[w]}, v{m[w]}, v{t}")
    for w in range(7): A(f"v_exp_f32 v{m[w]}, v{m[w]}")
    O = RING + 32
    for r in (3, 0, 1): A(f"v_mul_f32 v{O+r}, v{m[0]}, v{RING+r}")
    for w in range(1, 7): A(f"v_fmac_f32 v{O+3}, v{m[w]}, v{RING+4*w+3}")
    A(f"v_rcp_f32 v{t+1}, v{O+3}"); A(f"v_log_f32 v{O+2}, v{O+3}")
    for w in range(1, 7):
        for r in range(2): A(f"v_fmac_f32 v{O+r}, v{m[w]}, v{RING+4*w+r}")
    A(f"v_add_f32 v{O+2}, v{O+2}, v{t}")
    A(f"v_mul_f32 v{O}, v{O}, v{t+1}"); A(f"v_mul_f32 v{O+1}, v{O+1}, v{t+1}")
    publish(O, vLANE16, "s8")
    if bar3: A("s_barrier")
    if cprio: A("s_setprio 0")
    stamp(13)
    if stamps == 5: stamp(14)
    if WSTEP: A(".warm_end L_wret")
    A("s_branch L_tail")
    A.label("L_end")
    if diag_wg is not None:
        A(f"s_cmp_lg_u32 s2, {diag_wg[0]}"); A("s_cbranch_scc1 L_end2"); A(f"s_cmp_lg_u32 s3, {diag_wg[1]}"); A("s_cbranch_scc1 L_end2")
        A.label("L_hold2")
        A("s_memrealtime s[94:95]"); A("s_waitcnt lgkmcnt(0)"); A("s_sub_u32 s94, s94, s96"); A(f"s_cmp_lt_u32 s94, {diag_hold}"); A("s_cbranch_scc1 L_hold2")
        A.label("L_end2")
    A("s_endpgm")
    A('.section .rodata,"a"'); A(".p2align 6"); A(f".amdhsa_kernel {KN}")
    A(".amdhsa_next_free_vgpr 256"); A(".amdhsa_next_free_sgpr 100"); A(".amdhsa_accum_offset 256")
    A(".amdhsa_group_segment_fixed_size 0"); A(".amdhsa_kernarg_size 112"); A(".amdhsa_user_sgpr_count 2")
    A(".amdhsa_user_sgpr_kernarg_segment_ptr 1"); A(".amdhsa_system_sgpr_workgroup_id_x 1")
    A(".amdhsa_float_denorm_mode_32 3")
    A(".end_amdhsa_kernel")
    return A.finalize()

def check_inter(w, inter):
    import numpy as np
    def cmp(name, got, exp):
        err = np.abs(got - exp).max(); rel = np.linalg.norm(got - exp) / np.linalg.norm(exp)
        print("   inter %-5s maxabs %.4e (scale %.3e) relL2 %.3e nan=%d" % (name, err, np.abs(exp).max(), rel, int(np.isnan(got).sum())), got[:4], exp[:4])
    def bf(x):
        u = x.astype(np.float32).view(np.uint32); u = (u + 0x7fff + ((u >> 16) & 1)) & 0xffff0000
        return u.view(np.float32)
    gr = lambda off, n: w[off // 4: off // 4 + n*4].reshape(n, 4)
    md = gr(WS_MODP, 30*8*64)[:, :2].reshape(30, 8, 128).sum(1).reshape(-1)
    cmp("mod", md, inter["mod"]); print("      mod bf16 mismatches", int((bf(md) != inter["mod"]).sum()))
    q = gr(WS_QP, 32*5*64)[:, :2].reshape(32, 5, 128).sum(1).reshape(-1)
    cmp("q", q, inter["q"]); print("      q bf16 mismatches", int((bf(q) != inter["q"]).sum()))
    g = gr(WS_OP, 32*8*64).astype(np.float64); op = g[:, :2].reshape(32, 8, 128); lam = g[:, 2].reshape(32, 8, 64)[:, :, 0]
    wt = np.exp2(lam - lam.max(1, keepdims=True))
    cmp("o", ((op * wt[:, :, None]).sum(1) / wt.sum(1)[:, None]).reshape(-1), inter["o"])
    yp = w[WS_YP // 4: WS_YP // 4 + 8*640].view(np.uint32).reshape(8, 320, 2)[:, :, 0]
    ya = np.stack([(yp << 16).view(np.float32), (yp & 0xffff0000).view(np.float32)], axis=-1).reshape(8, 640)
    cmp("at", ya.sum(0), inter["at"])
    cmp("dn", gr(WS_DP, 54*320)[:, :2].reshape(54, 640).sum(0), inter["dn"])

if __name__ == "__main__":
    out = sys.argv[1]
    kw = {}
    for a in sys.argv[2:]:
        k, v = a.split("=")
        kw[k] = eval(v)
    open(out, "w").write(gen(**kw))
```

```python
import sys, struct
from asmdsl import Asm
KN = "adaLN_cond__gqa_block_cached__swiglu_ffn__decode_kernel"

def f2u(x): return struct.unpack("<I", struct.pack("<f", x))[0]
def fh(x): return hex(f2u(x))
LOG2E = 1.4426950408889634
SCALE = 128 ** -0.5

WS_MODP = 0x1000
WS_QP   = WS_MODP + 30*8*1024
WS_SP   = WS_QP + 32*5*1024
WS_OP   = WS_SP + 32*8*1024
WS_YP   = WS_OP + 32*8*1024
WS_DP   = WS_YP + 8*8*2560
WS_MR   = WS_DP + 54*5120
WS_CNT  = WS_MR + 10*1024
WS_END  = WS_CNT + 32*256
WS_STAMP = 0x10000000
L_KT, L_VT, L_QF, L_PF, L_KD, L_RANK, L_LAM = 0, 4, 8, 12, 16, 20, 24
L_Q = 0x100
L_ST = 0x200
L_PART = 0x400
L_ACC = 0x1000
L_X2 = 0x2000
L_P = 0x3000
L_END = 0x5000
DPPF = "row_mask:0xf bank_mask:0xf"

def gen(stamps=0, pol="nt", NK=12, NV=10, NS=116, NL=5, SLP=16, wake=False, psl=0, ROT=304, abl=0, PFTH=2, LTH=3, NR=4, TW=0, TWD=4, now=0, pf=True, pf2=True, Q_wo=999, Q_ffn=999):
    NP = 8 * (128 - NS); Q_wo = min(Q_wo, NP); Q_ffn = min(Q_ffn, NP)
    A = Asm()
    uid = [0]
    def U(p):
        uid[0] += 1; return f"L_{p}_{uid[0]}"
    sWAVE, sHD, sS, sTAG, sK, sG = "s3", "s32", "s33", "s34", "s35", "s36"
    SK, SV, SWS, SA, SB = "s[40:43]", "s[44:47]", "s[48:51]", "s[52:55]", "s[56:59]"
    sTP, sST, sL2E, sSC, sTO, sF, sTK = "s60", "s61", "s62", "s63", "s64", "s65", "s66"
    sROT, sQ, SCNT = "s37", "s29", "s[38:39]"
    def stamp(k):
        if stamps: A(f"s_memrealtime s[{70+2*k}:{71+2*k}]")
    def stamp_dump(slots, xcc=False, final=True):
        if not stamps: return
        A("s_waitcnt lgkmcnt(0)")
        A("s_mov_b64 exec, 1")
        A(f"s_lshl_b32 s69, s2, 7"); A(f"s_add_u32 s69, s69, {WS_STAMP}")
        A("s_mov_b32 s50, 0x20000000")
        for k in slots:
            A(f"v_mov_b32 v{vT+10}, s{70+2*k}"); A(f"v_mov_b32 v{vT+11}, s{71+2*k}")
            A(f"buffer_store_dwordx2 v[{vT+10}:{vT+11}], v{vZERO}, {SWS}, s69 offen offset:{k*8}")
            A("s_nop 1")
        if xcc:
            A("s_getreg_b32 s68, hwreg(HW_REG_XCC_ID)")
            A(f"v_mov_b32 v{vT+10}, s68"); A(f"v_mov_b32 v{vT+11}, 0")
            A(f"buffer_store_dwordx2 v[{vT+10}:{vT+11}], v{vZERO}, {SWS}, s69 offen offset:120")
        if not final: A("s_mov_b64 exec, -1")
    def srd(S, lo, hi, n):
        b = int(S[2:S.index(":")])
        A(f"s_mov_b32 s{b}, {lo}"); A(f"s_mov_b32 s{b+1}, {hi}"); A(f"s_mov_b32 s{b+2}, {n}"); A(f"s_mov_b32 s{b+3}, 0x20000")
    def v4(b): return f"v[{b}:{b+3}]"
    def v2(b): return f"v[{b}:{b+1}]"
    def dpp_red(op, vs, ctls):
        for ctl in ctls:
            for v in vs: A(f"{op}_dpp v{v}, v{v}, v{v} {ctl}")
    QUAD = [f"quad_perm:[1,0,3,2] {DPPF}", f"quad_perm:[2,3,0,1] {DPPF}"]
    BANK = [f"row_ror:4 {DPPF}", f"row_ror:8 {DPPF}"]
    BCAST = ["row_bcast:15 row_mask:0xa bank_mask:0xf", "row_bcast:31 row_mask:0xc bank_mask:0xf"]
    def xrow(op, v, t, which):
        A(f"v_mov_b32 v{t}, v{v}"); A(f"v_permlane{which}_swap_b32 v{v}, v{t}"); A(f"{op} v{v}, v{v}, v{t}")
    def wave_red(op, v, t):
        dpp_red(op, [v], QUAD + BANK); xrow(op, v, t, 16); xrow(op, v, t, 32)
    def rbf(d, s):
        A(f"v_cvt_pk_bf16_f32 v{d}, v{s}, v{s}"); A(f"v_and_b32 v{d}, 0xffff0000, v{d}")
    def rbf2(a, b):
        A(f"v_cvt_pk_bf16_f32 v{b}, v{a}, v{b}"); A(f"v_lshlrev_b32 v{a}, 16, v{b}"); A(f"v_and_b32 v{b}, 0xffff0000, v{b}")
    vLANE16, vZERO, vONE, vTKT, vADDR, vPB, vPW, vL = 1, 2, 3, 4, 5, 6, 7, 8
    vLANE, vNAT, vBAD = 9, 10, 11
    vQ, vM2, vACC = 12, 16, 20
    vR, vA_, vB_, vC_, vE_ = 24, 28, 29, 30, 31
    vAOP = 32
    vT = 48
    vM1 = 60
    RING = 64
    WT = RING + 48
    WD = WT + 80
    WD2 = WD + 32
    TMP = RING + 32
    ACC2 = RING + 40
    PF = RING + 44
    def publish(b, voff, soff):
        A(f"v_mov_b32 v{b+3}, {sTAG}")
        A(f"buffer_store_dwordx4 {v4(b)}, v{voff}, {SWS}, {soff} offen sc1")
    def poll(loads, base, tags=(3,)):
        n = len(loads)
        L = U("poll"); Ld = U("pdone")
        A(f"s_mov_b32 {sTO}, 0x40000")
        A.label(L)
        for idx, (vo, so, imm, em) in enumerate(loads):
            if em is not None: A(f"s_mov_b64 exec, {em}")
            A(f"buffer_load_dwordx4 {v4(base + 4*idx)}, v{vo}, {SWS}, {so} offen offset:{imm} sc1")
            if em is not None: A("s_mov_b64 exec, -1")
        first = True
        for idx in range(n):
            d = base + 4*idx
            A(f"s_waitcnt vmcnt({n-1-idx})")
            for tp in tags:
                if first: A(f"v_xor_b32 v{vBAD}, {sTAG}, v{d+tp}"); first = False
                else: A(f"v_bitop3_b32 v{vBAD}, v{vBAD}, v{d+tp}, {sTAG} bitop3:0xf6")
        A(f"v_cmp_ne_u32 vcc, 0, v{vBAD}")
        A(f"s_cbranch_vccz {Ld}")
        A(f"s_sub_u32 {sTO}, {sTO}, 1")
        A(f"s_cmp_lg_u32 {sTO}, 0")
        A(f"s_cbranch_scc1 {L}")
        A.label(Ld)
    def spre(sbase, offs, sl=None):
        R = [40, 41, 42, 43, 44, 45, 46, 47, 14, 15, 28, 29, 60, 61, 66, 67]
        L = U("spoll"); Ld = U("spd")
        A(f"s_add_u32 s68, s30, {sbase}"); A("s_addc_u32 s69, s31, 0")
        A(f"s_mov_b32 {sTO}, 0x40000")
        A.label(L)
        sl = psl if sl is None else sl
        if sl: A(f"s_sleep {sl}")
        for i, o in enumerate(offs): A(f"s_load_dword s{R[i]}, s[68:69], {o + 1020} glc")
        A(f"s_sub_u32 {sTO}, {sTO}, 1"); A(f"s_cmp_eq_u32 {sTO}, 0"); A(f"s_cbranch_scc1 {Ld}")
        A("s_waitcnt lgkmcnt(0)")
        for i, o in enumerate(offs):
            A(f"s_cmp_lg_u32 s{R[i]}, {sTAG}"); A(f"s_cbranch_scc1 {L}")
        A.label(Ld)
        A("s_waitcnt lgkmcnt(0)")
    def lds_wait(off, val, slow=False):
        L = U("lw"); Ld = U("lwd")
        A(f"s_mov_b32 {sTO}, 0x400000")
        A.label(L)
        if slow: A(f"s_sleep {SLP}")
        A(f"ds_read_b32 v{vBAD}, v{vZERO} offset:{off}")
        A(f"s_sub_u32 {sTO}, {sTO}, 1"); A(f"s_cmp_eq_u32 {sTO}, 0"); A(f"s_cbranch_scc1 {Ld}")
        A("s_waitcnt lgkmcnt(0)")
        A(f"v_cmp_gt_u32 vcc, {val}, v{vBAD}")
        A(f"s_cbranch_vccnz {L}")
        A.label(Ld)
    def sum2(bases, dst=None):
        bs = list(bases)
        while len(bs) > 1:
            nb = []
            for i in range(0, len(bs) - 1, 2):
                d = dst if (dst is not None and len(bs) == 2) else bs[i]
                A(f"v_pk_add_f32 {v2(d)}, {v2(bs[i])}, {v2(bs[i+1])}"); nb.append(d)
            if len(bs) % 2: nb.append(bs[-1])
            bs = nb
    def gemv(acc, mask, items, acc2=None, w2=None):
        def mf(n):
            (x0, c0, w0, wc0) = items[n]
            if wc0 is not None: A(f"s_waitcnt vmcnt({wc0})")
            A(f"v_mfma_f32_16x16x32_bf16 {v4(acc)}, {v4(vAOP + 4*(n % 4))}, {v4(w0)}, {'0' if n == 0 else v4(acc)}")
            if acc2 is not None:
                A(f"v_mfma_f32_16x16x32_bf16 {v4(acc2)}, {v4(vAOP + 4*(n % 4))}, {v4(w2+4*n)}, {'0' if n == 0 else v4(acc2)}")
        for n, (x, ctl, w, wc) in enumerate(items):
            a = vAOP + 4 * (n % 4)
            for t in range(4): A(f"v_and_b32_dpp v{a+t}, v{x}, v{mask+t} {ctl} {DPPF}")
            if n >= 1: mf(n-1)
        mf(len(items) - 1)
    def ysplit(xs, y):
        for i, x in enumerate(xs): A(f"v_mov_b32 v{y+2*i}, v{x}"); A(f"v_mov_b32 v{y+2*i+1}, v{x}")
        for i, x in enumerate(xs):
            A(f"v_mov_b32_dpp v{y+2*i}, v{x} row_shr:4 row_mask:0xf bank_mask:0xa")
            A(f"v_mov_b32_dpp v{y+2*i+1}, v{x} row_shl:4 row_mask:0xf bank_mask:0x5")
    qp = lambda k: f"quad_perm:[{k},{k},{k},{k}]"
    def silu(x, t):
        A(f"v_mul_f32 v{t}, {fh(-LOG2E)}, v{x}"); A(f"v_exp_f32 v{t}, v{t}")
        A(f"v_add_f32 v{t}, 1.0, v{t}"); A(f"v_rcp_f32 v{t}, v{t}"); A(f"v_mul_f32 v{x}, v{x}, v{t}")
    def acc_addr(d):
        A(f"v_and_b32 v{d}, 7, v{vLANE}"); A(f"v_lshlrev_b32 v{d}, 5, v{d}")
        A(f"v_and_b32 v{vT+11}, 16, v{vLANE}"); A(f"v_add_u32 v{d}, v{d}, v{vT+11}")
        A(f"v_lshrrev_b32 v{vT+11}, 5, v{vLANE}"); A(f"v_lshl_add_u32 v{d}, v{vT+11}, 8, v{d}")
        A(f"s_lshl_b32 s68, {sWAVE}, 9"); A(f"v_add_u32 v{d}, s68, v{d}")
    def acc_write(d):
        A("s_mov_b32 exec_lo, 0x00ff00ff"); A("s_mov_b32 exec_hi, 0xff00ff00")
        A(f"ds_write_b128 v{d}, {v4(vACC)} offset:{L_ACC}")
        A("s_mov_b64 exec, -1")
    def mod_loads(scb, srb):
        wb = RING
        srd(SA, "s24", "s25", 640*7680); srd(SB, "s22", "s23", 1280)
        A(f"v_lshrrev_b32 v{vT}, 4, v{vLANE}"); A(f"v_mul_u32_u24 v{vT}, 20, v{vT}")
        A(f"v_and_b32 v{vT+1}, 15, v{vLANE}"); A(f"v_add_u32 v{vT+2}, v{vT}, v{vT+1}"); A(f"v_lshlrev_b32 v{vT+2}, 1, v{vT+2}")
        A(f"v_and_b32 v{vT+3}, 3, v{vLANE}"); A(f"v_add_u32 v{vT+3}, v{vT}, v{vT+3}"); A(f"v_lshlrev_b32 v{vT+3}, 1, v{vT+3}")
        A(f"s_mul_i32 s69, {srb}, 160")
        A(f"buffer_load_ushort v{vR}, v{vT+2}, {SB}, s69 offen")
        A(f"buffer_load_ushort v{vR+1}, v{vT+3}, {SB}, s69 offen offset:32")
        A(f"v_mul_u32_u24 v{vT}, 7680, v{vT}"); A(f"v_lshl_add_u32 v{vT}, v{vT+1}, 4, v{vT}")
        A(f"s_mul_i32 s69, {srb}, {80*7680}"); A(f"s_lshl_b32 s68, {scb}, 8"); A("s_add_u32 s69, s69, s68")
        for t in range(20):
            A(f"s_add_u32 s68, s69, {t*7680}")
            A(f"buffer_load_dwordx4 {v4(wb+4*t)}, v{vT}, {SA}, s68 offen {pol}")
    def mod_compute(scb, srb):
        wb = RING
        A("s_waitcnt vmcnt(20)")
        for k in (0, 1):
            A(f"v_lshlrev_b32 v{vR+k}, 16, v{vR+k}"); silu(vR+k, vR+2); A(f"v_cvt_pk_bf16_f32 v{vR+k}, v{vR+k}, v{vR+k}")
        gemv(vACC, vM2, [(vR if t < 16 else vR+1, f"row_newbcast:{t % 16}", wb+4*t, 19-t) for t in range(20)])
        A(f"s_lshl_b32 s68, {scb}, 3"); A(f"s_add_u32 s68, s68, {srb}"); A("s_lshl_b32 s68, s68, 10"); A(f"s_add_u32 s68, s68, {WS_MODP}")
        publish(vACC, vNAT, "s68")
    def common_setup():
        A(f"s_load_dword {sTAG}, s[30:31], 0")
        srd(SWS, "s30", "s31", WS_END)
        A(f"v_and_b32 v{vT}, 1, v{vLANE}"); A(f"v_lshlrev_b32 v{vT}, 4, v{vT}"); A(f"v_mov_b32 v{vT+1}, 0xffff"); A(f"v_lshlrev_b32 v{vT}, v{vT}, v{vT+1}")
        A(f"v_bfe_u32 v{vT+1}, v{vLANE}, 1, 2")
        A(f"v_bfe_u32 v{vT+2}, v{vLANE}, 1, 3")
        for t in range(4):
            A(f"v_cmp_eq_u32 vcc, {t}, v{vT+1}"); A(f"v_cndmask_b32 v{vM1+t}, 0, v{vT}, vcc")
            A(f"v_cmp_eq_u32 vcc, {2*t}, v{vT+2}"); A(f"v_cndmask_b32 v{vM2+t}, 0, v{vT}, vcc")
        A(f"v_and_b32 v{vT}, 15, v{vLANE}"); A(f"v_lshlrev_b32 v{vT}, 6, v{vT}"); A(f"v_and_b32 v{vT+1}, 48, v{vLANE}"); A(f"v_add_u32 v{vNAT}, v{vT}, v{vT+1}")
        A("s_waitcnt lgkmcnt(0)")
        A(f"s_add_u32 {sTAG}, {sTAG}, 0x01010101")
    def gu_loads(Ld):
        A(f"s_cmp_ge_u32 {sF}, 54"); A(f"s_cbranch_scc1 {Ld}")
        A(f"s_cmp_gt_u32 {sWAVE}, 3"); A(f"s_cbranch_scc1 {Ld}")
        A(f"v_and_b32 v{vT+2}, 4, v{vLANE}"); A(f"v_cmp_eq_u32 vcc, 0, v{vT+2}")
        A(f"v_mov_b32 v{vT+2}, s18"); A(f"v_mov_b32 v{vT+3}, s16"); A(f"v_cndmask_b32 v{vT+6}, v{vT+2}, v{vT+3}, vcc")
        A(f"v_mov_b32 v{vT+2}, s19"); A(f"v_mov_b32 v{vT+3}, s17"); A(f"v_cndmask_b32 v{vT+7}, v{vT+2}, v{vT+3}, vcc")
        A(f"s_mul_i32 s69, {sWAVE}, {160*3456}"); A(f"s_lshl_b32 s68, {sF}, 6"); A("s_add_u32 s69, s69, s68")
        A(f"v_and_b32 v{vT+4}, 3, v{vLANE}"); A(f"v_lshl_add_u32 v{vT+4}, v{vT+4}, 4, s69")
        A(f"v_lshrrev_b32 v{vT+5}, 3, v{vLANE}")
        for (mul, add, rows) in ((16*3456, 0, [(k, y) for k in range(4) for y in range(4)]), (4*3456, 128*3456, [(k, 4) for k in range(4)])):
            A(f"v_mul_u32_u24 v{vT+1}, {mul}, v{vT+5}"); A(f"v_add_u32 v{vT+1}, v{vT+1}, v{vT+4}")
            if add: A(f"v_add_u32 v{vT+1}, {add}, v{vT+1}")
            A(f"v_add_co_u32 v{vT+2}, vcc, v{vT+6}, v{vT+1}"); A(f"v_addc_co_u32 v{vT+3}, vcc, 0, v{vT+7}, vcc")
            for i, (k, y) in enumerate(rows):
                A(f"global_load_dwordx4 {v4(WT+4*(y*4+k))}, {v2(vT+2)}, off offset:{(i%2)*3456}")
                if LTH < 63: A(f"s_waitcnt vmcnt({LTH})")
                if i % 2 == 1 and i < len(rows) - 1:
                    A(f"v_add_co_u32 v{vT+2}, vcc, {2*3456}, v{vT+2}"); A(f"v_addc_co_u32 v{vT+3}, vcc, 0, v{vT+3}, vcc")
    def dn_loads(Ld):
        srd(SA, "s20", "s21", 1728*1280)
        A(f"v_lshrrev_b32 v{vT+1}, 4, v{vLANE}"); A(f"v_mul_u32_u24 v{vT+1}, {8*1280}, v{vT+1}")
        A(f"v_and_b32 v{vT+2}, 15, v{vLANE}"); A(f"v_lshl_add_u32 v{vT+1}, v{vT+2}, 4, v{vT+1}")
        A(f"s_mul_i32 s69, {sF}, {32*1280}"); A(f"s_lshl_b32 s68, {sWAVE}, 8"); A("s_add_u32 s69, s69, s68")
        for t in range(8):
            if t % 2 == 0: A(f"s_add_u32 s68, s69, {t*1280}")
            A(f"buffer_load_dwordx4 {v4(WD+4*t)}, v{vT+1}, {SA}, s68 offen offset:{(t%2)*1280}")
        A(f"s_cmp_lg_u32 {sWAVE}, 1"); A(f"s_cbranch_scc1 {Ld}")
        for t in range(8):
            if t % 2 == 0: A(f"s_add_u32 s68, s69, {t*1280}")
            A(f"buffer_load_dwordx4 {v4(WD2+4*t)}, v{vT+1}, {SA}, s68 offen offset:{(t%2)*1280 + 768}")
    def wo_loads():
        srd(SA, "s12", "s13", 4096*1280)
        A(f"v_bfe_u32 v{vT+1}, v{vLANE}, 4, 1"); A(f"v_lshlrev_b32 v{vT+1}, 5, v{vT+1}")
        A(f"v_lshrrev_b32 v{vT+2}, 5, v{vLANE}"); A(f"v_add_u32 v{vT+1}, v{vT+1}, v{vT+2}")
        A(f"v_bfe_u32 v{vT+2}, v{vLANE}, 3, 1"); A(f"v_lshl_add_u32 v{vT+1}, v{vT+2}, 4, v{vT+1}")
        A(f"v_mul_u32_u24 v{vT+1}, 1280, v{vT+1}")
        A(f"v_and_b32 v{vT+2}, 7, v{vLANE}"); A(f"v_lshl_add_u32 v{vT+1}, v{vT+2}, 4, v{vT+1}")
        A(f"s_lshr_b32 s68, {sWAVE}, 1"); A("s_lshl_b32 s68, s68, 3"); A(f"s_add_u32 s68, s68, {sG}"); A("s_lshl_b32 s68, s68, 1")
        A(f"s_and_b32 s69, {sWAVE}, 1"); A("s_add_u32 s68, s68, s69"); A(f"s_mul_i32 s69, s68, {64*1280}")
        A(f"s_lshl_b32 s68, {sK}, 7"); A("s_add_u32 s69, s69, s68")
        for n in range(8):
            if n % 2 == 0: A(f"s_add_u32 s68, s69, {2*n*1280}")
            A(f"buffer_load_dwordx4 {v4(WT+4*n)}, v{vT+1}, {SA}, s68 offen offset:{(n%2)*2560}")
    def tail_loads(dn):
        Lw, Ld = U("lwo"), U("ldone")
        A(f"s_cmp_lt_u32 {sK}, 10"); A(f"s_cbranch_scc1 {Lw}")
        if not (now & 1):
            gu_loads(Ld)
            if dn: dn_loads(Ld)
        A(f"s_branch {Ld}")
        A.label(Lw)
        if not (now & 2): wo_loads()
        A.label(Ld)

    A(f"; @launch grid=(256,1,1) block=(512,1,1) lds={L_END}")
    A('.amdgcn_target "amdgcn-amd-amdhsa--gfx950"')
    A(".text"); A(f".globl {KN}"); A(".p2align 8"); A(f".type {KN},@function"); A.label(KN)
    stamp(0)
    A("s_cmp_ge_u32 s2, 256"); A("s_cbranch_scc1 L_end")
    A("s_load_dwordx16 s[4:19], s[0:1], 0")
    A("s_load_dwordx8 s[20:27], s[0:1], 64")
    A("s_load_dwordx4 s[28:31], s[0:1], 96")
    A("v_lshrrev_b32 v1, 6, v0"); A(f"v_and_b32 v{vLANE}, 63, v0")
    A(f"v_readfirstlane_b32 {sWAVE}, v1")
    A(f"v_lshlrev_b32 v{vLANE16}, 4, v{vLANE}")
    A(f"s_lshr_b32 {sHD}, s2, 3"); A(f"s_and_b32 {sG}, s2, 7"); A(f"s_lshl_b32 {sK}, {sG}, 2"); A(f"s_add_u32 {sK}, {sK}, {sHD}"); A(f"s_and_b32 {sK}, {sK}, 31")
    A(f"s_add_u32 {sS}, {sG}, {sHD}"); A(f"s_and_b32 {sS}, {sS}, 7")
    A(f"s_mov_b32 {sL2E}, {fh(LOG2E)}"); A(f"s_mov_b32 {sSC}, {fh(SCALE)}")
    A(f"s_sub_u32 s68, {sK}, 10"); A(f"s_mul_i32 {sF}, {sG}, 7"); A(f"s_add_u32 {sF}, {sF}, s68")
    A("s_cmp_lt_u32 s68, 7"); A(f"s_cselect_b32 {sF}, {sF}, 63")
    A(f"v_mov_b32 v{vZERO}, 0"); A(f"v_mov_b32 v{vONE}, 1")
    A(f"s_cmp_eq_u32 {sWAVE}, 0"); A("s_cbranch_scc1 L_ctrl0")
    A(f"s_cmp_gt_u32 {sWAVE}, {NL}"); A("s_cbranch_scc1 L_help")
    A(f"s_mul_i32 {sROT}, {sHD}, {ROT}"); A(f"s_lshl_b32 {sST}, {sS}, 7"); A(f"s_add_u32 {sST}, {sST}, {sROT}")
    A(f"s_lshl_b32 s68, {sHD}, 22")
    def tile_addr(sreg, add):
        A(f"s_add_u32 s69, {sreg}, {add}")
        if ROT: A("s_and_b32 s69, s69, 1023")
        A("s_lshl_b32 s69, s69, 12")
        A(f"v_add_u32 v{vADDR}, s69, v{vLANE16}")
    A(f"s_add_u32 s67, {sST}, {sWAVE}"); A("s_sub_u32 s67, s67, 1")
    tile_addr("s67", 0)
    A("s_waitcnt lgkmcnt(0)")
    A("s_add_u32 s40, s6, s68"); A("s_addc_u32 s41, s7, 0"); A("s_mov_b32 s42, 0x400000"); A("s_mov_b32 s43, 0x20000")
    G = lambda i: RING + 16*i
    def load(S, slot):
        for u in range(4): A(f"buffer_load_dwordx4 {v4(G(slot)+4*u)}, v{vADDR}, {S}, 0 offen offset:{u*1024} {pol}")
    load(SK, 0)
    A("s_add_u32 s44, s8, s68"); A("s_addc_u32 s45, s9, 0"); A("s_mov_b32 s46, 0x400000"); A("s_mov_b32 s47, 0x20000")
    A("s_barrier")
    common_setup()
    A(f"s_lshl_b32 s38, {sHD}, 8"); A(f"s_add_u32 s38, s38, {WS_CNT}"); A("s_add_u32 s38, s38, s30"); A("s_addc_u32 s39, s31, 0")
    A(f"s_mov_b32 {sQ}, {NP}"); A(f"s_cmp_lt_u32 {sF}, 54"); A(f"s_cselect_b32 {sQ}, {Q_ffn}, {sQ}"); A(f"s_cmp_lt_u32 {sK}, 10"); A(f"s_cselect_b32 {sQ}, {Q_wo}, {sQ}")
    A(f"v_and_b32 v{vPB}, 60, v{vLANE}")
    A(f"s_lshl_b32 s68, {sWAVE}, 6"); A("s_sub_u32 s68, s68, 64"); A(f"v_add_u32 v{vPW}, s68, v{vPB}")
    for r in range(4): A(f"v_mov_b32 v{vACC+r}, 0")
    for i in range(1, NK):
        tile_addr("s67", NL*i)
        A("s_waitcnt vmcnt(0)")
        if i == 1 and stamps == 4: stamp(1)
        load(SK, i)
    if stamps == 4: stamp(2)
    A(f"v_and_b32 v{vT}, 15, v{vLANE}"); A(f"v_lshlrev_b32 v{vT}, 4, v{vT}")
    lds_wait(L_QF, 1)
    A(f"ds_read_b128 {v4(vQ)}, v{vT} offset:{L_Q}")
    A("s_waitcnt lgkmcnt(0)")
    def req(off):
        A("s_mov_b64 exec, 1"); A(f"ds_add_rtn_u32 v{vTKT}, v{vZERO}, v{vONE} offset:{off}"); A("s_mov_b64 exec, -1")
    def qk(slot, va, off):
        kb = G(slot)
        for t in range(4):
            for u in range(4):
                if t == 0: A(f"v_dot2_f32_bf16 v{vR+u}, v{kb+4*u}, v{vQ}, 0")
                else: A(f"v_dot2c_f32_bf16 v{vR+u}, v{kb+4*u+t}, v{vQ+t}")
        A(f"v_add_f32_dpp v{vA_}, v{vR}, v{vR} row_ror:8 row_mask:0xf bank_mask:0x3")
        A(f"v_add_f32_dpp v{vB_}, v{vR+2}, v{vR+2} row_ror:8 row_mask:0xf bank_mask:0x3")
        A(f"v_add_f32_dpp v{vA_}, v{vR+1}, v{vR+1} row_ror:8 row_mask:0xf bank_mask:0xc")
        A(f"v_add_f32_dpp v{vB_}, v{vR+3}, v{vR+3} row_ror:8 row_mask:0xf bank_mask:0xc")
        A(f"v_add_f32_dpp v{vC_}, v{vA_}, v{vA_} row_shl:4 row_mask:0xf bank_mask:0x5")
        A(f"v_add_f32_dpp v{vC_}, v{vB_}, v{vB_} row_shr:4 row_mask:0xf bank_mask:0xa")
        dpp_red("v_add_f32", [vC_], QUAD)
        rbf(vC_, vC_)
        A(f"v_mul_f32 v{vC_}, {sSC}, v{vC_}")
        rbf(vC_, vC_)
        A(f"ds_write_b32 v{va}, v{vC_} offset:{off}")
    def build(p):
        lane_of = [0, 8, 4, 12]
        for u in range(4):
            for t in range(4): A(f"v_and_b32_dpp v{vAOP+4*u+t}, v{p}, v{vM2+t} row_newbcast:{lane_of[u]} {DPPF}")
    def mm(slot):
        for u in range(4):
            A(f"v_mfma_f32_16x16x32_bf16 {v4(vACC)}, {v4(vAOP+4*u)}, {v4(G(slot)+4*u)}, {v4(vACC)}")
    LA, LB = 0, NK - 1
    qk(0, vPW, L_P)
    todo = list(range(1, NK - 1))
    cur, cur_i, nxt = LB, NK - 1, LA
    step = 0
    while todo:
        i = NK + step
        tile_addr("s67", NL*i)
        A("s_waitcnt vmcnt(0)")
        load(SK, nxt)
        if len(todo) <= 2: req(L_KT)
        qk(cur, vPW, L_P + NL*cur_i*64)
        for b in todo[:2]: qk(b, vPW, L_P + NL*b*64)
        todo = todo[2:]
        cur, nxt, cur_i = nxt, cur, i
        step += 1
    KT0 = NL * (NK + step)
    assert KT0 <= 128
    A(f"v_add_u32 v{vE_}, {NL*cur_i*64}, v{vPW}")
    if stamps == 4: stamp(3)
    order = [cur, nxt]
    A.label("L_k0")
    for n in range(2):
        X, Y = order[n], order[1-n]
        if n: A.label("L_k1")
        A("s_waitcnt lgkmcnt(0)")
        A(f"v_readfirstlane_b32 {sTK}, v{vTKT}")
        A(f"s_cmp_ge_u32 {sTK}, 128"); A(f"s_cbranch_scc1 L_kend{n}")
        tile_addr(sTK, sST)
        A("s_waitcnt vmcnt(0)")
        load(SK, Y)
        req(L_KT)
        qk(X, vE_, L_P)
        A(f"s_lshl_b32 s68, {sTK}, 6"); A(f"v_add_u32 v{vE_}, s68, v{vPB}")
    A("s_branch L_k0")
    for n in range(2):
        A.label(f"L_kend{n}")
        tile_addr("s67", 0)
        A("s_waitcnt vmcnt(0)")
        load(SV, 1)
        qk(order[n], vE_, L_P)
        if n == 0: A("s_branch L_vpre")
    A.label("L_vpre")
    A("s_waitcnt lgkmcnt(0)")
    A("s_mov_b64 exec, 1"); A(f"ds_add_u32 v{vZERO}, v{vONE} offset:{L_KD}"); A("s_mov_b64 exec, -1")
    if wake: A("s_waitcnt lgkmcnt(0)"); A("s_wakeup")
    if stamps == 4: stamp(4)
    for i in range(1, NV):
        tile_addr("s67", NL*i)
        A("s_waitcnt vmcnt(0)")
        load(SV, i + 1)
    if stamps == 4: stamp(5)
    lds_wait(L_PF, 1)
    A(f"ds_read_b32 v{vC_}, v{vZERO} offset:{L_LAM}")
    A(f"v_and_b32 v{vL}, 4, v{vLANE}"); A(f"v_lshlrev_b32 v{vL}, 2, v{vL}"); A(f"v_sub_u32 v{vL}, 16, v{vL}")
    A(f"s_lshl_b32 s14, {sHD}, 13"); A(f"s_add_u32 s14, s14, {WS_SP + (NS - 112)*32}"); A("s_add_u32 s14, s14, s30"); A("s_addc_u32 s15, s31, 0")
    nstep = NV // 2
    if nstep % 2: nstep += 1
    PR = vT
    assert NV + nstep <= 12 + 4
    preg = lambda i: (vT + i) if i < 12 else (vR + i - 12)
    for i in range(NV + nstep):
        A(f"ds_read_b32 v{preg(i)}, v{vPW} offset:{L_P + NL*i*64}")
        if i == 8: A("s_waitcnt lgkmcnt(2)")
    A("s_waitcnt lgkmcnt(0)")
    todo = [(i + 1, i) for i in range(NV)]
    live = [LA, LB]
    for j in range(nstep):
        tile_addr("s67", NL*(NV + j))
        A("s_waitcnt vmcnt(0)")
        load(SV, live[j % 2])
        if j == nstep - 1: req(L_VT)
        items = ([(live[(j-1) % 2], NV + j - 1)] if j else []) + todo[:2]
        todo = todo[2:]
        if j == nstep - 1: items += todo; todo = []
        for (sl, i) in items: build(preg(i)); mm(sl)
    build(preg(NV + nstep - 1))
    VT0 = NL * (NV + nstep)
    order = [LB, LA]
    A.label("L_v0")
    for n in range(2):
        X, Y = order[n], order[1-n]
        A("s_waitcnt lgkmcnt(0)")
        A(f"v_readfirstlane_b32 {sTK}, v{vTKT}")
        A(f"s_cmp_ge_u32 {sTK}, {NS}"); A(f"s_cbranch_scc1 L_din{n}")
        A(f"s_lshl_b32 s68, {sTK}, 6"); A(f"v_add_u32 v{vE_}, s68, v{vPB}")
        A(f"ds_read_b32 v{vE_}, v{vE_} offset:{L_P}")
        tile_addr(sTK, sST)
        A("s_waitcnt vmcnt(0) lgkmcnt(0)")
        load(SV, Y)
        req(L_VT)
        mm(X); build(vE_)
    A("s_branch L_v0")
    for n in range(2):
        A.label(f"L_din{n}")
        A(f"s_mov_b32 {sTK}, 1"); A(f"s_atomic_add {sTK}, {SCNT}, 0 glc")
        A(f"s_branch L_d{n}")
    for n in range(2):
        X, Y = order[n], order[1-n]
        A.label(f"L_d{n}")
        A("s_waitcnt lgkmcnt(0)")
        A(f"s_cmp_ge_u32 {sTK}, {NP}"); A(f"s_cbranch_scc1 L_vend{n}")
        A(f"s_and_b32 s68, {sTK}, 7"); A(f"s_lshr_b32 s67, {sTK}, 3")
        A("s_lshl_b32 s69, s68, 5"); A("s_add_u32 s69, s69, s67"); A("s_lshl_b32 s69, s69, 5")
        A("s_load_dwordx8 s[52:59], s[14:15], s69 glc")
        A("s_lshl_b32 s68, s68, 7"); A("s_add_u32 s68, s68, s67"); A(f"s_add_u32 s68, s68, {NS}")
        tile_addr("s68", sROT)
        A(f"s_cmp_ge_u32 {sTK}, {sQ}"); A(f"s_cselect_b32 {sTP}, {NP}, 0"); A(f"s_cselect_b32 {sTK}, 0, 1")
        A("s_waitcnt vmcnt(0)")
        load(SV, Y)
        mm(X)
        A("s_waitcnt lgkmcnt(0)")
        A(f"s_atomic_add {sTK}, {SCNT}, 0 glc")
        A("s_mov_b64 exec, 0xff")
        for j in range(8):
            A(f"v_lshlrev_b32 v{vE_}, v{vL}, s{52+j}")
            if j < 7: A("s_lshl_b64 exec, exec, 8")
        A("s_mov_b64 exec, -1")
        A(f"v_and_b32 v{vE_}, 0xffff0000, v{vE_}")
        A(f"v_fma_f32 v{vE_}, v{vE_}, {sL2E}, -v{vC_}")
        A(f"v_exp_f32 v{vE_}, v{vE_}")
        A(f"v_cvt_pk_bf16_f32 v{vE_}, v{vE_}, v{vE_}")
        build(vE_)
        if Q_wo < NP or Q_ffn < NP:
            A("s_waitcnt lgkmcnt(0)"); A(f"s_add_u32 {sTK}, {sTK}, {sTP}")
    A("s_branch L_d0")
    for n in range(2):
        A.label(f"L_vend{n}")
        if pf and not TW:
            A("s_mov_b64 exec, 1"); A(f"ds_add_rtn_u32 v{vTKT}, v{vZERO}, v{vONE} offset:{L_RANK}"); A("s_mov_b64 exec, -1")
        A(f"s_lshl_b32 s69, {sWAVE}, 9"); A(f"v_lshrrev_b32 v{vT}, 1, v{vNAT}"); A(f"v_add_u32 v{vT}, s69, v{vT}")
        A("s_waitcnt vmcnt(0)")
        mm(order[n])
        if n == 0: A("s_branch L_last")
    A.label("L_last")
    A(f"ds_write_b64 v{vT}, {v2(vACC)} offset:{L_PART-512}")
    A("s_waitcnt lgkmcnt(0)")
    def wo_prefetch(first, cnt, th):
        srd(SA, "s12", "s13", 4096*1280)
        A(f"s_and_b32 s68, {sHD}, 24"); A(f"s_add_u32 s68, s68, {sG}"); A(f"s_mul_i32 s68, s68, {128*1280}")
        A(f"s_and_b32 s69, {sHD}, 7"); A(f"s_mul_i32 s69, s69, {20*1024}"); A("s_add_u32 s68, s68, s69")
        if first: A(f"s_add_u32 s68, s68, {first}")
        for n in range(cnt):
            if n and n % 4 == 0: A("s_add_u32 s68, s68, 4096")
            A(f"buffer_load_dwordx4 {v4(PF)}, v{vLANE16}, {SA}, s68 offen offset:{(n%4)*1024}")
            if th < 63: A(f"s_waitcnt vmcnt({th})")
    if pf and not TW:
        A(f"v_readfirstlane_b32 s66, v{vTKT}")
        A(f"s_cmp_ge_u32 s66, {NR}"); A("s_cbranch_scc1 L_pfdone")
        A(f"s_mul_i32 s66, s66, {(20 // NR)*1024}")
        wo_prefetch("s66", 20 // NR, 63)
        A.label("L_pfdone")
    if stamps == 4:
        A(f"s_cmp_lg_u32 {sWAVE}, 1"); A("s_cbranch_scc1 L_ns4")
        stamp_dump([1, 2, 3, 4, 5], final=False)
        A.label("L_ns4")
    A.label("L_join")
    A("s_barrier")
    if abl: A("s_endpgm"); A.label("L_abl_dead")
    if pf2:
        A(f"s_cmp_lt_u32 {sK}, 17"); A("s_cbranch_scc1 L_pf2done")
        A(f"s_sub_u32 s66, {sK}, 17"); A("s_mul_i32 s66, s66, 7"); A(f"s_add_u32 s66, s66, {sWAVE}"); A("s_sub_u32 s66, s66, 1")
        A("s_cmp_ge_u32 s66, 80"); A("s_cbranch_scc1 L_pf2dn")
        srd(SA, "s16", "s17", 640*3456); srd(SB, "s18", "s19", 640*3456)
        A(f"v_lshrrev_b32 v{vT+1}, 5, v{vLANE}"); A(f"v_mul_u32_u24 v{vT+1}, 3456, v{vT+1}")
        A(f"v_and_b32 v{vT+2}, 31, v{vLANE}"); A(f"v_lshl_add_u32 v{vT+1}, v{vT+2}, 4, v{vT+1}")
        A(f"s_mul_i32 s68, {sG}, 7"); A("s_lshr_b32 s68, s68, 1"); A("s_min_u32 s68, s68, 23"); A("s_lshl_b32 s68, s68, 7")
        A(f"s_mul_i32 s69, s66, {6*3456}"); A("s_add_u32 s68, s68, s69"); A(f"s_add_u32 s68, s68, {160*3456}")
        for n in range(3):
            for S in (SA, SB):
                A(f"buffer_load_dwordx4 {v4(PF)}, v{vT+1}, {S}, s68 offen")
                if PFTH < 63: A(f"s_waitcnt vmcnt({PFTH})")
            if n < 2: A(f"s_add_u32 s68, s68, {2*3456}")
        A("s_waitcnt vmcnt(0)")
        A("s_endpgm")
        A.label("L_pf2dn")
        srd(SA, "s20", "s21", 1728*1280)
        A(f"s_mul_i32 s68, {sG}, {7*40960}"); A("s_sub_u32 s69, s66, 80"); A(f"s_mul_i32 s69, s69, {11520}"); A("s_add_u32 s68, s68, s69")
        A(f"v_add_u32 v{vT+1}, s68, v{vLANE16}")
        for n in range(12):
            if n and n % 4 == 0: A(f"v_add_u32 v{vT+1}, 0x1000, v{vT+1}")
            A(f"buffer_load_dwordx4 {v4(PF)}, v{vT+1}, {SA}, 0 offen offset:{(n%4)*1024}")
            if PFTH < 63: A(f"s_waitcnt vmcnt({PFTH+1})")
        A("s_waitcnt vmcnt(0)")
        A("s_endpgm")
        A.label("L_pf2done")
    tail_loads(False)
    A.label("L_tail")
    A(f"s_cmp_lt_u32 {sK}, 10"); A("s_cbranch_scc1 L_wo")
    A(f"s_cmp_ge_u32 {sF}, 54"); A("s_cbranch_scc1 L_exit")
    X0, GA = 24, 26
    CC = [12, 13, 14, 15, 28]; SS = [RING+36, RING+37, RING+38, RING+39, 29]
    SEL0, SEL1, GB = 30, 31, 6
    A(f"s_mov_b32 s22, {WS_MR}")
    A(f"s_cmp_gt_u32 {sWAVE}, 3"); A("s_cbranch_scc1 L_gprep")
    A(f"v_lshrrev_b32 v{vT}, 3, v{vLANE}"); A(f"v_and_b32 v{vT+1}, 3, v{vLANE}"); A(f"v_lshl_add_u32 v{vT+1}, v{vT}, 2, v{vT+1}")
    A(f"s_mul_i32 s68, {sWAVE}, 640"); A(f"v_lshl_add_u32 v{vT+8}, v{vT+1}, 4, s68")
    A("s_add_u32 s68, s68, 512"); A(f"v_lshl_add_u32 v{vT+9}, v{vT+1}, 2, s68")
    A(f"v_lshlrev_b32 v{vT+2}, 1, v{vT+8}"); A(f"v_lshlrev_b32 v{vT+3}, 1, v{vT+9}"); A(f"v_and_b32 v{vT+3}, -16, v{vT+3}")
    acc_addr(vT+5)
    A(f"v_lshrrev_b32 v{vT+6}, 4, v{vLANE}"); A(f"v_lshlrev_b32 v{vT+6}, 3, v{vT+6}")
    A(f"v_and_b32 v{vT+7}, 7, v{vLANE}"); A(f"v_add_u32 v{vT+6}, v{vT+6}, v{vT+7}")
    A(f"v_bfe_u32 v{vT+7}, v{vLANE}, 3, 1"); A(f"v_lshl_add_u32 v{vT+6}, v{vT+7}, 5, v{vT+6}"); A(f"v_lshlrev_b32 v{vT+6}, 2, v{vT+6}")
    A(f"v_add_u32 v{vT+6}, {L_ACC}, v{vT+6}")
    A(f"s_mul_i32 s12, {sF}, 5120"); A(f"s_lshl_b32 s69, {sWAVE}, 10"); A("s_add_u32 s12, s12, s69"); A(f"s_add_u32 s12, s12, {WS_DP}")
    poll([(vT+2, "s22", 0, None), (vT+2, "s22", 16, None), (vT+3, "s22", 0, None)], RING)
    if not (now & 1):
        A(f"s_cmp_eq_u32 {sWAVE}, 0"); A("s_cbranch_scc1 L_dnd")
        dn_loads("L_dnd")
        A.label("L_dnd")
    for i in range(2):
        A(f"v_lshlrev_b32 v{SS[2*i]}, 16, v{RING+4*i+1}"); A(f"v_and_b32 v{SS[2*i+1]}, 0xffff0000, v{RING+4*i+1}")
        A(f"v_lshlrev_b32 v{CC[2*i]}, 16, v{RING+4*i+2}"); A(f"v_and_b32 v{CC[2*i+1]}, 0xffff0000, v{RING+4*i+2}")
    A(f"v_and_b32 v{vT+7}, 1, v{vLANE}"); A(f"v_lshlrev_b32 v{vT+7}, 4, v{vT+7}")
    A(f"v_lshrrev_b32 v{SS[4]}, v{vT+7}, v{RING+9}"); A(f"v_lshlrev_b32 v{SS[4]}, 16, v{SS[4]}")
    A(f"v_lshrrev_b32 v{CC[4]}, v{vT+7}, v{RING+10}"); A(f"v_lshlrev_b32 v{CC[4]}, 16, v{CC[4]}")
    for c in CC: A(f"v_add_f32 v{c}, 1.0, v{c}")
    rbf2(CC[0], CC[1]); rbf2(CC[2], CC[3]); rbf(CC[4], CC[4])
    stamp(8)
    A(f"s_cmp_lg_u32 {sWAVE}, 0"); A("s_cbranch_scc1 L_gemv")
    A.label("L_gprep")
    A(f"s_and_b32 s23, {sWAVE}, 3"); A(f"s_cmp_eq_u32 {sWAVE}, 0"); A("s_cselect_b32 s23, 4, s23")
    A(f"v_and_b32 v{vT}, 31, v{vLANE}"); A(f"v_lshrrev_b32 v{vT+1}, 5, v{vLANE}")
    A(f"v_lshl_add_u32 v{vT+2}, v{vT}, 1, v{vT+1}"); A("s_lshl_b32 s68, s23, 6"); A(f"v_add_u32 v{vT+2}, s68, v{vT+2}")
    A(f"v_lshlrev_b32 v{vT+7}, 4, v{vT+2}"); A(f"v_lshlrev_b32 v{vT+3}, 3, v{vT+2}"); A(f"v_lshlrev_b32 v{vT+2}, 2, v{vT+2}")
    srd(SB, "s4", "s5", 1280)
    A(f"buffer_load_dword v{X0+1}, v{vT+2}, {SB}, 0 offen")
    A(f"v_mul_u32_u24 v{vT+4}, 2560, v{vT+1}"); A(f"v_lshl_add_u32 v{vT+4}, v{vT}, 4, v{vT+4}"); A("s_lshl_b32 s68, s23, 9"); A(f"v_add_u32 v{vT+4}, s68, v{vT+4}")
    A(f"s_mul_i32 s68, {sG}, 20480")
    for n in range(4): A(f"s_add_u32 s{4+n}, s68, {WS_YP + n*5120}")
    A("s_lshl_b32 s68, s23, 3"); A(f"v_mov_b32 v{vADDR}, s68")
    A(f"v_mov_b32 v{SEL0}, 0x3f80"); A(f"v_mov_b32 v{SEL1}, 0x3f800000")
    A(f"s_min_u32 s21, {sF}, 39")
    A(f"v_lshrrev_b32 v{vL}, 3, v{vLANE}"); A(f"v_mul_u32_u24 v{vL}, 5120, v{vL}")
    A(f"v_and_b32 v{vONE}, 7, v{vLANE}"); A(f"v_lshl_add_u32 v{vL}, v{vONE}, 4, v{vL}")
    A(f"s_lshl_b32 s68, s21, 7"); A(f"v_add_u32 v{vL}, s68, v{vL}")
    A(f"v_lshl_add_u32 v{vT}, v{vONE}, 4, s68")
    A(f"v_lshl_add_u32 v{vONE}, v{vONE}, 1, v{vT+1}")
    A(f"s_lshl_b32 s68, s21, 4"); A(f"v_add_u32 v{vONE}, s68, v{vONE}")
    A(f"v_lshlrev_b32 v{vTKT}, 2, v{vONE}"); A(f"v_lshlrev_b32 v{vONE}, 1, v{vONE}")
    for n in range(7): A(f"s_mov_b32 s{13+n}, {WS_DP + n*8*5120}")
    A(f"s_mov_b32 s21, {WS_MR+5120}")
    poll([(vT+7, "s22", 0, None), (vT, "s21", 0, None)], RING)
    A(f"v_lshlrev_b32 v{X0}, 16, v{X0+1}"); A(f"v_and_b32 v{X0+1}, 0xffff0000, v{X0+1}")
    A(f"v_lshlrev_b32 v{GA}, 16, v{RING}"); A(f"v_and_b32 v{GA+1}, 0xffff0000, v{RING}")
    A(f"v_mov_b32 v{GB}, v{RING+4}"); A("s_mov_b32 exec_lo, 0"); A(f"v_mov_b32 v{GB}, v{RING+5}"); A("s_mov_b64 exec, -1")
    srd(SB, "s26", "s27", 1280)
    poll([(vT+4, f"s{4+n}", 0, None) for n in range(4)], RING, tags=(1, 3))
    for n in range(4):
        for r in range(4):
            src, sel = RING + 4*n + 2*(r // 2), (SEL0, SEL1)[r % 2]
            if n == 0: A(f"v_dot2_f32_bf16 v{TMP+r}, v{src}, v{sel}, 0")
            else: A(f"v_dot2c_f32_bf16 v{TMP+r}, v{src}, v{sel}")
    stamp(9)
    A(f"v_permlane32_swap_b32 v{TMP}, v{TMP+2}"); A(f"v_permlane32_swap_b32 v{TMP+1}, v{TMP+3}")
    A(f"v_pk_add_f32 {v2(TMP)}, {v2(TMP)}, {v2(TMP+2)}")
    A(f"v_pk_fma_f32 {v2(X0)}, {v2(TMP)}, {v2(GA)}, {v2(X0)}")
    A(f"v_add_f32 v{TMP}, v{X0}, v{X0+1}"); A(f"v_mul_f32 v{TMP+1}, v{X0}, v{X0}"); A(f"v_fmac_f32 v{TMP+1}, v{X0+1}, v{X0+1}")
    A(f"ds_write_b64 v{vT+3}, {v2(X0)} offset:{L_X2}")
    dpp_red("v_add_f32", [TMP, TMP+1], QUAD + BANK + BCAST)
    A("s_mov_b32 exec_lo, 0"); A("s_brev_b32 exec_hi, 1")
    A(f"ds_write_b64 v{vADDR}, {v2(TMP)} offset:{L_ST}")
    A("s_mov_b64 exec, -1")
    A("s_waitcnt lgkmcnt(0)")
    A(f"s_cmp_lg_u32 {sWAVE}, 0"); A("s_cbranch_scc1 L_final")
    A.label("L_gemv")
    A("s_barrier")
    ST = vAOP; XX = RING + 40
    A(f"ds_read_b128 {v4(ST)}, v{vZERO} offset:{L_ST}"); A(f"ds_read_b128 {v4(ST+4)}, v{vZERO} offset:{L_ST+16}"); A(f"ds_read_b64 {v2(ST+8)}, v{vZERO} offset:{L_ST+32}")
    A(f"ds_read_b128 {v4(XX)}, v{vT+8} offset:{L_X2}"); A(f"ds_read_b32 v{XX+4}, v{vT+9} offset:{L_X2}")
    A(f"v_mov_b32 v{TMP+2}, {fh(1e-5)}")
    A("s_waitcnt lgkmcnt(2)" if not stamps else "s_waitcnt lgkmcnt(0)")
    sum2([ST+2*n for n in range(5)], TMP)
    A(f"v_mul_f32 v{TMP}, {fh(1.0/640)}, v{TMP}")
    A(f"v_fmac_f32 v{TMP+2}, {fh(1.0/640)}, v{TMP+1}")
    A(f"v_fma_f32 v{TMP+2}, -v{TMP}, v{TMP}, v{TMP+2}")
    A(f"v_max_f32 v{TMP+2}, {fh(1e-5)}, v{TMP+2}")
    A(f"v_rsq_f32 v{TMP+2}, v{TMP+2}")
    A("s_waitcnt lgkmcnt(0)")
    for y in range(5): A(f"v_sub_f32 v{XX+y}, v{XX+y}, v{TMP}")
    for y in range(5): A(f"v_mul_f32 v{CC[y]}, v{CC[y]}, v{TMP+2}")
    for y in range(5): A(f"v_fmac_f32 v{SS[y]}, v{XX+y}, v{CC[y]}")
    for y in range(5): A(f"v_cvt_pk_bf16_f32 v{SS[y]}, v{SS[y]}, v{SS[y]}")
    gemv(vACC, vM1, [(SS[y], qp(k), WT+4*(y*4+k), None) for y in range(5) for k in range(4)])
    acc_write(vT+5)
    A("s_waitcnt lgkmcnt(0)")
    A("s_barrier")
    RD = WT
    for k in range(4): A(f"ds_read2st64_b32 {v2(RD+2*k)}, v{vT+6} offset0:{2*k} offset1:{2*k+1}")
    A("s_waitcnt lgkmcnt(0)")
    sum2([RD+2*k for k in range(4)])
    A(f"v_add_f32 v{RD}, v{RD}, v{RD+1}")
    A(f"v_mul_f32 v{RD+2}, {fh(-LOG2E)}, v{RD}"); A(f"v_exp_f32 v{RD+2}, v{RD+2}")
    A(f"v_mul_f32_dpp v{RD+1}, v{RD}, v{RD} row_ror:8 {DPPF}")
    A(f"v_add_f32 v{RD+2}, 1.0, v{RD+2}"); A(f"v_rcp_f32 v{RD+2}, v{RD+2}")
    A(f"v_mul_f32 v{RD}, v{RD+1}, v{RD+2}")
    A(f"v_cvt_pk_bf16_f32 v{RD}, v{RD}, v{RD}")
    A("s_waitcnt vmcnt(0)")
    A(f"s_cmp_eq_u32 {sWAVE}, 1"); A("s_cbranch_scc1 L_down2")
    gemv(vACC, vM2, [(RD, f"row_newbcast:{t}", WD+4*t, None) for t in range(8)])
    publish(vACC, vNAT, "s12")
    A("s_branch L_exit")
    A.label("L_down2")
    gemv(vACC, vM2, [(RD, f"row_newbcast:{t}", WD+4*t, None) for t in range(8)], ACC2, WD2)
    A(f"v_mov_b32 v{vACC+3}, {sTAG}"); A(f"v_mov_b32 v{ACC2+3}, {sTAG}")
    A(f"buffer_store_dwordx4 {v4(vACC)}, v{vNAT}, {SWS}, s12 offen sc1")
    A(f"buffer_store_dwordx4 {v4(ACC2)}, v{vNAT}, {SWS}, s12 offen offset:3072 sc1")
    stamp(10)
    A("s_waitcnt vmcnt(0)")
    A("s_barrier")
    stamp_dump([8, 10])
    A("s_endpgm")
    A.label("L_final")
    A("s_barrier")
    A(f"s_cmp_lg_u32 {sWAVE}, 7"); A("s_cbranch_scc1 L_end")
    A(f"ds_read_b32 v{X0}, v{vTKT} offset:{L_X2}")
    FB = RING + 48
    A(f"v_mov_b32 v{FB+24}, 0"); A(f"v_mov_b32 v{FB+25}, 0"); A(f"v_mov_b32 v{FB+27}, {sTAG}")
    A("s_mov_b32 s68, -1"); A("s_mov_b32 s69, 0xffff")
    A("s_waitcnt lgkmcnt(0)")
    A(f"s_cmp_ge_u32 {sF}, 40"); A("s_cbranch_scc1 L_fin_dump")
    A("s_barrier")
    A("s_barrier")
    poll([(vL, f"s{13+n}", 0, None if n < 6 else "s[68:69]") for n in range(7)], FB)
    sum2([FB+4*n for n in range(7)], GA)
    stamp(11)
    A(f"v_permlane32_swap_b32 v{GA}, v{GA+1}"); A(f"v_add_f32 v{GA}, v{GA}, v{GA+1}")
    xrow("v_add_f32", GA, GA+1, 16)
    A(f"v_add_f32_dpp v{GA}, v{GA}, v{GA} row_ror:8 {DPPF}")
    A(f"v_fma_f32 v{GA}, v{GA}, v{GB}, v{X0}"); A(f"v_cvt_pk_bf16_f32 v{GA}, v{GA}, v{GA}")
    A("s_mov_b32 exec_lo, 0xff"); A("s_mov_b32 exec_hi, 0xff")
    A(f"buffer_store_short v{GA}, v{vONE}, {SB}, 0 offen sc1")
    A(f"s_cmp_lg_u32 {sF}, 0"); A("s_cbranch_scc1 L_fin_dump")
    A("s_mov_b64 exec, 1"); A(f"v_mov_b32 v{GA+1}, {sTAG}")
    A(f"buffer_store_dword v{GA+1}, v{vZERO}, {SWS}, 0 offen sc1")
    A.label("L_fin_dump")
    if stamps:
        A("s_waitcnt vmcnt(0)"); stamp(12)
        stamp_dump([9, 11, 12])
    A("s_endpgm")
    A.label("L_wo")
    A(f"v_lshrrev_b32 v{vT+4}, 5, v{vLANE}"); A(f"v_lshlrev_b32 v{vT+4}, 10, v{vT+4}")
    A(f"v_and_b32 v{vT+6}, 31, v{vLANE}"); A(f"v_lshl_add_u32 v{vT+4}, v{vT+6}, 4, v{vT+4}")
    A(f"s_lshr_b32 s4, {sWAVE}, 1"); A("s_lshl_b32 s4, s4, 3"); A(f"s_add_u32 s4, s4, {sG}"); A("s_lshl_b32 s4, s4, 13")
    A(f"s_and_b32 s5, {sWAVE}, 1"); A("s_lshl_b32 s5, s5, 9"); A("s_add_u32 s4, s4, s5"); A(f"s_add_u32 s4, s4, {WS_OP}"); A("s_add_u32 s5, s4, 4096")
    acc_addr(vT+5)
    A(f"v_lshrrev_b32 v{vT+8}, 5, v{vLANE}"); A(f"v_lshlrev_b32 v{vT+7}, 11, v{vT+8}"); A(f"v_lshl_add_u32 v{vT+7}, v{vT+6}, 3, v{vT+7}")
    A(f"v_mul_u32_u24 v{vT+8}, 20480, v{vT+8}"); A(f"v_lshl_add_u32 v{vT+8}, v{vT+6}, 3, v{vT+8}")
    A(f"s_mul_i32 s6, {sG}, 2560"); A(f"s_lshl_b32 s7, {sK}, 8"); A("s_add_u32 s6, s6, s7"); A(f"s_add_u32 s6, s6, {WS_YP}")
    for c in range(1, 4): A(f"s_add_u32 s{12+c}, s6, {c*40960}")
    poll([(vT+4, "s4" if n < 2 else "s5", (n % 2)*2048, None) for n in range(4)], RING)
    stamp(7)
    sum2([RING+4*n for n in range(4)], TMP)
    A(f"v_permlane32_swap_b32 v{TMP}, v{TMP+1}")
    A(f"v_add_f32 v{TMP}, v{TMP}, v{TMP+1}")
    A(f"v_cvt_pk_bf16_f32 v{TMP}, v{TMP}, v{TMP}")
    ysplit([TMP], TMP+2)
    gemv(vACC, vM1, [(TMP + 2 + n // 4, qp(n % 4), WT+4*n, None) for n in range(8)])
    acc_write(vT+5)
    A("s_waitcnt lgkmcnt(0)")
    A("s_barrier")
    A(f"s_cmp_lg_u32 {sWAVE}, 0"); A("s_cbranch_scc1 L_end")
    for n in range(8): A(f"ds_read_b64 {v2(WT+2*n)}, v{vT+7} offset:{L_ACC+256*n}")
    A("s_waitcnt lgkmcnt(0)")
    sum2([WT+2*n for n in range(8)])
    A(f"v_mov_b32 v{WT+2}, v{WT}"); A(f"v_mov_b32 v{WT+3}, v{WT+1}")
    A(f"v_permlane32_swap_b32 v{WT}, v{WT+2}"); A(f"v_permlane32_swap_b32 v{WT+1}, v{WT+3}")
    A(f"v_pk_add_f32 {v2(WT)}, {v2(WT)}, {v2(WT+2)}")
    A(f"v_cvt_pk_bf16_f32 v{WT}, v{WT}, v{WT+1}"); A(f"v_mov_b32 v{WT+1}, {sTAG}")
    for so in ("s6", "s13", "s14", "s15"): A(f"buffer_store_dwordx2 {v2(WT)}, v{vT+8}, {SWS}, {so} offen sc1")
    stamp(13)
    A.label("L_exit")
    if stamps:
        A(f"s_cmp_lg_u32 {sWAVE}, 0"); A("s_cbranch_scc1 L_end")
        stamp_dump([0, 13, 6, 7] + ([1, 2, 3, 4, 5] if stamps != 4 else []), xcc=True)
    A("s_endpgm")

    A.label("L_help")
    A("s_waitcnt lgkmcnt(0)")
    A("s_barrier")
    common_setup()
    A(f"s_cmp_lg_u32 {sWAVE}, 7"); A("s_cbranch_scc1 L_help7")
    A(f"s_lshl_b32 s6, {sHD}, 13"); A(f"s_add_u32 s6, s6, {WS_SP}")
    A(f"s_lshl_b32 s8, {sS}, 10"); A("s_add_u32 s8, s8, s6")
    A("s_add_u32 s6, s6, s30"); A("s_addc_u32 s7, s31, 0")
    A(f"v_lshlrev_b32 v{vT}, 3, v{vLANE}")
    if abl & 4:
        A(f"ds_write_b32 v{vZERO}, v{vONE} offset:{L_PF}"); A("s_waitcnt lgkmcnt(0)"); A("s_branch L_join"); A.label("L_abl4")
    lds_wait(L_KD, NL, slow=True)
    E = RING + 64
    for n in range(8): A(f"ds_read_b128 {v4(E+4*n)}, v{vLANE16} offset:{L_P + 1024*n}")
    A("s_waitcnt lgkmcnt(0)")
    A(f"v_cvt_pk_bf16_f32 v{vACC}, v{E+28}, v{E+29}"); A(f"v_cvt_pk_bf16_f32 v{vACC+1}, v{E+30}, v{E+31}")
    lanes0 = (NS - 112) * 4
    if lanes0: A(f"s_lshl_b64 exec, -1, {lanes0}")
    A(f"buffer_store_dwordx2 {v2(vACC)}, v{vT}, {SWS}, s8 offen sc1")
    if lanes0: A("s_mov_b64 exec, -1")
    m = vR
    A(f"v_max3_f32 v{m}, v{E}, v{E+1}, v{E+2}"); A(f"v_max3_f32 v{m+1}, v{E+3}, v{E+4}, v{E+5}")
    for i in range(6, 32, 4):
        A(f"v_max3_f32 v{m}, v{m}, v{E+i}, v{E+i+1}")
        if i + 3 < 32: A(f"v_max3_f32 v{m+1}, v{m+1}, v{E+i+2}, v{E+i+3}")
    A(f"v_max_f32 v{m}, v{m}, v{m+1}")
    wave_red("v_max_f32", m, m+1)
    A(f"v_mul_f32 v{m}, {sL2E}, v{m}")
    for i in range(32): A(f"v_fma_f32 v{E+i}, v{E+i}, {sL2E}, -v{m}")
    for i in range(32): A(f"v_exp_f32 v{E+i}, v{E+i}")
    A(f"v_pk_add_f32 {v2(m+2)}, {v2(E)}, {v2(E+2)}")
    for i in range(4, 32, 2): A(f"v_pk_add_f32 {v2(m+2)}, {v2(m+2)}, {v2(E+i)}")
    A(f"v_add_f32 v{m+2}, v{m+2}, v{m+3}")
    wave_red("v_add_f32", m+2, m+1)
    A(f"v_log_f32 v{vACC+2}, v{m+2}")
    A(f"v_add_f32 v{vACC+2}, v{vACC+2}, v{m}"); A(f"v_mov_b32 v{vACC+3}, {sTAG}")
    A("s_waitcnt vmcnt(0)")
    A("s_mov_b64 exec, 1")
    A(f"buffer_store_dwordx2 {v2(vACC+2)}, v{vZERO}, {SWS}, s8 offen offset:512 sc1")
    A("s_mov_b64 exec, -1")
    R = [40, 42, 44, 46, 52, 54, 56, 58]
    A(f"s_mov_b32 {sTO}, 0x40000")
    A.label("L_lam")
    for n in range(8): A(f"s_load_dwordx2 s[{R[n]}:{R[n]+1}], s[6:7], {n*1024 + 512} glc")
    A(f"s_sub_u32 {sTO}, {sTO}, 1"); A(f"s_cmp_eq_u32 {sTO}, 0"); A("s_cbranch_scc1 L_lamd")
    A("s_waitcnt lgkmcnt(0)")
    for n in range(8):
        A(f"s_cmp_lg_u32 s{R[n]+1}, {sTAG}"); A("s_cbranch_scc1 L_lam")
    A.label("L_lamd")
    A("s_waitcnt lgkmcnt(0)")
    lam = [RING + n for n in range(8)]
    for n in range(8): A(f"v_mov_b32 v{lam[n]}, s{R[n]}")
    t = vA_
    A(f"v_max3_f32 v{t}, v{lam[0]}, v{lam[1]}, v{lam[2]}"); A(f"v_max3_f32 v{t}, v{t}, v{lam[3]}, v{lam[4]}")
    A(f"v_max3_f32 v{t}, v{t}, v{lam[5]}, v{lam[6]}"); A(f"v_max_f32 v{t}, v{t}, v{lam[7]}")
    for n in range(8): A(f"v_sub_f32 v{lam[n]}, v{lam[n]}, v{t}")
    for n in range(8): A(f"v_exp_f32 v{lam[n]}, v{lam[n]}")
    for n in range(1, 8): A(f"v_add_f32 v{lam[0]}, v{lam[0]}, v{lam[n]}")
    A(f"v_log_f32 v{lam[0]}, v{lam[0]}")
    A(f"v_add_f32 v{t}, v{t}, v{lam[0]}")
    A(f"v_sub_f32 v{m}, v{m}, v{t}"); A(f"v_exp_f32 v{m}, v{m}")
    A(f"ds_write_b32 v{vZERO}, v{t} offset:{L_LAM}")
    for i in range(32): A(f"v_mul_f32 v{E+i}, v{E+i}, v{m}")
    for i in range(32): A(f"v_cvt_pk_bf16_f32 v{E+i}, v{E+i}, v{E+i}")
    for n in range(8): A(f"ds_write_b128 v{vLANE16}, {v4(E+4*n)} offset:{L_P + 1024*n}")
    A("s_waitcnt lgkmcnt(0)")
    A(f"ds_write_b32 v{vZERO}, v{vONE} offset:{L_PF}")
    A("s_setprio 0")
    if stamps:
        stamp(14); stamp_dump([14], final=False)
    A("s_waitcnt lgkmcnt(0)")
    A("s_branch L_join")
    A.label("L_help7")
    if pf and TW:
        lds_wait(L_VT, TW, slow=True)
        wo_prefetch(0, 20, TWD)
    A("s_branch L_join")

    A.label("L_ctrl0")
    A("s_setprio 3")
    A(f"v_mov_b32 v{vT+4}, {KT0}"); A(f"v_mov_b32 v{vT+5}, {VT0}"); A(f"v_mov_b32 v{vT+6}, 0"); A(f"v_mov_b32 v{vT+7}, 0")
    A(f"ds_write_b128 v{vZERO}, {v4(vT+4)} offset:{L_KT}")
    A(f"ds_write_b64 v{vZERO}, {v2(vT+6)} offset:{L_KD}")
    A("s_waitcnt lgkmcnt(0)")
    A("s_barrier")
    if abl & 2:
        common_setup()
        A(f"s_lshl_b32 s68, {sHD}, 8"); A(f"s_add_u32 s68, s68, {WS_CNT}")
        A("s_mov_b64 exec, 1"); A(f"buffer_store_dword v{vZERO}, v{vZERO}, {SWS}, s68 offen sc1"); A("s_mov_b64 exec, -1")
        A(f"v_lshlrev_b32 v{vT}, 2, v{vLANE}"); A(f"v_mov_b32 v{vT+1}, 0x3f803f80"); A(f"ds_write_b32 v{vT}, v{vT+1} offset:{L_Q}"); A("s_waitcnt lgkmcnt(0)")
        A(f"ds_write_b32 v{vZERO}, v{vONE} offset:{L_QF}")
        A("s_branch L_ctrl_w"); A.label("L_abl2")
    A(f"s_sub_u32 s37, {sK}, 17"); A(f"s_add_u32 s68, {sK}, 15"); A(f"s_cmp_lt_u32 {sK}, 5"); A("s_cselect_b32 s37, s68, s37")
    A("s_cmp_lt_u32 s37, 20"); A("s_cbranch_scc1 L_ctrl_q")
    A(f"s_cmp_ge_u32 {sK}, 15"); A("s_cbranch_scc1 L_ctrl_none")
    A(f"s_sub_u32 s38, {sK}, 5")
    mod_loads("s38", sG)
    common_setup()
    mod_compute("s38", sG)
    stamp(1)
    A("s_branch L_hop2")
    A.label("L_ctrl_none")
    common_setup()
    A("s_branch L_hop2")
    A.label("L_ctrl_q")
    WQ = RING + 64
    XA = RING
    X0, X1 = 24, 25
    A("s_mul_i32 s38, s37, 52"); A("s_lshr_b32 s38, s38, 8"); A("s_mul_i32 s68, s38, 5"); A("s_sub_u32 s39, s37, s68")
    A("s_lshl_b32 s38, s38, 3"); A(f"s_add_u32 s38, s38, {sG}")
    srd(SB, "s4", "s5", 1280); srd(SA, "s10", "s11", 640*8192)
    A(f"v_lshlrev_b32 v{vT+2}, 2, v{vLANE}")
    for k in range(5): A(f"buffer_load_dword v{XA+2*k+1}, v{vT+2}, {SB}, 0 offen offset:{k*256}")
    A("s_lshl_b32 s68, s39, 8")
    A(f"buffer_load_dword v{X1}, v{vT+2}, {SB}, s68 offen")
    A(f"v_lshrrev_b32 v{vT}, 4, v{vLANE}"); A(f"v_lshlrev_b32 v{vT}, 18, v{vT}")
    A(f"v_and_b32 v{vT+1}, 15, v{vLANE}"); A(f"v_lshl_add_u32 v{vT+3}, v{vT+1}, 4, v{vT}")
    A("s_lshl_b32 s69, s39, 20"); A("s_lshl_b32 s68, s38, 8"); A("s_add_u32 s69, s69, s68")
    for n in range(32):
        u, j = n // 16, n % 16
        A(f"s_add_u32 s68, s69, {(2*j+u)*8192}")
        A(f"buffer_load_dwordx4 {v4(WQ+4*n)}, v{vT+3}, {SA}, s68 offen {pol}")
    common_setup()
    A("s_lshl_b32 s68, s38, 8"); A(f"s_add_u32 s68, s68, {WS_CNT}")
    A("s_cmp_lg_u32 s39, 0"); A("s_cbranch_scc1 L_nocnt")
    A("s_mov_b64 exec, 1")
    A(f"buffer_store_dword v{vZERO}, v{vZERO}, {SWS}, s68 offen sc1")
    A("s_mov_b64 exec, -1")
    A("s_waitcnt vmcnt(33)")
    A("s_branch L_cntj")
    A.label("L_nocnt")
    A("s_waitcnt vmcnt(32)")
    A.label("L_cntj")
    for k in range(5):
        A(f"v_lshlrev_b32 v{XA+2*k}, 16, v{XA+2*k+1}"); A(f"v_and_b32 v{XA+2*k+1}, 0xffff0000, v{XA+2*k+1}")
    A(f"v_lshlrev_b32 v{X0}, 16, v{X1}"); A(f"v_and_b32 v{X1}, 0xffff0000, v{X1}")
    t = vT + 8; a = XA
    A(f"v_add_f32 v{t}, v{a}, v{a+1}")
    for i in range(2, 10): A(f"v_add_f32 v{t}, v{t}, v{a+i}")
    wave_red("v_add_f32", t, t+1)
    A(f"v_mul_f32 v{t}, {fh(1.0/640)}, v{t}")
    for i in range(10): A(f"v_sub_f32 v{a+i}, v{a+i}, v{t}")
    A(f"v_mul_f32 v{t+2}, v{a}, v{a}")
    for i in range(1, 10): A(f"v_fmac_f32 v{t+2}, v{a+i}, v{a+i}")
    wave_red("v_add_f32", t+2, t+1)
    A(f"v_mul_f32 v{t+2}, {fh(1.0/640)}, v{t+2}")
    rbf2(t, t+2)
    A(f"v_add_f32 v{t+2}, {fh(1e-5)}, v{t+2}"); rbf(t+2, t+2)
    A(f"v_sqrt_f32 v{t+2}, v{t+2}"); rbf(t+2, t+2)
    A(f"v_rcp_f32 v{t+2}, v{t+2}")
    A(f"v_sub_f32 v{X0}, v{X0}, v{t}"); A(f"v_sub_f32 v{X1}, v{X1}, v{t}"); rbf2(X0, X1)
    A(f"v_mul_f32 v{X0}, v{X0}, v{t+2}"); A(f"v_mul_f32 v{X1}, v{X1}, v{t+2}"); rbf2(X0, X1)
    A("s_lshl_b32 s6, s39, 13"); A(f"s_add_u32 s6, s6, {WS_MODP}"); A("s_add_u32 s7, s6, 4096"); A(f"s_add_u32 s8, s6, {5*8192}"); A("s_add_u32 s9, s8, 4096")
    stamp(1)
    spre("s6", [(n // 8)*5*8192 + (n % 8)*1024 for n in range(16)])
    poll([(vLANE16, f"s{6+n//4}", (n % 4)*1024, None) for n in range(16)], RING)
    stamp(2)
    sum2([RING+4*n for n in range(8)]); sum2([RING+32+4*n for n in range(8)])
    rbf2(RING, RING+1); rbf2(RING+32, RING+33)
    c0, c1, s0, s1 = RING+32, RING+33, RING, RING+1
    A(f"v_add_f32 v{c0}, 1.0, v{c0}"); A(f"v_add_f32 v{c1}, 1.0, v{c1}"); rbf2(c0, c1)
    A(f"v_mul_f32 v{X0}, v{X0}, v{c0}"); A(f"v_mul_f32 v{X1}, v{X1}, v{c1}"); rbf2(X0, X1)
    A(f"v_add_f32 v{X0}, v{X0}, v{s0}"); A(f"v_add_f32 v{X1}, v{X1}, v{s1}")
    A(f"v_cvt_pk_bf16_f32 v{X0}, v{X0}, v{X0}"); A(f"v_cvt_pk_bf16_f32 v{X1}, v{X1}, v{X1}")
    gemv(vACC, vM2, [((X0, X1)[n // 16], f"row_newbcast:{n % 16}", WQ + 4*n, None) for n in range(32)])
    A("s_mul_i32 s68, s38, 5"); A("s_add_u32 s68, s68, s39"); A("s_lshl_b32 s68, s68, 10"); A(f"s_add_u32 s68, s68, {WS_QP}")
    publish(vACC, vNAT, "s68")
    A.label("L_hop2")
    stamp(3)
    A(f"s_mul_i32 s6, {sHD}, 5120"); A(f"s_add_u32 s6, s6, {WS_QP}"); A("s_add_u32 s7, s6, 4096")
    spre("s6", [n*1024 for n in range(5)])
    poll([(vLANE16, "s6" if n < 4 else "s7", (n % 4)*1024, None) for n in range(5)], RING)
    sum2([RING+4*n for n in range(5)])
    A(f"v_cvt_pk_bf16_f32 v{RING}, v{RING}, v{RING+1}")
    A(f"v_lshlrev_b32 v{vT}, 2, v{vLANE}")
    A(f"ds_write_b32 v{vT}, v{RING} offset:{L_Q}")
    A("s_waitcnt lgkmcnt(0)")
    A(f"ds_write_b32 v{vZERO}, v{vONE} offset:{L_QF}")
    stamp(4)
    A("s_setprio 0")
    A("s_cmp_lt_u32 s37, 20"); A("s_cbranch_scc0 L_ctrl_w")
    A("s_add_u32 s38, s37, 10")
    mod_loads("s38", sG)
    mod_compute("s38", sG)
    A(f"s_cmp_lg_u32 {sK}, 31"); A("s_cbranch_scc1 L_ctrl_w")
    A(f"s_cmp_ge_u32 {sG}, 5"); A("s_cbranch_scc1 L_ctrl_w")
    A(f"s_lshl_b32 s6, {sG}, 13"); A(f"s_add_u32 s6, s6, {WS_MODP + 10*8192}")
    spre("s6", [(n // 8)*5*8192 + (n % 8)*1024 for n in range(16)])
    spre("s6", [(n // 8)*5*8192 + (n % 8)*1024 for n in range(16, 32)])
    for b in range(1, 8): A(f"s_add_u32 s{40+b}, s6, {(b//2)*5*8192 + (b%2)*4096}")
    poll([(vLANE16, f"s{40+n//4}" if n >= 4 else "s6", (n % 4)*1024, None) for n in range(32)], RING)
    for b in range(4): sum2([RING+32*b+4*n for n in range(8)])
    for b in range(3): A(f"v_cvt_pk_bf16_f32 v{vACC+b}, v{RING+32*b}, v{RING+32*b+1}")
    rbf2(RING+96, RING+97)
    A(f"s_lshl_b32 s6, {sG}, 10"); A(f"s_add_u32 s6, s6, {WS_MR}"); A("s_add_u32 s7, s6, 5120")
    publish(vACC, vLANE16, "s6"); publish(RING+96, vLANE16, "s7")
    A.label("L_ctrl_w")
    if abl: A("s_barrier"); A("s_endpgm"); A.label("L_abl_dead2")
    tail_loads(True)
    A(f"s_lshl_b32 s8, {sHD}, 3"); A(f"s_add_u32 s8, s8, {sS}"); A("s_lshl_b32 s8, s8, 10"); A(f"s_add_u32 s8, s8, {WS_OP}")
    A(f"v_lshlrev_b32 v{vT}, 3, v{vLANE}"); A(f"v_mov_b32 v{TMP+3}, {sTAG}")
    A("s_waitcnt vmcnt(0) lgkmcnt(0)")
    stamp(5)
    A("s_barrier")
    stamp(6)
    for w in range(NL): A(f"ds_read_b64 {v2(RING+2*w)}, v{vT} offset:{L_PART+512*w}")
    A("s_waitcnt lgkmcnt(0)")
    sum2([RING+2*w for w in range(NL)], TMP)
    A(f"buffer_store_dwordx4 {v4(TMP)}, v{vLANE16}, {SWS}, s8 offen sc1")
    stamp(13)
    A("s_branch L_tail")
    A.label("L_end")
    A("s_endpgm")
    A('.section .rodata,"a"'); A(".p2align 6"); A(f".amdhsa_kernel {KN}")
    A(".amdhsa_next_free_vgpr 256"); A(".amdhsa_next_free_sgpr 100"); A(".amdhsa_accum_offset 256")
    A(".amdhsa_group_segment_fixed_size 0"); A(".amdhsa_kernarg_size 112"); A(".amdhsa_user_sgpr_count 2")
    A(".amdhsa_user_sgpr_kernarg_segment_ptr 1"); A(".amdhsa_system_sgpr_workgroup_id_x 1")
    A(".amdhsa_float_denorm_mode_32 3")
    A(".end_amdhsa_kernel")
    return A.finalize()

def check_inter(w, inter):
    import numpy as np
    def cmp(name, got, exp):
        err = np.abs(got - exp).max(); rel = np.linalg.norm(got - exp) / np.linalg.norm(exp)
        print("   inter %-5s maxabs %.4e (scale %.3e) relL2 %.3e nan=%d" % (name, err, np.abs(exp).max(), rel, int(np.isnan(got).sum())), got[:4], exp[:4])
    def bf(x):
        u = x.astype(np.float32).view(np.uint32); u = (u + 0x7fff + ((u >> 16) & 1)) & 0xffff0000
        return u.view(np.float32)
    gr = lambda off, n: w[off // 4: off // 4 + n*4].reshape(n, 4)
    md = gr(WS_MODP, 30*8*64)[:, :2].reshape(30, 8, 128).sum(1).reshape(-1)
    cmp("mod", md, inter["mod"]); print("      mod bf16 mismatches", int((bf(md) != inter["mod"]).sum()))
    q = gr(WS_QP, 32*5*64)[:, :2].reshape(32, 5, 128).sum(1).reshape(-1)
    cmp("q", q, inter["q"]); print("      q bf16 mismatches", int((bf(q) != inter["q"]).sum()))
    o = gr(WS_OP, 32*8*64)[:, :2].reshape(32, 8, 128).sum(1).reshape(-1)
    cmp("o", o, inter["o"]); print("      o bf16 mismatches", int((bf(o) != inter["o"]).sum()))
    yp = w[WS_YP // 4: WS_YP // 4 + 8*640].view(np.uint32).reshape(8, 320, 2)[:, :, 0]
    ya = np.stack([(yp << 16).view(np.float32), (yp & 0xffff0000).view(np.float32)], axis=-1).reshape(8, 640)
    cmp("at", ya.sum(0), inter["at"])
    cmp("dn", gr(WS_DP, 54*320)[:, :2].reshape(54, 640).sum(0), inter["dn"])

if __name__ == "__main__":
    out = sys.argv[1]
    kw = {}
    for a in sys.argv[2:]:
        k, v = a.split("=")
        kw[k] = eval(v)
    open(out, "w").write(gen(**kw))
```

```python
import sys, struct
from asmdsl import Asm
KN = "adaLN_cond__gqa_block_cached__swiglu_ffn__decode_kernel"

def f2u(x): return struct.unpack("<I", struct.pack("<f", x))[0]
def fh(x): return hex(f2u(x))
LOG2E = 1.4426950408889634
SCALE = 128 ** -0.5

WS_MODP = 0x1000
WS_QP   = WS_MODP + 10*4*1024
WS_SP   = WS_QP + 32*5*1024
WS_OP   = WS_SP + 32*8*1024
WS_YP   = WS_OP + 32*8*1024
WS_DP   = WS_YP + 8*8*2560
WS_MR   = WS_DP + 54*5120
WS_CNT  = WS_MR + 2*20480
WS_END  = WS_CNT + 32*256
WS_STAMP = 0x10000000
L_KT, L_VT, L_QF, L_PF, L_KD, L_RANK, L_MF, L_N6, L_LAM = 0, 4, 8, 12, 16, 20, 24, 28, 32
L_Q = 0x100
L_ST = 0x200
L_PART = 0x400
L_ACC = 0x1000
L_X2 = 0x2000
L_P = 0x3000
L_END = 0x5000
DPPF = "row_mask:0xf bank_mask:0xf"

def gen(stamps=0, pol="nt", NK=12, NV=10, NS=120, NL=5, SLP=16, wake=False, KAP=26, LAG0=20, CAP=20, SLK=4, psl=0, ROT=304, abl=0, PFTH=2, LTH=63, cearly=True, CTH=63, QK=(0, 8, 6, 3, 0), NR=4, TW=0, TWD=4, now=0, pf=True, pf2=True, Q_wo=999, Q_ffn=999):
    NP = 8 * (128 - NS); Q_wo = min(Q_wo, NP); Q_ffn = min(Q_ffn, NP)
    A = Asm()
    uid = [0]
    def U(p):
        uid[0] += 1; return f"L_{p}_{uid[0]}"
    sWAVE, sHD, sS, sTAG, sK, sG = "s3", "s32", "s33", "s34", "s35", "s36"
    SK, SV, SWS, SA, SB = "s[40:43]", "s[44:47]", "s[48:51]", "s[52:55]", "s[56:59]"
    sTP, sST, sL2E, sSC, sTO, sF, sTK = "s60", "s61", "s62", "s63", "s64", "s65", "s66"
    sROT, sQ, SCNT = "s37", "s29", "s[38:39]"
    def stamp(k):
        if stamps: A(f"s_memrealtime s[{70+2*k}:{71+2*k}]")
    def stamp_dump(slots, xcc=False, final=True):
        if not stamps: return
        A("s_waitcnt lgkmcnt(0)")
        A("s_mov_b64 exec, 1")
        A(f"s_lshl_b32 s69, s2, 7"); A(f"s_add_u32 s69, s69, {WS_STAMP}")
        A("s_mov_b32 s50, 0x20000000")
        for k in slots:
            A(f"v_mov_b32 v{vT+10}, s{70+2*k}"); A(f"v_mov_b32 v{vT+11}, s{71+2*k}")
            A(f"buffer_store_dwordx2 v[{vT+10}:{vT+11}], v{vZERO}, {SWS}, s69 offen offset:{k*8}")
            A("s_nop 1")
        if xcc:
            A("s_getreg_b32 s68, hwreg(HW_REG_XCC_ID)")
            A(f"v_mov_b32 v{vT+10}, s68"); A(f"v_mov_b32 v{vT+11}, 0")
            A(f"buffer_store_dwordx2 v[{vT+10}:{vT+11}], v{vZERO}, {SWS}, s69 offen offset:120")
        if not final: A("s_mov_b64 exec, -1")
    def srd(S, lo, hi, n):
        b = int(S[2:S.index(":")])
        A(f"s_mov_b32 s{b}, {lo}"); A(f"s_mov_b32 s{b+1}, {hi}"); A(f"s_mov_b32 s{b+2}, {n}"); A(f"s_mov_b32 s{b+3}, 0x20000")
    def v4(b): return f"v[{b}:{b+3}]"
    def v2(b): return f"v[{b}:{b+1}]"
    def dpp_red(op, vs, ctls):
        for ctl in ctls:
            for v in vs: A(f"{op}_dpp v{v}, v{v}, v{v} {ctl}")
    QUAD = [f"quad_perm:[1,0,3,2] {DPPF}", f"quad_perm:[2,3,0,1] {DPPF}"]
    BANK = [f"row_ror:4 {DPPF}", f"row_ror:8 {DPPF}"]
    BCAST = ["row_bcast:15 row_mask:0xa bank_mask:0xf", "row_bcast:31 row_mask:0xc bank_mask:0xf"]
    def xrow(op, v, t, which):
        A(f"v_mov_b32 v{t}, v{v}"); A(f"v_permlane{which}_swap_b32 v{v}, v{t}"); A(f"{op} v{v}, v{v}, v{t}")
    def wave_red(op, v, t):
        dpp_red(op, [v], QUAD + BANK); xrow(op, v, t, 16); xrow(op, v, t, 32)
    def rbf(d, s):
        A(f"v_cvt_pk_bf16_f32 v{d}, v{s}, v{s}"); A(f"v_and_b32 v{d}, 0xffff0000, v{d}")
    def rbf2(a, b):
        A(f"v_cvt_pk_bf16_f32 v{b}, v{a}, v{b}"); A(f"v_lshlrev_b32 v{a}, 16, v{b}"); A(f"v_and_b32 v{b}, 0xffff0000, v{b}")
    vLANE16, vZERO, vONE, vTKT, vADDR, vPB, vPW, vL = 1, 2, 3, 4, 5, 6, 7, 8
    vLANE, vNAT, vBAD = 9, 10, 11
    vQ, vM2, vACC = 12, 16, 20
    vR, vA_, vB_, vC_, vE_ = 24, 28, 29, 30, 31
    vAOP = 32
    vT = 48
    vM1 = 60
    RING = 64
    WT = RING + 48
    WD = WT + 80
    WD2 = WD + 32
    TMP = RING + 32
    ACC2 = RING + 40
    PF = RING + 44
    def publish(b, voff, soff):
        A(f"v_mov_b32 v{b+3}, {sTAG}")
        A(f"buffer_store_dwordx4 {v4(b)}, v{voff}, {SWS}, {soff} offen sc1")
    def poll(loads, base, tags=(3,)):
        n = len(loads)
        dst = base if isinstance(base, list) else [base + 4*i for i in range(n)]
        L = U("poll"); Ld = U("pdone")
        A(f"s_mov_b32 {sTO}, 0x40000")
        A.label(L)
        for idx, (vo, so, imm, em) in enumerate(loads):
            if em is not None: A(f"s_mov_b64 exec, {em}")
            A(f"buffer_load_dwordx4 {v4(dst[idx])}, v{vo}, {SWS}, {so} offen offset:{imm} sc1")
            if em is not None: A("s_mov_b64 exec, -1")
        first = True
        for idx in range(n):
            d = dst[idx]
            A(f"s_waitcnt vmcnt({n-1-idx})")
            for tp in tags:
                if first: A(f"v_xor_b32 v{vBAD}, {sTAG}, v{d+tp}"); first = False
                else: A(f"v_bitop3_b32 v{vBAD}, v{vBAD}, v{d+tp}, {sTAG} bitop3:0xf6")
        A(f"v_cmp_ne_u32 vcc, 0, v{vBAD}")
        A(f"s_cbranch_vccz {Ld}")
        A(f"s_sub_u32 {sTO}, {sTO}, 1")
        A(f"s_cmp_lg_u32 {sTO}, 0")
        A(f"s_cbranch_scc1 {L}")
        A.label(Ld)
    def spre(sbase, offs, sl=None):
        R = [40, 41, 42, 43, 44, 45, 46, 47, 14, 15, 28, 29, 60, 61, 66, 67]
        L = U("spoll"); Ld = U("spd")
        A(f"s_add_u32 s68, s30, {sbase}"); A("s_addc_u32 s69, s31, 0")
        A(f"s_mov_b32 {sTO}, 0x40000")
        A.label(L)
        sl = psl if sl is None else sl
        if sl: A(f"s_sleep {sl}")
        for i, o in enumerate(offs): A(f"s_load_dword s{R[i]}, s[68:69], {o + 1020} glc")
        A(f"s_sub_u32 {sTO}, {sTO}, 1"); A(f"s_cmp_eq_u32 {sTO}, 0"); A(f"s_cbranch_scc1 {Ld}")
        A("s_waitcnt lgkmcnt(0)")
        for i, o in enumerate(offs):
            A(f"s_cmp_lg_u32 s{R[i]}, {sTAG}"); A(f"s_cbranch_scc1 {L}")
        A.label(Ld)
        A("s_waitcnt lgkmcnt(0)")
    def lds_wait(off, val, slow=False, slp=None):
        L = U("lw"); Ld = U("lwd")
        A(f"s_mov_b32 {sTO}, 0x400000")
        A.label(L)
        if slow: A(f"s_sleep {SLP if slp is None else slp}")
        A(f"ds_read_b32 v{vBAD}, v{vZERO} offset:{off}")
        A(f"s_sub_u32 {sTO}, {sTO}, 1"); A(f"s_cmp_eq_u32 {sTO}, 0"); A(f"s_cbranch_scc1 {Ld}")
        A("s_waitcnt lgkmcnt(0)")
        A(f"v_cmp_gt_u32 vcc, {val}, v{vBAD}")
        A(f"s_cbranch_vccnz {L}")
        A.label(Ld)
    def sum2(bases, dst=None):
        bs = list(bases)
        while len(bs) > 1:
            nb = []
            for i in range(0, len(bs) - 1, 2):
                d = dst if (dst is not None and len(bs) == 2) else bs[i]
                A(f"v_pk_add_f32 {v2(d)}, {v2(bs[i])}, {v2(bs[i+1])}"); nb.append(d)
            if len(bs) % 2: nb.append(bs[-1])
            bs = nb
    def gemv(acc, mask, items, acc2=None, w2=None, keep=False):
        def mf(n):
            (x0, c0, w0, wc0) = items[n]
            if wc0 is not None: A(f"s_waitcnt vmcnt({wc0})")
            A(f"v_mfma_f32_16x16x32_bf16 {v4(acc)}, {v4(vAOP + 4*(n % 4))}, {v4(w0)}, {'0' if (n == 0 and not keep) else v4(acc)}")
            if acc2 is not None:
                A(f"v_mfma_f32_16x16x32_bf16 {v4(acc2)}, {v4(vAOP + 4*(n % 4))}, {v4(w2+4*n)}, {'0' if n == 0 else v4(acc2)}")
        for n, (x, ctl, w, wc) in enumerate(items):
            a = vAOP + 4 * (n % 4)
            for t in range(4): A(f"v_and_b32_dpp v{a+t}, v{x}, v{mask+t} {ctl} {DPPF}")
            if n >= 1: mf(n-1)
        mf(len(items) - 1)
    def ysplit(xs, y):
        for i, x in enumerate(xs): A(f"v_mov_b32 v{y+2*i}, v{x}"); A(f"v_mov_b32 v{y+2*i+1}, v{x}")
        for i, x in enumerate(xs):
            A(f"v_mov_b32_dpp v{y+2*i}, v{x} row_shr:4 row_mask:0xf bank_mask:0xa")
            A(f"v_mov_b32_dpp v{y+2*i+1}, v{x} row_shl:4 row_mask:0xf bank_mask:0x5")
    qp = lambda k: f"quad_perm:[{k},{k},{k},{k}]"
    def silu(x, t):
        A(f"v_mul_f32 v{t}, {fh(-LOG2E)}, v{x}"); A(f"v_exp_f32 v{t}, v{t}")
        A(f"v_add_f32 v{t}, 1.0, v{t}"); A(f"v_rcp_f32 v{t}, v{t}"); A(f"v_mul_f32 v{x}, v{x}, v{t}")
    def acc_addr(d):
        A(f"v_and_b32 v{d}, 7, v{vLANE}"); A(f"v_lshlrev_b32 v{d}, 5, v{d}")
        A(f"v_and_b32 v{vT+11}, 16, v{vLANE}"); A(f"v_add_u32 v{d}, v{d}, v{vT+11}")
        A(f"v_lshrrev_b32 v{vT+11}, 5, v{vLANE}"); A(f"v_lshl_add_u32 v{d}, v{vT+11}, 8, v{d}")
        A(f"s_lshl_b32 s68, {sWAVE}, 9"); A(f"v_add_u32 v{d}, s68, v{d}")
    def acc_write(d):
        A("s_mov_b32 exec_lo, 0x00ff00ff"); A("s_mov_b32 exec_hi, 0xff00ff00")
        A(f"ds_write_b128 v{d}, {v4(vACC)} offset:{L_ACC}")
        A("s_mov_b64 exec, -1")
    def mod_loads(scb, srb):
        wb = RING
        srd(SA, "s24", "s25", 640*7680); srd(SB, "s22", "s23", 1280)
        A(f"v_lshrrev_b32 v{vT}, 4, v{vLANE}"); A(f"v_mul_u32_u24 v{vT}, 40, v{vT}")
        A(f"v_and_b32 v{vT+1}, 15, v{vLANE}"); A(f"v_add_u32 v{vT+2}, v{vT}, v{vT+1}"); A(f"v_lshlrev_b32 v{vT+2}, 1, v{vT+2}")
        A(f"v_and_b32 v{vT+3}, 7, v{vLANE}"); A(f"v_add_u32 v{vT+3}, v{vT}, v{vT+3}"); A(f"v_lshlrev_b32 v{vT+3}, 1, v{vT+3}")
        A(f"s_mul_i32 s69, {srb}, 320")
        A(f"buffer_load_ushort v{vR}, v{vT+2}, {SB}, s69 offen")
        A(f"buffer_load_ushort v{vR+1}, v{vT+2}, {SB}, s69 offen offset:32")
        A(f"buffer_load_ushort v{vR+2}, v{vT+3}, {SB}, s69 offen offset:64")
        A(f"v_mul_u32_u24 v{vT}, 7680, v{vT}"); A(f"v_lshl_add_u32 v{vT}, v{vT+1}, 4, v{vT}")
        A(f"s_mul_i32 s69, {srb}, {160*7680}"); A(f"s_lshl_b32 s68, {scb}, 8"); A("s_add_u32 s68, s69, s68")
        for t in range(40):
            A(f"buffer_load_dwordx4 {v4(wb+4*t)}, v{vT}, {SA}, s68 offen {pol}")
            if t < 39: A("s_add_u32 s68, s68, 7680")
    def mod_compute():
        wb = RING
        A("s_waitcnt vmcnt(40)")
        for k in range(3):
            A(f"v_lshlrev_b32 v{vR+k}, 16, v{vR+k}"); silu(vR+k, vR+3); A(f"v_cvt_pk_bf16_f32 v{vR+k}, v{vR+k}, v{vR+k}")
        gemv(vACC, vM2, [(vR + t // 16, f"row_newbcast:{t % 16}", wb+4*t, 39-t) for t in range(40)])
    def common_setup():
        A(f"s_load_dword {sTAG}, s[30:31], 0")
        srd(SWS, "s30", "s31", WS_END)
        A(f"v_and_b32 v{vT}, 1, v{vLANE}"); A(f"v_lshlrev_b32 v{vT}, 4, v{vT}"); A(f"v_mov_b32 v{vT+1}, 0xffff"); A(f"v_lshlrev_b32 v{vT}, v{vT}, v{vT+1}")
        A(f"v_bfe_u32 v{vT+1}, v{vLANE}, 1, 2")
        A(f"v_bfe_u32 v{vT+2}, v{vLANE}, 1, 3")
        for t in range(4):
            A(f"v_cmp_eq_u32 vcc, {t}, v{vT+1}"); A(f"v_cndmask_b32 v{vM1+t}, 0, v{vT}, vcc")
            A(f"v_cmp_eq_u32 vcc, {2*t}, v{vT+2}"); A(f"v_cndmask_b32 v{vM2+t}, 0, v{vT}, vcc")
        A(f"v_and_b32 v{vT}, 15, v{vLANE}"); A(f"v_lshlrev_b32 v{vT}, 6, v{vT}"); A(f"v_and_b32 v{vT+1}, 48, v{vLANE}"); A(f"v_add_u32 v{vNAT}, v{vT}, v{vT+1}")
        A("s_waitcnt lgkmcnt(0)")
        A(f"s_add_u32 {sTAG}, {sTAG}, 0x01010101")
    def gu_loads(Ld, LTH):
        A(f"s_cmp_ge_u32 {sF}, 54"); A(f"s_cbranch_scc1 {Ld}")
        A(f"s_cmp_gt_u32 {sWAVE}, 3"); A(f"s_cbranch_scc1 {Ld}")
        A(f"v_and_b32 v{vT+2}, 4, v{vLANE}"); A(f"v_cmp_eq_u32 vcc, 0, v{vT+2}")
        A(f"v_mov_b32 v{vT+2}, s18"); A(f"v_mov_b32 v{vT+3}, s16"); A(f"v_cndmask_b32 v{vT+6}, v{vT+2}, v{vT+3}, vcc")
        A(f"v_mov_b32 v{vT+2}, s19"); A(f"v_mov_b32 v{vT+3}, s17"); A(f"v_cndmask_b32 v{vT+7}, v{vT+2}, v{vT+3}, vcc")
        A(f"s_mul_i32 s69, {sWAVE}, {160*3456}"); A(f"s_lshl_b32 s68, {sF}, 6"); A("s_add_u32 s69, s69, s68")
        A(f"v_and_b32 v{vT+4}, 3, v{vLANE}"); A(f"v_lshl_add_u32 v{vT+4}, v{vT+4}, 4, s69")
        A(f"v_lshrrev_b32 v{vT+5}, 3, v{vLANE}")
        for (mul, add, rows) in ((16*3456, 0, [(k, y) for k in range(4) for y in range(4)]), (4*3456, 128*3456, [(k, 4) for k in range(4)])):
            A(f"v_mul_u32_u24 v{vT+1}, {mul}, v{vT+5}"); A(f"v_add_u32 v{vT+1}, v{vT+1}, v{vT+4}")
            if add: A(f"v_add_u32 v{vT+1}, {add}, v{vT+1}")
            A(f"v_add_co_u32 v{vT+2}, vcc, v{vT+6}, v{vT+1}"); A(f"v_addc_co_u32 v{vT+3}, vcc, 0, v{vT+7}, vcc")
            for i, (k, y) in enumerate(rows):
                A(f"global_load_dwordx4 {v4(WT+4*(y*4+k))}, {v2(vT+2)}, off offset:{(i%2)*3456}")
                if LTH < 63: A(f"s_waitcnt vmcnt({LTH})")
                if i % 2 == 1 and i < len(rows) - 1:
                    A(f"v_add_co_u32 v{vT+2}, vcc, {2*3456}, v{vT+2}"); A(f"v_addc_co_u32 v{vT+3}, vcc, 0, v{vT+3}, vcc")
    def dn_loads(Ld):
        srd(SA, "s20", "s21", 1728*1280)
        A(f"v_lshrrev_b32 v{vT+1}, 4, v{vLANE}"); A(f"v_mul_u32_u24 v{vT+1}, {8*1280}, v{vT+1}")
        A(f"v_and_b32 v{vT+2}, 15, v{vLANE}"); A(f"v_lshl_add_u32 v{vT+1}, v{vT+2}, 4, v{vT+1}")
        A(f"s_mul_i32 s69, {sF}, {32*1280}"); A(f"s_lshl_b32 s68, {sWAVE}, 8"); A("s_add_u32 s69, s69, s68")
        for t in range(8):
            if t % 2 == 0: A(f"s_add_u32 s68, s69, {t*1280}")
            A(f"buffer_load_dwordx4 {v4(WD+4*t)}, v{vT+1}, {SA}, s68 offen offset:{(t%2)*1280}")
        A(f"s_cmp_lg_u32 {sWAVE}, 1"); A(f"s_cbranch_scc1 {Ld}")
        for t in range(8):
            if t % 2 == 0: A(f"s_add_u32 s68, s69, {t*1280}")
            A(f"buffer_load_dwordx4 {v4(WD2+4*t)}, v{vT+1}, {SA}, s68 offen offset:{(t%2)*1280 + 768}")
    def wo_loads():
        srd(SA, "s12", "s13", 4096*1280)
        A(f"v_bfe_u32 v{vT+1}, v{vLANE}, 4, 1"); A(f"v_lshlrev_b32 v{vT+1}, 5, v{vT+1}")
        A(f"v_lshrrev_b32 v{vT+2}, 5, v{vLANE}"); A(f"v_add_u32 v{vT+1}, v{vT+1}, v{vT+2}")
        A(f"v_bfe_u32 v{vT+2}, v{vLANE}, 3, 1"); A(f"v_lshl_add_u32 v{vT+1}, v{vT+2}, 4, v{vT+1}")
        A(f"v_mul_u32_u24 v{vT+1}, 1280, v{vT+1}")
        A(f"v_and_b32 v{vT+2}, 7, v{vLANE}"); A(f"v_lshl_add_u32 v{vT+1}, v{vT+2}, 4, v{vT+1}")
        A(f"s_lshr_b32 s68, {sWAVE}, 1"); A("s_lshl_b32 s68, s68, 3"); A(f"s_add_u32 s68, s68, {sG}"); A("s_lshl_b32 s68, s68, 1")
        A(f"s_and_b32 s69, {sWAVE}, 1"); A("s_add_u32 s68, s68, s69"); A(f"s_mul_i32 s69, s68, {64*1280}")
        A(f"s_lshl_b32 s68, {sK}, 7"); A("s_add_u32 s69, s69, s68")
        for n in range(8):
            if n % 2 == 0: A(f"s_add_u32 s68, s69, {2*n*1280}")
            A(f"buffer_load_dwordx4 {v4(WT+4*n)}, v{vT+1}, {SA}, s68 offen offset:{(n%2)*2560}")
    def tail_loads(dn):
        Lw, Ld = U("lwo"), U("ldone")
        A(f"s_cmp_lt_u32 {sK}, 10"); A(f"s_cbranch_scc1 {Lw}")
        if not (now & 1):
            gu_loads(Ld, CTH if dn else LTH)
            if dn: dn_loads(Ld)
        A(f"s_branch {Ld}")
        A.label(Lw)
        if not (now & 2): wo_loads()
        A.label(Ld)

    A(f"; @launch grid=(256,1,1) block=(512,1,1) lds={L_END}")
    A('.amdgcn_target "amdgcn-amd-amdhsa--gfx950"')
    A(".text"); A(f".globl {KN}"); A(".p2align 8"); A(f".type {KN},@function"); A.label(KN)
    stamp(0)
    A("s_cmp_ge_u32 s2, 256"); A("s_cbranch_scc1 L_end")
    A("s_load_dwordx16 s[4:19], s[0:1], 0")
    A("s_load_dwordx8 s[20:27], s[0:1], 64")
    A("s_load_dwordx4 s[28:31], s[0:1], 96")
    A("v_lshrrev_b32 v1, 6, v0"); A(f"v_and_b32 v{vLANE}, 63, v0")
    A(f"v_readfirstlane_b32 {sWAVE}, v1")
    A(f"v_lshlrev_b32 v{vLANE16}, 4, v{vLANE}")
    A(f"s_lshr_b32 {sHD}, s2, 3"); A(f"s_and_b32 {sG}, s2, 7"); A(f"s_lshl_b32 {sK}, {sG}, 2"); A(f"s_add_u32 {sK}, {sK}, {sHD}"); A(f"s_and_b32 {sK}, {sK}, 31")
    A(f"s_add_u32 {sS}, {sG}, {sHD}"); A(f"s_and_b32 {sS}, {sS}, 7")
    A(f"s_mov_b32 {sL2E}, {fh(LOG2E)}"); A(f"s_mov_b32 {sSC}, {fh(SCALE)}")
    A(f"s_sub_u32 s68, {sK}, 10"); A(f"s_mul_i32 {sF}, {sG}, 7"); A(f"s_add_u32 {sF}, {sF}, s68")
    A("s_cmp_lt_u32 s68, 7"); A(f"s_cselect_b32 {sF}, {sF}, 63")
    A(f"v_mov_b32 v{vZERO}, 0"); A(f"v_mov_b32 v{vONE}, 1")
    A(f"s_cmp_eq_u32 {sWAVE}, 0"); A("s_cbranch_scc1 L_ctrl0")
    A(f"s_cmp_gt_u32 {sWAVE}, {NL}"); A("s_cbranch_scc1 L_help")
    A(f"s_mul_i32 {sROT}, {sHD}, {ROT}"); A(f"s_lshl_b32 {sST}, {sS}, 7"); A(f"s_add_u32 {sST}, {sST}, {sROT}")
    A(f"s_lshl_b32 s68, {sHD}, 22")
    def tile_addr(sreg, add):
        A(f"s_add_u32 s69, {sreg}, {add}")
        if ROT: A("s_and_b32 s69, s69, 1023")
        A("s_lshl_b32 s69, s69, 12")
        A(f"v_add_u32 v{vADDR}, s69, v{vLANE16}")
    A(f"s_add_u32 s67, {sST}, {sWAVE}"); A("s_sub_u32 s67, s67, 1")
    tile_addr("s67", 0)
    A("s_waitcnt lgkmcnt(0)")
    A("s_add_u32 s40, s6, s68"); A("s_addc_u32 s41, s7, 0"); A("s_mov_b32 s42, 0x400000"); A("s_mov_b32 s43, 0x20000")
    G = lambda i: RING + 16*i
    def load(S, slot):
        for u in range(4): A(f"buffer_load_dwordx4 {v4(G(slot)+4*u)}, v{vADDR}, {S}, 0 offen offset:{u*1024} {pol}")
    load(SK, 0)
    A("s_add_u32 s44, s8, s68"); A("s_addc_u32 s45, s9, 0"); A("s_mov_b32 s46, 0x400000"); A("s_mov_b32 s47, 0x20000")
    A("s_barrier")
    common_setup()
    A(f"s_lshl_b32 s38, {sHD}, 8"); A(f"s_add_u32 s38, s38, {WS_CNT}"); A("s_add_u32 s38, s38, s30"); A("s_addc_u32 s39, s31, 0")
    A(f"s_mov_b32 {sQ}, {NP}"); A(f"s_cmp_lt_u32 {sF}, 54"); A(f"s_cselect_b32 {sQ}, {Q_ffn}, {sQ}"); A(f"s_cmp_lt_u32 {sK}, 10"); A(f"s_cselect_b32 {sQ}, {Q_wo}, {sQ}")
    A(f"v_and_b32 v{vPB}, 60, v{vLANE}")
    A(f"s_lshl_b32 s68, {sWAVE}, 6"); A("s_sub_u32 s68, s68, 64"); A(f"v_add_u32 v{vPW}, s68, v{vPB}")
    for r in range(4): A(f"v_mov_b32 v{vACC+r}, 0")
    for i in range(1, NK):
        tile_addr("s67", NL*i)
        A("s_waitcnt vmcnt(0)")
        if i == 1 and stamps == 4: stamp(1)
        load(SK, i)
    if stamps == 4: stamp(2)
    A(f"v_and_b32 v{vT}, 15, v{vLANE}"); A(f"v_lshlrev_b32 v{vT}, 4, v{vT}")
    lds_wait(L_QF, 1)
    A(f"ds_read_b128 {v4(vQ)}, v{vT} offset:{L_Q}")
    A("s_waitcnt lgkmcnt(0)")
    def req(off):
        A("s_mov_b64 exec, 1"); A(f"ds_add_rtn_u32 v{vTKT}, v{vZERO}, v{vONE} offset:{off}"); A("s_mov_b64 exec, -1")
    def qk(slot, va, off):
        kb = G(slot)
        for t in range(4):
            for u in range(4):
                if t == 0: A(f"v_dot2_f32_bf16 v{vR+u}, v{kb+4*u}, v{vQ}, 0")
                else: A(f"v_dot2c_f32_bf16 v{vR+u}, v{kb+4*u+t}, v{vQ+t}")
        A(f"v_add_f32_dpp v{vA_}, v{vR}, v{vR} row_ror:8 row_mask:0xf bank_mask:0x3")
        A(f"v_add_f32_dpp v{vB_}, v{vR+2}, v{vR+2} row_ror:8 row_mask:0xf bank_mask:0x3")
        A(f"v_add_f32_dpp v{vA_}, v{vR+1}, v{vR+1} row_ror:8 row_mask:0xf bank_mask:0xc")
        A(f"v_add_f32_dpp v{vB_}, v{vR+3}, v{vR+3} row_ror:8 row_mask:0xf bank_mask:0xc")
        A(f"v_add_f32_dpp v{vC_}, v{vA_}, v{vA_} row_shl:4 row_mask:0xf bank_mask:0x5")
        A(f"v_add_f32_dpp v{vC_}, v{vB_}, v{vB_} row_shr:4 row_mask:0xf bank_mask:0xa")
        dpp_red("v_add_f32", [vC_], QUAD)
        rbf(vC_, vC_)
        A(f"v_mul_f32 v{vC_}, {sSC}, v{vC_}")
        rbf(vC_, vC_)
        A(f"ds_write_b32 v{va}, v{vC_} offset:{off}")
    def build(p):
        lane_of = [0, 8, 4, 12]
        for u in range(4):
            for t in range(4): A(f"v_and_b32_dpp v{vAOP+4*u+t}, v{p}, v{vM2+t} row_newbcast:{lane_of[u]} {DPPF}")
    def mm(slot):
        for u in range(4):
            A(f"v_mfma_f32_16x16x32_bf16 {v4(vACC)}, {v4(vAOP+4*u)}, {v4(G(slot)+4*u)}, {v4(vACC)}")
    LA, LB = 0, NK - 1
    qk(0, vPW, L_P)
    todo = list(range(1, NK - 1))
    cur, cur_i, nxt = LB, NK - 1, LA
    step = 0
    while todo:
        i = NK + step
        tile_addr("s67", NL*i)
        A("s_waitcnt vmcnt(0)")
        load(SK, nxt)
        if len(todo) <= 2: req(L_KT)
        qk(cur, vPW, L_P + NL*cur_i*64)
        for b in todo[:2]: qk(b, vPW, L_P + NL*b*64)
        todo = todo[2:]
        cur, nxt, cur_i = nxt, cur, i
        step += 1
    KT0 = NL * (NK + step)
    assert KT0 <= 128
    A(f"v_add_u32 v{vE_}, {NL*cur_i*64}, v{vPW}")
    if stamps == 4: stamp(3)
    order = [cur, nxt]
    A.label("L_k0")
    for n in range(2):
        X, Y = order[n], order[1-n]
        if n: A.label("L_k1")
        A("s_waitcnt lgkmcnt(0)")
        A(f"v_readfirstlane_b32 {sTK}, v{vTKT}")
        A(f"s_cmp_ge_u32 {sTK}, 128"); A(f"s_cbranch_scc1 L_kend{n}")
        tile_addr(sTK, sST)
        A("s_waitcnt vmcnt(0)")
        load(SK, Y)
        req(L_KT)
        qk(X, vE_, L_P)
        A(f"s_lshl_b32 s68, {sTK}, 6"); A(f"v_add_u32 v{vE_}, s68, v{vPB}")
    A("s_branch L_k0")
    for n in range(2):
        A.label(f"L_kend{n}")
        tile_addr("s67", 0)
        A("s_waitcnt vmcnt(0)")
        load(SV, 1)
        qk(order[n], vE_, L_P)
        if n == 0: A("s_branch L_vpre")
    A.label("L_vpre")
    A("s_waitcnt lgkmcnt(0)")
    A("s_mov_b64 exec, 1"); A(f"ds_add_u32 v{vZERO}, v{vONE} offset:{L_KD}"); A("s_mov_b64 exec, -1")
    if wake: A("s_waitcnt lgkmcnt(0)"); A("s_wakeup")
    if stamps == 4: stamp(4)
    for i in range(1, NV):
        tile_addr("s67", NL*i)
        A("s_waitcnt vmcnt(0)")
        load(SV, i + 1)
    if stamps == 4: stamp(5)
    lds_wait(L_PF, 1)
    A(f"ds_read_b32 v{vC_}, v{vZERO} offset:{L_LAM}")
    A(f"v_and_b32 v{vL}, 4, v{vLANE}"); A(f"v_lshlrev_b32 v{vL}, 2, v{vL}"); A(f"v_sub_u32 v{vL}, 16, v{vL}")
    A(f"s_lshl_b32 s14, {sHD}, 13"); A(f"s_add_u32 s14, s14, {WS_SP + (NS - 112)*32}"); A("s_add_u32 s14, s14, s30"); A("s_addc_u32 s15, s31, 0")
    nstep = NV // 2
    if nstep % 2: nstep += 1
    PR = vT
    assert NV + nstep <= 12 + 4
    preg = lambda i: (vT + i) if i < 12 else (vR + i - 12)
    for i in range(NV + nstep):
        A(f"ds_read_b32 v{preg(i)}, v{vPW} offset:{L_P + NL*i*64}")
        if i == 8: A("s_waitcnt lgkmcnt(2)")
    A("s_waitcnt lgkmcnt(0)")
    todo = [(i + 1, i) for i in range(NV)]
    live = [LA, LB]
    for j in range(nstep):
        tile_addr("s67", NL*(NV + j))
        A("s_waitcnt vmcnt(0)")
        load(SV, live[j % 2])
        if j == nstep - 1: req(L_VT)
        items = ([(live[(j-1) % 2], NV + j - 1)] if j else []) + todo[:2]
        todo = todo[2:]
        if j == nstep - 1: items += todo; todo = []
        for (sl, i) in items: build(preg(i)); mm(sl)
    build(preg(NV + nstep - 1))
    VT0 = NL * (NV + nstep)
    order = [LB, LA]
    A.label("L_v0")
    for n in range(2):
        X, Y = order[n], order[1-n]
        A("s_waitcnt lgkmcnt(0)")
        A(f"v_readfirstlane_b32 {sTK}, v{vTKT}")
        A(f"s_cmp_ge_u32 {sTK}, {NS}"); A(f"s_cbranch_scc1 L_din{n}")
        A(f"s_lshl_b32 s68, {sTK}, 6"); A(f"v_add_u32 v{vE_}, s68, v{vPB}")
        A(f"ds_read_b32 v{vE_}, v{vE_} offset:{L_P}")
        tile_addr(sTK, sST)
        A("s_waitcnt vmcnt(0) lgkmcnt(0)")
        load(SV, Y)
        req(L_VT)
        mm(X); build(vE_)
    A("s_branch L_v0")
    for n in range(2):
        A.label(f"L_din{n}")
        A(f"s_mov_b32 {sTK}, 1"); A(f"s_atomic_add {sTK}, {SCNT}, 0 glc")
        A(f"s_branch L_d{n}")
    for n in range(2):
        X, Y = order[n], order[1-n]
        A.label(f"L_d{n}")
        A("s_waitcnt lgkmcnt(0)")
        A(f"s_cmp_ge_u32 {sTK}, {NP}"); A(f"s_cbranch_scc1 L_vend{n}")
        A(f"s_and_b32 s68, {sTK}, 7"); A(f"s_lshr_b32 s67, {sTK}, 3")
        A("s_lshl_b32 s69, s68, 5"); A("s_add_u32 s69, s69, s67"); A("s_lshl_b32 s69, s69, 5")
        A("s_load_dwordx8 s[52:59], s[14:15], s69 glc")
        A("s_lshl_b32 s68, s68, 7"); A("s_add_u32 s68, s68, s67"); A(f"s_add_u32 s68, s68, {NS}")
        tile_addr("s68", sROT)
        A(f"s_cmp_ge_u32 {sTK}, {sQ}"); A(f"s_cselect_b32 {sTP}, {NP}, 0"); A(f"s_cselect_b32 {sTK}, 0, 1")
        A("s_waitcnt vmcnt(0)")
        load(SV, Y)
        mm(X)
        A("s_waitcnt lgkmcnt(0)")
        A(f"s_atomic_add {sTK}, {SCNT}, 0 glc")
        A("s_mov_b64 exec, 0xff")
        for j in range(8):
            A(f"v_lshlrev_b32 v{vE_}, v{vL}, s{52+j}")
            if j < 7: A("s_lshl_b64 exec, exec, 8")
        A("s_mov_b64 exec, -1")
        A(f"v_and_b32 v{vE_}, 0xffff0000, v{vE_}")
        A(f"v_fma_f32 v{vE_}, v{vE_}, {sL2E}, -v{vC_}")
        A(f"v_exp_f32 v{vE_}, v{vE_}")
        A(f"v_cvt_pk_bf16_f32 v{vE_}, v{vE_}, v{vE_}")
        build(vE_)
        if Q_wo < NP or Q_ffn < NP:
            A("s_waitcnt lgkmcnt(0)"); A(f"s_add_u32 {sTK}, {sTK}, {sTP}")
    A("s_branch L_d0")
    for n in range(2):
        A.label(f"L_vend{n}")
        if pf and not TW:
            A("s_mov_b64 exec, 1"); A(f"ds_add_rtn_u32 v{vTKT}, v{vZERO}, v{vONE} offset:{L_RANK}"); A("s_mov_b64 exec, -1")
        A(f"s_lshl_b32 s69, {sWAVE}, 9"); A(f"v_lshrrev_b32 v{vT}, 1, v{vNAT}"); A(f"v_add_u32 v{vT}, s69, v{vT}")
        A("s_waitcnt vmcnt(0)")
        mm(order[n])
        if n == 0: A("s_branch L_last")
    A.label("L_last")
    A(f"ds_write_b64 v{vT}, {v2(vACC)} offset:{L_PART-512}")
    A("s_waitcnt lgkmcnt(0)")
    def wo_prefetch(first, cnt, th):
        srd(SA, "s12", "s13", 4096*1280)
        A(f"s_and_b32 s68, {sHD}, 24"); A(f"s_add_u32 s68, s68, {sG}"); A(f"s_mul_i32 s68, s68, {128*1280}")
        A(f"s_and_b32 s69, {sHD}, 7"); A(f"s_mul_i32 s69, s69, {20*1024}"); A("s_add_u32 s68, s68, s69")
        if first: A(f"s_add_u32 s68, s68, {first}")
        for n in range(cnt):
            if n and n % 4 == 0: A("s_add_u32 s68, s68, 4096")
            A(f"buffer_load_dwordx4 {v4(PF)}, v{vLANE16}, {SA}, s68 offen offset:{(n%4)*1024}")
            if th < 63: A(f"s_waitcnt vmcnt({th})")
    if pf and not TW:
        A(f"v_readfirstlane_b32 s66, v{vTKT}")
        A(f"s_cmp_ge_u32 s66, {NR}"); A("s_cbranch_scc1 L_pfdone")
        A(f"s_mul_i32 s66, s66, {(20 // NR)*1024}")
        wo_prefetch("s66", 20 // NR, 63)
        A.label("L_pfdone")
    if stamps == 4:
        A(f"s_cmp_lg_u32 {sWAVE}, 1"); A("s_cbranch_scc1 L_ns4")
        stamp_dump([1, 2, 3, 4, 5], final=False)
        A.label("L_ns4")
    A.label("L_join")
    A("s_barrier")
    if abl: A("s_endpgm"); A.label("L_abl_dead")
    if pf2:
        A(f"s_cmp_lt_u32 {sK}, 17"); A("s_cbranch_scc1 L_pf2done")
        A(f"s_sub_u32 s66, {sK}, 17"); A("s_mul_i32 s66, s66, 7"); A(f"s_add_u32 s66, s66, {sWAVE}"); A("s_sub_u32 s66, s66, 1")
        A("s_cmp_ge_u32 s66, 80"); A("s_cbranch_scc1 L_pf2dn")
        srd(SA, "s16", "s17", 640*3456); srd(SB, "s18", "s19", 640*3456)
        A(f"v_lshrrev_b32 v{vT+1}, 5, v{vLANE}"); A(f"v_mul_u32_u24 v{vT+1}, 3456, v{vT+1}")
        A(f"v_and_b32 v{vT+2}, 31, v{vLANE}"); A(f"v_lshl_add_u32 v{vT+1}, v{vT+2}, 4, v{vT+1}")
        A(f"s_mul_i32 s68, {sG}, 7"); A("s_lshr_b32 s68, s68, 1"); A("s_min_u32 s68, s68, 23"); A("s_lshl_b32 s68, s68, 7")
        npair = 3 if cearly else 4
        A(f"s_mul_i32 s69, s66, {2*npair*3456}"); A("s_add_u32 s68, s68, s69"); A(f"s_add_u32 s68, s68, {(4-npair)*160*3456}")
        for n in range(npair):
            for S in (SA, SB):
                A(f"buffer_load_dwordx4 {v4(PF)}, v{vT+1}, {S}, s68 offen")
                if PFTH < 63: A(f"s_waitcnt vmcnt({PFTH})")
            if n < npair - 1: A(f"s_add_u32 s68, s68, {2*3456}")
        A("s_waitcnt vmcnt(0)")
        A("s_endpgm")
        A.label("L_pf2dn")
        srd(SA, "s20", "s21", 1728*1280)
        A(f"s_mul_i32 s68, {sG}, {7*40960}"); A("s_sub_u32 s69, s66, 80"); A(f"s_mul_i32 s69, s69, {11520}"); A("s_add_u32 s68, s68, s69")
        A(f"v_add_u32 v{vT+1}, s68, v{vLANE16}")
        for n in range(12):
            if n and n % 4 == 0: A(f"v_add_u32 v{vT+1}, 0x1000, v{vT+1}")
            A(f"buffer_load_dwordx4 {v4(PF)}, v{vT+1}, {SA}, 0 offen offset:{(n%4)*1024}")
            if PFTH < 63: A(f"s_waitcnt vmcnt({PFTH+1})")
        A("s_waitcnt vmcnt(0)")
        A("s_endpgm")
        A.label("L_pf2done")
    A.label("L_tail0")
    tail_loads(False)
    A.label("L_tail")
    A(f"s_cmp_lt_u32 {sK}, 10"); A("s_cbranch_scc1 L_wo")
    A(f"s_cmp_ge_u32 {sF}, 54"); A("s_cbranch_scc1 L_exit")
    X0, GA = 24, 26
    CC = [12, 13, 14, 15, 28]; SS = [RING+36, RING+37, RING+38, RING+39, 29]
    SEL0, SEL1, GB = 30, 31, 6
    A(f"s_cmp_gt_u32 {sWAVE}, 3"); A("s_cbranch_scc1 L_gprep")
    A(f"v_lshrrev_b32 v{vT}, 3, v{vLANE}"); A(f"v_and_b32 v{vT+1}, 3, v{vLANE}"); A(f"v_lshl_add_u32 v{vT+1}, v{vT}, 2, v{vT+1}")
    A(f"s_mul_i32 s68, {sWAVE}, 640"); A(f"v_lshl_add_u32 v{vT+8}, v{vT+1}, 4, s68")
    A("s_add_u32 s68, s68, 512"); A(f"v_lshl_add_u32 v{vT+9}, v{vT+1}, 2, s68")
    A(f"v_lshlrev_b32 v{vT+2}, 1, v{vT+8}"); A(f"v_lshlrev_b32 v{vT+3}, 1, v{vT+9}"); A(f"v_and_b32 v{vT+3}, -16, v{vT+3}")
    acc_addr(vT+5)
    A(f"v_lshrrev_b32 v{vT+6}, 4, v{vLANE}"); A(f"v_lshlrev_b32 v{vT+6}, 3, v{vT+6}")
    A(f"v_and_b32 v{vT+7}, 7, v{vLANE}"); A(f"v_add_u32 v{vT+6}, v{vT+6}, v{vT+7}")
    A(f"v_bfe_u32 v{vT+7}, v{vLANE}, 3, 1"); A(f"v_lshl_add_u32 v{vT+6}, v{vT+7}, 5, v{vT+6}"); A(f"v_lshlrev_b32 v{vT+6}, 2, v{vT+6}")
    A(f"v_add_u32 v{vT+6}, {L_ACC}, v{vT+6}")
    A(f"s_mul_i32 s12, {sF}, 5120"); A(f"s_lshl_b32 s69, {sWAVE}, 10"); A("s_add_u32 s12, s12, s69"); A(f"s_add_u32 s12, s12, {WS_DP}")
    for i, o in enumerate((5120, 20480 + 5120, 10240, 20480 + 10240)): A(f"s_mov_b32 s{40+i}, {WS_MR + o}")
    MB = WD2
    poll([(vT+2, f"s{40+i}", 0, None) for i in range(4)] + [(vT+2, f"s{40+i}", 16, None) for i in range(4)] + [(vT+3, f"s{40+i}", 0, None) for i in range(4)],
         [RING + 4*i for i in range(8)] + [MB + 4*i for i in range(4)])
    for i in range(2):
        A(f"v_pk_add_f32 {v2(SS[2*i])}, {v2(RING+16*i)}, {v2(RING+16*i+4)}")
        A(f"v_pk_add_f32 {v2(CC[2*i])}, {v2(RING+16*i+8)}, {v2(RING+16*i+12)}")
    A(f"v_pk_add_f32 {v2(MB)}, {v2(MB)}, {v2(MB+4)}"); A(f"v_pk_add_f32 {v2(MB+8)}, {v2(MB+8)}, {v2(MB+12)}")
    A(f"v_and_b32 v{vT+7}, 1, v{vLANE}"); A(f"v_cmp_eq_u32 vcc, 1, v{vT+7}")
    A(f"v_cndmask_b32 v{SS[4]}, v{MB}, v{MB+1}, vcc"); A(f"v_cndmask_b32 v{CC[4]}, v{MB+8}, v{MB+9}, vcc")
    if not (now & 1):
        if cearly: A(f"s_cmp_eq_u32 {sWAVE}, 0"); A("s_cbranch_scc1 L_dnd")
        dn_loads("L_dnd")
        A.label("L_dnd")
    rbf2(SS[0], SS[1]); rbf2(SS[2], SS[3]); rbf2(CC[0], CC[1]); rbf2(CC[2], CC[3]); rbf2(CC[4], SS[4])
    for c in CC: A(f"v_add_f32 v{c}, 1.0, v{c}")
    rbf2(CC[0], CC[1]); rbf2(CC[2], CC[3]); rbf(CC[4], CC[4])
    stamp(8)
    A(f"s_cmp_lg_u32 {sWAVE}, 0"); A("s_cbranch_scc1 L_gemv")
    A.label("L_gprep")
    A(f"s_and_b32 s23, {sWAVE}, 3"); A(f"s_cmp_eq_u32 {sWAVE}, 0"); A("s_cselect_b32 s23, 4, s23")
    A(f"v_and_b32 v{vT}, 31, v{vLANE}"); A(f"v_lshrrev_b32 v{vT+1}, 5, v{vLANE}")
    A(f"v_lshl_add_u32 v{vT+2}, v{vT}, 1, v{vT+1}"); A("s_lshl_b32 s68, s23, 6"); A(f"v_add_u32 v{vT+2}, s68, v{vT+2}")
    A(f"v_lshlrev_b32 v{vT+7}, 4, v{vT+2}"); A(f"v_lshlrev_b32 v{vT+3}, 3, v{vT+2}"); A(f"v_lshlrev_b32 v{vT+2}, 2, v{vT+2}")
    srd(SB, "s4", "s5", 1280)
    A(f"buffer_load_dword v{X0+1}, v{vT+2}, {SB}, 0 offen")
    A(f"v_mul_u32_u24 v{vT+4}, 2560, v{vT+1}"); A(f"v_lshl_add_u32 v{vT+4}, v{vT}, 4, v{vT+4}"); A("s_lshl_b32 s68, s23, 9"); A(f"v_add_u32 v{vT+4}, s68, v{vT+4}")
    A(f"s_mul_i32 s68, {sG}, 20480")
    for n in range(4): A(f"s_add_u32 s{4+n}, s68, {WS_YP + n*5120}")
    A("s_lshl_b32 s68, s23, 3"); A(f"v_mov_b32 v{vADDR}, s68")
    A(f"v_mov_b32 v{SEL0}, 0x3f80"); A(f"v_mov_b32 v{SEL1}, 0x3f800000")
    A(f"s_min_u32 s21, {sF}, 39")
    A(f"v_lshrrev_b32 v{vL}, 3, v{vLANE}"); A(f"v_mul_u32_u24 v{vL}, 5120, v{vL}")
    A(f"v_and_b32 v{vONE}, 7, v{vLANE}"); A(f"v_lshl_add_u32 v{vL}, v{vONE}, 4, v{vL}")
    A(f"s_lshl_b32 s68, s21, 7"); A(f"v_add_u32 v{vL}, s68, v{vL}")
    A(f"v_lshl_add_u32 v{vT}, v{vONE}, 4, s68")
    A(f"v_lshl_add_u32 v{vONE}, v{vONE}, 1, v{vT+1}")
    A(f"s_lshl_b32 s68, s21, 4"); A(f"v_add_u32 v{vONE}, s68, v{vONE}")
    A(f"v_lshlrev_b32 v{vTKT}, 2, v{vONE}"); A(f"v_lshlrev_b32 v{vONE}, 1, v{vONE}")
    for n in range(7): A(f"s_mov_b32 s{13+n}, {WS_DP + n*8*5120}")
    for i, o in enumerate((0, 20480, 15360, 20480 + 15360)): A(f"s_mov_b32 s{40+i}, {WS_MR + o}")
    poll([(vT+7, "s40", 0, None), (vT+7, "s41", 0, None), (vT, "s42", 0, None), (vT, "s43", 0, None)], RING)
    A(f"v_lshlrev_b32 v{X0}, 16, v{X0+1}"); A(f"v_and_b32 v{X0+1}, 0xffff0000, v{X0+1}")
    A(f"v_pk_add_f32 {v2(GA)}, {v2(RING)}, {v2(RING+4)}"); A(f"v_pk_add_f32 {v2(RING+8)}, {v2(RING+8)}, {v2(RING+12)}")
    rbf2(GA, GA+1); rbf2(RING+8, RING+9)
    A(f"v_mov_b32 v{GB}, v{RING+8}"); A("s_mov_b32 exec_lo, 0"); A(f"v_mov_b32 v{GB}, v{RING+9}"); A("s_mov_b64 exec, -1")
    srd(SB, "s26", "s27", 1280)
    poll([(vT+4, f"s{4+n}", 0, None) for n in range(4)], RING, tags=(1, 3))
    for n in range(4):
        for r in range(4):
            src, sel = RING + 4*n + 2*(r // 2), (SEL0, SEL1)[r % 2]
            if n == 0: A(f"v_dot2_f32_bf16 v{TMP+r}, v{src}, v{sel}, 0")
            else: A(f"v_dot2c_f32_bf16 v{TMP+r}, v{src}, v{sel}")
    stamp(9)
    A(f"v_permlane32_swap_b32 v{TMP}, v{TMP+2}"); A(f"v_permlane32_swap_b32 v{TMP+1}, v{TMP+3}")
    A(f"v_pk_add_f32 {v2(TMP)}, {v2(TMP)}, {v2(TMP+2)}")
    A(f"v_pk_fma_f32 {v2(X0)}, {v2(TMP)}, {v2(GA)}, {v2(X0)}")
    A(f"v_add_f32 v{TMP}, v{X0}, v{X0+1}"); A(f"v_mul_f32 v{TMP+1}, v{X0}, v{X0}"); A(f"v_fmac_f32 v{TMP+1}, v{X0+1}, v{X0+1}")
    A(f"ds_write_b64 v{vT+3}, {v2(X0)} offset:{L_X2}")
    dpp_red("v_add_f32", [TMP, TMP+1], QUAD + BANK + BCAST)
    A("s_mov_b32 exec_lo, 0"); A("s_brev_b32 exec_hi, 1")
    A(f"ds_write_b64 v{vADDR}, {v2(TMP)} offset:{L_ST}")
    A("s_mov_b64 exec, -1")
    A("s_waitcnt lgkmcnt(0)")
    A(f"s_cmp_lg_u32 {sWAVE}, 0"); A("s_cbranch_scc1 L_final")
    A.label("L_gemv")
    A("s_barrier")
    ST = vAOP; XX = RING + 40
    A(f"ds_read_b128 {v4(ST)}, v{vZERO} offset:{L_ST}"); A(f"ds_read_b128 {v4(ST+4)}, v{vZERO} offset:{L_ST+16}"); A(f"ds_read_b64 {v2(ST+8)}, v{vZERO} offset:{L_ST+32}")
    A(f"ds_read_b128 {v4(XX)}, v{vT+8} offset:{L_X2}"); A(f"ds_read_b32 v{XX+4}, v{vT+9} offset:{L_X2}")
    A(f"v_mov_b32 v{TMP+2}, {fh(1e-5)}")
    A("s_waitcnt lgkmcnt(2)" if not stamps else "s_waitcnt lgkmcnt(0)")
    sum2([ST+2*n for n in range(5)], TMP)
    A(f"v_mul_f32 v{TMP}, {fh(1.0/640)}, v{TMP}")
    A(f"v_fmac_f32 v{TMP+2}, {fh(1.0/640)}, v{TMP+1}")
    A(f"v_fma_f32 v{TMP+2}, -v{TMP}, v{TMP}, v{TMP+2}")
    A(f"v_max_f32 v{TMP+2}, {fh(1e-5)}, v{TMP+2}")
    A(f"v_rsq_f32 v{TMP+2}, v{TMP+2}")
    A("s_waitcnt lgkmcnt(0)")
    for y in range(5): A(f"v_sub_f32 v{XX+y}, v{XX+y}, v{TMP}")
    for y in range(5): A(f"v_mul_f32 v{CC[y]}, v{CC[y]}, v{TMP+2}")
    for y in range(5): A(f"v_fmac_f32 v{SS[y]}, v{XX+y}, v{CC[y]}")
    for y in range(5): A(f"v_cvt_pk_bf16_f32 v{SS[y]}, v{SS[y]}, v{SS[y]}")
    gemv(vACC, vM1, [(SS[y], qp(k), WT+4*(y*4+k), None) for y in range(5) for k in range(4)])
    acc_write(vT+5)
    A("s_waitcnt lgkmcnt(0)")
    A("s_barrier")
    RD = WT
    for k in range(4): A(f"ds_read2st64_b32 {v2(RD+2*k)}, v{vT+6} offset0:{2*k} offset1:{2*k+1}")
    A("s_waitcnt lgkmcnt(0)")
    sum2([RD+2*k for k in range(4)])
    A(f"v_add_f32 v{RD}, v{RD}, v{RD+1}")
    A(f"v_mul_f32 v{RD+2}, {fh(-LOG2E)}, v{RD}"); A(f"v_exp_f32 v{RD+2}, v{RD+2}")
    A(f"v_mul_f32_dpp v{RD+1}, v{RD}, v{RD} row_ror:8 {DPPF}")
    A(f"v_add_f32 v{RD+2}, 1.0, v{RD+2}"); A(f"v_rcp_f32 v{RD+2}, v{RD+2}")
    A(f"v_mul_f32 v{RD}, v{RD+1}, v{RD+2}")
    A(f"v_cvt_pk_bf16_f32 v{RD}, v{RD}, v{RD}")
    A("s_waitcnt vmcnt(0)")
    A(f"s_cmp_eq_u32 {sWAVE}, 1"); A("s_cbranch_scc1 L_down2")
    gemv(vACC, vM2, [(RD, f"row_newbcast:{t}", WD+4*t, None) for t in range(8)])
    publish(vACC, vNAT, "s12")
    A("s_branch L_exit")
    A.label("L_down2")
    gemv(vACC, vM2, [(RD, f"row_newbcast:{t}", WD+4*t, None) for t in range(8)], ACC2, WD2)
    A(f"v_mov_b32 v{vACC+3}, {sTAG}"); A(f"v_mov_b32 v{ACC2+3}, {sTAG}")
    A(f"buffer_store_dwordx4 {v4(vACC)}, v{vNAT}, {SWS}, s12 offen sc1")
    A(f"buffer_store_dwordx4 {v4(ACC2)}, v{vNAT}, {SWS}, s12 offen offset:3072 sc1")
    stamp(10)
    A("s_waitcnt vmcnt(0)")
    A("s_barrier")
    stamp_dump([8, 10])
    A("s_endpgm")
    A.label("L_final")
    A("s_barrier")
    A(f"s_cmp_lg_u32 {sWAVE}, 7"); A("s_cbranch_scc1 L_end")
    A(f"ds_read_b32 v{X0}, v{vTKT} offset:{L_X2}")
    FB = RING + 48
    A(f"v_mov_b32 v{FB+24}, 0"); A(f"v_mov_b32 v{FB+25}, 0"); A(f"v_mov_b32 v{FB+27}, {sTAG}")
    A("s_mov_b32 s68, -1"); A("s_mov_b32 s69, 0xffff")
    A("s_waitcnt lgkmcnt(0)")
    A(f"s_cmp_ge_u32 {sF}, 40"); A("s_cbranch_scc1 L_fin_dump")
    A("s_barrier")
    A("s_barrier")
    poll([(vL, f"s{13+n}", 0, None if n < 6 else "s[68:69]") for n in range(7)], FB)
    sum2([FB+4*n for n in range(7)], GA)
    stamp(11)
    A(f"v_permlane32_swap_b32 v{GA}, v{GA+1}"); A(f"v_add_f32 v{GA}, v{GA}, v{GA+1}")
    xrow("v_add_f32", GA, GA+1, 16)
    A(f"v_add_f32_dpp v{GA}, v{GA}, v{GA} row_ror:8 {DPPF}")
    A(f"v_fma_f32 v{GA}, v{GA}, v{GB}, v{X0}"); A(f"v_cvt_pk_bf16_f32 v{GA}, v{GA}, v{GA}")
    A("s_mov_b32 exec_lo, 0xff"); A("s_mov_b32 exec_hi, 0xff")
    A(f"buffer_store_short v{GA}, v{vONE}, {SB}, 0 offen sc1")
    A(f"s_cmp_lg_u32 {sF}, 0"); A("s_cbranch_scc1 L_fin_dump")
    A("s_mov_b64 exec, 1"); A(f"v_mov_b32 v{GA+1}, {sTAG}")
    A(f"buffer_store_dword v{GA+1}, v{vZERO}, {SWS}, 0 offen sc1")
    A.label("L_fin_dump")
    if stamps:
        A("s_waitcnt vmcnt(0)"); stamp(12)
        stamp_dump([9, 11, 12])
    A("s_endpgm")
    A.label("L_wo")
    A(f"v_lshrrev_b32 v{vT+4}, 5, v{vLANE}"); A(f"v_lshlrev_b32 v{vT+4}, 10, v{vT+4}")
    A(f"v_and_b32 v{vT+6}, 31, v{vLANE}"); A(f"v_lshl_add_u32 v{vT+4}, v{vT+6}, 4, v{vT+4}")
    A(f"s_lshr_b32 s4, {sWAVE}, 1"); A("s_lshl_b32 s4, s4, 3"); A(f"s_add_u32 s4, s4, {sG}"); A("s_lshl_b32 s4, s4, 13")
    A(f"s_and_b32 s5, {sWAVE}, 1"); A("s_lshl_b32 s5, s5, 9"); A("s_add_u32 s4, s4, s5"); A(f"s_add_u32 s4, s4, {WS_OP}"); A("s_add_u32 s5, s4, 4096")
    acc_addr(vT+5)
    A(f"v_lshrrev_b32 v{vT+8}, 5, v{vLANE}"); A(f"v_lshlrev_b32 v{vT+7}, 11, v{vT+8}"); A(f"v_lshl_add_u32 v{vT+7}, v{vT+6}, 3, v{vT+7}")
    A(f"v_mul_u32_u24 v{vT+8}, 20480, v{vT+8}"); A(f"v_lshl_add_u32 v{vT+8}, v{vT+6}, 3, v{vT+8}")
    A(f"s_mul_i32 s6, {sG}, 2560"); A(f"s_lshl_b32 s7, {sK}, 8"); A("s_add_u32 s6, s6, s7"); A(f"s_add_u32 s6, s6, {WS_YP}")
    for c in range(1, 4): A(f"s_add_u32 s{12+c}, s6, {c*40960}")
    poll([(vT+4, "s4" if n < 2 else "s5", (n % 2)*2048, None) for n in range(4)], RING)
    stamp(7)
    sum2([RING+4*n for n in range(4)], TMP)
    A(f"v_permlane32_swap_b32 v{TMP}, v{TMP+1}")
    A(f"v_add_f32 v{TMP}, v{TMP}, v{TMP+1}")
    A(f"v_cvt_pk_bf16_f32 v{TMP}, v{TMP}, v{TMP}")
    ysplit([TMP], TMP+2)
    gemv(vACC, vM1, [(TMP + 2 + n // 4, qp(n % 4), WT+4*n, None) for n in range(8)])
    acc_write(vT+5)
    A("s_waitcnt lgkmcnt(0)")
    A("s_barrier")
    A(f"s_cmp_lg_u32 {sWAVE}, 0"); A("s_cbranch_scc1 L_end")
    for n in range(8): A(f"ds_read_b64 {v2(WT+2*n)}, v{vT+7} offset:{L_ACC+256*n}")
    A("s_waitcnt lgkmcnt(0)")
    sum2([WT+2*n for n in range(8)])
    A(f"v_mov_b32 v{WT+2}, v{WT}"); A(f"v_mov_b32 v{WT+3}, v{WT+1}")
    A(f"v_permlane32_swap_b32 v{WT}, v{WT+2}"); A(f"v_permlane32_swap_b32 v{WT+1}, v{WT+3}")
    A(f"v_pk_add_f32 {v2(WT)}, {v2(WT)}, {v2(WT+2)}")
    A(f"v_cvt_pk_bf16_f32 v{WT}, v{WT}, v{WT+1}"); A(f"v_mov_b32 v{WT+1}, {sTAG}")
    for so in ("s6", "s13", "s14", "s15"): A(f"buffer_store_dwordx2 {v2(WT)}, v{vT+8}, {SWS}, {so} offen sc1")
    stamp(13)
    A.label("L_exit")
    if stamps:
        A(f"s_cmp_lg_u32 {sWAVE}, 0"); A("s_cbranch_scc1 L_end")
        stamp_dump([0, 13, 6, 7] + ([1, 2, 3, 4, 5] if stamps != 4 else []), xcc=True)
    A("s_endpgm")

    A.label("L_help")
    A("s_waitcnt lgkmcnt(0)")
    A("s_barrier")
    A(f"s_sub_u32 s37, {sK}, 5"); A("s_cmp_ge_u32 s37, 5"); A("s_cbranch_scc1 L_hnomod")
    A("s_lshl_b32 s37, s37, 3"); A(f"s_add_u32 s37, s37, {sG}")
    A("s_lshr_b32 s38, s37, 1"); A("s_and_b32 s39, s37, 1")
    A("s_mul_i32 s6, s39, 20480"); A("s_lshl_b32 s7, s38, 10"); A("s_add_u32 s6, s6, s7"); A(f"s_add_u32 s6, s6, {WS_MR}")
    A("s_add_u32 s38, s38, 10"); A("s_lshl_b32 s39, s39, 1"); A(f"s_add_u32 s39, s39, {sWAVE}"); A("s_sub_u32 s39, s39, 6")
    mod_loads("s38", "s39")
    common_setup()
    mod_compute()
    A(f"v_lshlrev_b32 v{vT}, 3, v{vLANE}")
    A(f"s_cmp_eq_u32 {sWAVE}, 6"); A("s_cbranch_scc1 L_hsum")
    A(f"ds_write_b64 v{vT}, {v2(vACC)} offset:{L_ACC}")
    A("s_waitcnt lgkmcnt(0)")
    A(f"ds_write_b32 v{vZERO}, v{vONE} offset:{L_MF}")
    A("s_branch L_soft")
    A.label("L_hsum")
    lds_wait(L_MF, 1)
    A(f"ds_read_b64 {v2(vR)}, v{vT} offset:{L_ACC}")
    A("s_waitcnt lgkmcnt(0)")
    A(f"v_pk_add_f32 {v2(vACC)}, {v2(vACC)}, {v2(vR)}")
    publish(vACC, vNAT, "s6")
    A("s_branch L_help7")
    A.label("L_hnomod")
    common_setup()
    A(f"s_cmp_lg_u32 {sWAVE}, 7"); A("s_cbranch_scc1 L_help7")
    A.label("L_soft")
    A(f"s_lshl_b32 s6, {sHD}, 13"); A(f"s_add_u32 s6, s6, {WS_SP}")
    A(f"s_lshl_b32 s8, {sS}, 10"); A("s_add_u32 s8, s8, s6")
    A("s_add_u32 s6, s6, s30"); A("s_addc_u32 s7, s31, 0")
    A(f"v_lshlrev_b32 v{vT}, 3, v{vLANE}")
    if abl & 4:
        A(f"ds_write_b32 v{vZERO}, v{vONE} offset:{L_PF}"); A("s_waitcnt lgkmcnt(0)"); A("s_branch L_join"); A.label("L_abl4")
    lds_wait(L_KT, 120, slow=True)
    lds_wait(L_KD, NL + (1 if any(QK) else 0), slow=True, slp=SLK)
    if KAP: A("s_memrealtime s[10:11]")
    E = RING + 64
    for n in range(8): A(f"ds_read_b128 {v4(E+4*n)}, v{vLANE16} offset:{L_P + 1024*n}")
    A("s_waitcnt lgkmcnt(0)")
    A(f"v_cvt_pk_bf16_f32 v{vACC}, v{E+28}, v{E+29}"); A(f"v_cvt_pk_bf16_f32 v{vACC+1}, v{E+30}, v{E+31}")
    lanes0 = (NS - 112) * 4
    if lanes0: A(f"s_lshl_b64 exec, -1, {lanes0}")
    A(f"buffer_store_dwordx2 {v2(vACC)}, v{vT}, {SWS}, s8 offen sc1")
    if lanes0: A("s_mov_b64 exec, -1")
    m = vR
    A(f"v_max3_f32 v{m}, v{E}, v{E+1}, v{E+2}"); A(f"v_max3_f32 v{m+1}, v{E+3}, v{E+4}, v{E+5}")
    for i in range(6, 32, 4):
        A(f"v_max3_f32 v{m}, v{m}, v{E+i}, v{E+i+1}")
        if i + 3 < 32: A(f"v_max3_f32 v{m+1}, v{m+1}, v{E+i+2}, v{E+i+3}")
    A(f"v_max_f32 v{m}, v{m}, v{m+1}")
    wave_red("v_max_f32", m, m+1)
    A(f"v_mul_f32 v{m}, {sL2E}, v{m}")
    for i in range(32): A(f"v_fma_f32 v{E+i}, v{E+i}, {sL2E}, -v{m}")
    for i in range(32): A(f"v_exp_f32 v{E+i}, v{E+i}")
    A(f"v_pk_add_f32 {v2(m+2)}, {v2(E)}, {v2(E+2)}")
    for i in range(4, 32, 2): A(f"v_pk_add_f32 {v2(m+2)}, {v2(m+2)}, {v2(E+i)}")
    A(f"v_add_f32 v{m+2}, v{m+2}, v{m+3}")
    wave_red("v_add_f32", m+2, m+1)
    A(f"v_log_f32 v{vACC+2}, v{m+2}")
    A(f"v_add_f32 v{vQ}, v{vACC+2}, v{m}"); A(f"v_mov_b32 v{vQ+1}, {sTAG}"); A(f"v_mov_b32 v{vQ+2}, s10")
    A("s_waitcnt vmcnt(0)")
    A("s_mov_b64 exec, 1")
    A(f"buffer_store_dwordx4 {v4(vQ)}, v{vZERO}, {SWS}, s8 offen offset:512 sc1")
    A("s_mov_b64 exec, -1")
    R = [40, 42, 44, 46, 52, 54, 56, 58]
    A(f"s_mov_b32 {sTO}, 0x40000")
    A.label("L_lam")
    for n in range(8): A(f"s_load_dwordx2 s[{R[n]}:{R[n]+1}], s[6:7], {n*1024 + 512} glc")
    A(f"s_sub_u32 {sTO}, {sTO}, 1"); A(f"s_cmp_eq_u32 {sTO}, 0"); A("s_cbranch_scc1 L_lamd")
    A("s_waitcnt lgkmcnt(0)")
    for n in range(8):
        A(f"s_cmp_lg_u32 s{R[n]+1}, {sTAG}"); A("s_cbranch_scc1 L_lam")
    A.label("L_lamd")
    A("s_waitcnt lgkmcnt(0)")
    lam = [RING + n for n in range(8)]
    for n in range(8): A(f"v_mov_b32 v{lam[n]}, s{R[n]}")
    if KAP:
        for n in range(8): A(f"s_load_dword s{R[n]+1}, s[6:7], {n*1024 + 520} glc")
    t = vA_
    A(f"v_max3_f32 v{t}, v{lam[0]}, v{lam[1]}, v{lam[2]}"); A(f"v_max3_f32 v{t}, v{t}, v{lam[3]}, v{lam[4]}")
    A(f"v_max3_f32 v{t}, v{t}, v{lam[5]}, v{lam[6]}"); A(f"v_max_f32 v{t}, v{t}, v{lam[7]}")
    for n in range(8): A(f"v_sub_f32 v{lam[n]}, v{lam[n]}, v{t}")
    for n in range(8): A(f"v_exp_f32 v{lam[n]}, v{lam[n]}")
    for n in range(1, 8): A(f"v_add_f32 v{lam[0]}, v{lam[0]}, v{lam[n]}")
    A(f"v_log_f32 v{lam[0]}, v{lam[0]}")
    A(f"v_add_f32 v{t}, v{t}, v{lam[0]}")
    A(f"v_sub_f32 v{m}, v{m}, v{t}"); A(f"v_exp_f32 v{m}, v{m}")
    A(f"ds_write_b32 v{vZERO}, v{t} offset:{L_LAM}")
    for i in range(32): A(f"v_mul_f32 v{E+i}, v{E+i}, v{m}")
    for i in range(32): A(f"v_cvt_pk_bf16_f32 v{E+i}, v{E+i}, v{E+i}")
    for n in range(8): A(f"ds_write_b128 v{vLANE16}, {v4(E+4*n)} offset:{L_P + 1024*n}")
    A("s_waitcnt lgkmcnt(0)")
    A(f"ds_write_b32 v{vZERO}, v{vONE} offset:{L_PF}")
    if KAP:
        A("s_mov_b32 s9, 0")
        for n in range(8):
            A(f"s_sub_u32 s68, s10, s{R[n]+1}"); A("s_add_u32 s9, s9, s68")
        A("s_ashr_i32 s9, s9, 3"); A(f"s_sub_i32 s9, s9, {LAG0}"); A("s_max_i32 s9, s9, 0"); A("s_min_i32 s9, s9, 1000")
        A(f"s_mul_i32 s9, s9, {KAP}"); A("s_lshr_b32 s9, s9, 8"); A(f"s_min_u32 s9, s9, {CAP}"); A("s_add_u32 s9, s9, 1")
        A(f"v_mov_b32 v{vT}, s9"); A(f"ds_write_b32 v{vZERO}, v{vT} offset:{L_N6}")
    A("s_setprio 0")
    if stamps:
        stamp(14); stamp_dump([14], final=False)
    A("s_waitcnt lgkmcnt(0)")
    A("s_branch L_join")
    A.label("L_help7")
    if any(QK):
        A(f"s_mov_b32 s37, {QK[4]}")
        for lim, q_ in ((17, QK[3]), (15, QK[2]), (10, QK[1]), (5, QK[0])):
            A(f"s_cmp_lt_u32 {sK}, {lim}"); A(f"s_cselect_b32 s37, {q_}, s37")
        A("s_cmp_eq_u32 s37, 0"); A("s_cbranch_scc1 L_xkd")
        A("s_load_dwordx2 s[6:7], s[0:1], 8")
        A(f"s_mul_i32 {sST}, {sHD}, {ROT}"); A(f"s_lshl_b32 s68, {sS}, 7"); A(f"s_add_u32 {sST}, {sST}, s68")
        A(f"s_lshl_b32 s68, {sHD}, 22")
        A(f"v_and_b32 v{vPB}, 60, v{vLANE}")
        A(f"v_and_b32 v{vT}, 15, v{vLANE}"); A(f"v_lshlrev_b32 v{vT}, 4, v{vT}")
        A("s_waitcnt lgkmcnt(0)")
        A("s_add_u32 s40, s6, s68"); A("s_addc_u32 s41, s7, 0"); A("s_mov_b32 s42, 0x400000"); A("s_mov_b32 s43, 0x20000")
        lds_wait(L_QF, 1, slow=True)
        A(f"ds_read_b128 {v4(vQ)}, v{vT} offset:{L_Q}")
        A.label("L_xk")
        req(L_KT)
        A("s_waitcnt lgkmcnt(0)")
        A(f"v_readfirstlane_b32 {sTK}, v{vTKT}")
        A(f"s_cmp_ge_u32 {sTK}, 128"); A("s_cbranch_scc1 L_xkd")
        tile_addr(sTK, sST)
        load(SK, 0)
        A(f"s_lshl_b32 s68, {sTK}, 6"); A(f"v_add_u32 v{vE_}, s68, v{vPB}")
        A("s_waitcnt vmcnt(0)")
        qk(0, vE_, L_P)
        A("s_sub_u32 s37, s37, 1"); A("s_cmp_lg_u32 s37, 0"); A("s_cbranch_scc1 L_xk")
        A.label("L_xkd")
        A("s_waitcnt lgkmcnt(0)")
        A("s_mov_b64 exec, 1"); A(f"ds_add_u32 v{vZERO}, v{vONE} offset:{L_KD}"); A("s_mov_b64 exec, -1")
        A("s_waitcnt lgkmcnt(0)")
    if KAP:
        A("s_load_dwordx2 s[6:7], s[0:1], 16")
        A(f"s_mul_i32 {sST}, {sHD}, {ROT}"); A(f"s_lshl_b32 s68, {sS}, 7"); A(f"s_add_u32 {sST}, {sST}, s68")
        A(f"s_lshl_b32 s68, {sHD}, 22")
        A(f"v_and_b32 v{vPB}, 60, v{vLANE}")
        for r in range(4): A(f"v_mov_b32 v{vACC+r}, 0")
        A("s_waitcnt lgkmcnt(0)")
        A("s_add_u32 s44, s6, s68"); A("s_addc_u32 s45, s7, 0"); A("s_mov_b32 s46, 0x400000"); A("s_mov_b32 s47, 0x20000")
        lds_wait(L_N6, 1, slow=True)
        A("s_waitcnt lgkmcnt(0)")
        A(f"v_readfirstlane_b32 s37, v{vBAD}")
        A.label("L_xv")
        A("s_cmp_le_u32 s37, 1"); A("s_cbranch_scc1 L_xvd")
        req(L_VT)
        A("s_waitcnt lgkmcnt(0)")
        A(f"v_readfirstlane_b32 {sTK}, v{vTKT}")
        A(f"s_cmp_ge_u32 {sTK}, {NS}"); A("s_cbranch_scc1 L_xvd")
        tile_addr(sTK, sST)
        load(SV, 0)
        A(f"s_lshl_b32 s68, {sTK}, 6"); A(f"v_add_u32 v{vE_}, s68, v{vPB}")
        A(f"ds_read_b32 v{vE_}, v{vE_} offset:{L_P}")
        A("s_waitcnt lgkmcnt(0)")
        build(vE_)
        A("s_waitcnt vmcnt(0)")
        mm(0)
        A("s_sub_u32 s37, s37, 1"); A("s_branch L_xv")
        A.label("L_xvd")
        A(f"v_lshrrev_b32 v{vT}, 1, v{vNAT}")
        A(f"ds_write_b64 v{vT}, {v2(vACC)} offset:{L_PART + 512*NL}")
        A("s_waitcnt lgkmcnt(0)")
    A("s_branch L_join")

    A.label("L_ctrl0")
    A("s_setprio 3")
    A(f"v_mov_b32 v{vT+4}, {KT0}"); A(f"v_mov_b32 v{vT+5}, {VT0}"); A(f"v_mov_b32 v{vT+6}, 0"); A(f"v_mov_b32 v{vT+7}, 0")
    A(f"ds_write_b128 v{vZERO}, {v4(vT+4)} offset:{L_KT}")
    A(f"ds_write_b64 v{vZERO}, {v2(vT+6)} offset:{L_KD}"); A(f"ds_write_b64 v{vZERO}, {v2(vT+6)} offset:{L_MF}")
    A("s_waitcnt lgkmcnt(0)")
    A("s_barrier")
    if abl & 2:
        common_setup()
        A(f"s_lshl_b32 s68, {sHD}, 8"); A(f"s_add_u32 s68, s68, {WS_CNT}")
        A("s_mov_b64 exec, 1"); A(f"buffer_store_dword v{vZERO}, v{vZERO}, {SWS}, s68 offen sc1"); A("s_mov_b64 exec, -1")
        A(f"v_lshlrev_b32 v{vT}, 2, v{vLANE}"); A(f"v_mov_b32 v{vT+1}, 0x3f803f80"); A(f"ds_write_b32 v{vT}, v{vT+1} offset:{L_Q}"); A("s_waitcnt lgkmcnt(0)")
        A(f"ds_write_b32 v{vZERO}, v{vONE} offset:{L_QF}")
        A("s_branch L_ctrl_w"); A.label("L_abl2")
    A(f"s_sub_u32 s37, {sK}, 17"); A(f"s_add_u32 s68, {sK}, 15"); A(f"s_cmp_lt_u32 {sK}, 5"); A("s_cselect_b32 s37, s68, s37")
    A("s_cmp_lt_u32 s37, 20"); A("s_cbranch_scc1 L_ctrl_q")
    A(f"s_sub_u32 s38, {sK}, 10"); A("s_cmp_ge_u32 s38, 5"); A("s_cbranch_scc1 L_ctrl_none")
    A("s_lshl_b32 s38, s38, 3"); A(f"s_add_u32 s38, s38, {sG}")
    A("s_lshl_b32 s6, s38, 10"); A(f"s_add_u32 s6, s6, {WS_MODP}")
    A("s_and_b32 s39, s38, 3"); A("s_lshr_b32 s38, s38, 2")
    mod_loads("s38", "s39")
    common_setup()
    mod_compute()
    publish(vACC, vNAT, "s6")
    stamp(1)
    A("s_branch L_hop2")
    A.label("L_ctrl_none")
    common_setup()
    A("s_branch L_hop2")
    A.label("L_ctrl_q")
    WQ = RING + 64
    XA = RING
    X0, X1 = 24, 25
    A("s_mul_i32 s38, s37, 52"); A("s_lshr_b32 s38, s38, 8"); A("s_mul_i32 s68, s38, 5"); A("s_sub_u32 s39, s37, s68")
    A("s_lshl_b32 s38, s38, 3"); A(f"s_add_u32 s38, s38, {sG}")
    srd(SB, "s4", "s5", 1280); srd(SA, "s10", "s11", 640*8192)
    A(f"v_lshlrev_b32 v{vT+2}, 2, v{vLANE}")
    for k in range(5): A(f"buffer_load_dword v{XA+2*k+1}, v{vT+2}, {SB}, 0 offen offset:{k*256}")
    A("s_lshl_b32 s68, s39, 8")
    A(f"buffer_load_dword v{X1}, v{vT+2}, {SB}, s68 offen")
    A(f"v_lshrrev_b32 v{vT}, 4, v{vLANE}"); A(f"v_lshlrev_b32 v{vT}, 18, v{vT}")
    A(f"v_and_b32 v{vT+1}, 15, v{vLANE}"); A(f"v_lshl_add_u32 v{vT+3}, v{vT+1}, 4, v{vT}")
    A("s_lshl_b32 s69, s39, 20"); A("s_lshl_b32 s68, s38, 8"); A("s_add_u32 s69, s69, s68")
    for n in range(32):
        u, j = n // 16, n % 16
        A(f"s_add_u32 s68, s69, {(2*j+u)*8192}")
        A(f"buffer_load_dwordx4 {v4(WQ+4*n)}, v{vT+3}, {SA}, s68 offen {pol}")
    common_setup()
    A("s_lshl_b32 s68, s38, 8"); A(f"s_add_u32 s68, s68, {WS_CNT}")
    A("s_cmp_lg_u32 s39, 0"); A("s_cbranch_scc1 L_nocnt")
    A("s_mov_b64 exec, 1")
    A(f"buffer_store_dword v{vZERO}, v{vZERO}, {SWS}, s68 offen sc1")
    A("s_mov_b64 exec, -1")
    A("s_waitcnt vmcnt(33)")
    A("s_branch L_cntj")
    A.label("L_nocnt")
    A("s_waitcnt vmcnt(32)")
    A.label("L_cntj")
    for k in range(5):
        A(f"v_lshlrev_b32 v{XA+2*k}, 16, v{XA+2*k+1}"); A(f"v_and_b32 v{XA+2*k+1}, 0xffff0000, v{XA+2*k+1}")
    A(f"v_lshlrev_b32 v{X0}, 16, v{X1}"); A(f"v_and_b32 v{X1}, 0xffff0000, v{X1}")
    t = vT + 8; a = XA
    A(f"v_add_f32 v{t}, v{a}, v{a+1}")
    for i in range(2, 10): A(f"v_add_f32 v{t}, v{t}, v{a+i}")
    wave_red("v_add_f32", t, t+1)
    A(f"v_mul_f32 v{t}, {fh(1.0/640)}, v{t}")
    for i in range(10): A(f"v_sub_f32 v{a+i}, v{a+i}, v{t}")
    A(f"v_mul_f32 v{t+2}, v{a}, v{a}")
    for i in range(1, 10): A(f"v_fmac_f32 v{t+2}, v{a+i}, v{a+i}")
    wave_red("v_add_f32", t+2, t+1)
    A(f"v_mul_f32 v{t+2}, {fh(1.0/640)}, v{t+2}")
    rbf2(t, t+2)
    A(f"v_add_f32 v{t+2}, {fh(1e-5)}, v{t+2}"); rbf(t+2, t+2)
    A(f"v_sqrt_f32 v{t+2}, v{t+2}"); rbf(t+2, t+2)
    A(f"v_rcp_f32 v{t+2}, v{t+2}")
    A(f"v_sub_f32 v{X0}, v{X0}, v{t}"); A(f"v_sub_f32 v{X1}, v{X1}, v{t}"); rbf2(X0, X1)
    A(f"v_mul_f32 v{X0}, v{X0}, v{t+2}"); A(f"v_mul_f32 v{X1}, v{X1}, v{t+2}"); rbf2(X0, X1)
    A("s_lshl_b32 s6, s39, 12"); A(f"s_add_u32 s6, s6, {WS_MODP}"); A(f"s_add_u32 s7, s6, {5*4096}")
    stamp(1)
    spre("s6", [(n // 4)*5*4096 + (n % 4)*1024 for n in range(8)])
    poll([(vLANE16, f"s{6+n//4}", (n % 4)*1024, None) for n in range(8)], RING)
    stamp(2)
    sum2([RING+4*n for n in range(4)]); sum2([RING+16+4*n for n in range(4)])
    rbf2(RING, RING+1); rbf2(RING+16, RING+17)
    c0, c1, s0, s1 = RING+16, RING+17, RING, RING+1
    A(f"v_add_f32 v{c0}, 1.0, v{c0}"); A(f"v_add_f32 v{c1}, 1.0, v{c1}"); rbf2(c0, c1)
    A(f"v_mul_f32 v{X0}, v{X0}, v{c0}"); A(f"v_mul_f32 v{X1}, v{X1}, v{c1}"); rbf2(X0, X1)
    A(f"v_add_f32 v{X0}, v{X0}, v{s0}"); A(f"v_add_f32 v{X1}, v{X1}, v{s1}")
    A(f"v_cvt_pk_bf16_f32 v{X0}, v{X0}, v{X0}"); A(f"v_cvt_pk_bf16_f32 v{X1}, v{X1}, v{X1}")
    gemv(vACC, vM2, [((X0, X1)[n // 16], f"row_newbcast:{n % 16}", WQ + 4*n, None) for n in range(32)])
    A("s_mul_i32 s68, s38, 5"); A("s_add_u32 s68, s68, s39"); A("s_lshl_b32 s68, s68, 10"); A(f"s_add_u32 s68, s68, {WS_QP}")
    publish(vACC, vNAT, "s68")
    A.label("L_hop2")
    stamp(3)
    A(f"s_mul_i32 s6, {sHD}, 5120"); A(f"s_add_u32 s6, s6, {WS_QP}"); A("s_add_u32 s7, s6, 4096")
    spre("s6", [n*1024 for n in range(5)])
    poll([(vLANE16, "s6" if n < 4 else "s7", (n % 4)*1024, None) for n in range(5)], RING)
    sum2([RING+4*n for n in range(5)])
    A(f"v_cvt_pk_bf16_f32 v{RING}, v{RING}, v{RING+1}")
    A(f"v_lshlrev_b32 v{vT}, 2, v{vLANE}")
    A(f"ds_write_b32 v{vT}, v{RING} offset:{L_Q}")
    A("s_waitcnt lgkmcnt(0)")
    A(f"ds_write_b32 v{vZERO}, v{vONE} offset:{L_QF}")
    stamp(4)
    A("s_setprio 0")
    A.label("L_ctrl_w")
    if abl: A("s_barrier"); A("s_endpgm"); A.label("L_abl_dead2")
    if cearly: tail_loads(True)
    A(f"s_lshl_b32 s8, {sHD}, 3"); A(f"s_add_u32 s8, s8, {sS}"); A("s_lshl_b32 s8, s8, 10"); A(f"s_add_u32 s8, s8, {WS_OP}")
    A(f"v_lshlrev_b32 v{vT}, 3, v{vLANE}"); A(f"v_mov_b32 v{TMP+3}, {sTAG}")
    A("s_waitcnt vmcnt(0) lgkmcnt(0)")
    stamp(5)
    A("s_barrier")
    stamp(6)
    NPART = NL + (1 if KAP else 0)
    for w in range(NPART): A(f"ds_read_b64 {v2(RING+2*w)}, v{vT} offset:{L_PART+512*w}")
    A("s_waitcnt lgkmcnt(0)")
    sum2([RING+2*w for w in range(NPART)], TMP)
    A(f"buffer_store_dwordx4 {v4(TMP)}, v{vLANE16}, {SWS}, s8 offen sc1")
    stamp(13)
    A("s_branch L_tail" if cearly else "s_branch L_tail0")
    A.label("L_end")
    A("s_endpgm")
    A('.section .rodata,"a"'); A(".p2align 6"); A(f".amdhsa_kernel {KN}")
    A(".amdhsa_next_free_vgpr 256"); A(".amdhsa_next_free_sgpr 100"); A(".amdhsa_accum_offset 256")
    A(".amdhsa_group_segment_fixed_size 0"); A(".amdhsa_kernarg_size 112"); A(".amdhsa_user_sgpr_count 2")
    A(".amdhsa_user_sgpr_kernarg_segment_ptr 1"); A(".amdhsa_system_sgpr_workgroup_id_x 1")
    A(".amdhsa_float_denorm_mode_32 3")
    A(".end_amdhsa_kernel")
    return A.finalize()

def check_inter(w, inter):
    import numpy as np
    def cmp(name, got, exp):
        err = np.abs(got - exp).max(); rel = np.linalg.norm(got - exp) / np.linalg.norm(exp)
        print("   inter %-5s maxabs %.4e (scale %.3e) relL2 %.3e nan=%d" % (name, err, np.abs(exp).max(), rel, int(np.isnan(got).sum())), got[:4], exp[:4])
    def bf(x):
        u = x.astype(np.float32).view(np.uint32); u = (u + 0x7fff + ((u >> 16) & 1)) & 0xffff0000
        return u.view(np.float32)
    gr = lambda off, n: w[off // 4: off // 4 + n*4].reshape(n, 4)
    md = np.concatenate([gr(WS_MODP, 10*4*64)[:, :2].reshape(10, 4, 128).sum(1).reshape(-1), gr(WS_MR, 2*1280)[:, :2].reshape(2, 2560).sum(0)])
    cmp("mod", md, inter["mod"]); print("      mod bf16 mismatches", int((bf(md) != inter["mod"]).sum()))
    q = gr(WS_QP, 32*5*64)[:, :2].reshape(32, 5, 128).sum(1).reshape(-1)
    cmp("q", q, inter["q"]); print("      q bf16 mismatches", int((bf(q) != inter["q"]).sum()))
    o = gr(WS_OP, 32*8*64)[:, :2].reshape(32, 8, 128).sum(1).reshape(-1)
    cmp("o", o, inter["o"]); print("      o bf16 mismatches", int((bf(o) != inter["o"]).sum()))
    yp = w[WS_YP // 4: WS_YP // 4 + 8*640].view(np.uint32).reshape(8, 320, 2)[:, :, 0]
    ya = np.stack([(yp << 16).view(np.float32), (yp & 0xffff0000).view(np.float32)], axis=-1).reshape(8, 640)
    cmp("at", ya.sum(0), inter["at"])
    cmp("dn", gr(WS_DP, 54*320)[:, :2].reshape(54, 640).sum(0), inter["dn"])

if __name__ == "__main__":
    out = sys.argv[1]
    kw = {}
    for a in sys.argv[2:]:
        k, v = a.split("=")
        kw[k] = eval(v)
    open(out, "w").write(gen(**kw))
```

```python
import sys, struct
from asmdsl import Asm
KN = "adaLN_cond__gqa_block_cached__swiglu_ffn__decode_kernel"

def f2u(x): return struct.unpack("<I", struct.pack("<f", x))[0]
def fh(x): return hex(f2u(x))
LOG2E = 1.4426950408889634
SCALE = 128 ** -0.5

WS_MODP = 0x1000
WS_QP   = WS_MODP + 10*4*1024
WS_SP   = WS_QP + 32*2*1024
WS_OP   = WS_SP + 32*8*1024
WS_YP   = WS_OP + 32*8*1024
WS_DP   = WS_YP + 8*8*2560
WS_MR   = WS_DP + 54*5120
WS_CNT  = WS_MR + 2*20480
WS_END  = WS_CNT + 32*256
WS_STAMP = 0x10000000
L_KT, L_VT, L_QF, L_PF, L_KD, L_RANK, L_MF, L_N6, L_LAM = 0, 4, 8, 12, 16, 20, 24, 28, 32
L_Q = 0x100
L_ST = 0x200
L_PART = 0x400
L_ACC = 0x1000
L_X2 = 0x2000
L_P = 0x3000
L_END = 0x5000
DPPF = "row_mask:0xf bank_mask:0xf"

def gen(stamps=0, pol="nt", NK=12, NV=10, NS=120, NL=5, SLP=16, wake=False, KAP=26, LAG0=20, CAP=20, SLK=4, psl=0, ROT=304, abl=0, PFTH=2, LTH=63, cearly=True, CTH=63, QK=(0, 8, 4, 3, 0, 10, 6), cstart=True, NR=4, TW=0, TWD=4, now=0, pf=True, pf2=True, Q_wo=999, Q_ffn=999):
    NP = 8 * (128 - NS); Q_wo = min(Q_wo, NP); Q_ffn = min(Q_ffn, NP)
    A = Asm()
    uid = [0]
    def U(p):
        uid[0] += 1; return f"L_{p}_{uid[0]}"
    sWAVE, sHD, sS, sTAG, sK, sG = "s3", "s32", "s33", "s34", "s35", "s36"
    SK, SV, SWS, SA, SB = "s[40:43]", "s[44:47]", "s[48:51]", "s[52:55]", "s[56:59]"
    sTP, sST, sL2E, sSC, sTO, sF, sTK = "s60", "s61", "s62", "s63", "s64", "s65", "s66"
    sROT, sQ, SCNT = "s37", "s29", "s[38:39]"
    def stamp(k):
        if stamps: A(f"s_memrealtime s[{70+2*k}:{71+2*k}]")
    def stamp_dump(slots, xcc=False, final=True):
        if not stamps: return
        A("s_waitcnt lgkmcnt(0)")
        A("s_mov_b64 exec, 1")
        A(f"s_lshl_b32 s69, s2, 7"); A(f"s_add_u32 s69, s69, {WS_STAMP}")
        A("s_mov_b32 s50, 0x20000000")
        for k in slots:
            A(f"v_mov_b32 v{vT+10}, s{70+2*k}"); A(f"v_mov_b32 v{vT+11}, s{71+2*k}")
            A(f"buffer_store_dwordx2 v[{vT+10}:{vT+11}], v{vZERO}, {SWS}, s69 offen offset:{k*8}")
            A("s_nop 1")
        if xcc:
            A("s_getreg_b32 s68, hwreg(HW_REG_XCC_ID)")
            A(f"v_mov_b32 v{vT+10}, s68"); A(f"v_mov_b32 v{vT+11}, 0")
            A(f"buffer_store_dwordx2 v[{vT+10}:{vT+11}], v{vZERO}, {SWS}, s69 offen offset:120")
        if not final: A("s_mov_b64 exec, -1")
    def srd(S, lo, hi, n):
        b = int(S[2:S.index(":")])
        A(f"s_mov_b32 s{b}, {lo}"); A(f"s_mov_b32 s{b+1}, {hi}"); A(f"s_mov_b32 s{b+2}, {n}"); A(f"s_mov_b32 s{b+3}, 0x20000")
    def v4(b): return f"v[{b}:{b+3}]"
    def v2(b): return f"v[{b}:{b+1}]"
    def dpp_red(op, vs, ctls):
        for ctl in ctls:
            for v in vs: A(f"{op}_dpp v{v}, v{v}, v{v} {ctl}")
    QUAD = [f"quad_perm:[1,0,3,2] {DPPF}", f"quad_perm:[2,3,0,1] {DPPF}"]
    BANK = [f"row_ror:4 {DPPF}", f"row_ror:8 {DPPF}"]
    BCAST = ["row_bcast:15 row_mask:0xa bank_mask:0xf", "row_bcast:31 row_mask:0xc bank_mask:0xf"]
    def xrow(op, v, t, which):
        A(f"v_mov_b32 v{t}, v{v}"); A(f"v_permlane{which}_swap_b32 v{v}, v{t}"); A(f"{op} v{v}, v{v}, v{t}")
    def wave_red(op, v, t):
        dpp_red(op, [v], QUAD + BANK); xrow(op, v, t, 16); xrow(op, v, t, 32)
    def rbf(d, s):
        A(f"v_cvt_pk_bf16_f32 v{d}, v{s}, v{s}"); A(f"v_and_b32 v{d}, 0xffff0000, v{d}")
    def rbf2(a, b):
        A(f"v_cvt_pk_bf16_f32 v{b}, v{a}, v{b}"); A(f"v_lshlrev_b32 v{a}, 16, v{b}"); A(f"v_and_b32 v{b}, 0xffff0000, v{b}")
    vLANE16, vZERO, vONE, vTKT, vADDR, vPB, vPW, vL = 1, 2, 3, 4, 5, 6, 7, 8
    vLANE, vNAT, vBAD = 9, 10, 11
    vQ, vM2, vACC = 12, 16, 20
    vR, vA_, vB_, vC_, vE_ = 24, 28, 29, 30, 31
    vAOP = 32
    vT = 48
    vM1 = 60
    RING = 64
    WT = RING + 48
    WD = WT + 80
    WD2 = WD + 32
    TMP = RING + 32
    ACC2 = RING + 40
    PF = RING + 44
    def publish(b, voff, soff):
        A(f"v_mov_b32 v{b+3}, {sTAG}")
        A(f"buffer_store_dwordx4 {v4(b)}, v{voff}, {SWS}, {soff} offen sc1")
    def poll(loads, base, tags=(3,)):
        n = len(loads)
        dst = base if isinstance(base, list) else [base + 4*i for i in range(n)]
        L = U("poll"); Ld = U("pdone")
        A(f"s_mov_b32 {sTO}, 0x40000")
        A.label(L)
        for idx, (vo, so, imm, em) in enumerate(loads):
            if em is not None: A(f"s_mov_b64 exec, {em}")
            A(f"buffer_load_dwordx4 {v4(dst[idx])}, v{vo}, {SWS}, {so} offen offset:{imm} sc1")
            if em is not None: A("s_mov_b64 exec, -1")
        first = True
        for idx in range(n):
            d = dst[idx]
            A(f"s_waitcnt vmcnt({n-1-idx})")
            for tp in tags:
                if first: A(f"v_xor_b32 v{vBAD}, {sTAG}, v{d+tp}"); first = False
                else: A(f"v_bitop3_b32 v{vBAD}, v{vBAD}, v{d+tp}, {sTAG} bitop3:0xf6")
        A(f"v_cmp_ne_u32 vcc, 0, v{vBAD}")
        A(f"s_cbranch_vccz {Ld}")
        A(f"s_sub_u32 {sTO}, {sTO}, 1")
        A(f"s_cmp_lg_u32 {sTO}, 0")
        A(f"s_cbranch_scc1 {L}")
        A.label(Ld)
    def spre(sbase, offs, sl=None):
        R = [40, 41, 42, 43, 44, 45, 46, 47, 14, 15, 28, 29, 60, 61, 66, 67]
        L = U("spoll"); Ld = U("spd")
        A(f"s_add_u32 s68, s30, {sbase}"); A("s_addc_u32 s69, s31, 0")
        A(f"s_mov_b32 {sTO}, 0x40000")
        A.label(L)
        sl = psl if sl is None else sl
        if sl: A(f"s_sleep {sl}")
        for i, o in enumerate(offs): A(f"s_load_dword s{R[i]}, s[68:69], {o + 1020} glc")
        A(f"s_sub_u32 {sTO}, {sTO}, 1"); A(f"s_cmp_eq_u32 {sTO}, 0"); A(f"s_cbranch_scc1 {Ld}")
        A("s_waitcnt lgkmcnt(0)")
        for i, o in enumerate(offs):
            A(f"s_cmp_lg_u32 s{R[i]}, {sTAG}"); A(f"s_cbranch_scc1 {L}")
        A.label(Ld)
        A("s_waitcnt lgkmcnt(0)")
    def lds_wait(off, val, slow=False, slp=None):
        L = U("lw"); Ld = U("lwd")
        A(f"s_mov_b32 {sTO}, 0x400000")
        A.label(L)
        if slow: A(f"s_sleep {SLP if slp is None else slp}")
        A(f"ds_read_b32 v{vBAD}, v{vZERO} offset:{off}")
        A(f"s_sub_u32 {sTO}, {sTO}, 1"); A(f"s_cmp_eq_u32 {sTO}, 0"); A(f"s_cbranch_scc1 {Ld}")
        A("s_waitcnt lgkmcnt(0)")
        A(f"v_cmp_gt_u32 vcc, {val}, v{vBAD}")
        A(f"s_cbranch_vccnz {L}")
        A.label(Ld)
    def sum2(bases, dst=None):
        bs = list(bases)
        while len(bs) > 1:
            nb = []
            for i in range(0, len(bs) - 1, 2):
                d = dst if (dst is not None and len(bs) == 2) else bs[i]
                A(f"v_pk_add_f32 {v2(d)}, {v2(bs[i])}, {v2(bs[i+1])}"); nb.append(d)
            if len(bs) % 2: nb.append(bs[-1])
            bs = nb
    def gemv(acc, mask, items, acc2=None, w2=None, keep=False):
        def mf(n):
            (x0, c0, w0, wc0) = items[n]
            if wc0 is not None: A(f"s_waitcnt vmcnt({wc0})")
            A(f"v_mfma_f32_16x16x32_bf16 {v4(acc)}, {v4(vAOP + 4*(n % 4))}, {v4(w0)}, {'0' if (n == 0 and not keep) else v4(acc)}")
            if acc2 is not None:
                A(f"v_mfma_f32_16x16x32_bf16 {v4(acc2)}, {v4(vAOP + 4*(n % 4))}, {v4(w2+4*n)}, {'0' if n == 0 else v4(acc2)}")
        for n, (x, ctl, w, wc) in enumerate(items):
            a = vAOP + 4 * (n % 4)
            for t in range(4): A(f"v_and_b32_dpp v{a+t}, v{x}, v{mask+t} {ctl} {DPPF}")
            if n >= 1: mf(n-1)
        mf(len(items) - 1)
    def ysplit(xs, y):
        for i, x in enumerate(xs): A(f"v_mov_b32 v{y+2*i}, v{x}"); A(f"v_mov_b32 v{y+2*i+1}, v{x}")
        for i, x in enumerate(xs):
            A(f"v_mov_b32_dpp v{y+2*i}, v{x} row_shr:4 row_mask:0xf bank_mask:0xa")
            A(f"v_mov_b32_dpp v{y+2*i+1}, v{x} row_shl:4 row_mask:0xf bank_mask:0x5")
    qp = lambda k: f"quad_perm:[{k},{k},{k},{k}]"
    def silu(x, t):
        A(f"v_mul_f32 v{t}, {fh(-LOG2E)}, v{x}"); A(f"v_exp_f32 v{t}, v{t}")
        A(f"v_add_f32 v{t}, 1.0, v{t}"); A(f"v_rcp_f32 v{t}, v{t}"); A(f"v_mul_f32 v{x}, v{x}, v{t}")
    def acc_addr(d):
        A(f"v_and_b32 v{d}, 7, v{vLANE}"); A(f"v_lshlrev_b32 v{d}, 5, v{d}")
        A(f"v_and_b32 v{vT+11}, 16, v{vLANE}"); A(f"v_add_u32 v{d}, v{d}, v{vT+11}")
        A(f"v_lshrrev_b32 v{vT+11}, 5, v{vLANE}"); A(f"v_lshl_add_u32 v{d}, v{vT+11}, 8, v{d}")
        A(f"s_lshl_b32 s68, {sWAVE}, 9"); A(f"v_add_u32 v{d}, s68, v{d}")
    def acc_write(d):
        A("s_mov_b32 exec_lo, 0x00ff00ff"); A("s_mov_b32 exec_hi, 0xff00ff00")
        A(f"ds_write_b128 v{d}, {v4(vACC)} offset:{L_ACC}")
        A("s_mov_b64 exec, -1")
    def mod_loads(scb, srb):
        wb = RING
        srd(SA, "s24", "s25", 640*7680); srd(SB, "s22", "s23", 1280)
        A(f"v_lshrrev_b32 v{vT}, 4, v{vLANE}"); A(f"v_mul_u32_u24 v{vT}, 40, v{vT}")
        A(f"v_and_b32 v{vT+1}, 15, v{vLANE}"); A(f"v_add_u32 v{vT+2}, v{vT}, v{vT+1}"); A(f"v_lshlrev_b32 v{vT+2}, 1, v{vT+2}")
        A(f"v_and_b32 v{vT+3}, 7, v{vLANE}"); A(f"v_add_u32 v{vT+3}, v{vT}, v{vT+3}"); A(f"v_lshlrev_b32 v{vT+3}, 1, v{vT+3}")
        A(f"s_mul_i32 s69, {srb}, 320")
        A(f"buffer_load_ushort v{vR}, v{vT+2}, {SB}, s69 offen")
        A(f"buffer_load_ushort v{vR+1}, v{vT+2}, {SB}, s69 offen offset:32")
        A(f"buffer_load_ushort v{vR+2}, v{vT+3}, {SB}, s69 offen offset:64")
        A(f"v_mul_u32_u24 v{vT}, 7680, v{vT}"); A(f"v_lshl_add_u32 v{vT}, v{vT+1}, 4, v{vT}")
        A(f"s_mul_i32 s69, {srb}, {160*7680}"); A(f"s_lshl_b32 s68, {scb}, 8"); A("s_add_u32 s68, s69, s68")
        for t in range(40):
            A(f"buffer_load_dwordx4 {v4(wb+4*t)}, v{vT}, {SA}, s68 offen {pol}")
            if t < 39: A("s_add_u32 s68, s68, 7680")
    def mod_compute():
        wb = RING
        A("s_waitcnt vmcnt(40)")
        for k in range(3):
            A(f"v_lshlrev_b32 v{vR+k}, 16, v{vR+k}"); silu(vR+k, vR+3); A(f"v_cvt_pk_bf16_f32 v{vR+k}, v{vR+k}, v{vR+k}")
        gemv(vACC, vM2, [(vR + t // 16, f"row_newbcast:{t % 16}", wb+4*t, 39-t) for t in range(40)])
    def common_setup():
        A(f"s_load_dword {sTAG}, s[30:31], 0")
        srd(SWS, "s30", "s31", WS_END)
        A(f"v_and_b32 v{vT}, 1, v{vLANE}"); A(f"v_lshlrev_b32 v{vT}, 4, v{vT}"); A(f"v_mov_b32 v{vT+1}, 0xffff"); A(f"v_lshlrev_b32 v{vT}, v{vT}, v{vT+1}")
        A(f"v_bfe_u32 v{vT+1}, v{vLANE}, 1, 2")
        A(f"v_bfe_u32 v{vT+2}, v{vLANE}, 1, 3")
        for t in range(4):
            A(f"v_cmp_eq_u32 vcc, {t}, v{vT+1}"); A(f"v_cndmask_b32 v{vM1+t}, 0, v{vT}, vcc")
            A(f"v_cmp_eq_u32 vcc, {2*t}, v{vT+2}"); A(f"v_cndmask_b32 v{vM2+t}, 0, v{vT}, vcc")
        A(f"v_and_b32 v{vT}, 15, v{vLANE}"); A(f"v_lshlrev_b32 v{vT}, 6, v{vT}"); A(f"v_and_b32 v{vT+1}, 48, v{vLANE}"); A(f"v_add_u32 v{vNAT}, v{vT}, v{vT+1}")
        A("s_waitcnt lgkmcnt(0)")
        A(f"s_add_u32 {sTAG}, {sTAG}, 0x01010101")
    def gu_loads(Ld, LTH):
        A(f"s_cmp_ge_u32 {sF}, 54"); A(f"s_cbranch_scc1 {Ld}")
        A(f"s_cmp_gt_u32 {sWAVE}, 3"); A(f"s_cbranch_scc1 {Ld}")
        A(f"v_and_b32 v{vT+2}, 4, v{vLANE}"); A(f"v_cmp_eq_u32 vcc, 0, v{vT+2}")
        A(f"v_mov_b32 v{vT+2}, s18"); A(f"v_mov_b32 v{vT+3}, s16"); A(f"v_cndmask_b32 v{vT+6}, v{vT+2}, v{vT+3}, vcc")
        A(f"v_mov_b32 v{vT+2}, s19"); A(f"v_mov_b32 v{vT+3}, s17"); A(f"v_cndmask_b32 v{vT+7}, v{vT+2}, v{vT+3}, vcc")
        A(f"s_mul_i32 s69, {sWAVE}, {160*3456}"); A(f"s_lshl_b32 s68, {sF}, 6"); A("s_add_u32 s69, s69, s68")
        A(f"v_and_b32 v{vT+4}, 3, v{vLANE}"); A(f"v_lshl_add_u32 v{vT+4}, v{vT+4}, 4, s69")
        A(f"v_lshrrev_b32 v{vT+5}, 3, v{vLANE}")
        for (mul, add, rows) in ((16*3456, 0, [(k, y) for k in range(4) for y in range(4)]), (4*3456, 128*3456, [(k, 4) for k in range(4)])):
            A(f"v_mul_u32_u24 v{vT+1}, {mul}, v{vT+5}"); A(f"v_add_u32 v{vT+1}, v{vT+1}, v{vT+4}")
            if add: A(f"v_add_u32 v{vT+1}, {add}, v{vT+1}")
            A(f"v_add_co_u32 v{vT+2}, vcc, v{vT+6}, v{vT+1}"); A(f"v_addc_co_u32 v{vT+3}, vcc, 0, v{vT+7}, vcc")
            for i, (k, y) in enumerate(rows):
                A(f"global_load_dwordx4 {v4(WT+4*(y*4+k))}, {v2(vT+2)}, off offset:{(i%2)*3456}")
                if LTH < 63: A(f"s_waitcnt vmcnt({LTH})")
                if i % 2 == 1 and i < len(rows) - 1:
                    A(f"v_add_co_u32 v{vT+2}, vcc, {2*3456}, v{vT+2}"); A(f"v_addc_co_u32 v{vT+3}, vcc, 0, v{vT+3}, vcc")
    def dn_loads(Ld):
        srd(SA, "s20", "s21", 1728*1280)
        A(f"v_lshrrev_b32 v{vT+1}, 4, v{vLANE}"); A(f"v_mul_u32_u24 v{vT+1}, {8*1280}, v{vT+1}")
        A(f"v_and_b32 v{vT+2}, 15, v{vLANE}"); A(f"v_lshl_add_u32 v{vT+1}, v{vT+2}, 4, v{vT+1}")
        A(f"s_mul_i32 s69, {sF}, {32*1280}"); A(f"s_lshl_b32 s68, {sWAVE}, 8"); A("s_add_u32 s69, s69, s68")
        for t in range(8):
            if t % 2 == 0: A(f"s_add_u32 s68, s69, {t*1280}")
            A(f"buffer_load_dwordx4 {v4(WD+4*t)}, v{vT+1}, {SA}, s68 offen offset:{(t%2)*1280}")
        A(f"s_cmp_lg_u32 {sWAVE}, 1"); A(f"s_cbranch_scc1 {Ld}")
        for t in range(8):
            if t % 2 == 0: A(f"s_add_u32 s68, s69, {t*1280}")
            A(f"buffer_load_dwordx4 {v4(WD2+4*t)}, v{vT+1}, {SA}, s68 offen offset:{(t%2)*1280 + 768}")
    def wo_loads():
        srd(SA, "s12", "s13", 4096*1280)
        A(f"v_bfe_u32 v{vT+1}, v{vLANE}, 4, 1"); A(f"v_lshlrev_b32 v{vT+1}, 5, v{vT+1}")
        A(f"v_lshrrev_b32 v{vT+2}, 5, v{vLANE}"); A(f"v_add_u32 v{vT+1}, v{vT+1}, v{vT+2}")
        A(f"v_bfe_u32 v{vT+2}, v{vLANE}, 3, 1"); A(f"v_lshl_add_u32 v{vT+1}, v{vT+2}, 4, v{vT+1}")
        A(f"v_mul_u32_u24 v{vT+1}, 1280, v{vT+1}")
        A(f"v_and_b32 v{vT+2}, 7, v{vLANE}"); A(f"v_lshl_add_u32 v{vT+1}, v{vT+2}, 4, v{vT+1}")
        A(f"s_lshr_b32 s68, {sWAVE}, 1"); A("s_lshl_b32 s68, s68, 3"); A(f"s_add_u32 s68, s68, {sG}"); A("s_lshl_b32 s68, s68, 1")
        A(f"s_and_b32 s69, {sWAVE}, 1"); A("s_add_u32 s68, s68, s69"); A(f"s_mul_i32 s69, s68, {64*1280}")
        A(f"s_lshl_b32 s68, {sK}, 7"); A("s_add_u32 s69, s69, s68")
        for n in range(8):
            if n % 2 == 0: A(f"s_add_u32 s68, s69, {2*n*1280}")
            A(f"buffer_load_dwordx4 {v4(WT+4*n)}, v{vT+1}, {SA}, s68 offen offset:{(n%2)*2560}")
    def tail_loads(dn):
        Lw, Ld = U("lwo"), U("ldone")
        A(f"s_cmp_lt_u32 {sK}, 10"); A(f"s_cbranch_scc1 {Lw}")
        if not (now & 1):
            gu_loads(Ld, CTH if dn else LTH)
            if dn: dn_loads(Ld)
        A(f"s_branch {Ld}")
        A.label(Lw)
        if not (now & 2): wo_loads()
        A.label(Ld)

    A(f"; @launch grid=(256,1,1) block=(512,1,1) lds={L_END}")
    A('.amdgcn_target "amdgcn-amd-amdhsa--gfx950"')
    A(".text"); A(f".globl {KN}"); A(".p2align 8"); A(f".type {KN},@function"); A.label(KN)
    stamp(0)
    A("s_cmp_ge_u32 s2, 256"); A("s_cbranch_scc1 L_end")
    A("s_load_dwordx16 s[4:19], s[0:1], 0")
    A("s_load_dwordx8 s[20:27], s[0:1], 64")
    A("s_load_dwordx4 s[28:31], s[0:1], 96")
    A("v_lshrrev_b32 v1, 6, v0"); A(f"v_and_b32 v{vLANE}, 63, v0")
    A(f"v_readfirstlane_b32 {sWAVE}, v1")
    A(f"v_lshlrev_b32 v{vLANE16}, 4, v{vLANE}")
    A(f"s_lshr_b32 {sHD}, s2, 3"); A(f"s_and_b32 {sG}, s2, 7"); A(f"s_lshl_b32 {sK}, {sG}, 2"); A(f"s_add_u32 {sK}, {sK}, {sHD}"); A(f"s_and_b32 {sK}, {sK}, 31")
    A(f"s_add_u32 {sS}, {sG}, {sHD}"); A(f"s_and_b32 {sS}, {sS}, 7")
    A(f"s_mov_b32 {sL2E}, {fh(LOG2E)}"); A(f"s_mov_b32 {sSC}, {fh(SCALE)}")
    A(f"s_sub_u32 s68, {sK}, 10"); A(f"s_mul_i32 {sF}, {sG}, 7"); A(f"s_add_u32 {sF}, {sF}, s68")
    A("s_cmp_lt_u32 s68, 7"); A(f"s_cselect_b32 {sF}, {sF}, 63")
    A(f"v_mov_b32 v{vZERO}, 0"); A(f"v_mov_b32 v{vONE}, 1")
    A(f"s_cmp_eq_u32 {sWAVE}, 0"); A("s_cbranch_scc1 L_ctrl0")
    A(f"s_cmp_gt_u32 {sWAVE}, {NL}"); A("s_cbranch_scc1 L_help")
    A(f"s_mul_i32 {sROT}, {sHD}, {ROT}"); A(f"s_lshl_b32 {sST}, {sS}, 7"); A(f"s_add_u32 {sST}, {sST}, {sROT}")
    A(f"s_lshl_b32 s68, {sHD}, 22")
    def tile_addr(sreg, add):
        A(f"s_add_u32 s69, {sreg}, {add}")
        if ROT: A("s_and_b32 s69, s69, 1023")
        A("s_lshl_b32 s69, s69, 12")
        A(f"v_add_u32 v{vADDR}, s69, v{vLANE16}")
    A(f"s_add_u32 s67, {sST}, {sWAVE}"); A("s_sub_u32 s67, s67, 1")
    tile_addr("s67", 0)
    if stamps == 6: stamp(2)
    A("s_waitcnt lgkmcnt(0)")
    A("s_add_u32 s40, s6, s68"); A("s_addc_u32 s41, s7, 0"); A("s_mov_b32 s42, 0x400000"); A("s_mov_b32 s43, 0x20000")
    G = lambda i: RING + 16*i
    def load(S, slot):
        for u in range(4): A(f"buffer_load_dwordx4 {v4(G(slot)+4*u)}, v{vADDR}, {S}, 0 offen offset:{u*1024} {pol}")
    load(SK, 0)
    if stamps == 6: stamp(3)
    A("s_add_u32 s44, s8, s68"); A("s_addc_u32 s45, s9, 0"); A("s_mov_b32 s46, 0x400000"); A("s_mov_b32 s47, 0x20000")
    A("s_barrier")
    common_setup()
    A(f"s_lshl_b32 s38, {sHD}, 8"); A(f"s_add_u32 s38, s38, {WS_CNT}"); A("s_add_u32 s38, s38, s30"); A("s_addc_u32 s39, s31, 0")
    A(f"s_mov_b32 {sQ}, {NP}"); A(f"s_cmp_lt_u32 {sF}, 54"); A(f"s_cselect_b32 {sQ}, {Q_ffn}, {sQ}"); A(f"s_cmp_lt_u32 {sK}, 10"); A(f"s_cselect_b32 {sQ}, {Q_wo}, {sQ}")
    A(f"v_and_b32 v{vPB}, 60, v{vLANE}")
    A(f"s_lshl_b32 s68, {sWAVE}, 6"); A("s_sub_u32 s68, s68, 64"); A(f"v_add_u32 v{vPW}, s68, v{vPB}")
    for r in range(4): A(f"v_mov_b32 v{vACC+r}, 0")
    for i in range(1, NK):
        tile_addr("s67", NL*i)
        A("s_waitcnt vmcnt(0)")
        if i == 1 and stamps in (4, 6): stamp(1)
        if i == 2 and stamps == 6: stamp(4)
        if i == 3 and stamps == 6: stamp(5)
        load(SK, i)
    if stamps == 4: stamp(2)
    A(f"v_and_b32 v{vT}, 15, v{vLANE}"); A(f"v_lshlrev_b32 v{vT}, 4, v{vT}")
    lds_wait(L_QF, 1)
    A(f"ds_read_b128 {v4(vQ)}, v{vT} offset:{L_Q}")
    A("s_waitcnt lgkmcnt(0)")
    def req(off):
        A("s_mov_b64 exec, 1"); A(f"ds_add_rtn_u32 v{vTKT}, v{vZERO}, v{vONE} offset:{off}"); A("s_mov_b64 exec, -1")
    def qk(slot, va, off):
        kb = G(slot)
        for t in range(4):
            for u in range(4):
                if t == 0: A(f"v_dot2_f32_bf16 v{vR+u}, v{kb+4*u}, v{vQ}, 0")
                else: A(f"v_dot2c_f32_bf16 v{vR+u}, v{kb+4*u+t}, v{vQ+t}")
        A(f"v_add_f32_dpp v{vA_}, v{vR}, v{vR} row_ror:8 row_mask:0xf bank_mask:0x3")
        A(f"v_add_f32_dpp v{vB_}, v{vR+2}, v{vR+2} row_ror:8 row_mask:0xf bank_mask:0x3")
        A(f"v_add_f32_dpp v{vA_}, v{vR+1}, v{vR+1} row_ror:8 row_mask:0xf bank_mask:0xc")
        A(f"v_add_f32_dpp v{vB_}, v{vR+3}, v{vR+3} row_ror:8 row_mask:0xf bank_mask:0xc")
        A(f"v_add_f32_dpp v{vC_}, v{vA_}, v{vA_} row_shl:4 row_mask:0xf bank_mask:0x5")
        A(f"v_add_f32_dpp v{vC_}, v{vB_}, v{vB_} row_shr:4 row_mask:0xf bank_mask:0xa")
        dpp_red("v_add_f32", [vC_], QUAD)
        rbf(vC_, vC_)
        A(f"v_mul_f32 v{vC_}, {sSC}, v{vC_}")
        rbf(vC_, vC_)
        A(f"ds_write_b32 v{va}, v{vC_} offset:{off}")
    def build(p):
        lane_of = [0, 8, 4, 12]
        for u in range(4):
            for t in range(4): A(f"v_and_b32_dpp v{vAOP+4*u+t}, v{p}, v{vM2+t} row_newbcast:{lane_of[u]} {DPPF}")
    def mm(slot):
        for u in range(4):
            A(f"v_mfma_f32_16x16x32_bf16 {v4(vACC)}, {v4(vAOP+4*u)}, {v4(G(slot)+4*u)}, {v4(vACC)}")
    LA, LB = 0, NK - 1
    qk(0, vPW, L_P)
    todo = list(range(1, NK - 1))
    cur, cur_i, nxt = LB, NK - 1, LA
    step = 0
    while todo:
        i = NK + step
        tile_addr("s67", NL*i)
        A("s_waitcnt vmcnt(0)")
        load(SK, nxt)
        if len(todo) <= 2: req(L_KT)
        qk(cur, vPW, L_P + NL*cur_i*64)
        for b in todo[:2]: qk(b, vPW, L_P + NL*b*64)
        todo = todo[2:]
        cur, nxt, cur_i = nxt, cur, i
        step += 1
    KT0 = NL * (NK + step)
    assert KT0 <= 128
    A(f"v_add_u32 v{vE_}, {NL*cur_i*64}, v{vPW}")
    if stamps == 4: stamp(3)
    order = [cur, nxt]
    A.label("L_k0")
    for n in range(2):
        X, Y = order[n], order[1-n]
        if n: A.label("L_k1")
        A("s_waitcnt lgkmcnt(0)")
        A(f"v_readfirstlane_b32 {sTK}, v{vTKT}")
        A(f"s_cmp_ge_u32 {sTK}, 128"); A(f"s_cbranch_scc1 L_kend{n}")
        tile_addr(sTK, sST)
        A("s_waitcnt vmcnt(0)")
        load(SK, Y)
        req(L_KT)
        qk(X, vE_, L_P)
        A(f"s_lshl_b32 s68, {sTK}, 6"); A(f"v_add_u32 v{vE_}, s68, v{vPB}")
    A("s_branch L_k0")
    for n in range(2):
        A.label(f"L_kend{n}")
        tile_addr("s67", 0)
        A("s_waitcnt vmcnt(0)")
        load(SV, 1)
        qk(order[n], vE_, L_P)
        if n == 0: A("s_branch L_vpre")
    A.label("L_vpre")
    A("s_waitcnt lgkmcnt(0)")
    A("s_mov_b64 exec, 1"); A(f"ds_add_u32 v{vZERO}, v{vONE} offset:{L_KD}"); A("s_mov_b64 exec, -1")
    if wake: A("s_waitcnt lgkmcnt(0)"); A("s_wakeup")
    if stamps == 4: stamp(4)
    for i in range(1, NV):
        tile_addr("s67", NL*i)
        A("s_waitcnt vmcnt(0)")
        load(SV, i + 1)
    if stamps == 4: stamp(5)
    lds_wait(L_PF, 1)
    A(f"ds_read_b32 v{vC_}, v{vZERO} offset:{L_LAM}")
    A(f"v_and_b32 v{vL}, 4, v{vLANE}"); A(f"v_lshlrev_b32 v{vL}, 2, v{vL}"); A(f"v_sub_u32 v{vL}, 16, v{vL}")
    A(f"s_lshl_b32 s14, {sHD}, 13"); A(f"s_add_u32 s14, s14, {WS_SP + (NS - 112)*32}"); A("s_add_u32 s14, s14, s30"); A("s_addc_u32 s15, s31, 0")
    nstep = NV // 2
    if nstep % 2: nstep += 1
    PR = vT
    assert NV + nstep <= 12 + 4
    preg = lambda i: (vT + i) if i < 12 else (vR + i - 12)
    for i in range(NV + nstep):
        A(f"ds_read_b32 v{preg(i)}, v{vPW} offset:{L_P + NL*i*64}")
        if i == 8: A("s_waitcnt lgkmcnt(2)")
    A("s_waitcnt lgkmcnt(0)")
    todo = [(i + 1, i) for i in range(NV)]
    live = [LA, LB]
    for j in range(nstep):
        tile_addr("s67", NL*(NV + j))
        A("s_waitcnt vmcnt(0)")
        load(SV, live[j % 2])
        if j == nstep - 1: req(L_VT)
        items = ([(live[(j-1) % 2], NV + j - 1)] if j else []) + todo[:2]
        todo = todo[2:]
        if j == nstep - 1: items += todo; todo = []
        for (sl, i) in items: build(preg(i)); mm(sl)
    build(preg(NV + nstep - 1))
    VT0 = NL * (NV + nstep)
    order = [LB, LA]
    A.label("L_v0")
    for n in range(2):
        X, Y = order[n], order[1-n]
        A("s_waitcnt lgkmcnt(0)")
        A(f"v_readfirstlane_b32 {sTK}, v{vTKT}")
        A(f"s_cmp_ge_u32 {sTK}, {NS}"); A(f"s_cbranch_scc1 L_din{n}")
        A(f"s_lshl_b32 s68, {sTK}, 6"); A(f"v_add_u32 v{vE_}, s68, v{vPB}")
        A(f"ds_read_b32 v{vE_}, v{vE_} offset:{L_P}")
        tile_addr(sTK, sST)
        A("s_waitcnt vmcnt(0) lgkmcnt(0)")
        load(SV, Y)
        req(L_VT)
        mm(X); build(vE_)
    A("s_branch L_v0")
    for n in range(2):
        A.label(f"L_din{n}")
        A(f"s_mov_b32 {sTK}, 1"); A(f"s_atomic_add {sTK}, {SCNT}, 0 glc")
        A(f"s_branch L_d{n}")
    for n in range(2):
        X, Y = order[n], order[1-n]
        A.label(f"L_d{n}")
        A("s_waitcnt lgkmcnt(0)")
        A(f"s_cmp_ge_u32 {sTK}, {NP}"); A(f"s_cbranch_scc1 L_vend{n}")
        A(f"s_and_b32 s68, {sTK}, 7"); A(f"s_lshr_b32 s67, {sTK}, 3")
        A("s_lshl_b32 s69, s68, 5"); A("s_add_u32 s69, s69, s67"); A("s_lshl_b32 s69, s69, 5")
        A("s_load_dwordx8 s[52:59], s[14:15], s69 glc")
        A("s_lshl_b32 s68, s68, 7"); A("s_add_u32 s68, s68, s67"); A(f"s_add_u32 s68, s68, {NS}")
        tile_addr("s68", sROT)
        A(f"s_cmp_ge_u32 {sTK}, {sQ}"); A(f"s_cselect_b32 {sTP}, {NP}, 0"); A(f"s_cselect_b32 {sTK}, 0, 1")
        A("s_waitcnt vmcnt(0)")
        load(SV, Y)
        mm(X)
        A("s_waitcnt lgkmcnt(0)")
        A(f"s_atomic_add {sTK}, {SCNT}, 0 glc")
        A("s_mov_b64 exec, 0xff")
        for j in range(8):
            A(f"v_lshlrev_b32 v{vE_}, v{vL}, s{52+j}")
            if j < 7: A("s_lshl_b64 exec, exec, 8")
        A("s_mov_b64 exec, -1")
        A(f"v_and_b32 v{vE_}, 0xffff0000, v{vE_}")
        A(f"v_fma_f32 v{vE_}, v{vE_}, {sL2E}, -v{vC_}")
        A(f"v_exp_f32 v{vE_}, v{vE_}")
        A(f"v_cvt_pk_bf16_f32 v{vE_}, v{vE_}, v{vE_}")
        build(vE_)
        if Q_wo < NP or Q_ffn < NP:
            A("s_waitcnt lgkmcnt(0)"); A(f"s_add_u32 {sTK}, {sTK}, {sTP}")
    A("s_branch L_d0")
    for n in range(2):
        A.label(f"L_vend{n}")
        if pf and not TW:
            A("s_mov_b64 exec, 1"); A(f"ds_add_rtn_u32 v{vTKT}, v{vZERO}, v{vONE} offset:{L_RANK}"); A("s_mov_b64 exec, -1")
        A(f"s_lshl_b32 s69, {sWAVE}, 9"); A(f"v_lshrrev_b32 v{vT}, 1, v{vNAT}"); A(f"v_add_u32 v{vT}, s69, v{vT}")
        A("s_waitcnt vmcnt(0)")
        mm(order[n])
        if n == 0: A("s_branch L_last")
    A.label("L_last")
    A(f"ds_write_b64 v{vT}, {v2(vACC)} offset:{L_PART-512}")
    A("s_waitcnt lgkmcnt(0)")
    def wo_prefetch(first, cnt, th):
        srd(SA, "s12", "s13", 4096*1280)
        A(f"s_and_b32 s68, {sHD}, 24"); A(f"s_add_u32 s68, s68, {sG}"); A(f"s_mul_i32 s68, s68, {128*1280}")
        A(f"s_and_b32 s69, {sHD}, 7"); A(f"s_mul_i32 s69, s69, {20*1024}"); A("s_add_u32 s68, s68, s69")
        if first: A(f"s_add_u32 s68, s68, {first}")
        for n in range(cnt):
            if n and n % 4 == 0: A("s_add_u32 s68, s68, 4096")
            A(f"buffer_load_dwordx4 {v4(PF)}, v{vLANE16}, {SA}, s68 offen offset:{(n%4)*1024}")
            if th < 63: A(f"s_waitcnt vmcnt({th})")
    if pf and not TW:
        A(f"v_readfirstlane_b32 s66, v{vTKT}")
        A(f"s_cmp_ge_u32 s66, {NR}"); A("s_cbranch_scc1 L_pfdone")
        A(f"s_mul_i32 s66, s66, {(20 // NR)*1024}")
        wo_prefetch("s66", 20 // NR, 63)
        A.label("L_pfdone")
    if stamps in (4, 6):
        A(f"s_cmp_lg_u32 {sWAVE}, 1"); A("s_cbranch_scc1 L_ns4")
        stamp_dump([1, 2, 3, 4, 5], final=False)
        A.label("L_ns4")
    A.label("L_join")
    A("s_barrier")
    if abl: A("s_endpgm"); A.label("L_abl_dead")
    if pf2:
        A(f"s_cmp_lt_u32 {sK}, 17"); A("s_cbranch_scc1 L_pf2done")
        A(f"s_sub_u32 s66, {sK}, 17"); A("s_mul_i32 s66, s66, 7"); A(f"s_add_u32 s66, s66, {sWAVE}"); A("s_sub_u32 s66, s66, 1")
        A("s_cmp_ge_u32 s66, 80"); A("s_cbranch_scc1 L_pf2dn")
        srd(SA, "s16", "s17", 640*3456); srd(SB, "s18", "s19", 640*3456)
        A(f"v_lshrrev_b32 v{vT+1}, 5, v{vLANE}"); A(f"v_mul_u32_u24 v{vT+1}, 3456, v{vT+1}")
        A(f"v_and_b32 v{vT+2}, 31, v{vLANE}"); A(f"v_lshl_add_u32 v{vT+1}, v{vT+2}, 4, v{vT+1}")
        A(f"s_mul_i32 s68, {sG}, 7"); A("s_lshr_b32 s68, s68, 1"); A("s_min_u32 s68, s68, 23"); A("s_lshl_b32 s68, s68, 7")
        npair = 3 if cearly else 4
        A(f"s_mul_i32 s69, s66, {2*npair*3456}"); A("s_add_u32 s68, s68, s69"); A(f"s_add_u32 s68, s68, {(4-npair)*160*3456}")
        for n in range(npair):
            for S in (SA, SB):
                A(f"buffer_load_dwordx4 {v4(PF)}, v{vT+1}, {S}, s68 offen")
                if PFTH < 63: A(f"s_waitcnt vmcnt({PFTH})")
            if n < npair - 1: A(f"s_add_u32 s68, s68, {2*3456}")
        A("s_waitcnt vmcnt(0)")
        A("s_endpgm")
        A.label("L_pf2dn")
        srd(SA, "s20", "s21", 1728*1280)
        A(f"s_mul_i32 s68, {sG}, {7*40960}"); A("s_sub_u32 s69, s66, 80"); A(f"s_mul_i32 s69, s69, {11520}"); A("s_add_u32 s68, s68, s69")
        A(f"v_add_u32 v{vT+1}, s68, v{vLANE16}")
        for n in range(12):
            if n and n % 4 == 0: A(f"v_add_u32 v{vT+1}, 0x1000, v{vT+1}")
            A(f"buffer_load_dwordx4 {v4(PF)}, v{vT+1}, {SA}, 0 offen offset:{(n%4)*1024}")
            if PFTH < 63: A(f"s_waitcnt vmcnt({PFTH+1})")
        A("s_waitcnt vmcnt(0)")
        A("s_endpgm")
        A.label("L_pf2done")
    A.label("L_tail0")
    tail_loads(False)
    A.label("L_tail")
    A(f"s_cmp_lt_u32 {sK}, 10"); A("s_cbranch_scc1 L_wo")
    A(f"s_cmp_ge_u32 {sF}, 54"); A("s_cbranch_scc1 L_exit")
    X0, GA = 24, 26
    CC = [12, 13, 14, 15, 28]; SS = [RING+36, RING+37, RING+38, RING+39, 29]
    SEL0, SEL1, GB = 30, 31, 6
    A(f"s_cmp_gt_u32 {sWAVE}, 3"); A("s_cbranch_scc1 L_gprep")
    A(f"v_lshrrev_b32 v{vT}, 3, v{vLANE}"); A(f"v_and_b32 v{vT+1}, 3, v{vLANE}"); A(f"v_lshl_add_u32 v{vT+1}, v{vT}, 2, v{vT+1}")
    A(f"s_mul_i32 s68, {sWAVE}, 640"); A(f"v_lshl_add_u32 v{vT+8}, v{vT+1}, 4, s68")
    A("s_add_u32 s68, s68, 512"); A(f"v_lshl_add_u32 v{vT+9}, v{vT+1}, 2, s68")
    A(f"v_lshlrev_b32 v{vT+2}, 1, v{vT+8}"); A(f"v_lshlrev_b32 v{vT+3}, 1, v{vT+9}"); A(f"v_and_b32 v{vT+3}, -16, v{vT+3}")
    acc_addr(vT+5)
    A(f"v_lshrrev_b32 v{vT+6}, 4, v{vLANE}"); A(f"v_lshlrev_b32 v{vT+6}, 3, v{vT+6}")
    A(f"v_and_b32 v{vT+7}, 7, v{vLANE}"); A(f"v_add_u32 v{vT+6}, v{vT+6}, v{vT+7}")
    A(f"v_bfe_u32 v{vT+7}, v{vLANE}, 3, 1"); A(f"v_lshl_add_u32 v{vT+6}, v{vT+7}, 5, v{vT+6}"); A(f"v_lshlrev_b32 v{vT+6}, 2, v{vT+6}")
    A(f"v_add_u32 v{vT+6}, {L_ACC}, v{vT+6}")
    A(f"s_mul_i32 s12, {sF}, 5120"); A(f"s_lshl_b32 s69, {sWAVE}, 10"); A("s_add_u32 s12, s12, s69"); A(f"s_add_u32 s12, s12, {WS_DP}")
    for i, o in enumerate((5120, 20480 + 5120, 10240, 20480 + 10240)): A(f"s_mov_b32 s{40+i}, {WS_MR + o}")
    MB = WD2
    poll([(vT+2, f"s{40+i}", 0, None) for i in range(4)] + [(vT+2, f"s{40+i}", 16, None) for i in range(4)] + [(vT+3, f"s{40+i}", 0, None) for i in range(4)],
         [RING + 4*i for i in range(8)] + [MB + 4*i for i in range(4)])
    for i in range(2):
        A(f"v_pk_add_f32 {v2(SS[2*i])}, {v2(RING+16*i)}, {v2(RING+16*i+4)}")
        A(f"v_pk_add_f32 {v2(CC[2*i])}, {v2(RING+16*i+8)}, {v2(RING+16*i+12)}")
    A(f"v_pk_add_f32 {v2(MB)}, {v2(MB)}, {v2(MB+4)}"); A(f"v_pk_add_f32 {v2(MB+8)}, {v2(MB+8)}, {v2(MB+12)}")
    A(f"v_and_b32 v{vT+7}, 1, v{vLANE}"); A(f"v_cmp_eq_u32 vcc, 1, v{vT+7}")
    A(f"v_cndmask_b32 v{SS[4]}, v{MB}, v{MB+1}, vcc"); A(f"v_cndmask_b32 v{CC[4]}, v{MB+8}, v{MB+9}, vcc")
    if not (now & 1):
        if cearly: A(f"s_cmp_eq_u32 {sWAVE}, 0"); A("s_cbranch_scc1 L_dnd")
        dn_loads("L_dnd")
        A.label("L_dnd")
    rbf2(SS[0], SS[1]); rbf2(SS[2], SS[3]); rbf2(CC[0], CC[1]); rbf2(CC[2], CC[3]); rbf2(CC[4], SS[4])
    for c in CC: A(f"v_add_f32 v{c}, 1.0, v{c}")
    rbf2(CC[0], CC[1]); rbf2(CC[2], CC[3]); rbf(CC[4], CC[4])
    stamp(8)
    A(f"s_cmp_lg_u32 {sWAVE}, 0"); A("s_cbranch_scc1 L_gemv")
    A.label("L_gprep")
    A(f"s_and_b32 s23, {sWAVE}, 3"); A(f"s_cmp_eq_u32 {sWAVE}, 0"); A("s_cselect_b32 s23, 4, s23")
    A(f"v_and_b32 v{vT}, 31, v{vLANE}"); A(f"v_lshrrev_b32 v{vT+1}, 5, v{vLANE}")
    A(f"v_lshl_add_u32 v{vT+2}, v{vT}, 1, v{vT+1}"); A("s_lshl_b32 s68, s23, 6"); A(f"v_add_u32 v{vT+2}, s68, v{vT+2}")
    A(f"v_lshlrev_b32 v{vT+7}, 4, v{vT+2}"); A(f"v_lshlrev_b32 v{vT+3}, 3, v{vT+2}"); A(f"v_lshlrev_b32 v{vT+2}, 2, v{vT+2}")
    srd(SB, "s4", "s5", 1280)
    A(f"buffer_load_dword v{X0+1}, v{vT+2}, {SB}, 0 offen")
    A(f"v_mul_u32_u24 v{vT+4}, 2560, v{vT+1}"); A(f"v_lshl_add_u32 v{vT+4}, v{vT}, 4, v{vT+4}"); A("s_lshl_b32 s68, s23, 9"); A(f"v_add_u32 v{vT+4}, s68, v{vT+4}")
    A(f"s_mul_i32 s68, {sG}, 20480")
    for n in range(4): A(f"s_add_u32 s{4+n}, s68, {WS_YP + n*5120}")
    A("s_lshl_b32 s68, s23, 3"); A(f"v_mov_b32 v{vADDR}, s68")
    A(f"v_mov_b32 v{SEL0}, 0x3f80"); A(f"v_mov_b32 v{SEL1}, 0x3f800000")
    A(f"s_min_u32 s21, {sF}, 39")
    A(f"v_lshrrev_b32 v{vL}, 3, v{vLANE}"); A(f"v_mul_u32_u24 v{vL}, 5120, v{vL}")
    A(f"v_and_b32 v{vONE}, 7, v{vLANE}"); A(f"v_lshl_add_u32 v{vL}, v{vONE}, 4, v{vL}")
    A(f"s_lshl_b32 s68, s21, 7"); A(f"v_add_u32 v{vL}, s68, v{vL}")
    A(f"v_lshl_add_u32 v{vT}, v{vONE}, 4, s68")
    A(f"v_lshl_add_u32 v{vONE}, v{vONE}, 1, v{vT+1}")
    A(f"s_lshl_b32 s68, s21, 4"); A(f"v_add_u32 v{vONE}, s68, v{vONE}")
    A(f"v_lshlrev_b32 v{vTKT}, 2, v{vONE}"); A(f"v_lshlrev_b32 v{vONE}, 1, v{vONE}")
    for n in range(7): A(f"s_mov_b32 s{13+n}, {WS_DP + n*8*5120}")
    for i, o in enumerate((0, 20480, 15360, 20480 + 15360)): A(f"s_mov_b32 s{40+i}, {WS_MR + o}")
    poll([(vT+7, "s40", 0, None), (vT+7, "s41", 0, None), (vT, "s42", 0, None), (vT, "s43", 0, None)], RING)
    A(f"v_lshlrev_b32 v{X0}, 16, v{X0+1}"); A(f"v_and_b32 v{X0+1}, 0xffff0000, v{X0+1}")
    A(f"v_pk_add_f32 {v2(GA)}, {v2(RING)}, {v2(RING+4)}"); A(f"v_pk_add_f32 {v2(RING+8)}, {v2(RING+8)}, {v2(RING+12)}")
    rbf2(GA, GA+1); rbf2(RING+8, RING+9)
    A(f"v_mov_b32 v{GB}, v{RING+8}"); A("s_mov_b32 exec_lo, 0"); A(f"v_mov_b32 v{GB}, v{RING+9}"); A("s_mov_b64 exec, -1")
    srd(SB, "s26", "s27", 1280)
    poll([(vT+4, f"s{4+n}", 0, None) for n in range(4)], RING, tags=(1, 3))
    for n in range(4):
        for r in range(4):
            src, sel = RING + 4*n + 2*(r // 2), (SEL0, SEL1)[r % 2]
            if n == 0: A(f"v_dot2_f32_bf16 v{TMP+r}, v{src}, v{sel}, 0")
            else: A(f"v_dot2c_f32_bf16 v{TMP+r}, v{src}, v{sel}")
    stamp(9)
    A(f"v_permlane32_swap_b32 v{TMP}, v{TMP+2}"); A(f"v_permlane32_swap_b32 v{TMP+1}, v{TMP+3}")
    A(f"v_pk_add_f32 {v2(TMP)}, {v2(TMP)}, {v2(TMP+2)}")
    A(f"v_pk_fma_f32 {v2(X0)}, {v2(TMP)}, {v2(GA)}, {v2(X0)}")
    A(f"v_add_f32 v{TMP}, v{X0}, v{X0+1}"); A(f"v_mul_f32 v{TMP+1}, v{X0}, v{X0}"); A(f"v_fmac_f32 v{TMP+1}, v{X0+1}, v{X0+1}")
    A(f"ds_write_b64 v{vT+3}, {v2(X0)} offset:{L_X2}")
    dpp_red("v_add_f32", [TMP, TMP+1], QUAD + BANK + BCAST)
    A("s_mov_b32 exec_lo, 0"); A("s_brev_b32 exec_hi, 1")
    A(f"ds_write_b64 v{vADDR}, {v2(TMP)} offset:{L_ST}")
    A("s_mov_b64 exec, -1")
    A("s_waitcnt lgkmcnt(0)")
    A(f"s_cmp_lg_u32 {sWAVE}, 0"); A("s_cbranch_scc1 L_final")
    A.label("L_gemv")
    A("s_barrier")
    ST = vAOP; XX = RING + 40
    A(f"ds_read_b128 {v4(ST)}, v{vZERO} offset:{L_ST}"); A(f"ds_read_b128 {v4(ST+4)}, v{vZERO} offset:{L_ST+16}"); A(f"ds_read_b64 {v2(ST+8)}, v{vZERO} offset:{L_ST+32}")
    A(f"ds_read_b128 {v4(XX)}, v{vT+8} offset:{L_X2}"); A(f"ds_read_b32 v{XX+4}, v{vT+9} offset:{L_X2}")
    A(f"v_mov_b32 v{TMP+2}, {fh(1e-5)}")
    A("s_waitcnt lgkmcnt(2)" if not stamps else "s_waitcnt lgkmcnt(0)")
    sum2([ST+2*n for n in range(5)], TMP)
    A(f"v_mul_f32 v{TMP}, {fh(1.0/640)}, v{TMP}")
    A(f"v_fmac_f32 v{TMP+2}, {fh(1.0/640)}, v{TMP+1}")
    A(f"v_fma_f32 v{TMP+2}, -v{TMP}, v{TMP}, v{TMP+2}")
    A(f"v_max_f32 v{TMP+2}, {fh(1e-5)}, v{TMP+2}")
    A(f"v_rsq_f32 v{TMP+2}, v{TMP+2}")
    A("s_waitcnt lgkmcnt(0)")
    for y in range(5): A(f"v_sub_f32 v{XX+y}, v{XX+y}, v{TMP}")
    for y in range(5): A(f"v_mul_f32 v{CC[y]}, v{CC[y]}, v{TMP+2}")
    for y in range(5): A(f"v_fmac_f32 v{SS[y]}, v{XX+y}, v{CC[y]}")
    for y in range(5): A(f"v_cvt_pk_bf16_f32 v{SS[y]}, v{SS[y]}, v{SS[y]}")
    gemv(vACC, vM1, [(SS[y], qp(k), WT+4*(y*4+k), None) for y in range(5) for k in range(4)])
    acc_write(vT+5)
    A("s_waitcnt lgkmcnt(0)")
    A("s_barrier")
    RD = WT
    for k in range(4): A(f"ds_read2st64_b32 {v2(RD+2*k)}, v{vT+6} offset0:{2*k} offset1:{2*k+1}")
    A("s_waitcnt lgkmcnt(0)")
    sum2([RD+2*k for k in range(4)])
    A(f"v_add_f32 v{RD}, v{RD}, v{RD+1}")
    A(f"v_mul_f32 v{RD+2}, {fh(-LOG2E)}, v{RD}"); A(f"v_exp_f32 v{RD+2}, v{RD+2}")
    A(f"v_mul_f32_dpp v{RD+1}, v{RD}, v{RD} row_ror:8 {DPPF}")
    A(f"v_add_f32 v{RD+2}, 1.0, v{RD+2}"); A(f"v_rcp_f32 v{RD+2}, v{RD+2}")
    A(f"v_mul_f32 v{RD}, v{RD+1}, v{RD+2}")
    A(f"v_cvt_pk_bf16_f32 v{RD}, v{RD}, v{RD}")
    A("s_waitcnt vmcnt(0)")
    A(f"s_cmp_eq_u32 {sWAVE}, 1"); A("s_cbranch_scc1 L_down2")
    gemv(vACC, vM2, [(RD, f"row_newbcast:{t}", WD+4*t, None) for t in range(8)])
    publish(vACC, vNAT, "s12")
    A("s_branch L_exit")
    A.label("L_down2")
    gemv(vACC, vM2, [(RD, f"row_newbcast:{t}", WD+4*t, None) for t in range(8)], ACC2, WD2)
    A(f"v_mov_b32 v{vACC+3}, {sTAG}"); A(f"v_mov_b32 v{ACC2+3}, {sTAG}")
    A(f"buffer_store_dwordx4 {v4(vACC)}, v{vNAT}, {SWS}, s12 offen sc1")
    A(f"buffer_store_dwordx4 {v4(ACC2)}, v{vNAT}, {SWS}, s12 offen offset:3072 sc1")
    stamp(10)
    A("s_waitcnt vmcnt(0)")
    A("s_barrier")
    stamp_dump([8, 10])
    A("s_endpgm")
    A.label("L_final")
    A("s_barrier")
    A(f"s_cmp_lg_u32 {sWAVE}, 7"); A("s_cbranch_scc1 L_end")
    A(f"ds_read_b32 v{X0}, v{vTKT} offset:{L_X2}")
    FB = RING + 48
    A(f"v_mov_b32 v{FB+24}, 0"); A(f"v_mov_b32 v{FB+25}, 0"); A(f"v_mov_b32 v{FB+27}, {sTAG}")
    A("s_mov_b32 s68, -1"); A("s_mov_b32 s69, 0xffff")
    A("s_waitcnt lgkmcnt(0)")
    A(f"s_cmp_ge_u32 {sF}, 40"); A("s_cbranch_scc1 L_fin_dump")
    A("s_barrier")
    A("s_barrier")
    poll([(vL, f"s{13+n}", 0, None if n < 6 else "s[68:69]") for n in range(7)], FB)
    sum2([FB+4*n for n in range(7)], GA)
    stamp(11)
    A(f"v_permlane32_swap_b32 v{GA}, v{GA+1}"); A(f"v_add_f32 v{GA}, v{GA}, v{GA+1}")
    xrow("v_add_f32", GA, GA+1, 16)
    A(f"v_add_f32_dpp v{GA}, v{GA}, v{GA} row_ror:8 {DPPF}")
    A(f"v_fma_f32 v{GA}, v{GA}, v{GB}, v{X0}"); A(f"v_cvt_pk_bf16_f32 v{GA}, v{GA}, v{GA}")
    A("s_mov_b32 exec_lo, 0xff"); A("s_mov_b32 exec_hi, 0xff")
    A(f"buffer_store_short v{GA}, v{vONE}, {SB}, 0 offen sc1")
    A(f"s_cmp_lg_u32 {sF}, 0"); A("s_cbranch_scc1 L_fin_dump")
    A("s_mov_b64 exec, 1"); A(f"v_mov_b32 v{GA+1}, {sTAG}")
    A(f"buffer_store_dword v{GA+1}, v{vZERO}, {SWS}, 0 offen sc1")
    A.label("L_fin_dump")
    if stamps:
        A("s_waitcnt vmcnt(0)"); stamp(12)
        stamp_dump([9, 11, 12])
    A("s_endpgm")
    A.label("L_wo")
    A(f"v_lshrrev_b32 v{vT+4}, 5, v{vLANE}"); A(f"v_lshlrev_b32 v{vT+4}, 10, v{vT+4}")
    A(f"v_and_b32 v{vT+6}, 31, v{vLANE}"); A(f"v_lshl_add_u32 v{vT+4}, v{vT+6}, 4, v{vT+4}")
    A(f"s_lshr_b32 s4, {sWAVE}, 1"); A("s_lshl_b32 s4, s4, 3"); A(f"s_add_u32 s4, s4, {sG}"); A("s_lshl_b32 s4, s4, 13")
    A(f"s_and_b32 s5, {sWAVE}, 1"); A("s_lshl_b32 s5, s5, 9"); A("s_add_u32 s4, s4, s5"); A(f"s_add_u32 s4, s4, {WS_OP}"); A("s_add_u32 s5, s4, 4096")
    acc_addr(vT+5)
    A(f"v_lshrrev_b32 v{vT+8}, 5, v{vLANE}"); A(f"v_lshlrev_b32 v{vT+7}, 11, v{vT+8}"); A(f"v_lshl_add_u32 v{vT+7}, v{vT+6}, 3, v{vT+7}")
    A(f"v_mul_u32_u24 v{vT+8}, 20480, v{vT+8}"); A(f"v_lshl_add_u32 v{vT+8}, v{vT+6}, 3, v{vT+8}")
    A(f"s_mul_i32 s6, {sG}, 2560"); A(f"s_lshl_b32 s7, {sK}, 8"); A("s_add_u32 s6, s6, s7"); A(f"s_add_u32 s6, s6, {WS_YP}")
    for c in range(1, 4): A(f"s_add_u32 s{12+c}, s6, {c*40960}")
    poll([(vT+4, "s4" if n < 2 else "s5", (n % 2)*2048, None) for n in range(4)], RING)
    stamp(7)
    sum2([RING+4*n for n in range(4)], TMP)
    A(f"v_permlane32_swap_b32 v{TMP}, v{TMP+1}")
    A(f"v_add_f32 v{TMP}, v{TMP}, v{TMP+1}")
    A(f"v_cvt_pk_bf16_f32 v{TMP}, v{TMP}, v{TMP}")
    ysplit([TMP], TMP+2)
    gemv(vACC, vM1, [(TMP + 2 + n // 4, qp(n % 4), WT+4*n, None) for n in range(8)])
    acc_write(vT+5)
    A("s_waitcnt lgkmcnt(0)")
    A("s_barrier")
    A(f"s_cmp_lg_u32 {sWAVE}, 0"); A("s_cbranch_scc1 L_end")
    for n in range(8): A(f"ds_read_b64 {v2(WT+2*n)}, v{vT+7} offset:{L_ACC+256*n}")
    A("s_waitcnt lgkmcnt(0)")
    sum2([WT+2*n for n in range(8)])
    A(f"v_mov_b32 v{WT+2}, v{WT}"); A(f"v_mov_b32 v{WT+3}, v{WT+1}")
    A(f"v_permlane32_swap_b32 v{WT}, v{WT+2}"); A(f"v_permlane32_swap_b32 v{WT+1}, v{WT+3}")
    A(f"v_pk_add_f32 {v2(WT)}, {v2(WT)}, {v2(WT+2)}")
    A(f"v_cvt_pk_bf16_f32 v{WT}, v{WT}, v{WT+1}"); A(f"v_mov_b32 v{WT+1}, {sTAG}")
    for so in ("s6", "s13", "s14", "s15"): A(f"buffer_store_dwordx2 {v2(WT)}, v{vT+8}, {SWS}, {so} offen sc1")
    stamp(13)
    A.label("L_exit")
    if stamps:
        A(f"s_cmp_lg_u32 {sWAVE}, 0"); A("s_cbranch_scc1 L_end")
        stamp_dump([0, 13, 6, 7] + ([1, 2, 3, 4, 5] if stamps not in (4, 6) else []), xcc=True)
    A("s_endpgm")

    A.label("L_help")
    A("s_waitcnt lgkmcnt(0)")
    A("s_barrier")
    A(f"s_cmp_lt_u32 {sK}, 24"); A("s_cbranch_scc1 L_hnoq")
    A(f"s_sub_u32 s39, {sWAVE}, 5")
    A(f"s_bfe_u32 s68, {sK}, 0x10002"); A("s_add_u32 s68, s68, s39"); A("s_cmp_lt_u32 s68, 3"); A("s_cbranch_scc1 L_ctrl_q")
    common_setup()
    A(f"v_lshlrev_b32 v{vT}, 3, v{vLANE}"); A(f"v_mov_b32 v{vACC}, 0"); A(f"v_mov_b32 v{vACC+1}, 0")
    A(f"ds_write_b64 v{vT}, {v2(vACC)} offset:{L_ACC + 512}")
    A("s_waitcnt lgkmcnt(0)")
    A("s_mov_b64 exec, 1"); A(f"ds_add_u32 v{vZERO}, v{vONE} offset:{L_MF}"); A("s_mov_b64 exec, -1")
    A("s_branch L_soft")
    A.label("L_hnoq")
    A(f"s_sub_u32 s37, {sK}, 5"); A("s_cmp_ge_u32 s37, 5"); A("s_cbranch_scc1 L_hnomod")
    A("s_lshl_b32 s37, s37, 3"); A(f"s_add_u32 s37, s37, {sG}")
    A("s_lshr_b32 s38, s37, 1"); A("s_and_b32 s39, s37, 1")
    A("s_mul_i32 s6, s39, 20480"); A("s_lshl_b32 s7, s38, 10"); A("s_add_u32 s6, s6, s7"); A(f"s_add_u32 s6, s6, {WS_MR}")
    A("s_add_u32 s38, s38, 10"); A("s_lshl_b32 s39, s39, 1"); A(f"s_add_u32 s39, s39, {sWAVE}"); A("s_sub_u32 s39, s39, 6")
    mod_loads("s38", "s39")
    common_setup()
    mod_compute()
    A(f"v_lshlrev_b32 v{vT}, 3, v{vLANE}")
    A(f"s_cmp_eq_u32 {sWAVE}, 6"); A("s_cbranch_scc1 L_hsum")
    A(f"ds_write_b64 v{vT}, {v2(vACC)} offset:{L_ACC}")
    A("s_waitcnt lgkmcnt(0)")
    A(f"ds_write_b32 v{vZERO}, v{vONE} offset:{L_MF}")
    A("s_branch L_soft")
    A.label("L_hsum")
    lds_wait(L_MF, 1)
    A(f"ds_read_b64 {v2(vR)}, v{vT} offset:{L_ACC}")
    A("s_waitcnt lgkmcnt(0)")
    A(f"v_pk_add_f32 {v2(vACC)}, {v2(vACC)}, {v2(vR)}")
    publish(vACC, vNAT, "s6")
    A("s_branch L_help7")
    A.label("L_hnomod")
    common_setup()
    A(f"s_cmp_lg_u32 {sWAVE}, 7"); A("s_cbranch_scc1 L_help7")
    A.label("L_soft")
    A(f"s_lshl_b32 s6, {sHD}, 13"); A(f"s_add_u32 s6, s6, {WS_SP}")
    A(f"s_lshl_b32 s8, {sS}, 10"); A("s_add_u32 s8, s8, s6")
    A("s_add_u32 s6, s6, s30"); A("s_addc_u32 s7, s31, 0")
    A(f"v_lshlrev_b32 v{vT}, 3, v{vLANE}")
    if abl & 4:
        A(f"ds_write_b32 v{vZERO}, v{vONE} offset:{L_PF}"); A("s_waitcnt lgkmcnt(0)"); A("s_branch L_join"); A.label("L_abl4")
    lds_wait(L_KT, 120, slow=True)
    lds_wait(L_KD, NL + (1 if any(QK) else 0), slow=True, slp=SLK)
    if KAP: A("s_memrealtime s[10:11]")
    E = RING + 64
    for n in range(8): A(f"ds_read_b128 {v4(E+4*n)}, v{vLANE16} offset:{L_P + 1024*n}")
    A("s_waitcnt lgkmcnt(0)")
    A(f"v_cvt_pk_bf16_f32 v{vACC}, v{E+28}, v{E+29}"); A(f"v_cvt_pk_bf16_f32 v{vACC+1}, v{E+30}, v{E+31}")
    lanes0 = (NS - 112) * 4
    if lanes0: A(f"s_lshl_b64 exec, -1, {lanes0}")
    A(f"buffer_store_dwordx2 {v2(vACC)}, v{vT}, {SWS}, s8 offen sc1")
    if lanes0: A("s_mov_b64 exec, -1")
    m = vR
    A(f"v_max3_f32 v{m}, v{E}, v{E+1}, v{E+2}"); A(f"v_max3_f32 v{m+1}, v{E+3}, v{E+4}, v{E+5}")
    for i in range(6, 32, 4):
        A(f"v_max3_f32 v{m}, v{m}, v{E+i}, v{E+i+1}")
        if i + 3 < 32: A(f"v_max3_f32 v{m+1}, v{m+1}, v{E+i+2}, v{E+i+3}")
    A(f"v_max_f32 v{m}, v{m}, v{m+1}")
    wave_red("v_max_f32", m, m+1)
    A(f"v_mul_f32 v{m}, {sL2E}, v{m}")
    for i in range(32): A(f"v_fma_f32 v{E+i}, v{E+i}, {sL2E}, -v{m}")
    for i in range(32): A(f"v_exp_f32 v{E+i}, v{E+i}")
    A(f"v_pk_add_f32 {v2(m+2)}, {v2(E)}, {v2(E+2)}")
    for i in range(4, 32, 2): A(f"v_pk_add_f32 {v2(m+2)}, {v2(m+2)}, {v2(E+i)}")
    A(f"v_add_f32 v{m+2}, v{m+2}, v{m+3}")
    wave_red("v_add_f32", m+2, m+1)
    A(f"v_log_f32 v{vACC+2}, v{m+2}")
    A(f"v_add_f32 v{vQ}, v{vACC+2}, v{m}"); A(f"v_mov_b32 v{vQ+1}, {sTAG}"); A(f"v_mov_b32 v{vQ+2}, s10")
    A("s_waitcnt vmcnt(0)")
    A("s_mov_b64 exec, 1")
    A(f"buffer_store_dwordx4 {v4(vQ)}, v{vZERO}, {SWS}, s8 offen offset:512 sc1")
    A("s_mov_b64 exec, -1")
    R = [40, 42, 44, 46, 52, 54, 56, 58]
    A(f"s_mov_b32 {sTO}, 0x40000")
    A.label("L_lam")
    for n in range(8): A(f"s_load_dwordx2 s[{R[n]}:{R[n]+1}], s[6:7], {n*1024 + 512} glc")
    A(f"s_sub_u32 {sTO}, {sTO}, 1"); A(f"s_cmp_eq_u32 {sTO}, 0"); A("s_cbranch_scc1 L_lamd")
    A("s_waitcnt lgkmcnt(0)")
    for n in range(8):
        A(f"s_cmp_lg_u32 s{R[n]+1}, {sTAG}"); A("s_cbranch_scc1 L_lam")
    A.label("L_lamd")
    A("s_waitcnt lgkmcnt(0)")
    lam = [RING + n for n in range(8)]
    for n in range(8): A(f"v_mov_b32 v{lam[n]}, s{R[n]}")
    if KAP:
        for n in range(8): A(f"s_load_dword s{R[n]+1}, s[6:7], {n*1024 + 520} glc")
    t = vA_
    A(f"v_max3_f32 v{t}, v{lam[0]}, v{lam[1]}, v{lam[2]}"); A(f"v_max3_f32 v{t}, v{t}, v{lam[3]}, v{lam[4]}")
    A(f"v_max3_f32 v{t}, v{t}, v{lam[5]}, v{lam[6]}"); A(f"v_max_f32 v{t}, v{t}, v{lam[7]}")
    for n in range(8): A(f"v_sub_f32 v{lam[n]}, v{lam[n]}, v{t}")
    for n in range(8): A(f"v_exp_f32 v{lam[n]}, v{lam[n]}")
    for n in range(1, 8): A(f"v_add_f32 v{lam[0]}, v{lam[0]}, v{lam[n]}")
    A(f"v_log_f32 v{lam[0]}, v{lam[0]}")
    A(f"v_add_f32 v{t}, v{t}, v{lam[0]}")
    A(f"v_sub_f32 v{m}, v{m}, v{t}"); A(f"v_exp_f32 v{m}, v{m}")
    A(f"ds_write_b32 v{vZERO}, v{t} offset:{L_LAM}")
    for i in range(32): A(f"v_mul_f32 v{E+i}, v{E+i}, v{m}")
    for i in range(32): A(f"v_cvt_pk_bf16_f32 v{E+i}, v{E+i}, v{E+i}")
    for n in range(8): A(f"ds_write_b128 v{vLANE16}, {v4(E+4*n)} offset:{L_P + 1024*n}")
    A("s_waitcnt lgkmcnt(0)")
    A(f"ds_write_b32 v{vZERO}, v{vONE} offset:{L_PF}")
    if KAP:
        A("s_mov_b32 s9, 0")
        for n in range(8):
            A(f"s_sub_u32 s68, s10, s{R[n]+1}"); A("s_add_u32 s9, s9, s68")
        A("s_ashr_i32 s9, s9, 3"); A(f"s_sub_i32 s9, s9, {LAG0}"); A("s_max_i32 s9, s9, 0"); A("s_min_i32 s9, s9, 1000")
        A(f"s_mul_i32 s9, s9, {KAP}"); A("s_lshr_b32 s9, s9, 8"); A(f"s_min_u32 s9, s9, {CAP}"); A("s_add_u32 s9, s9, 1")
        A(f"v_mov_b32 v{vT}, s9"); A(f"ds_write_b32 v{vZERO}, v{vT} offset:{L_N6}")
    A("s_setprio 0")
    if stamps:
        stamp(14); stamp_dump([14], final=False)
    A("s_waitcnt lgkmcnt(0)")
    A("s_branch L_join")
    A.label("L_help7")
    if any(QK):
        A(f"s_bitcmp1_b32 {sK}, 2"); A(f"s_cselect_b32 s37, {QK[6]}, {QK[5]}")
        for lim, q_ in ((24, QK[4]), (22, QK[3]), (17, QK[2]), (10, QK[1]), (5, QK[0])):
            A(f"s_cmp_lt_u32 {sK}, {lim}"); A(f"s_cselect_b32 s37, {q_}, s37")
        A("s_cmp_eq_u32 s37, 0"); A("s_cbranch_scc1 L_xkd")
        A("s_load_dwordx2 s[6:7], s[0:1], 8")
        A(f"s_mul_i32 {sST}, {sHD}, {ROT}"); A(f"s_lshl_b32 s68, {sS}, 7"); A(f"s_add_u32 {sST}, {sST}, s68")
        A(f"s_lshl_b32 s68, {sHD}, 22")
        A(f"v_and_b32 v{vPB}, 60, v{vLANE}")
        A(f"v_and_b32 v{vT}, 15, v{vLANE}"); A(f"v_lshlrev_b32 v{vT}, 4, v{vT}")
        A("s_waitcnt lgkmcnt(0)")
        A("s_add_u32 s40, s6, s68"); A("s_addc_u32 s41, s7, 0"); A("s_mov_b32 s42, 0x400000"); A("s_mov_b32 s43, 0x20000")
        lds_wait(L_QF, 1, slow=True)
        A(f"ds_read_b128 {v4(vQ)}, v{vT} offset:{L_Q}")
        A.label("L_xk")
        req(L_KT)
        A("s_waitcnt lgkmcnt(0)")
        A(f"v_readfirstlane_b32 {sTK}, v{vTKT}")
        A(f"s_cmp_ge_u32 {sTK}, 128"); A("s_cbranch_scc1 L_xkd")
        tile_addr(sTK, sST)
        load(SK, 0)
        A(f"s_lshl_b32 s68, {sTK}, 6"); A(f"v_add_u32 v{vE_}, s68, v{vPB}")
        A("s_waitcnt vmcnt(0)")
        qk(0, vE_, L_P)
        A("s_sub_u32 s37, s37, 1"); A("s_cmp_lg_u32 s37, 0"); A("s_cbranch_scc1 L_xk")
        A.label("L_xkd")
        A("s_waitcnt lgkmcnt(0)")
        A("s_mov_b64 exec, 1"); A(f"ds_add_u32 v{vZERO}, v{vONE} offset:{L_KD}"); A("s_mov_b64 exec, -1")
        A("s_waitcnt lgkmcnt(0)")
    if KAP:
        A("s_load_dwordx2 s[6:7], s[0:1], 16")
        A(f"s_mul_i32 {sST}, {sHD}, {ROT}"); A(f"s_lshl_b32 s68, {sS}, 7"); A(f"s_add_u32 {sST}, {sST}, s68")
        A(f"s_lshl_b32 s68, {sHD}, 22")
        A(f"v_and_b32 v{vPB}, 60, v{vLANE}")
        for r in range(4): A(f"v_mov_b32 v{vACC+r}, 0")
        A("s_waitcnt lgkmcnt(0)")
        A("s_add_u32 s44, s6, s68"); A("s_addc_u32 s45, s7, 0"); A("s_mov_b32 s46, 0x400000"); A("s_mov_b32 s47, 0x20000")
        lds_wait(L_N6, 1, slow=True)
        A("s_waitcnt lgkmcnt(0)")
        A(f"v_readfirstlane_b32 s37, v{vBAD}")
        A.label("L_xv")
        A("s_cmp_le_u32 s37, 1"); A("s_cbranch_scc1 L_xvd")
        req(L_VT)
        A("s_waitcnt lgkmcnt(0)")
        A(f"v_readfirstlane_b32 {sTK}, v{vTKT}")
        A(f"s_cmp_ge_u32 {sTK}, {NS}"); A("s_cbranch_scc1 L_xvd")
        tile_addr(sTK, sST)
        load(SV, 0)
        A(f"s_lshl_b32 s68, {sTK}, 6"); A(f"v_add_u32 v{vE_}, s68, v{vPB}")
        A(f"ds_read_b32 v{vE_}, v{vE_} offset:{L_P}")
        A("s_waitcnt lgkmcnt(0)")
        build(vE_)
        A("s_waitcnt vmcnt(0)")
        mm(0)
        A("s_sub_u32 s37, s37, 1"); A("s_branch L_xv")
        A.label("L_xvd")
        A(f"v_lshrrev_b32 v{vT}, 1, v{vNAT}")
        A(f"ds_write_b64 v{vT}, {v2(vACC)} offset:{L_PART + 512*NL}")
        A("s_waitcnt lgkmcnt(0)")
    A("s_branch L_join")

    A.label("L_ctrl0")
    A("s_setprio 3")
    A(f"v_mov_b32 v{vT+4}, {KT0}"); A(f"v_mov_b32 v{vT+5}, {VT0}"); A(f"v_mov_b32 v{vT+6}, 0"); A(f"v_mov_b32 v{vT+7}, 0")
    A(f"ds_write_b128 v{vZERO}, {v4(vT+4)} offset:{L_KT}")
    A(f"ds_write_b64 v{vZERO}, {v2(vT+6)} offset:{L_KD}"); A(f"ds_write_b64 v{vZERO}, {v2(vT+6)} offset:{L_MF}")
    A("s_waitcnt lgkmcnt(0)")
    A("s_barrier")
    if abl & 2:
        common_setup()
        A(f"s_lshl_b32 s68, {sHD}, 8"); A(f"s_add_u32 s68, s68, {WS_CNT}")
        A("s_mov_b64 exec, 1"); A(f"buffer_store_dword v{vZERO}, v{vZERO}, {SWS}, s68 offen sc1"); A("s_mov_b64 exec, -1")
        A(f"v_lshlrev_b32 v{vT}, 2, v{vLANE}"); A(f"v_mov_b32 v{vT+1}, 0x3f803f80"); A(f"ds_write_b32 v{vT}, v{vT+1} offset:{L_Q}"); A("s_waitcnt lgkmcnt(0)")
        A(f"ds_write_b32 v{vZERO}, v{vONE} offset:{L_QF}")
        A("s_branch L_ctrl_w"); A.label("L_abl2")
    A("s_mov_b32 s39, 0")
    A(f"s_cmp_ge_u32 {sK}, 24"); A("s_cbranch_scc1 L_ctrl_q")
    A(f"s_sub_u32 s38, {sK}, 17"); A("s_cmp_ge_u32 s38, 5"); A("s_cbranch_scc1 L_ctrl_none")
    A("s_lshl_b32 s38, s38, 3"); A(f"s_add_u32 s38, s38, {sG}")
    A("s_lshl_b32 s6, s38, 10"); A(f"s_add_u32 s6, s6, {WS_MODP}")
    A("s_and_b32 s39, s38, 3"); A("s_lshr_b32 s38, s38, 2")
    mod_loads("s38", "s39")
    common_setup()
    mod_compute()
    publish(vACC, vNAT, "s6")
    stamp(1)
    A("s_branch L_hop2")
    A.label("L_ctrl_none")
    if cearly and cstart and not abl: tail_loads(True)
    common_setup()
    A("s_branch L_hop2")
    A.label("L_ctrl_q")
    WQ = RING + 64
    XA = RING
    X0, X1 = 24, 25
    A(f"s_and_b32 s38, {sK}, 3"); A("s_lshl_b32 s38, s38, 3"); A(f"s_add_u32 s38, s38, {sG}")
    A(f"s_bfe_u32 s37, {sK}, 0x10002"); A("s_mul_i32 s68, s37, 3"); A("s_add_u32 s39, s39, s68")
    srd(SB, "s4", "s5", 1280); srd(SA, "s10", "s11", 640*8192)
    A(f"v_lshlrev_b32 v{vT+2}, 2, v{vLANE}")
    for k in range(5): A(f"buffer_load_dword v{XA+2*k+1}, v{vT+2}, {SB}, 0 offen offset:{k*256}")
    A("s_lshl_b32 s68, s39, 8")
    A(f"buffer_load_dword v{X1}, v{vT+2}, {SB}, s68 offen")
    A(f"v_lshrrev_b32 v{vT}, 4, v{vLANE}"); A(f"v_lshlrev_b32 v{vT}, 18, v{vT}")
    A(f"v_and_b32 v{vT+1}, 15, v{vLANE}"); A(f"v_lshl_add_u32 v{vT+3}, v{vT+1}, 4, v{vT}")
    A("s_lshl_b32 s69, s39, 20"); A("s_lshl_b32 s68, s38, 8"); A("s_add_u32 s69, s69, s68")
    for n in range(32):
        u, j = n // 16, n % 16
        A(f"s_add_u32 s68, s69, {(2*j+u)*8192}")
        A(f"buffer_load_dwordx4 {v4(WQ+4*n)}, v{vT+3}, {SA}, s68 offen {pol}")
    common_setup()
    A("s_lshl_b32 s68, s38, 8"); A(f"s_add_u32 s68, s68, {WS_CNT}")
    A("s_cmp_lg_u32 s39, 0"); A("s_cbranch_scc1 L_nocnt")
    A("s_mov_b64 exec, 1")
    A(f"buffer_store_dword v{vZERO}, v{vZERO}, {SWS}, s68 offen sc1")
    A("s_mov_b64 exec, -1")
    A("s_waitcnt vmcnt(33)")
    A("s_branch L_cntj")
    A.label("L_nocnt")
    A("s_waitcnt vmcnt(32)")
    A.label("L_cntj")
    for k in range(5):
        A(f"v_lshlrev_b32 v{XA+2*k}, 16, v{XA+2*k+1}"); A(f"v_and_b32 v{XA+2*k+1}, 0xffff0000, v{XA+2*k+1}")
    A(f"v_lshlrev_b32 v{X0}, 16, v{X1}"); A(f"v_and_b32 v{X1}, 0xffff0000, v{X1}")
    t = vT + 8; a = XA
    A(f"v_add_f32 v{t}, v{a}, v{a+1}")
    for i in range(2, 10): A(f"v_add_f32 v{t}, v{t}, v{a+i}")
    wave_red("v_add_f32", t, t+1)
    A(f"v_mul_f32 v{t}, {fh(1.0/640)}, v{t}")
    for i in range(10): A(f"v_sub_f32 v{a+i}, v{a+i}, v{t}")
    A(f"v_mul_f32 v{t+2}, v{a}, v{a}")
    for i in range(1, 10): A(f"v_fmac_f32 v{t+2}, v{a+i}, v{a+i}")
    wave_red("v_add_f32", t+2, t+1)
    A(f"v_mul_f32 v{t+2}, {fh(1.0/640)}, v{t+2}")
    rbf2(t, t+2)
    A(f"v_add_f32 v{t+2}, {fh(1e-5)}, v{t+2}"); rbf(t+2, t+2)
    A(f"v_sqrt_f32 v{t+2}, v{t+2}"); rbf(t+2, t+2)
    A(f"v_rcp_f32 v{t+2}, v{t+2}")
    A(f"v_sub_f32 v{X0}, v{X0}, v{t}"); A(f"v_sub_f32 v{X1}, v{X1}, v{t}"); rbf2(X0, X1)
    A(f"v_mul_f32 v{X0}, v{X0}, v{t+2}"); A(f"v_mul_f32 v{X1}, v{X1}, v{t+2}"); rbf2(X0, X1)
    A("s_lshl_b32 s6, s39, 12"); A(f"s_add_u32 s6, s6, {WS_MODP}"); A(f"s_add_u32 s7, s6, {5*4096}")
    stamp(1)
    spre("s6", [(n // 4)*5*4096 + (n % 4)*1024 for n in range(8)])
    poll([(vLANE16, f"s{6+n//4}", (n % 4)*1024, None) for n in range(8)], RING)
    stamp(2)
    sum2([RING+4*n for n in range(4)]); sum2([RING+16+4*n for n in range(4)])
    rbf2(RING, RING+1); rbf2(RING+16, RING+17)
    c0, c1, s0, s1 = RING+16, RING+17, RING, RING+1
    A(f"v_add_f32 v{c0}, 1.0, v{c0}"); A(f"v_add_f32 v{c1}, 1.0, v{c1}"); rbf2(c0, c1)
    A(f"v_mul_f32 v{X0}, v{X0}, v{c0}"); A(f"v_mul_f32 v{X1}, v{X1}, v{c1}"); rbf2(X0, X1)
    A(f"v_add_f32 v{X0}, v{X0}, v{s0}"); A(f"v_add_f32 v{X1}, v{X1}, v{s1}")
    A(f"v_cvt_pk_bf16_f32 v{X0}, v{X0}, v{X0}"); A(f"v_cvt_pk_bf16_f32 v{X1}, v{X1}, v{X1}")
    gemv(vACC, vM2, [((X0, X1)[n // 16], f"row_newbcast:{n % 16}", WQ + 4*n, None) for n in range(32)])
    A(f"v_lshlrev_b32 v{vT}, 3, v{vLANE}")
    A(f"s_cmp_eq_u32 {sWAVE}, 0"); A("s_cbranch_scc1 L_qsum")
    A(f"s_lshl_b32 s68, {sWAVE}, 9"); A(f"v_add_u32 v{vT}, s68, v{vT}")
    A(f"ds_write_b64 v{vT}, {v2(vACC)} offset:{L_ACC - 6*512}")
    A("s_waitcnt lgkmcnt(0)")
    A("s_mov_b64 exec, 1"); A(f"ds_add_u32 v{vZERO}, v{vONE} offset:{L_MF}"); A("s_mov_b64 exec, -1")
    A("s_setprio 0")
    A(f"s_cmp_eq_u32 {sWAVE}, 7"); A("s_cbranch_scc1 L_soft")
    A("s_branch L_help7")
    A.label("L_qsum")
    lds_wait(L_MF, 2)
    A(f"ds_read_b64 {v2(RING)}, v{vT} offset:{L_ACC}"); A(f"ds_read_b64 {v2(RING+2)}, v{vT} offset:{L_ACC+512}")
    A("s_lshl_b32 s68, s38, 1"); A("s_add_u32 s68, s68, s37"); A("s_lshl_b32 s68, s68, 10"); A(f"s_add_u32 s68, s68, {WS_QP}")
    A("s_waitcnt lgkmcnt(0)")
    A(f"v_pk_add_f32 {v2(vACC)}, {v2(vACC)}, {v2(RING)}"); A(f"v_pk_add_f32 {v2(vACC)}, {v2(vACC)}, {v2(RING+2)}")
    publish(vACC, vNAT, "s68")
    A.label("L_hop2")
    stamp(3)
    A(f"s_lshl_b32 s6, {sHD}, 11"); A(f"s_add_u32 s6, s6, {WS_QP}")
    spre("s6", [n*1024 for n in range(2)])
    poll([(vLANE16, "s6", n*1024, None) for n in range(2)], RING)
    sum2([RING+4*n for n in range(2)])
    A(f"v_cvt_pk_bf16_f32 v{RING}, v{RING}, v{RING+1}")
    A(f"v_lshlrev_b32 v{vT}, 2, v{vLANE}")
    A(f"ds_write_b32 v{vT}, v{RING} offset:{L_Q}")
    A("s_waitcnt lgkmcnt(0)")
    A(f"ds_write_b32 v{vZERO}, v{vONE} offset:{L_QF}")
    stamp(4)
    A("s_setprio 0")
    A.label("L_ctrl_w")
    if abl: A("s_barrier"); A("s_endpgm"); A.label("L_abl_dead2")
    if cearly and not cstart: tail_loads(True)
    A(f"s_lshl_b32 s8, {sHD}, 3"); A(f"s_add_u32 s8, s8, {sS}"); A("s_lshl_b32 s8, s8, 10"); A(f"s_add_u32 s8, s8, {WS_OP}")
    A(f"v_lshlrev_b32 v{vT}, 3, v{vLANE}"); A(f"v_mov_b32 v{TMP+3}, {sTAG}")
    A("s_waitcnt vmcnt(0) lgkmcnt(0)")
    stamp(5)
    A("s_barrier")
    stamp(6)
    NPART = NL + (1 if KAP else 0)
    for w in range(NPART): A(f"ds_read_b64 {v2(RING+2*w)}, v{vT} offset:{L_PART+512*w}")
    A("s_waitcnt lgkmcnt(0)")
    sum2([RING+2*w for w in range(NPART)], TMP)
    A(f"buffer_store_dwordx4 {v4(TMP)}, v{vLANE16}, {SWS}, s8 offen sc1")
    stamp(13)
    A("s_branch L_tail" if cearly else "s_branch L_tail0")
    A.label("L_end")
    A("s_endpgm")
    A('.section .rodata,"a"'); A(".p2align 6"); A(f".amdhsa_kernel {KN}")
    A(".amdhsa_next_free_vgpr 256"); A(".amdhsa_next_free_sgpr 100"); A(".amdhsa_accum_offset 256")
    A(".amdhsa_group_segment_fixed_size 0"); A(".amdhsa_kernarg_size 112"); A(".amdhsa_user_sgpr_count 2")
    A(".amdhsa_user_sgpr_kernarg_segment_ptr 1"); A(".amdhsa_system_sgpr_workgroup_id_x 1")
    A(".amdhsa_float_denorm_mode_32 3")
    A(".end_amdhsa_kernel")
    return A.finalize()

def check_inter(w, inter):
    import numpy as np
    def cmp(name, got, exp):
        err = np.abs(got - exp).max(); rel = np.linalg.norm(got - exp) / np.linalg.norm(exp)
        print("   inter %-5s maxabs %.4e (scale %.3e) relL2 %.3e nan=%d" % (name, err, np.abs(exp).max(), rel, int(np.isnan(got).sum())), got[:4], exp[:4])
    def bf(x):
        u = x.astype(np.float32).view(np.uint32); u = (u + 0x7fff + ((u >> 16) & 1)) & 0xffff0000
        return u.view(np.float32)
    gr = lambda off, n: w[off // 4: off // 4 + n*4].reshape(n, 4)
    md = np.concatenate([gr(WS_MODP, 10*4*64)[:, :2].reshape(10, 4, 128).sum(1).reshape(-1), gr(WS_MR, 2*1280)[:, :2].reshape(2, 2560).sum(0)])
    cmp("mod", md, inter["mod"]); print("      mod bf16 mismatches", int((bf(md) != inter["mod"]).sum()))
    q = gr(WS_QP, 32*2*64)[:, :2].reshape(32, 2, 128).sum(1).reshape(-1)
    cmp("q", q, inter["q"]); print("      q bf16 mismatches", int((bf(q) != inter["q"]).sum()))
    o = gr(WS_OP, 32*8*64)[:, :2].reshape(32, 8, 128).sum(1).reshape(-1)
    cmp("o", o, inter["o"]); print("      o bf16 mismatches", int((bf(o) != inter["o"]).sum()))
    yp = w[WS_YP // 4: WS_YP // 4 + 8*640].view(np.uint32).reshape(8, 320, 2)[:, :, 0]
    ya = np.stack([(yp << 16).view(np.float32), (yp & 0xffff0000).view(np.float32)], axis=-1).reshape(8, 640)
    cmp("at", ya.sum(0), inter["at"])
    cmp("dn", gr(WS_DP, 54*320)[:, :2].reshape(54, 640).sum(0), inter["dn"])

if __name__ == "__main__":
    out = sys.argv[1]
    kw = {}
    for a in sys.argv[2:]:
        k, v = a.split("=")
        kw[k] = eval(v)
    open(out, "w").write(gen(**kw))
```

```python
import sys, struct
from asmdsl import Asm
KN = "adaLN_cond__gqa_block_cached__swiglu_ffn__decode_kernel"

def f2u(x): return struct.unpack("<I", struct.pack("<f", x))[0]
def fh(x): return hex(f2u(x))
LOG2E = 1.4426950408889634
SCALE = 128 ** -0.5

WS_MODP = 0x1000
WS_QP   = WS_MODP + 10*4*1024
WS_SP   = WS_QP + 32*2*1024
WS_OP   = WS_SP + 32*8*1024
WS_YP   = WS_OP + 32*8*1024
WS_DP   = WS_YP + 8*8*2560
WS_MR   = WS_DP + 54*5120
WS_CNT  = WS_MR + 2*20480
WS_END  = WS_CNT + 32*256
WS_STAMP = 0x10000000
L_KT, L_VT, L_QF, L_PF, L_KD, L_RANK, L_MF, L_N6, L_LAM = 0, 4, 8, 12, 16, 20, 24, 28, 32
L_Q = 0x100
L_ST = 0x200
L_PART = 0x400
L_ACC = 0x1000
L_X2 = 0x2000
L_P = 0x3000
L_MOD = 0x5000
L_END = 0x7800
DPPF = "row_mask:0xf bank_mask:0xf"

def gen(stamps=0, pol="nt", NK=12, NV=10, NS=120, NL=5, SLP=16, wake=False, KAP=26, LAG0=20, CAP=20, SLK=4, psl=0, ROT=304, abl=0, PFTH=1, LTH=63, cearly=True, CTH=63, QK=(0, 8, 4, 3, 0, 10, 6), cstart=True, DNP=1, wbar=False, EW=(), NR=4, TW=0, TWD=4, now=0, pf=True, pf2=True, Q_wo=999, Q_ffn=999):
    NP = 8 * (128 - NS); Q_wo = min(Q_wo, NP); Q_ffn = min(Q_ffn, NP)
    A = Asm()
    uid = [0]
    def U(p):
        uid[0] += 1; return f"L_{p}_{uid[0]}"
    sWAVE, sHD, sS, sTAG, sK, sG = "s3", "s32", "s33", "s34", "s35", "s36"
    SK, SV, SWS, SA, SB = "s[40:43]", "s[44:47]", "s[48:51]", "s[52:55]", "s[56:59]"
    sTP, sST, sL2E, sSC, sTO, sF, sTK = "s60", "s61", "s62", "s63", "s64", "s65", "s66"
    sROT, sQ, SCNT = "s37", "s29", "s[38:39]"
    def stamp(k):
        if stamps: A(f"s_memrealtime s[{70+2*k}:{71+2*k}]")
    def stamp_dump(slots, xcc=False, final=True):
        if not stamps: return
        A("s_waitcnt lgkmcnt(0)")
        A("s_mov_b64 exec, 1")
        A(f"s_lshl_b32 s69, s2, 7"); A(f"s_add_u32 s69, s69, {WS_STAMP}")
        A("s_mov_b32 s50, 0x20000000")
        for k in slots:
            A(f"v_mov_b32 v{vT+10}, s{70+2*k}"); A(f"v_mov_b32 v{vT+11}, s{71+2*k}")
            A(f"buffer_store_dwordx2 v[{vT+10}:{vT+11}], v{vZERO}, {SWS}, s69 offen offset:{k*8}")
            A("s_nop 1")
        if xcc:
            A("s_getreg_b32 s68, hwreg(HW_REG_XCC_ID)")
            A(f"v_mov_b32 v{vT+10}, s68"); A(f"v_mov_b32 v{vT+11}, 0")
            A(f"buffer_store_dwordx2 v[{vT+10}:{vT+11}], v{vZERO}, {SWS}, s69 offen offset:120")
        if not final: A("s_mov_b64 exec, -1")
    def srd(S, lo, hi, n):
        b = int(S[2:S.index(":")])
        A(f"s_mov_b32 s{b}, {lo}"); A(f"s_mov_b32 s{b+1}, {hi}"); A(f"s_mov_b32 s{b+2}, {n}"); A(f"s_mov_b32 s{b+3}, 0x20000")
    def v4(b): return f"v[{b}:{b+3}]"
    def v2(b): return f"v[{b}:{b+1}]"
    def dpp_red(op, vs, ctls):
        for ctl in ctls:
            for v in vs: A(f"{op}_dpp v{v}, v{v}, v{v} {ctl}")
    QUAD = [f"quad_perm:[1,0,3,2] {DPPF}", f"quad_perm:[2,3,0,1] {DPPF}"]
    BANK = [f"row_ror:4 {DPPF}", f"row_ror:8 {DPPF}"]
    BCAST = ["row_bcast:15 row_mask:0xa bank_mask:0xf", "row_bcast:31 row_mask:0xc bank_mask:0xf"]
    def xrow(op, v, t, which):
        A(f"v_mov_b32 v{t}, v{v}"); A(f"v_permlane{which}_swap_b32 v{v}, v{t}"); A(f"{op} v{v}, v{v}, v{t}")
    def wave_red(op, v, t):
        dpp_red(op, [v], QUAD + BANK); xrow(op, v, t, 16); xrow(op, v, t, 32)
    def rbf(d, s):
        A(f"v_cvt_pk_bf16_f32 v{d}, v{s}, v{s}"); A(f"v_and_b32 v{d}, 0xffff0000, v{d}")
    def rbf2(a, b):
        A(f"v_cvt_pk_bf16_f32 v{b}, v{a}, v{b}"); A(f"v_lshlrev_b32 v{a}, 16, v{b}"); A(f"v_and_b32 v{b}, 0xffff0000, v{b}")
    vLANE16, vZERO, vONE, vTKT, vADDR, vPB, vPW, vL = 1, 2, 3, 4, 5, 6, 7, 8
    vLANE, vNAT, vBAD = 9, 10, 11
    vQ, vM2, vACC = 12, 16, 20
    vR, vA_, vB_, vC_, vE_ = 24, 28, 29, 30, 31
    vAOP = 32
    vT = 48
    vM1 = 60
    RING = 64
    WT = RING + 48
    WD = WT + 80
    WD2 = WD + 32
    TMP = RING + 32
    ACC2 = RING + 40
    PF = RING + 44
    def publish(b, voff, soff):
        A(f"v_mov_b32 v{b+3}, {sTAG}")
        A(f"buffer_store_dwordx4 {v4(b)}, v{voff}, {SWS}, {soff} offen sc1")
    def poll(loads, base, tags=(3,), extra=None, nextra=0):
        n = len(loads)
        dst = base if isinstance(base, list) else [base + 4*i for i in range(n)]
        L = U("poll"); Ld = U("pdone")
        def one(k):
            for idx, (vo, so, imm, em) in enumerate(loads):
                if em is not None: A(f"s_mov_b64 exec, {em}")
                A(f"buffer_load_dwordx4 {v4(dst[idx])}, v{vo}, {SWS}, {so} offen offset:{imm} sc1")
                if em is not None: A("s_mov_b64 exec, -1")
            if k: extra()
            first = True
            for idx in range(n):
                d = dst[idx]
                A(f"s_waitcnt vmcnt({k + n-1-idx})")
                for tp in tags:
                    if first: A(f"v_xor_b32 v{vBAD}, {sTAG}, v{d+tp}"); first = False
                    else: A(f"v_bitop3_b32 v{vBAD}, v{vBAD}, v{d+tp}, {sTAG} bitop3:0xf6")
            A(f"v_cmp_ne_u32 vcc, 0, v{vBAD}")
            A(f"s_cbranch_vccz {Ld}")
        if extra: one(nextra)
        A(f"s_mov_b32 {sTO}, 0x40000")
        A.label(L)
        one(0)
        A(f"s_sub_u32 {sTO}, {sTO}, 1")
        A(f"s_cmp_lg_u32 {sTO}, 0")
        A(f"s_cbranch_scc1 {L}")
        A.label(Ld)
    def spre(sbase, offs, sl=None):
        R = [40, 41, 42, 43, 44, 45, 46, 47, 14, 15, 28, 29, 60, 61, 66, 67]
        L = U("spoll"); Ld = U("spd")
        A(f"s_add_u32 s68, s30, {sbase}"); A("s_addc_u32 s69, s31, 0")
        A(f"s_mov_b32 {sTO}, 0x40000")
        A.label(L)
        sl = psl if sl is None else sl
        if sl: A(f"s_sleep {sl}")
        for i, o in enumerate(offs): A(f"s_load_dword s{R[i]}, s[68:69], {o + 1020} glc")
        A(f"s_sub_u32 {sTO}, {sTO}, 1"); A(f"s_cmp_eq_u32 {sTO}, 0"); A(f"s_cbranch_scc1 {Ld}")
        A("s_waitcnt lgkmcnt(0)")
        for i, o in enumerate(offs):
            A(f"s_cmp_lg_u32 s{R[i]}, {sTAG}"); A(f"s_cbranch_scc1 {L}")
        A.label(Ld)
        A("s_waitcnt lgkmcnt(0)")
    def lds_wait(off, val, slow=False, slp=None):
        L = U("lw"); Ld = U("lwd")
        A(f"s_mov_b32 {sTO}, 0x400000")
        A.label(L)
        if slow: A(f"s_sleep {SLP if slp is None else slp}")
        A(f"ds_read_b32 v{vBAD}, v{vZERO} offset:{off}")
        A(f"s_sub_u32 {sTO}, {sTO}, 1"); A(f"s_cmp_eq_u32 {sTO}, 0"); A(f"s_cbranch_scc1 {Ld}")
        A("s_waitcnt lgkmcnt(0)")
        A(f"v_cmp_gt_u32 vcc, {val}, v{vBAD}")
        A(f"s_cbranch_vccnz {L}")
        A.label(Ld)
    def sum2(bases, dst=None):
        bs = list(bases)
        while len(bs) > 1:
            nb = []
            for i in range(0, len(bs) - 1, 2):
                d = dst if (dst is not None and len(bs) == 2) else bs[i]
                A(f"v_pk_add_f32 {v2(d)}, {v2(bs[i])}, {v2(bs[i+1])}"); nb.append(d)
            if len(bs) % 2: nb.append(bs[-1])
            bs = nb
    def gemv(acc, mask, items, acc2=None, w2=None, keep=False):
        def mf(n):
            (x0, c0, w0, wc0) = items[n]
            if wc0 is not None: A(f"s_waitcnt vmcnt({wc0})")
            A(f"v_mfma_f32_16x16x32_bf16 {v4(acc)}, {v4(vAOP + 4*(n % 4))}, {v4(w0)}, {'0' if (n == 0 and not keep) else v4(acc)}")
            if acc2 is not None:
                A(f"v_mfma_f32_16x16x32_bf16 {v4(acc2)}, {v4(vAOP + 4*(n % 4))}, {v4(w2+4*n)}, {'0' if n == 0 else v4(acc2)}")
        for n, (x, ctl, w, wc) in enumerate(items):
            a = vAOP + 4 * (n % 4)
            for t in range(4): A(f"v_and_b32_dpp v{a+t}, v{x}, v{mask+t} {ctl} {DPPF}")
            if n >= 1: mf(n-1)
        mf(len(items) - 1)
    def ysplit(xs, y):
        for i, x in enumerate(xs): A(f"v_mov_b32 v{y+2*i}, v{x}"); A(f"v_mov_b32 v{y+2*i+1}, v{x}")
        for i, x in enumerate(xs):
            A(f"v_mov_b32_dpp v{y+2*i}, v{x} row_shr:4 row_mask:0xf bank_mask:0xa")
            A(f"v_mov_b32_dpp v{y+2*i+1}, v{x} row_shl:4 row_mask:0xf bank_mask:0x5")
    qp = lambda k: f"quad_perm:[{k},{k},{k},{k}]"
    def silu(x, t):
        A(f"v_mul_f32 v{t}, {fh(-LOG2E)}, v{x}"); A(f"v_exp_f32 v{t}, v{t}")
        A(f"v_add_f32 v{t}, 1.0, v{t}"); A(f"v_rcp_f32 v{t}, v{t}"); A(f"v_mul_f32 v{x}, v{x}, v{t}")
    def acc_addr(d):
        A(f"v_and_b32 v{d}, 7, v{vLANE}"); A(f"v_lshlrev_b32 v{d}, 5, v{d}")
        A(f"v_and_b32 v{vT+11}, 16, v{vLANE}"); A(f"v_add_u32 v{d}, v{d}, v{vT+11}")
        A(f"v_lshrrev_b32 v{vT+11}, 5, v{vLANE}"); A(f"v_lshl_add_u32 v{d}, v{vT+11}, 8, v{d}")
        A(f"s_lshl_b32 s68, {sWAVE}, 9"); A(f"v_add_u32 v{d}, s68, v{d}")
    def acc_write(d):
        A("s_mov_b32 exec_lo, 0x00ff00ff"); A("s_mov_b32 exec_hi, 0xff00ff00")
        A(f"ds_write_b128 v{d}, {v4(vACC)} offset:{L_ACC}")
        A("s_mov_b64 exec, -1")
    def mod_loads(scb, srb):
        wb = RING
        srd(SA, "s24", "s25", 640*7680); srd(SB, "s22", "s23", 1280)
        A(f"v_lshrrev_b32 v{vT}, 4, v{vLANE}"); A(f"v_mul_u32_u24 v{vT}, 40, v{vT}")
        A(f"v_and_b32 v{vT+1}, 15, v{vLANE}"); A(f"v_add_u32 v{vT+2}, v{vT}, v{vT+1}"); A(f"v_lshlrev_b32 v{vT+2}, 1, v{vT+2}")
        A(f"v_and_b32 v{vT+3}, 7, v{vLANE}"); A(f"v_add_u32 v{vT+3}, v{vT}, v{vT+3}"); A(f"v_lshlrev_b32 v{vT+3}, 1, v{vT+3}")
        A(f"s_mul_i32 s69, {srb}, 320")
        A(f"buffer_load_ushort v{vR}, v{vT+2}, {SB}, s69 offen")
        A(f"buffer_load_ushort v{vR+1}, v{vT+2}, {SB}, s69 offen offset:32")
        A(f"buffer_load_ushort v{vR+2}, v{vT+3}, {SB}, s69 offen offset:64")
        A(f"v_mul_u32_u24 v{vT}, 7680, v{vT}"); A(f"v_lshl_add_u32 v{vT}, v{vT+1}, 4, v{vT}")
        A(f"s_mul_i32 s69, {srb}, {160*7680}"); A(f"s_lshl_b32 s68, {scb}, 8"); A("s_add_u32 s68, s69, s68")
        for t in range(40):
            A(f"buffer_load_dwordx4 {v4(wb+4*t)}, v{vT}, {SA}, s68 offen {pol}")
            if t < 39: A("s_add_u32 s68, s68, 7680")
    def mod_compute():
        wb = RING
        A("s_waitcnt vmcnt(40)")
        for k in range(3):
            A(f"v_lshlrev_b32 v{vR+k}, 16, v{vR+k}"); silu(vR+k, vR+3); A(f"v_cvt_pk_bf16_f32 v{vR+k}, v{vR+k}, v{vR+k}")
        gemv(vACC, vM2, [(vR + t // 16, f"row_newbcast:{t % 16}", wb+4*t, 39-t) for t in range(40)])
    def common_setup():
        A(f"s_load_dword {sTAG}, s[30:31], 0")
        srd(SWS, "s30", "s31", WS_END)
        A(f"v_and_b32 v{vT}, 1, v{vLANE}"); A(f"v_lshlrev_b32 v{vT}, 4, v{vT}"); A(f"v_mov_b32 v{vT+1}, 0xffff"); A(f"v_lshlrev_b32 v{vT}, v{vT}, v{vT+1}")
        A(f"v_bfe_u32 v{vT+1}, v{vLANE}, 1, 2")
        A(f"v_bfe_u32 v{vT+2}, v{vLANE}, 1, 3")
        for t in range(4):
            A(f"v_cmp_eq_u32 vcc, {t}, v{vT+1}"); A(f"v_cndmask_b32 v{vM1+t}, 0, v{vT}, vcc")
            A(f"v_cmp_eq_u32 vcc, {2*t}, v{vT+2}"); A(f"v_cndmask_b32 v{vM2+t}, 0, v{vT}, vcc")
        A(f"v_and_b32 v{vT}, 15, v{vLANE}"); A(f"v_lshlrev_b32 v{vT}, 6, v{vT}"); A(f"v_and_b32 v{vT+1}, 48, v{vLANE}"); A(f"v_add_u32 v{vNAT}, v{vT}, v{vT+1}")
        A("s_waitcnt lgkmcnt(0)")
        A(f"s_add_u32 {sTAG}, {sTAG}, 0x01010101")
    def gu_loads(Ld, LTH, sWAVE=sWAVE):
        vT = vAOP
        if Ld:
            A(f"s_cmp_ge_u32 {sF}, 54"); A(f"s_cbranch_scc1 {Ld}")
            A(f"s_cmp_gt_u32 {sWAVE}, 3"); A(f"s_cbranch_scc1 {Ld}")
        A(f"v_and_b32 v{vT+2}, 4, v{vLANE}"); A(f"v_cmp_eq_u32 vcc, 0, v{vT+2}")
        A(f"v_mov_b32 v{vT+2}, s18"); A(f"v_mov_b32 v{vT+3}, s16"); A(f"v_cndmask_b32 v{vT+6}, v{vT+2}, v{vT+3}, vcc")
        A(f"v_mov_b32 v{vT+2}, s19"); A(f"v_mov_b32 v{vT+3}, s17"); A(f"v_cndmask_b32 v{vT+7}, v{vT+2}, v{vT+3}, vcc")
        A(f"s_mul_i32 s69, {sWAVE}, {160*3456}"); A(f"s_lshl_b32 s68, {sF}, 6"); A("s_add_u32 s69, s69, s68")
        A(f"v_and_b32 v{vT+4}, 3, v{vLANE}"); A(f"v_lshl_add_u32 v{vT+4}, v{vT+4}, 4, s69")
        A(f"v_lshrrev_b32 v{vT+5}, 3, v{vLANE}")
        for (mul, add, rows) in ((16*3456, 0, [(k, y) for k in range(4) for y in range(4)]), (4*3456, 128*3456, [(k, 4) for k in range(4)])):
            A(f"v_mul_u32_u24 v{vT+1}, {mul}, v{vT+5}"); A(f"v_add_u32 v{vT+1}, v{vT+1}, v{vT+4}")
            if add: A(f"v_add_u32 v{vT+1}, {add}, v{vT+1}")
            A(f"v_add_co_u32 v{vT+2}, vcc, v{vT+6}, v{vT+1}"); A(f"v_addc_co_u32 v{vT+3}, vcc, 0, v{vT+7}, vcc")
            for i, (k, y) in enumerate(rows):
                A(f"global_load_dwordx4 {v4(WT+4*(y*4+k))}, {v2(vT+2)}, off offset:{(i%2)*3456}")
                if LTH < 63: A(f"s_waitcnt vmcnt({LTH})")
                if i % 2 == 1 and i < len(rows) - 1:
                    A(f"v_add_co_u32 v{vT+2}, vcc, {2*3456}, v{vT+2}"); A(f"v_addc_co_u32 v{vT+3}, vcc, 0, v{vT+3}, vcc")
    def dn_prep():
        srd(SA, "s20", "s21", 1728*1280)
        A(f"v_lshrrev_b32 v{vT+1}, 4, v{vLANE}"); A(f"v_mul_u32_u24 v{vT+1}, {8*1280}, v{vT+1}")
        A(f"v_and_b32 v{vT+2}, 15, v{vLANE}"); A(f"v_lshl_add_u32 v{vT+1}, v{vT+2}, 4, v{vT+1}")
        A(f"s_mul_i32 s60, {sF}, {32*1280}"); A("s_lshl_b32 s68, s23, 8"); A("s_add_u32 s60, s60, s68")
    def dn_issue(Ld):
        A("s_mov_b32 s69, s60")
        for t in range(8):
            if t % 2 == 0: A(f"s_add_u32 s68, s69, {t*1280}")
            A(f"buffer_load_dwordx4 {v4(WD+4*t)}, v{vT+1}, {SA}, s68 offen offset:{(t%2)*1280}")
        A(f"s_cmp_lg_u32 {sWAVE}, 5"); A(f"s_cbranch_scc1 {Ld}")
        for t in range(8):
            if t % 2 == 0: A(f"s_add_u32 s68, s69, {t*1280}")
            A(f"buffer_load_dwordx4 {v4(WD2+4*t)}, v{vT+1}, {SA}, s68 offen offset:{(t%2)*1280 + 768}")
    def wo_loads():
        srd(SA, "s12", "s13", 4096*1280)
        A(f"v_bfe_u32 v{vT+1}, v{vLANE}, 4, 1"); A(f"v_lshlrev_b32 v{vT+1}, 5, v{vT+1}")
        A(f"v_lshrrev_b32 v{vT+2}, 5, v{vLANE}"); A(f"v_add_u32 v{vT+1}, v{vT+1}, v{vT+2}")
        A(f"v_bfe_u32 v{vT+2}, v{vLANE}, 3, 1"); A(f"v_lshl_add_u32 v{vT+1}, v{vT+2}, 4, v{vT+1}")
        A(f"v_mul_u32_u24 v{vT+1}, 1280, v{vT+1}")
        A(f"v_and_b32 v{vT+2}, 7, v{vLANE}"); A(f"v_lshl_add_u32 v{vT+1}, v{vT+2}, 4, v{vT+1}")
        A(f"s_lshr_b32 s68, {sWAVE}, 1"); A("s_lshl_b32 s68, s68, 3"); A(f"s_add_u32 s68, s68, {sG}"); A("s_lshl_b32 s68, s68, 1")
        A(f"s_and_b32 s69, {sWAVE}, 1"); A("s_add_u32 s68, s68, s69"); A(f"s_mul_i32 s69, s68, {64*1280}")
        A(f"s_lshl_b32 s68, {sK}, 7"); A("s_add_u32 s69, s69, s68")
        for n in range(8):
            if n % 2 == 0: A(f"s_add_u32 s68, s69, {2*n*1280}")
            A(f"buffer_load_dwordx4 {v4(WT+4*n)}, v{vT+1}, {SA}, s68 offen offset:{(n%2)*2560}")
    def tail_loads(dn):
        Lw, Ld = U("lwo"), U("ldone")
        A(f"s_cmp_lt_u32 {sK}, 10"); A(f"s_cbranch_scc1 {Lw}")
        if not (now & 1):
            gu_loads(Ld, CTH if dn else LTH)
        A(f"s_branch {Ld}")
        A.label(Lw)
        if not (now & 2): wo_loads()
        A.label(Ld)

    A(f"; @launch grid=(256,1,1) block=(512,1,1) lds={L_END}")
    A('.amdgcn_target "amdgcn-amd-amdhsa--gfx950"')
    A(".text"); A(f".globl {KN}"); A(".p2align 8"); A(f".type {KN},@function"); A.label(KN)
    stamp(0)
    A("s_cmp_ge_u32 s2, 256"); A("s_cbranch_scc1 L_end")
    A("s_load_dwordx16 s[4:19], s[0:1], 0")
    A("s_load_dwordx8 s[20:27], s[0:1], 64")
    A("s_load_dwordx4 s[28:31], s[0:1], 96")
    A("v_lshrrev_b32 v1, 6, v0"); A(f"v_and_b32 v{vLANE}, 63, v0")
    A(f"v_readfirstlane_b32 {sWAVE}, v1")
    A(f"v_lshlrev_b32 v{vLANE16}, 4, v{vLANE}")
    A(f"s_lshr_b32 {sHD}, s2, 3"); A(f"s_and_b32 {sG}, s2, 7"); A(f"s_lshl_b32 {sK}, {sG}, 2"); A(f"s_add_u32 {sK}, {sK}, {sHD}"); A(f"s_and_b32 {sK}, {sK}, 31")
    A(f"s_add_u32 {sS}, {sG}, {sHD}"); A(f"s_and_b32 {sS}, {sS}, 7")
    A(f"s_mov_b32 {sL2E}, {fh(LOG2E)}"); A(f"s_mov_b32 {sSC}, {fh(SCALE)}")
    A(f"s_sub_u32 s68, {sK}, 10"); A(f"s_mul_i32 {sF}, {sG}, 7"); A(f"s_add_u32 {sF}, {sF}, s68")
    A("s_cmp_lt_u32 s68, 7"); A(f"s_cselect_b32 {sF}, {sF}, 63")
    A(f"v_mov_b32 v{vZERO}, 0"); A(f"v_mov_b32 v{vONE}, 1")
    A(f"s_cmp_eq_u32 {sWAVE}, 0"); A("s_cbranch_scc1 L_ctrl0")
    A(f"s_cmp_gt_u32 {sWAVE}, {NL}"); A("s_cbranch_scc1 L_help")
    A(f"s_mul_i32 {sROT}, {sHD}, {ROT}"); A(f"s_lshl_b32 {sST}, {sS}, 7"); A(f"s_add_u32 {sST}, {sST}, {sROT}")
    A(f"s_lshl_b32 s68, {sHD}, 22")
    def tile_addr(sreg, add):
        A(f"s_add_u32 s69, {sreg}, {add}")
        if ROT: A("s_and_b32 s69, s69, 1023")
        A("s_lshl_b32 s69, s69, 12")
        A(f"v_add_u32 v{vADDR}, s69, v{vLANE16}")
    A(f"s_add_u32 s67, {sST}, {sWAVE}"); A("s_sub_u32 s67, s67, 1")
    tile_addr("s67", 0)
    if stamps == 6: stamp(2)
    A("s_waitcnt lgkmcnt(0)")
    A("s_add_u32 s40, s6, s68"); A("s_addc_u32 s41, s7, 0"); A("s_mov_b32 s42, 0x400000"); A("s_mov_b32 s43, 0x20000")
    G = lambda i: RING + 16*i
    def load(S, slot):
        for u in range(4): A(f"buffer_load_dwordx4 {v4(G(slot)+4*u)}, v{vADDR}, {S}, 0 offen offset:{u*1024} {pol}")
    load(SK, 0)
    if stamps == 6: stamp(3)
    A("s_add_u32 s44, s8, s68"); A("s_addc_u32 s45, s9, 0"); A("s_mov_b32 s46, 0x400000"); A("s_mov_b32 s47, 0x20000")
    A("s_barrier")
    common_setup()
    A(f"s_lshl_b32 s38, {sHD}, 8"); A(f"s_add_u32 s38, s38, {WS_CNT}"); A("s_add_u32 s38, s38, s30"); A("s_addc_u32 s39, s31, 0")
    A(f"s_mov_b32 {sQ}, {NP}"); A(f"s_cmp_lt_u32 {sF}, 54"); A(f"s_cselect_b32 {sQ}, {Q_ffn}, {sQ}"); A(f"s_cmp_lt_u32 {sK}, 10"); A(f"s_cselect_b32 {sQ}, {Q_wo}, {sQ}")
    A(f"v_and_b32 v{vPB}, 60, v{vLANE}")
    A(f"s_lshl_b32 s68, {sWAVE}, 6"); A("s_sub_u32 s68, s68, 64"); A(f"v_add_u32 v{vPW}, s68, v{vPB}")
    for r in range(4): A(f"v_mov_b32 v{vACC+r}, 0")
    for i in range(1, NK):
        tile_addr("s67", NL*i)
        A("s_waitcnt vmcnt(0)")
        if i == 1 and stamps in (4, 6): stamp(1)
        if i == 2 and stamps == 6: stamp(4)
        if i == 3 and stamps == 6: stamp(5)
        load(SK, i)
    if stamps == 4: stamp(2)
    A(f"v_and_b32 v{vT}, 15, v{vLANE}"); A(f"v_lshlrev_b32 v{vT}, 4, v{vT}")
    lds_wait(L_QF, 1)
    A(f"ds_read_b128 {v4(vQ)}, v{vT} offset:{L_Q}")
    A("s_waitcnt lgkmcnt(0)")
    def req(off):
        A("s_mov_b64 exec, 1"); A(f"ds_add_rtn_u32 v{vTKT}, v{vZERO}, v{vONE} offset:{off}"); A("s_mov_b64 exec, -1")
    def qk(slot, va, off):
        kb = G(slot)
        for t in range(4):
            for u in range(4):
                if t == 0: A(f"v_dot2_f32_bf16 v{vR+u}, v{kb+4*u}, v{vQ}, 0")
                else: A(f"v_dot2c_f32_bf16 v{vR+u}, v{kb+4*u+t}, v{vQ+t}")
        A(f"v_add_f32_dpp v{vA_}, v{vR}, v{vR} row_ror:8 row_mask:0xf bank_mask:0x3")
        A(f"v_add_f32_dpp v{vB_}, v{vR+2}, v{vR+2} row_ror:8 row_mask:0xf bank_mask:0x3")
        A(f"v_add_f32_dpp v{vA_}, v{vR+1}, v{vR+1} row_ror:8 row_mask:0xf bank_mask:0xc")
        A(f"v_add_f32_dpp v{vB_}, v{vR+3}, v{vR+3} row_ror:8 row_mask:0xf bank_mask:0xc")
        A(f"v_add_f32_dpp v{vC_}, v{vA_}, v{vA_} row_shl:4 row_mask:0xf bank_mask:0x5")
        A(f"v_add_f32_dpp v{vC_}, v{vB_}, v{vB_} row_shr:4 row_mask:0xf bank_mask:0xa")
        dpp_red("v_add_f32", [vC_], QUAD)
        rbf(vC_, vC_)
        A(f"v_mul_f32 v{vC_}, {sSC}, v{vC_}")
        rbf(vC_, vC_)
        A(f"ds_write_b32 v{va}, v{vC_} offset:{off}")
    def build(p):
        lane_of = [0, 8, 4, 12]
        for u in range(4):
            for t in range(4): A(f"v_and_b32_dpp v{vAOP+4*u+t}, v{p}, v{vM2+t} row_newbcast:{lane_of[u]} {DPPF}")
    def mm(slot):
        for u in range(4):
            A(f"v_mfma_f32_16x16x32_bf16 {v4(vACC)}, {v4(vAOP+4*u)}, {v4(G(slot)+4*u)}, {v4(vACC)}")
    LA, LB = 0, NK - 1
    qk(0, vPW, L_P)
    todo = list(range(1, NK - 1))
    cur, cur_i, nxt = LB, NK - 1, LA
    step = 0
    while todo:
        i = NK + step
        tile_addr("s67", NL*i)
        A("s_waitcnt vmcnt(0)")
        load(SK, nxt)
        if len(todo) <= 2: req(L_KT)
        qk(cur, vPW, L_P + NL*cur_i*64)
        for b in todo[:2]: qk(b, vPW, L_P + NL*b*64)
        todo = todo[2:]
        cur, nxt, cur_i = nxt, cur, i
        step += 1
    KT0 = NL * (NK + step)
    assert KT0 <= 128
    A(f"v_add_u32 v{vE_}, {NL*cur_i*64}, v{vPW}")
    if stamps == 4: stamp(3)
    order = [cur, nxt]
    A.label("L_k0")
    for n in range(2):
        X, Y = order[n], order[1-n]
        if n: A.label("L_k1")
        A("s_waitcnt lgkmcnt(0)")
        A(f"v_readfirstlane_b32 {sTK}, v{vTKT}")
        A(f"s_cmp_ge_u32 {sTK}, 128"); A(f"s_cbranch_scc1 L_kend{n}")
        tile_addr(sTK, sST)
        A("s_waitcnt vmcnt(0)")
        load(SK, Y)
        req(L_KT)
        qk(X, vE_, L_P)
        A(f"s_lshl_b32 s68, {sTK}, 6"); A(f"v_add_u32 v{vE_}, s68, v{vPB}")
    A("s_branch L_k0")
    for n in range(2):
        A.label(f"L_kend{n}")
        tile_addr("s67", 0)
        A("s_waitcnt vmcnt(0)")
        load(SV, 1)
        qk(order[n], vE_, L_P)
        if n == 0: A("s_branch L_vpre")
    A.label("L_vpre")
    A("s_waitcnt lgkmcnt(0)")
    A("s_mov_b64 exec, 1"); A(f"ds_add_u32 v{vZERO}, v{vONE} offset:{L_KD}"); A("s_mov_b64 exec, -1")
    if wake: A("s_waitcnt lgkmcnt(0)"); A("s_wakeup")
    if stamps == 4: stamp(4)
    for i in range(1, NV):
        tile_addr("s67", NL*i)
        A("s_waitcnt vmcnt(0)")
        load(SV, i + 1)
    if stamps == 4: stamp(5)
    lds_wait(L_PF, 1)
    A(f"ds_read_b32 v{vC_}, v{vZERO} offset:{L_LAM}")
    A(f"v_and_b32 v{vL}, 4, v{vLANE}"); A(f"v_lshlrev_b32 v{vL}, 2, v{vL}"); A(f"v_sub_u32 v{vL}, 16, v{vL}")
    A(f"s_lshl_b32 s14, {sHD}, 13"); A(f"s_add_u32 s14, s14, {WS_SP + (NS - 112)*32}"); A("s_add_u32 s14, s14, s30"); A("s_addc_u32 s15, s31, 0")
    nstep = NV // 2
    if nstep % 2: nstep += 1
    PR = vT
    assert NV + nstep <= 12 + 4
    preg = lambda i: (vT + i) if i < 12 else (vR + i - 12)
    for i in range(NV + nstep):
        A(f"ds_read_b32 v{preg(i)}, v{vPW} offset:{L_P + NL*i*64}")
        if i == 8: A("s_waitcnt lgkmcnt(2)")
    A("s_waitcnt lgkmcnt(0)")
    todo = [(i + 1, i) for i in range(NV)]
    live = [LA, LB]
    for j in range(nstep):
        tile_addr("s67", NL*(NV + j))
        A("s_waitcnt vmcnt(0)")
        load(SV, live[j % 2])
        if j == nstep - 1: req(L_VT)
        items = ([(live[(j-1) % 2], NV + j - 1)] if j else []) + todo[:2]
        todo = todo[2:]
        if j == nstep - 1: items += todo; todo = []
        for (sl, i) in items: build(preg(i)); mm(sl)
    build(preg(NV + nstep - 1))
    VT0 = NL * (NV + nstep)
    order = [LB, LA]
    A.label("L_v0")
    for n in range(2):
        X, Y = order[n], order[1-n]
        A("s_waitcnt lgkmcnt(0)")
        A(f"v_readfirstlane_b32 {sTK}, v{vTKT}")
        A(f"s_cmp_ge_u32 {sTK}, {NS}"); A(f"s_cbranch_scc1 L_din{n}")
        A(f"s_lshl_b32 s68, {sTK}, 6"); A(f"v_add_u32 v{vE_}, s68, v{vPB}")
        A(f"ds_read_b32 v{vE_}, v{vE_} offset:{L_P}")
        tile_addr(sTK, sST)
        A("s_waitcnt vmcnt(0) lgkmcnt(0)")
        load(SV, Y)
        req(L_VT)
        mm(X); build(vE_)
    A("s_branch L_v0")
    for n in range(2):
        A.label(f"L_din{n}")
        A(f"s_mov_b32 {sTK}, 1"); A(f"s_atomic_add {sTK}, {SCNT}, 0 glc")
        A(f"s_branch L_d{n}")
    for n in range(2):
        X, Y = order[n], order[1-n]
        A.label(f"L_d{n}")
        A("s_waitcnt lgkmcnt(0)")
        A(f"s_cmp_ge_u32 {sTK}, {NP}"); A(f"s_cbranch_scc1 L_vend{n}")
        A(f"s_and_b32 s68, {sTK}, 7"); A(f"s_lshr_b32 s67, {sTK}, 3")
        A("s_lshl_b32 s69, s68, 5"); A("s_add_u32 s69, s69, s67"); A("s_lshl_b32 s69, s69, 5")
        A("s_load_dwordx8 s[52:59], s[14:15], s69 glc")
        A("s_lshl_b32 s68, s68, 7"); A("s_add_u32 s68, s68, s67"); A(f"s_add_u32 s68, s68, {NS}")
        tile_addr("s68", sROT)
        A(f"s_cmp_ge_u32 {sTK}, {sQ}"); A(f"s_cselect_b32 {sTP}, {NP}, 0"); A(f"s_cselect_b32 {sTK}, 0, 1")
        A("s_waitcnt vmcnt(0)")
        load(SV, Y)
        mm(X)
        A("s_waitcnt lgkmcnt(0)")
        A(f"s_atomic_add {sTK}, {SCNT}, 0 glc")
        A("s_mov_b64 exec, 0xff")
        for j in range(8):
            A(f"v_lshlrev_b32 v{vE_}, v{vL}, s{52+j}")
            if j < 7: A("s_lshl_b64 exec, exec, 8")
        A("s_mov_b64 exec, -1")
        A(f"v_and_b32 v{vE_}, 0xffff0000, v{vE_}")
        A(f"v_fma_f32 v{vE_}, v{vE_}, {sL2E}, -v{vC_}")
        A(f"v_exp_f32 v{vE_}, v{vE_}")
        A(f"v_cvt_pk_bf16_f32 v{vE_}, v{vE_}, v{vE_}")
        build(vE_)
        if Q_wo < NP or Q_ffn < NP:
            A("s_waitcnt lgkmcnt(0)"); A(f"s_add_u32 {sTK}, {sTK}, {sTP}")
    A("s_branch L_d0")
    for n in range(2):
        A.label(f"L_vend{n}")
        if pf and not TW:
            A("s_mov_b64 exec, 1"); A(f"ds_add_rtn_u32 v{vTKT}, v{vZERO}, v{vONE} offset:{L_RANK}"); A("s_mov_b64 exec, -1")
        A(f"s_lshl_b32 s69, {sWAVE}, 9"); A(f"v_lshrrev_b32 v{vT}, 1, v{vNAT}"); A(f"v_add_u32 v{vT}, s69, v{vT}")
        A("s_waitcnt vmcnt(0)")
        mm(order[n])
        if n == 0: A("s_branch L_last")
    A.label("L_last")
    A(f"ds_write_b64 v{vT}, {v2(vACC)} offset:{L_PART-512}")
    A("s_waitcnt lgkmcnt(0)")
    def wo_prefetch(first, cnt, th):
        srd(SA, "s12", "s13", 4096*1280)
        A(f"s_and_b32 s68, {sHD}, 24"); A(f"s_add_u32 s68, s68, {sG}"); A(f"s_mul_i32 s68, s68, {128*1280}")
        A(f"s_and_b32 s69, {sHD}, 7"); A(f"s_mul_i32 s69, s69, {20*1024}"); A("s_add_u32 s68, s68, s69")
        if first: A(f"s_add_u32 s68, s68, {first}")
        for n in range(cnt):
            if n and n % 4 == 0: A("s_add_u32 s68, s68, 4096")
            A(f"buffer_load_dwordx4 {v4(PF)}, v{vLANE16}, {SA}, s68 offen offset:{(n%4)*1024}")
            if th < 63: A(f"s_waitcnt vmcnt({th})")
    if pf and not TW:
        A(f"v_readfirstlane_b32 s66, v{vTKT}")
        A(f"s_cmp_ge_u32 s66, {NR}"); A("s_cbranch_scc1 L_pfdone")
        A(f"s_mul_i32 s66, s66, {(20 // NR)*1024}")
        wo_prefetch("s66", 20 // NR, 63)
        A.label("L_pfdone")
    if stamps in (4, 6):
        A(f"s_cmp_lg_u32 {sWAVE}, 1"); A("s_cbranch_scc1 L_ns4")
        stamp_dump([1, 2, 3, 4, 5], final=False)
        A.label("L_ns4")
    A.label("L_join")
    A("s_barrier")
    if abl: A("s_endpgm"); A.label("L_abl_dead")
    if pf2:
        A(f"s_cmp_lt_u32 {sK}, 17"); A("s_cbranch_scc1 L_pf2done")
        A(f"s_sub_u32 s66, {sK}, 17"); A("s_mul_i32 s66, s66, 7"); A(f"s_add_u32 s66, s66, {sWAVE}"); A("s_sub_u32 s66, s66, 1")
        A("s_cmp_ge_u32 s66, 80"); A("s_cbranch_scc1 L_pf2dn")
        srd(SA, "s16", "s17", 640*3456); srd(SB, "s18", "s19", 640*3456)
        A(f"v_lshrrev_b32 v{vT+1}, 5, v{vLANE}"); A(f"v_mul_u32_u24 v{vT+1}, 3456, v{vT+1}")
        A(f"v_and_b32 v{vT+2}, 31, v{vLANE}"); A(f"v_lshl_add_u32 v{vT+1}, v{vT+2}, 4, v{vT+1}")
        A(f"s_mul_i32 s68, {sG}, 7"); A("s_lshr_b32 s68, s68, 1"); A("s_min_u32 s68, s68, 23"); A("s_lshl_b32 s68, s68, 7")
        npair = (3 if cearly else 4) - len(EW)
        A(f"s_mul_i32 s69, s66, {2*npair*3456}"); A("s_add_u32 s68, s68, s69"); A(f"s_add_u32 s68, s68, {(160 if cearly else 0)*3456}")
        for n in range(npair):
            for S in (SA, SB):
                A(f"buffer_load_dwordx4 {v4(PF)}, v{vT+1}, {S}, s68 offen")
                if PFTH < 63: A(f"s_waitcnt vmcnt({PFTH})")
            if n < npair - 1: A(f"s_add_u32 s68, s68, {2*3456}")
        A("s_waitcnt vmcnt(0)")
        A("s_endpgm")
        A.label("L_pf2dn")
        srd(SA, "s20", "s21", 1728*1280)
        A(f"s_mul_i32 s68, {sG}, {7*40960}"); A("s_sub_u32 s69, s66, 80"); A(f"s_mul_i32 s69, s69, {11520}"); A("s_add_u32 s68, s68, s69")
        A(f"v_add_u32 v{vT+1}, s68, v{vLANE16}")
        for n in range(12):
            if n and n % 4 == 0: A(f"v_add_u32 v{vT+1}, 0x1000, v{vT+1}")
            A(f"buffer_load_dwordx4 {v4(PF)}, v{vT+1}, {SA}, 0 offen offset:{(n%4)*1024}")
            if PFTH < 63: A(f"s_waitcnt vmcnt({PFTH+1})")
        A("s_waitcnt vmcnt(0)")
        A("s_endpgm")
        A.label("L_pf2done")
    A.label("L_tail0")
    A(f"s_cmp_ge_u32 {sF}, 54"); A("s_cbranch_scc1 L_nomap")
    A(f"s_xor_b32 s68, {sWAVE}, 4"); A(f"s_and_b32 s69, {sWAVE}, 3"); A(f"s_cselect_b32 {sWAVE}, s68, {sWAVE}")
    for w in EW:
        A(f"s_cmp_eq_u32 {sWAVE}, {w-4}"); A("s_cbranch_scc1 L_tail")
    A.label("L_nomap")
    tail_loads(False)
    A.label("L_tail")
    A(f"s_cmp_lt_u32 {sK}, 10"); A("s_cbranch_scc1 L_wo")
    A(f"s_cmp_ge_u32 {sF}, 54"); A("s_cbranch_scc1 L_exit")
    X0, GA = 24, 26
    CC = [12, 13, 14, 15, 28]; SS = [RING+36, RING+37, RING+38, RING+39, 29]
    SEL0, SEL1, GB = 30, 31, 6
    A(f"s_cmp_gt_u32 {sWAVE}, 3"); A("s_cbranch_scc1 L_gprep")
    A(f"v_lshrrev_b32 v{vT}, 3, v{vLANE}"); A(f"v_and_b32 v{vT+1}, 3, v{vLANE}"); A(f"v_lshl_add_u32 v{vT+1}, v{vT}, 2, v{vT+1}")
    A(f"s_mul_i32 s68, {sWAVE}, 640"); A(f"v_lshl_add_u32 v{vT+8}, v{vT+1}, 4, s68")
    A("s_add_u32 s68, s68, 512"); A(f"v_lshl_add_u32 v{vT+9}, v{vT+1}, 2, s68")
    A(f"ds_read_b128 {v4(SS[0])}, v{vT+8} offset:{L_MOD+2560}"); A(f"ds_read_b32 v{SS[4]}, v{vT+9} offset:{L_MOD+2560}")
    A(f"ds_read_b128 {v4(CC[0])}, v{vT+8} offset:{L_MOD+5120}"); A(f"ds_read_b32 v{CC[4]}, v{vT+9} offset:{L_MOD+5120}")
    acc_addr(vT+5)
    A(f"s_min_u32 s21, {sF}, 39")
    A(f"v_mul_u32_u24 v{vL}, 5120, v{vT}")
    A(f"v_and_b32 v{vONE}, 7, v{vLANE}"); A(f"v_lshl_add_u32 v{vL}, v{vONE}, 4, v{vL}")
    A(f"s_lshl_b32 s68, s21, 7"); A(f"v_add_u32 v{vL}, s68, v{vL}")
    A(f"v_lshrrev_b32 v{vT+1}, 5, v{vLANE}"); A(f"v_lshl_add_u32 v{vONE}, v{vONE}, 1, v{vT+1}")
    A(f"s_lshl_b32 s68, s21, 4"); A(f"v_add_u32 v{vONE}, s68, v{vONE}")
    A(f"v_lshlrev_b32 v{vTKT}, 2, v{vONE}"); A(f"v_lshlrev_b32 v{vONE}, 1, v{vONE}")
    A(f"ds_read_b32 v{GB}, v{vTKT} offset:{L_MOD+7680}")
    for n in range(7): A(f"s_mov_b32 s{13+n}, {WS_DP + n*8*5120}")
    A("s_waitcnt lgkmcnt(0)")
    A("s_waitcnt vmcnt(0)")
    stamp(8)
    A(f"s_cmp_lg_u32 {sWAVE}, 0"); A(f"s_cbranch_scc1 {'L_gemv0' if wbar else 'L_gemv'}")
    def gather(last):
        A(f"v_and_b32 v{vT}, 31, v{vLANE}"); A(f"v_lshrrev_b32 v{vT+1}, 5, v{vLANE}")
        A(f"v_lshl_add_u32 v{vT+2}, v{vT}, 1, v{vT+1}"); A("s_lshl_b32 s68, s23, 6"); A(f"v_add_u32 v{vT+2}, s68, v{vT+2}")
        A(f"v_lshlrev_b32 v{vT+3}, 3, v{vT+2}")
        A(f"ds_read_b64 {v2(GA)}, v{vT+3} offset:{L_MOD}"); A(f"ds_read_b64 {v2(X0)}, v{vT+3} offset:{L_X2}")
        A(f"v_mul_u32_u24 v{vT+4}, 2560, v{vT+1}"); A(f"v_lshl_add_u32 v{vT+4}, v{vT}, 4, v{vT+4}"); A("s_lshl_b32 s68, s23, 9"); A(f"v_add_u32 v{vT+4}, s68, v{vT+4}")
        A(f"s_mul_i32 s68, {sG}, 20480")
        for n in range(4): A(f"s_add_u32 s{4+n}, s68, {WS_YP + n*5120}")
        A("s_lshl_b32 s68, s23, 3"); A(f"v_mov_b32 v{vADDR}, s68")
        A(f"v_mov_b32 v{SEL0}, 0x3f80"); A(f"v_mov_b32 v{SEL1}, 0x3f800000")
        A("s_waitcnt lgkmcnt(0)")
        if last:
            dn_prep()
            A(f"v_lshrrev_b32 v{vT+6}, 4, v{vLANE}"); A(f"v_lshlrev_b32 v{vT+6}, 3, v{vT+6}")
            A(f"v_and_b32 v{vT+7}, 7, v{vLANE}"); A(f"v_add_u32 v{vT+6}, v{vT+6}, v{vT+7}")
            A(f"v_bfe_u32 v{vT+7}, v{vLANE}, 3, 1"); A(f"v_lshl_add_u32 v{vT+6}, v{vT+7}, 5, v{vT+6}"); A(f"v_lshlrev_b32 v{vT+6}, 2, v{vT+6}")
            A(f"v_add_u32 v{vT+6}, {L_ACC}, v{vT+6}")
            A(f"s_mul_i32 s12, {sF}, 5120"); A("s_lshl_b32 s69, s23, 10"); A("s_add_u32 s12, s12, s69"); A(f"s_add_u32 s12, s12, {WS_DP}")
        if wbar: A("s_barrier")
        poll([(vT+4, f"s{4+n}", 0, None) for n in range(4)], RING, tags=(1, 3))
        for n in range(4):
            for r in range(4):
                src, sel = RING + 4*n + 2*(r // 2), (SEL0, SEL1)[r % 2]
                if n == 0: A(f"v_dot2_f32_bf16 v{TMP+r}, v{src}, v{sel}, 0")
                else: A(f"v_dot2c_f32_bf16 v{TMP+r}, v{src}, v{sel}")
        if last: stamp(9)
        A(f"v_permlane32_swap_b32 v{TMP}, v{TMP+2}"); A(f"v_permlane32_swap_b32 v{TMP+1}, v{TMP+3}")
        A(f"v_pk_add_f32 {v2(TMP)}, {v2(TMP)}, {v2(TMP+2)}")
        A(f"v_pk_fma_f32 {v2(X0)}, {v2(TMP)}, {v2(GA)}, {v2(X0)}")
        A(f"v_add_f32 v{TMP}, v{X0}, v{X0+1}"); A(f"v_mul_f32 v{TMP+1}, v{X0}, v{X0}"); A(f"v_fmac_f32 v{TMP+1}, v{X0+1}, v{X0+1}")
        A(f"ds_write_b64 v{vT+3}, {v2(X0)} offset:{L_X2}")
        dpp_red("v_add_f32", [TMP, TMP+1], QUAD + BANK + BCAST)
        A("s_mov_b32 exec_lo, 0"); A("s_brev_b32 exec_hi, 1")
        A(f"ds_write_b64 v{vADDR}, {v2(TMP)} offset:{L_ST}")
        A("s_mov_b64 exec, -1")
        A("s_waitcnt lgkmcnt(0)")
    A("s_mov_b32 s23, 4")
    gather(False)
    if wbar:
        A("s_branch L_gemv")
        A.label("L_gemv0")
        A("s_barrier")
    A.label("L_gemv")
    A("s_barrier")
    ST = vAOP; XX = RING + 40
    A(f"ds_read_b128 {v4(ST)}, v{vZERO} offset:{L_ST}"); A(f"ds_read_b128 {v4(ST+4)}, v{vZERO} offset:{L_ST+16}"); A(f"ds_read_b64 {v2(ST+8)}, v{vZERO} offset:{L_ST+32}")
    A(f"ds_read_b128 {v4(XX)}, v{vT+8} offset:{L_X2}"); A(f"ds_read_b32 v{XX+4}, v{vT+9} offset:{L_X2}")
    A(f"v_mov_b32 v{TMP+2}, {fh(1e-5)}")
    A("s_waitcnt lgkmcnt(2)" if not stamps else "s_waitcnt lgkmcnt(0)")
    sum2([ST+2*n for n in range(5)], TMP)
    A(f"v_mul_f32 v{TMP}, {fh(1.0/640)}, v{TMP}")
    A(f"v_fmac_f32 v{TMP+2}, {fh(1.0/640)}, v{TMP+1}")
    A(f"v_fma_f32 v{TMP+2}, -v{TMP}, v{TMP}, v{TMP+2}")
    A(f"v_max_f32 v{TMP+2}, {fh(1e-5)}, v{TMP+2}")
    A(f"v_rsq_f32 v{TMP+2}, v{TMP+2}")
    A("s_waitcnt lgkmcnt(0)")
    for y in range(5): A(f"v_sub_f32 v{XX+y}, v{XX+y}, v{TMP}")
    for y in range(5): A(f"v_mul_f32 v{XX+y}, v{XX+y}, v{CC[y]}")
    for y in range(5): A(f"v_fmac_f32 v{SS[y]}, v{XX+y}, v{TMP+2}")
    for y in range(5): A(f"v_cvt_pk_bf16_f32 v{SS[y]}, v{SS[y]}, v{SS[y]}")
    gemv(vACC, vM1, [(SS[y], qp(k), WT+4*(y*4+k), None) for y in range(5) for k in range(4)])
    acc_write(vT+5)
    A("s_waitcnt lgkmcnt(0)")
    A("s_barrier")
    if stamps:
        A(f"s_cmp_lg_u32 {sWAVE}, 1"); A("s_cbranch_scc1 L_ns8")
        stamp_dump([8]); A("s_endpgm")
        A.label("L_ns8")
    A(f"s_cmp_lg_u32 {sWAVE}, 3"); A("s_cbranch_scc1 L_exit")
    A(f"s_cmp_ge_u32 {sF}, 40"); A("s_cbranch_scc1 L_end")
    A(f"ds_read_b32 v{X0}, v{vTKT} offset:{L_X2}")
    FB = RING
    A(f"v_mov_b32 v{FB+24}, 0"); A(f"v_mov_b32 v{FB+25}, 0"); A(f"v_mov_b32 v{FB+27}, {sTAG}")
    A("s_mov_b32 s68, -1"); A("s_mov_b32 s69, 0xffff")
    srd(SB, "s26", "s27", 1280)
    A("s_waitcnt lgkmcnt(0)")
    A("s_barrier")
    poll([(vL, f"s{13+n}", 0, None if n < 6 else "s[68:69]") for n in range(7)], FB)
    sum2([FB+4*n for n in range(7)], GA)
    stamp(11)
    A(f"v_permlane32_swap_b32 v{GA}, v{GA+1}"); A(f"v_add_f32 v{GA}, v{GA}, v{GA+1}")
    xrow("v_add_f32", GA, GA+1, 16)
    A(f"v_add_f32_dpp v{GA}, v{GA}, v{GA} row_ror:8 {DPPF}")
    A(f"v_fma_f32 v{GA}, v{GA}, v{GB}, v{X0}"); A(f"v_cvt_pk_bf16_f32 v{GA}, v{GA}, v{GA}")
    A("s_mov_b32 exec_lo, 0xff"); A("s_mov_b32 exec_hi, 0xff")
    A(f"buffer_store_short v{GA}, v{vONE}, {SB}, 0 offen sc1")
    A(f"s_cmp_lg_u32 {sF}, 0"); A("s_cbranch_scc1 L_fin_dump")
    A("s_mov_b64 exec, 1"); A(f"v_mov_b32 v{GA+1}, {sTAG}")
    A(f"buffer_store_dword v{GA+1}, v{vZERO}, {SWS}, 0 offen sc1")
    A.label("L_fin_dump")
    if stamps:
        A("s_waitcnt vmcnt(0)"); stamp(12)
        stamp_dump([11, 12])
    A("s_endpgm")
    A.label("L_gprep")
    A(f"s_and_b32 s23, {sWAVE}, 3")
    gather(True)
    if DNP == 0 and not (now & 1): dn_issue("L_dnd0"); A.label("L_dnd0")
    A("s_barrier")
    if DNP == 1 and not (now & 1): dn_issue("L_dnd1"); A.label("L_dnd1")
    A("s_barrier")
    RD = WT
    for k in range(4): A(f"ds_read2st64_b32 {v2(RD+2*k)}, v{vT+6} offset0:{2*k} offset1:{2*k+1}")
    A("s_waitcnt lgkmcnt(0)")
    sum2([RD+2*k for k in range(4)])
    A(f"v_add_f32 v{RD}, v{RD}, v{RD+1}")
    A(f"v_mul_f32 v{RD+2}, {fh(-LOG2E)}, v{RD}"); A(f"v_exp_f32 v{RD+2}, v{RD+2}")
    A(f"v_mul_f32_dpp v{RD+1}, v{RD}, v{RD} row_ror:8 {DPPF}")
    A(f"v_add_f32 v{RD+2}, 1.0, v{RD+2}"); A(f"v_rcp_f32 v{RD+2}, v{RD+2}")
    A(f"v_mul_f32 v{RD}, v{RD+1}, v{RD+2}")
    A(f"v_cvt_pk_bf16_f32 v{RD}, v{RD}, v{RD}")
    A("s_waitcnt vmcnt(0)")
    A(f"s_cmp_eq_u32 {sWAVE}, 5"); A("s_cbranch_scc1 L_down2")
    gemv(vACC, vM2, [(RD, f"row_newbcast:{t}", WD+4*t, None) for t in range(8)])
    publish(vACC, vNAT, "s12")
    A("s_endpgm")
    A.label("L_down2")
    gemv(vACC, vM2, [(RD, f"row_newbcast:{t}", WD+4*t, None) for t in range(8)], ACC2, WD2)
    A(f"v_mov_b32 v{vACC+3}, {sTAG}"); A(f"v_mov_b32 v{ACC2+3}, {sTAG}")
    A(f"buffer_store_dwordx4 {v4(vACC)}, v{vNAT}, {SWS}, s12 offen sc1")
    A(f"buffer_store_dwordx4 {v4(ACC2)}, v{vNAT}, {SWS}, s12 offen offset:3072 sc1")
    stamp(10)
    A("s_waitcnt vmcnt(0)")
    A("s_barrier")
    stamp_dump([9, 10])
    A("s_endpgm")
    A.label("L_wo")
    A(f"v_lshrrev_b32 v{vT+4}, 5, v{vLANE}"); A(f"v_lshlrev_b32 v{vT+4}, 10, v{vT+4}")
    A(f"v_and_b32 v{vT+6}, 31, v{vLANE}"); A(f"v_lshl_add_u32 v{vT+4}, v{vT+6}, 4, v{vT+4}")
    A(f"s_lshr_b32 s4, {sWAVE}, 1"); A("s_lshl_b32 s4, s4, 3"); A(f"s_add_u32 s4, s4, {sG}"); A("s_lshl_b32 s4, s4, 13")
    A(f"s_and_b32 s5, {sWAVE}, 1"); A("s_lshl_b32 s5, s5, 9"); A("s_add_u32 s4, s4, s5"); A(f"s_add_u32 s4, s4, {WS_OP}"); A("s_add_u32 s5, s4, 4096")
    acc_addr(vT+5)
    A(f"v_lshrrev_b32 v{vT+8}, 5, v{vLANE}"); A(f"v_lshlrev_b32 v{vT+7}, 11, v{vT+8}"); A(f"v_lshl_add_u32 v{vT+7}, v{vT+6}, 3, v{vT+7}")
    A(f"v_mul_u32_u24 v{vT+8}, 20480, v{vT+8}"); A(f"v_lshl_add_u32 v{vT+8}, v{vT+6}, 3, v{vT+8}")
    A(f"s_mul_i32 s6, {sG}, 2560"); A(f"s_lshl_b32 s7, {sK}, 8"); A("s_add_u32 s6, s6, s7"); A(f"s_add_u32 s6, s6, {WS_YP}")
    for c in range(1, 4): A(f"s_add_u32 s{12+c}, s6, {c*40960}")
    poll([(vT+4, "s4" if n < 2 else "s5", (n % 2)*2048, None) for n in range(4)], RING)
    stamp(7)
    sum2([RING+4*n for n in range(4)], TMP)
    A(f"v_permlane32_swap_b32 v{TMP}, v{TMP+1}")
    A(f"v_add_f32 v{TMP}, v{TMP}, v{TMP+1}")
    A(f"v_cvt_pk_bf16_f32 v{TMP}, v{TMP}, v{TMP}")
    ysplit([TMP], TMP+2)
    gemv(vACC, vM1, [(TMP + 2 + n // 4, qp(n % 4), WT+4*n, None) for n in range(8)])
    acc_write(vT+5)
    A("s_waitcnt lgkmcnt(0)")
    A("s_barrier")
    A(f"s_cmp_lg_u32 {sWAVE}, 0"); A("s_cbranch_scc1 L_end")
    for n in range(8): A(f"ds_read_b64 {v2(WT+2*n)}, v{vT+7} offset:{L_ACC+256*n}")
    A("s_waitcnt lgkmcnt(0)")
    sum2([WT+2*n for n in range(8)])
    A(f"v_mov_b32 v{WT+2}, v{WT}"); A(f"v_mov_b32 v{WT+3}, v{WT+1}")
    A(f"v_permlane32_swap_b32 v{WT}, v{WT+2}"); A(f"v_permlane32_swap_b32 v{WT+1}, v{WT+3}")
    A(f"v_pk_add_f32 {v2(WT)}, {v2(WT)}, {v2(WT+2)}")
    A(f"v_cvt_pk_bf16_f32 v{WT}, v{WT}, v{WT+1}"); A(f"v_mov_b32 v{WT+1}, {sTAG}")
    for so in ("s6", "s13", "s14", "s15"): A(f"buffer_store_dwordx2 {v2(WT)}, v{vT+8}, {SWS}, {so} offen sc1")
    stamp(13)
    A.label("L_exit")
    if stamps:
        A(f"s_cmp_lg_u32 {sWAVE}, 0"); A("s_cbranch_scc1 L_end")
        stamp_dump([0, 13, 6, 7] + ([1, 2, 3, 4, 5] if stamps not in (4, 6) else []), xcc=True)
    A("s_endpgm")

    A.label("L_help")
    A("s_waitcnt lgkmcnt(0)")
    A("s_barrier")
    A(f"s_cmp_lt_u32 {sK}, 24"); A("s_cbranch_scc1 L_hnoq")
    A(f"s_sub_u32 s39, {sWAVE}, 5")
    A(f"s_bfe_u32 s68, {sK}, 0x10002"); A("s_add_u32 s68, s68, s39"); A("s_cmp_lt_u32 s68, 3"); A("s_cbranch_scc1 L_ctrl_q")
    common_setup()
    A(f"v_lshlrev_b32 v{vT}, 3, v{vLANE}"); A(f"v_mov_b32 v{vACC}, 0"); A(f"v_mov_b32 v{vACC+1}, 0")
    A(f"ds_write_b64 v{vT}, {v2(vACC)} offset:{L_ACC + 512}")
    A("s_waitcnt lgkmcnt(0)")
    A("s_mov_b64 exec, 1"); A(f"ds_add_u32 v{vZERO}, v{vONE} offset:{L_MF}"); A("s_mov_b64 exec, -1")
    A("s_branch L_soft")
    A.label("L_hnoq")
    A(f"s_sub_u32 s37, {sK}, 5"); A("s_cmp_ge_u32 s37, 5"); A("s_cbranch_scc1 L_hnomod")
    A("s_lshl_b32 s37, s37, 3"); A(f"s_add_u32 s37, s37, {sG}")
    A("s_lshr_b32 s38, s37, 1"); A("s_and_b32 s39, s37, 1")
    A("s_mul_i32 s6, s39, 20480"); A("s_lshl_b32 s7, s38, 10"); A("s_add_u32 s6, s6, s7"); A(f"s_add_u32 s6, s6, {WS_MR}")
    A("s_add_u32 s38, s38, 10"); A("s_lshl_b32 s39, s39, 1"); A(f"s_add_u32 s39, s39, {sWAVE}"); A("s_sub_u32 s39, s39, 6")
    mod_loads("s38", "s39")
    common_setup()
    mod_compute()
    A(f"v_lshlrev_b32 v{vT}, 3, v{vLANE}")
    A(f"s_cmp_eq_u32 {sWAVE}, 6"); A("s_cbranch_scc1 L_hsum")
    A(f"ds_write_b64 v{vT}, {v2(vACC)} offset:{L_ACC}")
    A("s_waitcnt lgkmcnt(0)")
    A(f"ds_write_b32 v{vZERO}, v{vONE} offset:{L_MF}")
    A("s_branch L_soft")
    A.label("L_hsum")
    lds_wait(L_MF, 1)
    A(f"ds_read_b64 {v2(vR)}, v{vT} offset:{L_ACC}")
    A("s_waitcnt lgkmcnt(0)")
    A(f"v_pk_add_f32 {v2(vACC)}, {v2(vACC)}, {v2(vR)}")
    publish(vACC, vNAT, "s6")
    A("s_branch L_help7")
    A.label("L_hnomod")
    if EW and not abl and not (now & 1):
        if len(EW) == 1: A(f"s_cmp_lg_u32 {sWAVE}, {EW[0]}"); A("s_cbranch_scc1 L_hne")
        A(f"s_sub_u32 s37, {sWAVE}, 4")
        gu_loads("L_hne", CTH, "s37")
        A.label("L_hne")
    common_setup()
    A(f"s_cmp_lg_u32 {sWAVE}, 7"); A("s_cbranch_scc1 L_help7")
    A.label("L_soft")
    A(f"s_lshl_b32 s6, {sHD}, 13"); A(f"s_add_u32 s6, s6, {WS_SP}")
    A(f"s_lshl_b32 s8, {sS}, 10"); A("s_add_u32 s8, s8, s6")
    A("s_add_u32 s6, s6, s30"); A("s_addc_u32 s7, s31, 0")
    A(f"v_lshlrev_b32 v{vT}, 3, v{vLANE}")
    if abl & 4:
        A(f"ds_write_b32 v{vZERO}, v{vONE} offset:{L_PF}"); A("s_waitcnt lgkmcnt(0)"); A("s_branch L_join"); A.label("L_abl4")
    lds_wait(L_KT, 120, slow=True)
    lds_wait(L_KD, NL + (1 if any(QK) else 0), slow=True, slp=SLK)
    if KAP: A("s_memrealtime s[10:11]")
    E = RING
    for n in range(8): A(f"ds_read_b128 {v4(E+4*n)}, v{vLANE16} offset:{L_P + 1024*n}")
    A("s_waitcnt lgkmcnt(0)")
    A(f"v_cvt_pk_bf16_f32 v{vACC}, v{E+28}, v{E+29}"); A(f"v_cvt_pk_bf16_f32 v{vACC+1}, v{E+30}, v{E+31}")
    lanes0 = (NS - 112) * 4
    if lanes0: A(f"s_lshl_b64 exec, -1, {lanes0}")
    A(f"buffer_store_dwordx2 {v2(vACC)}, v{vT}, {SWS}, s8 offen sc1")
    if lanes0: A("s_mov_b64 exec, -1")
    m = vR
    A(f"v_max3_f32 v{m}, v{E}, v{E+1}, v{E+2}"); A(f"v_max3_f32 v{m+1}, v{E+3}, v{E+4}, v{E+5}")
    for i in range(6, 32, 4):
        A(f"v_max3_f32 v{m}, v{m}, v{E+i}, v{E+i+1}")
        if i + 3 < 32: A(f"v_max3_f32 v{m+1}, v{m+1}, v{E+i+2}, v{E+i+3}")
    A(f"v_max_f32 v{m}, v{m}, v{m+1}")
    wave_red("v_max_f32", m, m+1)
    A(f"v_mul_f32 v{m}, {sL2E}, v{m}")
    for i in range(32): A(f"v_fma_f32 v{E+i}, v{E+i}, {sL2E}, -v{m}")
    for i in range(32): A(f"v_exp_f32 v{E+i}, v{E+i}")
    A(f"v_pk_add_f32 {v2(m+2)}, {v2(E)}, {v2(E+2)}")
    for i in range(4, 32, 2): A(f"v_pk_add_f32 {v2(m+2)}, {v2(m+2)}, {v2(E+i)}")
    A(f"v_add_f32 v{m+2}, v{m+2}, v{m+3}")
    wave_red("v_add_f32", m+2, m+1)
    A(f"v_log_f32 v{vACC+2}, v{m+2}")
    A(f"v_add_f32 v{vQ}, v{vACC+2}, v{m}"); A(f"v_mov_b32 v{vQ+1}, {sTAG}"); A(f"v_mov_b32 v{vQ+2}, s10")
    A("s_waitcnt vmcnt(0)")
    A("s_mov_b64 exec, 1")
    A(f"buffer_store_dwordx4 {v4(vQ)}, v{vZERO}, {SWS}, s8 offen offset:512 sc1")
    A("s_mov_b64 exec, -1")
    R = [40, 42, 44, 46, 52, 54, 56, 58]
    A(f"s_mov_b32 {sTO}, 0x40000")
    A.label("L_lam")
    for n in range(8): A(f"s_load_dwordx2 s[{R[n]}:{R[n]+1}], s[6:7], {n*1024 + 512} glc")
    A(f"s_sub_u32 {sTO}, {sTO}, 1"); A(f"s_cmp_eq_u32 {sTO}, 0"); A("s_cbranch_scc1 L_lamd")
    A("s_waitcnt lgkmcnt(0)")
    for n in range(8):
        A(f"s_cmp_lg_u32 s{R[n]+1}, {sTAG}"); A("s_cbranch_scc1 L_lam")
    A.label("L_lamd")
    A("s_waitcnt lgkmcnt(0)")
    lam = [RING + 32 + n for n in range(8)]
    for n in range(8): A(f"v_mov_b32 v{lam[n]}, s{R[n]}")
    if KAP:
        for n in range(8): A(f"s_load_dword s{R[n]+1}, s[6:7], {n*1024 + 520} glc")
    t = vA_
    A(f"v_max3_f32 v{t}, v{lam[0]}, v{lam[1]}, v{lam[2]}"); A(f"v_max3_f32 v{t}, v{t}, v{lam[3]}, v{lam[4]}")
    A(f"v_max3_f32 v{t}, v{t}, v{lam[5]}, v{lam[6]}"); A(f"v_max_f32 v{t}, v{t}, v{lam[7]}")
    for n in range(8): A(f"v_sub_f32 v{lam[n]}, v{lam[n]}, v{t}")
    for n in range(8): A(f"v_exp_f32 v{lam[n]}, v{lam[n]}")
    for n in range(1, 8): A(f"v_add_f32 v{lam[0]}, v{lam[0]}, v{lam[n]}")
    A(f"v_log_f32 v{lam[0]}, v{lam[0]}")
    A(f"v_add_f32 v{t}, v{t}, v{lam[0]}")
    A(f"v_sub_f32 v{m}, v{m}, v{t}"); A(f"v_exp_f32 v{m}, v{m}")
    A(f"ds_write_b32 v{vZERO}, v{t} offset:{L_LAM}")
    for i in range(32): A(f"v_mul_f32 v{E+i}, v{E+i}, v{m}")
    for i in range(32): A(f"v_cvt_pk_bf16_f32 v{E+i}, v{E+i}, v{E+i}")
    for n in range(8): A(f"ds_write_b128 v{vLANE16}, {v4(E+4*n)} offset:{L_P + 1024*n}")
    A("s_waitcnt lgkmcnt(0)")
    A(f"ds_write_b32 v{vZERO}, v{vONE} offset:{L_PF}")
    if KAP:
        A("s_mov_b32 s9, 0")
        for n in range(8):
            A(f"s_sub_u32 s68, s10, s{R[n]+1}"); A("s_add_u32 s9, s9, s68")
        A("s_ashr_i32 s9, s9, 3"); A(f"s_sub_i32 s9, s9, {LAG0}"); A("s_max_i32 s9, s9, 0"); A("s_min_i32 s9, s9, 1000")
        A(f"s_mul_i32 s9, s9, {KAP}"); A("s_lshr_b32 s9, s9, 8"); A(f"s_min_u32 s9, s9, {CAP}"); A("s_add_u32 s9, s9, 1")
        A(f"v_mov_b32 v{vT}, s9"); A(f"ds_write_b32 v{vZERO}, v{vT} offset:{L_N6}")
    A("s_setprio 0")
    if stamps:
        stamp(14); stamp_dump([14], final=False)
    A("s_waitcnt lgkmcnt(0)")
    A("s_branch L_join")
    A.label("L_help7")
    if any(QK):
        A(f"s_bitcmp1_b32 {sK}, 2"); A(f"s_cselect_b32 s37, {QK[6]}, {QK[5]}")
        for lim, q_ in ((24, QK[4]), (22, QK[3]), (17, QK[2]), (10, QK[1]), (5, QK[0])):
            A(f"s_cmp_lt_u32 {sK}, {lim}"); A(f"s_cselect_b32 s37, {q_}, s37")
        A("s_cmp_eq_u32 s37, 0"); A("s_cbranch_scc1 L_xkd")
        A("s_load_dwordx2 s[6:7], s[0:1], 8")
        A(f"s_mul_i32 {sST}, {sHD}, {ROT}"); A(f"s_lshl_b32 s68, {sS}, 7"); A(f"s_add_u32 {sST}, {sST}, s68")
        A(f"s_lshl_b32 s68, {sHD}, 22")
        A(f"v_and_b32 v{vPB}, 60, v{vLANE}")
        A(f"v_and_b32 v{vT}, 15, v{vLANE}"); A(f"v_lshlrev_b32 v{vT}, 4, v{vT}")
        A("s_waitcnt lgkmcnt(0)")
        A("s_add_u32 s40, s6, s68"); A("s_addc_u32 s41, s7, 0"); A("s_mov_b32 s42, 0x400000"); A("s_mov_b32 s43, 0x20000")
        lds_wait(L_QF, 1, slow=True)
        A(f"ds_read_b128 {v4(vQ)}, v{vT} offset:{L_Q}")
        A.label("L_xk")
        req(L_KT)
        A("s_waitcnt lgkmcnt(0)")
        A(f"v_readfirstlane_b32 {sTK}, v{vTKT}")
        A(f"s_cmp_ge_u32 {sTK}, 128"); A("s_cbranch_scc1 L_xkd")
        tile_addr(sTK, sST)
        load(SK, 0)
        A(f"s_lshl_b32 s68, {sTK}, 6"); A(f"v_add_u32 v{vE_}, s68, v{vPB}")
        A("s_waitcnt vmcnt(0)")
        qk(0, vE_, L_P)
        A("s_sub_u32 s37, s37, 1"); A("s_cmp_lg_u32 s37, 0"); A("s_cbranch_scc1 L_xk")
        A.label("L_xkd")
        A("s_waitcnt lgkmcnt(0)")
        A("s_mov_b64 exec, 1"); A(f"ds_add_u32 v{vZERO}, v{vONE} offset:{L_KD}"); A("s_mov_b64 exec, -1")
        A("s_waitcnt lgkmcnt(0)")
    if KAP:
        A("s_load_dwordx2 s[6:7], s[0:1], 16")
        A(f"s_mul_i32 {sST}, {sHD}, {ROT}"); A(f"s_lshl_b32 s68, {sS}, 7"); A(f"s_add_u32 {sST}, {sST}, s68")
        A(f"s_lshl_b32 s68, {sHD}, 22")
        A(f"v_and_b32 v{vPB}, 60, v{vLANE}")
        for r in range(4): A(f"v_mov_b32 v{vACC+r}, 0")
        A("s_waitcnt lgkmcnt(0)")
        A("s_add_u32 s44, s6, s68"); A("s_addc_u32 s45, s7, 0"); A("s_mov_b32 s46, 0x400000"); A("s_mov_b32 s47, 0x20000")
        lds_wait(L_N6, 1, slow=True)
        A("s_waitcnt lgkmcnt(0)")
        A(f"v_readfirstlane_b32 s37, v{vBAD}")
        A.label("L_xv")
        A("s_cmp_le_u32 s37, 1"); A("s_cbranch_scc1 L_xvd")
        req(L_VT)
        A("s_waitcnt lgkmcnt(0)")
        A(f"v_readfirstlane_b32 {sTK}, v{vTKT}")
        A(f"s_cmp_ge_u32 {sTK}, {NS}"); A("s_cbranch_scc1 L_xvd")
        tile_addr(sTK, sST)
        load(SV, 0)
        A(f"s_lshl_b32 s68, {sTK}, 6"); A(f"v_add_u32 v{vE_}, s68, v{vPB}")
        A(f"ds_read_b32 v{vE_}, v{vE_} offset:{L_P}")
        A("s_waitcnt lgkmcnt(0)")
        build(vE_)
        A("s_waitcnt vmcnt(0)")
        mm(0)
        A("s_sub_u32 s37, s37, 1"); A("s_branch L_xv")
        A.label("L_xvd")
        A(f"v_lshrrev_b32 v{vT}, 1, v{vNAT}")
        A(f"ds_write_b64 v{vT}, {v2(vACC)} offset:{L_PART + 512*NL}")
        A("s_waitcnt lgkmcnt(0)")
    A("s_branch L_join")

    A.label("L_ctrl0")
    A("s_setprio 3")
    A(f"v_mov_b32 v{vT+4}, {KT0}"); A(f"v_mov_b32 v{vT+5}, {VT0}"); A(f"v_mov_b32 v{vT+6}, 0"); A(f"v_mov_b32 v{vT+7}, 0")
    A(f"ds_write_b128 v{vZERO}, {v4(vT+4)} offset:{L_KT}")
    A(f"ds_write_b64 v{vZERO}, {v2(vT+6)} offset:{L_KD}"); A(f"ds_write_b64 v{vZERO}, {v2(vT+6)} offset:{L_MF}")
    A("s_waitcnt lgkmcnt(0)")
    A("s_barrier")
    if abl & 2:
        common_setup()
        A(f"s_lshl_b32 s68, {sHD}, 8"); A(f"s_add_u32 s68, s68, {WS_CNT}")
        A("s_mov_b64 exec, 1"); A(f"buffer_store_dword v{vZERO}, v{vZERO}, {SWS}, s68 offen sc1"); A("s_mov_b64 exec, -1")
        A(f"v_lshlrev_b32 v{vT}, 2, v{vLANE}"); A(f"v_mov_b32 v{vT+1}, 0x3f803f80"); A(f"ds_write_b32 v{vT}, v{vT+1} offset:{L_Q}"); A("s_waitcnt lgkmcnt(0)")
        A(f"ds_write_b32 v{vZERO}, v{vONE} offset:{L_QF}")
        A("s_branch L_ctrl_w"); A.label("L_abl2")
    A("s_mov_b32 s39, 0")
    A(f"s_cmp_ge_u32 {sK}, 24"); A("s_cbranch_scc1 L_ctrl_q")
    A(f"s_sub_u32 s38, {sK}, 17"); A("s_cmp_ge_u32 s38, 5"); A("s_cbranch_scc1 L_ctrl_none")
    A("s_lshl_b32 s38, s38, 3"); A(f"s_add_u32 s38, s38, {sG}")
    A("s_lshl_b32 s6, s38, 10"); A(f"s_add_u32 s6, s6, {WS_MODP}")
    A("s_and_b32 s39, s38, 3"); A("s_lshr_b32 s38, s38, 2")
    mod_loads("s38", "s39")
    common_setup()
    mod_compute()
    publish(vACC, vNAT, "s6")
    stamp(1)
    A("s_branch L_hop2")
    A.label("L_ctrl_none")
    if cearly and cstart and not abl: tail_loads(True)
    common_setup()
    A("s_branch L_hop2")
    A.label("L_ctrl_q")
    WQ = RING + 64
    XA = RING
    X0, X1 = 24, 25
    A(f"s_and_b32 s38, {sK}, 3"); A("s_lshl_b32 s38, s38, 3"); A(f"s_add_u32 s38, s38, {sG}")
    A(f"s_bfe_u32 s37, {sK}, 0x10002"); A("s_mul_i32 s68, s37, 3"); A("s_add_u32 s39, s39, s68")
    srd(SB, "s4", "s5", 1280); srd(SA, "s10", "s11", 640*8192)
    A(f"v_lshlrev_b32 v{vT+2}, 2, v{vLANE}")
    for k in range(5): A(f"buffer_load_dword v{XA+2*k+1}, v{vT+2}, {SB}, 0 offen offset:{k*256}")
    A("s_lshl_b32 s68, s39, 8")
    A(f"buffer_load_dword v{X1}, v{vT+2}, {SB}, s68 offen")
    A(f"v_lshrrev_b32 v{vT}, 4, v{vLANE}"); A(f"v_lshlrev_b32 v{vT}, 18, v{vT}")
    A(f"v_and_b32 v{vT+1}, 15, v{vLANE}"); A(f"v_lshl_add_u32 v{vT+3}, v{vT+1}, 4, v{vT}")
    A("s_lshl_b32 s69, s39, 20"); A("s_lshl_b32 s68, s38, 8"); A("s_add_u32 s69, s69, s68")
    for n in range(32):
        u, j = n // 16, n % 16
        A(f"s_add_u32 s68, s69, {(2*j+u)*8192}")
        A(f"buffer_load_dwordx4 {v4(WQ+4*n)}, v{vT+3}, {SA}, s68 offen {pol}")
    common_setup()
    A("s_lshl_b32 s68, s38, 8"); A(f"s_add_u32 s68, s68, {WS_CNT}")
    A("s_cmp_lg_u32 s39, 0"); A("s_cbranch_scc1 L_nocnt")
    A("s_mov_b64 exec, 1")
    A(f"buffer_store_dword v{vZERO}, v{vZERO}, {SWS}, s68 offen sc1")
    A("s_mov_b64 exec, -1")
    A("s_waitcnt vmcnt(33)")
    A("s_branch L_cntj")
    A.label("L_nocnt")
    A("s_waitcnt vmcnt(32)")
    A.label("L_cntj")
    for k in range(5):
        A(f"v_lshlrev_b32 v{XA+2*k}, 16, v{XA+2*k+1}"); A(f"v_and_b32 v{XA+2*k+1}, 0xffff0000, v{XA+2*k+1}")
    A(f"v_lshlrev_b32 v{X0}, 16, v{X1}"); A(f"v_and_b32 v{X1}, 0xffff0000, v{X1}")
    t = vT + 8; a = XA
    A(f"v_add_f32 v{t}, v{a}, v{a+1}")
    for i in range(2, 10): A(f"v_add_f32 v{t}, v{t}, v{a+i}")
    wave_red("v_add_f32", t, t+1)
    A(f"v_mul_f32 v{t}, {fh(1.0/640)}, v{t}")
    for i in range(10): A(f"v_sub_f32 v{a+i}, v{a+i}, v{t}")
    A(f"v_mul_f32 v{t+2}, v{a}, v{a}")
    for i in range(1, 10): A(f"v_fmac_f32 v{t+2}, v{a+i}, v{a+i}")
    wave_red("v_add_f32", t+2, t+1)
    A(f"v_mul_f32 v{t+2}, {fh(1.0/640)}, v{t+2}")
    rbf2(t, t+2)
    A(f"v_add_f32 v{t+2}, {fh(1e-5)}, v{t+2}"); rbf(t+2, t+2)
    A(f"v_sqrt_f32 v{t+2}, v{t+2}"); rbf(t+2, t+2)
    A(f"v_rcp_f32 v{t+2}, v{t+2}")
    A(f"v_sub_f32 v{X0}, v{X0}, v{t}"); A(f"v_sub_f32 v{X1}, v{X1}, v{t}"); rbf2(X0, X1)
    A(f"v_mul_f32 v{X0}, v{X0}, v{t+2}"); A(f"v_mul_f32 v{X1}, v{X1}, v{t+2}"); rbf2(X0, X1)
    A("s_lshl_b32 s6, s39, 12"); A(f"s_add_u32 s6, s6, {WS_MODP}"); A(f"s_add_u32 s7, s6, {5*4096}")
    stamp(1)
    spre("s6", [(n // 4)*5*4096 + (n % 4)*1024 for n in range(8)])
    poll([(vLANE16, f"s{6+n//4}", (n % 4)*1024, None) for n in range(8)], RING)
    stamp(2)
    sum2([RING+4*n for n in range(4)]); sum2([RING+16+4*n for n in range(4)])
    rbf2(RING, RING+1); rbf2(RING+16, RING+17)
    c0, c1, s0, s1 = RING+16, RING+17, RING, RING+1
    A(f"v_add_f32 v{c0}, 1.0, v{c0}"); A(f"v_add_f32 v{c1}, 1.0, v{c1}"); rbf2(c0, c1)
    A(f"v_mul_f32 v{X0}, v{X0}, v{c0}"); A(f"v_mul_f32 v{X1}, v{X1}, v{c1}"); rbf2(X0, X1)
    A(f"v_add_f32 v{X0}, v{X0}, v{s0}"); A(f"v_add_f32 v{X1}, v{X1}, v{s1}")
    A(f"v_cvt_pk_bf16_f32 v{X0}, v{X0}, v{X0}"); A(f"v_cvt_pk_bf16_f32 v{X1}, v{X1}, v{X1}")
    gemv(vACC, vM2, [((X0, X1)[n // 16], f"row_newbcast:{n % 16}", WQ + 4*n, None) for n in range(32)])
    A(f"v_lshlrev_b32 v{vT}, 3, v{vLANE}")
    A(f"s_cmp_eq_u32 {sWAVE}, 0"); A("s_cbranch_scc1 L_qsum")
    A(f"s_lshl_b32 s68, {sWAVE}, 9"); A(f"v_add_u32 v{vT}, s68, v{vT}")
    A(f"ds_write_b64 v{vT}, {v2(vACC)} offset:{L_ACC - 6*512}")
    A("s_waitcnt lgkmcnt(0)")
    A("s_mov_b64 exec, 1"); A(f"ds_add_u32 v{vZERO}, v{vONE} offset:{L_MF}"); A("s_mov_b64 exec, -1")
    A("s_setprio 0")
    A(f"s_cmp_eq_u32 {sWAVE}, 7"); A("s_cbranch_scc1 L_soft")
    A("s_branch L_help7")
    A.label("L_qsum")
    lds_wait(L_MF, 2)
    A(f"ds_read_b64 {v2(RING)}, v{vT} offset:{L_ACC}"); A(f"ds_read_b64 {v2(RING+2)}, v{vT} offset:{L_ACC+512}")
    A("s_lshl_b32 s68, s38, 1"); A("s_add_u32 s68, s68, s37"); A("s_lshl_b32 s68, s68, 10"); A(f"s_add_u32 s68, s68, {WS_QP}")
    A("s_waitcnt lgkmcnt(0)")
    A(f"v_pk_add_f32 {v2(vACC)}, {v2(vACC)}, {v2(RING)}"); A(f"v_pk_add_f32 {v2(vACC)}, {v2(vACC)}, {v2(RING+2)}")
    publish(vACC, vNAT, "s68")
    A.label("L_hop2")
    stamp(3)
    A(f"s_lshl_b32 s6, {sHD}, 11"); A(f"s_add_u32 s6, s6, {WS_QP}")
    spre("s6", [n*1024 for n in range(2)])
    poll([(vLANE16, "s6", n*1024, None) for n in range(2)], RING)
    sum2([RING+4*n for n in range(2)])
    A(f"v_cvt_pk_bf16_f32 v{RING}, v{RING}, v{RING+1}")
    A(f"v_lshlrev_b32 v{vT}, 2, v{vLANE}")
    A(f"ds_write_b32 v{vT}, v{RING} offset:{L_Q}")
    A("s_waitcnt lgkmcnt(0)")
    A(f"ds_write_b32 v{vZERO}, v{vONE} offset:{L_QF}")
    stamp(4)
    A("s_setprio 0")
    A.label("L_ctrl_w")
    if abl: A("s_barrier"); A("s_endpgm"); A.label("L_abl_dead2")
    if cearly and not cstart: tail_loads(True)
    A(f"s_cmp_ge_u32 {sF}, 54"); A("s_cbranch_scc1 L_cnomr")
    srd(SB, "s4", "s5", 1280)
    A(f"v_lshlrev_b32 v{vT}, 2, v{vLANE}"); A(f"v_lshlrev_b32 v{vT+1}, 3, v{vLANE}")
    for k in range(5): A(f"buffer_load_dword v{vAOP+2*k+1}, v{vT}, {SB}, 0 offen offset:{k*256}")
    A("s_waitcnt vmcnt(0)")
    for k in range(5):
        A(f"v_lshlrev_b32 v{vAOP+2*k}, 16, v{vAOP+2*k+1}"); A(f"v_and_b32 v{vAOP+2*k+1}, 0xffff0000, v{vAOP+2*k+1}")
        A(f"ds_write_b64 v{vT+1}, {v2(vAOP+2*k)} offset:{L_X2 + 512*k}")
    for arr in range(4):
        for i, o in enumerate((0, 4096, 20480, 24576)): A(f"s_mov_b32 s{40+i}, {WS_MR + arr*5120 + o}")
        poll([(vLANE16, f"s{40 + 2*h + (k // 4)}", (k % 4)*1024, None) for k in range(5) for h in range(2)], RING)
        for k in range(5):
            b = RING + 8*k
            A(f"v_pk_add_f32 {v2(b)}, {v2(b)}, {v2(b+4)}"); rbf2(b, b+1)
            if arr == 2:
                A(f"v_add_f32 v{b}, 1.0, v{b}"); A(f"v_add_f32 v{b+1}, 1.0, v{b+1}"); rbf2(b, b+1)
            A(f"ds_write_b64 v{vT+1}, {v2(b)} offset:{L_MOD + arr*2560 + 512*k}")
    A.label("L_cnomr")
    A(f"s_lshl_b32 s8, {sHD}, 3"); A(f"s_add_u32 s8, s8, {sS}"); A("s_lshl_b32 s8, s8, 10"); A(f"s_add_u32 s8, s8, {WS_OP}")
    A(f"v_lshlrev_b32 v{vT}, 3, v{vLANE}"); A(f"v_mov_b32 v{TMP+3}, {sTAG}")
    A("s_waitcnt vmcnt(0) lgkmcnt(0)")
    stamp(5)
    A("s_barrier")
    stamp(6)
    NPART = NL + (1 if KAP else 0)
    for w in range(NPART): A(f"ds_read_b64 {v2(RING+2*w)}, v{vT} offset:{L_PART+512*w}")
    A("s_waitcnt lgkmcnt(0)")
    sum2([RING+2*w for w in range(NPART)], TMP)
    A(f"buffer_store_dwordx4 {v4(TMP)}, v{vLANE16}, {SWS}, s8 offen sc1")
    stamp(13)
    A("s_branch L_tail" if cearly else "s_branch L_tail0")
    A.label("L_end")
    A("s_endpgm")
    A('.section .rodata,"a"'); A(".p2align 6"); A(f".amdhsa_kernel {KN}")
    A(".amdhsa_next_free_vgpr 256"); A(".amdhsa_next_free_sgpr 100"); A(".amdhsa_accum_offset 256")
    A(".amdhsa_group_segment_fixed_size 0"); A(".amdhsa_kernarg_size 112"); A(".amdhsa_user_sgpr_count 2")
    A(".amdhsa_user_sgpr_kernarg_segment_ptr 1"); A(".amdhsa_system_sgpr_workgroup_id_x 1")
    A(".amdhsa_float_denorm_mode_32 3")
    A(".end_amdhsa_kernel")
    return A.finalize()

def check_inter(w, inter):
    import numpy as np
    def cmp(name, got, exp):
        err = np.abs(got - exp).max(); rel = np.linalg.norm(got - exp) / np.linalg.norm(exp)
        print("   inter %-5s maxabs %.4e (scale %.3e) relL2 %.3e nan=%d" % (name, err, np.abs(exp).max(), rel, int(np.isnan(got).sum())), got[:4], exp[:4])
    def bf(x):
        u = x.astype(np.float32).view(np.uint32); u = (u + 0x7fff + ((u >> 16) & 1)) & 0xffff0000
        return u.view(np.float32)
    gr = lambda off, n: w[off // 4: off // 4 + n*4].reshape(n, 4)
    md = np.concatenate([gr(WS_MODP, 10*4*64)[:, :2].reshape(10, 4, 128).sum(1).reshape(-1), gr(WS_MR, 2*1280)[:, :2].reshape(2, 2560).sum(0)])
    cmp("mod", md, inter["mod"]); print("      mod bf16 mismatches", int((bf(md) != inter["mod"]).sum()))
    q = gr(WS_QP, 32*2*64)[:, :2].reshape(32, 2, 128).sum(1).reshape(-1)
    cmp("q", q, inter["q"]); print("      q bf16 mismatches", int((bf(q) != inter["q"]).sum()))
    o = gr(WS_OP, 32*8*64)[:, :2].reshape(32, 8, 128).sum(1).reshape(-1)
    cmp("o", o, inter["o"]); print("      o bf16 mismatches", int((bf(o) != inter["o"]).sum()))
    yp = w[WS_YP // 4: WS_YP // 4 + 8*640].view(np.uint32).reshape(8, 320, 2)[:, :, 0]
    ya = np.stack([(yp << 16).view(np.float32), (yp & 0xffff0000).view(np.float32)], axis=-1).reshape(8, 640)
    cmp("at", ya.sum(0), inter["at"])
    cmp("dn", gr(WS_DP, 54*320)[:, :2].reshape(54, 640).sum(0), inter["dn"])

if __name__ == "__main__":
    out = sys.argv[1]
    kw = {}
    for a in sys.argv[2:]:
        k, v = a.split("=")
        kw[k] = eval(v)
    open(out, "w").write(gen(**kw))
```

```python
import sys, struct
from asmdsl import Asm
KN = "adaLN_cond__gqa_block_cached__swiglu_ffn__decode_kernel"

def f2u(x): return struct.unpack("<I", struct.pack("<f", x))[0]
def fh(x): return hex(f2u(x))
LOG2E = 1.4426950408889634
SCALE = 128 ** -0.5

WS_MODP = 0x1000
WS_QP   = WS_MODP + 10*4*1024
WS_SP   = WS_QP + 32*2*1024
WS_OP   = WS_SP + 32*8*1024
WS_YP   = WS_OP + 32*8*1024
WS_DP   = WS_YP + 8*8*2560
WS_MR   = WS_DP + 54*5120
WS_CNT  = WS_MR + 2*20480
WS_END  = WS_CNT + 32*256
WS_STAMP = 0x10000000
L_KT, L_VT, L_QF, L_PF, L_KD, L_RANK, L_MF, L_N6, L_LAM = 0, 4, 8, 12, 16, 20, 24, 28, 32
L_Q = 0x100
L_ST = 0x200
L_PART = 0x400
L_ACC = 0x1000
L_X2 = 0x2000
L_P = 0x3000
L_MOD = 0x5000
L_END = 0x7800
DPPF = "row_mask:0xf bank_mask:0xf"

def gen(stamps=0, pol="nt", NK=12, NV=10, NS=120, NL=5, SLP=16, wake=False, KAP=26, LAG0=20, CAP=20, SLK=4, psl=0, ROT=304, abl=0, PFTH=1, LTH=63, cearly=True, CTH=63, QK=(0, 8, 4, 3, 0, 10, 6), cstart=True, tp="", pp="", DNP=1, wbar=False, EW=(), NR=4, TW=0, TWD=4, now=0, pf=True, pf2=True, Q_wo=999, Q_ffn=999):
    NP = 8 * (128 - NS); Q_wo = min(Q_wo, NP); Q_ffn = min(Q_ffn, NP)
    A = Asm()
    uid = [0]
    def U(p):
        uid[0] += 1; return f"L_{p}_{uid[0]}"
    sWAVE, sHD, sS, sTAG, sK, sG = "s3", "s32", "s33", "s34", "s35", "s36"
    SK, SV, SWS, SA, SB = "s[40:43]", "s[44:47]", "s[48:51]", "s[52:55]", "s[56:59]"
    sTP, sST, sL2E, sSC, sTO, sF, sTK = "s60", "s61", "s62", "s63", "s64", "s65", "s66"
    sROT, sQ, SCNT = "s37", "s29", "s[38:39]"
    def stamp(k):
        if stamps: A(f"s_memrealtime s[{70+2*k}:{71+2*k}]")
    def stamp_dump(slots, xcc=False, final=True):
        if not stamps: return
        A("s_waitcnt lgkmcnt(0)")
        A("s_mov_b64 exec, 1")
        A(f"s_lshl_b32 s69, s2, 7"); A(f"s_add_u32 s69, s69, {WS_STAMP}")
        A("s_mov_b32 s50, 0x20000000")
        for k in slots:
            A(f"v_mov_b32 v{vT+10}, s{70+2*k}"); A(f"v_mov_b32 v{vT+11}, s{71+2*k}")
            A(f"buffer_store_dwordx2 v[{vT+10}:{vT+11}], v{vZERO}, {SWS}, s69 offen offset:{k*8}")
            A("s_nop 1")
        if xcc:
            A("s_getreg_b32 s68, hwreg(HW_REG_XCC_ID)")
            A(f"v_mov_b32 v{vT+10}, s68"); A(f"v_mov_b32 v{vT+11}, 0")
            A(f"buffer_store_dwordx2 v[{vT+10}:{vT+11}], v{vZERO}, {SWS}, s69 offen offset:120")
        if not final: A("s_mov_b64 exec, -1")
    def srd(S, lo, hi, n):
        b = int(S[2:S.index(":")])
        A(f"s_mov_b32 s{b}, {lo}"); A(f"s_mov_b32 s{b+1}, {hi}"); A(f"s_mov_b32 s{b+2}, {n}"); A(f"s_mov_b32 s{b+3}, 0x20000")
    def v4(b): return f"v[{b}:{b+3}]"
    def v2(b): return f"v[{b}:{b+1}]"
    def dpp_red(op, vs, ctls):
        for ctl in ctls:
            for v in vs: A(f"{op}_dpp v{v}, v{v}, v{v} {ctl}")
    QUAD = [f"quad_perm:[1,0,3,2] {DPPF}", f"quad_perm:[2,3,0,1] {DPPF}"]
    BANK = [f"row_ror:4 {DPPF}", f"row_ror:8 {DPPF}"]
    BCAST = ["row_bcast:15 row_mask:0xa bank_mask:0xf", "row_bcast:31 row_mask:0xc bank_mask:0xf"]
    def xrow(op, v, t, which):
        A(f"v_mov_b32 v{t}, v{v}"); A(f"v_permlane{which}_swap_b32 v{v}, v{t}"); A(f"{op} v{v}, v{v}, v{t}")
    def wave_red(op, v, t):
        dpp_red(op, [v], QUAD + BANK); xrow(op, v, t, 16); xrow(op, v, t, 32)
    def rbf(d, s):
        A(f"v_cvt_pk_bf16_f32 v{d}, v{s}, v{s}"); A(f"v_and_b32 v{d}, 0xffff0000, v{d}")
    def rbf2(a, b):
        A(f"v_cvt_pk_bf16_f32 v{b}, v{a}, v{b}"); A(f"v_lshlrev_b32 v{a}, 16, v{b}"); A(f"v_and_b32 v{b}, 0xffff0000, v{b}")
    vLANE16, vZERO, vONE, vTKT, vADDR, vPB, vPW, vL = 1, 2, 3, 4, 5, 6, 7, 8
    vLANE, vNAT, vBAD = 9, 10, 11
    vQ, vM2, vACC = 12, 16, 20
    vR, vA_, vB_, vC_, vE_ = 24, 28, 29, 30, 31
    vAOP = 32
    vT = 48
    vM1 = 60
    RING = 64
    WT = RING + 48
    WD = WT + 80
    WD2 = WD + 32
    TMP = RING + 32
    ACC2 = RING + 40
    PF = RING + 44
    def publish(b, voff, soff):
        A(f"v_mov_b32 v{b+3}, {sTAG}")
        A(f"buffer_store_dwordx4 {v4(b)}, v{voff}, {SWS}, {soff} offen sc1")
    def poll(loads, base, tags=(3,), extra=None, nextra=0):
        n = len(loads)
        dst = base if isinstance(base, list) else [base + 4*i for i in range(n)]
        L = U("poll"); Ld = U("pdone")
        def one(k):
            for idx, (vo, so, imm, em) in enumerate(loads):
                if em is not None: A(f"s_mov_b64 exec, {em}")
                A(f"buffer_load_dwordx4 {v4(dst[idx])}, v{vo}, {SWS}, {so} offen offset:{imm} sc1")
                if em is not None: A("s_mov_b64 exec, -1")
            if k: extra()
            first = True
            for idx in range(n):
                d = dst[idx]
                A(f"s_waitcnt vmcnt({k + n-1-idx})")
                for tp in tags:
                    if first: A(f"v_xor_b32 v{vBAD}, {sTAG}, v{d+tp}"); first = False
                    else: A(f"v_bitop3_b32 v{vBAD}, v{vBAD}, v{d+tp}, {sTAG} bitop3:0xf6")
            A(f"v_cmp_ne_u32 vcc, 0, v{vBAD}")
            A(f"s_cbranch_vccz {Ld}")
        if extra: one(nextra)
        A(f"s_mov_b32 {sTO}, 0x40000")
        A.label(L)
        one(0)
        A(f"s_sub_u32 {sTO}, {sTO}, 1")
        A(f"s_cmp_lg_u32 {sTO}, 0")
        A(f"s_cbranch_scc1 {L}")
        A.label(Ld)
    def spre(sbase, offs, sl=None):
        R = [40, 41, 42, 43, 44, 45, 46, 47, 14, 15, 28, 29, 60, 61, 66, 67]
        L = U("spoll"); Ld = U("spd")
        A(f"s_add_u32 s68, s30, {sbase}"); A("s_addc_u32 s69, s31, 0")
        A(f"s_mov_b32 {sTO}, 0x40000")
        A.label(L)
        sl = psl if sl is None else sl
        if sl: A(f"s_sleep {sl}")
        for i, o in enumerate(offs): A(f"s_load_dword s{R[i]}, s[68:69], {o + 1020} glc")
        A(f"s_sub_u32 {sTO}, {sTO}, 1"); A(f"s_cmp_eq_u32 {sTO}, 0"); A(f"s_cbranch_scc1 {Ld}")
        A("s_waitcnt lgkmcnt(0)")
        for i, o in enumerate(offs):
            A(f"s_cmp_lg_u32 s{R[i]}, {sTAG}"); A(f"s_cbranch_scc1 {L}")
        A.label(Ld)
        A("s_waitcnt lgkmcnt(0)")
    def lds_wait(off, val, slow=False, slp=None):
        L = U("lw"); Ld = U("lwd")
        A(f"s_mov_b32 {sTO}, 0x400000")
        A.label(L)
        if slow: A(f"s_sleep {SLP if slp is None else slp}")
        A(f"ds_read_b32 v{vBAD}, v{vZERO} offset:{off}")
        A(f"s_sub_u32 {sTO}, {sTO}, 1"); A(f"s_cmp_eq_u32 {sTO}, 0"); A(f"s_cbranch_scc1 {Ld}")
        A("s_waitcnt lgkmcnt(0)")
        A(f"v_cmp_gt_u32 vcc, {val}, v{vBAD}")
        A(f"s_cbranch_vccnz {L}")
        A.label(Ld)
    def sum2(bases, dst=None):
        bs = list(bases)
        while len(bs) > 1:
            nb = []
            for i in range(0, len(bs) - 1, 2):
                d = dst if (dst is not None and len(bs) == 2) else bs[i]
                A(f"v_pk_add_f32 {v2(d)}, {v2(bs[i])}, {v2(bs[i+1])}"); nb.append(d)
            if len(bs) % 2: nb.append(bs[-1])
            bs = nb
    def gemv(acc, mask, items, acc2=None, w2=None, keep=False):
        def mf(n):
            (x0, c0, w0, wc0) = items[n]
            if wc0 is not None: A(f"s_waitcnt vmcnt({wc0})")
            A(f"v_mfma_f32_16x16x32_bf16 {v4(acc)}, {v4(vAOP + 4*(n % 4))}, {v4(w0)}, {'0' if (n == 0 and not keep) else v4(acc)}")
            if acc2 is not None:
                A(f"v_mfma_f32_16x16x32_bf16 {v4(acc2)}, {v4(vAOP + 4*(n % 4))}, {v4(w2+4*n)}, {'0' if n == 0 else v4(acc2)}")
        for n, (x, ctl, w, wc) in enumerate(items):
            a = vAOP + 4 * (n % 4)
            for t in range(4): A(f"v_and_b32_dpp v{a+t}, v{x}, v{mask+t} {ctl} {DPPF}")
            if n >= 1: mf(n-1)
        mf(len(items) - 1)
    def ysplit(xs, y):
        for i, x in enumerate(xs): A(f"v_mov_b32 v{y+2*i}, v{x}"); A(f"v_mov_b32 v{y+2*i+1}, v{x}")
        for i, x in enumerate(xs):
            A(f"v_mov_b32_dpp v{y+2*i}, v{x} row_shr:4 row_mask:0xf bank_mask:0xa")
            A(f"v_mov_b32_dpp v{y+2*i+1}, v{x} row_shl:4 row_mask:0xf bank_mask:0x5")
    qp = lambda k: f"quad_perm:[{k},{k},{k},{k}]"
    def silu(x, t):
        A(f"v_mul_f32 v{t}, {fh(-LOG2E)}, v{x}"); A(f"v_exp_f32 v{t}, v{t}")
        A(f"v_add_f32 v{t}, 1.0, v{t}"); A(f"v_rcp_f32 v{t}, v{t}"); A(f"v_mul_f32 v{x}, v{x}, v{t}")
    def acc_addr(d):
        A(f"v_and_b32 v{d}, 7, v{vLANE}"); A(f"v_lshlrev_b32 v{d}, 5, v{d}")
        A(f"v_and_b32 v{vT+11}, 16, v{vLANE}"); A(f"v_add_u32 v{d}, v{d}, v{vT+11}")
        A(f"v_lshrrev_b32 v{vT+11}, 5, v{vLANE}"); A(f"v_lshl_add_u32 v{d}, v{vT+11}, 8, v{d}")
        A(f"s_lshl_b32 s68, {sWAVE}, 9"); A(f"v_add_u32 v{d}, s68, v{d}")
    def acc_write(d):
        A("s_mov_b32 exec_lo, 0x00ff00ff"); A("s_mov_b32 exec_hi, 0xff00ff00")
        A(f"ds_write_b128 v{d}, {v4(vACC)} offset:{L_ACC}")
        A("s_mov_b64 exec, -1")
    def mod_loads(scb, srb):
        wb = RING
        srd(SA, "s24", "s25", 640*7680); srd(SB, "s22", "s23", 1280)
        A(f"v_lshrrev_b32 v{vT}, 4, v{vLANE}"); A(f"v_mul_u32_u24 v{vT}, 40, v{vT}")
        A(f"v_and_b32 v{vT+1}, 15, v{vLANE}"); A(f"v_add_u32 v{vT+2}, v{vT}, v{vT+1}"); A(f"v_lshlrev_b32 v{vT+2}, 1, v{vT+2}")
        A(f"v_and_b32 v{vT+3}, 7, v{vLANE}"); A(f"v_add_u32 v{vT+3}, v{vT}, v{vT+3}"); A(f"v_lshlrev_b32 v{vT+3}, 1, v{vT+3}")
        A(f"s_mul_i32 s69, {srb}, 320")
        A(f"buffer_load_ushort v{vR}, v{vT+2}, {SB}, s69 offen")
        A(f"buffer_load_ushort v{vR+1}, v{vT+2}, {SB}, s69 offen offset:32")
        A(f"buffer_load_ushort v{vR+2}, v{vT+3}, {SB}, s69 offen offset:64")
        A(f"v_mul_u32_u24 v{vT}, 7680, v{vT}"); A(f"v_lshl_add_u32 v{vT}, v{vT+1}, 4, v{vT}")
        A(f"s_mul_i32 s69, {srb}, {160*7680}"); A(f"s_lshl_b32 s68, {scb}, 8"); A("s_add_u32 s68, s69, s68")
        for t in range(40):
            A(f"buffer_load_dwordx4 {v4(wb+4*t)}, v{vT}, {SA}, s68 offen {pol}")
            if t < 39: A("s_add_u32 s68, s68, 7680")
    def mod_compute():
        wb = RING
        A("s_waitcnt vmcnt(40)")
        for k in range(3):
            A(f"v_lshlrev_b32 v{vR+k}, 16, v{vR+k}"); silu(vR+k, vR+3); A(f"v_cvt_pk_bf16_f32 v{vR+k}, v{vR+k}, v{vR+k}")
        gemv(vACC, vM2, [(vR + t // 16, f"row_newbcast:{t % 16}", wb+4*t, 39-t) for t in range(40)])
    def common_setup():
        A(f"s_load_dword {sTAG}, s[30:31], 0")
        srd(SWS, "s30", "s31", WS_END)
        A(f"v_and_b32 v{vT}, 1, v{vLANE}"); A(f"v_lshlrev_b32 v{vT}, 4, v{vT}"); A(f"v_mov_b32 v{vT+1}, 0xffff"); A(f"v_lshlrev_b32 v{vT}, v{vT}, v{vT+1}")
        A(f"v_bfe_u32 v{vT+1}, v{vLANE}, 1, 2")
        A(f"v_bfe_u32 v{vT+2}, v{vLANE}, 1, 3")
        for t in range(4):
            A(f"v_cmp_eq_u32 vcc, {t}, v{vT+1}"); A(f"v_cndmask_b32 v{vM1+t}, 0, v{vT}, vcc")
            A(f"v_cmp_eq_u32 vcc, {2*t}, v{vT+2}"); A(f"v_cndmask_b32 v{vM2+t}, 0, v{vT}, vcc")
        A(f"v_and_b32 v{vT}, 15, v{vLANE}"); A(f"v_lshlrev_b32 v{vT}, 6, v{vT}"); A(f"v_and_b32 v{vT+1}, 48, v{vLANE}"); A(f"v_add_u32 v{vNAT}, v{vT}, v{vT+1}")
        A("s_waitcnt lgkmcnt(0)")
        A(f"s_add_u32 {sTAG}, {sTAG}, 0x01010101")
    def gu_loads(Ld, LTH, sWAVE=sWAVE):
        vT = vAOP
        if Ld:
            A(f"s_cmp_ge_u32 {sF}, 54"); A(f"s_cbranch_scc1 {Ld}")
            A(f"s_cmp_gt_u32 {sWAVE}, 3"); A(f"s_cbranch_scc1 {Ld}")
        A(f"v_and_b32 v{vT+2}, 4, v{vLANE}"); A(f"v_cmp_eq_u32 vcc, 0, v{vT+2}")
        A(f"v_mov_b32 v{vT+2}, s18"); A(f"v_mov_b32 v{vT+3}, s16"); A(f"v_cndmask_b32 v{vT+6}, v{vT+2}, v{vT+3}, vcc")
        A(f"v_mov_b32 v{vT+2}, s19"); A(f"v_mov_b32 v{vT+3}, s17"); A(f"v_cndmask_b32 v{vT+7}, v{vT+2}, v{vT+3}, vcc")
        A(f"s_mul_i32 s69, {sWAVE}, {160*3456}"); A(f"s_lshl_b32 s68, {sF}, 6"); A("s_add_u32 s69, s69, s68")
        A(f"v_and_b32 v{vT+4}, 3, v{vLANE}"); A(f"v_lshl_add_u32 v{vT+4}, v{vT+4}, 4, s69")
        A(f"v_lshrrev_b32 v{vT+5}, 3, v{vLANE}")
        for (mul, add, rows) in ((16*3456, 0, [(k, y) for k in range(4) for y in range(4)]), (4*3456, 128*3456, [(k, 4) for k in range(4)])):
            A(f"v_mul_u32_u24 v{vT+1}, {mul}, v{vT+5}"); A(f"v_add_u32 v{vT+1}, v{vT+1}, v{vT+4}")
            if add: A(f"v_add_u32 v{vT+1}, {add}, v{vT+1}")
            A(f"v_add_co_u32 v{vT+2}, vcc, v{vT+6}, v{vT+1}"); A(f"v_addc_co_u32 v{vT+3}, vcc, 0, v{vT+7}, vcc")
            for i, (k, y) in enumerate(rows):
                A(f"global_load_dwordx4 {v4(WT+4*(y*4+k))}, {v2(vT+2)}, off offset:{(i%2)*3456} {tp}")
                if LTH < 63: A(f"s_waitcnt vmcnt({LTH})")
                if i % 2 == 1 and i < len(rows) - 1:
                    A(f"v_add_co_u32 v{vT+2}, vcc, {2*3456}, v{vT+2}"); A(f"v_addc_co_u32 v{vT+3}, vcc, 0, v{vT+3}, vcc")
    def dn_prep():
        srd(SA, "s20", "s21", 1728*1280)
        A(f"v_lshrrev_b32 v{vT+1}, 4, v{vLANE}"); A(f"v_mul_u32_u24 v{vT+1}, {8*1280}, v{vT+1}")
        A(f"v_and_b32 v{vT+2}, 15, v{vLANE}"); A(f"v_lshl_add_u32 v{vT+1}, v{vT+2}, 4, v{vT+1}")
        A(f"s_mul_i32 s60, {sF}, {32*1280}"); A("s_lshl_b32 s68, s23, 8"); A("s_add_u32 s60, s60, s68")
    def dn_issue(Ld):
        A("s_mov_b32 s69, s60")
        for t in range(8):
            if t % 2 == 0: A(f"s_add_u32 s68, s69, {t*1280}")
            A(f"buffer_load_dwordx4 {v4(WD+4*t)}, v{vT+1}, {SA}, s68 offen offset:{(t%2)*1280} {tp}")
        A(f"s_cmp_lg_u32 {sWAVE}, 5"); A(f"s_cbranch_scc1 {Ld}")
        for t in range(8):
            if t % 2 == 0: A(f"s_add_u32 s68, s69, {t*1280}")
            A(f"buffer_load_dwordx4 {v4(WD2+4*t)}, v{vT+1}, {SA}, s68 offen offset:{(t%2)*1280 + 768} {tp}")
    def wo_loads():
        srd(SA, "s12", "s13", 4096*1280)
        A(f"v_bfe_u32 v{vT+1}, v{vLANE}, 4, 1"); A(f"v_lshlrev_b32 v{vT+1}, 5, v{vT+1}")
        A(f"v_lshrrev_b32 v{vT+2}, 5, v{vLANE}"); A(f"v_add_u32 v{vT+1}, v{vT+1}, v{vT+2}")
        A(f"v_bfe_u32 v{vT+2}, v{vLANE}, 3, 1"); A(f"v_lshl_add_u32 v{vT+1}, v{vT+2}, 4, v{vT+1}")
        A(f"v_mul_u32_u24 v{vT+1}, 1280, v{vT+1}")
        A(f"v_and_b32 v{vT+2}, 7, v{vLANE}"); A(f"v_lshl_add_u32 v{vT+1}, v{vT+2}, 4, v{vT+1}")
        A(f"s_lshr_b32 s68, {sWAVE}, 1"); A("s_lshl_b32 s68, s68, 3"); A(f"s_add_u32 s68, s68, {sG}"); A("s_lshl_b32 s68, s68, 1")
        A(f"s_and_b32 s69, {sWAVE}, 1"); A("s_add_u32 s68, s68, s69"); A(f"s_mul_i32 s69, s68, {64*1280}")
        A(f"s_lshl_b32 s68, {sK}, 7"); A("s_add_u32 s69, s69, s68")
        for n in range(8):
            if n % 2 == 0: A(f"s_add_u32 s68, s69, {2*n*1280}")
            A(f"buffer_load_dwordx4 {v4(WT+4*n)}, v{vT+1}, {SA}, s68 offen offset:{(n%2)*2560} {tp}")
    def tail_loads(dn):
        Lw, Ld = U("lwo"), U("ldone")
        A(f"s_cmp_lt_u32 {sK}, 10"); A(f"s_cbranch_scc1 {Lw}")
        if not (now & 1):
            gu_loads(Ld, CTH if dn else LTH)
        A(f"s_branch {Ld}")
        A.label(Lw)
        if not (now & 2): wo_loads()
        A.label(Ld)

    A(f"; @launch grid=(256,1,1) block=(512,1,1) lds={L_END}")
    A('.amdgcn_target "amdgcn-amd-amdhsa--gfx950"')
    A(".text"); A(f".globl {KN}"); A(".p2align 8"); A(f".type {KN},@function"); A.label(KN)
    stamp(0)
    A("s_cmp_ge_u32 s2, 256"); A("s_cbranch_scc1 L_end")
    A("s_load_dwordx16 s[4:19], s[0:1], 0")
    A("s_load_dwordx8 s[20:27], s[0:1], 64")
    A("s_load_dwordx4 s[28:31], s[0:1], 96")
    A("v_lshrrev_b32 v1, 6, v0"); A(f"v_and_b32 v{vLANE}, 63, v0")
    A(f"v_readfirstlane_b32 {sWAVE}, v1")
    A(f"v_lshlrev_b32 v{vLANE16}, 4, v{vLANE}")
    A(f"s_lshr_b32 {sHD}, s2, 3"); A(f"s_and_b32 {sG}, s2, 7"); A(f"s_lshl_b32 {sK}, {sG}, 2"); A(f"s_add_u32 {sK}, {sK}, {sHD}"); A(f"s_and_b32 {sK}, {sK}, 31")
    A(f"s_add_u32 {sS}, {sG}, {sHD}"); A(f"s_and_b32 {sS}, {sS}, 7")
    A(f"s_mov_b32 {sL2E}, {fh(LOG2E)}"); A(f"s_mov_b32 {sSC}, {fh(SCALE)}")
    A(f"s_sub_u32 s68, {sK}, 10"); A(f"s_mul_i32 {sF}, {sG}, 7"); A(f"s_add_u32 {sF}, {sF}, s68")
    A("s_cmp_lt_u32 s68, 7"); A(f"s_cselect_b32 {sF}, {sF}, 63")
    A(f"v_mov_b32 v{vZERO}, 0"); A(f"v_mov_b32 v{vONE}, 1")
    A(f"s_cmp_eq_u32 {sWAVE}, 0"); A("s_cbranch_scc1 L_ctrl0")
    A(f"s_cmp_gt_u32 {sWAVE}, {NL}"); A("s_cbranch_scc1 L_help")
    A(f"s_mul_i32 {sROT}, {sHD}, {ROT}"); A(f"s_lshl_b32 {sST}, {sS}, 7"); A(f"s_add_u32 {sST}, {sST}, {sROT}")
    A(f"s_lshl_b32 s68, {sHD}, 22")
    def tile_addr(sreg, add):
        A(f"s_add_u32 s69, {sreg}, {add}")
        if ROT: A("s_and_b32 s69, s69, 1023")
        A("s_lshl_b32 s69, s69, 12")
        A(f"v_add_u32 v{vADDR}, s69, v{vLANE16}")
    A(f"s_add_u32 s67, {sST}, {sWAVE}"); A("s_sub_u32 s67, s67, 1")
    tile_addr("s67", 0)
    if stamps == 6: stamp(2)
    A("s_waitcnt lgkmcnt(0)")
    A("s_add_u32 s40, s6, s68"); A("s_addc_u32 s41, s7, 0"); A("s_mov_b32 s42, 0x400000"); A("s_mov_b32 s43, 0x20000")
    G = lambda i: RING + 16*i
    def load(S, slot):
        for u in range(4): A(f"buffer_load_dwordx4 {v4(G(slot)+4*u)}, v{vADDR}, {S}, 0 offen offset:{u*1024} {pol}")
    load(SK, 0)
    if stamps == 6: stamp(3)
    A("s_add_u32 s44, s8, s68"); A("s_addc_u32 s45, s9, 0"); A("s_mov_b32 s46, 0x400000"); A("s_mov_b32 s47, 0x20000")
    A("s_barrier")
    common_setup()
    A(f"s_lshl_b32 s38, {sHD}, 8"); A(f"s_add_u32 s38, s38, {WS_CNT}"); A("s_add_u32 s38, s38, s30"); A("s_addc_u32 s39, s31, 0")
    A(f"s_mov_b32 {sQ}, {NP}"); A(f"s_cmp_lt_u32 {sF}, 54"); A(f"s_cselect_b32 {sQ}, {Q_ffn}, {sQ}"); A(f"s_cmp_lt_u32 {sK}, 10"); A(f"s_cselect_b32 {sQ}, {Q_wo}, {sQ}")
    A(f"v_and_b32 v{vPB}, 60, v{vLANE}")
    A(f"s_lshl_b32 s68, {sWAVE}, 6"); A("s_sub_u32 s68, s68, 64"); A(f"v_add_u32 v{vPW}, s68, v{vPB}")
    for r in range(4): A(f"v_mov_b32 v{vACC+r}, 0")
    for i in range(1, NK):
        tile_addr("s67", NL*i)
        A("s_waitcnt vmcnt(0)")
        if i == 1 and stamps in (4, 6): stamp(1)
        if i == 2 and stamps == 6: stamp(4)
        if i == 3 and stamps == 6: stamp(5)
        load(SK, i)
    if stamps == 4: stamp(2)
    A(f"v_and_b32 v{vT}, 15, v{vLANE}"); A(f"v_lshlrev_b32 v{vT}, 4, v{vT}")
    lds_wait(L_QF, 1)
    A(f"ds_read_b128 {v4(vQ)}, v{vT} offset:{L_Q}")
    A("s_waitcnt lgkmcnt(0)")
    def req(off):
        A("s_mov_b64 exec, 1"); A(f"ds_add_rtn_u32 v{vTKT}, v{vZERO}, v{vONE} offset:{off}"); A("s_mov_b64 exec, -1")
    def qk(slot, va, off):
        kb = G(slot)
        for t in range(4):
            for u in range(4):
                if t == 0: A(f"v_dot2_f32_bf16 v{vR+u}, v{kb+4*u}, v{vQ}, 0")
                else: A(f"v_dot2c_f32_bf16 v{vR+u}, v{kb+4*u+t}, v{vQ+t}")
        A(f"v_add_f32_dpp v{vA_}, v{vR}, v{vR} row_ror:8 row_mask:0xf bank_mask:0x3")
        A(f"v_add_f32_dpp v{vB_}, v{vR+2}, v{vR+2} row_ror:8 row_mask:0xf bank_mask:0x3")
        A(f"v_add_f32_dpp v{vA_}, v{vR+1}, v{vR+1} row_ror:8 row_mask:0xf bank_mask:0xc")
        A(f"v_add_f32_dpp v{vB_}, v{vR+3}, v{vR+3} row_ror:8 row_mask:0xf bank_mask:0xc")
        A(f"v_add_f32_dpp v{vC_}, v{vA_}, v{vA_} row_shl:4 row_mask:0xf bank_mask:0x5")
        A(f"v_add_f32_dpp v{vC_}, v{vB_}, v{vB_} row_shr:4 row_mask:0xf bank_mask:0xa")
        dpp_red("v_add_f32", [vC_], QUAD)
        rbf(vC_, vC_)
        A(f"v_mul_f32 v{vC_}, {sSC}, v{vC_}")
        rbf(vC_, vC_)
        A(f"ds_write_b32 v{va}, v{vC_} offset:{off}")
    def build(p):
        lane_of = [0, 8, 4, 12]
        for u in range(4):
            for t in range(4): A(f"v_and_b32_dpp v{vAOP+4*u+t}, v{p}, v{vM2+t} row_newbcast:{lane_of[u]} {DPPF}")
    def mm(slot):
        for u in range(4):
            A(f"v_mfma_f32_16x16x32_bf16 {v4(vACC)}, {v4(vAOP+4*u)}, {v4(G(slot)+4*u)}, {v4(vACC)}")
    LA, LB = 0, NK - 1
    qk(0, vPW, L_P)
    todo = list(range(1, NK - 1))
    cur, cur_i, nxt = LB, NK - 1, LA
    step = 0
    while todo:
        i = NK + step
        tile_addr("s67", NL*i)
        A("s_waitcnt vmcnt(0)")
        load(SK, nxt)
        if len(todo) <= 2: req(L_KT)
        qk(cur, vPW, L_P + NL*cur_i*64)
        for b in todo[:2]: qk(b, vPW, L_P + NL*b*64)
        todo = todo[2:]
        cur, nxt, cur_i = nxt, cur, i
        step += 1
    KT0 = NL * (NK + step)
    assert KT0 <= 128
    A(f"v_add_u32 v{vE_}, {NL*cur_i*64}, v{vPW}")
    if stamps == 4: stamp(3)
    order = [cur, nxt]
    A.label("L_k0")
    for n in range(2):
        X, Y = order[n], order[1-n]
        if n: A.label("L_k1")
        A("s_waitcnt lgkmcnt(0)")
        A(f"v_readfirstlane_b32 {sTK}, v{vTKT}")
        A(f"s_cmp_ge_u32 {sTK}, 128"); A(f"s_cbranch_scc1 L_kend{n}")
        tile_addr(sTK, sST)
        A("s_waitcnt vmcnt(0)")
        load(SK, Y)
        req(L_KT)
        qk(X, vE_, L_P)
        A(f"s_lshl_b32 s68, {sTK}, 6"); A(f"v_add_u32 v{vE_}, s68, v{vPB}")
    A("s_branch L_k0")
    for n in range(2):
        A.label(f"L_kend{n}")
        tile_addr("s67", 0)
        A("s_waitcnt vmcnt(0)")
        load(SV, 1)
        qk(order[n], vE_, L_P)
        if n == 0: A("s_branch L_vpre")
    A.label("L_vpre")
    A("s_waitcnt lgkmcnt(0)")
    A("s_mov_b64 exec, 1"); A(f"ds_add_u32 v{vZERO}, v{vONE} offset:{L_KD}"); A("s_mov_b64 exec, -1")
    if wake: A("s_waitcnt lgkmcnt(0)"); A("s_wakeup")
    if stamps == 4: stamp(4)
    for i in range(1, NV):
        tile_addr("s67", NL*i)
        A("s_waitcnt vmcnt(0)")
        load(SV, i + 1)
    if stamps == 4: stamp(5)
    lds_wait(L_PF, 1)
    A(f"ds_read_b32 v{vC_}, v{vZERO} offset:{L_LAM}")
    A(f"v_and_b32 v{vL}, 4, v{vLANE}"); A(f"v_lshlrev_b32 v{vL}, 2, v{vL}"); A(f"v_sub_u32 v{vL}, 16, v{vL}")
    A(f"s_lshl_b32 s14, {sHD}, 13"); A(f"s_add_u32 s14, s14, {WS_SP + (NS - 112)*32}"); A("s_add_u32 s14, s14, s30"); A("s_addc_u32 s15, s31, 0")
    nstep = NV // 2
    if nstep % 2: nstep += 1
    PR = vT
    assert NV + nstep <= 12 + 4
    preg = lambda i: (vT + i) if i < 12 else (vR + i - 12)
    for i in range(NV + nstep):
        A(f"ds_read_b32 v{preg(i)}, v{vPW} offset:{L_P + NL*i*64}")
        if i == 8: A("s_waitcnt lgkmcnt(2)")
    A("s_waitcnt lgkmcnt(0)")
    todo = [(i + 1, i) for i in range(NV)]
    live = [LA, LB]
    for j in range(nstep):
        tile_addr("s67", NL*(NV + j))
        A("s_waitcnt vmcnt(0)")
        load(SV, live[j % 2])
        if j == nstep - 1: req(L_VT)
        items = ([(live[(j-1) % 2], NV + j - 1)] if j else []) + todo[:2]
        todo = todo[2:]
        if j == nstep - 1: items += todo; todo = []
        for (sl, i) in items: build(preg(i)); mm(sl)
    build(preg(NV + nstep - 1))
    VT0 = NL * (NV + nstep)
    order = [LB, LA]
    A.label("L_v0")
    for n in range(2):
        X, Y = order[n], order[1-n]
        A("s_waitcnt lgkmcnt(0)")
        A(f"v_readfirstlane_b32 {sTK}, v{vTKT}")
        A(f"s_cmp_ge_u32 {sTK}, {NS}"); A(f"s_cbranch_scc1 L_din{n}")
        A(f"s_lshl_b32 s68, {sTK}, 6"); A(f"v_add_u32 v{vE_}, s68, v{vPB}")
        A(f"ds_read_b32 v{vE_}, v{vE_} offset:{L_P}")
        tile_addr(sTK, sST)
        A("s_waitcnt vmcnt(0) lgkmcnt(0)")
        load(SV, Y)
        req(L_VT)
        mm(X); build(vE_)
    A("s_branch L_v0")
    for n in range(2):
        A.label(f"L_din{n}")
        A(f"s_mov_b32 {sTK}, 1"); A(f"s_atomic_add {sTK}, {SCNT}, 0 glc")
        A(f"s_branch L_d{n}")
    for n in range(2):
        X, Y = order[n], order[1-n]
        A.label(f"L_d{n}")
        A("s_waitcnt lgkmcnt(0)")
        A(f"s_cmp_ge_u32 {sTK}, {NP}"); A(f"s_cbranch_scc1 L_vend{n}")
        A(f"s_and_b32 s68, {sTK}, 7"); A(f"s_lshr_b32 s67, {sTK}, 3")
        A("s_lshl_b32 s69, s68, 5"); A("s_add_u32 s69, s69, s67"); A("s_lshl_b32 s69, s69, 5")
        A("s_load_dwordx8 s[52:59], s[14:15], s69 glc")
        A("s_lshl_b32 s68, s68, 7"); A("s_add_u32 s68, s68, s67"); A(f"s_add_u32 s68, s68, {NS}")
        tile_addr("s68", sROT)
        A(f"s_cmp_ge_u32 {sTK}, {sQ}"); A(f"s_cselect_b32 {sTP}, {NP}, 0"); A(f"s_cselect_b32 {sTK}, 0, 1")
        A("s_waitcnt vmcnt(0)")
        load(SV, Y)
        mm(X)
        A("s_waitcnt lgkmcnt(0)")
        A(f"s_atomic_add {sTK}, {SCNT}, 0 glc")
        A("s_mov_b64 exec, 0xff")
        for j in range(8):
            A(f"v_lshlrev_b32 v{vE_}, v{vL}, s{52+j}")
            if j < 7: A("s_lshl_b64 exec, exec, 8")
        A("s_mov_b64 exec, -1")
        A(f"v_and_b32 v{vE_}, 0xffff0000, v{vE_}")
        A(f"v_fma_f32 v{vE_}, v{vE_}, {sL2E}, -v{vC_}")
        A(f"v_exp_f32 v{vE_}, v{vE_}")
        A(f"v_cvt_pk_bf16_f32 v{vE_}, v{vE_}, v{vE_}")
        build(vE_)
        if Q_wo < NP or Q_ffn < NP:
            A("s_waitcnt lgkmcnt(0)"); A(f"s_add_u32 {sTK}, {sTK}, {sTP}")
    A("s_branch L_d0")
    for n in range(2):
        A.label(f"L_vend{n}")
        if pf and not TW:
            A("s_mov_b64 exec, 1"); A(f"ds_add_rtn_u32 v{vTKT}, v{vZERO}, v{vONE} offset:{L_RANK}"); A("s_mov_b64 exec, -1")
        A(f"s_lshl_b32 s69, {sWAVE}, 9"); A(f"v_lshrrev_b32 v{vT}, 1, v{vNAT}"); A(f"v_add_u32 v{vT}, s69, v{vT}")
        A("s_waitcnt vmcnt(0)")
        mm(order[n])
        if n == 0: A("s_branch L_last")
    A.label("L_last")
    A(f"ds_write_b64 v{vT}, {v2(vACC)} offset:{L_PART-512}")
    A("s_waitcnt lgkmcnt(0)")
    def wo_prefetch(first, cnt, th):
        srd(SA, "s12", "s13", 4096*1280)
        A(f"s_and_b32 s68, {sHD}, 24"); A(f"s_add_u32 s68, s68, {sG}"); A(f"s_mul_i32 s68, s68, {128*1280}")
        A(f"s_and_b32 s69, {sHD}, 7"); A(f"s_mul_i32 s69, s69, {20*1024}"); A("s_add_u32 s68, s68, s69")
        if first: A(f"s_add_u32 s68, s68, {first}")
        for n in range(cnt):
            if n and n % 4 == 0: A("s_add_u32 s68, s68, 4096")
            A(f"buffer_load_dwordx4 {v4(PF)}, v{vLANE16}, {SA}, s68 offen offset:{(n%4)*1024} {pp}")
            if th < 63: A(f"s_waitcnt vmcnt({th})")
    if pf and not TW:
        A(f"v_readfirstlane_b32 s66, v{vTKT}")
        A(f"s_cmp_ge_u32 s66, {NR}"); A("s_cbranch_scc1 L_pfdone")
        A(f"s_mul_i32 s66, s66, {(20 // NR)*1024}")
        wo_prefetch("s66", 20 // NR, 63)
        A.label("L_pfdone")
    if stamps in (4, 6):
        A(f"s_cmp_lg_u32 {sWAVE}, 1"); A("s_cbranch_scc1 L_ns4")
        stamp_dump([1, 2, 3, 4, 5], final=False)
        A.label("L_ns4")
    A.label("L_join")
    A("s_barrier")
    if abl: A("s_endpgm"); A.label("L_abl_dead")
    if pf2:
        A(f"s_cmp_lt_u32 {sK}, 17"); A("s_cbranch_scc1 L_pf2done")
        A(f"s_sub_u32 s66, {sK}, 17"); A("s_mul_i32 s66, s66, 7"); A(f"s_add_u32 s66, s66, {sWAVE}"); A("s_sub_u32 s66, s66, 1")
        A("s_cmp_ge_u32 s66, 80"); A("s_cbranch_scc1 L_pf2dn")
        srd(SA, "s16", "s17", 640*3456); srd(SB, "s18", "s19", 640*3456)
        A(f"v_lshrrev_b32 v{vT+1}, 5, v{vLANE}"); A(f"v_mul_u32_u24 v{vT+1}, 3456, v{vT+1}")
        A(f"v_and_b32 v{vT+2}, 31, v{vLANE}"); A(f"v_lshl_add_u32 v{vT+1}, v{vT+2}, 4, v{vT+1}")
        A(f"s_mul_i32 s68, {sG}, 7"); A("s_lshr_b32 s68, s68, 1"); A("s_min_u32 s68, s68, 23"); A("s_lshl_b32 s68, s68, 7")
        npair = (3 if cearly else 4) - len(EW)
        A(f"s_mul_i32 s69, s66, {2*npair*3456}"); A("s_add_u32 s68, s68, s69"); A(f"s_add_u32 s68, s68, {(160 if cearly else 0)*3456}")
        for n in range(npair):
            for S in (SA, SB):
                A(f"buffer_load_dwordx4 {v4(PF)}, v{vT+1}, {S}, s68 offen {pp}")
                if PFTH < 63: A(f"s_waitcnt vmcnt({PFTH})")
            if n < npair - 1: A(f"s_add_u32 s68, s68, {2*3456}")
        A("s_waitcnt vmcnt(0)")
        A("s_endpgm")
        A.label("L_pf2dn")
        srd(SA, "s20", "s21", 1728*1280)
        A(f"s_mul_i32 s68, {sG}, {7*40960}"); A("s_sub_u32 s69, s66, 80"); A(f"s_mul_i32 s69, s69, {11520}"); A("s_add_u32 s68, s68, s69")
        A(f"v_add_u32 v{vT+1}, s68, v{vLANE16}")
        for n in range(12):
            if n and n % 4 == 0: A(f"v_add_u32 v{vT+1}, 0x1000, v{vT+1}")
            A(f"buffer_load_dwordx4 {v4(PF)}, v{vT+1}, {SA}, 0 offen offset:{(n%4)*1024} {pp}")
            if PFTH < 63: A(f"s_waitcnt vmcnt({PFTH+1})")
        A("s_waitcnt vmcnt(0)")
        A("s_endpgm")
        A.label("L_pf2done")
    A.label("L_tail0")
    A(f"s_cmp_ge_u32 {sF}, 54"); A("s_cbranch_scc1 L_nomap")
    A(f"s_xor_b32 s68, {sWAVE}, 4"); A(f"s_and_b32 s69, {sWAVE}, 3"); A(f"s_cselect_b32 {sWAVE}, s68, {sWAVE}")
    for w in EW:
        A(f"s_cmp_eq_u32 {sWAVE}, {w-4}"); A("s_cbranch_scc1 L_tail")
    A.label("L_nomap")
    tail_loads(False)
    A.label("L_tail")
    A(f"s_cmp_lt_u32 {sK}, 10"); A("s_cbranch_scc1 L_wo")
    A(f"s_cmp_ge_u32 {sF}, 54"); A("s_cbranch_scc1 L_exit")
    X0, GA = 24, 26
    CC = [12, 13, 14, 15, 28]; SS = [RING+36, RING+37, RING+38, RING+39, 29]
    SEL0, SEL1, GB = 30, 31, 6
    A(f"s_cmp_gt_u32 {sWAVE}, 3"); A("s_cbranch_scc1 L_gprep")
    A(f"v_lshrrev_b32 v{vT}, 3, v{vLANE}"); A(f"v_and_b32 v{vT+1}, 3, v{vLANE}"); A(f"v_lshl_add_u32 v{vT+1}, v{vT}, 2, v{vT+1}")
    A(f"s_mul_i32 s68, {sWAVE}, 640"); A(f"v_lshl_add_u32 v{vT+8}, v{vT+1}, 4, s68")
    A("s_add_u32 s68, s68, 512"); A(f"v_lshl_add_u32 v{vT+9}, v{vT+1}, 2, s68")
    A(f"ds_read_b128 {v4(SS[0])}, v{vT+8} offset:{L_MOD+2560}"); A(f"ds_read_b32 v{SS[4]}, v{vT+9} offset:{L_MOD+2560}")
    A(f"ds_read_b128 {v4(CC[0])}, v{vT+8} offset:{L_MOD+5120}"); A(f"ds_read_b32 v{CC[4]}, v{vT+9} offset:{L_MOD+5120}")
    acc_addr(vT+5)
    A(f"s_min_u32 s21, {sF}, 39")
    A(f"v_mul_u32_u24 v{vL}, 5120, v{vT}")
    A(f"v_and_b32 v{vONE}, 7, v{vLANE}"); A(f"v_lshl_add_u32 v{vL}, v{vONE}, 4, v{vL}")
    A(f"s_lshl_b32 s68, s21, 7"); A(f"v_add_u32 v{vL}, s68, v{vL}")
    A(f"v_lshrrev_b32 v{vT+1}, 5, v{vLANE}"); A(f"v_lshl_add_u32 v{vONE}, v{vONE}, 1, v{vT+1}")
    A(f"s_lshl_b32 s68, s21, 4"); A(f"v_add_u32 v{vONE}, s68, v{vONE}")
    A(f"v_lshlrev_b32 v{vTKT}, 2, v{vONE}"); A(f"v_lshlrev_b32 v{vONE}, 1, v{vONE}")
    A(f"ds_read_b32 v{GB}, v{vTKT} offset:{L_MOD+7680}")
    for n in range(7): A(f"s_mov_b32 s{13+n}, {WS_DP + n*8*5120}")
    A("s_waitcnt lgkmcnt(0)")
    A("s_waitcnt vmcnt(0)")
    stamp(8)
    A(f"s_cmp_lg_u32 {sWAVE}, 0"); A(f"s_cbranch_scc1 {'L_gemv0' if wbar else 'L_gemv'}")
    def gather(last):
        A(f"v_and_b32 v{vT}, 31, v{vLANE}"); A(f"v_lshrrev_b32 v{vT+1}, 5, v{vLANE}")
        A(f"v_lshl_add_u32 v{vT+2}, v{vT}, 1, v{vT+1}"); A("s_lshl_b32 s68, s23, 6"); A(f"v_add_u32 v{vT+2}, s68, v{vT+2}")
        A(f"v_lshlrev_b32 v{vT+3}, 3, v{vT+2}")
        A(f"ds_read_b64 {v2(GA)}, v{vT+3} offset:{L_MOD}"); A(f"ds_read_b64 {v2(X0)}, v{vT+3} offset:{L_X2}")
        A(f"v_mul_u32_u24 v{vT+4}, 2560, v{vT+1}"); A(f"v_lshl_add_u32 v{vT+4}, v{vT}, 4, v{vT+4}"); A("s_lshl_b32 s68, s23, 9"); A(f"v_add_u32 v{vT+4}, s68, v{vT+4}")
        A(f"s_mul_i32 s68, {sG}, 20480")
        for n in range(4): A(f"s_add_u32 s{4+n}, s68, {WS_YP + n*5120}")
        A("s_lshl_b32 s68, s23, 3"); A(f"v_mov_b32 v{vADDR}, s68")
        A(f"v_mov_b32 v{SEL0}, 0x3f80"); A(f"v_mov_b32 v{SEL1}, 0x3f800000")
        A("s_waitcnt lgkmcnt(0)")
        if last:
            dn_prep()
            A(f"v_lshrrev_b32 v{vT+6}, 4, v{vLANE}"); A(f"v_lshlrev_b32 v{vT+6}, 3, v{vT+6}")
            A(f"v_and_b32 v{vT+7}, 7, v{vLANE}"); A(f"v_add_u32 v{vT+6}, v{vT+6}, v{vT+7}")
            A(f"v_bfe_u32 v{vT+7}, v{vLANE}, 3, 1"); A(f"v_lshl_add_u32 v{vT+6}, v{vT+7}, 5, v{vT+6}"); A(f"v_lshlrev_b32 v{vT+6}, 2, v{vT+6}")
            A(f"v_add_u32 v{vT+6}, {L_ACC}, v{vT+6}")
            A(f"s_mul_i32 s12, {sF}, 5120"); A("s_lshl_b32 s69, s23, 10"); A("s_add_u32 s12, s12, s69"); A(f"s_add_u32 s12, s12, {WS_DP}")
        if wbar: A("s_barrier")
        poll([(vT+4, f"s{4+n}", 0, None) for n in range(4)], RING, tags=(1, 3))
        for n in range(4):
            for r in range(4):
                src, sel = RING + 4*n + 2*(r // 2), (SEL0, SEL1)[r % 2]
                if n == 0: A(f"v_dot2_f32_bf16 v{TMP+r}, v{src}, v{sel}, 0")
                else: A(f"v_dot2c_f32_bf16 v{TMP+r}, v{src}, v{sel}")
        if last: stamp(9)
        A(f"v_permlane32_swap_b32 v{TMP}, v{TMP+2}"); A(f"v_permlane32_swap_b32 v{TMP+1}, v{TMP+3}")
        A(f"v_pk_add_f32 {v2(TMP)}, {v2(TMP)}, {v2(TMP+2)}")
        A(f"v_pk_fma_f32 {v2(X0)}, {v2(TMP)}, {v2(GA)}, {v2(X0)}")
        A(f"v_add_f32 v{TMP}, v{X0}, v{X0+1}"); A(f"v_mul_f32 v{TMP+1}, v{X0}, v{X0}"); A(f"v_fmac_f32 v{TMP+1}, v{X0+1}, v{X0+1}")
        A(f"ds_write_b64 v{vT+3}, {v2(X0)} offset:{L_X2}")
        dpp_red("v_add_f32", [TMP, TMP+1], QUAD + BANK + BCAST)
        A("s_mov_b32 exec_lo, 0"); A("s_brev_b32 exec_hi, 1")
        A(f"ds_write_b64 v{vADDR}, {v2(TMP)} offset:{L_ST}")
        A("s_mov_b64 exec, -1")
        A("s_waitcnt lgkmcnt(0)")
    A("s_mov_b32 s23, 4")
    gather(False)
    if wbar:
        A("s_branch L_gemv")
        A.label("L_gemv0")
        A("s_barrier")
    A.label("L_gemv")
    A("s_barrier")
    ST = vAOP; XX = RING + 40
    A(f"ds_read_b128 {v4(ST)}, v{vZERO} offset:{L_ST}"); A(f"ds_read_b128 {v4(ST+4)}, v{vZERO} offset:{L_ST+16}"); A(f"ds_read_b64 {v2(ST+8)}, v{vZERO} offset:{L_ST+32}")
    A(f"ds_read_b128 {v4(XX)}, v{vT+8} offset:{L_X2}"); A(f"ds_read_b32 v{XX+4}, v{vT+9} offset:{L_X2}")
    A(f"v_mov_b32 v{TMP+2}, {fh(1e-5)}")
    A("s_waitcnt lgkmcnt(2)" if not stamps else "s_waitcnt lgkmcnt(0)")
    sum2([ST+2*n for n in range(5)], TMP)
    A(f"v_mul_f32 v{TMP}, {fh(1.0/640)}, v{TMP}")
    A(f"v_fmac_f32 v{TMP+2}, {fh(1.0/640)}, v{TMP+1}")
    A(f"v_fma_f32 v{TMP+2}, -v{TMP}, v{TMP}, v{TMP+2}")
    A(f"v_max_f32 v{TMP+2}, {fh(1e-5)}, v{TMP+2}")
    A(f"v_rsq_f32 v{TMP+2}, v{TMP+2}")
    A("s_waitcnt lgkmcnt(0)")
    for y in range(5): A(f"v_sub_f32 v{XX+y}, v{XX+y}, v{TMP}")
    for y in range(5): A(f"v_mul_f32 v{XX+y}, v{XX+y}, v{CC[y]}")
    for y in range(5): A(f"v_fmac_f32 v{SS[y]}, v{XX+y}, v{TMP+2}")
    for y in range(5): A(f"v_cvt_pk_bf16_f32 v{SS[y]}, v{SS[y]}, v{SS[y]}")
    gemv(vACC, vM1, [(SS[y], qp(k), WT+4*(y*4+k), None) for y in range(5) for k in range(4)])
    acc_write(vT+5)
    A("s_waitcnt lgkmcnt(0)")
    A("s_barrier")
    if stamps:
        A(f"s_cmp_lg_u32 {sWAVE}, 1"); A("s_cbranch_scc1 L_ns8")
        stamp_dump([8]); A("s_endpgm")
        A.label("L_ns8")
    A(f"s_cmp_lg_u32 {sWAVE}, 3"); A("s_cbranch_scc1 L_exit")
    A(f"s_cmp_ge_u32 {sF}, 40"); A("s_cbranch_scc1 L_end")
    A(f"ds_read_b32 v{X0}, v{vTKT} offset:{L_X2}")
    FB = RING
    A(f"v_mov_b32 v{FB+24}, 0"); A(f"v_mov_b32 v{FB+25}, 0"); A(f"v_mov_b32 v{FB+27}, {sTAG}")
    A("s_mov_b32 s68, -1"); A("s_mov_b32 s69, 0xffff")
    srd(SB, "s26", "s27", 1280)
    A("s_waitcnt lgkmcnt(0)")
    A("s_barrier")
    poll([(vL, f"s{13+n}", 0, None if n < 6 else "s[68:69]") for n in range(7)], FB)
    sum2([FB+4*n for n in range(7)], GA)
    stamp(11)
    A(f"v_permlane32_swap_b32 v{GA}, v{GA+1}"); A(f"v_add_f32 v{GA}, v{GA}, v{GA+1}")
    xrow("v_add_f32", GA, GA+1, 16)
    A(f"v_add_f32_dpp v{GA}, v{GA}, v{GA} row_ror:8 {DPPF}")
    A(f"v_fma_f32 v{GA}, v{GA}, v{GB}, v{X0}"); A(f"v_cvt_pk_bf16_f32 v{GA}, v{GA}, v{GA}")
    A("s_mov_b32 exec_lo, 0xff"); A("s_mov_b32 exec_hi, 0xff")
    A(f"buffer_store_short v{GA}, v{vONE}, {SB}, 0 offen sc1")
    A(f"s_cmp_lg_u32 {sF}, 0"); A("s_cbranch_scc1 L_fin_dump")
    A("s_mov_b64 exec, 1"); A(f"v_mov_b32 v{GA+1}, {sTAG}")
    A(f"buffer_store_dword v{GA+1}, v{vZERO}, {SWS}, 0 offen sc1")
    A.label("L_fin_dump")
    if stamps:
        A("s_waitcnt vmcnt(0)"); stamp(12)
        stamp_dump([11, 12])
    A("s_endpgm")
    A.label("L_gprep")
    A(f"s_and_b32 s23, {sWAVE}, 3")
    gather(True)
    if DNP == 0 and not (now & 1): dn_issue("L_dnd0"); A.label("L_dnd0")
    A("s_barrier")
    if DNP == 1 and not (now & 1): dn_issue("L_dnd1"); A.label("L_dnd1")
    A("s_barrier")
    RD = WT
    for k in range(4): A(f"ds_read2st64_b32 {v2(RD+2*k)}, v{vT+6} offset0:{2*k} offset1:{2*k+1}")
    A("s_waitcnt lgkmcnt(0)")
    sum2([RD+2*k for k in range(4)])
    A(f"v_add_f32 v{RD}, v{RD}, v{RD+1}")
    A(f"v_mul_f32 v{RD+2}, {fh(-LOG2E)}, v{RD}"); A(f"v_exp_f32 v{RD+2}, v{RD+2}")
    A(f"v_mul_f32_dpp v{RD+1}, v{RD}, v{RD} row_ror:8 {DPPF}")
    A(f"v_add_f32 v{RD+2}, 1.0, v{RD+2}"); A(f"v_rcp_f32 v{RD+2}, v{RD+2}")
    A(f"v_mul_f32 v{RD}, v{RD+1}, v{RD+2}")
    A(f"v_cvt_pk_bf16_f32 v{RD}, v{RD}, v{RD}")
    A("s_waitcnt vmcnt(0)")
    A(f"s_cmp_eq_u32 {sWAVE}, 5"); A("s_cbranch_scc1 L_down2")
    gemv(vACC, vM2, [(RD, f"row_newbcast:{t}", WD+4*t, None) for t in range(8)])
    publish(vACC, vNAT, "s12")
    A("s_endpgm")
    A.label("L_down2")
    gemv(vACC, vM2, [(RD, f"row_newbcast:{t}", WD+4*t, None) for t in range(8)], ACC2, WD2)
    A(f"v_mov_b32 v{vACC+3}, {sTAG}"); A(f"v_mov_b32 v{ACC2+3}, {sTAG}")
    A(f"buffer_store_dwordx4 {v4(vACC)}, v{vNAT}, {SWS}, s12 offen sc1")
    A(f"buffer_store_dwordx4 {v4(ACC2)}, v{vNAT}, {SWS}, s12 offen offset:3072 sc1")
    stamp(10)
    A("s_waitcnt vmcnt(0)")
    A("s_barrier")
    stamp_dump([9, 10])
    A("s_endpgm")
    A.label("L_wo")
    A(f"v_lshrrev_b32 v{vT+4}, 5, v{vLANE}"); A(f"v_lshlrev_b32 v{vT+4}, 10, v{vT+4}")
    A(f"v_and_b32 v{vT+6}, 31, v{vLANE}"); A(f"v_lshl_add_u32 v{vT+4}, v{vT+6}, 4, v{vT+4}")
    A(f"s_lshr_b32 s4, {sWAVE}, 1"); A("s_lshl_b32 s4, s4, 3"); A(f"s_add_u32 s4, s4, {sG}"); A("s_lshl_b32 s4, s4, 13")
    A(f"s_and_b32 s5, {sWAVE}, 1"); A("s_lshl_b32 s5, s5, 9"); A("s_add_u32 s4, s4, s5"); A(f"s_add_u32 s4, s4, {WS_OP}"); A("s_add_u32 s5, s4, 4096")
    acc_addr(vT+5)
    A(f"v_lshrrev_b32 v{vT+8}, 5, v{vLANE}"); A(f"v_lshlrev_b32 v{vT+7}, 11, v{vT+8}"); A(f"v_lshl_add_u32 v{vT+7}, v{vT+6}, 3, v{vT+7}")
    A(f"v_mul_u32_u24 v{vT+8}, 20480, v{vT+8}"); A(f"v_lshl_add_u32 v{vT+8}, v{vT+6}, 3, v{vT+8}")
    A(f"s_mul_i32 s6, {sG}, 2560"); A(f"s_lshl_b32 s7, {sK}, 8"); A("s_add_u32 s6, s6, s7"); A(f"s_add_u32 s6, s6, {WS_YP}")
    for c in range(1, 4): A(f"s_add_u32 s{12+c}, s6, {c*40960}")
    poll([(vT+4, "s4" if n < 2 else "s5", (n % 2)*2048, None) for n in range(4)], RING)
    stamp(7)
    sum2([RING+4*n for n in range(4)], TMP)
    A(f"v_permlane32_swap_b32 v{TMP}, v{TMP+1}")
    A(f"v_add_f32 v{TMP}, v{TMP}, v{TMP+1}")
    A(f"v_cvt_pk_bf16_f32 v{TMP}, v{TMP}, v{TMP}")
    ysplit([TMP], TMP+2)
    gemv(vACC, vM1, [(TMP + 2 + n // 4, qp(n % 4), WT+4*n, None) for n in range(8)])
    acc_write(vT+5)
    A("s_waitcnt lgkmcnt(0)")
    A("s_barrier")
    A(f"s_cmp_lg_u32 {sWAVE}, 0"); A("s_cbranch_scc1 L_end")
    for n in range(8): A(f"ds_read_b64 {v2(WT+2*n)}, v{vT+7} offset:{L_ACC+256*n}")
    A("s_waitcnt lgkmcnt(0)")
    sum2([WT+2*n for n in range(8)])
    A(f"v_mov_b32 v{WT+2}, v{WT}"); A(f"v_mov_b32 v{WT+3}, v{WT+1}")
    A(f"v_permlane32_swap_b32 v{WT}, v{WT+2}"); A(f"v_permlane32_swap_b32 v{WT+1}, v{WT+3}")
    A(f"v_pk_add_f32 {v2(WT)}, {v2(WT)}, {v2(WT+2)}")
    A(f"v_cvt_pk_bf16_f32 v{WT}, v{WT}, v{WT+1}"); A(f"v_mov_b32 v{WT+1}, {sTAG}")
    for so in ("s6", "s13", "s14", "s15"): A(f"buffer_store_dwordx2 {v2(WT)}, v{vT+8}, {SWS}, {so} offen sc1")
    stamp(13)
    A.label("L_exit")
    if stamps:
        A(f"s_cmp_lg_u32 {sWAVE}, 0"); A("s_cbranch_scc1 L_end")
        stamp_dump([0, 13, 6, 7] + ([1, 2, 3, 4, 5] if stamps not in (4, 6) else []), xcc=True)
    A("s_endpgm")

    A.label("L_help")
    A("s_waitcnt lgkmcnt(0)")
    A("s_barrier")
    A(f"s_cmp_lt_u32 {sK}, 24"); A("s_cbranch_scc1 L_hnoq")
    A(f"s_sub_u32 s39, {sWAVE}, 5")
    A(f"s_bfe_u32 s68, {sK}, 0x10002"); A("s_add_u32 s68, s68, s39"); A("s_cmp_lt_u32 s68, 3"); A("s_cbranch_scc1 L_ctrl_q")
    common_setup()
    A(f"v_lshlrev_b32 v{vT}, 3, v{vLANE}"); A(f"v_mov_b32 v{vACC}, 0"); A(f"v_mov_b32 v{vACC+1}, 0")
    A(f"ds_write_b64 v{vT}, {v2(vACC)} offset:{L_ACC + 512}")
    A("s_waitcnt lgkmcnt(0)")
    A("s_mov_b64 exec, 1"); A(f"ds_add_u32 v{vZERO}, v{vONE} offset:{L_MF}"); A("s_mov_b64 exec, -1")
    A("s_branch L_soft")
    A.label("L_hnoq")
    A(f"s_sub_u32 s37, {sK}, 5"); A("s_cmp_ge_u32 s37, 5"); A("s_cbranch_scc1 L_hnomod")
    A("s_lshl_b32 s37, s37, 3"); A(f"s_add_u32 s37, s37, {sG}")
    A("s_lshr_b32 s38, s37, 1"); A("s_and_b32 s39, s37, 1")
    A("s_mul_i32 s6, s39, 20480"); A("s_lshl_b32 s7, s38, 10"); A("s_add_u32 s6, s6, s7"); A(f"s_add_u32 s6, s6, {WS_MR}")
    A("s_add_u32 s38, s38, 10"); A("s_lshl_b32 s39, s39, 1"); A(f"s_add_u32 s39, s39, {sWAVE}"); A("s_sub_u32 s39, s39, 6")
    mod_loads("s38", "s39")
    common_setup()
    mod_compute()
    A(f"v_lshlrev_b32 v{vT}, 3, v{vLANE}")
    A(f"s_cmp_eq_u32 {sWAVE}, 6"); A("s_cbranch_scc1 L_hsum")
    A(f"ds_write_b64 v{vT}, {v2(vACC)} offset:{L_ACC}")
    A("s_waitcnt lgkmcnt(0)")
    A(f"ds_write_b32 v{vZERO}, v{vONE} offset:{L_MF}")
    A("s_branch L_soft")
    A.label("L_hsum")
    lds_wait(L_MF, 1)
    A(f"ds_read_b64 {v2(vR)}, v{vT} offset:{L_ACC}")
    A("s_waitcnt lgkmcnt(0)")
    A(f"v_pk_add_f32 {v2(vACC)}, {v2(vACC)}, {v2(vR)}")
    publish(vACC, vNAT, "s6")
    A("s_branch L_help7")
    A.label("L_hnomod")
    if EW and not abl and not (now & 1):
        if len(EW) == 1: A(f"s_cmp_lg_u32 {sWAVE}, {EW[0]}"); A("s_cbranch_scc1 L_hne")
        A(f"s_sub_u32 s37, {sWAVE}, 4")
        gu_loads("L_hne", CTH, "s37")
        A.label("L_hne")
    common_setup()
    A(f"s_cmp_lg_u32 {sWAVE}, 7"); A("s_cbranch_scc1 L_help7")
    A.label("L_soft")
    A(f"s_lshl_b32 s6, {sHD}, 13"); A(f"s_add_u32 s6, s6, {WS_SP}")
    A(f"s_lshl_b32 s8, {sS}, 10"); A("s_add_u32 s8, s8, s6")
    A("s_add_u32 s6, s6, s30"); A("s_addc_u32 s7, s31, 0")
    A(f"v_lshlrev_b32 v{vT}, 3, v{vLANE}")
    if abl & 4:
        A(f"ds_write_b32 v{vZERO}, v{vONE} offset:{L_PF}"); A("s_waitcnt lgkmcnt(0)"); A("s_branch L_join"); A.label("L_abl4")
    lds_wait(L_KT, 120, slow=True)
    lds_wait(L_KD, NL + (1 if any(QK) else 0), slow=True, slp=SLK)
    if KAP: A("s_memrealtime s[10:11]")
    E = RING
    for n in range(8): A(f"ds_read_b128 {v4(E+4*n)}, v{vLANE16} offset:{L_P + 1024*n}")
    A("s_waitcnt lgkmcnt(0)")
    A(f"v_cvt_pk_bf16_f32 v{vACC}, v{E+28}, v{E+29}"); A(f"v_cvt_pk_bf16_f32 v{vACC+1}, v{E+30}, v{E+31}")
    lanes0 = (NS - 112) * 4
    if lanes0: A(f"s_lshl_b64 exec, -1, {lanes0}")
    A(f"buffer_store_dwordx2 {v2(vACC)}, v{vT}, {SWS}, s8 offen sc1")
    if lanes0: A("s_mov_b64 exec, -1")
    m = vR
    A(f"v_max3_f32 v{m}, v{E}, v{E+1}, v{E+2}"); A(f"v_max3_f32 v{m+1}, v{E+3}, v{E+4}, v{E+5}")
    for i in range(6, 32, 4):
        A(f"v_max3_f32 v{m}, v{m}, v{E+i}, v{E+i+1}")
        if i + 3 < 32: A(f"v_max3_f32 v{m+1}, v{m+1}, v{E+i+2}, v{E+i+3}")
    A(f"v_max_f32 v{m}, v{m}, v{m+1}")
    wave_red("v_max_f32", m, m+1)
    A(f"v_mul_f32 v{m}, {sL2E}, v{m}")
    for i in range(32): A(f"v_fma_f32 v{E+i}, v{E+i}, {sL2E}, -v{m}")
    for i in range(32): A(f"v_exp_f32 v{E+i}, v{E+i}")
    A(f"v_pk_add_f32 {v2(m+2)}, {v2(E)}, {v2(E+2)}")
    for i in range(4, 32, 2): A(f"v_pk_add_f32 {v2(m+2)}, {v2(m+2)}, {v2(E+i)}")
    A(f"v_add_f32 v{m+2}, v{m+2}, v{m+3}")
    wave_red("v_add_f32", m+2, m+1)
    A(f"v_log_f32 v{vACC+2}, v{m+2}")
    A(f"v_add_f32 v{vQ}, v{vACC+2}, v{m}"); A(f"v_mov_b32 v{vQ+1}, {sTAG}"); A(f"v_mov_b32 v{vQ+2}, s10")
    A("s_waitcnt vmcnt(0)")
    A("s_mov_b64 exec, 1")
    A(f"buffer_store_dwordx4 {v4(vQ)}, v{vZERO}, {SWS}, s8 offen offset:512 sc1")
    A("s_mov_b64 exec, -1")
    R = [40, 42, 44, 46, 52, 54, 56, 58]
    A(f"s_mov_b32 {sTO}, 0x40000")
    A.label("L_lam")
    for n in range(8): A(f"s_load_dwordx2 s[{R[n]}:{R[n]+1}], s[6:7], {n*1024 + 512} glc")
    A(f"s_sub_u32 {sTO}, {sTO}, 1"); A(f"s_cmp_eq_u32 {sTO}, 0"); A("s_cbranch_scc1 L_lamd")
    A("s_waitcnt lgkmcnt(0)")
    for n in range(8):
        A(f"s_cmp_lg_u32 s{R[n]+1}, {sTAG}"); A("s_cbranch_scc1 L_lam")
    A.label("L_lamd")
    A("s_waitcnt lgkmcnt(0)")
    lam = [RING + 32 + n for n in range(8)]
    for n in range(8): A(f"v_mov_b32 v{lam[n]}, s{R[n]}")
    if KAP:
        for n in range(8): A(f"s_load_dword s{R[n]+1}, s[6:7], {n*1024 + 520} glc")
    t = vA_
    A(f"v_max3_f32 v{t}, v{lam[0]}, v{lam[1]}, v{lam[2]}"); A(f"v_max3_f32 v{t}, v{t}, v{lam[3]}, v{lam[4]}")
    A(f"v_max3_f32 v{t}, v{t}, v{lam[5]}, v{lam[6]}"); A(f"v_max_f32 v{t}, v{t}, v{lam[7]}")
    for n in range(8): A(f"v_sub_f32 v{lam[n]}, v{lam[n]}, v{t}")
    for n in range(8): A(f"v_exp_f32 v{lam[n]}, v{lam[n]}")
    for n in range(1, 8): A(f"v_add_f32 v{lam[0]}, v{lam[0]}, v{lam[n]}")
    A(f"v_log_f32 v{lam[0]}, v{lam[0]}")
    A(f"v_add_f32 v{t}, v{t}, v{lam[0]}")
    A(f"v_sub_f32 v{m}, v{m}, v{t}"); A(f"v_exp_f32 v{m}, v{m}")
    A(f"ds_write_b32 v{vZERO}, v{t} offset:{L_LAM}")
    for i in range(32): A(f"v_mul_f32 v{E+i}, v{E+i}, v{m}")
    for i in range(32): A(f"v_cvt_pk_bf16_f32 v{E+i}, v{E+i}, v{E+i}")
    for n in range(8): A(f"ds_write_b128 v{vLANE16}, {v4(E+4*n)} offset:{L_P + 1024*n}")
    A("s_waitcnt lgkmcnt(0)")
    A(f"ds_write_b32 v{vZERO}, v{vONE} offset:{L_PF}")
    if KAP:
        A("s_mov_b32 s9, 0")
        for n in range(8):
            A(f"s_sub_u32 s68, s10, s{R[n]+1}"); A("s_add_u32 s9, s9, s68")
        A("s_ashr_i32 s9, s9, 3"); A(f"s_sub_i32 s9, s9, {LAG0}"); A("s_max_i32 s9, s9, 0"); A("s_min_i32 s9, s9, 1000")
        A(f"s_mul_i32 s9, s9, {KAP}"); A("s_lshr_b32 s9, s9, 8"); A(f"s_min_u32 s9, s9, {CAP}"); A("s_add_u32 s9, s9, 1")
        A(f"v_mov_b32 v{vT}, s9"); A(f"ds_write_b32 v{vZERO}, v{vT} offset:{L_N6}")
    A("s_setprio 0")
    if stamps:
        stamp(14); stamp_dump([14], final=False)
    A("s_waitcnt lgkmcnt(0)")
    A("s_branch L_join")
    A.label("L_help7")
    if any(QK):
        A(f"s_bitcmp1_b32 {sK}, 2"); A(f"s_cselect_b32 s37, {QK[6]}, {QK[5]}")
        for lim, q_ in ((24, QK[4]), (22, QK[3]), (17, QK[2]), (10, QK[1]), (5, QK[0])):
            A(f"s_cmp_lt_u32 {sK}, {lim}"); A(f"s_cselect_b32 s37, {q_}, s37")
        A("s_cmp_eq_u32 s37, 0"); A("s_cbranch_scc1 L_xkd")
        A("s_load_dwordx2 s[6:7], s[0:1], 8")
        A(f"s_mul_i32 {sST}, {sHD}, {ROT}"); A(f"s_lshl_b32 s68, {sS}, 7"); A(f"s_add_u32 {sST}, {sST}, s68")
        A(f"s_lshl_b32 s68, {sHD}, 22")
        A(f"v_and_b32 v{vPB}, 60, v{vLANE}")
        A(f"v_and_b32 v{vT}, 15, v{vLANE}"); A(f"v_lshlrev_b32 v{vT}, 4, v{vT}")
        A("s_waitcnt lgkmcnt(0)")
        A("s_add_u32 s40, s6, s68"); A("s_addc_u32 s41, s7, 0"); A("s_mov_b32 s42, 0x400000"); A("s_mov_b32 s43, 0x20000")
        lds_wait(L_QF, 1, slow=True)
        A(f"ds_read_b128 {v4(vQ)}, v{vT} offset:{L_Q}")
        A.label("L_xk")
        req(L_KT)
        A("s_waitcnt lgkmcnt(0)")
        A(f"v_readfirstlane_b32 {sTK}, v{vTKT}")
        A(f"s_cmp_ge_u32 {sTK}, 128"); A("s_cbranch_scc1 L_xkd")
        tile_addr(sTK, sST)
        load(SK, 0)
        A(f"s_lshl_b32 s68, {sTK}, 6"); A(f"v_add_u32 v{vE_}, s68, v{vPB}")
        A("s_waitcnt vmcnt(0)")
        qk(0, vE_, L_P)
        A("s_sub_u32 s37, s37, 1"); A("s_cmp_lg_u32 s37, 0"); A("s_cbranch_scc1 L_xk")
        A.label("L_xkd")
        A("s_waitcnt lgkmcnt(0)")
        A("s_mov_b64 exec, 1"); A(f"ds_add_u32 v{vZERO}, v{vONE} offset:{L_KD}"); A("s_mov_b64 exec, -1")
        A("s_waitcnt lgkmcnt(0)")
    if KAP:
        A("s_load_dwordx2 s[6:7], s[0:1], 16")
        A(f"s_mul_i32 {sST}, {sHD}, {ROT}"); A(f"s_lshl_b32 s68, {sS}, 7"); A(f"s_add_u32 {sST}, {sST}, s68")
        A(f"s_lshl_b32 s68, {sHD}, 22")
        A(f"v_and_b32 v{vPB}, 60, v{vLANE}")
        for r in range(4): A(f"v_mov_b32 v{vACC+r}, 0")
        A("s_waitcnt lgkmcnt(0)")
        A("s_add_u32 s44, s6, s68"); A("s_addc_u32 s45, s7, 0"); A("s_mov_b32 s46, 0x400000"); A("s_mov_b32 s47, 0x20000")
        lds_wait(L_N6, 1, slow=True)
        A("s_waitcnt lgkmcnt(0)")
        A(f"v_readfirstlane_b32 s37, v{vBAD}")
        A.label("L_xv")
        A("s_cmp_le_u32 s37, 1"); A("s_cbranch_scc1 L_xvd")
        req(L_VT)
        A("s_waitcnt lgkmcnt(0)")
        A(f"v_readfirstlane_b32 {sTK}, v{vTKT}")
        A(f"s_cmp_ge_u32 {sTK}, {NS}"); A("s_cbranch_scc1 L_xvd")
        tile_addr(sTK, sST)
        load(SV, 0)
        A(f"s_lshl_b32 s68, {sTK}, 6"); A(f"v_add_u32 v{vE_}, s68, v{vPB}")
        A(f"ds_read_b32 v{vE_}, v{vE_} offset:{L_P}")
        A("s_waitcnt lgkmcnt(0)")
        build(vE_)
        A("s_waitcnt vmcnt(0)")
        mm(0)
        A("s_sub_u32 s37, s37, 1"); A("s_branch L_xv")
        A.label("L_xvd")
        A(f"v_lshrrev_b32 v{vT}, 1, v{vNAT}")
        A(f"ds_write_b64 v{vT}, {v2(vACC)} offset:{L_PART + 512*NL}")
        A("s_waitcnt lgkmcnt(0)")
    A("s_branch L_join")

    A.label("L_ctrl0")
    A("s_setprio 3")
    A(f"v_mov_b32 v{vT+4}, {KT0}"); A(f"v_mov_b32 v{vT+5}, {VT0}"); A(f"v_mov_b32 v{vT+6}, 0"); A(f"v_mov_b32 v{vT+7}, 0")
    A(f"ds_write_b128 v{vZERO}, {v4(vT+4)} offset:{L_KT}")
    A(f"ds_write_b64 v{vZERO}, {v2(vT+6)} offset:{L_KD}"); A(f"ds_write_b64 v{vZERO}, {v2(vT+6)} offset:{L_MF}")
    A("s_waitcnt lgkmcnt(0)")
    A("s_barrier")
    if abl & 2:
        common_setup()
        A(f"s_lshl_b32 s68, {sHD}, 8"); A(f"s_add_u32 s68, s68, {WS_CNT}")
        A("s_mov_b64 exec, 1"); A(f"buffer_store_dword v{vZERO}, v{vZERO}, {SWS}, s68 offen sc1"); A("s_mov_b64 exec, -1")
        A(f"v_lshlrev_b32 v{vT}, 2, v{vLANE}"); A(f"v_mov_b32 v{vT+1}, 0x3f803f80"); A(f"ds_write_b32 v{vT}, v{vT+1} offset:{L_Q}"); A("s_waitcnt lgkmcnt(0)")
        A(f"ds_write_b32 v{vZERO}, v{vONE} offset:{L_QF}")
        A("s_branch L_ctrl_w"); A.label("L_abl2")
    A("s_mov_b32 s39, 0")
    A(f"s_cmp_ge_u32 {sK}, 24"); A("s_cbranch_scc1 L_ctrl_q")
    A(f"s_sub_u32 s38, {sK}, 17"); A("s_cmp_ge_u32 s38, 5"); A("s_cbranch_scc1 L_ctrl_none")
    A("s_lshl_b32 s38, s38, 3"); A(f"s_add_u32 s38, s38, {sG}")
    A("s_lshl_b32 s6, s38, 10"); A(f"s_add_u32 s6, s6, {WS_MODP}")
    A("s_and_b32 s39, s38, 3"); A("s_lshr_b32 s38, s38, 2")
    mod_loads("s38", "s39")
    common_setup()
    mod_compute()
    publish(vACC, vNAT, "s6")
    stamp(1)
    A("s_branch L_hop2")
    A.label("L_ctrl_none")
    if cearly and cstart and not abl: tail_loads(True)
    common_setup()
    A("s_branch L_hop2")
    A.label("L_ctrl_q")
    WQ = RING + 64
    XA = RING
    X0, X1 = 24, 25
    A(f"s_and_b32 s38, {sK}, 3"); A("s_lshl_b32 s38, s38, 3"); A(f"s_add_u32 s38, s38, {sG}")
    A(f"s_bfe_u32 s37, {sK}, 0x10002"); A("s_mul_i32 s68, s37, 3"); A("s_add_u32 s39, s39, s68")
    srd(SB, "s4", "s5", 1280); srd(SA, "s10", "s11", 640*8192)
    A(f"v_lshlrev_b32 v{vT+2}, 2, v{vLANE}")
    for k in range(5): A(f"buffer_load_dword v{XA+2*k+1}, v{vT+2}, {SB}, 0 offen offset:{k*256}")
    A("s_lshl_b32 s68, s39, 8")
    A(f"buffer_load_dword v{X1}, v{vT+2}, {SB}, s68 offen")
    A(f"v_lshrrev_b32 v{vT}, 4, v{vLANE}"); A(f"v_lshlrev_b32 v{vT}, 18, v{vT}")
    A(f"v_and_b32 v{vT+1}, 15, v{vLANE}"); A(f"v_lshl_add_u32 v{vT+3}, v{vT+1}, 4, v{vT}")
    A("s_lshl_b32 s69, s39, 20"); A("s_lshl_b32 s68, s38, 8"); A("s_add_u32 s69, s69, s68")
    for n in range(32):
        u, j = n // 16, n % 16
        A(f"s_add_u32 s68, s69, {(2*j+u)*8192}")
        A(f"buffer_load_dwordx4 {v4(WQ+4*n)}, v{vT+3}, {SA}, s68 offen {pol}")
    common_setup()
    A("s_lshl_b32 s68, s38, 8"); A(f"s_add_u32 s68, s68, {WS_CNT}")
    A("s_cmp_lg_u32 s39, 0"); A("s_cbranch_scc1 L_nocnt")
    A("s_mov_b64 exec, 1")
    A(f"buffer_store_dword v{vZERO}, v{vZERO}, {SWS}, s68 offen sc1")
    A("s_mov_b64 exec, -1")
    A("s_waitcnt vmcnt(33)")
    A("s_branch L_cntj")
    A.label("L_nocnt")
    A("s_waitcnt vmcnt(32)")
    A.label("L_cntj")
    for k in range(5):
        A(f"v_lshlrev_b32 v{XA+2*k}, 16, v{XA+2*k+1}"); A(f"v_and_b32 v{XA+2*k+1}, 0xffff0000, v{XA+2*k+1}")
    A(f"v_lshlrev_b32 v{X0}, 16, v{X1}"); A(f"v_and_b32 v{X1}, 0xffff0000, v{X1}")
    t = vT + 8; a = XA
    A(f"v_add_f32 v{t}, v{a}, v{a+1}")
    for i in range(2, 10): A(f"v_add_f32 v{t}, v{t}, v{a+i}")
    wave_red("v_add_f32", t, t+1)
    A(f"v_mul_f32 v{t}, {fh(1.0/640)}, v{t}")
    for i in range(10): A(f"v_sub_f32 v{a+i}, v{a+i}, v{t}")
    A(f"v_mul_f32 v{t+2}, v{a}, v{a}")
    for i in range(1, 10): A(f"v_fmac_f32 v{t+2}, v{a+i}, v{a+i}")
    wave_red("v_add_f32", t+2, t+1)
    A(f"v_mul_f32 v{t+2}, {fh(1.0/640)}, v{t+2}")
    rbf2(t, t+2)
    A(f"v_add_f32 v{t+2}, {fh(1e-5)}, v{t+2}"); rbf(t+2, t+2)
    A(f"v_sqrt_f32 v{t+2}, v{t+2}"); rbf(t+2, t+2)
    A(f"v_rcp_f32 v{t+2}, v{t+2}")
    A(f"v_sub_f32 v{X0}, v{X0}, v{t}"); A(f"v_sub_f32 v{X1}, v{X1}, v{t}"); rbf2(X0, X1)
    A(f"v_mul_f32 v{X0}, v{X0}, v{t+2}"); A(f"v_mul_f32 v{X1}, v{X1}, v{t+2}"); rbf2(X0, X1)
    A("s_lshl_b32 s6, s39, 12"); A(f"s_add_u32 s6, s6, {WS_MODP}"); A(f"s_add_u32 s7, s6, {5*4096}")
    stamp(1)
    spre("s6", [(n // 4)*5*4096 + (n % 4)*1024 for n in range(8)])
    poll([(vLANE16, f"s{6+n//4}", (n % 4)*1024, None) for n in range(8)], RING)
    stamp(2)
    sum2([RING+4*n for n in range(4)]); sum2([RING+16+4*n for n in range(4)])
    rbf2(RING, RING+1); rbf2(RING+16, RING+17)
    c0, c1, s0, s1 = RING+16, RING+17, RING, RING+1
    A(f"v_add_f32 v{c0}, 1.0, v{c0}"); A(f"v_add_f32 v{c1}, 1.0, v{c1}"); rbf2(c0, c1)
    A(f"v_mul_f32 v{X0}, v{X0}, v{c0}"); A(f"v_mul_f32 v{X1}, v{X1}, v{c1}"); rbf2(X0, X1)
    A(f"v_add_f32 v{X0}, v{X0}, v{s0}"); A(f"v_add_f32 v{X1}, v{X1}, v{s1}")
    A(f"v_cvt_pk_bf16_f32 v{X0}, v{X0}, v{X0}"); A(f"v_cvt_pk_bf16_f32 v{X1}, v{X1}, v{X1}")
    gemv(vACC, vM2, [((X0, X1)[n // 16], f"row_newbcast:{n % 16}", WQ + 4*n, None) for n in range(32)])
    A(f"v_lshlrev_b32 v{vT}, 3, v{vLANE}")
    A(f"s_cmp_eq_u32 {sWAVE}, 0"); A("s_cbranch_scc1 L_qsum")
    A(f"s_lshl_b32 s68, {sWAVE}, 9"); A(f"v_add_u32 v{vT}, s68, v{vT}")
    A(f"ds_write_b64 v{vT}, {v2(vACC)} offset:{L_ACC - 6*512}")
    A("s_waitcnt lgkmcnt(0)")
    A("s_mov_b64 exec, 1"); A(f"ds_add_u32 v{vZERO}, v{vONE} offset:{L_MF}"); A("s_mov_b64 exec, -1")
    A("s_setprio 0")
    A(f"s_cmp_eq_u32 {sWAVE}, 7"); A("s_cbranch_scc1 L_soft")
    A("s_branch L_help7")
    A.label("L_qsum")
    lds_wait(L_MF, 2)
    A(f"ds_read_b64 {v2(RING)}, v{vT} offset:{L_ACC}"); A(f"ds_read_b64 {v2(RING+2)}, v{vT} offset:{L_ACC+512}")
    A("s_lshl_b32 s68, s38, 1"); A("s_add_u32 s68, s68, s37"); A("s_lshl_b32 s68, s68, 10"); A(f"s_add_u32 s68, s68, {WS_QP}")
    A("s_waitcnt lgkmcnt(0)")
    A(f"v_pk_add_f32 {v2(vACC)}, {v2(vACC)}, {v2(RING)}"); A(f"v_pk_add_f32 {v2(vACC)}, {v2(vACC)}, {v2(RING+2)}")
    publish(vACC, vNAT, "s68")
    A.label("L_hop2")
    stamp(3)
    A(f"s_lshl_b32 s6, {sHD}, 11"); A(f"s_add_u32 s6, s6, {WS_QP}")
    spre("s6", [n*1024 for n in range(2)])
    poll([(vLANE16, "s6", n*1024, None) for n in range(2)], RING)
    sum2([RING+4*n for n in range(2)])
    A(f"v_cvt_pk_bf16_f32 v{RING}, v{RING}, v{RING+1}")
    A(f"v_lshlrev_b32 v{vT}, 2, v{vLANE}")
    A(f"ds_write_b32 v{vT}, v{RING} offset:{L_Q}")
    A("s_waitcnt lgkmcnt(0)")
    A(f"ds_write_b32 v{vZERO}, v{vONE} offset:{L_QF}")
    stamp(4)
    A("s_setprio 0")
    A.label("L_ctrl_w")
    if abl: A("s_barrier"); A("s_endpgm"); A.label("L_abl_dead2")
    if cearly and not cstart: tail_loads(True)
    A(f"s_cmp_ge_u32 {sF}, 54"); A("s_cbranch_scc1 L_cnomr")
    srd(SB, "s4", "s5", 1280)
    A(f"v_lshlrev_b32 v{vT}, 2, v{vLANE}"); A(f"v_lshlrev_b32 v{vT+1}, 3, v{vLANE}")
    for k in range(5): A(f"buffer_load_dword v{vAOP+2*k+1}, v{vT}, {SB}, 0 offen offset:{k*256}")
    A("s_waitcnt vmcnt(0)")
    for k in range(5):
        A(f"v_lshlrev_b32 v{vAOP+2*k}, 16, v{vAOP+2*k+1}"); A(f"v_and_b32 v{vAOP+2*k+1}, 0xffff0000, v{vAOP+2*k+1}")
        A(f"ds_write_b64 v{vT+1}, {v2(vAOP+2*k)} offset:{L_X2 + 512*k}")
    for arr in range(4):
        for i, o in enumerate((0, 4096, 20480, 24576)): A(f"s_mov_b32 s{40+i}, {WS_MR + arr*5120 + o}")
        poll([(vLANE16, f"s{40 + 2*h + (k // 4)}", (k % 4)*1024, None) for k in range(5) for h in range(2)], RING)
        for k in range(5):
            b = RING + 8*k
            A(f"v_pk_add_f32 {v2(b)}, {v2(b)}, {v2(b+4)}"); rbf2(b, b+1)
            if arr == 2:
                A(f"v_add_f32 v{b}, 1.0, v{b}"); A(f"v_add_f32 v{b+1}, 1.0, v{b+1}"); rbf2(b, b+1)
            A(f"ds_write_b64 v{vT+1}, {v2(b)} offset:{L_MOD + arr*2560 + 512*k}")
    A.label("L_cnomr")
    A(f"s_lshl_b32 s8, {sHD}, 3"); A(f"s_add_u32 s8, s8, {sS}"); A("s_lshl_b32 s8, s8, 10"); A(f"s_add_u32 s8, s8, {WS_OP}")
    A(f"v_lshlrev_b32 v{vT}, 3, v{vLANE}"); A(f"v_mov_b32 v{TMP+3}, {sTAG}")
    A("s_waitcnt vmcnt(0) lgkmcnt(0)")
    stamp(5)
    A("s_barrier")
    stamp(6)
    NPART = NL + (1 if KAP else 0)
    for w in range(NPART): A(f"ds_read_b64 {v2(RING+2*w)}, v{vT} offset:{L_PART+512*w}")
    A("s_waitcnt lgkmcnt(0)")
    sum2([RING+2*w for w in range(NPART)], TMP)
    A(f"buffer_store_dwordx4 {v4(TMP)}, v{vLANE16}, {SWS}, s8 offen sc1")
    stamp(13)
    A("s_branch L_tail" if cearly else "s_branch L_tail0")
    A.label("L_end")
    A("s_endpgm")
    A('.section .rodata,"a"'); A(".p2align 6"); A(f".amdhsa_kernel {KN}")
    A(".amdhsa_next_free_vgpr 256"); A(".amdhsa_next_free_sgpr 100"); A(".amdhsa_accum_offset 256")
    A(".amdhsa_group_segment_fixed_size 0"); A(".amdhsa_kernarg_size 112"); A(".amdhsa_user_sgpr_count 2")
    A(".amdhsa_user_sgpr_kernarg_segment_ptr 1"); A(".amdhsa_system_sgpr_workgroup_id_x 1")
    A(".amdhsa_float_denorm_mode_32 3")
    A(".end_amdhsa_kernel")
    return A.finalize()

def check_inter(w, inter):
    import numpy as np
    def cmp(name, got, exp):
        err = np.abs(got - exp).max(); rel = np.linalg.norm(got - exp) / np.linalg.norm(exp)
        print("   inter %-5s maxabs %.4e (scale %.3e) relL2 %.3e nan=%d" % (name, err, np.abs(exp).max(), rel, int(np.isnan(got).sum())), got[:4], exp[:4])
    def bf(x):
        u = x.astype(np.float32).view(np.uint32); u = (u + 0x7fff + ((u >> 16) & 1)) & 0xffff0000
        return u.view(np.float32)
    gr = lambda off, n: w[off // 4: off // 4 + n*4].reshape(n, 4)
    md = np.concatenate([gr(WS_MODP, 10*4*64)[:, :2].reshape(10, 4, 128).sum(1).reshape(-1), gr(WS_MR, 2*1280)[:, :2].reshape(2, 2560).sum(0)])
    cmp("mod", md, inter["mod"]); print("      mod bf16 mismatches", int((bf(md) != inter["mod"]).sum()))
    q = gr(WS_QP, 32*2*64)[:, :2].reshape(32, 2, 128).sum(1).reshape(-1)
    cmp("q", q, inter["q"]); print("      q bf16 mismatches", int((bf(q) != inter["q"]).sum()))
    o = gr(WS_OP, 32*8*64)[:, :2].reshape(32, 8, 128).sum(1).reshape(-1)
    cmp("o", o, inter["o"]); print("      o bf16 mismatches", int((bf(o) != inter["o"]).sum()))
    yp = w[WS_YP // 4: WS_YP // 4 + 8*640].view(np.uint32).reshape(8, 320, 2)[:, :, 0]
    ya = np.stack([(yp << 16).view(np.float32), (yp & 0xffff0000).view(np.float32)], axis=-1).reshape(8, 640)
    cmp("at", ya.sum(0), inter["at"])
    cmp("dn", gr(WS_DP, 54*320)[:, :2].reshape(54, 640).sum(0), inter["dn"])

if __name__ == "__main__":
    out = sys.argv[1]
    kw = {}
    for a in sys.argv[2:]:
        k, v = a.split("=")
        kw[k] = eval(v)
    open(out, "w").write(gen(**kw))
```

```python
import sys, struct
from asmdsl import Asm
KN = "adaLN_cond__gqa_block_cached__swiglu_ffn__decode_kernel"

def f2u(x): return struct.unpack("<I", struct.pack("<f", x))[0]
def fh(x): return hex(f2u(x))
LOG2E = 1.4426950408889634
SCALE = 128 ** -0.5

WS_MODP = 0x1000
WS_QP   = WS_MODP + 10*4*1024
WS_SP   = WS_QP + 32*2*1024
WS_OP   = WS_SP + 32*8*1024
WS_YP   = WS_OP + 32*8*1024
WS_DP   = WS_YP + 8*8*2560
WS_MR   = WS_DP + 54*5120
WS_CNT  = WS_MR + 2*20480
WS_END  = WS_CNT + 32*256
WS_STAMP = 0x10000000
L_KT, L_VT, L_QF, L_PF, L_KD, L_RANK, L_MF, L_N6, L_LAM = 0, 4, 8, 12, 16, 20, 24, 28, 32
L_Q = 0x100
L_ST = 0x200
L_PART = 0x400
L_ACC = 0x1000
L_X2 = 0x2000
L_P = 0x3000
L_MOD = 0x5000
L_END = 0x7800
DPPF = "row_mask:0xf bank_mask:0xf"

def gen(stamps=0, pol="nt", NK=12, NV=10, NS=120, NL=5, SLP=16, wake=False, KAP=26, LAG0=20, CAP=20, SLK=4, psl=0, ROT=304, abl=0, PFTH=2, LTH=63, linD=True, linP=True, lsl=0, MAP=0, cwo=True, dbg=False, cearly=True, CTH=63, QK=(0, 8, 4, 3, 0, 10, 6), cstart=True, tp="", pp="", DNP=1, wbar=False, EW=(), NR=4, TW=0, TWD=4, now=0, pf=True, pf2=True, Q_wo=999, Q_ffn=999):
    NP = 8 * (128 - NS); Q_wo = min(Q_wo, NP); Q_ffn = min(Q_ffn, NP)
    A = Asm()
    uid = [0]
    def U(p):
        uid[0] += 1; return f"L_{p}_{uid[0]}"
    sWAVE, sHD, sS, sTAG, sK, sG = "s3", "s32", "s33", "s34", "s35", "s36"
    SK, SV, SWS, SA, SB = "s[40:43]", "s[44:47]", "s[48:51]", "s[52:55]", "s[56:59]"
    sTP, sST, sL2E, sSC, sTO, sF, sTK = "s60", "s61", "s62", "s63", "s64", "s65", "s66"
    sROT, sQ, SCNT = "s37", "s29", "s[38:39]"
    def stamp(k):
        if stamps: A(f"s_memrealtime s[{70+2*k}:{71+2*k}]")
    def stamp_dump(slots, xcc=False, final=True):
        if not stamps: return
        A("s_waitcnt lgkmcnt(0)")
        A("s_mov_b64 exec, 1")
        A(f"s_lshl_b32 s69, s2, 7"); A(f"s_add_u32 s69, s69, {WS_STAMP}")
        A("s_mov_b32 s50, 0x20000000")
        for k in slots:
            A(f"v_mov_b32 v{vT+10}, s{70+2*k}"); A(f"v_mov_b32 v{vT+11}, s{71+2*k}")
            A(f"buffer_store_dwordx2 v[{vT+10}:{vT+11}], v{vZERO}, {SWS}, s69 offen offset:{k*8}")
            A("s_nop 1")
        if xcc:
            A("s_getreg_b32 s68, hwreg(HW_REG_XCC_ID)")
            A(f"v_mov_b32 v{vT+10}, s68"); A(f"v_mov_b32 v{vT+11}, 0")
            A(f"buffer_store_dwordx2 v[{vT+10}:{vT+11}], v{vZERO}, {SWS}, s69 offen offset:120")
        if not final: A("s_mov_b64 exec, -1")
    def dbg_rec(slot, a, b):
        A("s_waitcnt lgkmcnt(0)")
        A("s_load_dwordx2 s[90:91], s[0:1], 96"); A(f"s_sub_u32 s88, {b}, {a}"); A("s_mov_b32 s89, s88"); A("s_waitcnt lgkmcnt(0)")
        A(f"s_atomic_umax s88, s[90:91], {slot*4}"); A(f"s_atomic_add s89, s[90:91], {slot*4+4}"); A("s_waitcnt lgkmcnt(0)")
    def srd(S, lo, hi, n):
        b = int(S[2:S.index(":")])
        A(f"s_mov_b32 s{b}, {lo}"); A(f"s_mov_b32 s{b+1}, {hi}"); A(f"s_mov_b32 s{b+2}, {n}"); A(f"s_mov_b32 s{b+3}, 0x20000")
    def v4(b): return f"v[{b}:{b+3}]"
    def v2(b): return f"v[{b}:{b+1}]"
    def dpp_red(op, vs, ctls):
        for ctl in ctls:
            for v in vs: A(f"{op}_dpp v{v}, v{v}, v{v} {ctl}")
    QUAD = [f"quad_perm:[1,0,3,2] {DPPF}", f"quad_perm:[2,3,0,1] {DPPF}"]
    BANK = [f"row_ror:4 {DPPF}", f"row_ror:8 {DPPF}"]
    BCAST = ["row_bcast:15 row_mask:0xa bank_mask:0xf", "row_bcast:31 row_mask:0xc bank_mask:0xf"]
    def xrow(op, v, t, which):
        A(f"v_mov_b32 v{t}, v{v}"); A(f"v_permlane{which}_swap_b32 v{v}, v{t}"); A(f"{op} v{v}, v{v}, v{t}")
    def wave_red(op, v, t):
        dpp_red(op, [v], QUAD + BANK); xrow(op, v, t, 16); xrow(op, v, t, 32)
    def rbf(d, s):
        A(f"v_cvt_pk_bf16_f32 v{d}, v{s}, v{s}"); A(f"v_and_b32 v{d}, 0xffff0000, v{d}")
    def rbf2(a, b):
        A(f"v_cvt_pk_bf16_f32 v{b}, v{a}, v{b}"); A(f"v_lshlrev_b32 v{a}, 16, v{b}"); A(f"v_and_b32 v{b}, 0xffff0000, v{b}")
    vLANE16, vZERO, vONE, vTKT, vADDR, vPB, vPW, vL = 1, 2, 3, 4, 5, 6, 7, 8
    vLANE, vNAT, vBAD = 9, 10, 11
    vQ, vM2, vACC = 12, 16, 20
    vR, vA_, vB_, vC_, vE_ = 24, 28, 29, 30, 31
    vAOP = 32
    vT = 48
    vM1 = 60
    RING = 64
    WT = RING + 48
    WD = WT + 80
    WD2 = WD + 32
    TMP = RING + 32
    ACC2 = RING + 40
    PF = RING + 44
    def publish(b, voff, soff):
        A(f"v_mov_b32 v{b+3}, {sTAG}")
        A(f"buffer_store_dwordx4 {v4(b)}, v{voff}, {SWS}, {soff} offen sc1")
    def poll(loads, base, tags=(3,), extra=None, nextra=0):
        n = len(loads)
        dst = base if isinstance(base, list) else [base + 4*i for i in range(n)]
        L = U("poll"); Ld = U("pdone")
        def one(k):
            for idx, (vo, so, imm, em) in enumerate(loads):
                if em is not None: A(f"s_mov_b64 exec, {em}")
                A(f"buffer_load_dwordx4 {v4(dst[idx])}, v{vo}, {SWS}, {so} offen offset:{imm} sc1")
                if em is not None: A("s_mov_b64 exec, -1")
            if k: extra()
            first = True
            for idx in range(n):
                d = dst[idx]
                A(f"s_waitcnt vmcnt({k + n-1-idx})")
                for tp in tags:
                    if first: A(f"v_xor_b32 v{vBAD}, {sTAG}, v{d+tp}"); first = False
                    else: A(f"v_bitop3_b32 v{vBAD}, v{vBAD}, v{d+tp}, {sTAG} bitop3:0xf6")
            A(f"v_cmp_ne_u32 vcc, 0, v{vBAD}")
            A(f"s_cbranch_vccz {Ld}")
        if extra: one(nextra)
        A(f"s_mov_b32 {sTO}, 0x40000")
        A.label(L)
        one(0)
        A(f"s_sub_u32 {sTO}, {sTO}, 1")
        A(f"s_cmp_lg_u32 {sTO}, 0")
        A(f"s_cbranch_scc1 {L}")
        A.label(Ld)
    def spre(sbase, offs, sl=None):
        R = [40, 41, 42, 43, 44, 45, 46, 47, 14, 15, 28, 29, 60, 61, 66, 67]
        L = U("spoll"); Ld = U("spd")
        A(f"s_add_u32 s68, s30, {sbase}"); A("s_addc_u32 s69, s31, 0")
        A(f"s_mov_b32 {sTO}, 0x40000")
        A.label(L)
        sl = psl if sl is None else sl
        if sl: A(f"s_sleep {sl}")
        for i, o in enumerate(offs): A(f"s_load_dword s{R[i]}, s[68:69], {o + 1020} glc")
        A(f"s_sub_u32 {sTO}, {sTO}, 1"); A(f"s_cmp_eq_u32 {sTO}, 0"); A(f"s_cbranch_scc1 {Ld}")
        A("s_waitcnt lgkmcnt(0)")
        for i, o in enumerate(offs):
            A(f"s_cmp_lg_u32 s{R[i]}, {sTAG}"); A(f"s_cbranch_scc1 {L}")
        A.label(Ld)
        A("s_waitcnt lgkmcnt(0)")
    def lds_wait(off, val, slow=False, slp=None):
        L = U("lw"); Ld = U("lwd")
        A(f"s_mov_b32 {sTO}, 0x400000")
        A.label(L)
        if slow: A(f"s_sleep {SLP if slp is None else slp}")
        A(f"ds_read_b32 v{vBAD}, v{vZERO} offset:{off}")
        A(f"s_sub_u32 {sTO}, {sTO}, 1"); A(f"s_cmp_eq_u32 {sTO}, 0"); A(f"s_cbranch_scc1 {Ld}")
        A("s_waitcnt lgkmcnt(0)")
        A(f"v_cmp_gt_u32 vcc, {val}, v{vBAD}")
        A(f"s_cbranch_vccnz {L}")
        A.label(Ld)
    def sum2(bases, dst=None):
        bs = list(bases)
        while len(bs) > 1:
            nb = []
            for i in range(0, len(bs) - 1, 2):
                d = dst if (dst is not None and len(bs) == 2) else bs[i]
                A(f"v_pk_add_f32 {v2(d)}, {v2(bs[i])}, {v2(bs[i+1])}"); nb.append(d)
            if len(bs) % 2: nb.append(bs[-1])
            bs = nb
    def gemv(acc, mask, items, acc2=None, w2=None, keep=False):
        def mf(n):
            (x0, c0, w0, wc0) = items[n]
            if wc0 is not None: A(f"s_waitcnt vmcnt({wc0})")
            A(f"v_mfma_f32_16x16x32_bf16 {v4(acc)}, {v4(vAOP + 4*(n % 4))}, {v4(w0)}, {'0' if (n == 0 and not keep) else v4(acc)}")
            if acc2 is not None:
                A(f"v_mfma_f32_16x16x32_bf16 {v4(acc2)}, {v4(vAOP + 4*(n % 4))}, {v4(w2+4*n)}, {'0' if n == 0 else v4(acc2)}")
        for n, (x, ctl, w, wc) in enumerate(items):
            a = vAOP + 4 * (n % 4)
            for t in range(4): A(f"v_and_b32_dpp v{a+t}, v{x}, v{mask+t} {ctl} {DPPF}")
            if n >= 1: mf(n-1)
        mf(len(items) - 1)
    def ysplit(xs, y):
        for i, x in enumerate(xs): A(f"v_mov_b32 v{y+2*i}, v{x}"); A(f"v_mov_b32 v{y+2*i+1}, v{x}")
        for i, x in enumerate(xs):
            A(f"v_mov_b32_dpp v{y+2*i}, v{x} row_shr:4 row_mask:0xf bank_mask:0xa")
            A(f"v_mov_b32_dpp v{y+2*i+1}, v{x} row_shl:4 row_mask:0xf bank_mask:0x5")
    qp = lambda k: f"quad_perm:[{k},{k},{k},{k}]"
    def silu(x, t):
        A(f"v_mul_f32 v{t}, {fh(-LOG2E)}, v{x}"); A(f"v_exp_f32 v{t}, v{t}")
        A(f"v_add_f32 v{t}, 1.0, v{t}"); A(f"v_rcp_f32 v{t}, v{t}"); A(f"v_mul_f32 v{x}, v{x}, v{t}")
    def acc_addr(d):
        A(f"v_and_b32 v{d}, 7, v{vLANE}"); A(f"v_lshlrev_b32 v{d}, 5, v{d}")
        A(f"v_and_b32 v{vT+11}, 16, v{vLANE}"); A(f"v_add_u32 v{d}, v{d}, v{vT+11}")
        A(f"v_lshrrev_b32 v{vT+11}, 5, v{vLANE}"); A(f"v_lshl_add_u32 v{d}, v{vT+11}, 8, v{d}")
        A(f"s_lshl_b32 s68, {sWAVE}, 9"); A(f"v_add_u32 v{d}, s68, v{d}")
    def acc_write(d):
        A("s_mov_b32 exec_lo, 0x00ff00ff"); A("s_mov_b32 exec_hi, 0xff00ff00")
        A(f"ds_write_b128 v{d}, {v4(vACC)} offset:{L_ACC}")
        A("s_mov_b64 exec, -1")
    def mod_loads(scb, srb):
        wb = RING
        srd(SA, "s24", "s25", 640*7680); srd(SB, "s22", "s23", 1280)
        A(f"v_lshrrev_b32 v{vT}, 4, v{vLANE}"); A(f"v_mul_u32_u24 v{vT}, 40, v{vT}")
        A(f"v_and_b32 v{vT+1}, 15, v{vLANE}"); A(f"v_add_u32 v{vT+2}, v{vT}, v{vT+1}"); A(f"v_lshlrev_b32 v{vT+2}, 1, v{vT+2}")
        A(f"v_and_b32 v{vT+3}, 7, v{vLANE}"); A(f"v_add_u32 v{vT+3}, v{vT}, v{vT+3}"); A(f"v_lshlrev_b32 v{vT+3}, 1, v{vT+3}")
        A(f"s_mul_i32 s69, {srb}, 320")
        A(f"buffer_load_ushort v{vR}, v{vT+2}, {SB}, s69 offen")
        A(f"buffer_load_ushort v{vR+1}, v{vT+2}, {SB}, s69 offen offset:32")
        A(f"buffer_load_ushort v{vR+2}, v{vT+3}, {SB}, s69 offen offset:64")
        A(f"v_mul_u32_u24 v{vT}, 7680, v{vT}"); A(f"v_lshl_add_u32 v{vT}, v{vT+1}, 4, v{vT}")
        A(f"s_mul_i32 s69, {srb}, {160*7680}"); A(f"s_lshl_b32 s68, {scb}, 8"); A("s_add_u32 s68, s69, s68")
        for t in range(40):
            A(f"buffer_load_dwordx4 {v4(wb+4*t)}, v{vT}, {SA}, s68 offen {pol}")
            if t < 39: A("s_add_u32 s68, s68, 7680")
    def mod_compute():
        wb = RING
        A("s_waitcnt vmcnt(40)")
        for k in range(3):
            A(f"v_lshlrev_b32 v{vR+k}, 16, v{vR+k}"); silu(vR+k, vR+3); A(f"v_cvt_pk_bf16_f32 v{vR+k}, v{vR+k}, v{vR+k}")
        gemv(vACC, vM2, [(vR + t // 16, f"row_newbcast:{t % 16}", wb+4*t, 39-t) for t in range(40)])
    def common_setup():
        A(f"s_load_dword {sTAG}, s[30:31], 0")
        srd(SWS, "s30", "s31", WS_END)
        A(f"v_and_b32 v{vT}, 1, v{vLANE}"); A(f"v_lshlrev_b32 v{vT}, 4, v{vT}"); A(f"v_mov_b32 v{vT+1}, 0xffff"); A(f"v_lshlrev_b32 v{vT}, v{vT}, v{vT+1}")
        A(f"v_bfe_u32 v{vT+1}, v{vLANE}, 1, 2")
        A(f"v_bfe_u32 v{vT+2}, v{vLANE}, 1, 3")
        for t in range(4):
            A(f"v_cmp_eq_u32 vcc, {t}, v{vT+1}"); A(f"v_cndmask_b32 v{vM1+t}, 0, v{vT}, vcc")
            A(f"v_cmp_eq_u32 vcc, {2*t}, v{vT+2}"); A(f"v_cndmask_b32 v{vM2+t}, 0, v{vT}, vcc")
        A(f"v_and_b32 v{vT}, 15, v{vLANE}"); A(f"v_lshlrev_b32 v{vT}, 6, v{vT}"); A(f"v_and_b32 v{vT+1}, 48, v{vLANE}"); A(f"v_add_u32 v{vNAT}, v{vT}, v{vT+1}")
        A("s_waitcnt lgkmcnt(0)")
        A(f"s_add_u32 {sTAG}, {sTAG}, 0x01010101")
    def gu_loads(Ld, LTH, sWAVE=sWAVE):
        vT = vAOP
        if Ld:
            A(f"s_cmp_ge_u32 {sF}, 54"); A(f"s_cbranch_scc1 {Ld}")
            A(f"s_cmp_gt_u32 {sWAVE}, 3"); A(f"s_cbranch_scc1 {Ld}")
        A(f"v_and_b32 v{vT+2}, 4, v{vLANE}"); A(f"v_cmp_eq_u32 vcc, 0, v{vT+2}")
        A(f"v_mov_b32 v{vT+2}, s18"); A(f"v_mov_b32 v{vT+3}, s16"); A(f"v_cndmask_b32 v{vT+6}, v{vT+2}, v{vT+3}, vcc")
        A(f"v_mov_b32 v{vT+2}, s19"); A(f"v_mov_b32 v{vT+3}, s17"); A(f"v_cndmask_b32 v{vT+7}, v{vT+2}, v{vT+3}, vcc")
        A(f"s_mul_i32 s69, {sWAVE}, {160*3456}"); A(f"s_lshl_b32 s68, {sF}, 6"); A("s_add_u32 s69, s69, s68")
        A(f"v_and_b32 v{vT+4}, 3, v{vLANE}"); A(f"v_lshl_add_u32 v{vT+4}, v{vT+4}, 4, s69")
        A(f"v_lshrrev_b32 v{vT+5}, 3, v{vLANE}")
        for (mul, add, rows) in ((16*3456, 0, [(k, y) for k in range(4) for y in range(4)]), (4*3456, 128*3456, [(k, 4) for k in range(4)])):
            A(f"v_mul_u32_u24 v{vT+1}, {mul}, v{vT+5}"); A(f"v_add_u32 v{vT+1}, v{vT+1}, v{vT+4}")
            if add: A(f"v_add_u32 v{vT+1}, {add}, v{vT+1}")
            A(f"v_add_co_u32 v{vT+2}, vcc, v{vT+6}, v{vT+1}"); A(f"v_addc_co_u32 v{vT+3}, vcc, 0, v{vT+7}, vcc")
            for i, (k, y) in enumerate(rows):
                A(f"global_load_dwordx4 {v4(WT+4*(y*4+k))}, {v2(vT+2)}, off offset:{(i%2)*3456} {tp}")
                if LTH < 63: A(f"s_waitcnt vmcnt({LTH})")
                if i % 2 == 1 and i < len(rows) - 1:
                    A(f"v_add_co_u32 v{vT+2}, vcc, {2*3456}, v{vT+2}"); A(f"v_addc_co_u32 v{vT+3}, vcc, 0, v{vT+3}, vcc")
    def dn_prep():
        srd(SA, "s20", "s21", 1728*1280)
        A(f"v_lshrrev_b32 v{vT+1}, 4, v{vLANE}"); A(f"v_mul_u32_u24 v{vT+1}, {8*1280}, v{vT+1}")
        A(f"v_and_b32 v{vT+2}, 15, v{vLANE}"); A(f"v_lshl_add_u32 v{vT+1}, v{vT+2}, 4, v{vT+1}")
        A(f"s_mul_i32 s60, {sF}, {32*1280}"); A("s_lshl_b32 s68, s23, 8"); A("s_add_u32 s60, s60, s68")
    def dn_issue(Ld):
        A("s_mov_b32 s69, s60")
        for t in range(8):
            if t % 2 == 0: A(f"s_add_u32 s68, s69, {t*1280}")
            A(f"buffer_load_dwordx4 {v4(WD+4*t)}, v{vT+1}, {SA}, s68 offen offset:{(t%2)*1280} {tp}")
        A(f"s_cmp_lg_u32 {sWAVE}, 5"); A(f"s_cbranch_scc1 {Ld}")
        for t in range(8):
            if t % 2 == 0: A(f"s_add_u32 s68, s69, {t*1280}")
            A(f"buffer_load_dwordx4 {v4(WD2+4*t)}, v{vT+1}, {SA}, s68 offen offset:{(t%2)*1280 + 768} {tp}")
    def wo_loads():
        srd(SA, "s12", "s13", 4096*1280)
        A(f"v_bfe_u32 v{vT+1}, v{vLANE}, 4, 1"); A(f"v_lshlrev_b32 v{vT+1}, 5, v{vT+1}")
        A(f"v_lshrrev_b32 v{vT+2}, 5, v{vLANE}"); A(f"v_add_u32 v{vT+1}, v{vT+1}, v{vT+2}")
        A(f"v_bfe_u32 v{vT+2}, v{vLANE}, 3, 1"); A(f"v_lshl_add_u32 v{vT+1}, v{vT+2}, 4, v{vT+1}")
        A(f"v_mul_u32_u24 v{vT+1}, 1280, v{vT+1}")
        A(f"v_and_b32 v{vT+2}, 7, v{vLANE}"); A(f"v_lshl_add_u32 v{vT+1}, v{vT+2}, 4, v{vT+1}")
        A(f"s_lshr_b32 s68, {sWAVE}, 1"); A("s_lshl_b32 s68, s68, 3"); A(f"s_add_u32 s68, s68, {sG}"); A("s_lshl_b32 s68, s68, 1")
        A(f"s_and_b32 s69, {sWAVE}, 1"); A("s_add_u32 s68, s68, s69"); A(f"s_mul_i32 s69, s68, {64*1280}")
        A(f"s_lshl_b32 s68, {sK}, 7"); A("s_add_u32 s69, s69, s68")
        for n in range(8):
            if n % 2 == 0: A(f"s_add_u32 s68, s69, {2*n*1280}")
            A(f"buffer_load_dwordx4 {v4(WT+4*n)}, v{vT+1}, {SA}, s68 offen offset:{(n%2)*2560} {tp}")
    def tail_loads(dn):
        Lw, Ld = U("lwo"), U("ldone")
        A(f"s_cmp_lt_u32 {sK}, 10"); A(f"s_cbranch_scc1 {Lw}")
        if not (now & 1):
            gu_loads(Ld, CTH if dn else LTH)
        A(f"s_branch {Ld}")
        A.label(Lw)
        if not (now & 2) and (cwo or not dn): wo_loads()
        A.label(Ld)

    A(f"; @launch grid=(256,1,1) block=(512,1,1) lds={L_END}")
    A('.amdgcn_target "amdgcn-amd-amdhsa--gfx950"')
    A(".text"); A(f".globl {KN}"); A(".p2align 8"); A(f".type {KN},@function"); A.label(KN)
    stamp(0)
    if dbg: A("s_memrealtime s[96:97]")
    A("s_cmp_ge_u32 s2, 256"); A("s_cbranch_scc1 L_end")
    A("s_load_dwordx16 s[4:19], s[0:1], 0")
    A("s_load_dwordx8 s[20:27], s[0:1], 64")
    A("s_load_dwordx4 s[28:31], s[0:1], 96")
    A("v_lshrrev_b32 v1, 6, v0"); A(f"v_and_b32 v{vLANE}, 63, v0")
    A(f"v_readfirstlane_b32 {sWAVE}, v1")
    A(f"v_lshlrev_b32 v{vLANE16}, 4, v{vLANE}")
    A(f"s_lshr_b32 {sHD}, s2, 3"); A(f"s_and_b32 {sG}, s2, 7"); A(f"s_lshl_b32 {sK}, {sG}, 2"); A(f"s_add_u32 {sK}, {sK}, {sHD}"); A(f"s_and_b32 {sK}, {sK}, 31")
    A(f"s_add_u32 {sS}, {sG}, {sHD}"); A(f"s_and_b32 {sS}, {sS}, 7")
    if MAP == 1:
        A(f"s_and_b32 {sHD}, s2, 31"); A(f"s_lshr_b32 {sS}, s2, 5"); A(f"s_lshr_b32 {sK}, s2, 3")
    A(f"s_mov_b32 {sL2E}, {fh(LOG2E)}"); A(f"s_mov_b32 {sSC}, {fh(SCALE)}")
    A(f"s_sub_u32 s68, {sK}, 10"); A(f"s_mul_i32 {sF}, {sG}, 7"); A(f"s_add_u32 {sF}, {sF}, s68")
    A("s_cmp_lt_u32 s68, 7"); A(f"s_cselect_b32 {sF}, {sF}, 63")
    A(f"v_mov_b32 v{vZERO}, 0"); A(f"v_mov_b32 v{vONE}, 1")
    A(f"s_cmp_eq_u32 {sWAVE}, 0"); A("s_cbranch_scc1 L_ctrl0")
    A(f"s_cmp_gt_u32 {sWAVE}, {NL}"); A("s_cbranch_scc1 L_help")
    A(f"s_mul_i32 {sROT}, {sHD}, {ROT}"); A(f"s_lshl_b32 {sST}, {sS}, 7"); A(f"s_add_u32 {sST}, {sST}, {sROT}")
    A(f"s_lshl_b32 s68, {sHD}, 22")
    def tile_addr(sreg, add):
        A(f"s_add_u32 s69, {sreg}, {add}")
        if ROT: A("s_and_b32 s69, s69, 1023")
        A("s_lshl_b32 s69, s69, 12")
        A(f"v_add_u32 v{vADDR}, s69, v{vLANE16}")
    A(f"s_add_u32 s67, {sST}, {sWAVE}"); A("s_sub_u32 s67, s67, 1")
    tile_addr("s67", 0)
    if stamps == 6: stamp(2)
    A("s_waitcnt lgkmcnt(0)")
    A("s_add_u32 s40, s6, s68"); A("s_addc_u32 s41, s7, 0"); A("s_mov_b32 s42, 0x400000"); A("s_mov_b32 s43, 0x20000")
    G = lambda i: RING + 16*i
    def load(S, slot):
        for u in range(4): A(f"buffer_load_dwordx4 {v4(G(slot)+4*u)}, v{vADDR}, {S}, 0 offen offset:{u*1024} {pol}")
    load(SK, 0)
    if stamps == 6: stamp(3)
    A("s_add_u32 s44, s8, s68"); A("s_addc_u32 s45, s9, 0"); A("s_mov_b32 s46, 0x400000"); A("s_mov_b32 s47, 0x20000")
    A("s_barrier")
    common_setup()
    A(f"s_lshl_b32 s38, {sHD}, 8"); A(f"s_add_u32 s38, s38, {WS_CNT}"); A("s_add_u32 s38, s38, s30"); A("s_addc_u32 s39, s31, 0")
    A(f"s_mov_b32 {sQ}, {NP}"); A(f"s_cmp_lt_u32 {sF}, 54"); A(f"s_cselect_b32 {sQ}, {Q_ffn}, {sQ}"); A(f"s_cmp_lt_u32 {sK}, 10"); A(f"s_cselect_b32 {sQ}, {Q_wo}, {sQ}")
    A(f"v_and_b32 v{vPB}, 60, v{vLANE}")
    A(f"s_lshl_b32 s68, {sWAVE}, 6"); A("s_sub_u32 s68, s68, 64"); A(f"v_add_u32 v{vPW}, s68, v{vPB}")
    for r in range(4): A(f"v_mov_b32 v{vACC+r}, 0")
    for i in range(1, NK):
        tile_addr("s67", NL*i)
        A("s_waitcnt vmcnt(0)")
        if i == 1 and stamps in (4, 6): stamp(1)
        if i == 2 and stamps == 6: stamp(4)
        if i == 3 and stamps == 6: stamp(5)
        load(SK, i)
    if stamps == 4: stamp(2)
    A(f"v_and_b32 v{vT}, 15, v{vLANE}"); A(f"v_lshlrev_b32 v{vT}, 4, v{vT}")
    if dbg: A("s_memrealtime s[80:81]")
    lds_wait(L_QF, 1)
    if dbg: A("s_memrealtime s[82:83]")
    A(f"ds_read_b128 {v4(vQ)}, v{vT} offset:{L_Q}")
    A("s_waitcnt lgkmcnt(0)")
    def req(off):
        A("s_mov_b64 exec, 1"); A(f"ds_add_rtn_u32 v{vTKT}, v{vZERO}, v{vONE} offset:{off}"); A("s_mov_b64 exec, -1")
    def qk(slot, va, off):
        kb = G(slot)
        for t in range(4):
            for u in range(4):
                if t == 0: A(f"v_dot2_f32_bf16 v{vR+u}, v{kb+4*u}, v{vQ}, 0")
                else: A(f"v_dot2c_f32_bf16 v{vR+u}, v{kb+4*u+t}, v{vQ+t}")
        A(f"v_add_f32_dpp v{vA_}, v{vR}, v{vR} row_ror:8 row_mask:0xf bank_mask:0x3")
        A(f"v_add_f32_dpp v{vB_}, v{vR+2}, v{vR+2} row_ror:8 row_mask:0xf bank_mask:0x3")
        A(f"v_add_f32_dpp v{vA_}, v{vR+1}, v{vR+1} row_ror:8 row_mask:0xf bank_mask:0xc")
        A(f"v_add_f32_dpp v{vB_}, v{vR+3}, v{vR+3} row_ror:8 row_mask:0xf bank_mask:0xc")
        A(f"v_add_f32_dpp v{vC_}, v{vA_}, v{vA_} row_shl:4 row_mask:0xf bank_mask:0x5")
        A(f"v_add_f32_dpp v{vC_}, v{vB_}, v{vB_} row_shr:4 row_mask:0xf bank_mask:0xa")
        dpp_red("v_add_f32", [vC_], QUAD)
        rbf(vC_, vC_)
        A(f"v_mul_f32 v{vC_}, {sSC}, v{vC_}")
        rbf(vC_, vC_)
        A(f"ds_write_b32 v{va}, v{vC_} offset:{off}")
    def build(p):
        lane_of = [0, 8, 4, 12]
        for u in range(4):
            for t in range(4): A(f"v_and_b32_dpp v{vAOP+4*u+t}, v{p}, v{vM2+t} row_newbcast:{lane_of[u]} {DPPF}")
    def mm(slot):
        for u in range(4):
            A(f"v_mfma_f32_16x16x32_bf16 {v4(vACC)}, {v4(vAOP+4*u)}, {v4(G(slot)+4*u)}, {v4(vACC)}")
    LA, LB = 0, NK - 1
    qk(0, vPW, L_P)
    todo = list(range(1, NK - 1))
    cur, cur_i, nxt = LB, NK - 1, LA
    step = 0
    while todo:
        i = NK + step
        tile_addr("s67", NL*i)
        A("s_waitcnt vmcnt(0)")
        load(SK, nxt)
        if len(todo) <= 2: req(L_KT)
        qk(cur, vPW, L_P + NL*cur_i*64)
        for b in todo[:2]: qk(b, vPW, L_P + NL*b*64)
        todo = todo[2:]
        cur, nxt, cur_i = nxt, cur, i
        step += 1
    KT0 = NL * (NK + step)
    assert KT0 <= 128
    A(f"v_add_u32 v{vE_}, {NL*cur_i*64}, v{vPW}")
    if stamps == 4: stamp(3)
    order = [cur, nxt]
    A.label("L_k0")
    for n in range(2):
        X, Y = order[n], order[1-n]
        if n: A.label("L_k1")
        A("s_waitcnt lgkmcnt(0)")
        A(f"v_readfirstlane_b32 {sTK}, v{vTKT}")
        A(f"s_cmp_ge_u32 {sTK}, 128"); A(f"s_cbranch_scc1 L_kend{n}")
        tile_addr(sTK, sST)
        A("s_waitcnt vmcnt(0)")
        load(SK, Y)
        req(L_KT)
        qk(X, vE_, L_P)
        A(f"s_lshl_b32 s68, {sTK}, 6"); A(f"v_add_u32 v{vE_}, s68, v{vPB}")
    A("s_branch L_k0")
    for n in range(2):
        A.label(f"L_kend{n}")
        tile_addr("s67", 0)
        A("s_waitcnt vmcnt(0)")
        load(SV, 1)
        qk(order[n], vE_, L_P)
        if n == 0: A("s_branch L_vpre")
    A.label("L_vpre")
    A("s_waitcnt lgkmcnt(0)")
    A("s_mov_b64 exec, 1"); A(f"ds_add_u32 v{vZERO}, v{vONE} offset:{L_KD}"); A("s_mov_b64 exec, -1")
    if wake: A("s_waitcnt lgkmcnt(0)"); A("s_wakeup")
    if stamps == 4: stamp(4)
    for i in range(1, NV):
        tile_addr("s67", NL*i)
        A("s_waitcnt vmcnt(0)")
        load(SV, i + 1)
    if stamps == 4: stamp(5)
    if dbg: A("s_memrealtime s[84:85]")
    lds_wait(L_PF, 1)
    if dbg: A("s_memrealtime s[86:87]")
    A(f"ds_read_b32 v{vC_}, v{vZERO} offset:{L_LAM}")
    A(f"v_and_b32 v{vL}, 4, v{vLANE}"); A(f"v_lshlrev_b32 v{vL}, 2, v{vL}"); A(f"v_sub_u32 v{vL}, 16, v{vL}")
    A(f"s_lshl_b32 s14, {sHD}, 13"); A(f"s_add_u32 s14, s14, {WS_SP + (NS - 112)*32}"); A("s_add_u32 s14, s14, s30"); A("s_addc_u32 s15, s31, 0")
    nstep = NV // 2
    if nstep % 2: nstep += 1
    PR = vT
    assert NV + nstep <= 12 + 4
    preg = lambda i: (vT + i) if i < 12 else (vR + i - 12)
    for i in range(NV + nstep):
        A(f"ds_read_b32 v{preg(i)}, v{vPW} offset:{L_P + NL*i*64}")
        if i == 8: A("s_waitcnt lgkmcnt(2)")
    A("s_waitcnt lgkmcnt(0)")
    todo = [(i + 1, i) for i in range(NV)]
    live = [LA, LB]
    for j in range(nstep):
        tile_addr("s67", NL*(NV + j))
        A("s_waitcnt vmcnt(0)")
        load(SV, live[j % 2])
        if j == nstep - 1: req(L_VT)
        items = ([(live[(j-1) % 2], NV + j - 1)] if j else []) + todo[:2]
        todo = todo[2:]
        if j == nstep - 1: items += todo; todo = []
        for (sl, i) in items: build(preg(i)); mm(sl)
    build(preg(NV + nstep - 1))
    VT0 = NL * (NV + nstep)
    order = [LB, LA]
    A.label("L_v0")
    for n in range(2):
        X, Y = order[n], order[1-n]
        A("s_waitcnt lgkmcnt(0)")
        A(f"v_readfirstlane_b32 {sTK}, v{vTKT}")
        A(f"s_cmp_ge_u32 {sTK}, {NS}"); A(f"s_cbranch_scc1 L_din{n}")
        A(f"s_lshl_b32 s68, {sTK}, 6"); A(f"v_add_u32 v{vE_}, s68, v{vPB}")
        A(f"ds_read_b32 v{vE_}, v{vE_} offset:{L_P}")
        tile_addr(sTK, sST)
        A("s_waitcnt vmcnt(0) lgkmcnt(0)")
        load(SV, Y)
        req(L_VT)
        mm(X); build(vE_)
    A("s_branch L_v0")
    for n in range(2):
        A.label(f"L_din{n}")
        A(f"s_mov_b32 {sTK}, 1"); A(f"s_atomic_add {sTK}, {SCNT}, 0 glc")
        A(f"s_branch L_d{n}")
    for n in range(2):
        X, Y = order[n], order[1-n]
        A.label(f"L_d{n}")
        A("s_waitcnt lgkmcnt(0)")
        A(f"s_cmp_ge_u32 {sTK}, {NP}"); A(f"s_cbranch_scc1 L_vend{n}")
        A(f"s_and_b32 s68, {sTK}, 7"); A(f"s_lshr_b32 s67, {sTK}, 3")
        A("s_lshl_b32 s69, s68, 5"); A("s_add_u32 s69, s69, s67"); A("s_lshl_b32 s69, s69, 5")
        A("s_load_dwordx8 s[52:59], s[14:15], s69 glc")
        A("s_lshl_b32 s68, s68, 7"); A("s_add_u32 s68, s68, s67"); A(f"s_add_u32 s68, s68, {NS}")
        tile_addr("s68", sROT)
        A(f"s_cmp_ge_u32 {sTK}, {sQ}"); A(f"s_cselect_b32 {sTP}, {NP}, 0"); A(f"s_cselect_b32 {sTK}, 0, 1")
        A("s_waitcnt vmcnt(0)")
        load(SV, Y)
        mm(X)
        A("s_waitcnt lgkmcnt(0)")
        A(f"s_atomic_add {sTK}, {SCNT}, 0 glc")
        A("s_mov_b64 exec, 0xff")
        for j in range(8):
            A(f"v_lshlrev_b32 v{vE_}, v{vL}, s{52+j}")
            if j < 7: A("s_lshl_b64 exec, exec, 8")
        A("s_mov_b64 exec, -1")
        A(f"v_and_b32 v{vE_}, 0xffff0000, v{vE_}")
        A(f"v_fma_f32 v{vE_}, v{vE_}, {sL2E}, -v{vC_}")
        A(f"v_exp_f32 v{vE_}, v{vE_}")
        A(f"v_cvt_pk_bf16_f32 v{vE_}, v{vE_}, v{vE_}")
        build(vE_)
        if Q_wo < NP or Q_ffn < NP:
            A("s_waitcnt lgkmcnt(0)"); A(f"s_add_u32 {sTK}, {sTK}, {sTP}")
    A("s_branch L_d0")
    for n in range(2):
        A.label(f"L_vend{n}")
        if pf and not TW:
            A("s_mov_b64 exec, 1"); A(f"ds_add_rtn_u32 v{vTKT}, v{vZERO}, v{vONE} offset:{L_RANK}"); A("s_mov_b64 exec, -1")
        A(f"s_lshl_b32 s69, {sWAVE}, 9"); A(f"v_lshrrev_b32 v{vT}, 1, v{vNAT}"); A(f"v_add_u32 v{vT}, s69, v{vT}")
        A("s_waitcnt vmcnt(0)")
        mm(order[n])
        if n == 0: A("s_branch L_last")
    A.label("L_last")
    A(f"ds_write_b64 v{vT}, {v2(vACC)} offset:{L_PART-512}")
    A("s_waitcnt lgkmcnt(0)")
    def wo_prefetch(first, cnt, th):
        srd(SA, "s12", "s13", 4096*1280)
        A(f"s_and_b32 s68, {sK}, 24"); A(f"s_add_u32 s68, s68, {sG}"); A(f"s_mul_i32 s68, s68, {128*1280}")
        A(f"s_and_b32 s69, {sK}, 7"); A(f"s_mul_i32 s69, s69, {20*1024}"); A("s_add_u32 s68, s68, s69")
        if first: A(f"s_add_u32 s68, s68, {first}")
        for n in range(cnt):
            if n and n % 4 == 0: A("s_add_u32 s68, s68, 4096")
            A(f"buffer_load_dwordx4 {v4(PF)}, v{vLANE16}, {SA}, s68 offen offset:{(n%4)*1024} {pp}")
            if th < 63: A(f"s_waitcnt vmcnt({th})")
    if pf and not TW:
        A(f"v_readfirstlane_b32 s66, v{vTKT}")
        A(f"s_cmp_ge_u32 s66, {NR}"); A("s_cbranch_scc1 L_pfdone")
        A(f"s_mul_i32 s66, s66, {(20 // NR)*1024}")
        wo_prefetch("s66", 20 // NR, 63)
        A.label("L_pfdone")
    if stamps in (4, 6):
        A(f"s_cmp_lg_u32 {sWAVE}, 1"); A("s_cbranch_scc1 L_ns4")
        stamp_dump([1, 2, 3, 4, 5], final=False)
        A.label("L_ns4")
    A.label("L_join")
    A("s_barrier")
    if abl: A("s_endpgm"); A.label("L_abl_dead")
    if dbg:
        A(f"s_cmp_lg_u32 {sWAVE}, 4"); A("s_cbranch_scc1 L_ndbg")
        A("s_memrealtime s[78:79]")
        dbg_rec(2, "s80", "s82"); dbg_rec(4, "s84", "s86"); dbg_rec(6, "s96", "s80"); dbg_rec(8, "s96", "s78")
        A.label("L_ndbg")
    if pf2:
        A(f"s_cmp_lt_u32 {sK}, 17"); A("s_cbranch_scc1 L_pf2done")
        A(f"s_sub_u32 s66, {sK}, 17"); A("s_mul_i32 s66, s66, 7"); A(f"s_add_u32 s66, s66, {sWAVE}"); A("s_sub_u32 s66, s66, 1")
        A("s_cmp_ge_u32 s66, 80"); A("s_cbranch_scc1 L_pf2dn")
        srd(SA, "s16", "s17", 640*3456); srd(SB, "s18", "s19", 640*3456)
        A(f"v_lshrrev_b32 v{vT+1}, 5, v{vLANE}"); A(f"v_mul_u32_u24 v{vT+1}, 3456, v{vT+1}")
        A(f"v_and_b32 v{vT+2}, 31, v{vLANE}"); A(f"v_lshl_add_u32 v{vT+1}, v{vT+2}, 4, v{vT+1}")
        A(f"s_mul_i32 s68, {sG}, 7"); A("s_lshr_b32 s68, s68, 1"); A("s_min_u32 s68, s68, 23"); A("s_lshl_b32 s68, s68, 7")
        npair = (3 if cearly else 4) - len(EW)
        A(f"s_mul_i32 s69, s66, {2*npair*3456}"); A("s_add_u32 s68, s68, s69"); A(f"s_add_u32 s68, s68, {(160 if cearly else 0)*3456}")
        for n in range(npair):
            for S in (SA, SB):
                A(f"buffer_load_dwordx4 {v4(PF)}, v{vT+1}, {S}, s68 offen {pp}")
                if PFTH < 63: A(f"s_waitcnt vmcnt({PFTH})")
            if n < npair - 1: A(f"s_add_u32 s68, s68, {2*3456}")
        A("s_waitcnt vmcnt(0)")
        A("s_endpgm")
        A.label("L_pf2dn")
        srd(SA, "s20", "s21", 1728*1280)
        A(f"s_mul_i32 s68, {sG}, {7*40960}"); A("s_sub_u32 s69, s66, 80"); A(f"s_mul_i32 s69, s69, {11520}"); A("s_add_u32 s68, s68, s69")
        A(f"v_add_u32 v{vT+1}, s68, v{vLANE16}")
        for n in range(12):
            if n and n % 4 == 0: A(f"v_add_u32 v{vT+1}, 0x1000, v{vT+1}")
            A(f"buffer_load_dwordx4 {v4(PF)}, v{vT+1}, {SA}, 0 offen offset:{(n%4)*1024} {pp}")
            if PFTH < 63: A(f"s_waitcnt vmcnt({PFTH+1})")
        A("s_waitcnt vmcnt(0)")
        A("s_endpgm")
        A.label("L_pf2done")
    A.label("L_tail0")
    A(f"s_cmp_ge_u32 {sF}, 54"); A("s_cbranch_scc1 L_nomap")
    A(f"s_xor_b32 s68, {sWAVE}, 4"); A(f"s_and_b32 s69, {sWAVE}, 3"); A(f"s_cselect_b32 {sWAVE}, s68, {sWAVE}")
    for w in EW:
        A(f"s_cmp_eq_u32 {sWAVE}, {w-4}"); A("s_cbranch_scc1 L_tail")
    A.label("L_nomap")
    tail_loads(False)
    A.label("L_tail")
    A(f"s_cmp_lt_u32 {sK}, 10"); A("s_cbranch_scc1 L_wo")
    A(f"s_cmp_ge_u32 {sF}, 54"); A("s_cbranch_scc1 L_exit")
    X0, GA = 24, 26
    CC = [12, 13, 14, 15, 28]; SS = [RING+36, RING+37, RING+38, RING+39, 29]
    SEL0, SEL1, GB = 30, 31, 6
    A(f"s_cmp_gt_u32 {sWAVE}, 3"); A("s_cbranch_scc1 L_gprep")
    A(f"v_lshrrev_b32 v{vT}, 3, v{vLANE}"); A(f"v_and_b32 v{vT+1}, 3, v{vLANE}"); A(f"v_lshl_add_u32 v{vT+1}, v{vT}, 2, v{vT+1}")
    A(f"s_mul_i32 s68, {sWAVE}, 640"); A(f"v_lshl_add_u32 v{vT+8}, v{vT+1}, 4, s68")
    A("s_add_u32 s68, s68, 512"); A(f"v_lshl_add_u32 v{vT+9}, v{vT+1}, 2, s68")
    A(f"ds_read_b128 {v4(SS[0])}, v{vT+8} offset:{L_MOD+2560}"); A(f"ds_read_b32 v{SS[4]}, v{vT+9} offset:{L_MOD+2560}")
    A(f"ds_read_b128 {v4(CC[0])}, v{vT+8} offset:{L_MOD+5120}"); A(f"ds_read_b32 v{CC[4]}, v{vT+9} offset:{L_MOD+5120}")
    acc_addr(vT+5)
    A(f"s_min_u32 s21, {sF}, 39")
    A(f"v_mul_u32_u24 v{vL}, 5120, v{vT}")
    A(f"v_and_b32 v{vONE}, 7, v{vLANE}"); A(f"v_lshl_add_u32 v{vL}, v{vONE}, 4, v{vL}")
    A(f"s_lshl_b32 s68, s21, 7"); A(f"v_add_u32 v{vL}, s68, v{vL}")
    A(f"v_lshrrev_b32 v{vT+1}, 5, v{vLANE}"); A(f"v_lshl_add_u32 v{vONE}, v{vONE}, {3 if linD else 1}, v{vT+1}")
    if linD:
        A("s_lshr_b32 s68, s21, 3"); A("s_lshl_b32 s68, s68, 7"); A("s_and_b32 s69, s21, 1"); A("s_lshl_b32 s69, s69, 6"); A("s_add_u32 s68, s68, s69")
        A("s_and_b32 s69, s21, 6"); A("s_add_u32 s68, s68, s69")
    else: A(f"s_lshl_b32 s68, s21, 4")
    A(f"v_add_u32 v{vONE}, s68, v{vONE}")
    A(f"v_lshlrev_b32 v{vTKT}, 2, v{vONE}"); A(f"v_lshlrev_b32 v{vONE}, 1, v{vONE}")
    A(f"ds_read_b32 v{GB}, v{vTKT} offset:{L_MOD+7680}")
    for n in range(7): A(f"s_mov_b32 s{13+n}, {WS_DP + n*8*5120}")
    A("s_waitcnt lgkmcnt(0)")
    A("s_waitcnt vmcnt(0)")
    stamp(8)
    A(f"s_cmp_lg_u32 {sWAVE}, 0"); A(f"s_cbranch_scc1 {'L_gemv0' if wbar else 'L_gemv'}")
    def gather(last):
        A(f"v_and_b32 v{vT}, 31, v{vLANE}"); A(f"v_lshrrev_b32 v{vT+1}, 5, v{vLANE}")
        A(f"v_lshl_add_u32 v{vT+2}, v{vT}, 1, v{vT+1}"); A("s_lshl_b32 s68, s23, 6"); A(f"v_add_u32 v{vT+2}, s68, v{vT+2}")
        A(f"v_lshlrev_b32 v{vT+3}, 3, v{vT+2}")
        A(f"ds_read_b64 {v2(GA)}, v{vT+3} offset:{L_MOD}"); A(f"ds_read_b64 {v2(X0)}, v{vT+3} offset:{L_X2}")
        A(f"v_mul_u32_u24 v{vT+4}, 2560, v{vT+1}"); A(f"v_lshl_add_u32 v{vT+4}, v{vT}, 4, v{vT+4}"); A("s_lshl_b32 s68, s23, 9"); A(f"v_add_u32 v{vT+4}, s68, v{vT+4}")
        A(f"s_mul_i32 s68, {sG}, 20480")
        for n in range(4): A(f"s_add_u32 s{4+n}, s68, {WS_YP + n*5120}")
        A("s_lshl_b32 s68, s23, 3"); A(f"v_mov_b32 v{vADDR}, s68")
        A(f"v_mov_b32 v{SEL0}, 0x3f80"); A(f"v_mov_b32 v{SEL1}, 0x3f800000")
        A("s_waitcnt lgkmcnt(0)")
        if last:
            dn_prep()
            A(f"v_lshrrev_b32 v{vT+6}, 4, v{vLANE}"); A(f"v_lshlrev_b32 v{vT+6}, 3, v{vT+6}")
            A(f"v_and_b32 v{vT+7}, 7, v{vLANE}"); A(f"v_add_u32 v{vT+6}, v{vT+6}, v{vT+7}")
            A(f"v_bfe_u32 v{vT+7}, v{vLANE}, 3, 1"); A(f"v_lshl_add_u32 v{vT+6}, v{vT+7}, 5, v{vT+6}"); A(f"v_lshlrev_b32 v{vT+6}, 2, v{vT+6}")
            A(f"v_add_u32 v{vT+6}, {L_ACC}, v{vT+6}")
            A(f"s_mul_i32 s12, {sF}, 5120"); A("s_lshl_b32 s69, s23, 10"); A("s_add_u32 s12, s12, s69"); A(f"s_add_u32 s12, s12, {WS_DP}")
        if wbar: A("s_barrier")
        poll([(vT+4, f"s{4+n}", 0, None) for n in range(4)], RING, tags=(1, 3))
        for n in range(4):
            for r in range(4):
                src, sel = RING + 4*n + 2*(r // 2), (SEL0, SEL1)[r % 2]
                if n == 0: A(f"v_dot2_f32_bf16 v{TMP+r}, v{src}, v{sel}, 0")
                else: A(f"v_dot2c_f32_bf16 v{TMP+r}, v{src}, v{sel}")
        if last: stamp(9)
        A(f"v_permlane32_swap_b32 v{TMP}, v{TMP+2}"); A(f"v_permlane32_swap_b32 v{TMP+1}, v{TMP+3}")
        A(f"v_pk_add_f32 {v2(TMP)}, {v2(TMP)}, {v2(TMP+2)}")
        A(f"v_pk_fma_f32 {v2(X0)}, {v2(TMP)}, {v2(GA)}, {v2(X0)}")
        A(f"v_add_f32 v{TMP}, v{X0}, v{X0+1}"); A(f"v_mul_f32 v{TMP+1}, v{X0}, v{X0}"); A(f"v_fmac_f32 v{TMP+1}, v{X0+1}, v{X0+1}")
        A(f"ds_write_b64 v{vT+3}, {v2(X0)} offset:{L_X2}")
        dpp_red("v_add_f32", [TMP, TMP+1], QUAD + BANK + BCAST)
        A("s_mov_b32 exec_lo, 0"); A("s_brev_b32 exec_hi, 1")
        A(f"ds_write_b64 v{vADDR}, {v2(TMP)} offset:{L_ST}")
        A("s_mov_b64 exec, -1")
        A("s_waitcnt lgkmcnt(0)")
    A("s_mov_b32 s23, 4")
    gather(False)
    if wbar:
        A("s_branch L_gemv")
        A.label("L_gemv0")
        A("s_barrier")
    A.label("L_gemv")
    A("s_barrier")
    ST = vAOP; XX = RING + 40
    A(f"ds_read_b128 {v4(ST)}, v{vZERO} offset:{L_ST}"); A(f"ds_read_b128 {v4(ST+4)}, v{vZERO} offset:{L_ST+16}"); A(f"ds_read_b64 {v2(ST+8)}, v{vZERO} offset:{L_ST+32}")
    A(f"ds_read_b128 {v4(XX)}, v{vT+8} offset:{L_X2}"); A(f"ds_read_b32 v{XX+4}, v{vT+9} offset:{L_X2}")
    A(f"v_mov_b32 v{TMP+2}, {fh(1e-5)}")
    A("s_waitcnt lgkmcnt(2)" if not stamps else "s_waitcnt lgkmcnt(0)")
    sum2([ST+2*n for n in range(5)], TMP)
    A(f"v_mul_f32 v{TMP}, {fh(1.0/640)}, v{TMP}")
    A(f"v_fmac_f32 v{TMP+2}, {fh(1.0/640)}, v{TMP+1}")
    A(f"v_fma_f32 v{TMP+2}, -v{TMP}, v{TMP}, v{TMP+2}")
    A(f"v_max_f32 v{TMP+2}, {fh(1e-5)}, v{TMP+2}")
    A(f"v_rsq_f32 v{TMP+2}, v{TMP+2}")
    A("s_waitcnt lgkmcnt(0)")
    for y in range(5): A(f"v_sub_f32 v{XX+y}, v{XX+y}, v{TMP}")
    for y in range(5): A(f"v_mul_f32 v{XX+y}, v{XX+y}, v{CC[y]}")
    for y in range(5): A(f"v_fmac_f32 v{SS[y]}, v{XX+y}, v{TMP+2}")
    for y in range(5): A(f"v_cvt_pk_bf16_f32 v{SS[y]}, v{SS[y]}, v{SS[y]}")
    gemv(vACC, vM1, [(SS[y], qp(k), WT+4*(y*4+k), None) for y in range(5) for k in range(4)])
    acc_write(vT+5)
    A("s_waitcnt lgkmcnt(0)")
    A("s_barrier")
    if stamps:
        A(f"s_cmp_lg_u32 {sWAVE}, 1"); A("s_cbranch_scc1 L_ns8")
        stamp_dump([8]); A("s_endpgm")
        A.label("L_ns8")
    A(f"s_cmp_lg_u32 {sWAVE}, 3"); A("s_cbranch_scc1 L_exit")
    A(f"s_cmp_ge_u32 {sF}, 40"); A("s_cbranch_scc1 L_end")
    A(f"ds_read_b32 v{X0}, v{vTKT} offset:{L_X2}")
    FB = RING
    A(f"v_mov_b32 v{FB+24}, 0"); A(f"v_mov_b32 v{FB+25}, 0"); A(f"v_mov_b32 v{FB+27}, {sTAG}")
    A("s_mov_b32 s68, -1"); A("s_mov_b32 s69, 0xffff")
    srd(SB, "s26", "s27", 1280)
    A("s_waitcnt lgkmcnt(0)")
    A("s_barrier")
    poll([(vL, f"s{13+n}", 0, None if n < 6 else "s[68:69]") for n in range(7)], FB)
    sum2([FB+4*n for n in range(7)], GA)
    stamp(11)
    A(f"v_permlane32_swap_b32 v{GA}, v{GA+1}"); A(f"v_add_f32 v{GA}, v{GA}, v{GA+1}")
    xrow("v_add_f32", GA, GA+1, 16)
    A(f"v_add_f32_dpp v{GA}, v{GA}, v{GA} row_ror:8 {DPPF}")
    A(f"v_fma_f32 v{GA}, v{GA}, v{GB}, v{X0}"); A(f"v_cvt_pk_bf16_f32 v{GA}, v{GA}, v{GA}")
    A("s_mov_b32 exec_lo, 0xff"); A("s_mov_b32 exec_hi, 0xff")
    A(f"buffer_store_short v{GA}, v{vONE}, {SB}, 0 offen sc1")
    A(f"s_cmp_lg_u32 {sF}, 0"); A("s_cbranch_scc1 L_fin_dump")
    A("s_mov_b64 exec, 1"); A(f"v_mov_b32 v{GA+1}, {sTAG}")
    A(f"buffer_store_dword v{GA+1}, v{vZERO}, {SWS}, 0 offen sc1")
    A.label("L_fin_dump")
    if dbg: A("s_memrealtime s[80:81]"); dbg_rec(10, "s96", "s80")
    if stamps:
        A("s_waitcnt vmcnt(0)"); stamp(12)
        stamp_dump([11, 12])
    A("s_endpgm")
    A.label("L_gprep")
    A(f"s_and_b32 s23, {sWAVE}, 3")
    gather(True)
    if DNP == 0 and not (now & 1): dn_issue("L_dnd0"); A.label("L_dnd0")
    A("s_barrier")
    if DNP == 1 and not (now & 1): dn_issue("L_dnd1"); A.label("L_dnd1")
    A("s_barrier")
    RD = WT
    for k in range(4): A(f"ds_read2st64_b32 {v2(RD+2*k)}, v{vT+6} offset0:{2*k} offset1:{2*k+1}")
    A("s_waitcnt lgkmcnt(0)")
    sum2([RD+2*k for k in range(4)])
    A(f"v_add_f32 v{RD}, v{RD}, v{RD+1}")
    A(f"v_mul_f32 v{RD+2}, {fh(-LOG2E)}, v{RD}"); A(f"v_exp_f32 v{RD+2}, v{RD+2}")
    A(f"v_mul_f32_dpp v{RD+1}, v{RD}, v{RD} row_ror:8 {DPPF}")
    A(f"v_add_f32 v{RD+2}, 1.0, v{RD+2}"); A(f"v_rcp_f32 v{RD+2}, v{RD+2}")
    A(f"v_mul_f32 v{RD}, v{RD+1}, v{RD+2}")
    A(f"v_cvt_pk_bf16_f32 v{RD}, v{RD}, v{RD}")
    A("s_waitcnt vmcnt(0)")
    A(f"s_cmp_eq_u32 {sWAVE}, 5"); A("s_cbranch_scc1 L_down2")
    gemv(vACC, vM2, [(RD, f"row_newbcast:{t}", WD+4*t, None) for t in range(8)])
    publish(vACC, vLANE16 if linD else vNAT, "s12")
    A("s_endpgm")
    A.label("L_down2")
    gemv(vACC, vM2, [(RD, f"row_newbcast:{t}", WD+4*t, None) for t in range(8)], ACC2, WD2)
    A(f"v_mov_b32 v{vACC+3}, {sTAG}"); A(f"v_mov_b32 v{ACC2+3}, {sTAG}")
    A(f"buffer_store_dwordx4 {v4(vACC)}, v{vLANE16 if linD else vNAT}, {SWS}, s12 offen sc1")
    A(f"buffer_store_dwordx4 {v4(ACC2)}, v{vLANE16 if linD else vNAT}, {SWS}, s12 offen offset:3072 sc1")
    stamp(10)
    A("s_waitcnt vmcnt(0)")
    A("s_barrier")
    stamp_dump([9, 10])
    A("s_endpgm")
    A.label("L_wo")
    A(f"v_lshrrev_b32 v{vT+4}, 5, v{vLANE}"); A(f"v_lshlrev_b32 v{vT+4}, 10, v{vT+4}")
    A(f"v_and_b32 v{vT+6}, 31, v{vLANE}"); A(f"v_lshl_add_u32 v{vT+4}, v{vT+6}, 4, v{vT+4}")
    A(f"s_lshr_b32 s4, {sWAVE}, 1"); A("s_lshl_b32 s4, s4, 3"); A(f"s_add_u32 s4, s4, {sG}"); A("s_lshl_b32 s4, s4, 13")
    A(f"s_and_b32 s5, {sWAVE}, 1"); A("s_lshl_b32 s5, s5, 9"); A("s_add_u32 s4, s4, s5"); A(f"s_add_u32 s4, s4, {WS_OP}"); A("s_add_u32 s5, s4, 4096")
    acc_addr(vT+5)
    A(f"v_lshrrev_b32 v{vT+8}, 5, v{vLANE}"); A(f"v_lshlrev_b32 v{vT+7}, 11, v{vT+8}"); A(f"v_lshl_add_u32 v{vT+7}, v{vT+6}, 3, v{vT+7}")
    A(f"v_mul_u32_u24 v{vT+8}, 20480, v{vT+8}"); A(f"v_lshl_add_u32 v{vT+8}, v{vT+6}, 3, v{vT+8}")
    A(f"s_mul_i32 s6, {sG}, 2560"); A(f"s_lshl_b32 s7, {sK}, 8"); A("s_add_u32 s6, s6, s7"); A(f"s_add_u32 s6, s6, {WS_YP}")
    for c in range(1, 4): A(f"s_add_u32 s{12+c}, s6, {c*40960}")
    poll([(vT+4, "s4" if n < 2 else "s5", (n % 2)*2048, None) for n in range(4)], RING)
    stamp(7)
    sum2([RING+4*n for n in range(4)], TMP)
    A(f"v_permlane32_swap_b32 v{TMP}, v{TMP+1}")
    A(f"v_add_f32 v{TMP}, v{TMP}, v{TMP+1}")
    A(f"v_cvt_pk_bf16_f32 v{TMP}, v{TMP}, v{TMP}")
    ysplit([TMP], TMP+2)
    gemv(vACC, vM1, [(TMP + 2 + n // 4, qp(n % 4), WT+4*n, None) for n in range(8)])
    acc_write(vT+5)
    A("s_waitcnt lgkmcnt(0)")
    A("s_barrier")
    A(f"s_cmp_lg_u32 {sWAVE}, 0"); A("s_cbranch_scc1 L_end")
    for n in range(8): A(f"ds_read_b64 {v2(WT+2*n)}, v{vT+7} offset:{L_ACC+256*n}")
    A("s_waitcnt lgkmcnt(0)")
    sum2([WT+2*n for n in range(8)])
    A(f"v_mov_b32 v{WT+2}, v{WT}"); A(f"v_mov_b32 v{WT+3}, v{WT+1}")
    A(f"v_permlane32_swap_b32 v{WT}, v{WT+2}"); A(f"v_permlane32_swap_b32 v{WT+1}, v{WT+3}")
    A(f"v_pk_add_f32 {v2(WT)}, {v2(WT)}, {v2(WT+2)}")
    A(f"v_cvt_pk_bf16_f32 v{WT}, v{WT}, v{WT+1}"); A(f"v_mov_b32 v{WT+1}, {sTAG}")
    for so in ("s6", "s13", "s14", "s15"): A(f"buffer_store_dwordx2 {v2(WT)}, v{vT+8}, {SWS}, {so} offen sc1")
    stamp(13)
    A.label("L_exit")
    if stamps:
        A(f"s_cmp_lg_u32 {sWAVE}, 0"); A("s_cbranch_scc1 L_end")
        stamp_dump([0, 13, 6, 7] + ([1, 2, 3, 4, 5] if stamps not in (4, 6, 8) else []), xcc=True)
    A("s_endpgm")

    A.label("L_help")
    A("s_waitcnt lgkmcnt(0)")
    A("s_barrier")
    A(f"s_cmp_lt_u32 {sK}, 24"); A("s_cbranch_scc1 L_hnoq")
    A(f"s_sub_u32 s39, {sWAVE}, 5")
    A(f"s_bfe_u32 s68, {sK}, 0x10002"); A("s_add_u32 s68, s68, s39"); A("s_cmp_lt_u32 s68, 3"); A("s_cbranch_scc1 L_ctrl_q")
    common_setup()
    A(f"v_lshlrev_b32 v{vT}, 3, v{vLANE}"); A(f"v_mov_b32 v{vACC}, 0"); A(f"v_mov_b32 v{vACC+1}, 0")
    A(f"ds_write_b64 v{vT}, {v2(vACC)} offset:{L_ACC + 512}")
    A("s_waitcnt lgkmcnt(0)")
    A("s_mov_b64 exec, 1"); A(f"ds_add_u32 v{vZERO}, v{vONE} offset:{L_MF}"); A("s_mov_b64 exec, -1")
    A("s_branch L_soft")
    A.label("L_hnoq")
    A(f"s_sub_u32 s37, {sK}, 5"); A("s_cmp_ge_u32 s37, 5"); A("s_cbranch_scc1 L_hnomod")
    A("s_lshl_b32 s37, s37, 3"); A(f"s_add_u32 s37, s37, {sG}")
    A("s_lshr_b32 s38, s37, 1"); A("s_and_b32 s39, s37, 1")
    A("s_mul_i32 s6, s39, 20480"); A("s_lshl_b32 s7, s38, 10"); A("s_add_u32 s6, s6, s7"); A(f"s_add_u32 s6, s6, {WS_MR}")
    A("s_add_u32 s38, s38, 10"); A("s_lshl_b32 s39, s39, 1"); A(f"s_add_u32 s39, s39, {sWAVE}"); A("s_sub_u32 s39, s39, 6")
    mod_loads("s38", "s39")
    common_setup()
    mod_compute()
    A(f"v_lshlrev_b32 v{vT}, 3, v{vLANE}")
    A(f"s_cmp_eq_u32 {sWAVE}, 6"); A("s_cbranch_scc1 L_hsum")
    A(f"ds_write_b64 v{vT}, {v2(vACC)} offset:{L_ACC}")
    A("s_waitcnt lgkmcnt(0)")
    A(f"ds_write_b32 v{vZERO}, v{vONE} offset:{L_MF}")
    A("s_branch L_soft")
    A.label("L_hsum")
    lds_wait(L_MF, 1)
    A(f"ds_read_b64 {v2(vR)}, v{vT} offset:{L_ACC}")
    A("s_waitcnt lgkmcnt(0)")
    A(f"v_pk_add_f32 {v2(vACC)}, {v2(vACC)}, {v2(vR)}")
    publish(vACC, vLANE16 if linP else vNAT, "s6")
    A("s_branch L_help7")
    A.label("L_hnomod")
    if EW and not abl and not (now & 1):
        if len(EW) == 1: A(f"s_cmp_lg_u32 {sWAVE}, {EW[0]}"); A("s_cbranch_scc1 L_hne")
        A(f"s_sub_u32 s37, {sWAVE}, 4")
        gu_loads("L_hne", CTH, "s37")
        A.label("L_hne")
    common_setup()
    A(f"s_cmp_lg_u32 {sWAVE}, 7"); A("s_cbranch_scc1 L_help7")
    A.label("L_soft")
    A(f"s_lshl_b32 s6, {sHD}, 13"); A(f"s_add_u32 s6, s6, {WS_SP}")
    A(f"s_lshl_b32 s8, {sS}, 10"); A("s_add_u32 s8, s8, s6")
    A("s_add_u32 s6, s6, s30"); A("s_addc_u32 s7, s31, 0")
    A(f"v_lshlrev_b32 v{vT}, 3, v{vLANE}")
    if abl & 4:
        A(f"ds_write_b32 v{vZERO}, v{vONE} offset:{L_PF}"); A("s_waitcnt lgkmcnt(0)"); A("s_branch L_join"); A.label("L_abl4")
    lds_wait(L_KT, 120, slow=True)
    lds_wait(L_KD, NL + (1 if any(QK) else 0), slow=True, slp=SLK)
    if KAP: A("s_memrealtime s[10:11]")
    E = RING
    for n in range(8): A(f"ds_read_b128 {v4(E+4*n)}, v{vLANE16} offset:{L_P + 1024*n}")
    A("s_waitcnt lgkmcnt(0)")
    A(f"v_cvt_pk_bf16_f32 v{vACC}, v{E+28}, v{E+29}"); A(f"v_cvt_pk_bf16_f32 v{vACC+1}, v{E+30}, v{E+31}")
    lanes0 = (NS - 112) * 4
    if lanes0: A(f"s_lshl_b64 exec, -1, {lanes0}")
    A(f"buffer_store_dwordx2 {v2(vACC)}, v{vT}, {SWS}, s8 offen sc1")
    if lanes0: A("s_mov_b64 exec, -1")
    m = vR
    A(f"v_max3_f32 v{m}, v{E}, v{E+1}, v{E+2}"); A(f"v_max3_f32 v{m+1}, v{E+3}, v{E+4}, v{E+5}")
    for i in range(6, 32, 4):
        A(f"v_max3_f32 v{m}, v{m}, v{E+i}, v{E+i+1}")
        if i + 3 < 32: A(f"v_max3_f32 v{m+1}, v{m+1}, v{E+i+2}, v{E+i+3}")
    A(f"v_max_f32 v{m}, v{m}, v{m+1}")
    wave_red("v_max_f32", m, m+1)
    A(f"v_mul_f32 v{m}, {sL2E}, v{m}")
    for i in range(32): A(f"v_fma_f32 v{E+i}, v{E+i}, {sL2E}, -v{m}")
    for i in range(32): A(f"v_exp_f32 v{E+i}, v{E+i}")
    A(f"v_pk_add_f32 {v2(m+2)}, {v2(E)}, {v2(E+2)}")
    for i in range(4, 32, 2): A(f"v_pk_add_f32 {v2(m+2)}, {v2(m+2)}, {v2(E+i)}")
    A(f"v_add_f32 v{m+2}, v{m+2}, v{m+3}")
    wave_red("v_add_f32", m+2, m+1)
    A(f"v_log_f32 v{vACC+2}, v{m+2}")
    A(f"v_add_f32 v{vQ}, v{vACC+2}, v{m}"); A(f"v_mov_b32 v{vQ+1}, {sTAG}"); A(f"v_mov_b32 v{vQ+2}, s10")
    A("s_waitcnt vmcnt(0)")
    A("s_mov_b64 exec, 1")
    A(f"buffer_store_dwordx4 {v4(vQ)}, v{vZERO}, {SWS}, s8 offen offset:512 sc1")
    A("s_mov_b64 exec, -1")
    R = [40, 42, 44, 46, 52, 54, 56, 58]
    A(f"s_mov_b32 {sTO}, 0x40000")
    A.label("L_lam")
    if lsl: A(f"s_sleep {lsl}")
    for n in range(8): A(f"s_load_dwordx2 s[{R[n]}:{R[n]+1}], s[6:7], {n*1024 + 512} glc")
    A(f"s_sub_u32 {sTO}, {sTO}, 1"); A(f"s_cmp_eq_u32 {sTO}, 0"); A("s_cbranch_scc1 L_lamd")
    A("s_waitcnt lgkmcnt(0)")
    for n in range(8):
        A(f"s_cmp_lg_u32 s{R[n]+1}, {sTAG}"); A("s_cbranch_scc1 L_lam")
    A.label("L_lamd")
    A("s_waitcnt lgkmcnt(0)")
    lam = [RING + 32 + n for n in range(8)]
    for n in range(8): A(f"v_mov_b32 v{lam[n]}, s{R[n]}")
    if KAP:
        for n in range(8): A(f"s_load_dword s{R[n]+1}, s[6:7], {n*1024 + 520} glc")
    t = vA_
    A(f"v_max3_f32 v{t}, v{lam[0]}, v{lam[1]}, v{lam[2]}"); A(f"v_max3_f32 v{t}, v{t}, v{lam[3]}, v{lam[4]}")
    A(f"v_max3_f32 v{t}, v{t}, v{lam[5]}, v{lam[6]}"); A(f"v_max_f32 v{t}, v{t}, v{lam[7]}")
    for n in range(8): A(f"v_sub_f32 v{lam[n]}, v{lam[n]}, v{t}")
    for n in range(8): A(f"v_exp_f32 v{lam[n]}, v{lam[n]}")
    for n in range(1, 8): A(f"v_add_f32 v{lam[0]}, v{lam[0]}, v{lam[n]}")
    A(f"v_log_f32 v{lam[0]}, v{lam[0]}")
    A(f"v_add_f32 v{t}, v{t}, v{lam[0]}")
    A(f"v_sub_f32 v{m}, v{m}, v{t}"); A(f"v_exp_f32 v{m}, v{m}")
    A(f"ds_write_b32 v{vZERO}, v{t} offset:{L_LAM}")
    for i in range(32): A(f"v_mul_f32 v{E+i}, v{E+i}, v{m}")
    for i in range(32): A(f"v_cvt_pk_bf16_f32 v{E+i}, v{E+i}, v{E+i}")
    for n in range(8): A(f"ds_write_b128 v{vLANE16}, {v4(E+4*n)} offset:{L_P + 1024*n}")
    A("s_waitcnt lgkmcnt(0)")
    A(f"ds_write_b32 v{vZERO}, v{vONE} offset:{L_PF}")
    if KAP:
        A("s_mov_b32 s9, 0")
        for n in range(8):
            A(f"s_sub_u32 s68, s10, s{R[n]+1}"); A("s_add_u32 s9, s9, s68")
        A("s_ashr_i32 s9, s9, 3"); A(f"s_sub_i32 s9, s9, {LAG0}"); A("s_max_i32 s9, s9, 0"); A("s_min_i32 s9, s9, 1000")
        A(f"s_mul_i32 s9, s9, {KAP}"); A("s_lshr_b32 s9, s9, 8"); A(f"s_min_u32 s9, s9, {CAP}"); A("s_add_u32 s9, s9, 1")
        A(f"v_mov_b32 v{vT}, s9"); A(f"ds_write_b32 v{vZERO}, v{vT} offset:{L_N6}")
    A("s_setprio 0")
    if stamps == 8:
        lds_wait(L_VT, 92, slow=True, slp=2); stamp(4); lds_wait(L_VT, 112, slow=True, slp=2); stamp(5); stamp_dump([4, 5], final=False)
    if stamps:
        stamp(14); stamp_dump([14], final=False)
    A("s_waitcnt lgkmcnt(0)")
    A("s_branch L_join")
    A.label("L_help7")
    if any(QK):
        A(f"s_bitcmp1_b32 {sK}, 2"); A(f"s_cselect_b32 s37, {QK[6]}, {QK[5]}")
        for lim, q_ in ((24, QK[4]), (22, QK[3]), (17, QK[2]), (10, QK[1]), (5, QK[0])):
            A(f"s_cmp_lt_u32 {sK}, {lim}"); A(f"s_cselect_b32 s37, {q_}, s37")
        A("s_cmp_eq_u32 s37, 0"); A("s_cbranch_scc1 L_xkd")
        A("s_load_dwordx2 s[6:7], s[0:1], 8")
        A(f"s_mul_i32 {sST}, {sHD}, {ROT}"); A(f"s_lshl_b32 s68, {sS}, 7"); A(f"s_add_u32 {sST}, {sST}, s68")
        A(f"s_lshl_b32 s68, {sHD}, 22")
        A(f"v_and_b32 v{vPB}, 60, v{vLANE}")
        A(f"v_and_b32 v{vT}, 15, v{vLANE}"); A(f"v_lshlrev_b32 v{vT}, 4, v{vT}")
        A("s_waitcnt lgkmcnt(0)")
        A("s_add_u32 s40, s6, s68"); A("s_addc_u32 s41, s7, 0"); A("s_mov_b32 s42, 0x400000"); A("s_mov_b32 s43, 0x20000")
        lds_wait(L_QF, 1, slow=True)
        A(f"ds_read_b128 {v4(vQ)}, v{vT} offset:{L_Q}")
        A.label("L_xk")
        req(L_KT)
        A("s_waitcnt lgkmcnt(0)")
        A(f"v_readfirstlane_b32 {sTK}, v{vTKT}")
        A(f"s_cmp_ge_u32 {sTK}, 128"); A("s_cbranch_scc1 L_xkd")
        tile_addr(sTK, sST)
        load(SK, 0)
        A(f"s_lshl_b32 s68, {sTK}, 6"); A(f"v_add_u32 v{vE_}, s68, v{vPB}")
        A("s_waitcnt vmcnt(0)")
        qk(0, vE_, L_P)
        A("s_sub_u32 s37, s37, 1"); A("s_cmp_lg_u32 s37, 0"); A("s_cbranch_scc1 L_xk")
        A.label("L_xkd")
        A("s_waitcnt lgkmcnt(0)")
        A("s_mov_b64 exec, 1"); A(f"ds_add_u32 v{vZERO}, v{vONE} offset:{L_KD}"); A("s_mov_b64 exec, -1")
        A("s_waitcnt lgkmcnt(0)")
    if KAP:
        A("s_load_dwordx2 s[6:7], s[0:1], 16")
        A(f"s_mul_i32 {sST}, {sHD}, {ROT}"); A(f"s_lshl_b32 s68, {sS}, 7"); A(f"s_add_u32 {sST}, {sST}, s68")
        A(f"s_lshl_b32 s68, {sHD}, 22")
        A(f"v_and_b32 v{vPB}, 60, v{vLANE}")
        for r in range(4): A(f"v_mov_b32 v{vACC+r}, 0")
        A("s_waitcnt lgkmcnt(0)")
        A("s_add_u32 s44, s6, s68"); A("s_addc_u32 s45, s7, 0"); A("s_mov_b32 s46, 0x400000"); A("s_mov_b32 s47, 0x20000")
        lds_wait(L_N6, 1, slow=True)
        A("s_waitcnt lgkmcnt(0)")
        A(f"v_readfirstlane_b32 s37, v{vBAD}")
        A.label("L_xv")
        A("s_cmp_le_u32 s37, 1"); A("s_cbranch_scc1 L_xvd")
        req(L_VT)
        A("s_waitcnt lgkmcnt(0)")
        A(f"v_readfirstlane_b32 {sTK}, v{vTKT}")
        A(f"s_cmp_ge_u32 {sTK}, {NS}"); A("s_cbranch_scc1 L_xvd")
        tile_addr(sTK, sST)
        load(SV, 0)
        A(f"s_lshl_b32 s68, {sTK}, 6"); A(f"v_add_u32 v{vE_}, s68, v{vPB}")
        A(f"ds_read_b32 v{vE_}, v{vE_} offset:{L_P}")
        A("s_waitcnt lgkmcnt(0)")
        build(vE_)
        A("s_waitcnt vmcnt(0)")
        mm(0)
        A("s_sub_u32 s37, s37, 1"); A("s_branch L_xv")
        A.label("L_xvd")
        A(f"v_lshrrev_b32 v{vT}, 1, v{vNAT}")
        A(f"ds_write_b64 v{vT}, {v2(vACC)} offset:{L_PART + 512*NL}")
        A("s_waitcnt lgkmcnt(0)")
    A("s_branch L_join")

    A.label("L_ctrl0")
    A("s_setprio 3")
    A(f"v_mov_b32 v{vT+4}, {KT0}"); A(f"v_mov_b32 v{vT+5}, {VT0}"); A(f"v_mov_b32 v{vT+6}, 0"); A(f"v_mov_b32 v{vT+7}, 0")
    A(f"ds_write_b128 v{vZERO}, {v4(vT+4)} offset:{L_KT}")
    A(f"ds_write_b64 v{vZERO}, {v2(vT+6)} offset:{L_KD}"); A(f"ds_write_b64 v{vZERO}, {v2(vT+6)} offset:{L_MF}")
    A("s_waitcnt lgkmcnt(0)")
    A("s_barrier")
    if abl & 2:
        common_setup()
        A(f"s_lshl_b32 s68, {sHD}, 8"); A(f"s_add_u32 s68, s68, {WS_CNT}")
        A("s_mov_b64 exec, 1"); A(f"buffer_store_dword v{vZERO}, v{vZERO}, {SWS}, s68 offen sc1"); A("s_mov_b64 exec, -1")
        A(f"v_lshlrev_b32 v{vT}, 2, v{vLANE}"); A(f"v_mov_b32 v{vT+1}, 0x3f803f80"); A(f"ds_write_b32 v{vT}, v{vT+1} offset:{L_Q}"); A("s_waitcnt lgkmcnt(0)")
        A(f"ds_write_b32 v{vZERO}, v{vONE} offset:{L_QF}")
        A("s_branch L_ctrl_w"); A.label("L_abl2")
    A("s_mov_b32 s39, 0")
    A(f"s_cmp_ge_u32 {sK}, 24"); A("s_cbranch_scc1 L_ctrl_q")
    A(f"s_sub_u32 s38, {sK}, 17"); A("s_cmp_ge_u32 s38, 5"); A("s_cbranch_scc1 L_ctrl_none")
    A("s_lshl_b32 s38, s38, 3"); A(f"s_add_u32 s38, s38, {sG}")
    A("s_lshl_b32 s6, s38, 10"); A(f"s_add_u32 s6, s6, {WS_MODP}")
    A("s_and_b32 s39, s38, 3"); A("s_lshr_b32 s38, s38, 2")
    mod_loads("s38", "s39")
    common_setup()
    mod_compute()
    publish(vACC, vLANE16 if linP else vNAT, "s6")
    stamp(1)
    A("s_branch L_hop2")
    A.label("L_ctrl_none")
    if cearly and cstart and not abl: tail_loads(True)
    common_setup()
    A("s_branch L_hop2")
    A.label("L_ctrl_q")
    WQ = RING + 64
    XA = RING
    X0, X1 = 24, 25
    A(f"s_and_b32 s38, {sK}, 3"); A("s_lshl_b32 s38, s38, 3"); A(f"s_add_u32 s38, s38, {sG}")
    A(f"s_bfe_u32 s37, {sK}, 0x10002"); A("s_mul_i32 s68, s37, 3"); A("s_add_u32 s39, s39, s68")
    srd(SB, "s4", "s5", 1280); srd(SA, "s10", "s11", 640*8192)
    A(f"v_lshlrev_b32 v{vT+2}, 2, v{vLANE}")
    for k in range(5): A(f"buffer_load_dword v{XA+2*k+1}, v{vT+2}, {SB}, 0 offen offset:{k*256}")
    A("s_lshl_b32 s68, s39, 8")
    A(f"v_lshrrev_b32 v{vT}, 4, v{vLANE}"); A(f"v_and_b32 v{vT+1}, 15, v{vLANE}")
    if linP: A(f"v_lshlrev_b32 v{vT+2}, 2, v{vT}"); A(f"v_lshl_add_u32 v{vT+2}, v{vT+1}, 4, v{vT+2}")
    A(f"buffer_load_dword v{X1}, v{vT+2}, {SB}, s68 offen")
    A(f"v_lshlrev_b32 v{vT}, {14 if linP else 18}, v{vT}")
    A(f"v_lshl_add_u32 v{vT+3}, v{vT+1}, 4, v{vT}")
    A("s_lshl_b32 s69, s39, 20"); A("s_lshl_b32 s68, s38, 8"); A("s_add_u32 s69, s69, s68")
    for n in range(32):
        u, j = n // 16, n % 16
        A(f"s_add_u32 s68, s69, {((8 if linP else 2)*j+u)*8192}")
        A(f"buffer_load_dwordx4 {v4(WQ+4*n)}, v{vT+3}, {SA}, s68 offen {pol}")
    common_setup()
    A("s_lshl_b32 s68, s38, 8"); A(f"s_add_u32 s68, s68, {WS_CNT}")
    A("s_cmp_lg_u32 s39, 0"); A("s_cbranch_scc1 L_nocnt")
    A("s_mov_b64 exec, 1")
    A(f"buffer_store_dword v{vZERO}, v{vZERO}, {SWS}, s68 offen sc1")
    A("s_mov_b64 exec, -1")
    A("s_waitcnt vmcnt(33)")
    A("s_branch L_cntj")
    A.label("L_nocnt")
    A("s_waitcnt vmcnt(32)")
    A.label("L_cntj")
    for k in range(5):
        A(f"v_lshlrev_b32 v{XA+2*k}, 16, v{XA+2*k+1}"); A(f"v_and_b32 v{XA+2*k+1}, 0xffff0000, v{XA+2*k+1}")
    A(f"v_lshlrev_b32 v{X0}, 16, v{X1}"); A(f"v_and_b32 v{X1}, 0xffff0000, v{X1}")
    t = vT + 8; a = XA
    A(f"v_add_f32 v{t}, v{a}, v{a+1}")
    for i in range(2, 10): A(f"v_add_f32 v{t}, v{t}, v{a+i}")
    wave_red("v_add_f32", t, t+1)
    A(f"v_mul_f32 v{t}, {fh(1.0/640)}, v{t}")
    for i in range(10): A(f"v_sub_f32 v{a+i}, v{a+i}, v{t}")
    A(f"v_mul_f32 v{t+2}, v{a}, v{a}")
    for i in range(1, 10): A(f"v_fmac_f32 v{t+2}, v{a+i}, v{a+i}")
    wave_red("v_add_f32", t+2, t+1)
    A(f"v_mul_f32 v{t+2}, {fh(1.0/640)}, v{t+2}")
    rbf2(t, t+2)
    A(f"v_add_f32 v{t+2}, {fh(1e-5)}, v{t+2}"); rbf(t+2, t+2)
    A(f"v_sqrt_f32 v{t+2}, v{t+2}"); rbf(t+2, t+2)
    A(f"v_rcp_f32 v{t+2}, v{t+2}")
    A(f"v_sub_f32 v{X0}, v{X0}, v{t}"); A(f"v_sub_f32 v{X1}, v{X1}, v{t}"); rbf2(X0, X1)
    A(f"v_mul_f32 v{X0}, v{X0}, v{t+2}"); A(f"v_mul_f32 v{X1}, v{X1}, v{t+2}"); rbf2(X0, X1)
    A("s_lshl_b32 s6, s39, 12"); A(f"s_add_u32 s6, s6, {WS_MODP}"); A(f"s_add_u32 s7, s6, {5*4096}")
    stamp(1)
    spre("s6", [(n // 4)*5*4096 + (n % 4)*1024 for n in range(8)])
    poll([(vLANE16, f"s{6+n//4}", (n % 4)*1024, None) for n in range(8)], RING)
    stamp(2)
    sum2([RING+4*n for n in range(4)]); sum2([RING+16+4*n for n in range(4)])
    rbf2(RING, RING+1); rbf2(RING+16, RING+17)
    c0, c1, s0, s1 = RING+16, RING+17, RING, RING+1
    A(f"v_add_f32 v{c0}, 1.0, v{c0}"); A(f"v_add_f32 v{c1}, 1.0, v{c1}"); rbf2(c0, c1)
    A(f"v_mul_f32 v{X0}, v{X0}, v{c0}"); A(f"v_mul_f32 v{X1}, v{X1}, v{c1}"); rbf2(X0, X1)
    A(f"v_add_f32 v{X0}, v{X0}, v{s0}"); A(f"v_add_f32 v{X1}, v{X1}, v{s1}")
    A(f"v_cvt_pk_bf16_f32 v{X0}, v{X0}, v{X0}"); A(f"v_cvt_pk_bf16_f32 v{X1}, v{X1}, v{X1}")
    gemv(vACC, vM2, [((X0, X1)[n // 16], f"row_newbcast:{n % 16}", WQ + 4*n, None) for n in range(32)])
    A(f"v_lshlrev_b32 v{vT}, 3, v{vLANE}")
    A(f"s_cmp_eq_u32 {sWAVE}, 0"); A("s_cbranch_scc1 L_qsum")
    A(f"s_lshl_b32 s68, {sWAVE}, 9"); A(f"v_add_u32 v{vT}, s68, v{vT}")
    A(f"ds_write_b64 v{vT}, {v2(vACC)} offset:{L_ACC - 6*512}")
    A("s_waitcnt lgkmcnt(0)")
    A("s_mov_b64 exec, 1"); A(f"ds_add_u32 v{vZERO}, v{vONE} offset:{L_MF}"); A("s_mov_b64 exec, -1")
    A("s_setprio 0")
    A(f"s_cmp_eq_u32 {sWAVE}, 7"); A("s_cbranch_scc1 L_soft")
    A("s_branch L_help7")
    A.label("L_qsum")
    lds_wait(L_MF, 2)
    A(f"ds_read_b64 {v2(RING)}, v{vT} offset:{L_ACC}"); A(f"ds_read_b64 {v2(RING+2)}, v{vT} offset:{L_ACC+512}")
    A("s_lshl_b32 s68, s38, 1"); A("s_add_u32 s68, s68, s37"); A("s_lshl_b32 s68, s68, 10"); A(f"s_add_u32 s68, s68, {WS_QP}")
    A("s_waitcnt lgkmcnt(0)")
    A(f"v_pk_add_f32 {v2(vACC)}, {v2(vACC)}, {v2(RING)}"); A(f"v_pk_add_f32 {v2(vACC)}, {v2(vACC)}, {v2(RING+2)}")
    publish(vACC, vLANE16 if linP else vNAT, "s68")
    A.label("L_hop2")
    stamp(3)
    A(f"s_lshl_b32 s6, {sHD}, 11"); A(f"s_add_u32 s6, s6, {WS_QP}")
    spre("s6", [n*1024 for n in range(2)])
    poll([(vLANE16, "s6", n*1024, None) for n in range(2)], RING)
    sum2([RING+4*n for n in range(2)])
    A(f"v_cvt_pk_bf16_f32 v{RING}, v{RING}, v{RING+1}")
    A(f"v_lshrrev_b32 v{vT}, 2, v{vNAT}" if linP else f"v_lshlrev_b32 v{vT}, 2, v{vLANE}")
    A(f"ds_write_b32 v{vT}, v{RING} offset:{L_Q}")
    A("s_waitcnt lgkmcnt(0)")
    A(f"ds_write_b32 v{vZERO}, v{vONE} offset:{L_QF}")
    stamp(4)
    if dbg: A("s_memrealtime s[80:81]"); dbg_rec(0, "s96", "s80")
    A("s_setprio 0")
    A.label("L_ctrl_w")
    if abl: A("s_barrier"); A("s_endpgm"); A.label("L_abl_dead2")
    if cearly and not cstart: tail_loads(True)
    A(f"s_cmp_ge_u32 {sF}, 54"); A("s_cbranch_scc1 L_cnomr")
    srd(SB, "s4", "s5", 1280)
    A(f"v_lshlrev_b32 v{vT}, 2, v{vLANE}"); A(f"v_lshlrev_b32 v{vT+1}, 3, v{vLANE}")
    for k in range(5): A(f"buffer_load_dword v{vAOP+2*k+1}, v{vT}, {SB}, 0 offen offset:{k*256}")
    A("s_waitcnt vmcnt(0)")
    for k in range(5):
        A(f"v_lshlrev_b32 v{vAOP+2*k}, 16, v{vAOP+2*k+1}"); A(f"v_and_b32 v{vAOP+2*k+1}, 0xffff0000, v{vAOP+2*k+1}")
        A(f"ds_write_b64 v{vT+1}, {v2(vAOP+2*k)} offset:{L_X2 + 512*k}")
    if linP: A(f"v_lshrrev_b32 v{vT+1}, 1, v{vNAT}")
    for arr in range(4):
        for i, o in enumerate((0, 4096, 20480, 24576)): A(f"s_mov_b32 s{40+i}, {WS_MR + arr*5120 + o}")
        poll([(vLANE16, f"s{40 + 2*h + (k // 4)}", (k % 4)*1024, None) for k in range(5) for h in range(2)], RING)
        for k in range(5):
            b = RING + 8*k
            A(f"v_pk_add_f32 {v2(b)}, {v2(b)}, {v2(b+4)}"); rbf2(b, b+1)
            if arr == 2:
                A(f"v_add_f32 v{b}, 1.0, v{b}"); A(f"v_add_f32 v{b+1}, 1.0, v{b+1}"); rbf2(b, b+1)
            A(f"ds_write_b64 v{vT+1}, {v2(b)} offset:{L_MOD + arr*2560 + 512*k}")
    A.label("L_cnomr")
    A(f"s_lshl_b32 s8, {sHD}, 3"); A(f"s_add_u32 s8, s8, {sS}"); A("s_lshl_b32 s8, s8, 10"); A(f"s_add_u32 s8, s8, {WS_OP}")
    A(f"v_lshlrev_b32 v{vT}, 3, v{vLANE}"); A(f"v_mov_b32 v{TMP+3}, {sTAG}")
    A("s_waitcnt vmcnt(0) lgkmcnt(0)")
    stamp(5)
    A("s_barrier")
    stamp(6)
    NPART = NL + (1 if KAP else 0)
    for w in range(NPART): A(f"ds_read_b64 {v2(RING+2*w)}, v{vT} offset:{L_PART+512*w}")
    A("s_waitcnt lgkmcnt(0)")
    sum2([RING+2*w for w in range(NPART)], TMP)
    A(f"buffer_store_dwordx4 {v4(TMP)}, v{vLANE16}, {SWS}, s8 offen sc1")
    stamp(13)
    if cearly and not cwo:
        A(f"s_cmp_lt_u32 {sK}, 10"); A("s_cbranch_scc1 L_tail0")
    A("s_branch L_tail" if cearly else "s_branch L_tail0")
    A.label("L_end")
    A("s_endpgm")
    A('.section .rodata,"a"'); A(".p2align 6"); A(f".amdhsa_kernel {KN}")
    A(".amdhsa_next_free_vgpr 256"); A(".amdhsa_next_free_sgpr 100"); A(".amdhsa_accum_offset 256")
    A(".amdhsa_group_segment_fixed_size 0"); A(".amdhsa_kernarg_size 112"); A(".amdhsa_user_sgpr_count 2")
    A(".amdhsa_user_sgpr_kernarg_segment_ptr 1"); A(".amdhsa_system_sgpr_workgroup_id_x 1")
    A(".amdhsa_float_denorm_mode_32 3")
    A(".end_amdhsa_kernel")
    return A.finalize()

def check_inter(w, inter):
    import numpy as np
    def cmp(name, got, exp):
        err = np.abs(got - exp).max(); rel = np.linalg.norm(got - exp) / np.linalg.norm(exp)
        print("   inter %-5s maxabs %.4e (scale %.3e) relL2 %.3e nan=%d" % (name, err, np.abs(exp).max(), rel, int(np.isnan(got).sum())), got[:4], exp[:4])
    def bf(x):
        u = x.astype(np.float32).view(np.uint32); u = (u + 0x7fff + ((u >> 16) & 1)) & 0xffff0000
        return u.view(np.float32)
    gr = lambda off, n: w[off // 4: off // 4 + n*4].reshape(n, 4)
    md = np.concatenate([gr(WS_MODP, 10*4*64)[:, :2].reshape(10, 4, 128).sum(1).reshape(-1), gr(WS_MR, 2*1280)[:, :2].reshape(2, 2560).sum(0)])
    cmp("mod", md, inter["mod"]); print("      mod bf16 mismatches", int((bf(md) != inter["mod"]).sum()))
    q = gr(WS_QP, 32*2*64)[:, :2].reshape(32, 2, 128).sum(1).reshape(-1)
    cmp("q", q, inter["q"]); print("      q bf16 mismatches", int((bf(q) != inter["q"]).sum()))
    o = gr(WS_OP, 32*8*64)[:, :2].reshape(32, 8, 128).sum(1).reshape(-1)
    cmp("o", o, inter["o"]); print("      o bf16 mismatches", int((bf(o) != inter["o"]).sum()))
    yp = w[WS_YP // 4: WS_YP // 4 + 8*640].view(np.uint32).reshape(8, 320, 2)[:, :, 0]
    ya = np.stack([(yp << 16).view(np.float32), (yp & 0xffff0000).view(np.float32)], axis=-1).reshape(8, 640)
    cmp("at", ya.sum(0), inter["at"])
    cmp("dn", gr(WS_DP, 54*320)[:, :2].reshape(54, 640).sum(0), inter["dn"])

if __name__ == "__main__":
    out = sys.argv[1]
    kw = {}
    for a in sys.argv[2:]:
        k, v = a.split("=")
        kw[k] = eval(v)
    open(out, "w").write(gen(**kw))
```

```python
import sys, struct
from asmdsl import Asm
KN = "adaLN_cond__gqa_block_cached__swiglu_ffn__decode_kernel"

def f2u(x): return struct.unpack("<I", struct.pack("<f", x))[0]
def fh(x): return hex(f2u(x))
LOG2E = 1.4426950408889634
SCALE = 128 ** -0.5

WS_MODP = 0x1000
WS_QP   = WS_MODP + 10*4*1024
WS_SP   = WS_QP + 32*2*1024
WS_OP   = WS_SP + 32*8*1024
WS_YP   = WS_OP + 32*8*1024
WS_DP   = WS_YP + 8*8*2560
WS_MR   = WS_DP + 54*5120
WS_CNT  = WS_MR + 2*20480
WS_END  = WS_CNT + 32*256
WS_STAMP = 0x10000000
L_KT, L_VT, L_QF, L_PF, L_KD, L_RANK, L_MF, L_N6, L_LAM = 0, 4, 8, 12, 16, 20, 24, 28, 32
L_Q = 0x100
L_ST = 0x200
L_PART = 0x400
L_ACC = 0x1000
L_X2 = 0x2000
L_P = 0x3000
L_MOD = 0x5000
L_END = 0x7800
DPPF = "row_mask:0xf bank_mask:0xf"

def gen(stamps=0, pol="nt", NK=12, NV=10, NS=120, NL=5, SLP=16, wake=False, KAP=26, LAG0=20, CAP=20, SLK=4, psl=0, ROT=304, abl=0, PFTH=2, LTH=63, linD=True, linP=True, lsl=0, MAP=0, cearly=True, CTH=63, QK=(0, 8, 4, 3, 0, 10, 6), cstart=True, tp="", pp="", DNP=1, wbar=False, EW=(), NR=4, TW=0, TWD=4, now=0, pf=True, pf2=True, Q_wo=999, Q_ffn=999):
    NP = 8 * (128 - NS); Q_wo = min(Q_wo, NP); Q_ffn = min(Q_ffn, NP)
    A = Asm()
    uid = [0]
    def U(p):
        uid[0] += 1; return f"L_{p}_{uid[0]}"
    sWAVE, sHD, sS, sTAG, sK, sG = "s3", "s32", "s33", "s34", "s35", "s36"
    SK, SV, SWS, SA, SB = "s[40:43]", "s[44:47]", "s[48:51]", "s[52:55]", "s[56:59]"
    sTP, sST, sL2E, sSC, sTO, sF, sTK = "s60", "s61", "s62", "s63", "s64", "s65", "s66"
    sROT, sQ, SCNT = "s37", "s29", "s[38:39]"
    def stamp(k):
        if stamps: A(f"s_memrealtime s[{70+2*k}:{71+2*k}]")
    def stamp_dump(slots, xcc=False, final=True):
        if not stamps: return
        A("s_waitcnt lgkmcnt(0)")
        A("s_mov_b64 exec, 1")
        A(f"s_lshl_b32 s69, s2, 7"); A(f"s_add_u32 s69, s69, {WS_STAMP}")
        A("s_mov_b32 s50, 0x20000000")
        for k in slots:
            A(f"v_mov_b32 v{vT+10}, s{70+2*k}"); A(f"v_mov_b32 v{vT+11}, s{71+2*k}")
            A(f"buffer_store_dwordx2 v[{vT+10}:{vT+11}], v{vZERO}, {SWS}, s69 offen offset:{k*8}")
            A("s_nop 1")
        if xcc:
            A("s_getreg_b32 s68, hwreg(HW_REG_XCC_ID)")
            A(f"v_mov_b32 v{vT+10}, s68"); A(f"v_mov_b32 v{vT+11}, 0")
            A(f"buffer_store_dwordx2 v[{vT+10}:{vT+11}], v{vZERO}, {SWS}, s69 offen offset:120")
        if not final: A("s_mov_b64 exec, -1")
    def srd(S, lo, hi, n):
        b = int(S[2:S.index(":")])
        A(f"s_mov_b32 s{b}, {lo}"); A(f"s_mov_b32 s{b+1}, {hi}"); A(f"s_mov_b32 s{b+2}, {n}"); A(f"s_mov_b32 s{b+3}, 0x20000")
    def v4(b): return f"v[{b}:{b+3}]"
    def v2(b): return f"v[{b}:{b+1}]"
    def dpp_red(op, vs, ctls):
        for ctl in ctls:
            for v in vs: A(f"{op}_dpp v{v}, v{v}, v{v} {ctl}")
    QUAD = [f"quad_perm:[1,0,3,2] {DPPF}", f"quad_perm:[2,3,0,1] {DPPF}"]
    BANK = [f"row_ror:4 {DPPF}", f"row_ror:8 {DPPF}"]
    BCAST = ["row_bcast:15 row_mask:0xa bank_mask:0xf", "row_bcast:31 row_mask:0xc bank_mask:0xf"]
    def xrow(op, v, t, which):
        A(f"v_mov_b32 v{t}, v{v}"); A(f"v_permlane{which}_swap_b32 v{v}, v{t}"); A(f"{op} v{v}, v{v}, v{t}")
    def wave_red(op, v, t):
        dpp_red(op, [v], QUAD + BANK); xrow(op, v, t, 16); xrow(op, v, t, 32)
    def rbf(d, s):
        A(f"v_cvt_pk_bf16_f32 v{d}, v{s}, v{s}"); A(f"v_and_b32 v{d}, 0xffff0000, v{d}")
    def rbf2(a, b):
        A(f"v_cvt_pk_bf16_f32 v{b}, v{a}, v{b}"); A(f"v_lshlrev_b32 v{a}, 16, v{b}"); A(f"v_and_b32 v{b}, 0xffff0000, v{b}")
    vLANE16, vZERO, vONE, vTKT, vADDR, vPB, vPW, vL = 1, 2, 3, 4, 5, 6, 7, 8
    vLANE, vNAT, vBAD = 9, 10, 11
    vQ, vM2, vACC = 12, 16, 20
    vR, vA_, vB_, vC_, vE_ = 24, 28, 29, 30, 31
    vAOP = 32
    vT = 48
    vM1 = 60
    RING = 64
    WT = RING + 48
    WD = WT + 80
    WD2 = WD + 32
    TMP = RING + 32
    ACC2 = RING + 40
    PF = RING + 44
    def publish(b, voff, soff):
        A(f"v_mov_b32 v{b+3}, {sTAG}")
        A(f"buffer_store_dwordx4 {v4(b)}, v{voff}, {SWS}, {soff} offen sc1")
    def poll(loads, base, tags=(3,), extra=None, nextra=0):
        n = len(loads)
        dst = base if isinstance(base, list) else [base + 4*i for i in range(n)]
        L = U("poll"); Ld = U("pdone")
        def one(k):
            for idx, (vo, so, imm, em) in enumerate(loads):
                if em is not None: A(f"s_mov_b64 exec, {em}")
                A(f"buffer_load_dwordx4 {v4(dst[idx])}, v{vo}, {SWS}, {so} offen offset:{imm} sc1")
                if em is not None: A("s_mov_b64 exec, -1")
            if k: extra()
            first = True
            for idx in range(n):
                d = dst[idx]
                A(f"s_waitcnt vmcnt({k + n-1-idx})")
                for tp in tags:
                    if first: A(f"v_xor_b32 v{vBAD}, {sTAG}, v{d+tp}"); first = False
                    else: A(f"v_bitop3_b32 v{vBAD}, v{vBAD}, v{d+tp}, {sTAG} bitop3:0xf6")
            A(f"v_cmp_ne_u32 vcc, 0, v{vBAD}")
            A(f"s_cbranch_vccz {Ld}")
        if extra: one(nextra)
        A(f"s_mov_b32 {sTO}, 0x40000")
        A.label(L)
        one(0)
        A(f"s_sub_u32 {sTO}, {sTO}, 1")
        A(f"s_cmp_lg_u32 {sTO}, 0")
        A(f"s_cbranch_scc1 {L}")
        A.label(Ld)
    def spre(sbase, offs, sl=None):
        R = [40, 41, 42, 43, 44, 45, 46, 47, 14, 15, 28, 29, 60, 61, 66, 67]
        L = U("spoll"); Ld = U("spd")
        A(f"s_add_u32 s68, s30, {sbase}"); A("s_addc_u32 s69, s31, 0")
        A(f"s_mov_b32 {sTO}, 0x40000")
        A.label(L)
        sl = psl if sl is None else sl
        if sl: A(f"s_sleep {sl}")
        for i, o in enumerate(offs): A(f"s_load_dword s{R[i]}, s[68:69], {o + 1020} glc")
        A(f"s_sub_u32 {sTO}, {sTO}, 1"); A(f"s_cmp_eq_u32 {sTO}, 0"); A(f"s_cbranch_scc1 {Ld}")
        A("s_waitcnt lgkmcnt(0)")
        for i, o in enumerate(offs):
            A(f"s_cmp_lg_u32 s{R[i]}, {sTAG}"); A(f"s_cbranch_scc1 {L}")
        A.label(Ld)
        A("s_waitcnt lgkmcnt(0)")
    def lds_wait(off, val, slow=False, slp=None):
        L = U("lw"); Ld = U("lwd")
        A(f"s_mov_b32 {sTO}, 0x400000")
        A.label(L)
        if slow: A(f"s_sleep {SLP if slp is None else slp}")
        A(f"ds_read_b32 v{vBAD}, v{vZERO} offset:{off}")
        A(f"s_sub_u32 {sTO}, {sTO}, 1"); A(f"s_cmp_eq_u32 {sTO}, 0"); A(f"s_cbranch_scc1 {Ld}")
        A("s_waitcnt lgkmcnt(0)")
        A(f"v_cmp_gt_u32 vcc, {val}, v{vBAD}")
        A(f"s_cbranch_vccnz {L}")
        A.label(Ld)
    def sum2(bases, dst=None):
        bs = list(bases)
        while len(bs) > 1:
            nb = []
            for i in range(0, len(bs) - 1, 2):
                d = dst if (dst is not None and len(bs) == 2) else bs[i]
                A(f"v_pk_add_f32 {v2(d)}, {v2(bs[i])}, {v2(bs[i+1])}"); nb.append(d)
            if len(bs) % 2: nb.append(bs[-1])
            bs = nb
    def gemv(acc, mask, items, acc2=None, w2=None, keep=False):
        def mf(n):
            (x0, c0, w0, wc0) = items[n]
            if wc0 is not None: A(f"s_waitcnt vmcnt({wc0})")
            A(f"v_mfma_f32_16x16x32_bf16 {v4(acc)}, {v4(vAOP + 4*(n % 4))}, {v4(w0)}, {'0' if (n == 0 and not keep) else v4(acc)}")
            if acc2 is not None:
                A(f"v_mfma_f32_16x16x32_bf16 {v4(acc2)}, {v4(vAOP + 4*(n % 4))}, {v4(w2+4*n)}, {'0' if n == 0 else v4(acc2)}")
        for n, (x, ctl, w, wc) in enumerate(items):
            a = vAOP + 4 * (n % 4)
            for t in range(4): A(f"v_and_b32_dpp v{a+t}, v{x}, v{mask+t} {ctl} {DPPF}")
            if n >= 1: mf(n-1)
        mf(len(items) - 1)
    def ysplit(xs, y):
        for i, x in enumerate(xs): A(f"v_mov_b32 v{y+2*i}, v{x}"); A(f"v_mov_b32 v{y+2*i+1}, v{x}")
        for i, x in enumerate(xs):
            A(f"v_mov_b32_dpp v{y+2*i}, v{x} row_shr:4 row_mask:0xf bank_mask:0xa")
            A(f"v_mov_b32_dpp v{y+2*i+1}, v{x} row_shl:4 row_mask:0xf bank_mask:0x5")
    qp = lambda k: f"quad_perm:[{k},{k},{k},{k}]"
    def silu(x, t):
        A(f"v_mul_f32 v{t}, {fh(-LOG2E)}, v{x}"); A(f"v_exp_f32 v{t}, v{t}")
        A(f"v_add_f32 v{t}, 1.0, v{t}"); A(f"v_rcp_f32 v{t}, v{t}"); A(f"v_mul_f32 v{x}, v{x}, v{t}")
    def acc_addr(d):
        A(f"v_and_b32 v{d}, 7, v{vLANE}"); A(f"v_lshlrev_b32 v{d}, 5, v{d}")
        A(f"v_and_b32 v{vT+11}, 16, v{vLANE}"); A(f"v_add_u32 v{d}, v{d}, v{vT+11}")
        A(f"v_lshrrev_b32 v{vT+11}, 5, v{vLANE}"); A(f"v_lshl_add_u32 v{d}, v{vT+11}, 8, v{d}")
        A(f"s_lshl_b32 s68, {sWAVE}, 9"); A(f"v_add_u32 v{d}, s68, v{d}")
    def acc_write(d):
        A("s_mov_b32 exec_lo, 0x00ff00ff"); A("s_mov_b32 exec_hi, 0xff00ff00")
        A(f"ds_write_b128 v{d}, {v4(vACC)} offset:{L_ACC}")
        A("s_mov_b64 exec, -1")
    def mod_loads(scb, srb):
        wb = RING
        srd(SA, "s24", "s25", 640*7680); srd(SB, "s22", "s23", 1280)
        A(f"v_lshrrev_b32 v{vT}, 4, v{vLANE}"); A(f"v_mul_u32_u24 v{vT}, 40, v{vT}")
        A(f"v_and_b32 v{vT+1}, 15, v{vLANE}"); A(f"v_add_u32 v{vT+2}, v{vT}, v{vT+1}"); A(f"v_lshlrev_b32 v{vT+2}, 1, v{vT+2}")
        A(f"v_and_b32 v{vT+3}, 7, v{vLANE}"); A(f"v_add_u32 v{vT+3}, v{vT}, v{vT+3}"); A(f"v_lshlrev_b32 v{vT+3}, 1, v{vT+3}")
        A(f"s_mul_i32 s69, {srb}, 320")
        A(f"buffer_load_ushort v{vR}, v{vT+2}, {SB}, s69 offen")
        A(f"buffer_load_ushort v{vR+1}, v{vT+2}, {SB}, s69 offen offset:32")
        A(f"buffer_load_ushort v{vR+2}, v{vT+3}, {SB}, s69 offen offset:64")
        A(f"v_mul_u32_u24 v{vT}, 7680, v{vT}"); A(f"v_lshl_add_u32 v{vT}, v{vT+1}, 4, v{vT}")
        A(f"s_mul_i32 s69, {srb}, {160*7680}"); A(f"s_lshl_b32 s68, {scb}, 8"); A("s_add_u32 s68, s69, s68")
        for t in range(40):
            A(f"buffer_load_dwordx4 {v4(wb+4*t)}, v{vT}, {SA}, s68 offen {pol}")
            if t < 39: A("s_add_u32 s68, s68, 7680")
    def mod_compute():
        wb = RING
        A("s_waitcnt vmcnt(40)")
        for k in range(3):
            A(f"v_lshlrev_b32 v{vR+k}, 16, v{vR+k}"); silu(vR+k, vR+3); A(f"v_cvt_pk_bf16_f32 v{vR+k}, v{vR+k}, v{vR+k}")
        gemv(vACC, vM2, [(vR + t // 16, f"row_newbcast:{t % 16}", wb+4*t, 39-t) for t in range(40)])
    def common_setup():
        A(f"s_load_dword {sTAG}, s[30:31], 0")
        srd(SWS, "s30", "s31", WS_END)
        A(f"v_and_b32 v{vT}, 1, v{vLANE}"); A(f"v_lshlrev_b32 v{vT}, 4, v{vT}"); A(f"v_mov_b32 v{vT+1}, 0xffff"); A(f"v_lshlrev_b32 v{vT}, v{vT}, v{vT+1}")
        A(f"v_bfe_u32 v{vT+1}, v{vLANE}, 1, 2")
        A(f"v_bfe_u32 v{vT+2}, v{vLANE}, 1, 3")
        for t in range(4):
            A(f"v_cmp_eq_u32 vcc, {t}, v{vT+1}"); A(f"v_cndmask_b32 v{vM1+t}, 0, v{vT}, vcc")
            A(f"v_cmp_eq_u32 vcc, {2*t}, v{vT+2}"); A(f"v_cndmask_b32 v{vM2+t}, 0, v{vT}, vcc")
        A(f"v_and_b32 v{vT}, 15, v{vLANE}"); A(f"v_lshlrev_b32 v{vT}, 6, v{vT}"); A(f"v_and_b32 v{vT+1}, 48, v{vLANE}"); A(f"v_add_u32 v{vNAT}, v{vT}, v{vT+1}")
        A("s_waitcnt lgkmcnt(0)")
        A(f"s_add_u32 {sTAG}, {sTAG}, 0x01010101")
    def gu_loads(Ld, LTH, sWAVE=sWAVE):
        vT = vAOP
        if Ld:
            A(f"s_cmp_ge_u32 {sF}, 54"); A(f"s_cbranch_scc1 {Ld}")
            A(f"s_cmp_gt_u32 {sWAVE}, 3"); A(f"s_cbranch_scc1 {Ld}")
        A(f"v_and_b32 v{vT+2}, 4, v{vLANE}"); A(f"v_cmp_eq_u32 vcc, 0, v{vT+2}")
        A(f"v_mov_b32 v{vT+2}, s18"); A(f"v_mov_b32 v{vT+3}, s16"); A(f"v_cndmask_b32 v{vT+6}, v{vT+2}, v{vT+3}, vcc")
        A(f"v_mov_b32 v{vT+2}, s19"); A(f"v_mov_b32 v{vT+3}, s17"); A(f"v_cndmask_b32 v{vT+7}, v{vT+2}, v{vT+3}, vcc")
        A(f"s_mul_i32 s69, {sWAVE}, {160*3456}"); A(f"s_lshl_b32 s68, {sF}, 6"); A("s_add_u32 s69, s69, s68")
        A(f"v_and_b32 v{vT+4}, 3, v{vLANE}"); A(f"v_lshl_add_u32 v{vT+4}, v{vT+4}, 4, s69")
        A(f"v_lshrrev_b32 v{vT+5}, 3, v{vLANE}")
        for (mul, add, rows) in ((16*3456, 0, [(k, y) for k in range(4) for y in range(4)]), (4*3456, 128*3456, [(k, 4) for k in range(4)])):
            A(f"v_mul_u32_u24 v{vT+1}, {mul}, v{vT+5}"); A(f"v_add_u32 v{vT+1}, v{vT+1}, v{vT+4}")
            if add: A(f"v_add_u32 v{vT+1}, {add}, v{vT+1}")
            A(f"v_add_co_u32 v{vT+2}, vcc, v{vT+6}, v{vT+1}"); A(f"v_addc_co_u32 v{vT+3}, vcc, 0, v{vT+7}, vcc")
            for i, (k, y) in enumerate(rows):
                A(f"global_load_dwordx4 {v4(WT+4*(y*4+k))}, {v2(vT+2)}, off offset:{(i%2)*3456} {tp}")
                if LTH < 63: A(f"s_waitcnt vmcnt({LTH})")
                if i % 2 == 1 and i < len(rows) - 1:
                    A(f"v_add_co_u32 v{vT+2}, vcc, {2*3456}, v{vT+2}"); A(f"v_addc_co_u32 v{vT+3}, vcc, 0, v{vT+3}, vcc")
    def dn_prep():
        srd(SA, "s20", "s21", 1728*1280)
        A(f"v_lshrrev_b32 v{vT+1}, 4, v{vLANE}"); A(f"v_mul_u32_u24 v{vT+1}, {8*1280}, v{vT+1}")
        A(f"v_and_b32 v{vT+2}, 15, v{vLANE}"); A(f"v_lshl_add_u32 v{vT+1}, v{vT+2}, 4, v{vT+1}")
        A(f"s_mul_i32 s60, {sF}, {32*1280}"); A("s_lshl_b32 s68, s23, 8"); A("s_add_u32 s60, s60, s68")
    def dn_issue(Ld):
        A("s_mov_b32 s69, s60")
        for t in range(8):
            if t % 2 == 0: A(f"s_add_u32 s68, s69, {t*1280}")
            A(f"buffer_load_dwordx4 {v4(WD+4*t)}, v{vT+1}, {SA}, s68 offen offset:{(t%2)*1280} {tp}")
        A(f"s_cmp_lg_u32 {sWAVE}, 5"); A(f"s_cbranch_scc1 {Ld}")
        for t in range(8):
            if t % 2 == 0: A(f"s_add_u32 s68, s69, {t*1280}")
            A(f"buffer_load_dwordx4 {v4(WD2+4*t)}, v{vT+1}, {SA}, s68 offen offset:{(t%2)*1280 + 768} {tp}")
    def wo_loads():
        srd(SA, "s12", "s13", 4096*1280)
        A(f"v_bfe_u32 v{vT+1}, v{vLANE}, 4, 1"); A(f"v_lshlrev_b32 v{vT+1}, 5, v{vT+1}")
        A(f"v_lshrrev_b32 v{vT+2}, 5, v{vLANE}"); A(f"v_add_u32 v{vT+1}, v{vT+1}, v{vT+2}")
        A(f"v_bfe_u32 v{vT+2}, v{vLANE}, 3, 1"); A(f"v_lshl_add_u32 v{vT+1}, v{vT+2}, 4, v{vT+1}")
        A(f"v_mul_u32_u24 v{vT+1}, 1280, v{vT+1}")
        A(f"v_and_b32 v{vT+2}, 7, v{vLANE}"); A(f"v_lshl_add_u32 v{vT+1}, v{vT+2}, 4, v{vT+1}")
        A(f"s_lshr_b32 s68, {sWAVE}, 1"); A("s_lshl_b32 s68, s68, 3"); A(f"s_add_u32 s68, s68, {sG}"); A("s_lshl_b32 s68, s68, 1")
        A(f"s_and_b32 s69, {sWAVE}, 1"); A("s_add_u32 s68, s68, s69"); A(f"s_mul_i32 s69, s68, {64*1280}")
        A(f"s_lshl_b32 s68, {sK}, 7"); A("s_add_u32 s69, s69, s68")
        for n in range(8):
            if n % 2 == 0: A(f"s_add_u32 s68, s69, {2*n*1280}")
            A(f"buffer_load_dwordx4 {v4(WT+4*n)}, v{vT+1}, {SA}, s68 offen offset:{(n%2)*2560} {tp}")
    def tail_loads(dn):
        Lw, Ld = U("lwo"), U("ldone")
        A(f"s_cmp_lt_u32 {sK}, 10"); A(f"s_cbranch_scc1 {Lw}")
        if not (now & 1):
            gu_loads(Ld, CTH if dn else LTH)
        A(f"s_branch {Ld}")
        A.label(Lw)
        if not (now & 2): wo_loads()
        A.label(Ld)

    A(f"; @launch grid=(256,1,1) block=(512,1,1) lds={L_END}")
    A('.amdgcn_target "amdgcn-amd-amdhsa--gfx950"')
    A(".text"); A(f".globl {KN}"); A(".p2align 8"); A(f".type {KN},@function"); A.label(KN)
    stamp(0)
    A("s_cmp_ge_u32 s2, 256"); A("s_cbranch_scc1 L_end")
    A("s_load_dwordx16 s[4:19], s[0:1], 0")
    A("s_load_dwordx8 s[20:27], s[0:1], 64")
    A("s_load_dwordx4 s[28:31], s[0:1], 96")
    A("v_lshrrev_b32 v1, 6, v0"); A(f"v_and_b32 v{vLANE}, 63, v0")
    A(f"v_readfirstlane_b32 {sWAVE}, v1")
    A(f"v_lshlrev_b32 v{vLANE16}, 4, v{vLANE}")
    A(f"s_lshr_b32 {sHD}, s2, 3"); A(f"s_and_b32 {sG}, s2, 7"); A(f"s_lshl_b32 {sK}, {sG}, 2"); A(f"s_add_u32 {sK}, {sK}, {sHD}"); A(f"s_and_b32 {sK}, {sK}, 31")
    A(f"s_add_u32 {sS}, {sG}, {sHD}"); A(f"s_and_b32 {sS}, {sS}, 7")
    if MAP == 1:
        A(f"s_and_b32 {sHD}, s2, 31"); A(f"s_lshr_b32 {sS}, s2, 5"); A(f"s_lshr_b32 {sK}, s2, 3")
    A(f"s_mov_b32 {sL2E}, {fh(LOG2E)}"); A(f"s_mov_b32 {sSC}, {fh(SCALE)}")
    A(f"s_sub_u32 s68, {sK}, 10"); A(f"s_mul_i32 {sF}, {sG}, 7"); A(f"s_add_u32 {sF}, {sF}, s68")
    A("s_cmp_lt_u32 s68, 7"); A(f"s_cselect_b32 {sF}, {sF}, 63")
    A(f"v_mov_b32 v{vZERO}, 0"); A(f"v_mov_b32 v{vONE}, 1")
    A(f"s_cmp_eq_u32 {sWAVE}, 0"); A("s_cbranch_scc1 L_ctrl0")
    A(f"s_cmp_gt_u32 {sWAVE}, {NL}"); A("s_cbranch_scc1 L_help")
    A(f"s_mul_i32 {sROT}, {sHD}, {ROT}"); A(f"s_lshl_b32 {sST}, {sS}, 7"); A(f"s_add_u32 {sST}, {sST}, {sROT}")
    A(f"s_lshl_b32 s68, {sHD}, 22")
    def tile_addr(sreg, add):
        A(f"s_add_u32 s69, {sreg}, {add}")
        if ROT: A("s_and_b32 s69, s69, 1023")
        A("s_lshl_b32 s69, s69, 12")
        A(f"v_add_u32 v{vADDR}, s69, v{vLANE16}")
    A(f"s_add_u32 s67, {sST}, {sWAVE}"); A("s_sub_u32 s67, s67, 1")
    tile_addr("s67", 0)
    if stamps == 6: stamp(2)
    A("s_waitcnt lgkmcnt(0)")
    A("s_add_u32 s40, s6, s68"); A("s_addc_u32 s41, s7, 0"); A("s_mov_b32 s42, 0x400000"); A("s_mov_b32 s43, 0x20000")
    G = lambda i: RING + 16*i
    def load(S, slot):
        for u in range(4): A(f"buffer_load_dwordx4 {v4(G(slot)+4*u)}, v{vADDR}, {S}, 0 offen offset:{u*1024} {pol}")
    load(SK, 0)
    if stamps == 6: stamp(3)
    A("s_add_u32 s44, s8, s68"); A("s_addc_u32 s45, s9, 0"); A("s_mov_b32 s46, 0x400000"); A("s_mov_b32 s47, 0x20000")
    A("s_barrier")
    common_setup()
    A(f"s_lshl_b32 s38, {sHD}, 8"); A(f"s_add_u32 s38, s38, {WS_CNT}"); A("s_add_u32 s38, s38, s30"); A("s_addc_u32 s39, s31, 0")
    A(f"s_mov_b32 {sQ}, {NP}"); A(f"s_cmp_lt_u32 {sF}, 54"); A(f"s_cselect_b32 {sQ}, {Q_ffn}, {sQ}"); A(f"s_cmp_lt_u32 {sK}, 10"); A(f"s_cselect_b32 {sQ}, {Q_wo}, {sQ}")
    A(f"v_and_b32 v{vPB}, 60, v{vLANE}")
    A(f"s_lshl_b32 s68, {sWAVE}, 6"); A("s_sub_u32 s68, s68, 64"); A(f"v_add_u32 v{vPW}, s68, v{vPB}")
    for r in range(4): A(f"v_mov_b32 v{vACC+r}, 0")
    for i in range(1, NK):
        tile_addr("s67", NL*i)
        A("s_waitcnt vmcnt(0)")
        if i == 1 and stamps in (4, 6): stamp(1)
        if i == 2 and stamps == 6: stamp(4)
        if i == 3 and stamps == 6: stamp(5)
        load(SK, i)
    if stamps == 4: stamp(2)
    A(f"v_and_b32 v{vT}, 15, v{vLANE}"); A(f"v_lshlrev_b32 v{vT}, 4, v{vT}")
    lds_wait(L_QF, 1)
    A(f"ds_read_b128 {v4(vQ)}, v{vT} offset:{L_Q}")
    A("s_waitcnt lgkmcnt(0)")
    def req(off):
        A("s_mov_b64 exec, 1"); A(f"ds_add_rtn_u32 v{vTKT}, v{vZERO}, v{vONE} offset:{off}"); A("s_mov_b64 exec, -1")
    def qk(slot, va, off):
        kb = G(slot)
        for t in range(4):
            for u in range(4):
                if t == 0: A(f"v_dot2_f32_bf16 v{vR+u}, v{kb+4*u}, v{vQ}, 0")
                else: A(f"v_dot2c_f32_bf16 v{vR+u}, v{kb+4*u+t}, v{vQ+t}")
        A(f"v_add_f32_dpp v{vA_}, v{vR}, v{vR} row_ror:8 row_mask:0xf bank_mask:0x3")
        A(f"v_add_f32_dpp v{vB_}, v{vR+2}, v{vR+2} row_ror:8 row_mask:0xf bank_mask:0x3")
        A(f"v_add_f32_dpp v{vA_}, v{vR+1}, v{vR+1} row_ror:8 row_mask:0xf bank_mask:0xc")
        A(f"v_add_f32_dpp v{vB_}, v{vR+3}, v{vR+3} row_ror:8 row_mask:0xf bank_mask:0xc")
        A(f"v_add_f32_dpp v{vC_}, v{vA_}, v{vA_} row_shl:4 row_mask:0xf bank_mask:0x5")
        A(f"v_add_f32_dpp v{vC_}, v{vB_}, v{vB_} row_shr:4 row_mask:0xf bank_mask:0xa")
        dpp_red("v_add_f32", [vC_], QUAD)
        rbf(vC_, vC_)
        A(f"v_mul_f32 v{vC_}, {sSC}, v{vC_}")
        rbf(vC_, vC_)
        A(f"ds_write_b32 v{va}, v{vC_} offset:{off}")
    def build(p):
        lane_of = [0, 8, 4, 12]
        for u in range(4):
            for t in range(4): A(f"v_and_b32_dpp v{vAOP+4*u+t}, v{p}, v{vM2+t} row_newbcast:{lane_of[u]} {DPPF}")
    def mm(slot):
        for u in range(4):
            A(f"v_mfma_f32_16x16x32_bf16 {v4(vACC)}, {v4(vAOP+4*u)}, {v4(G(slot)+4*u)}, {v4(vACC)}")
    LA, LB = 0, NK - 1
    qk(0, vPW, L_P)
    todo = list(range(1, NK - 1))
    cur, cur_i, nxt = LB, NK - 1, LA
    step = 0
    while todo:
        i = NK + step
        tile_addr("s67", NL*i)
        A("s_waitcnt vmcnt(0)")
        load(SK, nxt)
        if len(todo) <= 2: req(L_KT)
        qk(cur, vPW, L_P + NL*cur_i*64)
        for b in todo[:2]: qk(b, vPW, L_P + NL*b*64)
        todo = todo[2:]
        cur, nxt, cur_i = nxt, cur, i
        step += 1
    KT0 = NL * (NK + step)
    assert KT0 <= 128
    A(f"v_add_u32 v{vE_}, {NL*cur_i*64}, v{vPW}")
    if stamps == 4: stamp(3)
    order = [cur, nxt]
    A.label("L_k0")
    for n in range(2):
        X, Y = order[n], order[1-n]
        if n: A.label("L_k1")
        A("s_waitcnt lgkmcnt(0)")
        A(f"v_readfirstlane_b32 {sTK}, v{vTKT}")
        A(f"s_cmp_ge_u32 {sTK}, 128"); A(f"s_cbranch_scc1 L_kend{n}")
        tile_addr(sTK, sST)
        A("s_waitcnt vmcnt(0)")
        load(SK, Y)
        req(L_KT)
        qk(X, vE_, L_P)
        A(f"s_lshl_b32 s68, {sTK}, 6"); A(f"v_add_u32 v{vE_}, s68, v{vPB}")
    A("s_branch L_k0")
    for n in range(2):
        A.label(f"L_kend{n}")
        tile_addr("s67", 0)
        A("s_waitcnt vmcnt(0)")
        load(SV, 1)
        qk(order[n], vE_, L_P)
        if n == 0: A("s_branch L_vpre")
    A.label("L_vpre")
    A("s_waitcnt lgkmcnt(0)")
    A("s_mov_b64 exec, 1"); A(f"ds_add_u32 v{vZERO}, v{vONE} offset:{L_KD}"); A("s_mov_b64 exec, -1")
    if wake: A("s_waitcnt lgkmcnt(0)"); A("s_wakeup")
    if stamps == 4: stamp(4)
    for i in range(1, NV):
        tile_addr("s67", NL*i)
        A("s_waitcnt vmcnt(0)")
        load(SV, i + 1)
    if stamps == 4: stamp(5)
    lds_wait(L_PF, 1)
    A(f"ds_read_b32 v{vC_}, v{vZERO} offset:{L_LAM}")
    A(f"v_and_b32 v{vL}, 4, v{vLANE}"); A(f"v_lshlrev_b32 v{vL}, 2, v{vL}"); A(f"v_sub_u32 v{vL}, 16, v{vL}")
    A(f"s_lshl_b32 s14, {sHD}, 13"); A(f"s_add_u32 s14, s14, {WS_SP + (NS - 112)*32}"); A("s_add_u32 s14, s14, s30"); A("s_addc_u32 s15, s31, 0")
    nstep = NV // 2
    if nstep % 2: nstep += 1
    PR = vT
    assert NV + nstep <= 12 + 4
    preg = lambda i: (vT + i) if i < 12 else (vR + i - 12)
    for i in range(NV + nstep):
        A(f"ds_read_b32 v{preg(i)}, v{vPW} offset:{L_P + NL*i*64}")
        if i == 8: A("s_waitcnt lgkmcnt(2)")
    A("s_waitcnt lgkmcnt(0)")
    todo = [(i + 1, i) for i in range(NV)]
    live = [LA, LB]
    for j in range(nstep):
        tile_addr("s67", NL*(NV + j))
        A("s_waitcnt vmcnt(0)")
        load(SV, live[j % 2])
        if j == nstep - 1: req(L_VT)
        items = ([(live[(j-1) % 2], NV + j - 1)] if j else []) + todo[:2]
        todo = todo[2:]
        if j == nstep - 1: items += todo; todo = []
        for (sl, i) in items: build(preg(i)); mm(sl)
    build(preg(NV + nstep - 1))
    VT0 = NL * (NV + nstep)
    order = [LB, LA]
    A.label("L_v0")
    for n in range(2):
        X, Y = order[n], order[1-n]
        A("s_waitcnt lgkmcnt(0)")
        A(f"v_readfirstlane_b32 {sTK}, v{vTKT}")
        A(f"s_cmp_ge_u32 {sTK}, {NS}"); A(f"s_cbranch_scc1 L_din{n}")
        A(f"s_lshl_b32 s68, {sTK}, 6"); A(f"v_add_u32 v{vE_}, s68, v{vPB}")
        A(f"ds_read_b32 v{vE_}, v{vE_} offset:{L_P}")
        tile_addr(sTK, sST)
        A("s_waitcnt vmcnt(0) lgkmcnt(0)")
        load(SV, Y)
        req(L_VT)
        mm(X); build(vE_)
    A("s_branch L_v0")
    for n in range(2):
        A.label(f"L_din{n}")
        A(f"s_mov_b32 {sTK}, 1"); A(f"s_atomic_add {sTK}, {SCNT}, 0 glc")
        A(f"s_branch L_d{n}")
    for n in range(2):
        X, Y = order[n], order[1-n]
        A.label(f"L_d{n}")
        A("s_waitcnt lgkmcnt(0)")
        A(f"s_cmp_ge_u32 {sTK}, {NP}"); A(f"s_cbranch_scc1 L_vend{n}")
        A(f"s_and_b32 s68, {sTK}, 7"); A(f"s_lshr_b32 s67, {sTK}, 3")
        A("s_lshl_b32 s69, s68, 5"); A("s_add_u32 s69, s69, s67"); A("s_lshl_b32 s69, s69, 5")
        A("s_load_dwordx8 s[52:59], s[14:15], s69 glc")
        A("s_lshl_b32 s68, s68, 7"); A("s_add_u32 s68, s68, s67"); A(f"s_add_u32 s68, s68, {NS}")
        tile_addr("s68", sROT)
        A(f"s_cmp_ge_u32 {sTK}, {sQ}"); A(f"s_cselect_b32 {sTP}, {NP}, 0"); A(f"s_cselect_b32 {sTK}, 0, 1")
        A("s_waitcnt vmcnt(0)")
        load(SV, Y)
        mm(X)
        A("s_waitcnt lgkmcnt(0)")
        A(f"s_atomic_add {sTK}, {SCNT}, 0 glc")
        A("s_mov_b64 exec, 0xff")
        for j in range(8):
            A(f"v_lshlrev_b32 v{vE_}, v{vL}, s{52+j}")
            if j < 7: A("s_lshl_b64 exec, exec, 8")
        A("s_mov_b64 exec, -1")
        A(f"v_and_b32 v{vE_}, 0xffff0000, v{vE_}")
        A(f"v_fma_f32 v{vE_}, v{vE_}, {sL2E}, -v{vC_}")
        A(f"v_exp_f32 v{vE_}, v{vE_}")
        A(f"v_cvt_pk_bf16_f32 v{vE_}, v{vE_}, v{vE_}")
        build(vE_)
        if Q_wo < NP or Q_ffn < NP:
            A("s_waitcnt lgkmcnt(0)"); A(f"s_add_u32 {sTK}, {sTK}, {sTP}")
    A("s_branch L_d0")
    for n in range(2):
        A.label(f"L_vend{n}")
        if pf and not TW:
            A("s_mov_b64 exec, 1"); A(f"ds_add_rtn_u32 v{vTKT}, v{vZERO}, v{vONE} offset:{L_RANK}"); A("s_mov_b64 exec, -1")
        A(f"s_lshl_b32 s69, {sWAVE}, 9"); A(f"v_lshrrev_b32 v{vT}, 1, v{vNAT}"); A(f"v_add_u32 v{vT}, s69, v{vT}")
        A("s_waitcnt vmcnt(0)")
        mm(order[n])
        if n == 0: A("s_branch L_last")
    A.label("L_last")
    A(f"ds_write_b64 v{vT}, {v2(vACC)} offset:{L_PART-512}")
    A("s_waitcnt lgkmcnt(0)")
    def wo_prefetch(first, cnt, th):
        srd(SA, "s12", "s13", 4096*1280)
        A(f"s_and_b32 s68, {sK}, 24"); A(f"s_add_u32 s68, s68, {sG}"); A(f"s_mul_i32 s68, s68, {128*1280}")
        A(f"s_and_b32 s69, {sK}, 7"); A(f"s_mul_i32 s69, s69, {20*1024}"); A("s_add_u32 s68, s68, s69")
        if first: A(f"s_add_u32 s68, s68, {first}")
        for n in range(cnt):
            if n and n % 4 == 0: A("s_add_u32 s68, s68, 4096")
            A(f"buffer_load_dwordx4 {v4(PF)}, v{vLANE16}, {SA}, s68 offen offset:{(n%4)*1024} {pp}")
            if th < 63: A(f"s_waitcnt vmcnt({th})")
    if pf and not TW:
        A(f"v_readfirstlane_b32 s66, v{vTKT}")
        A(f"s_cmp_ge_u32 s66, {NR}"); A("s_cbranch_scc1 L_pfdone")
        A(f"s_mul_i32 s66, s66, {(20 // NR)*1024}")
        wo_prefetch("s66", 20 // NR, 63)
        A.label("L_pfdone")
    if stamps in (4, 6):
        A(f"s_cmp_lg_u32 {sWAVE}, 1"); A("s_cbranch_scc1 L_ns4")
        stamp_dump([1, 2, 3, 4, 5], final=False)
        A.label("L_ns4")
    A.label("L_join")
    A("s_barrier")
    if abl: A("s_endpgm"); A.label("L_abl_dead")
    if pf2:
        A(f"s_cmp_lt_u32 {sK}, 17"); A("s_cbranch_scc1 L_pf2done")
        A(f"s_sub_u32 s66, {sK}, 17"); A("s_mul_i32 s66, s66, 7"); A(f"s_add_u32 s66, s66, {sWAVE}"); A("s_sub_u32 s66, s66, 1")
        A("s_cmp_ge_u32 s66, 80"); A("s_cbranch_scc1 L_pf2dn")
        srd(SA, "s16", "s17", 640*3456); srd(SB, "s18", "s19", 640*3456)
        A(f"v_lshrrev_b32 v{vT+1}, 5, v{vLANE}"); A(f"v_mul_u32_u24 v{vT+1}, 3456, v{vT+1}")
        A(f"v_and_b32 v{vT+2}, 31, v{vLANE}"); A(f"v_lshl_add_u32 v{vT+1}, v{vT+2}, 4, v{vT+1}")
        A(f"s_mul_i32 s68, {sG}, 7"); A("s_lshr_b32 s68, s68, 1"); A("s_min_u32 s68, s68, 23"); A("s_lshl_b32 s68, s68, 7")
        npair = (3 if cearly else 4) - len(EW)
        A(f"s_mul_i32 s69, s66, {2*npair*3456}"); A("s_add_u32 s68, s68, s69"); A(f"s_add_u32 s68, s68, {(160 if cearly else 0)*3456}")
        for n in range(npair):
            for S in (SA, SB):
                A(f"buffer_load_dwordx4 {v4(PF)}, v{vT+1}, {S}, s68 offen {pp}")
                if PFTH < 63: A(f"s_waitcnt vmcnt({PFTH})")
            if n < npair - 1: A(f"s_add_u32 s68, s68, {2*3456}")
        A("s_waitcnt vmcnt(0)")
        A("s_endpgm")
        A.label("L_pf2dn")
        srd(SA, "s20", "s21", 1728*1280)
        A(f"s_mul_i32 s68, {sG}, {7*40960}"); A("s_sub_u32 s69, s66, 80"); A(f"s_mul_i32 s69, s69, {11520}"); A("s_add_u32 s68, s68, s69")
        A(f"v_add_u32 v{vT+1}, s68, v{vLANE16}")
        for n in range(12):
            if n and n % 4 == 0: A(f"v_add_u32 v{vT+1}, 0x1000, v{vT+1}")
            A(f"buffer_load_dwordx4 {v4(PF)}, v{vT+1}, {SA}, 0 offen offset:{(n%4)*1024} {pp}")
            if PFTH < 63: A(f"s_waitcnt vmcnt({PFTH+1})")
        A("s_waitcnt vmcnt(0)")
        A("s_endpgm")
        A.label("L_pf2done")
    A.label("L_tail0")
    A(f"s_cmp_ge_u32 {sF}, 54"); A("s_cbranch_scc1 L_nomap")
    A(f"s_xor_b32 s68, {sWAVE}, 4"); A(f"s_and_b32 s69, {sWAVE}, 3"); A(f"s_cselect_b32 {sWAVE}, s68, {sWAVE}")
    for w in EW:
        A(f"s_cmp_eq_u32 {sWAVE}, {w-4}"); A("s_cbranch_scc1 L_tail")
    A.label("L_nomap")
    tail_loads(False)
    A.label("L_tail")
    A(f"s_cmp_lt_u32 {sK}, 10"); A("s_cbranch_scc1 L_wo")
    A(f"s_cmp_ge_u32 {sF}, 54"); A("s_cbranch_scc1 L_exit")
    X0, GA = 24, 26
    CC = [12, 13, 14, 15, 28]; SS = [RING+36, RING+37, RING+38, RING+39, 29]
    SEL0, SEL1, GB = 30, 31, 6
    A(f"s_cmp_gt_u32 {sWAVE}, 3"); A("s_cbranch_scc1 L_gprep")
    A(f"v_lshrrev_b32 v{vT}, 3, v{vLANE}"); A(f"v_and_b32 v{vT+1}, 3, v{vLANE}"); A(f"v_lshl_add_u32 v{vT+1}, v{vT}, 2, v{vT+1}")
    A(f"s_mul_i32 s68, {sWAVE}, 640"); A(f"v_lshl_add_u32 v{vT+8}, v{vT+1}, 4, s68")
    A("s_add_u32 s68, s68, 512"); A(f"v_lshl_add_u32 v{vT+9}, v{vT+1}, 2, s68")
    A(f"ds_read_b128 {v4(SS[0])}, v{vT+8} offset:{L_MOD+2560}"); A(f"ds_read_b32 v{SS[4]}, v{vT+9} offset:{L_MOD+2560}")
    A(f"ds_read_b128 {v4(CC[0])}, v{vT+8} offset:{L_MOD+5120}"); A(f"ds_read_b32 v{CC[4]}, v{vT+9} offset:{L_MOD+5120}")
    acc_addr(vT+5)
    A(f"s_min_u32 s21, {sF}, 39")
    A(f"v_mul_u32_u24 v{vL}, 5120, v{vT}")
    A(f"v_and_b32 v{vONE}, 7, v{vLANE}"); A(f"v_lshl_add_u32 v{vL}, v{vONE}, 4, v{vL}")
    A(f"s_lshl_b32 s68, s21, 7"); A(f"v_add_u32 v{vL}, s68, v{vL}")
    A(f"v_lshrrev_b32 v{vT+1}, 5, v{vLANE}"); A(f"v_lshl_add_u32 v{vONE}, v{vONE}, {3 if linD else 1}, v{vT+1}")
    if linD:
        A("s_lshr_b32 s68, s21, 3"); A("s_lshl_b32 s68, s68, 7"); A("s_and_b32 s69, s21, 1"); A("s_lshl_b32 s69, s69, 6"); A("s_add_u32 s68, s68, s69")
        A("s_and_b32 s69, s21, 6"); A("s_add_u32 s68, s68, s69")
    else: A(f"s_lshl_b32 s68, s21, 4")
    A(f"v_add_u32 v{vONE}, s68, v{vONE}")
    A(f"v_lshlrev_b32 v{vTKT}, 2, v{vONE}"); A(f"v_lshlrev_b32 v{vONE}, 1, v{vONE}")
    A(f"ds_read_b32 v{GB}, v{vTKT} offset:{L_MOD+7680}")
    for n in range(7): A(f"s_mov_b32 s{13+n}, {WS_DP + n*8*5120}")
    A("s_waitcnt lgkmcnt(0)")
    A("s_waitcnt vmcnt(0)")
    stamp(8)
    A(f"s_cmp_lg_u32 {sWAVE}, 0"); A(f"s_cbranch_scc1 {'L_gemv0' if wbar else 'L_gemv'}")
    def gather(last):
        A(f"v_and_b32 v{vT}, 31, v{vLANE}"); A(f"v_lshrrev_b32 v{vT+1}, 5, v{vLANE}")
        A(f"v_lshl_add_u32 v{vT+2}, v{vT}, 1, v{vT+1}"); A("s_lshl_b32 s68, s23, 6"); A(f"v_add_u32 v{vT+2}, s68, v{vT+2}")
        A(f"v_lshlrev_b32 v{vT+3}, 3, v{vT+2}")
        A(f"ds_read_b64 {v2(GA)}, v{vT+3} offset:{L_MOD}"); A(f"ds_read_b64 {v2(X0)}, v{vT+3} offset:{L_X2}")
        A(f"v_mul_u32_u24 v{vT+4}, 2560, v{vT+1}"); A(f"v_lshl_add_u32 v{vT+4}, v{vT}, 4, v{vT+4}"); A("s_lshl_b32 s68, s23, 9"); A(f"v_add_u32 v{vT+4}, s68, v{vT+4}")
        A(f"s_mul_i32 s68, {sG}, 20480")
        for n in range(4): A(f"s_add_u32 s{4+n}, s68, {WS_YP + n*5120}")
        A("s_lshl_b32 s68, s23, 3"); A(f"v_mov_b32 v{vADDR}, s68")
        A(f"v_mov_b32 v{SEL0}, 0x3f80"); A(f"v_mov_b32 v{SEL1}, 0x3f800000")
        A("s_waitcnt lgkmcnt(0)")
        if last:
            dn_prep()
            A(f"v_lshrrev_b32 v{vT+6}, 4, v{vLANE}"); A(f"v_lshlrev_b32 v{vT+6}, 3, v{vT+6}")
            A(f"v_and_b32 v{vT+7}, 7, v{vLANE}"); A(f"v_add_u32 v{vT+6}, v{vT+6}, v{vT+7}")
            A(f"v_bfe_u32 v{vT+7}, v{vLANE}, 3, 1"); A(f"v_lshl_add_u32 v{vT+6}, v{vT+7}, 5, v{vT+6}"); A(f"v_lshlrev_b32 v{vT+6}, 2, v{vT+6}")
            A(f"v_add_u32 v{vT+6}, {L_ACC}, v{vT+6}")
            A(f"s_mul_i32 s12, {sF}, 5120"); A("s_lshl_b32 s69, s23, 10"); A("s_add_u32 s12, s12, s69"); A(f"s_add_u32 s12, s12, {WS_DP}")
        if wbar: A("s_barrier")
        poll([(vT+4, f"s{4+n}", 0, None) for n in range(4)], RING, tags=(1, 3))
        for n in range(4):
            for r in range(4):
                src, sel = RING + 4*n + 2*(r // 2), (SEL0, SEL1)[r % 2]
                if n == 0: A(f"v_dot2_f32_bf16 v{TMP+r}, v{src}, v{sel}, 0")
                else: A(f"v_dot2c_f32_bf16 v{TMP+r}, v{src}, v{sel}")
        if last: stamp(9)
        A(f"v_permlane32_swap_b32 v{TMP}, v{TMP+2}"); A(f"v_permlane32_swap_b32 v{TMP+1}, v{TMP+3}")
        A(f"v_pk_add_f32 {v2(TMP)}, {v2(TMP)}, {v2(TMP+2)}")
        A(f"v_pk_fma_f32 {v2(X0)}, {v2(TMP)}, {v2(GA)}, {v2(X0)}")
        A(f"v_add_f32 v{TMP}, v{X0}, v{X0+1}"); A(f"v_mul_f32 v{TMP+1}, v{X0}, v{X0}"); A(f"v_fmac_f32 v{TMP+1}, v{X0+1}, v{X0+1}")
        A(f"ds_write_b64 v{vT+3}, {v2(X0)} offset:{L_X2}")
        dpp_red("v_add_f32", [TMP, TMP+1], QUAD + BANK + BCAST)
        A("s_mov_b32 exec_lo, 0"); A("s_brev_b32 exec_hi, 1")
        A(f"ds_write_b64 v{vADDR}, {v2(TMP)} offset:{L_ST}")
        A("s_mov_b64 exec, -1")
        A("s_waitcnt lgkmcnt(0)")
    A("s_mov_b32 s23, 4")
    gather(False)
    if wbar:
        A("s_branch L_gemv")
        A.label("L_gemv0")
        A("s_barrier")
    A.label("L_gemv")
    A("s_barrier")
    ST = vAOP; XX = RING + 40
    A(f"ds_read_b128 {v4(ST)}, v{vZERO} offset:{L_ST}"); A(f"ds_read_b128 {v4(ST+4)}, v{vZERO} offset:{L_ST+16}"); A(f"ds_read_b64 {v2(ST+8)}, v{vZERO} offset:{L_ST+32}")
    A(f"ds_read_b128 {v4(XX)}, v{vT+8} offset:{L_X2}"); A(f"ds_read_b32 v{XX+4}, v{vT+9} offset:{L_X2}")
    A(f"v_mov_b32 v{TMP+2}, {fh(1e-5)}")
    A("s_waitcnt lgkmcnt(2)" if not stamps else "s_waitcnt lgkmcnt(0)")
    sum2([ST+2*n for n in range(5)], TMP)
    A(f"v_mul_f32 v{TMP}, {fh(1.0/640)}, v{TMP}")
    A(f"v_fmac_f32 v{TMP+2}, {fh(1.0/640)}, v{TMP+1}")
    A(f"v_fma_f32 v{TMP+2}, -v{TMP}, v{TMP}, v{TMP+2}")
    A(f"v_max_f32 v{TMP+2}, {fh(1e-5)}, v{TMP+2}")
    A(f"v_rsq_f32 v{TMP+2}, v{TMP+2}")
    A("s_waitcnt lgkmcnt(0)")
    for y in range(5): A(f"v_sub_f32 v{XX+y}, v{XX+y}, v{TMP}")
    for y in range(5): A(f"v_mul_f32 v{XX+y}, v{XX+y}, v{CC[y]}")
    for y in range(5): A(f"v_fmac_f32 v{SS[y]}, v{XX+y}, v{TMP+2}")
    for y in range(5): A(f"v_cvt_pk_bf16_f32 v{SS[y]}, v{SS[y]}, v{SS[y]}")
    gemv(vACC, vM1, [(SS[y], qp(k), WT+4*(y*4+k), None) for y in range(5) for k in range(4)])
    acc_write(vT+5)
    A("s_waitcnt lgkmcnt(0)")
    A("s_barrier")
    if stamps:
        A(f"s_cmp_lg_u32 {sWAVE}, 1"); A("s_cbranch_scc1 L_ns8")
        stamp_dump([8]); A("s_endpgm")
        A.label("L_ns8")
    A(f"s_cmp_lg_u32 {sWAVE}, 3"); A("s_cbranch_scc1 L_exit")
    A(f"s_cmp_ge_u32 {sF}, 40"); A("s_cbranch_scc1 L_end")
    A(f"ds_read_b32 v{X0}, v{vTKT} offset:{L_X2}")
    FB = RING
    A(f"v_mov_b32 v{FB+24}, 0"); A(f"v_mov_b32 v{FB+25}, 0"); A(f"v_mov_b32 v{FB+27}, {sTAG}")
    A("s_mov_b32 s68, -1"); A("s_mov_b32 s69, 0xffff")
    srd(SB, "s26", "s27", 1280)
    A("s_waitcnt lgkmcnt(0)")
    A("s_barrier")
    poll([(vL, f"s{13+n}", 0, None if n < 6 else "s[68:69]") for n in range(7)], FB)
    sum2([FB+4*n for n in range(7)], GA)
    stamp(11)
    A(f"v_permlane32_swap_b32 v{GA}, v{GA+1}"); A(f"v_add_f32 v{GA}, v{GA}, v{GA+1}")
    xrow("v_add_f32", GA, GA+1, 16)
    A(f"v_add_f32_dpp v{GA}, v{GA}, v{GA} row_ror:8 {DPPF}")
    A(f"v_fma_f32 v{GA}, v{GA}, v{GB}, v{X0}"); A(f"v_cvt_pk_bf16_f32 v{GA}, v{GA}, v{GA}")
    A("s_mov_b32 exec_lo, 0xff"); A("s_mov_b32 exec_hi, 0xff")
    A(f"buffer_store_short v{GA}, v{vONE}, {SB}, 0 offen sc1")
    A(f"s_cmp_lg_u32 {sF}, 0"); A("s_cbranch_scc1 L_fin_dump")
    A("s_mov_b64 exec, 1"); A(f"v_mov_b32 v{GA+1}, {sTAG}")
    A(f"buffer_store_dword v{GA+1}, v{vZERO}, {SWS}, 0 offen sc1")
    A.label("L_fin_dump")
    if stamps:
        A("s_waitcnt vmcnt(0)"); stamp(12)
        stamp_dump([11, 12])
    A("s_endpgm")
    A.label("L_gprep")
    A(f"s_and_b32 s23, {sWAVE}, 3")
    gather(True)
    if DNP == 0 and not (now & 1): dn_issue("L_dnd0"); A.label("L_dnd0")
    A("s_barrier")
    if DNP == 1 and not (now & 1): dn_issue("L_dnd1"); A.label("L_dnd1")
    A("s_barrier")
    RD = WT
    for k in range(4): A(f"ds_read2st64_b32 {v2(RD+2*k)}, v{vT+6} offset0:{2*k} offset1:{2*k+1}")
    A("s_waitcnt lgkmcnt(0)")
    sum2([RD+2*k for k in range(4)])
    A(f"v_add_f32 v{RD}, v{RD}, v{RD+1}")
    A(f"v_mul_f32 v{RD+2}, {fh(-LOG2E)}, v{RD}"); A(f"v_exp_f32 v{RD+2}, v{RD+2}")
    A(f"v_mul_f32_dpp v{RD+1}, v{RD}, v{RD} row_ror:8 {DPPF}")
    A(f"v_add_f32 v{RD+2}, 1.0, v{RD+2}"); A(f"v_rcp_f32 v{RD+2}, v{RD+2}")
    A(f"v_mul_f32 v{RD}, v{RD+1}, v{RD+2}")
    A(f"v_cvt_pk_bf16_f32 v{RD}, v{RD}, v{RD}")
    A("s_waitcnt vmcnt(0)")
    A(f"s_cmp_eq_u32 {sWAVE}, 5"); A("s_cbranch_scc1 L_down2")
    gemv(vACC, vM2, [(RD, f"row_newbcast:{t}", WD+4*t, None) for t in range(8)])
    publish(vACC, vLANE16 if linD else vNAT, "s12")
    A("s_endpgm")
    A.label("L_down2")
    gemv(vACC, vM2, [(RD, f"row_newbcast:{t}", WD+4*t, None) for t in range(8)], ACC2, WD2)
    A(f"v_mov_b32 v{vACC+3}, {sTAG}"); A(f"v_mov_b32 v{ACC2+3}, {sTAG}")
    A(f"buffer_store_dwordx4 {v4(vACC)}, v{vLANE16 if linD else vNAT}, {SWS}, s12 offen sc1")
    A(f"buffer_store_dwordx4 {v4(ACC2)}, v{vLANE16 if linD else vNAT}, {SWS}, s12 offen offset:3072 sc1")
    stamp(10)
    A("s_waitcnt vmcnt(0)")
    A("s_barrier")
    stamp_dump([9, 10])
    A("s_endpgm")
    A.label("L_wo")
    A(f"v_lshrrev_b32 v{vT+4}, 5, v{vLANE}"); A(f"v_lshlrev_b32 v{vT+4}, 10, v{vT+4}")
    A(f"v_and_b32 v{vT+6}, 31, v{vLANE}"); A(f"v_lshl_add_u32 v{vT+4}, v{vT+6}, 4, v{vT+4}")
    A(f"s_lshr_b32 s4, {sWAVE}, 1"); A("s_lshl_b32 s4, s4, 3"); A(f"s_add_u32 s4, s4, {sG}"); A("s_lshl_b32 s4, s4, 13")
    A(f"s_and_b32 s5, {sWAVE}, 1"); A("s_lshl_b32 s5, s5, 9"); A("s_add_u32 s4, s4, s5"); A(f"s_add_u32 s4, s4, {WS_OP}"); A("s_add_u32 s5, s4, 4096")
    acc_addr(vT+5)
    A(f"v_lshrrev_b32 v{vT+8}, 5, v{vLANE}"); A(f"v_lshlrev_b32 v{vT+7}, 11, v{vT+8}"); A(f"v_lshl_add_u32 v{vT+7}, v{vT+6}, 3, v{vT+7}")
    A(f"v_mul_u32_u24 v{vT+8}, 20480, v{vT+8}"); A(f"v_lshl_add_u32 v{vT+8}, v{vT+6}, 3, v{vT+8}")
    A(f"s_mul_i32 s6, {sG}, 2560"); A(f"s_lshl_b32 s7, {sK}, 8"); A("s_add_u32 s6, s6, s7"); A(f"s_add_u32 s6, s6, {WS_YP}")
    for c in range(1, 4): A(f"s_add_u32 s{12+c}, s6, {c*40960}")
    poll([(vT+4, "s4" if n < 2 else "s5", (n % 2)*2048, None) for n in range(4)], RING)
    stamp(7)
    sum2([RING+4*n for n in range(4)], TMP)
    A(f"v_permlane32_swap_b32 v{TMP}, v{TMP+1}")
    A(f"v_add_f32 v{TMP}, v{TMP}, v{TMP+1}")
    A(f"v_cvt_pk_bf16_f32 v{TMP}, v{TMP}, v{TMP}")
    ysplit([TMP], TMP+2)
    gemv(vACC, vM1, [(TMP + 2 + n // 4, qp(n % 4), WT+4*n, None) for n in range(8)])
    acc_write(vT+5)
    A("s_waitcnt lgkmcnt(0)")
    A("s_barrier")
    A(f"s_cmp_lg_u32 {sWAVE}, 0"); A("s_cbranch_scc1 L_end")
    for n in range(8): A(f"ds_read_b64 {v2(WT+2*n)}, v{vT+7} offset:{L_ACC+256*n}")
    A("s_waitcnt lgkmcnt(0)")
    sum2([WT+2*n for n in range(8)])
    A(f"v_mov_b32 v{WT+2}, v{WT}"); A(f"v_mov_b32 v{WT+3}, v{WT+1}")
    A(f"v_permlane32_swap_b32 v{WT}, v{WT+2}"); A(f"v_permlane32_swap_b32 v{WT+1}, v{WT+3}")
    A(f"v_pk_add_f32 {v2(WT)}, {v2(WT)}, {v2(WT+2)}")
    A(f"v_cvt_pk_bf16_f32 v{WT}, v{WT}, v{WT+1}"); A(f"v_mov_b32 v{WT+1}, {sTAG}")
    for so in ("s6", "s13", "s14", "s15"): A(f"buffer_store_dwordx2 {v2(WT)}, v{vT+8}, {SWS}, {so} offen sc1")
    stamp(13)
    A.label("L_exit")
    if stamps:
        A(f"s_cmp_lg_u32 {sWAVE}, 0"); A("s_cbranch_scc1 L_end")
        stamp_dump([0, 13, 6, 7] + ([1, 2, 3, 4, 5] if stamps not in (4, 6, 8) else []), xcc=True)
    A("s_endpgm")

    A.label("L_help")
    A("s_waitcnt lgkmcnt(0)")
    A("s_barrier")
    A(f"s_cmp_lt_u32 {sK}, 24"); A("s_cbranch_scc1 L_hnoq")
    A(f"s_sub_u32 s39, {sWAVE}, 5")
    A(f"s_bfe_u32 s68, {sK}, 0x10002"); A("s_add_u32 s68, s68, s39"); A("s_cmp_lt_u32 s68, 3"); A("s_cbranch_scc1 L_ctrl_q")
    common_setup()
    A(f"v_lshlrev_b32 v{vT}, 3, v{vLANE}"); A(f"v_mov_b32 v{vACC}, 0"); A(f"v_mov_b32 v{vACC+1}, 0")
    A(f"ds_write_b64 v{vT}, {v2(vACC)} offset:{L_ACC + 512}")
    A("s_waitcnt lgkmcnt(0)")
    A("s_mov_b64 exec, 1"); A(f"ds_add_u32 v{vZERO}, v{vONE} offset:{L_MF}"); A("s_mov_b64 exec, -1")
    A("s_branch L_soft")
    A.label("L_hnoq")
    A(f"s_sub_u32 s37, {sK}, 5"); A("s_cmp_ge_u32 s37, 5"); A("s_cbranch_scc1 L_hnomod")
    A("s_lshl_b32 s37, s37, 3"); A(f"s_add_u32 s37, s37, {sG}")
    A("s_lshr_b32 s38, s37, 1"); A("s_and_b32 s39, s37, 1")
    A("s_mul_i32 s6, s39, 20480"); A("s_lshl_b32 s7, s38, 10"); A("s_add_u32 s6, s6, s7"); A(f"s_add_u32 s6, s6, {WS_MR}")
    A("s_add_u32 s38, s38, 10"); A("s_lshl_b32 s39, s39, 1"); A(f"s_add_u32 s39, s39, {sWAVE}"); A("s_sub_u32 s39, s39, 6")
    mod_loads("s38", "s39")
    common_setup()
    mod_compute()
    A(f"v_lshlrev_b32 v{vT}, 3, v{vLANE}")
    A(f"s_cmp_eq_u32 {sWAVE}, 6"); A("s_cbranch_scc1 L_hsum")
    A(f"ds_write_b64 v{vT}, {v2(vACC)} offset:{L_ACC}")
    A("s_waitcnt lgkmcnt(0)")
    A(f"ds_write_b32 v{vZERO}, v{vONE} offset:{L_MF}")
    A("s_branch L_soft")
    A.label("L_hsum")
    lds_wait(L_MF, 1)
    A(f"ds_read_b64 {v2(vR)}, v{vT} offset:{L_ACC}")
    A("s_waitcnt lgkmcnt(0)")
    A(f"v_pk_add_f32 {v2(vACC)}, {v2(vACC)}, {v2(vR)}")
    publish(vACC, vLANE16 if linP else vNAT, "s6")
    A("s_branch L_help7")
    A.label("L_hnomod")
    if EW and not abl and not (now & 1):
        if len(EW) == 1: A(f"s_cmp_lg_u32 {sWAVE}, {EW[0]}"); A("s_cbranch_scc1 L_hne")
        A(f"s_sub_u32 s37, {sWAVE}, 4")
        gu_loads("L_hne", CTH, "s37")
        A.label("L_hne")
    common_setup()
    A(f"s_cmp_lg_u32 {sWAVE}, 7"); A("s_cbranch_scc1 L_help7")
    A.label("L_soft")
    A(f"s_lshl_b32 s6, {sHD}, 13"); A(f"s_add_u32 s6, s6, {WS_SP}")
    A(f"s_lshl_b32 s8, {sS}, 10"); A("s_add_u32 s8, s8, s6")
    A("s_add_u32 s6, s6, s30"); A("s_addc_u32 s7, s31, 0")
    A(f"v_lshlrev_b32 v{vT}, 3, v{vLANE}")
    if abl & 4:
        A(f"ds_write_b32 v{vZERO}, v{vONE} offset:{L_PF}"); A("s_waitcnt lgkmcnt(0)"); A("s_branch L_join"); A.label("L_abl4")
    lds_wait(L_KT, 120, slow=True)
    lds_wait(L_KD, NL + (1 if any(QK) else 0), slow=True, slp=SLK)
    if KAP: A("s_memrealtime s[10:11]")
    E = RING
    for n in range(8): A(f"ds_read_b128 {v4(E+4*n)}, v{vLANE16} offset:{L_P + 1024*n}")
    A("s_waitcnt lgkmcnt(0)")
    A(f"v_cvt_pk_bf16_f32 v{vACC}, v{E+28}, v{E+29}"); A(f"v_cvt_pk_bf16_f32 v{vACC+1}, v{E+30}, v{E+31}")
    lanes0 = (NS - 112) * 4
    if lanes0: A(f"s_lshl_b64 exec, -1, {lanes0}")
    A(f"buffer_store_dwordx2 {v2(vACC)}, v{vT}, {SWS}, s8 offen sc1")
    if lanes0: A("s_mov_b64 exec, -1")
    m = vR
    A(f"v_max3_f32 v{m}, v{E}, v{E+1}, v{E+2}"); A(f"v_max3_f32 v{m+1}, v{E+3}, v{E+4}, v{E+5}")
    for i in range(6, 32, 4):
        A(f"v_max3_f32 v{m}, v{m}, v{E+i}, v{E+i+1}")
        if i + 3 < 32: A(f"v_max3_f32 v{m+1}, v{m+1}, v{E+i+2}, v{E+i+3}")
    A(f"v_max_f32 v{m}, v{m}, v{m+1}")
    wave_red("v_max_f32", m, m+1)
    A(f"v_mul_f32 v{m}, {sL2E}, v{m}")
    for i in range(32): A(f"v_fma_f32 v{E+i}, v{E+i}, {sL2E}, -v{m}")
    for i in range(32): A(f"v_exp_f32 v{E+i}, v{E+i}")
    A(f"v_pk_add_f32 {v2(m+2)}, {v2(E)}, {v2(E+2)}")
    for i in range(4, 32, 2): A(f"v_pk_add_f32 {v2(m+2)}, {v2(m+2)}, {v2(E+i)}")
    A(f"v_add_f32 v{m+2}, v{m+2}, v{m+3}")
    wave_red("v_add_f32", m+2, m+1)
    A(f"v_log_f32 v{vACC+2}, v{m+2}")
    A(f"v_add_f32 v{vQ}, v{vACC+2}, v{m}"); A(f"v_mov_b32 v{vQ+1}, {sTAG}"); A(f"v_mov_b32 v{vQ+2}, s10")
    A("s_waitcnt vmcnt(0)")
    A("s_mov_b64 exec, 1")
    A(f"buffer_store_dwordx4 {v4(vQ)}, v{vZERO}, {SWS}, s8 offen offset:512 sc1")
    A("s_mov_b64 exec, -1")
    R = [40, 42, 44, 46, 52, 54, 56, 58]
    A(f"s_mov_b32 {sTO}, 0x40000")
    A.label("L_lam")
    if lsl: A(f"s_sleep {lsl}")
    for n in range(8): A(f"s_load_dwordx2 s[{R[n]}:{R[n]+1}], s[6:7], {n*1024 + 512} glc")
    A(f"s_sub_u32 {sTO}, {sTO}, 1"); A(f"s_cmp_eq_u32 {sTO}, 0"); A("s_cbranch_scc1 L_lamd")
    A("s_waitcnt lgkmcnt(0)")
    for n in range(8):
        A(f"s_cmp_lg_u32 s{R[n]+1}, {sTAG}"); A("s_cbranch_scc1 L_lam")
    A.label("L_lamd")
    A("s_waitcnt lgkmcnt(0)")
    lam = [RING + 32 + n for n in range(8)]
    for n in range(8): A(f"v_mov_b32 v{lam[n]}, s{R[n]}")
    if KAP:
        for n in range(8): A(f"s_load_dword s{R[n]+1}, s[6:7], {n*1024 + 520} glc")
    t = vA_
    A(f"v_max3_f32 v{t}, v{lam[0]}, v{lam[1]}, v{lam[2]}"); A(f"v_max3_f32 v{t}, v{t}, v{lam[3]}, v{lam[4]}")
    A(f"v_max3_f32 v{t}, v{t}, v{lam[5]}, v{lam[6]}"); A(f"v_max_f32 v{t}, v{t}, v{lam[7]}")
    for n in range(8): A(f"v_sub_f32 v{lam[n]}, v{lam[n]}, v{t}")
    for n in range(8): A(f"v_exp_f32 v{lam[n]}, v{lam[n]}")
    for n in range(1, 8): A(f"v_add_f32 v{lam[0]}, v{lam[0]}, v{lam[n]}")
    A(f"v_log_f32 v{lam[0]}, v{lam[0]}")
    A(f"v_add_f32 v{t}, v{t}, v{lam[0]}")
    A(f"v_sub_f32 v{m}, v{m}, v{t}"); A(f"v_exp_f32 v{m}, v{m}")
    A(f"ds_write_b32 v{vZERO}, v{t} offset:{L_LAM}")
    for i in range(32): A(f"v_mul_f32 v{E+i}, v{E+i}, v{m}")
    for i in range(32): A(f"v_cvt_pk_bf16_f32 v{E+i}, v{E+i}, v{E+i}")
    for n in range(8): A(f"ds_write_b128 v{vLANE16}, {v4(E+4*n)} offset:{L_P + 1024*n}")
    A("s_waitcnt lgkmcnt(0)")
    A(f"ds_write_b32 v{vZERO}, v{vONE} offset:{L_PF}")
    if KAP:
        A("s_mov_b32 s9, 0")
        for n in range(8):
            A(f"s_sub_u32 s68, s10, s{R[n]+1}"); A("s_add_u32 s9, s9, s68")
        A("s_ashr_i32 s9, s9, 3"); A(f"s_sub_i32 s9, s9, {LAG0}"); A("s_max_i32 s9, s9, 0"); A("s_min_i32 s9, s9, 1000")
        A(f"s_mul_i32 s9, s9, {KAP}"); A("s_lshr_b32 s9, s9, 8"); A(f"s_min_u32 s9, s9, {CAP}"); A("s_add_u32 s9, s9, 1")
        A(f"v_mov_b32 v{vT}, s9"); A(f"ds_write_b32 v{vZERO}, v{vT} offset:{L_N6}")
    A("s_setprio 0")
    if stamps == 8:
        lds_wait(L_VT, 92, slow=True, slp=2); stamp(4); lds_wait(L_VT, 112, slow=True, slp=2); stamp(5); stamp_dump([4, 5], final=False)
    if stamps:
        stamp(14); stamp_dump([14], final=False)
    A("s_waitcnt lgkmcnt(0)")
    A("s_branch L_join")
    A.label("L_help7")
    if any(QK):
        A(f"s_bitcmp1_b32 {sK}, 2"); A(f"s_cselect_b32 s37, {QK[6]}, {QK[5]}")
        for lim, q_ in ((24, QK[4]), (22, QK[3]), (17, QK[2]), (10, QK[1]), (5, QK[0])):
            A(f"s_cmp_lt_u32 {sK}, {lim}"); A(f"s_cselect_b32 s37, {q_}, s37")
        A("s_cmp_eq_u32 s37, 0"); A("s_cbranch_scc1 L_xkd")
        A("s_load_dwordx2 s[6:7], s[0:1], 8")
        A(f"s_mul_i32 {sST}, {sHD}, {ROT}"); A(f"s_lshl_b32 s68, {sS}, 7"); A(f"s_add_u32 {sST}, {sST}, s68")
        A(f"s_lshl_b32 s68, {sHD}, 22")
        A(f"v_and_b32 v{vPB}, 60, v{vLANE}")
        A(f"v_and_b32 v{vT}, 15, v{vLANE}"); A(f"v_lshlrev_b32 v{vT}, 4, v{vT}")
        A("s_waitcnt lgkmcnt(0)")
        A("s_add_u32 s40, s6, s68"); A("s_addc_u32 s41, s7, 0"); A("s_mov_b32 s42, 0x400000"); A("s_mov_b32 s43, 0x20000")
        lds_wait(L_QF, 1, slow=True)
        A(f"ds_read_b128 {v4(vQ)}, v{vT} offset:{L_Q}")
        A.label("L_xk")
        req(L_KT)
        A("s_waitcnt lgkmcnt(0)")
        A(f"v_readfirstlane_b32 {sTK}, v{vTKT}")
        A(f"s_cmp_ge_u32 {sTK}, 128"); A("s_cbranch_scc1 L_xkd")
        tile_addr(sTK, sST)
        load(SK, 0)
        A(f"s_lshl_b32 s68, {sTK}, 6"); A(f"v_add_u32 v{vE_}, s68, v{vPB}")
        A("s_waitcnt vmcnt(0)")
        qk(0, vE_, L_P)
        A("s_sub_u32 s37, s37, 1"); A("s_cmp_lg_u32 s37, 0"); A("s_cbranch_scc1 L_xk")
        A.label("L_xkd")
        A("s_waitcnt lgkmcnt(0)")
        A("s_mov_b64 exec, 1"); A(f"ds_add_u32 v{vZERO}, v{vONE} offset:{L_KD}"); A("s_mov_b64 exec, -1")
        A("s_waitcnt lgkmcnt(0)")
    if KAP:
        A("s_load_dwordx2 s[6:7], s[0:1], 16")
        A(f"s_mul_i32 {sST}, {sHD}, {ROT}"); A(f"s_lshl_b32 s68, {sS}, 7"); A(f"s_add_u32 {sST}, {sST}, s68")
        A(f"s_lshl_b32 s68, {sHD}, 22")
        A(f"v_and_b32 v{vPB}, 60, v{vLANE}")
        for r in range(4): A(f"v_mov_b32 v{vACC+r}, 0")
        A("s_waitcnt lgkmcnt(0)")
        A("s_add_u32 s44, s6, s68"); A("s_addc_u32 s45, s7, 0"); A("s_mov_b32 s46, 0x400000"); A("s_mov_b32 s47, 0x20000")
        lds_wait(L_N6, 1, slow=True)
        A("s_waitcnt lgkmcnt(0)")
        A(f"v_readfirstlane_b32 s37, v{vBAD}")
        A.label("L_xv")
        A("s_cmp_le_u32 s37, 1"); A("s_cbranch_scc1 L_xvd")
        req(L_VT)
        A("s_waitcnt lgkmcnt(0)")
        A(f"v_readfirstlane_b32 {sTK}, v{vTKT}")
        A(f"s_cmp_ge_u32 {sTK}, {NS}"); A("s_cbranch_scc1 L_xvd")
        tile_addr(sTK, sST)
        load(SV, 0)
        A(f"s_lshl_b32 s68, {sTK}, 6"); A(f"v_add_u32 v{vE_}, s68, v{vPB}")
        A(f"ds_read_b32 v{vE_}, v{vE_} offset:{L_P}")
        A("s_waitcnt lgkmcnt(0)")
        build(vE_)
        A("s_waitcnt vmcnt(0)")
        mm(0)
        A("s_sub_u32 s37, s37, 1"); A("s_branch L_xv")
        A.label("L_xvd")
        A(f"v_lshrrev_b32 v{vT}, 1, v{vNAT}")
        A(f"ds_write_b64 v{vT}, {v2(vACC)} offset:{L_PART + 512*NL}")
        A("s_waitcnt lgkmcnt(0)")
    A("s_branch L_join")

    A.label("L_ctrl0")
    A("s_setprio 3")
    A(f"v_mov_b32 v{vT+4}, {KT0}"); A(f"v_mov_b32 v{vT+5}, {VT0}"); A(f"v_mov_b32 v{vT+6}, 0"); A(f"v_mov_b32 v{vT+7}, 0")
    A(f"ds_write_b128 v{vZERO}, {v4(vT+4)} offset:{L_KT}")
    A(f"ds_write_b64 v{vZERO}, {v2(vT+6)} offset:{L_KD}"); A(f"ds_write_b64 v{vZERO}, {v2(vT+6)} offset:{L_MF}")
    A("s_waitcnt lgkmcnt(0)")
    A("s_barrier")
    if abl & 2:
        common_setup()
        A(f"s_lshl_b32 s68, {sHD}, 8"); A(f"s_add_u32 s68, s68, {WS_CNT}")
        A("s_mov_b64 exec, 1"); A(f"buffer_store_dword v{vZERO}, v{vZERO}, {SWS}, s68 offen sc1"); A("s_mov_b64 exec, -1")
        A(f"v_lshlrev_b32 v{vT}, 2, v{vLANE}"); A(f"v_mov_b32 v{vT+1}, 0x3f803f80"); A(f"ds_write_b32 v{vT}, v{vT+1} offset:{L_Q}"); A("s_waitcnt lgkmcnt(0)")
        A(f"ds_write_b32 v{vZERO}, v{vONE} offset:{L_QF}")
        A("s_branch L_ctrl_w"); A.label("L_abl2")
    A("s_mov_b32 s39, 0")
    A(f"s_cmp_ge_u32 {sK}, 24"); A("s_cbranch_scc1 L_ctrl_q")
    A(f"s_sub_u32 s38, {sK}, 17"); A("s_cmp_ge_u32 s38, 5"); A("s_cbranch_scc1 L_ctrl_none")
    A("s_lshl_b32 s38, s38, 3"); A(f"s_add_u32 s38, s38, {sG}")
    A("s_lshl_b32 s6, s38, 10"); A(f"s_add_u32 s6, s6, {WS_MODP}")
    A("s_and_b32 s39, s38, 3"); A("s_lshr_b32 s38, s38, 2")
    mod_loads("s38", "s39")
    common_setup()
    mod_compute()
    publish(vACC, vLANE16 if linP else vNAT, "s6")
    stamp(1)
    A("s_branch L_hop2")
    A.label("L_ctrl_none")
    if cearly and cstart and not abl: tail_loads(True)
    common_setup()
    A("s_branch L_hop2")
    A.label("L_ctrl_q")
    WQ = RING + 64
    XA = RING
    X0, X1 = 24, 25
    A(f"s_and_b32 s38, {sK}, 3"); A("s_lshl_b32 s38, s38, 3"); A(f"s_add_u32 s38, s38, {sG}")
    A(f"s_bfe_u32 s37, {sK}, 0x10002"); A("s_mul_i32 s68, s37, 3"); A("s_add_u32 s39, s39, s68")
    srd(SB, "s4", "s5", 1280); srd(SA, "s10", "s11", 640*8192)
    A(f"v_lshlrev_b32 v{vT+2}, 2, v{vLANE}")
    for k in range(5): A(f"buffer_load_dword v{XA+2*k+1}, v{vT+2}, {SB}, 0 offen offset:{k*256}")
    A("s_lshl_b32 s68, s39, 8")
    A(f"v_lshrrev_b32 v{vT}, 4, v{vLANE}"); A(f"v_and_b32 v{vT+1}, 15, v{vLANE}")
    if linP: A(f"v_lshlrev_b32 v{vT+2}, 2, v{vT}"); A(f"v_lshl_add_u32 v{vT+2}, v{vT+1}, 4, v{vT+2}")
    A(f"buffer_load_dword v{X1}, v{vT+2}, {SB}, s68 offen")
    A(f"v_lshlrev_b32 v{vT}, {14 if linP else 18}, v{vT}")
    A(f"v_lshl_add_u32 v{vT+3}, v{vT+1}, 4, v{vT}")
    A("s_lshl_b32 s69, s39, 20"); A("s_lshl_b32 s68, s38, 8"); A("s_add_u32 s69, s69, s68")
    for n in range(32):
        u, j = n // 16, n % 16
        A(f"s_add_u32 s68, s69, {((8 if linP else 2)*j+u)*8192}")
        A(f"buffer_load_dwordx4 {v4(WQ+4*n)}, v{vT+3}, {SA}, s68 offen {pol}")
    common_setup()
    A("s_lshl_b32 s68, s38, 8"); A(f"s_add_u32 s68, s68, {WS_CNT}")
    A("s_cmp_lg_u32 s39, 0"); A("s_cbranch_scc1 L_nocnt")
    A("s_mov_b64 exec, 1")
    A(f"buffer_store_dword v{vZERO}, v{vZERO}, {SWS}, s68 offen sc1")
    A("s_mov_b64 exec, -1")
    A("s_waitcnt vmcnt(33)")
    A("s_branch L_cntj")
    A.label("L_nocnt")
    A("s_waitcnt vmcnt(32)")
    A.label("L_cntj")
    for k in range(5):
        A(f"v_lshlrev_b32 v{XA+2*k}, 16, v{XA+2*k+1}"); A(f"v_and_b32 v{XA+2*k+1}, 0xffff0000, v{XA+2*k+1}")
    A(f"v_lshlrev_b32 v{X0}, 16, v{X1}"); A(f"v_and_b32 v{X1}, 0xffff0000, v{X1}")
    t = vT + 8; a = XA
    A(f"v_add_f32 v{t}, v{a}, v{a+1}")
    for i in range(2, 10): A(f"v_add_f32 v{t}, v{t}, v{a+i}")
    wave_red("v_add_f32", t, t+1)
    A(f"v_mul_f32 v{t}, {fh(1.0/640)}, v{t}")
    for i in range(10): A(f"v_sub_f32 v{a+i}, v{a+i}, v{t}")
    A(f"v_mul_f32 v{t+2}, v{a}, v{a}")
    for i in range(1, 10): A(f"v_fmac_f32 v{t+2}, v{a+i}, v{a+i}")
    wave_red("v_add_f32", t+2, t+1)
    A(f"v_mul_f32 v{t+2}, {fh(1.0/640)}, v{t+2}")
    rbf2(t, t+2)
    A(f"v_add_f32 v{t+2}, {fh(1e-5)}, v{t+2}"); rbf(t+2, t+2)
    A(f"v_sqrt_f32 v{t+2}, v{t+2}"); rbf(t+2, t+2)
    A(f"v_rcp_f32 v{t+2}, v{t+2}")
    A(f"v_sub_f32 v{X0}, v{X0}, v{t}"); A(f"v_sub_f32 v{X1}, v{X1}, v{t}"); rbf2(X0, X1)
    A(f"v_mul_f32 v{X0}, v{X0}, v{t+2}"); A(f"v_mul_f32 v{X1}, v{X1}, v{t+2}"); rbf2(X0, X1)
    A("s_lshl_b32 s6, s39, 12"); A(f"s_add_u32 s6, s6, {WS_MODP}"); A(f"s_add_u32 s7, s6, {5*4096}")
    stamp(1)
    spre("s6", [(n // 4)*5*4096 + (n % 4)*1024 for n in range(8)])
    poll([(vLANE16, f"s{6+n//4}", (n % 4)*1024, None) for n in range(8)], RING)
    stamp(2)
    sum2([RING+4*n for n in range(4)]); sum2([RING+16+4*n for n in range(4)])
    rbf2(RING, RING+1); rbf2(RING+16, RING+17)
    c0, c1, s0, s1 = RING+16, RING+17, RING, RING+1
    A(f"v_add_f32 v{c0}, 1.0, v{c0}"); A(f"v_add_f32 v{c1}, 1.0, v{c1}"); rbf2(c0, c1)
    A(f"v_mul_f32 v{X0}, v{X0}, v{c0}"); A(f"v_mul_f32 v{X1}, v{X1}, v{c1}"); rbf2(X0, X1)
    A(f"v_add_f32 v{X0}, v{X0}, v{s0}"); A(f"v_add_f32 v{X1}, v{X1}, v{s1}")
    A(f"v_cvt_pk_bf16_f32 v{X0}, v{X0}, v{X0}"); A(f"v_cvt_pk_bf16_f32 v{X1}, v{X1}, v{X1}")
    gemv(vACC, vM2, [((X0, X1)[n // 16], f"row_newbcast:{n % 16}", WQ + 4*n, None) for n in range(32)])
    A(f"v_lshlrev_b32 v{vT}, 3, v{vLANE}")
    A(f"s_cmp_eq_u32 {sWAVE}, 0"); A("s_cbranch_scc1 L_qsum")
    A(f"s_lshl_b32 s68, {sWAVE}, 9"); A(f"v_add_u32 v{vT}, s68, v{vT}")
    A(f"ds_write_b64 v{vT}, {v2(vACC)} offset:{L_ACC - 6*512}")
    A("s_waitcnt lgkmcnt(0)")
    A("s_mov_b64 exec, 1"); A(f"ds_add_u32 v{vZERO}, v{vONE} offset:{L_MF}"); A("s_mov_b64 exec, -1")
    A("s_setprio 0")
    A(f"s_cmp_eq_u32 {sWAVE}, 7"); A("s_cbranch_scc1 L_soft")
    A("s_branch L_help7")
    A.label("L_qsum")
    lds_wait(L_MF, 2)
    A(f"ds_read_b64 {v2(RING)}, v{vT} offset:{L_ACC}"); A(f"ds_read_b64 {v2(RING+2)}, v{vT} offset:{L_ACC+512}")
    A("s_lshl_b32 s68, s38, 1"); A("s_add_u32 s68, s68, s37"); A("s_lshl_b32 s68, s68, 10"); A(f"s_add_u32 s68, s68, {WS_QP}")
    A("s_waitcnt lgkmcnt(0)")
    A(f"v_pk_add_f32 {v2(vACC)}, {v2(vACC)}, {v2(RING)}"); A(f"v_pk_add_f32 {v2(vACC)}, {v2(vACC)}, {v2(RING+2)}")
    publish(vACC, vLANE16 if linP else vNAT, "s68")
    A.label("L_hop2")
    stamp(3)
    A(f"s_lshl_b32 s6, {sHD}, 11"); A(f"s_add_u32 s6, s6, {WS_QP}")
    spre("s6", [n*1024 for n in range(2)])
    poll([(vLANE16, "s6", n*1024, None) for n in range(2)], RING)
    sum2([RING+4*n for n in range(2)])
    A(f"v_cvt_pk_bf16_f32 v{RING}, v{RING}, v{RING+1}")
    A(f"v_lshrrev_b32 v{vT}, 2, v{vNAT}" if linP else f"v_lshlrev_b32 v{vT}, 2, v{vLANE}")
    A(f"ds_write_b32 v{vT}, v{RING} offset:{L_Q}")
    A("s_waitcnt lgkmcnt(0)")
    A(f"ds_write_b32 v{vZERO}, v{vONE} offset:{L_QF}")
    stamp(4)
    A("s_setprio 0")
    A.label("L_ctrl_w")
    if abl: A("s_barrier"); A("s_endpgm"); A.label("L_abl_dead2")
    if cearly and not cstart: tail_loads(True)
    A(f"s_cmp_ge_u32 {sF}, 54"); A("s_cbranch_scc1 L_cnomr")
    srd(SB, "s4", "s5", 1280)
    A(f"v_lshlrev_b32 v{vT}, 2, v{vLANE}"); A(f"v_lshlrev_b32 v{vT+1}, 3, v{vLANE}")
    for k in range(5): A(f"buffer_load_dword v{vAOP+2*k+1}, v{vT}, {SB}, 0 offen offset:{k*256}")
    A("s_waitcnt vmcnt(0)")
    for k in range(5):
        A(f"v_lshlrev_b32 v{vAOP+2*k}, 16, v{vAOP+2*k+1}"); A(f"v_and_b32 v{vAOP+2*k+1}, 0xffff0000, v{vAOP+2*k+1}")
        A(f"ds_write_b64 v{vT+1}, {v2(vAOP+2*k)} offset:{L_X2 + 512*k}")
    if linP: A(f"v_lshrrev_b32 v{vT+1}, 1, v{vNAT}")
    for arr in range(4):
        for i, o in enumerate((0, 4096, 20480, 24576)): A(f"s_mov_b32 s{40+i}, {WS_MR + arr*5120 + o}")
        poll([(vLANE16, f"s{40 + 2*h + (k // 4)}", (k % 4)*1024, None) for k in range(5) for h in range(2)], RING)
        for k in range(5):
            b = RING + 8*k
            A(f"v_pk_add_f32 {v2(b)}, {v2(b)}, {v2(b+4)}"); rbf2(b, b+1)
            if arr == 2:
                A(f"v_add_f32 v{b}, 1.0, v{b}"); A(f"v_add_f32 v{b+1}, 1.0, v{b+1}"); rbf2(b, b+1)
            A(f"ds_write_b64 v{vT+1}, {v2(b)} offset:{L_MOD + arr*2560 + 512*k}")
    A.label("L_cnomr")
    A(f"s_lshl_b32 s8, {sHD}, 3"); A(f"s_add_u32 s8, s8, {sS}"); A("s_lshl_b32 s8, s8, 10"); A(f"s_add_u32 s8, s8, {WS_OP}")
    A(f"v_lshlrev_b32 v{vT}, 3, v{vLANE}"); A(f"v_mov_b32 v{TMP+3}, {sTAG}")
    A("s_waitcnt vmcnt(0) lgkmcnt(0)")
    stamp(5)
    A("s_barrier")
    stamp(6)
    NPART = NL + (1 if KAP else 0)
    for w in range(NPART): A(f"ds_read_b64 {v2(RING+2*w)}, v{vT} offset:{L_PART+512*w}")
    A("s_waitcnt lgkmcnt(0)")
    sum2([RING+2*w for w in range(NPART)], TMP)
    A(f"buffer_store_dwordx4 {v4(TMP)}, v{vLANE16}, {SWS}, s8 offen sc1")
    stamp(13)
    A("s_branch L_tail" if cearly else "s_branch L_tail0")
    A.label("L_end")
    A("s_endpgm")
    A('.section .rodata,"a"'); A(".p2align 6"); A(f".amdhsa_kernel {KN}")
    A(".amdhsa_next_free_vgpr 256"); A(".amdhsa_next_free_sgpr 100"); A(".amdhsa_accum_offset 256")
    A(".amdhsa_group_segment_fixed_size 0"); A(".amdhsa_kernarg_size 112"); A(".amdhsa_user_sgpr_count 2")
    A(".amdhsa_user_sgpr_kernarg_segment_ptr 1"); A(".amdhsa_system_sgpr_workgroup_id_x 1")
    A(".amdhsa_float_denorm_mode_32 3")
    A(".end_amdhsa_kernel")
    return A.finalize()

def check_inter(w, inter):
    import numpy as np
    def cmp(name, got, exp):
        err = np.abs(got - exp).max(); rel = np.linalg.norm(got - exp) / np.linalg.norm(exp)
        print("   inter %-5s maxabs %.4e (scale %.3e) relL2 %.3e nan=%d" % (name, err, np.abs(exp).max(), rel, int(np.isnan(got).sum())), got[:4], exp[:4])
    def bf(x):
        u = x.astype(np.float32).view(np.uint32); u = (u + 0x7fff + ((u >> 16) & 1)) & 0xffff0000
        return u.view(np.float32)
    gr = lambda off, n: w[off // 4: off // 4 + n*4].reshape(n, 4)
    md = np.concatenate([gr(WS_MODP, 10*4*64)[:, :2].reshape(10, 4, 128).sum(1).reshape(-1), gr(WS_MR, 2*1280)[:, :2].reshape(2, 2560).sum(0)])
    cmp("mod", md, inter["mod"]); print("      mod bf16 mismatches", int((bf(md) != inter["mod"]).sum()))
    q = gr(WS_QP, 32*2*64)[:, :2].reshape(32, 2, 128).sum(1).reshape(-1)
    cmp("q", q, inter["q"]); print("      q bf16 mismatches", int((bf(q) != inter["q"]).sum()))
    o = gr(WS_OP, 32*8*64)[:, :2].reshape(32, 8, 128).sum(1).reshape(-1)
    cmp("o", o, inter["o"]); print("      o bf16 mismatches", int((bf(o) != inter["o"]).sum()))
    yp = w[WS_YP // 4: WS_YP // 4 + 8*640].view(np.uint32).reshape(8, 320, 2)[:, :, 0]
    ya = np.stack([(yp << 16).view(np.float32), (yp & 0xffff0000).view(np.float32)], axis=-1).reshape(8, 640)
    cmp("at", ya.sum(0), inter["at"])
    cmp("dn", gr(WS_DP, 54*320)[:, :2].reshape(54, 640).sum(0), inter["dn"])

if __name__ == "__main__":
    out = sys.argv[1]
    kw = {}
    for a in sys.argv[2:]:
        k, v = a.split("=")
        kw[k] = eval(v)
    open(out, "w").write(gen(**kw))
```

```python
import sys, struct
from asmdsl import Asm
KN = "adaLN_cond__gqa_block_cached__swiglu_ffn__decode_kernel"

def f2u(x): return struct.unpack("<I", struct.pack("<f", x))[0]
def fh(x): return hex(f2u(x))
LOG2E = 1.4426950408889634
SCALE = 128 ** -0.5

WS_MODP = 0x1000
WS_QP   = WS_MODP + 10*4*1024
WS_SP   = WS_QP + 32*2*1024
WS_MR   = WS_SP + 32*8*1024
WS_CNT  = WS_MR + 2*20480
WS_BETA = WS_CNT + 32*256
WS_OP   = 0x200000
WS_YP   = WS_OP + 32*16384
WS_DP   = WS_YP + 32*16384
WS_PRB  = WS_DP + 40*16384
WS_END  = WS_PRB + 8*16384
WS_STAMP = 0x10000000
L_KT, L_VT, L_QF, L_PF, L_KD, L_RANK, L_MF, L_N6, L_LAM, L_BM = 0, 4, 8, 12, 16, 20, 24, 28, 32, 36
L_Q = 0x100
L_ST = 0x200
L_PART = 0x400
L_ACC = 0x1000
L_X2 = 0x2000
L_P = 0x3000
L_MOD = 0x5000
L_END = 0x7800
DPPF = "row_mask:0xf bank_mask:0xf"

def gen(stamps=0, pol="nt", NK=12, NV=10, NS=120, NL=5, SLP=16, wake=False, KAP=26, LAG0=20, CAP=20, SLK=4, psl=0, ROT=304, abl=0, PFTH=2, LTH=63, linD=True, linP=True, lsl=0, MAP=0, cwo=True, dbg=False, hold=0, dseq=True, rx=3, BM=None, NPR=22, cearly=True, CTH=63, QK=(0, 8, 4, 3, 0, 10, 6), cstart=True, tp="", pp="", DNP=1, wbar=False, EW=(), NR=4, TW=0, TWD=4, now=0, pf=True, pf2=True, Q_wo=999, Q_ffn=999):
    NP = 8 * (128 - NS); Q_wo = min(Q_wo, NP); Q_ffn = min(Q_ffn, NP)
    A = Asm()
    uid = [0]
    def U(p):
        uid[0] += 1; return f"L_{p}_{uid[0]}"
    sWAVE, sHD, sS, sTAG, sK, sG = "s3", "s32", "s33", "s34", "s35", "s36"
    SK, SV, SWS, SA, SB = "s[40:43]", "s[44:47]", "s[48:51]", "s[52:55]", "s[56:59]"
    sTP, sST, sL2E, sSC, sTO, sF, sTK = "s60", "s61", "s62", "s63", "s64", "s65", "s66"
    sROT, sQ, SCNT = "s37", "s29", "s[38:39]"
    def stamp(k):
        if stamps: A(f"s_memrealtime s[{70+2*k}:{71+2*k}]")
    def stamp_dump(slots, xcc=False, final=True):
        if not stamps: return
        A("s_waitcnt lgkmcnt(0)")
        A("s_mov_b64 exec, 1")
        A(f"s_lshl_b32 s69, s2, 7"); A(f"s_add_u32 s69, s69, {WS_STAMP}")
        A("s_mov_b32 s50, 0x20000000")
        for k in slots:
            A(f"v_mov_b32 v{vT+10}, s{70+2*k}"); A(f"v_mov_b32 v{vT+11}, s{71+2*k}")
            A(f"buffer_store_dwordx2 v[{vT+10}:{vT+11}], v{vZERO}, {SWS}, s69 offen offset:{k*8}")
            A("s_nop 1")
        if xcc:
            A("s_getreg_b32 s68, hwreg(HW_REG_XCC_ID)")
            A(f"v_mov_b32 v{vT+10}, s68"); A(f"v_mov_b32 v{vT+11}, 0")
            A(f"buffer_store_dwordx2 v[{vT+10}:{vT+11}], v{vZERO}, {SWS}, s69 offen offset:120")
        if not final: A("s_mov_b64 exec, -1")
    def dbg_rec(slot, a, b):
        A("s_waitcnt lgkmcnt(0)")
        A("s_load_dwordx2 s[90:91], s[0:1], 96"); A(f"s_sub_u32 s88, {b}, {a}"); A("s_mov_b32 s89, s88"); A("s_waitcnt lgkmcnt(0)")
        A(f"s_atomic_umax s88, s[90:91], {slot*4}"); A(f"s_atomic_add s89, s[90:91], {slot*4+4}"); A("s_waitcnt lgkmcnt(0)")
    sBM = "s28"
    def beta_get():
        if BM is not None:
            A(f"s_mov_b32 {sBM}, {BM}"); return
        A(f"ds_read_b32 v{vBAD}, v{vZERO} offset:{L_BM}")
        A("s_waitcnt lgkmcnt(0)")
        A(f"v_readfirstlane_b32 {sBM}, v{vBAD}")
    def side(dst, grp):
        A(f"s_lshr_b32 {dst}, {sBM}, {grp}"); A(f"s_and_b32 {dst}, {dst}, 1"); A(f"s_lshl_b32 {dst}, {dst}, 13")
    def srd(S, lo, hi, n):
        b = int(S[2:S.index(":")])
        A(f"s_mov_b32 s{b}, {lo}"); A(f"s_mov_b32 s{b+1}, {hi}"); A(f"s_mov_b32 s{b+2}, {n}"); A(f"s_mov_b32 s{b+3}, 0x20000")
    def v4(b): return f"v[{b}:{b+3}]"
    def v2(b): return f"v[{b}:{b+1}]"
    def dpp_red(op, vs, ctls):
        for ctl in ctls:
            for v in vs: A(f"{op}_dpp v{v}, v{v}, v{v} {ctl}")
    QUAD = [f"quad_perm:[1,0,3,2] {DPPF}", f"quad_perm:[2,3,0,1] {DPPF}"]
    BANK = [f"row_ror:4 {DPPF}", f"row_ror:8 {DPPF}"]
    BCAST = ["row_bcast:15 row_mask:0xa bank_mask:0xf", "row_bcast:31 row_mask:0xc bank_mask:0xf"]
    def xrow(op, v, t, which):
        A(f"v_mov_b32 v{t}, v{v}"); A(f"v_permlane{which}_swap_b32 v{v}, v{t}"); A(f"{op} v{v}, v{v}, v{t}")
    def wave_red(op, v, t):
        dpp_red(op, [v], QUAD + BANK); xrow(op, v, t, 16); xrow(op, v, t, 32)
    def rbf(d, s):
        A(f"v_cvt_pk_bf16_f32 v{d}, v{s}, v{s}"); A(f"v_and_b32 v{d}, 0xffff0000, v{d}")
    def rbf2(a, b):
        A(f"v_cvt_pk_bf16_f32 v{b}, v{a}, v{b}"); A(f"v_lshlrev_b32 v{a}, 16, v{b}"); A(f"v_and_b32 v{b}, 0xffff0000, v{b}")
    vLANE16, vZERO, vONE, vTKT, vADDR, vPB, vPW, vL = 1, 2, 3, 4, 5, 6, 7, 8
    vLANE, vNAT, vBAD = 9, 10, 11
    vQ, vM2, vACC = 12, 16, 20
    vR, vA_, vB_, vC_, vE_ = 24, 28, 29, 30, 31
    vAOP = 32
    vT = 48
    vM1 = 60
    RING = 64
    WT = RING + 48
    WD = WT + 80
    WD2 = WD + 32
    TMP = RING + 32
    ACC2 = RING + 40
    PF = RING + 44
    def publish(b, voff, soff):
        A(f"v_mov_b32 v{b+3}, {sTAG}")
        A(f"buffer_store_dwordx4 {v4(b)}, v{voff}, {SWS}, {soff} offen sc1")
    def poll(loads, base, tags=(3,), extra=None, nextra=0):
        n = len(loads)
        dst = base if isinstance(base, list) else [base + 4*i for i in range(n)]
        L = U("poll"); Ld = U("pdone")
        def one(k):
            for idx, (vo, so, imm, em) in enumerate(loads):
                if em is not None: A(f"s_mov_b64 exec, {em}")
                A(f"buffer_load_dwordx4 {v4(dst[idx])}, v{vo}, {SWS}, {so} offen offset:{imm} sc1")
                if em is not None: A("s_mov_b64 exec, -1")
            if k: extra()
            first = True
            for idx in range(n):
                d = dst[idx]
                A(f"s_waitcnt vmcnt({k + n-1-idx})")
                for tp in tags:
                    if first: A(f"v_xor_b32 v{vBAD}, {sTAG}, v{d+tp}"); first = False
                    else: A(f"v_bitop3_b32 v{vBAD}, v{vBAD}, v{d+tp}, {sTAG} bitop3:0xf6")
            A(f"v_cmp_ne_u32 vcc, 0, v{vBAD}")
            A(f"s_cbranch_vccz {Ld}")
        if extra: one(nextra)
        A(f"s_mov_b32 {sTO}, 0x40000")
        A.label(L)
        one(0)
        A(f"s_sub_u32 {sTO}, {sTO}, 1")
        A(f"s_cmp_lg_u32 {sTO}, 0")
        A(f"s_cbranch_scc1 {L}")
        A.label(Ld)
    def spre(sbase, offs, sl=None):
        R = [40, 41, 42, 43, 44, 45, 46, 47, 14, 15, 28, 29, 60, 61, 66, 67]
        L = U("spoll"); Ld = U("spd")
        A(f"s_add_u32 s68, s30, {sbase}"); A("s_addc_u32 s69, s31, 0")
        A(f"s_mov_b32 {sTO}, 0x40000")
        A.label(L)
        sl = psl if sl is None else sl
        if sl: A(f"s_sleep {sl}")
        for i, o in enumerate(offs): A(f"s_load_dword s{R[i]}, s[68:69], {o + 1020} glc")
        A(f"s_sub_u32 {sTO}, {sTO}, 1"); A(f"s_cmp_eq_u32 {sTO}, 0"); A(f"s_cbranch_scc1 {Ld}")
        A("s_waitcnt lgkmcnt(0)")
        for i, o in enumerate(offs):
            A(f"s_cmp_lg_u32 s{R[i]}, {sTAG}"); A(f"s_cbranch_scc1 {L}")
        A.label(Ld)
        A("s_waitcnt lgkmcnt(0)")
    def lds_wait(off, val, slow=False, slp=None):
        L = U("lw"); Ld = U("lwd")
        A(f"s_mov_b32 {sTO}, 0x400000")
        A.label(L)
        if slow: A(f"s_sleep {SLP if slp is None else slp}")
        A(f"ds_read_b32 v{vBAD}, v{vZERO} offset:{off}")
        A(f"s_sub_u32 {sTO}, {sTO}, 1"); A(f"s_cmp_eq_u32 {sTO}, 0"); A(f"s_cbranch_scc1 {Ld}")
        A("s_waitcnt lgkmcnt(0)")
        A(f"v_cmp_gt_u32 vcc, {val}, v{vBAD}")
        A(f"s_cbranch_vccnz {L}")
        A.label(Ld)
    def sum2(bases, dst=None):
        bs = list(bases)
        while len(bs) > 1:
            nb = []
            for i in range(0, len(bs) - 1, 2):
                d = dst if (dst is not None and len(bs) == 2) else bs[i]
                A(f"v_pk_add_f32 {v2(d)}, {v2(bs[i])}, {v2(bs[i+1])}"); nb.append(d)
            if len(bs) % 2: nb.append(bs[-1])
            bs = nb
    def gemv(acc, mask, items, acc2=None, w2=None, keep=False):
        def mf(n):
            (x0, c0, w0, wc0) = items[n]
            if wc0 is not None: A(f"s_waitcnt vmcnt({wc0})")
            A(f"v_mfma_f32_16x16x32_bf16 {v4(acc)}, {v4(vAOP + 4*(n % 4))}, {v4(w0)}, {'0' if (n == 0 and not keep) else v4(acc)}")
            if acc2 is not None:
                A(f"v_mfma_f32_16x16x32_bf16 {v4(acc2)}, {v4(vAOP + 4*(n % 4))}, {v4(w2+4*n)}, {'0' if n == 0 else v4(acc2)}")
        for n, (x, ctl, w, wc) in enumerate(items):
            a = vAOP + 4 * (n % 4)
            for t in range(4): A(f"v_and_b32_dpp v{a+t}, v{x}, v{mask+t} {ctl} {DPPF}")
            if n >= 1: mf(n-1)
        mf(len(items) - 1)
    def ysplit(xs, y):
        for i, x in enumerate(xs): A(f"v_mov_b32 v{y+2*i}, v{x}"); A(f"v_mov_b32 v{y+2*i+1}, v{x}")
        for i, x in enumerate(xs):
            A(f"v_mov_b32_dpp v{y+2*i}, v{x} row_shr:4 row_mask:0xf bank_mask:0xa")
            A(f"v_mov_b32_dpp v{y+2*i+1}, v{x} row_shl:4 row_mask:0xf bank_mask:0x5")
    qp = lambda k: f"quad_perm:[{k},{k},{k},{k}]"
    def silu(x, t):
        A(f"v_mul_f32 v{t}, {fh(-LOG2E)}, v{x}"); A(f"v_exp_f32 v{t}, v{t}")
        A(f"v_add_f32 v{t}, 1.0, v{t}"); A(f"v_rcp_f32 v{t}, v{t}"); A(f"v_mul_f32 v{x}, v{x}, v{t}")
    def acc_addr(d):
        A(f"v_and_b32 v{d}, 7, v{vLANE}"); A(f"v_lshlrev_b32 v{d}, 5, v{d}")
        A(f"v_and_b32 v{vT+11}, 16, v{vLANE}"); A(f"v_add_u32 v{d}, v{d}, v{vT+11}")
        A(f"v_lshrrev_b32 v{vT+11}, 5, v{vLANE}"); A(f"v_lshl_add_u32 v{d}, v{vT+11}, 8, v{d}")
        A(f"s_lshl_b32 s68, {sWAVE}, 9"); A(f"v_add_u32 v{d}, s68, v{d}")
    def acc_write(d):
        A("s_mov_b32 exec_lo, 0x00ff00ff"); A("s_mov_b32 exec_hi, 0xff00ff00")
        A(f"ds_write_b128 v{d}, {v4(vACC)} offset:{L_ACC}")
        A("s_mov_b64 exec, -1")
    def mod_loads(scb, srb):
        wb = RING
        srd(SA, "s24", "s25", 640*7680); srd(SB, "s22", "s23", 1280)
        A(f"v_lshrrev_b32 v{vT}, 4, v{vLANE}"); A(f"v_mul_u32_u24 v{vT}, 40, v{vT}")
        A(f"v_and_b32 v{vT+1}, 15, v{vLANE}"); A(f"v_add_u32 v{vT+2}, v{vT}, v{vT+1}"); A(f"v_lshlrev_b32 v{vT+2}, 1, v{vT+2}")
        A(f"v_and_b32 v{vT+3}, 7, v{vLANE}"); A(f"v_add_u32 v{vT+3}, v{vT}, v{vT+3}"); A(f"v_lshlrev_b32 v{vT+3}, 1, v{vT+3}")
        A(f"s_mul_i32 s69, {srb}, 320")
        A(f"buffer_load_ushort v{vR}, v{vT+2}, {SB}, s69 offen")
        A(f"buffer_load_ushort v{vR+1}, v{vT+2}, {SB}, s69 offen offset:32")
        A(f"buffer_load_ushort v{vR+2}, v{vT+3}, {SB}, s69 offen offset:64")
        A(f"v_mul_u32_u24 v{vT}, 7680, v{vT}"); A(f"v_lshl_add_u32 v{vT}, v{vT+1}, 4, v{vT}")
        A(f"s_mul_i32 s69, {srb}, {160*7680}"); A(f"s_lshl_b32 s68, {scb}, 8"); A("s_add_u32 s68, s69, s68")
        for t in range(40):
            A(f"buffer_load_dwordx4 {v4(wb+4*t)}, v{vT}, {SA}, s68 offen {pol}")
            if t < 39: A("s_add_u32 s68, s68, 7680")
    def mod_compute():
        wb = RING
        A("s_waitcnt vmcnt(40)")
        for k in range(3):
            A(f"v_lshlrev_b32 v{vR+k}, 16, v{vR+k}"); silu(vR+k, vR+3); A(f"v_cvt_pk_bf16_f32 v{vR+k}, v{vR+k}, v{vR+k}")
        gemv(vACC, vM2, [(vR + t // 16, f"row_newbcast:{t % 16}", wb+4*t, 39-t) for t in range(40)])
    def common_setup():
        A(f"s_load_dword {sTAG}, s[30:31], 0")
        srd(SWS, "s30", "s31", WS_END)
        A(f"v_and_b32 v{vT}, 1, v{vLANE}"); A(f"v_lshlrev_b32 v{vT}, 4, v{vT}"); A(f"v_mov_b32 v{vT+1}, 0xffff"); A(f"v_lshlrev_b32 v{vT}, v{vT}, v{vT+1}")
        A(f"v_bfe_u32 v{vT+1}, v{vLANE}, 1, 2")
        A(f"v_bfe_u32 v{vT+2}, v{vLANE}, 1, 3")
        for t in range(4):
            A(f"v_cmp_eq_u32 vcc, {t}, v{vT+1}"); A(f"v_cndmask_b32 v{vM1+t}, 0, v{vT}, vcc")
            A(f"v_cmp_eq_u32 vcc, {2*t}, v{vT+2}"); A(f"v_cndmask_b32 v{vM2+t}, 0, v{vT}, vcc")
        A(f"v_and_b32 v{vT}, 15, v{vLANE}"); A(f"v_lshlrev_b32 v{vT}, 6, v{vT}"); A(f"v_and_b32 v{vT+1}, 48, v{vLANE}"); A(f"v_add_u32 v{vNAT}, v{vT}, v{vT+1}")
        A("s_waitcnt lgkmcnt(0)")
        A(f"s_add_u32 {sTAG}, {sTAG}, 0x01010101")
    def gu_loads(Ld, LTH, sWAVE=sWAVE):
        vT = vAOP
        if Ld:
            A(f"s_cmp_ge_u32 {sF}, 54"); A(f"s_cbranch_scc1 {Ld}")
            A(f"s_cmp_gt_u32 {sWAVE}, 3"); A(f"s_cbranch_scc1 {Ld}")
        A(f"v_and_b32 v{vT+2}, 4, v{vLANE}"); A(f"v_cmp_eq_u32 vcc, 0, v{vT+2}")
        A(f"v_mov_b32 v{vT+2}, s18"); A(f"v_mov_b32 v{vT+3}, s16"); A(f"v_cndmask_b32 v{vT+6}, v{vT+2}, v{vT+3}, vcc")
        A(f"v_mov_b32 v{vT+2}, s19"); A(f"v_mov_b32 v{vT+3}, s17"); A(f"v_cndmask_b32 v{vT+7}, v{vT+2}, v{vT+3}, vcc")
        A(f"s_mul_i32 s69, {sWAVE}, {160*3456}"); A(f"s_lshl_b32 s68, {sF}, 6"); A("s_add_u32 s69, s69, s68")
        A(f"v_and_b32 v{vT+4}, 3, v{vLANE}"); A(f"v_lshl_add_u32 v{vT+4}, v{vT+4}, 4, s69")
        A(f"v_lshrrev_b32 v{vT+5}, 3, v{vLANE}")
        for (mul, add, rows) in ((16*3456, 0, [(k, y) for k in range(4) for y in range(4)]), (4*3456, 128*3456, [(k, 4) for k in range(4)])):
            A(f"v_mul_u32_u24 v{vT+1}, {mul}, v{vT+5}"); A(f"v_add_u32 v{vT+1}, v{vT+1}, v{vT+4}")
            if add: A(f"v_add_u32 v{vT+1}, {add}, v{vT+1}")
            A(f"v_add_co_u32 v{vT+2}, vcc, v{vT+6}, v{vT+1}"); A(f"v_addc_co_u32 v{vT+3}, vcc, 0, v{vT+7}, vcc")
            for i, (k, y) in enumerate(rows):
                A(f"global_load_dwordx4 {v4(WT+4*(y*4+k))}, {v2(vT+2)}, off offset:{(i%2)*3456} {tp}")
                if LTH < 63: A(f"s_waitcnt vmcnt({LTH})")
                if i % 2 == 1 and i < len(rows) - 1:
                    A(f"v_add_co_u32 v{vT+2}, vcc, {2*3456}, v{vT+2}"); A(f"v_addc_co_u32 v{vT+3}, vcc, 0, v{vT+3}, vcc")
    def dn_prep():
        srd(SA, "s20", "s21", 1728*1280)
        A(f"v_lshrrev_b32 v{vT+1}, 4, v{vLANE}"); A(f"v_mul_u32_u24 v{vT+1}, {8*1280}, v{vT+1}")
        A(f"v_and_b32 v{vT+2}, 15, v{vLANE}"); A(f"v_lshl_add_u32 v{vT+1}, v{vT+2}, 4, v{vT+1}")
        A(f"s_mul_i32 s60, {sF}, {32*1280}"); A("s_lshl_b32 s68, s23, 8"); A("s_add_u32 s60, s60, s68")
    def dn_issue(Ld):
        A("s_mov_b32 s69, s60")
        for t in range(8):
            if t % 2 == 0: A(f"s_add_u32 s68, s69, {t*1280}")
            A(f"buffer_load_dwordx4 {v4(WD+4*t)}, v{vT+1}, {SA}, s68 offen offset:{(t%2)*1280} {tp}")
        A(f"s_cmp_lg_u32 {sWAVE}, 5"); A(f"s_cbranch_scc1 {Ld}")
        for t in range(8):
            if t % 2 == 0: A(f"s_add_u32 s68, s69, {t*1280}")
            A(f"buffer_load_dwordx4 {v4(WD2+4*t)}, v{vT+1}, {SA}, s68 offen offset:{(t%2)*1280 + 768} {tp}")
    def wo_loads():
        srd(SA, "s12", "s13", 4096*1280)
        A(f"v_bfe_u32 v{vT+1}, v{vLANE}, 4, 1"); A(f"v_lshlrev_b32 v{vT+1}, 5, v{vT+1}")
        A(f"v_lshrrev_b32 v{vT+2}, 5, v{vLANE}"); A(f"v_add_u32 v{vT+1}, v{vT+1}, v{vT+2}")
        A(f"v_bfe_u32 v{vT+2}, v{vLANE}, 3, 1"); A(f"v_lshl_add_u32 v{vT+1}, v{vT+2}, 4, v{vT+1}")
        A(f"v_mul_u32_u24 v{vT+1}, 1280, v{vT+1}")
        A(f"v_and_b32 v{vT+2}, 7, v{vLANE}"); A(f"v_lshl_add_u32 v{vT+1}, v{vT+2}, 4, v{vT+1}")
        A(f"s_lshr_b32 s68, {sWAVE}, 1"); A("s_lshl_b32 s68, s68, 3"); A(f"s_add_u32 s68, s68, {sG}"); A("s_lshl_b32 s68, s68, 1")
        A(f"s_and_b32 s69, {sWAVE}, 1"); A("s_add_u32 s68, s68, s69"); A(f"s_mul_i32 s69, s68, {64*1280}")
        A(f"s_lshl_b32 s68, {sK}, 7"); A("s_add_u32 s69, s69, s68")
        for n in range(8):
            if n % 2 == 0: A(f"s_add_u32 s68, s69, {2*n*1280}")
            A(f"buffer_load_dwordx4 {v4(WT+4*n)}, v{vT+1}, {SA}, s68 offen offset:{(n%2)*2560} {tp}")
    def tail_loads(dn):
        Lw, Ld = U("lwo"), U("ldone")
        A(f"s_cmp_lt_u32 {sK}, 10"); A(f"s_cbranch_scc1 {Lw}")
        if not (now & 1):
            gu_loads(Ld, CTH if dn else LTH)
        A(f"s_branch {Ld}")
        A.label(Lw)
        if not (now & 2) and (cwo or not dn): wo_loads()
        A.label(Ld)

    A(f"; @launch grid=(256,1,1) block=(512,1,1) lds={L_END}")
    A('.amdgcn_target "amdgcn-amd-amdhsa--gfx950"')
    A(".text"); A(f".globl {KN}"); A(".p2align 8"); A(f".type {KN},@function"); A.label(KN)
    stamp(0)
    if dbg or hold == 3: A("s_memrealtime s[96:97]")
    A("s_cmp_ge_u32 s2, 256"); A("s_cbranch_scc1 L_end")
    A("s_load_dwordx16 s[4:19], s[0:1], 0")
    A("s_load_dwordx8 s[20:27], s[0:1], 64")
    A("s_load_dwordx4 s[28:31], s[0:1], 96")
    A("v_lshrrev_b32 v1, 6, v0"); A(f"v_and_b32 v{vLANE}, 63, v0")
    A(f"v_readfirstlane_b32 {sWAVE}, v1")
    A(f"v_lshlrev_b32 v{vLANE16}, 4, v{vLANE}")
    A(f"s_lshr_b32 {sHD}, s2, 3"); A(f"s_and_b32 {sG}, s2, 7"); A(f"s_lshl_b32 {sK}, {sG}, 2"); A(f"s_add_u32 {sK}, {sK}, {sHD}"); A(f"s_and_b32 {sK}, {sK}, 31")
    A(f"s_add_u32 {sS}, {sG}, {sHD}"); A(f"s_and_b32 {sS}, {sS}, 7")
    if MAP == 1:
        A(f"s_and_b32 {sHD}, s2, 31"); A(f"s_lshr_b32 {sS}, s2, 5"); A(f"s_lshr_b32 {sK}, s2, 3")
    A(f"s_mov_b32 {sL2E}, {fh(LOG2E)}"); A(f"s_mov_b32 {sSC}, {fh(SCALE)}")
    A(f"s_sub_u32 s68, {sK}, 10"); A(f"s_mul_i32 {sF}, {sG}, 7"); A(f"s_add_u32 {sF}, {sF}, s68")
    A("s_cmp_lt_u32 s68, 7"); A(f"s_cselect_b32 {sF}, {sF}, 63")
    A(f"v_mov_b32 v{vZERO}, 0"); A(f"v_mov_b32 v{vONE}, 1")
    A(f"s_cmp_eq_u32 {sWAVE}, 0"); A("s_cbranch_scc1 L_ctrl0")
    A(f"s_cmp_gt_u32 {sWAVE}, {NL}"); A("s_cbranch_scc1 L_help")
    A(f"s_mul_i32 {sROT}, {sHD}, {ROT}"); A(f"s_lshl_b32 {sST}, {sS}, 7"); A(f"s_add_u32 {sST}, {sST}, {sROT}")
    A(f"s_lshl_b32 s68, {sHD}, 22")
    def tile_addr(sreg, add):
        A(f"s_add_u32 s69, {sreg}, {add}")
        if ROT: A("s_and_b32 s69, s69, 1023")
        A("s_lshl_b32 s69, s69, 12")
        A(f"v_add_u32 v{vADDR}, s69, v{vLANE16}")
    A(f"s_add_u32 s67, {sST}, {sWAVE}"); A("s_sub_u32 s67, s67, 1")
    tile_addr("s67", 0)
    if stamps == 6: stamp(2)
    A("s_waitcnt lgkmcnt(0)")
    A("s_add_u32 s40, s6, s68"); A("s_addc_u32 s41, s7, 0"); A("s_mov_b32 s42, 0x400000"); A("s_mov_b32 s43, 0x20000")
    G = lambda i: RING + 16*i
    def load(S, slot):
        for u in range(4): A(f"buffer_load_dwordx4 {v4(G(slot)+4*u)}, v{vADDR}, {S}, 0 offen offset:{u*1024} {pol}")
    load(SK, 0)
    if stamps == 6: stamp(3)
    A("s_add_u32 s44, s8, s68"); A("s_addc_u32 s45, s9, 0"); A("s_mov_b32 s46, 0x400000"); A("s_mov_b32 s47, 0x20000")
    A("s_barrier")
    common_setup()
    A(f"s_lshl_b32 s38, {sHD}, 8"); A(f"s_add_u32 s38, s38, {WS_CNT}"); A("s_add_u32 s38, s38, s30"); A("s_addc_u32 s39, s31, 0")
    A(f"s_mov_b32 {sQ}, {NP}"); A(f"s_cmp_lt_u32 {sF}, 54"); A(f"s_cselect_b32 {sQ}, {Q_ffn}, {sQ}"); A(f"s_cmp_lt_u32 {sK}, 10"); A(f"s_cselect_b32 {sQ}, {Q_wo}, {sQ}")
    A(f"v_and_b32 v{vPB}, 60, v{vLANE}")
    A(f"s_lshl_b32 s68, {sWAVE}, 6"); A("s_sub_u32 s68, s68, 64"); A(f"v_add_u32 v{vPW}, s68, v{vPB}")
    for r in range(4): A(f"v_mov_b32 v{vACC+r}, 0")
    for i in range(1, NK):
        tile_addr("s67", NL*i)
        A("s_waitcnt vmcnt(0)")
        if i == 1 and stamps in (4, 6): stamp(1)
        if i == 2 and stamps == 6: stamp(4)
        if i == 3 and stamps == 6: stamp(5)
        load(SK, i)
    if stamps == 4: stamp(2)
    A(f"v_and_b32 v{vT}, 15, v{vLANE}"); A(f"v_lshlrev_b32 v{vT}, 4, v{vT}")
    if dbg: A("s_memrealtime s[80:81]")
    lds_wait(L_QF, 1)
    if dbg: A("s_memrealtime s[82:83]")
    A(f"ds_read_b128 {v4(vQ)}, v{vT} offset:{L_Q}")
    A("s_waitcnt lgkmcnt(0)")
    def req(off):
        A("s_mov_b64 exec, 1"); A(f"ds_add_rtn_u32 v{vTKT}, v{vZERO}, v{vONE} offset:{off}"); A("s_mov_b64 exec, -1")
    def qk(slot, va, off):
        kb = G(slot)
        for t in range(4):
            for u in range(4):
                if t == 0: A(f"v_dot2_f32_bf16 v{vR+u}, v{kb+4*u}, v{vQ}, 0")
                else: A(f"v_dot2c_f32_bf16 v{vR+u}, v{kb+4*u+t}, v{vQ+t}")
        A(f"v_add_f32_dpp v{vA_}, v{vR}, v{vR} row_ror:8 row_mask:0xf bank_mask:0x3")
        A(f"v_add_f32_dpp v{vB_}, v{vR+2}, v{vR+2} row_ror:8 row_mask:0xf bank_mask:0x3")
        A(f"v_add_f32_dpp v{vA_}, v{vR+1}, v{vR+1} row_ror:8 row_mask:0xf bank_mask:0xc")
        A(f"v_add_f32_dpp v{vB_}, v{vR+3}, v{vR+3} row_ror:8 row_mask:0xf bank_mask:0xc")
        A(f"v_add_f32_dpp v{vC_}, v{vA_}, v{vA_} row_shl:4 row_mask:0xf bank_mask:0x5")
        A(f"v_add_f32_dpp v{vC_}, v{vB_}, v{vB_} row_shr:4 row_mask:0xf bank_mask:0xa")
        dpp_red("v_add_f32", [vC_], QUAD)
        rbf(vC_, vC_)
        A(f"v_mul_f32 v{vC_}, {sSC}, v{vC_}")
        rbf(vC_, vC_)
        A(f"ds_write_b32 v{va}, v{vC_} offset:{off}")
    def build(p):
        lane_of = [0, 8, 4, 12]
        for u in range(4):
            for t in range(4): A(f"v_and_b32_dpp v{vAOP+4*u+t}, v{p}, v{vM2+t} row_newbcast:{lane_of[u]} {DPPF}")
    def mm(slot):
        for u in range(4):
            A(f"v_mfma_f32_16x16x32_bf16 {v4(vACC)}, {v4(vAOP+4*u)}, {v4(G(slot)+4*u)}, {v4(vACC)}")
    LA, LB = 0, NK - 1
    qk(0, vPW, L_P)
    todo = list(range(1, NK - 1))
    cur, cur_i, nxt = LB, NK - 1, LA
    step = 0
    while todo:
        i = NK + step
        tile_addr("s67", NL*i)
        A("s_waitcnt vmcnt(0)")
        load(SK, nxt)
        if len(todo) <= 2: req(L_KT)
        qk(cur, vPW, L_P + NL*cur_i*64)
        for b in todo[:2]: qk(b, vPW, L_P + NL*b*64)
        todo = todo[2:]
        cur, nxt, cur_i = nxt, cur, i
        step += 1
    KT0 = NL * (NK + step)
    assert KT0 <= 128
    A(f"v_add_u32 v{vE_}, {NL*cur_i*64}, v{vPW}")
    if stamps == 4: stamp(3)
    order = [cur, nxt]
    A.label("L_k0")
    for n in range(2):
        X, Y = order[n], order[1-n]
        if n: A.label("L_k1")
        A("s_waitcnt lgkmcnt(0)")
        A(f"v_readfirstlane_b32 {sTK}, v{vTKT}")
        A(f"s_cmp_ge_u32 {sTK}, 128"); A(f"s_cbranch_scc1 L_kend{n}")
        tile_addr(sTK, sST)
        A("s_waitcnt vmcnt(0)")
        load(SK, Y)
        req(L_KT)
        qk(X, vE_, L_P)
        A(f"s_lshl_b32 s68, {sTK}, 6"); A(f"v_add_u32 v{vE_}, s68, v{vPB}")
    A("s_branch L_k0")
    for n in range(2):
        A.label(f"L_kend{n}")
        tile_addr("s67", 0)
        A("s_waitcnt vmcnt(0)")
        load(SV, 1)
        qk(order[n], vE_, L_P)
        if n == 0: A("s_branch L_vpre")
    A.label("L_vpre")
    A("s_waitcnt lgkmcnt(0)")
    A("s_mov_b64 exec, 1"); A(f"ds_add_u32 v{vZERO}, v{vONE} offset:{L_KD}"); A("s_mov_b64 exec, -1")
    if wake: A("s_waitcnt lgkmcnt(0)"); A("s_wakeup")
    if stamps == 4: stamp(4)
    for i in range(1, NV):
        tile_addr("s67", NL*i)
        A("s_waitcnt vmcnt(0)")
        load(SV, i + 1)
    if stamps == 4: stamp(5)
    if dbg: A("s_memrealtime s[84:85]")
    lds_wait(L_PF, 1)
    if dbg: A("s_memrealtime s[86:87]")
    A(f"ds_read_b32 v{vC_}, v{vZERO} offset:{L_LAM}")
    A(f"v_and_b32 v{vL}, 4, v{vLANE}"); A(f"v_lshlrev_b32 v{vL}, 2, v{vL}"); A(f"v_sub_u32 v{vL}, 16, v{vL}")
    A(f"s_lshl_b32 s14, {sHD}, 13"); A(f"s_add_u32 s14, s14, {WS_SP + (NS - 112)*32}"); A("s_add_u32 s14, s14, s30"); A("s_addc_u32 s15, s31, 0")
    nstep = NV // 2
    if nstep % 2: nstep += 1
    PR = vT
    assert NV + nstep <= 12 + 4
    preg = lambda i: (vT + i) if i < 12 else (vR + i - 12)
    for i in range(NV + nstep):
        A(f"ds_read_b32 v{preg(i)}, v{vPW} offset:{L_P + NL*i*64}")
        if i == 8: A("s_waitcnt lgkmcnt(2)")
    A("s_waitcnt lgkmcnt(0)")
    todo = [(i + 1, i) for i in range(NV)]
    live = [LA, LB]
    for j in range(nstep):
        tile_addr("s67", NL*(NV + j))
        A("s_waitcnt vmcnt(0)")
        load(SV, live[j % 2])
        if j == nstep - 1: req(L_VT)
        items = ([(live[(j-1) % 2], NV + j - 1)] if j else []) + todo[:2]
        todo = todo[2:]
        if j == nstep - 1: items += todo; todo = []
        for (sl, i) in items: build(preg(i)); mm(sl)
    build(preg(NV + nstep - 1))
    VT0 = NL * (NV + nstep)
    order = [LB, LA]
    A.label("L_v0")
    for n in range(2):
        X, Y = order[n], order[1-n]
        A("s_waitcnt lgkmcnt(0)")
        A(f"v_readfirstlane_b32 {sTK}, v{vTKT}")
        A(f"s_cmp_ge_u32 {sTK}, {NS}"); A(f"s_cbranch_scc1 L_din{n}")
        A(f"s_lshl_b32 s68, {sTK}, 6"); A(f"v_add_u32 v{vE_}, s68, v{vPB}")
        A(f"ds_read_b32 v{vE_}, v{vE_} offset:{L_P}")
        tile_addr(sTK, sST)
        A("s_waitcnt vmcnt(0) lgkmcnt(0)")
        load(SV, Y)
        req(L_VT)
        mm(X); build(vE_)
    A("s_branch L_v0")
    for n in range(2):
        A.label(f"L_din{n}")
        A(f"s_mov_b32 {sTK}, 1"); A(f"s_atomic_add {sTK}, {SCNT}, 0 glc")
        A(f"s_branch L_d{n}")
    for n in range(2):
        X, Y = order[n], order[1-n]
        A.label(f"L_d{n}")
        A("s_waitcnt lgkmcnt(0)")
        A(f"s_cmp_ge_u32 {sTK}, {NP}"); A(f"s_cbranch_scc1 L_vend{n}")
        A(f"s_and_b32 s68, {sTK}, 7"); A(f"s_lshr_b32 s67, {sTK}, 3")
        A("s_lshl_b32 s69, s68, 5"); A("s_add_u32 s69, s69, s67"); A("s_lshl_b32 s69, s69, 5")
        A("s_load_dwordx8 s[52:59], s[14:15], s69 glc")
        A("s_lshl_b32 s68, s68, 7"); A("s_add_u32 s68, s68, s67"); A(f"s_add_u32 s68, s68, {NS}")
        tile_addr("s68", sROT)
        A(f"s_cmp_ge_u32 {sTK}, {sQ}"); A(f"s_cselect_b32 {sTP}, {NP}, 0"); A(f"s_cselect_b32 {sTK}, 0, 1")
        A("s_waitcnt vmcnt(0)")
        load(SV, Y)
        mm(X)
        A("s_waitcnt lgkmcnt(0)")
        A(f"s_atomic_add {sTK}, {SCNT}, 0 glc")
        A("s_mov_b64 exec, 0xff")
        for j in range(8):
            A(f"v_lshlrev_b32 v{vE_}, v{vL}, s{52+j}")
            if j < 7: A("s_lshl_b64 exec, exec, 8")
        A("s_mov_b64 exec, -1")
        A(f"v_and_b32 v{vE_}, 0xffff0000, v{vE_}")
        A(f"v_fma_f32 v{vE_}, v{vE_}, {sL2E}, -v{vC_}")
        A(f"v_exp_f32 v{vE_}, v{vE_}")
        A(f"v_cvt_pk_bf16_f32 v{vE_}, v{vE_}, v{vE_}")
        build(vE_)
        if Q_wo < NP or Q_ffn < NP:
            A("s_waitcnt lgkmcnt(0)"); A(f"s_add_u32 {sTK}, {sTK}, {sTP}")
    A("s_branch L_d0")
    for n in range(2):
        A.label(f"L_vend{n}")
        if pf and not TW:
            A("s_mov_b64 exec, 1"); A(f"ds_add_rtn_u32 v{vTKT}, v{vZERO}, v{vONE} offset:{L_RANK}"); A("s_mov_b64 exec, -1")
        A(f"s_lshl_b32 s69, {sWAVE}, 9"); A(f"v_lshrrev_b32 v{vT}, 1, v{vNAT}"); A(f"v_add_u32 v{vT}, s69, v{vT}")
        A("s_waitcnt vmcnt(0)")
        mm(order[n])
        if n == 0: A("s_branch L_last")
    A.label("L_last")
    A(f"ds_write_b64 v{vT}, {v2(vACC)} offset:{L_PART-512}")
    A("s_waitcnt lgkmcnt(0)")
    def wo_prefetch(first, cnt, th):
        srd(SA, "s12", "s13", 4096*1280)
        A(f"s_and_b32 s68, {sK}, 24"); A(f"s_add_u32 s68, s68, {sG}"); A(f"s_mul_i32 s68, s68, {128*1280}")
        A(f"s_and_b32 s69, {sK}, 7"); A(f"s_mul_i32 s69, s69, {20*1024}"); A("s_add_u32 s68, s68, s69")
        if first: A(f"s_add_u32 s68, s68, {first}")
        for n in range(cnt):
            if n and n % 4 == 0: A("s_add_u32 s68, s68, 4096")
            A(f"buffer_load_dwordx4 {v4(PF)}, v{vLANE16}, {SA}, s68 offen offset:{(n%4)*1024} {pp}")
            if th < 63: A(f"s_waitcnt vmcnt({th})")
    if pf and not TW:
        A(f"v_readfirstlane_b32 s66, v{vTKT}")
        A(f"s_cmp_ge_u32 s66, {NR}"); A("s_cbranch_scc1 L_pfdone")
        A(f"s_mul_i32 s66, s66, {(20 // NR)*1024}")
        wo_prefetch("s66", 20 // NR, 63)
        A.label("L_pfdone")
    if stamps in (4, 6):
        A(f"s_cmp_lg_u32 {sWAVE}, 1"); A("s_cbranch_scc1 L_ns4")
        stamp_dump([1, 2, 3, 4, 5], final=False)
        A.label("L_ns4")
    A.label("L_join")
    A("s_barrier")
    if abl: A("s_endpgm"); A.label("L_abl_dead")
    if dbg:
        A(f"s_cmp_lg_u32 {sWAVE}, 4"); A("s_cbranch_scc1 L_ndbg")
        A("s_memrealtime s[78:79]")
        dbg_rec(2, "s80", "s82"); dbg_rec(4, "s84", "s86"); dbg_rec(6, "s96", "s80"); dbg_rec(8, "s96", "s78")
        A.label("L_ndbg")
    if pf2:
        A(f"s_cmp_lt_u32 {sK}, 17"); A("s_cbranch_scc1 L_pf2done")
        A(f"s_sub_u32 s66, {sK}, 17"); A("s_mul_i32 s66, s66, 7"); A(f"s_add_u32 s66, s66, {sWAVE}"); A("s_sub_u32 s66, s66, 1")
        A("s_cmp_ge_u32 s66, 80"); A("s_cbranch_scc1 L_end" if dseq else "s_cbranch_scc1 L_pf2dn")
        srd(SA, "s16", "s17", 640*3456); srd(SB, "s18", "s19", 640*3456)
        A(f"v_lshrrev_b32 v{vT+1}, 5, v{vLANE}"); A(f"v_mul_u32_u24 v{vT+1}, 3456, v{vT+1}")
        A(f"v_and_b32 v{vT+2}, 31, v{vLANE}"); A(f"v_lshl_add_u32 v{vT+1}, v{vT+2}, 4, v{vT+1}")
        A(f"s_mul_i32 s68, {sG}, 7"); A("s_lshr_b32 s68, s68, 1"); A("s_min_u32 s68, s68, 23"); A("s_lshl_b32 s68, s68, 7")
        npair = (3 if cearly else 4) - len(EW)
        A(f"s_mul_i32 s69, s66, {2*npair*3456}"); A("s_add_u32 s68, s68, s69"); A(f"s_add_u32 s68, s68, {(160 if cearly else 0)*3456}")
        for n in range(npair):
            for S in (SA, SB):
                A(f"buffer_load_dwordx4 {v4(PF)}, v{vT+1}, {S}, s68 offen {pp}")
                if PFTH < 63: A(f"s_waitcnt vmcnt({PFTH})")
            if n < npair - 1: A(f"s_add_u32 s68, s68, {2*3456}")
        if dseq:
            srd(SA, "s20", "s21", 1728*1280)
            A(f"s_mul_i32 s68, {sG}, {7*40960}"); A(f"s_mul_i32 s69, s66, 3584"); A("s_add_u32 s68, s68, s69")
            A(f"v_add_u32 v{vT+1}, s68, v{vLANE16}")
            if dseq == 2: A("s_waitcnt vmcnt(0)")
            for n in range(4):
                if n == 3: A("s_mov_b32 exec_hi, 0")
                A(f"buffer_load_dwordx4 {v4(PF)}, v{vT+1}, {SA}, 0 offen offset:{n*1024} {pp}")
                if PFTH < 63: A(f"s_waitcnt vmcnt({PFTH})")
            A("s_waitcnt vmcnt(0)")
            A("s_endpgm")
        else:
            A("s_waitcnt vmcnt(0)")
            A("s_endpgm")
            A.label("L_pf2dn")
            srd(SA, "s20", "s21", 1728*1280)
            A(f"s_mul_i32 s68, {sG}, {7*40960}"); A("s_sub_u32 s69, s66, 80"); A(f"s_mul_i32 s69, s69, {11520}"); A("s_add_u32 s68, s68, s69")
            A(f"v_add_u32 v{vT+1}, s68, v{vLANE16}")
            for n in range(12):
                if n and n % 4 == 0: A(f"v_add_u32 v{vT+1}, 0x1000, v{vT+1}")
                A(f"buffer_load_dwordx4 {v4(PF)}, v{vT+1}, {SA}, 0 offen offset:{(n%4)*1024} {pp}")
                if PFTH < 63: A(f"s_waitcnt vmcnt({PFTH+1})")
            A("s_waitcnt vmcnt(0)")
            A("s_endpgm")
        A.label("L_pf2done")
    A.label("L_tail0")
    A(f"s_cmp_ge_u32 {sF}, 54"); A("s_cbranch_scc1 L_nomap")
    A(f"s_xor_b32 s68, {sWAVE}, 4"); A(f"s_and_b32 s69, {sWAVE}, 3"); A(f"s_cselect_b32 {sWAVE}, s68, {sWAVE}")
    for w in EW:
        A(f"s_cmp_eq_u32 {sWAVE}, {w-4}"); A("s_cbranch_scc1 L_tail")
    A.label("L_nomap")
    tail_loads(False)
    A.label("L_tail")
    beta_get()
    A(f"s_cmp_lt_u32 {sK}, 10"); A("s_cbranch_scc1 L_wo")
    A(f"s_cmp_ge_u32 {sF}, 54"); A("s_cbranch_scc1 L_exit")
    X0, GA = 24, 26
    CC = [12, 13, 14, 15, 28]; SS = [RING+36, RING+37, RING+38, RING+39, 29]
    SEL0, SEL1, GB = 30, 31, 6
    A(f"s_cmp_gt_u32 {sWAVE}, 3"); A("s_cbranch_scc1 L_gprep")
    A(f"v_lshrrev_b32 v{vT}, 3, v{vLANE}"); A(f"v_and_b32 v{vT+1}, 3, v{vLANE}"); A(f"v_lshl_add_u32 v{vT+1}, v{vT}, 2, v{vT+1}")
    A(f"s_mul_i32 s68, {sWAVE}, 640"); A(f"v_lshl_add_u32 v{vT+8}, v{vT+1}, 4, s68")
    A("s_add_u32 s68, s68, 512"); A(f"v_lshl_add_u32 v{vT+9}, v{vT+1}, 2, s68")
    A(f"ds_read_b128 {v4(SS[0])}, v{vT+8} offset:{L_MOD+2560}"); A(f"ds_read_b32 v{SS[4]}, v{vT+9} offset:{L_MOD+2560}")
    A(f"ds_read_b128 {v4(CC[0])}, v{vT+8} offset:{L_MOD+5120}"); A(f"ds_read_b32 v{CC[4]}, v{vT+9} offset:{L_MOD+5120}")
    acc_addr(vT+5)
    A(f"s_min_u32 s21, {sF}, 39")
    A(f"v_and_b32 v{vONE}, 7, v{vLANE}")
    A(f"v_lshrrev_b32 v{vT+1}, 5, v{vLANE}"); A(f"v_lshl_add_u32 v{vONE}, v{vONE}, {3 if linD else 1}, v{vT+1}")
    if linD:
        A("s_lshr_b32 s68, s21, 3"); A("s_lshl_b32 s68, s68, 7"); A("s_and_b32 s69, s21, 1"); A("s_lshl_b32 s69, s69, 6"); A("s_add_u32 s68, s68, s69")
        A("s_and_b32 s69, s21, 6"); A("s_add_u32 s68, s68, s69")
    else: A(f"s_lshl_b32 s68, s21, 4")
    A(f"v_add_u32 v{vONE}, s68, v{vONE}")
    A(f"v_lshlrev_b32 v{vTKT}, 2, v{vONE}"); A(f"v_lshlrev_b32 v{vONE}, 1, v{vONE}")
    A(f"ds_read_b32 v{GB}, v{vTKT} offset:{L_MOD+7680}")
    side("s13", sG); A("s_lshl_b32 s68, s21, 14"); A("s_add_u32 s13, s13, s68"); A(f"s_add_u32 s13, s13, {WS_DP}"); A("s_add_u32 s14, s13, 4096")
    A("s_waitcnt lgkmcnt(0)")
    A("s_waitcnt vmcnt(0)")
    stamp(8)
    A(f"s_cmp_lg_u32 {sWAVE}, 0"); A(f"s_cbranch_scc1 {'L_gemv0' if wbar else 'L_gemv'}")
    def gather(last):
        A(f"v_and_b32 v{vT}, 31, v{vLANE}"); A(f"v_lshrrev_b32 v{vT+1}, 5, v{vLANE}")
        A(f"v_lshl_add_u32 v{vT+2}, v{vT}, 1, v{vT+1}"); A("s_lshl_b32 s68, s23, 6"); A(f"v_add_u32 v{vT+2}, s68, v{vT+2}")
        A(f"v_lshlrev_b32 v{vT+3}, 3, v{vT+2}")
        A(f"ds_read_b64 {v2(GA)}, v{vT+3} offset:{L_MOD}"); A(f"ds_read_b64 {v2(X0)}, v{vT+3} offset:{L_X2}")
        A(f"v_mul_u32_u24 v{vT+4}, 2560, v{vT+1}"); A(f"v_lshl_add_u32 v{vT+4}, v{vT}, 4, v{vT+4}"); A("s_lshl_b32 s68, s23, 9"); A(f"v_add_u32 v{vT+4}, s68, v{vT+4}")
        side("s68", sG); A(f"s_lshl_b32 s69, {sG}, 16"); A("s_add_u32 s68, s68, s69")
        for n in range(4): A(f"s_add_u32 s{4+n}, s68, {WS_YP + n*16384}")
        A("s_lshl_b32 s68, s23, 3"); A(f"v_mov_b32 v{vADDR}, s68")
        A(f"v_mov_b32 v{SEL0}, 0x3f80"); A(f"v_mov_b32 v{SEL1}, 0x3f800000")
        A("s_waitcnt lgkmcnt(0)")
        if last:
            dn_prep()
            A(f"v_lshrrev_b32 v{vT+6}, 4, v{vLANE}"); A(f"v_lshlrev_b32 v{vT+6}, 3, v{vT+6}")
            A(f"v_and_b32 v{vT+7}, 7, v{vLANE}"); A(f"v_add_u32 v{vT+6}, v{vT+6}, v{vT+7}")
            A(f"v_bfe_u32 v{vT+7}, v{vLANE}, 3, 1"); A(f"v_lshl_add_u32 v{vT+6}, v{vT+7}, 5, v{vT+6}"); A(f"v_lshlrev_b32 v{vT+6}, 2, v{vT+6}")
            A(f"v_add_u32 v{vT+6}, {L_ACC}, v{vT+6}")
            A(f"s_lshl_b32 s12, {sF}, 7"); A(f"s_add_u32 s12, s12, {WS_DP}")
            for (d, blk) in ((vT+8, "s23"), (vT+9, "4")):
                A(f"v_lshrrev_b32 v{d}, 3, v{vLANE}"); A(f"s_lshl_b32 s68, {blk}, 3"); A(f"v_add_u32 v{d}, s68, v{d}")
                A(f"v_mul_u32_u24 v{vT+7}, 37, v{d}"); A(f"v_lshrrev_b32 v{vT+7}, 8, v{vT+7}"); A(f"v_lshrrev_b32 v{vT+7}, v{vT+7}, {sBM}")
                A(f"v_and_b32 v{vT+7}, 1, v{vT+7}"); A(f"v_lshl_add_u32 v{d}, v{d}, 1, v{vT+7}"); A(f"v_lshlrev_b32 v{d}, 13, v{d}")
                A(f"v_and_b32 v{vT+7}, 7, v{vLANE}"); A(f"v_lshl_add_u32 v{d}, v{vT+7}, 4, v{d}")
        if wbar: A("s_barrier")
        poll([(vT+4, f"s{4+n}", 0, None) for n in range(4)], RING, tags=(1, 3))
        for n in range(4):
            for r in range(4):
                src, sel = RING + 4*n + 2*(r // 2), (SEL0, SEL1)[r % 2]
                if n == 0: A(f"v_dot2_f32_bf16 v{TMP+r}, v{src}, v{sel}, 0")
                else: A(f"v_dot2c_f32_bf16 v{TMP+r}, v{src}, v{sel}")
        if last: stamp(9)
        A(f"v_permlane32_swap_b32 v{TMP}, v{TMP+2}"); A(f"v_permlane32_swap_b32 v{TMP+1}, v{TMP+3}")
        A(f"v_pk_add_f32 {v2(TMP)}, {v2(TMP)}, {v2(TMP+2)}")
        A(f"v_pk_fma_f32 {v2(X0)}, {v2(TMP)}, {v2(GA)}, {v2(X0)}")
        if rx & 1: rbf2(X0, X0+1)
        A(f"v_add_f32 v{TMP}, v{X0}, v{X0+1}"); A(f"v_mul_f32 v{TMP+1}, v{X0}, v{X0}"); A(f"v_fmac_f32 v{TMP+1}, v{X0+1}, v{X0+1}")
        A(f"ds_write_b64 v{vT+3}, {v2(X0)} offset:{L_X2}")
        dpp_red("v_add_f32", [TMP, TMP+1], QUAD + BANK + BCAST)
        A("s_mov_b32 exec_lo, 0"); A("s_brev_b32 exec_hi, 1")
        A(f"ds_write_b64 v{vADDR}, {v2(TMP)} offset:{L_ST}")
        A("s_mov_b64 exec, -1")
        A("s_waitcnt lgkmcnt(0)")
    A("s_mov_b32 s23, 4")
    gather(False)
    if wbar:
        A("s_branch L_gemv")
        A.label("L_gemv0")
        A("s_barrier")
    A.label("L_gemv")
    A("s_barrier")
    ST = vAOP; XX = RING + 40
    A(f"ds_read_b128 {v4(ST)}, v{vZERO} offset:{L_ST}"); A(f"ds_read_b128 {v4(ST+4)}, v{vZERO} offset:{L_ST+16}"); A(f"ds_read_b64 {v2(ST+8)}, v{vZERO} offset:{L_ST+32}")
    A(f"ds_read_b128 {v4(XX)}, v{vT+8} offset:{L_X2}"); A(f"ds_read_b32 v{XX+4}, v{vT+9} offset:{L_X2}")
    if not (rx & 8): A(f"v_mov_b32 v{TMP+2}, {fh(1e-5)}")
    A("s_waitcnt lgkmcnt(2)" if not stamps else "s_waitcnt lgkmcnt(0)")
    sum2([ST+2*n for n in range(5)], TMP)
    A(f"v_mul_f32 v{TMP}, {fh(1.0/640)}, v{TMP}")
    if rx & 8:
        A(f"v_mul_f32 v{TMP+2}, {fh(1.0/640)}, v{TMP+1}")
        A(f"v_fma_f32 v{TMP+2}, -v{TMP}, v{TMP}, v{TMP+2}")
        A(f"v_max_f32 v{TMP+2}, 0, v{TMP+2}")
        rbf(TMP+2, TMP+2)
        A(f"v_add_f32 v{TMP+2}, {fh(1e-5)}, v{TMP+2}")
    else:
        A(f"v_fmac_f32 v{TMP+2}, {fh(1.0/640)}, v{TMP+1}")
        A(f"v_fma_f32 v{TMP+2}, -v{TMP}, v{TMP}, v{TMP+2}")
        A(f"v_max_f32 v{TMP+2}, {fh(1e-5)}, v{TMP+2}")
    if rx & 4:
        rbf(TMP+2, TMP+2); A(f"v_sqrt_f32 v{TMP+2}, v{TMP+2}"); rbf(TMP+2, TMP+2); A(f"v_rcp_f32 v{TMP+2}, v{TMP+2}")
    else: A(f"v_rsq_f32 v{TMP+2}, v{TMP+2}")
    if rx & 2: rbf(TMP, TMP)
    A("s_waitcnt lgkmcnt(0)")
    for y in range(5): A(f"v_sub_f32 v{XX+y}, v{XX+y}, v{TMP}")
    for y in range(5): A(f"v_mul_f32 v{XX+y}, v{XX+y}, v{CC[y]}")
    for y in range(5): A(f"v_fmac_f32 v{SS[y]}, v{XX+y}, v{TMP+2}")
    for y in range(5): A(f"v_cvt_pk_bf16_f32 v{SS[y]}, v{SS[y]}, v{SS[y]}")
    gemv(vACC, vM1, [(SS[y], qp(k), WT+4*(y*4+k), None) for y in range(5) for k in range(4)])
    acc_write(vT+5)
    A("s_waitcnt lgkmcnt(0)")
    A("s_barrier")
    if stamps:
        A(f"s_cmp_lg_u32 {sWAVE}, 1"); A("s_cbranch_scc1 L_ns8")
        stamp_dump([8]); A("s_endpgm")
        A.label("L_ns8")
    A(f"s_cmp_lg_u32 {sWAVE}, 3"); A("s_cbranch_scc1 L_exit")
    A(f"s_cmp_ge_u32 {sF}, 40"); A("s_cbranch_scc1 L_end")
    A(f"ds_read_b32 v{X0}, v{vTKT} offset:{L_X2}")
    FB = RING
    A(f"v_mov_b32 v{FB+24}, 0"); A(f"v_mov_b32 v{FB+25}, 0"); A(f"v_mov_b32 v{FB+27}, {sTAG}")
    A("s_mov_b32 s68, -1"); A("s_mov_b32 s69, 0xffff")
    srd(SB, "s26", "s27", 1280)
    A("s_waitcnt lgkmcnt(0)")
    A("s_barrier")
    poll([(vLANE16, f"s{13+n//4}", (n % 4)*1024, None if n < 6 else "s[68:69]") for n in range(7)], FB)
    sum2([FB+4*n for n in range(7)], GA)
    stamp(11)
    A(f"v_permlane32_swap_b32 v{GA}, v{GA+1}"); A(f"v_add_f32 v{GA}, v{GA}, v{GA+1}")
    xrow("v_add_f32", GA, GA+1, 16)
    A(f"v_add_f32_dpp v{GA}, v{GA}, v{GA} row_ror:8 {DPPF}")
    A(f"v_fma_f32 v{GA}, v{GA}, v{GB}, v{X0}"); A(f"v_cvt_pk_bf16_f32 v{GA}, v{GA}, v{GA}")
    A("s_mov_b32 exec_lo, 0xff"); A("s_mov_b32 exec_hi, 0xff")
    A(f"buffer_store_short v{GA}, v{vONE}, {SB}, 0 offen sc1")
    A(f"s_cmp_lg_u32 {sF}, 0"); A("s_cbranch_scc1 L_fin_dump")
    A("s_mov_b64 exec, 1"); A(f"v_mov_b32 v{GA+1}, {sTAG}")
    A(f"buffer_store_dword v{GA+1}, v{vZERO}, {SWS}, 0 offen sc1")
    A.label("L_fin_dump")
    if dbg: A("s_memrealtime s[80:81]"); dbg_rec(10, "s96", "s80")
    if stamps:
        A("s_waitcnt vmcnt(0)"); stamp(12)
        stamp_dump([11, 12])
    A("s_endpgm")
    A.label("L_gprep")
    A(f"s_and_b32 s23, {sWAVE}, 3")
    gather(True)
    if DNP == 0 and not (now & 1): dn_issue("L_dnd0"); A.label("L_dnd0")
    A("s_barrier")
    if DNP == 1 and not (now & 1): dn_issue("L_dnd1"); A.label("L_dnd1")
    A("s_barrier")
    RD = WT
    for k in range(4): A(f"ds_read2st64_b32 {v2(RD+2*k)}, v{vT+6} offset0:{2*k} offset1:{2*k+1}")
    A("s_waitcnt lgkmcnt(0)")
    sum2([RD+2*k for k in range(4)])
    A(f"v_add_f32 v{RD}, v{RD}, v{RD+1}")
    A(f"v_mul_f32 v{RD+2}, {fh(-LOG2E)}, v{RD}"); A(f"v_exp_f32 v{RD+2}, v{RD+2}")
    A(f"v_mul_f32_dpp v{RD+1}, v{RD}, v{RD} row_ror:8 {DPPF}")
    A(f"v_add_f32 v{RD+2}, 1.0, v{RD+2}"); A(f"v_rcp_f32 v{RD+2}, v{RD+2}")
    A(f"v_mul_f32 v{RD}, v{RD+1}, v{RD+2}")
    A(f"v_cvt_pk_bf16_f32 v{RD}, v{RD}, v{RD}")
    A("s_waitcnt vmcnt(0)")
    A(f"s_cmp_eq_u32 {sWAVE}, 5"); A("s_cbranch_scc1 L_down2")
    gemv(vACC, vM2, [(RD, f"row_newbcast:{t}", WD+4*t, None) for t in range(8)])
    publish(vACC, vT+8, "s12")
    A("s_endpgm")
    A.label("L_down2")
    gemv(vACC, vM2, [(RD, f"row_newbcast:{t}", WD+4*t, None) for t in range(8)], ACC2, WD2)
    A(f"v_mov_b32 v{vACC+3}, {sTAG}"); A(f"v_mov_b32 v{ACC2+3}, {sTAG}")
    A(f"buffer_store_dwordx4 {v4(vACC)}, v{vT+8}, {SWS}, s12 offen sc1")
    A(f"buffer_store_dwordx4 {v4(ACC2)}, v{vT+9}, {SWS}, s12 offen sc1")
    stamp(10)
    A("s_waitcnt vmcnt(0)")
    A("s_barrier")
    stamp_dump([9, 10])
    A("s_endpgm")
    A.label("L_wo")
    A(f"v_lshrrev_b32 v{vT+4}, 5, v{vLANE}"); A(f"v_lshlrev_b32 v{vT+4}, 10, v{vT+4}")
    A(f"v_and_b32 v{vT+6}, 31, v{vLANE}"); A(f"v_lshl_add_u32 v{vT+4}, v{vT+6}, 4, v{vT+4}")
    A(f"s_lshr_b32 s4, {sWAVE}, 1"); A("s_lshl_b32 s4, s4, 3"); A(f"s_add_u32 s4, s4, {sG}"); A("s_lshl_b32 s4, s4, 14")
    side("s5", sG); A("s_add_u32 s4, s4, s5")
    A(f"s_and_b32 s5, {sWAVE}, 1"); A("s_lshl_b32 s5, s5, 9"); A("s_add_u32 s4, s4, s5"); A(f"s_add_u32 s4, s4, {WS_OP}"); A("s_add_u32 s5, s4, 4096")
    acc_addr(vT+5)
    A(f"v_lshrrev_b32 v{vT+8}, 5, v{vLANE}"); A(f"v_lshlrev_b32 v{vT+7}, 11, v{vT+8}"); A(f"v_lshl_add_u32 v{vT+7}, v{vT+6}, 3, v{vT+7}")
    for c in range(4):
        d = vQ + c
        A(f"v_add_u32 v{d}, {2*c}, v{vT+8}"); A(f"v_lshrrev_b32 v{vT+9}, v{d}, {sBM}"); A(f"v_and_b32 v{vT+9}, 1, v{vT+9}")
        A(f"v_lshl_add_u32 v{d}, v{d}, 3, v{vT+9}"); A(f"v_lshlrev_b32 v{d}, 13, v{d}"); A(f"v_lshl_add_u32 v{d}, v{vT+6}, 3, v{d}")
    A(f"s_lshr_b32 s6, {sG}, 1"); A("s_lshl_b32 s6, s6, 14"); A(f"s_and_b32 s7, {sG}, 1"); A("s_mul_i32 s7, s7, 2560"); A("s_add_u32 s6, s6, s7")
    A(f"s_lshl_b32 s7, {sK}, 8"); A("s_add_u32 s6, s6, s7"); A(f"s_add_u32 s6, s6, {WS_YP}")
    poll([(vT+4, "s4" if n < 2 else "s5", (n % 2)*2048, None) for n in range(4)], RING)
    stamp(7)
    sum2([RING+4*n for n in range(4)], TMP)
    A(f"v_permlane32_swap_b32 v{TMP}, v{TMP+1}")
    A(f"v_add_f32 v{TMP}, v{TMP}, v{TMP+1}")
    A(f"v_cvt_pk_bf16_f32 v{TMP}, v{TMP}, v{TMP}")
    ysplit([TMP], TMP+2)
    gemv(vACC, vM1, [(TMP + 2 + n // 4, qp(n % 4), WT+4*n, None) for n in range(8)])
    acc_write(vT+5)
    A("s_waitcnt lgkmcnt(0)")
    A("s_barrier")
    A(f"s_cmp_lg_u32 {sWAVE}, 0"); A("s_cbranch_scc1 L_end")
    for n in range(8): A(f"ds_read_b64 {v2(WT+2*n)}, v{vT+7} offset:{L_ACC+256*n}")
    A("s_waitcnt lgkmcnt(0)")
    sum2([WT+2*n for n in range(8)])
    A(f"v_mov_b32 v{WT+2}, v{WT}"); A(f"v_mov_b32 v{WT+3}, v{WT+1}")
    A(f"v_permlane32_swap_b32 v{WT}, v{WT+2}"); A(f"v_permlane32_swap_b32 v{WT+1}, v{WT+3}")
    A(f"v_pk_add_f32 {v2(WT)}, {v2(WT)}, {v2(WT+2)}")
    A(f"v_cvt_pk_bf16_f32 v{WT}, v{WT}, v{WT+1}"); A(f"v_mov_b32 v{WT+1}, {sTAG}")
    for c in range(4): A(f"buffer_store_dwordx2 {v2(WT)}, v{vQ+c}, {SWS}, s6 offen sc1")
    stamp(13)
    A.label("L_exit")
    if hold:
        A(f"s_cmp_lg_u32 {sWAVE}, 0"); A("s_cbranch_scc1 L_end")
        A(f"s_cmp_lt_u32 {sF}, 54"); A("s_cbranch_scc1 L_end")
        A.label("L_hold")
        A("s_sleep 8"); A("s_memrealtime s[94:95]"); A("s_waitcnt lgkmcnt(0)"); A("s_sub_u32 s94, s94, s96"); A("s_cmp_lt_u32 s94, 6000"); A("s_cbranch_scc1 L_hold")
    if stamps:
        A(f"s_cmp_lg_u32 {sWAVE}, 0"); A("s_cbranch_scc1 L_end")
        stamp_dump([0, 13, 6, 7] + ([1, 2, 3, 4, 5] if stamps not in (4, 6, 8) else []), xcc=True)
    A("s_endpgm")

    A.label("L_help")
    A("s_waitcnt lgkmcnt(0)")
    A("s_barrier")
    A(f"s_cmp_lt_u32 {sK}, 24"); A("s_cbranch_scc1 L_hnoq")
    A(f"s_sub_u32 s39, {sWAVE}, 5")
    A(f"s_bfe_u32 s68, {sK}, 0x10002"); A("s_add_u32 s68, s68, s39"); A("s_cmp_lt_u32 s68, 3"); A("s_cbranch_scc1 L_ctrl_q")
    common_setup()
    A(f"v_lshlrev_b32 v{vT}, 3, v{vLANE}"); A(f"v_mov_b32 v{vACC}, 0"); A(f"v_mov_b32 v{vACC+1}, 0")
    A(f"ds_write_b64 v{vT}, {v2(vACC)} offset:{L_ACC + 512}")
    A("s_waitcnt lgkmcnt(0)")
    A("s_mov_b64 exec, 1"); A(f"ds_add_u32 v{vZERO}, v{vONE} offset:{L_MF}"); A("s_mov_b64 exec, -1")
    A("s_branch L_soft")
    A.label("L_hnoq")
    A(f"s_sub_u32 s37, {sK}, 5"); A("s_cmp_ge_u32 s37, 5"); A("s_cbranch_scc1 L_hnomod")
    A("s_lshl_b32 s37, s37, 3"); A(f"s_add_u32 s37, s37, {sG}")
    A("s_lshr_b32 s38, s37, 1"); A("s_and_b32 s39, s37, 1")
    A("s_mul_i32 s6, s39, 20480"); A("s_lshl_b32 s7, s38, 10"); A("s_add_u32 s6, s6, s7"); A(f"s_add_u32 s6, s6, {WS_MR}")
    A("s_add_u32 s38, s38, 10"); A("s_lshl_b32 s39, s39, 1"); A(f"s_add_u32 s39, s39, {sWAVE}"); A("s_sub_u32 s39, s39, 6")
    mod_loads("s38", "s39")
    common_setup()
    mod_compute()
    A(f"v_lshlrev_b32 v{vT}, 3, v{vLANE}")
    A(f"s_cmp_eq_u32 {sWAVE}, 6"); A("s_cbranch_scc1 L_hsum")
    A(f"ds_write_b64 v{vT}, {v2(vACC)} offset:{L_ACC}")
    A("s_waitcnt lgkmcnt(0)")
    A(f"ds_write_b32 v{vZERO}, v{vONE} offset:{L_MF}")
    A("s_branch L_soft")
    A.label("L_hsum")
    lds_wait(L_MF, 1)
    A(f"ds_read_b64 {v2(vR)}, v{vT} offset:{L_ACC}")
    A("s_waitcnt lgkmcnt(0)")
    A(f"v_pk_add_f32 {v2(vACC)}, {v2(vACC)}, {v2(vR)}")
    publish(vACC, vLANE16 if linP else vNAT, "s6")
    A("s_branch L_help7")
    A.label("L_hnomod")
    if EW and not abl and not (now & 1):
        if len(EW) == 1: A(f"s_cmp_lg_u32 {sWAVE}, {EW[0]}"); A("s_cbranch_scc1 L_hne")
        A(f"s_sub_u32 s37, {sWAVE}, 4")
        gu_loads("L_hne", CTH, "s37")
        A.label("L_hne")
    common_setup()
    A(f"s_cmp_lg_u32 {sWAVE}, 7"); A("s_cbranch_scc1 L_help7")
    A.label("L_soft")
    A(f"s_lshl_b32 s6, {sHD}, 13"); A(f"s_add_u32 s6, s6, {WS_SP}")
    A(f"s_lshl_b32 s8, {sS}, 10"); A("s_add_u32 s8, s8, s6")
    A("s_add_u32 s6, s6, s30"); A("s_addc_u32 s7, s31, 0")
    A(f"v_lshlrev_b32 v{vT}, 3, v{vLANE}")
    if abl & 4:
        A(f"ds_write_b32 v{vZERO}, v{vONE} offset:{L_PF}"); A("s_waitcnt lgkmcnt(0)"); A("s_branch L_join"); A.label("L_abl4")
    lds_wait(L_KT, 120, slow=True)
    lds_wait(L_KD, NL + (1 if any(QK) else 0), slow=True, slp=SLK)
    if KAP: A("s_memrealtime s[10:11]")
    E = RING
    for n in range(8): A(f"ds_read_b128 {v4(E+4*n)}, v{vLANE16} offset:{L_P + 1024*n}")
    A("s_waitcnt lgkmcnt(0)")
    A(f"v_cvt_pk_bf16_f32 v{vACC}, v{E+28}, v{E+29}"); A(f"v_cvt_pk_bf16_f32 v{vACC+1}, v{E+30}, v{E+31}")
    lanes0 = (NS - 112) * 4
    if lanes0: A(f"s_lshl_b64 exec, -1, {lanes0}")
    A(f"buffer_store_dwordx2 {v2(vACC)}, v{vT}, {SWS}, s8 offen sc1")
    if lanes0: A("s_mov_b64 exec, -1")
    m = vR
    A(f"v_max3_f32 v{m}, v{E}, v{E+1}, v{E+2}"); A(f"v_max3_f32 v{m+1}, v{E+3}, v{E+4}, v{E+5}")
    for i in range(6, 32, 4):
        A(f"v_max3_f32 v{m}, v{m}, v{E+i}, v{E+i+1}")
        if i + 3 < 32: A(f"v_max3_f32 v{m+1}, v{m+1}, v{E+i+2}, v{E+i+3}")
    A(f"v_max_f32 v{m}, v{m}, v{m+1}")
    wave_red("v_max_f32", m, m+1)
    A(f"v_mul_f32 v{m}, {sL2E}, v{m}")
    for i in range(32): A(f"v_fma_f32 v{E+i}, v{E+i}, {sL2E}, -v{m}")
    for i in range(32): A(f"v_exp_f32 v{E+i}, v{E+i}")
    A(f"v_pk_add_f32 {v2(m+2)}, {v2(E)}, {v2(E+2)}")
    for i in range(4, 32, 2): A(f"v_pk_add_f32 {v2(m+2)}, {v2(m+2)}, {v2(E+i)}")
    A(f"v_add_f32 v{m+2}, v{m+2}, v{m+3}")
    wave_red("v_add_f32", m+2, m+1)
    A(f"v_log_f32 v{vACC+2}, v{m+2}")
    A(f"v_add_f32 v{vQ}, v{vACC+2}, v{m}"); A(f"v_mov_b32 v{vQ+1}, {sTAG}"); A(f"v_mov_b32 v{vQ+2}, s10")
    A("s_waitcnt vmcnt(0)")
    A("s_mov_b64 exec, 1")
    A(f"buffer_store_dwordx4 {v4(vQ)}, v{vZERO}, {SWS}, s8 offen offset:512 sc1")
    A("s_mov_b64 exec, -1")
    R = [40, 42, 44, 46, 52, 54, 56, 58]
    A(f"s_mov_b32 {sTO}, 0x40000")
    A.label("L_lam")
    if lsl: A(f"s_sleep {lsl}")
    for n in range(8): A(f"s_load_dwordx2 s[{R[n]}:{R[n]+1}], s[6:7], {n*1024 + 512} glc")
    A(f"s_sub_u32 {sTO}, {sTO}, 1"); A(f"s_cmp_eq_u32 {sTO}, 0"); A("s_cbranch_scc1 L_lamd")
    A("s_waitcnt lgkmcnt(0)")
    for n in range(8):
        A(f"s_cmp_lg_u32 s{R[n]+1}, {sTAG}"); A("s_cbranch_scc1 L_lam")
    A.label("L_lamd")
    A("s_waitcnt lgkmcnt(0)")
    lam = [RING + 32 + n for n in range(8)]
    for n in range(8): A(f"v_mov_b32 v{lam[n]}, s{R[n]}")
    if KAP:
        for n in range(8): A(f"s_load_dword s{R[n]+1}, s[6:7], {n*1024 + 520} glc")
    t = vA_
    A(f"v_max3_f32 v{t}, v{lam[0]}, v{lam[1]}, v{lam[2]}"); A(f"v_max3_f32 v{t}, v{t}, v{lam[3]}, v{lam[4]}")
    A(f"v_max3_f32 v{t}, v{t}, v{lam[5]}, v{lam[6]}"); A(f"v_max_f32 v{t}, v{t}, v{lam[7]}")
    for n in range(8): A(f"v_sub_f32 v{lam[n]}, v{lam[n]}, v{t}")
    for n in range(8): A(f"v_exp_f32 v{lam[n]}, v{lam[n]}")
    for n in range(1, 8): A(f"v_add_f32 v{lam[0]}, v{lam[0]}, v{lam[n]}")
    A(f"v_log_f32 v{lam[0]}, v{lam[0]}")
    A(f"v_add_f32 v{t}, v{t}, v{lam[0]}")
    A(f"v_sub_f32 v{m}, v{m}, v{t}"); A(f"v_exp_f32 v{m}, v{m}")
    A(f"ds_write_b32 v{vZERO}, v{t} offset:{L_LAM}")
    for i in range(32): A(f"v_mul_f32 v{E+i}, v{E+i}, v{m}")
    for i in range(32): A(f"v_cvt_pk_bf16_f32 v{E+i}, v{E+i}, v{E+i}")
    for n in range(8): A(f"ds_write_b128 v{vLANE16}, {v4(E+4*n)} offset:{L_P + 1024*n}")
    A("s_waitcnt lgkmcnt(0)")
    A(f"ds_write_b32 v{vZERO}, v{vONE} offset:{L_PF}")
    if KAP:
        A("s_mov_b32 s9, 0")
        for n in range(8):
            A(f"s_sub_u32 s68, s10, s{R[n]+1}"); A("s_add_u32 s9, s9, s68")
        A("s_ashr_i32 s9, s9, 3"); A(f"s_sub_i32 s9, s9, {LAG0}"); A("s_max_i32 s9, s9, 0"); A("s_min_i32 s9, s9, 1000")
        A(f"s_mul_i32 s9, s9, {KAP}"); A("s_lshr_b32 s9, s9, 8"); A(f"s_min_u32 s9, s9, {CAP}"); A("s_add_u32 s9, s9, 1")
        A(f"v_mov_b32 v{vT}, s9"); A(f"ds_write_b32 v{vZERO}, v{vT} offset:{L_N6}")
    A("s_setprio 0")
    if stamps == 8:
        lds_wait(L_VT, 92, slow=True, slp=2); stamp(4); lds_wait(L_VT, 112, slow=True, slp=2); stamp(5); stamp_dump([4, 5], final=False)
    if stamps:
        stamp(14); stamp_dump([14], final=False)
    A("s_waitcnt lgkmcnt(0)")
    A("s_branch L_join")
    A.label("L_help7")
    if any(QK):
        A(f"s_bitcmp1_b32 {sK}, 2"); A(f"s_cselect_b32 s37, {QK[6]}, {QK[5]}")
        for lim, q_ in ((24, QK[4]), (22, QK[3]), (17, QK[2]), (10, QK[1]), (5, QK[0])):
            A(f"s_cmp_lt_u32 {sK}, {lim}"); A(f"s_cselect_b32 s37, {q_}, s37")
        A("s_cmp_eq_u32 s37, 0"); A("s_cbranch_scc1 L_xkd")
        A("s_load_dwordx2 s[6:7], s[0:1], 8")
        A(f"s_mul_i32 {sST}, {sHD}, {ROT}"); A(f"s_lshl_b32 s68, {sS}, 7"); A(f"s_add_u32 {sST}, {sST}, s68")
        A(f"s_lshl_b32 s68, {sHD}, 22")
        A(f"v_and_b32 v{vPB}, 60, v{vLANE}")
        A(f"v_and_b32 v{vT}, 15, v{vLANE}"); A(f"v_lshlrev_b32 v{vT}, 4, v{vT}")
        A("s_waitcnt lgkmcnt(0)")
        A("s_add_u32 s40, s6, s68"); A("s_addc_u32 s41, s7, 0"); A("s_mov_b32 s42, 0x400000"); A("s_mov_b32 s43, 0x20000")
        lds_wait(L_QF, 1, slow=True)
        A(f"ds_read_b128 {v4(vQ)}, v{vT} offset:{L_Q}")
        A.label("L_xk")
        req(L_KT)
        A("s_waitcnt lgkmcnt(0)")
        A(f"v_readfirstlane_b32 {sTK}, v{vTKT}")
        A(f"s_cmp_ge_u32 {sTK}, 128"); A("s_cbranch_scc1 L_xkd")
        tile_addr(sTK, sST)
        load(SK, 0)
        A(f"s_lshl_b32 s68, {sTK}, 6"); A(f"v_add_u32 v{vE_}, s68, v{vPB}")
        A("s_waitcnt vmcnt(0)")
        qk(0, vE_, L_P)
        A("s_sub_u32 s37, s37, 1"); A("s_cmp_lg_u32 s37, 0"); A("s_cbranch_scc1 L_xk")
        A.label("L_xkd")
        A("s_waitcnt lgkmcnt(0)")
        A("s_mov_b64 exec, 1"); A(f"ds_add_u32 v{vZERO}, v{vONE} offset:{L_KD}"); A("s_mov_b64 exec, -1")
        A("s_waitcnt lgkmcnt(0)")
    if BM is None:
        A(f"s_cmp_lg_u32 {sK}, 22"); A("s_cbranch_scc1 L_nprb")
        A(f"s_lshl_b32 s6, {sG}, 14"); A(f"s_add_u32 s6, s6, {WS_PRB}"); A("s_add_u32 s6, s6, s30"); A("s_addc_u32 s7, s31, 0")
        A("s_mov_b32 s8, -1"); A("s_mov_b32 s9, -1"); A(f"s_mov_b32 s37, {NPR}")
        A.label("L_prb")
        for h in range(2):
            A("s_memtime s[40:41]"); A("s_waitcnt lgkmcnt(0)")
            A(f"s_load_dword s44, s[6:7], {h*8192} glc"); A("s_waitcnt lgkmcnt(0)")
            A("s_memtime s[42:43]"); A("s_waitcnt lgkmcnt(0)")
            A("s_sub_u32 s42, s42, s40"); A(f"s_min_u32 s{8+h}, s{8+h}, s42")
        A("s_sub_u32 s37, s37, 1"); A("s_cmp_lg_u32 s37, 0"); A("s_cbranch_scc1 L_prb")
        A("s_cmp_lt_u32 s9, s8"); A("s_cselect_b32 s68, 1, 0")
        A(f"v_mov_b32 v{vACC}, s68"); A(f"v_mov_b32 v{vACC+1}, s8"); A(f"v_mov_b32 v{vACC+2}, s9")
        A(f"s_lshl_b32 s68, {sG}, 7"); A(f"s_add_u32 s68, s68, {WS_BETA}")
        A("s_mov_b64 exec, 1")
        publish(vACC, vZERO, "s68")
        A("s_mov_b64 exec, -1")
        A.label("L_nprb")
    if KAP:
        A("s_load_dwordx2 s[6:7], s[0:1], 16")
        A(f"s_mul_i32 {sST}, {sHD}, {ROT}"); A(f"s_lshl_b32 s68, {sS}, 7"); A(f"s_add_u32 {sST}, {sST}, s68")
        A(f"s_lshl_b32 s68, {sHD}, 22")
        A(f"v_and_b32 v{vPB}, 60, v{vLANE}")
        for r in range(4): A(f"v_mov_b32 v{vACC+r}, 0")
        A("s_waitcnt lgkmcnt(0)")
        A("s_add_u32 s44, s6, s68"); A("s_addc_u32 s45, s7, 0"); A("s_mov_b32 s46, 0x400000"); A("s_mov_b32 s47, 0x20000")
        lds_wait(L_N6, 1, slow=True)
        A("s_waitcnt lgkmcnt(0)")
        A(f"v_readfirstlane_b32 s37, v{vBAD}")
        A.label("L_xv")
        A("s_cmp_le_u32 s37, 1"); A("s_cbranch_scc1 L_xvd")
        req(L_VT)
        A("s_waitcnt lgkmcnt(0)")
        A(f"v_readfirstlane_b32 {sTK}, v{vTKT}")
        A(f"s_cmp_ge_u32 {sTK}, {NS}"); A("s_cbranch_scc1 L_xvd")
        tile_addr(sTK, sST)
        load(SV, 0)
        A(f"s_lshl_b32 s68, {sTK}, 6"); A(f"v_add_u32 v{vE_}, s68, v{vPB}")
        A(f"ds_read_b32 v{vE_}, v{vE_} offset:{L_P}")
        A("s_waitcnt lgkmcnt(0)")
        build(vE_)
        A("s_waitcnt vmcnt(0)")
        mm(0)
        A("s_sub_u32 s37, s37, 1"); A("s_branch L_xv")
        A.label("L_xvd")
        A(f"v_lshrrev_b32 v{vT}, 1, v{vNAT}")
        A(f"ds_write_b64 v{vT}, {v2(vACC)} offset:{L_PART + 512*NL}")
        A("s_waitcnt lgkmcnt(0)")
    A("s_branch L_join")

    A.label("L_ctrl0")
    A("s_setprio 3")
    A(f"v_mov_b32 v{vT+4}, {KT0}"); A(f"v_mov_b32 v{vT+5}, {VT0}"); A(f"v_mov_b32 v{vT+6}, 0"); A(f"v_mov_b32 v{vT+7}, 0")
    A(f"ds_write_b128 v{vZERO}, {v4(vT+4)} offset:{L_KT}")
    A(f"ds_write_b64 v{vZERO}, {v2(vT+6)} offset:{L_KD}"); A(f"ds_write_b64 v{vZERO}, {v2(vT+6)} offset:{L_MF}")
    A("s_waitcnt lgkmcnt(0)")
    A("s_barrier")
    if abl & 2:
        common_setup()
        A(f"s_lshl_b32 s68, {sHD}, 8"); A(f"s_add_u32 s68, s68, {WS_CNT}")
        A("s_mov_b64 exec, 1"); A(f"buffer_store_dword v{vZERO}, v{vZERO}, {SWS}, s68 offen sc1"); A("s_mov_b64 exec, -1")
        A(f"v_lshlrev_b32 v{vT}, 2, v{vLANE}"); A(f"v_mov_b32 v{vT+1}, 0x3f803f80"); A(f"ds_write_b32 v{vT}, v{vT+1} offset:{L_Q}"); A("s_waitcnt lgkmcnt(0)")
        A(f"ds_write_b32 v{vZERO}, v{vONE} offset:{L_QF}")
        A("s_branch L_ctrl_w"); A.label("L_abl2")
    A("s_mov_b32 s39, 0")
    A(f"s_cmp_ge_u32 {sK}, 24"); A("s_cbranch_scc1 L_ctrl_q")
    A(f"s_sub_u32 s38, {sK}, 17"); A("s_cmp_ge_u32 s38, 5"); A("s_cbranch_scc1 L_ctrl_none")
    A("s_lshl_b32 s38, s38, 3"); A(f"s_add_u32 s38, s38, {sG}")
    A("s_lshl_b32 s6, s38, 10"); A(f"s_add_u32 s6, s6, {WS_MODP}")
    A("s_and_b32 s39, s38, 3"); A("s_lshr_b32 s38, s38, 2")
    mod_loads("s38", "s39")
    common_setup()
    mod_compute()
    publish(vACC, vLANE16 if linP else vNAT, "s6")
    stamp(1)
    A("s_branch L_hop2")
    A.label("L_ctrl_none")
    if cearly and cstart and not abl: tail_loads(True)
    common_setup()
    A("s_branch L_hop2")
    A.label("L_ctrl_q")
    WQ = RING + 64
    XA = RING
    X0, X1 = 24, 25
    A(f"s_and_b32 s38, {sK}, 3"); A("s_lshl_b32 s38, s38, 3"); A(f"s_add_u32 s38, s38, {sG}")
    A(f"s_bfe_u32 s37, {sK}, 0x10002"); A("s_mul_i32 s68, s37, 3"); A("s_add_u32 s39, s39, s68")
    srd(SB, "s4", "s5", 1280); srd(SA, "s10", "s11", 640*8192)
    A(f"v_lshlrev_b32 v{vT+2}, 2, v{vLANE}")
    for k in range(5): A(f"buffer_load_dword v{XA+2*k+1}, v{vT+2}, {SB}, 0 offen offset:{k*256}")
    A("s_lshl_b32 s68, s39, 8")
    A(f"v_lshrrev_b32 v{vT}, 4, v{vLANE}"); A(f"v_and_b32 v{vT+1}, 15, v{vLANE}")
    if linP: A(f"v_lshlrev_b32 v{vT+2}, 2, v{vT}"); A(f"v_lshl_add_u32 v{vT+2}, v{vT+1}, 4, v{vT+2}")
    A(f"buffer_load_dword v{X1}, v{vT+2}, {SB}, s68 offen")
    A(f"v_lshlrev_b32 v{vT}, {14 if linP else 18}, v{vT}")
    A(f"v_lshl_add_u32 v{vT+3}, v{vT+1}, 4, v{vT}")
    A("s_lshl_b32 s69, s39, 20"); A("s_lshl_b32 s68, s38, 8"); A("s_add_u32 s69, s69, s68")
    for n in range(32):
        u, j = n // 16, n % 16
        A(f"s_add_u32 s68, s69, {((8 if linP else 2)*j+u)*8192}")
        A(f"buffer_load_dwordx4 {v4(WQ+4*n)}, v{vT+3}, {SA}, s68 offen {pol}")
    common_setup()
    A("s_lshl_b32 s68, s38, 8"); A(f"s_add_u32 s68, s68, {WS_CNT}")
    A("s_cmp_lg_u32 s39, 0"); A("s_cbranch_scc1 L_nocnt")
    A("s_mov_b64 exec, 1")
    A(f"buffer_store_dword v{vZERO}, v{vZERO}, {SWS}, s68 offen sc1")
    A("s_mov_b64 exec, -1")
    A("s_waitcnt vmcnt(33)")
    A("s_branch L_cntj")
    A.label("L_nocnt")
    A("s_waitcnt vmcnt(32)")
    A.label("L_cntj")
    for k in range(5):
        A(f"v_lshlrev_b32 v{XA+2*k}, 16, v{XA+2*k+1}"); A(f"v_and_b32 v{XA+2*k+1}, 0xffff0000, v{XA+2*k+1}")
    A(f"v_lshlrev_b32 v{X0}, 16, v{X1}"); A(f"v_and_b32 v{X1}, 0xffff0000, v{X1}")
    t = vT + 8; a = XA
    A(f"v_add_f32 v{t}, v{a}, v{a+1}")
    for i in range(2, 10): A(f"v_add_f32 v{t}, v{t}, v{a+i}")
    wave_red("v_add_f32", t, t+1)
    A(f"v_mul_f32 v{t}, {fh(1.0/640)}, v{t}")
    for i in range(10): A(f"v_sub_f32 v{a+i}, v{a+i}, v{t}")
    A(f"v_mul_f32 v{t+2}, v{a}, v{a}")
    for i in range(1, 10): A(f"v_fmac_f32 v{t+2}, v{a+i}, v{a+i}")
    wave_red("v_add_f32", t+2, t+1)
    A(f"v_mul_f32 v{t+2}, {fh(1.0/640)}, v{t+2}")
    rbf2(t, t+2)
    A(f"v_add_f32 v{t+2}, {fh(1e-5)}, v{t+2}"); rbf(t+2, t+2)
    A(f"v_sqrt_f32 v{t+2}, v{t+2}"); rbf(t+2, t+2)
    A(f"v_rcp_f32 v{t+2}, v{t+2}")
    A(f"v_sub_f32 v{X0}, v{X0}, v{t}"); A(f"v_sub_f32 v{X1}, v{X1}, v{t}"); rbf2(X0, X1)
    A(f"v_mul_f32 v{X0}, v{X0}, v{t+2}"); A(f"v_mul_f32 v{X1}, v{X1}, v{t+2}"); rbf2(X0, X1)
    A("s_lshl_b32 s6, s39, 12"); A(f"s_add_u32 s6, s6, {WS_MODP}"); A(f"s_add_u32 s7, s6, {5*4096}")
    stamp(1)
    spre("s6", [(n // 4)*5*4096 + (n % 4)*1024 for n in range(8)])
    poll([(vLANE16, f"s{6+n//4}", (n % 4)*1024, None) for n in range(8)], RING)
    stamp(2)
    sum2([RING+4*n for n in range(4)]); sum2([RING+16+4*n for n in range(4)])
    rbf2(RING, RING+1); rbf2(RING+16, RING+17)
    c0, c1, s0, s1 = RING+16, RING+17, RING, RING+1
    A(f"v_add_f32 v{c0}, 1.0, v{c0}"); A(f"v_add_f32 v{c1}, 1.0, v{c1}"); rbf2(c0, c1)
    A(f"v_mul_f32 v{X0}, v{X0}, v{c0}"); A(f"v_mul_f32 v{X1}, v{X1}, v{c1}"); rbf2(X0, X1)
    A(f"v_add_f32 v{X0}, v{X0}, v{s0}"); A(f"v_add_f32 v{X1}, v{X1}, v{s1}")
    A(f"v_cvt_pk_bf16_f32 v{X0}, v{X0}, v{X0}"); A(f"v_cvt_pk_bf16_f32 v{X1}, v{X1}, v{X1}")
    gemv(vACC, vM2, [((X0, X1)[n // 16], f"row_newbcast:{n % 16}", WQ + 4*n, None) for n in range(32)])
    A(f"v_lshlrev_b32 v{vT}, 3, v{vLANE}")
    A(f"s_cmp_eq_u32 {sWAVE}, 0"); A("s_cbranch_scc1 L_qsum")
    A(f"s_lshl_b32 s68, {sWAVE}, 9"); A(f"v_add_u32 v{vT}, s68, v{vT}")
    A(f"ds_write_b64 v{vT}, {v2(vACC)} offset:{L_ACC - 6*512}")
    A("s_waitcnt lgkmcnt(0)")
    A("s_mov_b64 exec, 1"); A(f"ds_add_u32 v{vZERO}, v{vONE} offset:{L_MF}"); A("s_mov_b64 exec, -1")
    A("s_setprio 0")
    A(f"s_cmp_eq_u32 {sWAVE}, 7"); A("s_cbranch_scc1 L_soft")
    A("s_branch L_help7")
    A.label("L_qsum")
    lds_wait(L_MF, 2)
    A(f"ds_read_b64 {v2(RING)}, v{vT} offset:{L_ACC}"); A(f"ds_read_b64 {v2(RING+2)}, v{vT} offset:{L_ACC+512}")
    A("s_lshl_b32 s68, s38, 1"); A("s_add_u32 s68, s68, s37"); A("s_lshl_b32 s68, s68, 10"); A(f"s_add_u32 s68, s68, {WS_QP}")
    A("s_waitcnt lgkmcnt(0)")
    A(f"v_pk_add_f32 {v2(vACC)}, {v2(vACC)}, {v2(RING)}"); A(f"v_pk_add_f32 {v2(vACC)}, {v2(vACC)}, {v2(RING+2)}")
    publish(vACC, vLANE16 if linP else vNAT, "s68")
    A.label("L_hop2")
    stamp(3)
    A(f"s_lshl_b32 s6, {sHD}, 11"); A(f"s_add_u32 s6, s6, {WS_QP}")
    spre("s6", [n*1024 for n in range(2)])
    poll([(vLANE16, "s6", n*1024, None) for n in range(2)], RING)
    sum2([RING+4*n for n in range(2)])
    A(f"v_cvt_pk_bf16_f32 v{RING}, v{RING}, v{RING+1}")
    A(f"v_lshrrev_b32 v{vT}, 2, v{vNAT}" if linP else f"v_lshlrev_b32 v{vT}, 2, v{vLANE}")
    A(f"ds_write_b32 v{vT}, v{RING} offset:{L_Q}")
    A("s_waitcnt lgkmcnt(0)")
    A(f"ds_write_b32 v{vZERO}, v{vONE} offset:{L_QF}")
    stamp(4)
    if dbg: A("s_memrealtime s[80:81]"); dbg_rec(0, "s96", "s80")
    if hold == 1: A("s_memrealtime s[96:97]")
    A("s_setprio 0")
    A.label("L_ctrl_w")
    if abl: A("s_barrier"); A("s_endpgm"); A.label("L_abl_dead2")
    if cearly and not cstart: tail_loads(True)
    A(f"s_cmp_ge_u32 {sF}, 54"); A("s_cbranch_scc1 L_cnomr")
    srd(SB, "s4", "s5", 1280)
    A(f"v_lshlrev_b32 v{vT}, 2, v{vLANE}"); A(f"v_lshlrev_b32 v{vT+1}, 3, v{vLANE}")
    for k in range(5): A(f"buffer_load_dword v{vAOP+2*k+1}, v{vT}, {SB}, 0 offen offset:{k*256}")
    A("s_waitcnt vmcnt(0)")
    for k in range(5):
        A(f"v_lshlrev_b32 v{vAOP+2*k}, 16, v{vAOP+2*k+1}"); A(f"v_and_b32 v{vAOP+2*k+1}, 0xffff0000, v{vAOP+2*k+1}")
        A(f"ds_write_b64 v{vT+1}, {v2(vAOP+2*k)} offset:{L_X2 + 512*k}")
    if linP: A(f"v_lshrrev_b32 v{vT+1}, 1, v{vNAT}")
    for arr in range(4):
        for i, o in enumerate((0, 4096, 20480, 24576)): A(f"s_mov_b32 s{40+i}, {WS_MR + arr*5120 + o}")
        poll([(vLANE16, f"s{40 + 2*h + (k // 4)}", (k % 4)*1024, None) for k in range(5) for h in range(2)], RING)
        for k in range(5):
            b = RING + 8*k
            A(f"v_pk_add_f32 {v2(b)}, {v2(b)}, {v2(b+4)}"); rbf2(b, b+1)
            if arr == 2:
                A(f"v_add_f32 v{b}, 1.0, v{b}"); A(f"v_add_f32 v{b+1}, 1.0, v{b+1}"); rbf2(b, b+1)
            A(f"ds_write_b64 v{vT+1}, {v2(b)} offset:{L_MOD + arr*2560 + 512*k}")
    A.label("L_cnomr")
    if BM is None:
        lds_wait(L_VT, 88, slow=True)
        A(f"v_and_b32 v{vT}, 7, v{vLANE}"); A(f"v_lshlrev_b32 v{vT}, 7, v{vT}"); A(f"s_mov_b32 s40, {WS_BETA}")
        poll([(vT, "s40", 0, None)], RING)
        A(f"v_cmp_ne_u32 vcc, 0, v{RING}")
        A(f"v_mov_b32 v{vT}, vcc_lo"); A(f"v_and_b32 v{vT}, 0xff, v{vT}")
        A(f"ds_write_b32 v{vZERO}, v{vT} offset:{L_BM}")
        A("s_waitcnt lgkmcnt(0)")
    beta_get()
    A(f"s_and_b32 s68, {sHD}, 7"); side("s9", "s68")
    A(f"s_lshl_b32 s8, {sHD}, 4"); A(f"s_add_u32 s8, s8, {sS}"); A("s_lshl_b32 s8, s8, 10"); A("s_add_u32 s8, s8, s9"); A(f"s_add_u32 s8, s8, {WS_OP}")
    A(f"v_lshlrev_b32 v{vT}, 3, v{vLANE}"); A(f"v_mov_b32 v{TMP+3}, {sTAG}")
    A("s_waitcnt vmcnt(0) lgkmcnt(0)")
    stamp(5)
    A("s_barrier")
    stamp(6)
    if hold == 2: A("s_memrealtime s[96:97]")
    NPART = NL + (1 if KAP else 0)
    for w in range(NPART): A(f"ds_read_b64 {v2(RING+2*w)}, v{vT} offset:{L_PART+512*w}")
    A("s_waitcnt lgkmcnt(0)")
    sum2([RING+2*w for w in range(NPART)], TMP)
    A(f"buffer_store_dwordx4 {v4(TMP)}, v{vLANE16}, {SWS}, s8 offen sc1")
    stamp(13)
    if cearly and not cwo:
        A(f"s_cmp_lt_u32 {sK}, 10"); A("s_cbranch_scc1 L_tail0")
    A("s_branch L_tail" if cearly else "s_branch L_tail0")
    A.label("L_end")
    A("s_endpgm")
    A('.section .rodata,"a"'); A(".p2align 6"); A(f".amdhsa_kernel {KN}")
    A(".amdhsa_next_free_vgpr 256"); A(".amdhsa_next_free_sgpr 100"); A(".amdhsa_accum_offset 256")
    A(".amdhsa_group_segment_fixed_size 0"); A(".amdhsa_kernarg_size 112"); A(".amdhsa_user_sgpr_count 2")
    A(".amdhsa_user_sgpr_kernarg_segment_ptr 1"); A(".amdhsa_system_sgpr_workgroup_id_x 1")
    A(".amdhsa_float_denorm_mode_32 3")
    A(".end_amdhsa_kernel")
    return A.finalize()

def check_inter(w, inter):
    import numpy as np
    def cmp(name, got, exp):
        err = np.abs(got - exp).max(); rel = np.linalg.norm(got - exp) / np.linalg.norm(exp)
        print("   inter %-5s maxabs %.4e (scale %.3e) relL2 %.3e nan=%d" % (name, err, np.abs(exp).max(), rel, int(np.isnan(got).sum())), got[:4], exp[:4])
    def bf(x):
        u = x.astype(np.float32).view(np.uint32); u = (u + 0x7fff + ((u >> 16) & 1)) & 0xffff0000
        return u.view(np.float32)
    gr = lambda off, n: w[off // 4: off // 4 + n*4].reshape(n, 4)
    md = np.concatenate([gr(WS_MODP, 10*4*64)[:, :2].reshape(10, 4, 128).sum(1).reshape(-1), gr(WS_MR, 2*1280)[:, :2].reshape(2, 2560).sum(0)])
    cmp("mod", md, inter["mod"]); print("      mod bf16 mismatches", int((bf(md) != inter["mod"]).sum()))
    q = gr(WS_QP, 32*2*64)[:, :2].reshape(32, 2, 128).sum(1).reshape(-1)
    cmp("q", q, inter["q"]); print("      q bf16 mismatches", int((bf(q) != inter["q"]).sum()))
    b = w[WS_BETA // 4: WS_BETA // 4 + 8*32].view(np.uint32).reshape(8, 32)
    print("      side, min latency 0/1:", [tuple(int(v) for v in r[:3]) for r in b])

if __name__ == "__main__":
    out = sys.argv[1]
    kw = {}
    for a in sys.argv[2:]:
        k, v = a.split("=")
        kw[k] = eval(v)
    open(out, "w").write(gen(**kw))
```

```python
import gen47
body = gen47.gen()
first, rest = body.split("\n", 1)
ref = open("adaLN_cond__gqa_block_cached__swiglu_ffn__decode.s.ref").read().split("\n")
hdr = [l for l in ref if l.startswith(";") and "@launch" not in l and "Override launch" not in l and "grid=ceil" not in l]
doc = """;
; One persistent launch, one 512-thread workgroup per CU (generated by a hand-written Python emitter).
;   workgroup = (head, 1/8 of the keys); waves 1-5 stream K, then V (one 4-KiB group in flight per wave);
;   wave 0 builds q (mod -> LayerNorm -> wq, handed between workgroups); wave 7 does the softmax statistics
;   (true max / sum, exchanged inside the head); wave 6 helps workgroups that fell behind;
;   the last tiles of V are shared inside a head through a ticket counter.
;   Tail: partial o -> wo -> residual + LayerNorm -> gate/up -> down -> out, split over workgroups.
;   Hand-offs go through d_ws as self-validating granules tagged with (word 0 of d_ws + 0x01010101);
;   word 0 is advanced at the end, so a launch can tell its own hand-offs from an earlier launch's.
;   The tail hand-off cells have two halves; each reader group announces (within the launch) the half it reads faster.
;""".split("\n")
open("adaLN_cond__gqa_block_cached__swiglu_ffn__decode.s", "w").write("\n".join(hdr + doc + [first]) + "\n" + rest)
```

```python
import sys, struct
from asmdsl import Asm
KN = "adaLN_cond__gqa_block_cached__swiglu_ffn__decode_kernel"

def f2u(x): return struct.unpack("<I", struct.pack("<f", x))[0]
def fh(x): return hex(f2u(x))
LOG2E = 1.4426950408889634
SCALE = 128 ** -0.5

WS_MODP = 0x1000
WS_QP   = WS_MODP + 10*4*1024
WS_SP   = WS_QP + 32*2*1024
WS_MR   = WS_SP + 32*8*1024
WS_CNT  = WS_MR + 2*20480
WS_OP   = 0x200000
WS_YP   = WS_OP + 32*16384
WS_DP   = WS_YP + 32*16384
WS_PRB  = WS_DP + 40*16384
WS_BETA = WS_PRB + 8*16384
WS_END  = WS_BETA + 1024
WS_STAMP = 0x10000000
L_KT, L_VT, L_QF, L_PF, L_KD, L_RANK, L_MF, L_N6, L_LAM, L_BM = 0, 4, 8, 12, 16, 20, 24, 28, 32, 36
L_Q = 0x100
L_ST = 0x200
L_PART = 0x400
L_ACC = 0x1000
L_X2 = 0x2000
L_P = 0x3000
L_MOD = 0x5000
L_END = 0x7800
DPPF = "row_mask:0xf bank_mask:0xf"

def gen(stamps=0, pol="nt", NK=12, NV=10, NS=120, NL=5, SLP=16, wake=False, KAP=26, LAG0=20, CAP=20, SLK=4, psl=0, ROT=304, abl=0, PFTH=2, LTH=63, linD=True, linP=True, lsl=0, MAP=0, cwo=True, dbg=False, hold=0, dseq=True, rx=3, BM=None, fin=1, ptd=0, F0=None, bar3=False, cprio=False, NPR=22, cearly=True, CTH=63, QK=(0, 8, 4, 3, 0, 10, 6), cstart=True, tp="", pp="", DNP=1, wbar=False, EW=(), NR=4, TW=0, TWD=4, now=0, pf=True, pf2=True, Q_wo=999, Q_ffn=999):
    NP = 8 * (128 - NS); Q_wo = min(Q_wo, NP); Q_ffn = min(Q_ffn, NP)
    A = Asm()
    uid = [0]
    def U(p):
        uid[0] += 1; return f"L_{p}_{uid[0]}"
    sWAVE, sHD, sS, sTAG, sK, sG = "s3", "s32", "s33", "s34", "s35", "s36"
    SK, SV, SWS, SA, SB = "s[40:43]", "s[44:47]", "s[48:51]", "s[52:55]", "s[56:59]"
    sTP, sST, sL2E, sSC, sTO, sF, sTK = "s60", "s61", "s62", "s63", "s64", "s65", "s66"
    sROT, sQ, SCNT = "s37", "s29", "s[38:39]"
    def stamp(k):
        if stamps: A(f"s_memrealtime s[{70+2*k}:{71+2*k}]")
    def stamp_dump(slots, xcc=False, final=True):
        if not stamps: return
        A("s_waitcnt lgkmcnt(0)")
        A("s_mov_b64 exec, 1")
        A(f"s_lshl_b32 s69, s2, 7"); A(f"s_add_u32 s69, s69, {WS_STAMP}")
        A("s_mov_b32 s50, 0x20000000")
        for k in slots:
            A(f"v_mov_b32 v{vT+10}, s{70+2*k}"); A(f"v_mov_b32 v{vT+11}, s{71+2*k}")
            A(f"buffer_store_dwordx2 v[{vT+10}:{vT+11}], v{vZERO}, {SWS}, s69 offen offset:{k*8}")
            A("s_nop 1")
        if xcc:
            A("s_getreg_b32 s68, hwreg(HW_REG_XCC_ID)")
            A(f"v_mov_b32 v{vT+10}, s68"); A(f"v_mov_b32 v{vT+11}, 0")
            A(f"buffer_store_dwordx2 v[{vT+10}:{vT+11}], v{vZERO}, {SWS}, s69 offen offset:120")
        if not final: A("s_mov_b64 exec, -1")
    def dbg_rec(slot, a, b):
        A("s_waitcnt lgkmcnt(0)")
        A("s_load_dwordx2 s[90:91], s[0:1], 96"); A(f"s_sub_u32 s88, {b}, {a}"); A("s_mov_b32 s89, s88"); A("s_waitcnt lgkmcnt(0)")
        A(f"s_atomic_umax s88, s[90:91], {slot*4}"); A(f"s_atomic_add s89, s[90:91], {slot*4+4}"); A("s_waitcnt lgkmcnt(0)")
    sBM = "s28"
    def beta_get():
        if BM is not None:
            A(f"s_mov_b32 {sBM}, {BM}"); return
        A(f"ds_read_b32 v{vBAD}, v{vZERO} offset:{L_BM}")
        A("s_waitcnt lgkmcnt(0)")
        A(f"v_readfirstlane_b32 {sBM}, v{vBAD}")
    def side(dst, grp):
        A(f"s_lshr_b32 {dst}, {sBM}, {grp}"); A(f"s_and_b32 {dst}, {dst}, 1"); A(f"s_lshl_b32 {dst}, {dst}, 13")
    def srd(S, lo, hi, n):
        b = int(S[2:S.index(":")])
        A(f"s_mov_b32 s{b}, {lo}"); A(f"s_mov_b32 s{b+1}, {hi}"); A(f"s_mov_b32 s{b+2}, {n}"); A(f"s_mov_b32 s{b+3}, 0x20000")
    def v4(b): return f"v[{b}:{b+3}]"
    def v2(b): return f"v[{b}:{b+1}]"
    def dpp_red(op, vs, ctls):
        for ctl in ctls:
            for v in vs: A(f"{op}_dpp v{v}, v{v}, v{v} {ctl}")
    QUAD = [f"quad_perm:[1,0,3,2] {DPPF}", f"quad_perm:[2,3,0,1] {DPPF}"]
    BANK = [f"row_ror:4 {DPPF}", f"row_ror:8 {DPPF}"]
    BCAST = ["row_bcast:15 row_mask:0xa bank_mask:0xf", "row_bcast:31 row_mask:0xc bank_mask:0xf"]
    def xrow(op, v, t, which):
        A(f"v_mov_b32 v{t}, v{v}"); A(f"v_permlane{which}_swap_b32 v{v}, v{t}"); A(f"{op} v{v}, v{v}, v{t}")
    def wave_red(op, v, t):
        dpp_red(op, [v], QUAD + BANK); xrow(op, v, t, 16); xrow(op, v, t, 32)
    def rbf(d, s):
        A(f"v_cvt_pk_bf16_f32 v{d}, v{s}, v{s}"); A(f"v_and_b32 v{d}, 0xffff0000, v{d}")
    def rbf2(a, b):
        A(f"v_cvt_pk_bf16_f32 v{b}, v{a}, v{b}"); A(f"v_lshlrev_b32 v{a}, 16, v{b}"); A(f"v_and_b32 v{b}, 0xffff0000, v{b}")
    vLANE16, vZERO, vONE, vTKT, vADDR, vPB, vPW, vL = 1, 2, 3, 4, 5, 6, 7, 8
    vLANE, vNAT, vBAD = 9, 10, 11
    vQ, vM2, vACC = 12, 16, 20
    vR, vA_, vB_, vC_, vE_ = 24, 28, 29, 30, 31
    vAOP = 32
    vT = 48
    vM1 = 60
    RING = 64
    WT = RING + 48
    WD = WT + 80
    WD2 = WD + 32
    TMP = RING + 32
    ACC2 = RING + 40
    PF = RING + 44
    def publish(b, voff, soff):
        A(f"v_mov_b32 v{b+3}, {sTAG}")
        A(f"buffer_store_dwordx4 {v4(b)}, v{voff}, {SWS}, {soff} offen sc1")
    def poll(loads, base, tags=(3,), extra=None, nextra=0):
        n = len(loads)
        dst = base if isinstance(base, list) else [base + 4*i for i in range(n)]
        L = U("poll"); Ld = U("pdone")
        def one(k):
            for idx, (vo, so, imm, em) in enumerate(loads):
                if em is not None: A(f"s_mov_b64 exec, {em}")
                A(f"buffer_load_dwordx4 {v4(dst[idx])}, v{vo}, {SWS}, {so} offen offset:{imm} sc1")
                if em is not None: A("s_mov_b64 exec, -1")
            if k: extra()
            first = True
            for idx in range(n):
                d = dst[idx]
                A(f"s_waitcnt vmcnt({k + n-1-idx})")
                for tp in tags:
                    if first: A(f"v_xor_b32 v{vBAD}, {sTAG}, v{d+tp}"); first = False
                    else: A(f"v_bitop3_b32 v{vBAD}, v{vBAD}, v{d+tp}, {sTAG} bitop3:0xf6")
            A(f"v_cmp_ne_u32 vcc, 0, v{vBAD}")
            A(f"s_cbranch_vccz {Ld}")
        if extra: one(nextra)
        A(f"s_mov_b32 {sTO}, 0x40000")
        A.label(L)
        one(0)
        A(f"s_sub_u32 {sTO}, {sTO}, 1")
        A(f"s_cmp_lg_u32 {sTO}, 0")
        A(f"s_cbranch_scc1 {L}")
        A.label(Ld)
    def spre(sbase, offs, sl=None):
        R = [40, 41, 42, 43, 44, 45, 46, 47, 14, 15, 28, 29, 60, 61, 66, 67]
        L = U("spoll"); Ld = U("spd")
        A(f"s_add_u32 s68, s30, {sbase}"); A("s_addc_u32 s69, s31, 0")
        A(f"s_mov_b32 {sTO}, 0x40000")
        A.label(L)
        sl = psl if sl is None else sl
        if sl: A(f"s_sleep {sl}")
        for i, o in enumerate(offs): A(f"s_load_dword s{R[i]}, s[68:69], {o + 1020} glc")
        A(f"s_sub_u32 {sTO}, {sTO}, 1"); A(f"s_cmp_eq_u32 {sTO}, 0"); A(f"s_cbranch_scc1 {Ld}")
        A("s_waitcnt lgkmcnt(0)")
        for i, o in enumerate(offs):
            A(f"s_cmp_lg_u32 s{R[i]}, {sTAG}"); A(f"s_cbranch_scc1 {L}")
        A.label(Ld)
        A("s_waitcnt lgkmcnt(0)")
    def lds_wait(off, val, slow=False, slp=None):
        L = U("lw"); Ld = U("lwd")
        A(f"s_mov_b32 {sTO}, 0x400000")
        A.label(L)
        if slow: A(f"s_sleep {SLP if slp is None else slp}")
        A(f"ds_read_b32 v{vBAD}, v{vZERO} offset:{off}")
        A(f"s_sub_u32 {sTO}, {sTO}, 1"); A(f"s_cmp_eq_u32 {sTO}, 0"); A(f"s_cbranch_scc1 {Ld}")
        A("s_waitcnt lgkmcnt(0)")
        A(f"v_cmp_gt_u32 vcc, {val}, v{vBAD}")
        A(f"s_cbranch_vccnz {L}")
        A.label(Ld)
    def sum2(bases, dst=None):
        bs = list(bases)
        while len(bs) > 1:
            nb = []
            for i in range(0, len(bs) - 1, 2):
                d = dst if (dst is not None and len(bs) == 2) else bs[i]
                A(f"v_pk_add_f32 {v2(d)}, {v2(bs[i])}, {v2(bs[i+1])}"); nb.append(d)
            if len(bs) % 2: nb.append(bs[-1])
            bs = nb
    def gemv(acc, mask, items, acc2=None, w2=None, keep=False):
        def mf(n):
            (x0, c0, w0, wc0) = items[n]
            if wc0 is not None: A(f"s_waitcnt vmcnt({wc0})")
            A(f"v_mfma_f32_16x16x32_bf16 {v4(acc)}, {v4(vAOP + 4*(n % 4))}, {v4(w0)}, {'0' if (n == 0 and not keep) else v4(acc)}")
            if acc2 is not None:
                A(f"v_mfma_f32_16x16x32_bf16 {v4(acc2)}, {v4(vAOP + 4*(n % 4))}, {v4(w2+4*n)}, {'0' if n == 0 else v4(acc2)}")
        for n, (x, ctl, w, wc) in enumerate(items):
            a = vAOP + 4 * (n % 4)
            for t in range(4): A(f"v_and_b32_dpp v{a+t}, v{x}, v{mask+t} {ctl} {DPPF}")
            if n >= 1: mf(n-1)
        mf(len(items) - 1)
    def ysplit(xs, y):
        for i, x in enumerate(xs): A(f"v_mov_b32 v{y+2*i}, v{x}"); A(f"v_mov_b32 v{y+2*i+1}, v{x}")
        for i, x in enumerate(xs):
            A(f"v_mov_b32_dpp v{y+2*i}, v{x} row_shr:4 row_mask:0xf bank_mask:0xa")
            A(f"v_mov_b32_dpp v{y+2*i+1}, v{x} row_shl:4 row_mask:0xf bank_mask:0x5")
    qp = lambda k: f"quad_perm:[{k},{k},{k},{k}]"
    def silu(x, t):
        A(f"v_mul_f32 v{t}, {fh(-LOG2E)}, v{x}"); A(f"v_exp_f32 v{t}, v{t}")
        A(f"v_add_f32 v{t}, 1.0, v{t}"); A(f"v_rcp_f32 v{t}, v{t}"); A(f"v_mul_f32 v{x}, v{x}, v{t}")
    def acc_addr(d):
        A(f"v_and_b32 v{d}, 7, v{vLANE}"); A(f"v_lshlrev_b32 v{d}, 5, v{d}")
        A(f"v_and_b32 v{vT+11}, 16, v{vLANE}"); A(f"v_add_u32 v{d}, v{d}, v{vT+11}")
        A(f"v_lshrrev_b32 v{vT+11}, 5, v{vLANE}"); A(f"v_lshl_add_u32 v{d}, v{vT+11}, 8, v{d}")
        A(f"s_lshl_b32 s68, {sWAVE}, 9"); A(f"v_add_u32 v{d}, s68, v{d}")
    def acc_write(d):
        A("s_mov_b32 exec_lo, 0x00ff00ff"); A("s_mov_b32 exec_hi, 0xff00ff00")
        A(f"ds_write_b128 v{d}, {v4(vACC)} offset:{L_ACC}")
        A("s_mov_b64 exec, -1")
    def mod_loads(scb, srb):
        wb = RING
        srd(SA, "s24", "s25", 640*7680); srd(SB, "s22", "s23", 1280)
        A(f"v_lshrrev_b32 v{vT}, 4, v{vLANE}"); A(f"v_mul_u32_u24 v{vT}, 40, v{vT}")
        A(f"v_and_b32 v{vT+1}, 15, v{vLANE}"); A(f"v_add_u32 v{vT+2}, v{vT}, v{vT+1}"); A(f"v_lshlrev_b32 v{vT+2}, 1, v{vT+2}")
        A(f"v_and_b32 v{vT+3}, 7, v{vLANE}"); A(f"v_add_u32 v{vT+3}, v{vT}, v{vT+3}"); A(f"v_lshlrev_b32 v{vT+3}, 1, v{vT+3}")
        A(f"s_mul_i32 s69, {srb}, 320")
        A(f"buffer_load_ushort v{vR}, v{vT+2}, {SB}, s69 offen")
        A(f"buffer_load_ushort v{vR+1}, v{vT+2}, {SB}, s69 offen offset:32")
        A(f"buffer_load_ushort v{vR+2}, v{vT+3}, {SB}, s69 offen offset:64")
        A(f"v_mul_u32_u24 v{vT}, 7680, v{vT}"); A(f"v_lshl_add_u32 v{vT}, v{vT+1}, 4, v{vT}")
        A(f"s_mul_i32 s69, {srb}, {160*7680}"); A(f"s_lshl_b32 s68, {scb}, 8"); A("s_add_u32 s68, s69, s68")
        for t in range(40):
            A(f"buffer_load_dwordx4 {v4(wb+4*t)}, v{vT}, {SA}, s68 offen {pol}")
            if t < 39: A("s_add_u32 s68, s68, 7680")
    def mod_compute():
        wb = RING
        A("s_waitcnt vmcnt(40)")
        for k in range(3):
            A(f"v_lshlrev_b32 v{vR+k}, 16, v{vR+k}"); silu(vR+k, vR+3); A(f"v_cvt_pk_bf16_f32 v{vR+k}, v{vR+k}, v{vR+k}")
        gemv(vACC, vM2, [(vR + t // 16, f"row_newbcast:{t % 16}", wb+4*t, 39-t) for t in range(40)])
    def common_setup():
        A(f"s_load_dword {sTAG}, s[30:31], 0")
        srd(SWS, "s30", "s31", WS_END)
        A(f"v_and_b32 v{vT}, 1, v{vLANE}"); A(f"v_lshlrev_b32 v{vT}, 4, v{vT}"); A(f"v_mov_b32 v{vT+1}, 0xffff"); A(f"v_lshlrev_b32 v{vT}, v{vT}, v{vT+1}")
        A(f"v_bfe_u32 v{vT+1}, v{vLANE}, 1, 2")
        A(f"v_bfe_u32 v{vT+2}, v{vLANE}, 1, 3")
        for t in range(4):
            A(f"v_cmp_eq_u32 vcc, {t}, v{vT+1}"); A(f"v_cndmask_b32 v{vM1+t}, 0, v{vT}, vcc")
            A(f"v_cmp_eq_u32 vcc, {2*t}, v{vT+2}"); A(f"v_cndmask_b32 v{vM2+t}, 0, v{vT}, vcc")
        A(f"v_and_b32 v{vT}, 15, v{vLANE}"); A(f"v_lshlrev_b32 v{vT}, 6, v{vT}"); A(f"v_and_b32 v{vT+1}, 48, v{vLANE}"); A(f"v_add_u32 v{vNAT}, v{vT}, v{vT+1}")
        A("s_waitcnt lgkmcnt(0)")
        A(f"s_add_u32 {sTAG}, {sTAG}, 0x01010101")
    def gu_loads(Ld, LTH, sWAVE=sWAVE):
        vT = vAOP
        if Ld:
            A(f"s_cmp_ge_u32 {sF}, 54"); A(f"s_cbranch_scc1 {Ld}")
            A(f"s_cmp_gt_u32 {sWAVE}, 3"); A(f"s_cbranch_scc1 {Ld}")
        A(f"v_and_b32 v{vT+2}, 4, v{vLANE}"); A(f"v_cmp_eq_u32 vcc, 0, v{vT+2}")
        A(f"v_mov_b32 v{vT+2}, s18"); A(f"v_mov_b32 v{vT+3}, s16"); A(f"v_cndmask_b32 v{vT+6}, v{vT+2}, v{vT+3}, vcc")
        A(f"v_mov_b32 v{vT+2}, s19"); A(f"v_mov_b32 v{vT+3}, s17"); A(f"v_cndmask_b32 v{vT+7}, v{vT+2}, v{vT+3}, vcc")
        A(f"s_mul_i32 s69, {sWAVE}, {160*3456}"); A(f"s_lshl_b32 s68, {sF}, 6"); A("s_add_u32 s69, s69, s68")
        A(f"v_and_b32 v{vT+4}, 3, v{vLANE}"); A(f"v_lshl_add_u32 v{vT+4}, v{vT+4}, 4, s69")
        A(f"v_lshrrev_b32 v{vT+5}, 3, v{vLANE}")
        for (mul, add, rows) in ((16*3456, 0, [(k, y) for k in range(4) for y in range(4)]), (4*3456, 128*3456, [(k, 4) for k in range(4)])):
            A(f"v_mul_u32_u24 v{vT+1}, {mul}, v{vT+5}"); A(f"v_add_u32 v{vT+1}, v{vT+1}, v{vT+4}")
            if add: A(f"v_add_u32 v{vT+1}, {add}, v{vT+1}")
            A(f"v_add_co_u32 v{vT+2}, vcc, v{vT+6}, v{vT+1}"); A(f"v_addc_co_u32 v{vT+3}, vcc, 0, v{vT+7}, vcc")
            for i, (k, y) in enumerate(rows):
                A(f"global_load_dwordx4 {v4(WT+4*(y*4+k))}, {v2(vT+2)}, off offset:{(i%2)*3456} {tp}")
                if LTH < 63: A(f"s_waitcnt vmcnt({LTH})")
                if i % 2 == 1 and i < len(rows) - 1:
                    A(f"v_add_co_u32 v{vT+2}, vcc, {2*3456}, v{vT+2}"); A(f"v_addc_co_u32 v{vT+3}, vcc, 0, v{vT+3}, vcc")
    def dn_prep():
        srd(SA, "s20", "s21", 1728*1280)
        A(f"v_lshrrev_b32 v{vT+1}, 4, v{vLANE}"); A(f"v_mul_u32_u24 v{vT+1}, {8*1280}, v{vT+1}")
        A(f"v_and_b32 v{vT+2}, 15, v{vLANE}"); A(f"v_lshl_add_u32 v{vT+1}, v{vT+2}, 4, v{vT+1}")
        A(f"s_mul_i32 s60, {sF}, {32*1280}"); A("s_lshl_b32 s68, s23, 8"); A("s_add_u32 s60, s60, s68")
    def dn_issue(Ld):
        A("s_mov_b32 s69, s60")
        for t in range(8):
            if t % 2 == 0: A(f"s_add_u32 s68, s69, {t*1280}")
            A(f"buffer_load_dwordx4 {v4(WD+4*t)}, v{vT+1}, {SA}, s68 offen offset:{(t%2)*1280} {tp}")
        A(f"s_cmp_lg_u32 {sWAVE}, 5"); A(f"s_cbranch_scc1 {Ld}")
        for t in range(8):
            if t % 2 == 0: A(f"s_add_u32 s68, s69, {t*1280}")
            A(f"buffer_load_dwordx4 {v4(WD2+4*t)}, v{vT+1}, {SA}, s68 offen offset:{(t%2)*1280 + 768} {tp}")
    def wo_loads():
        srd(SA, "s12", "s13", 4096*1280)
        A(f"v_bfe_u32 v{vT+1}, v{vLANE}, 4, 1"); A(f"v_lshlrev_b32 v{vT+1}, 5, v{vT+1}")
        A(f"v_lshrrev_b32 v{vT+2}, 5, v{vLANE}"); A(f"v_add_u32 v{vT+1}, v{vT+1}, v{vT+2}")
        A(f"v_bfe_u32 v{vT+2}, v{vLANE}, 3, 1"); A(f"v_lshl_add_u32 v{vT+1}, v{vT+2}, 4, v{vT+1}")
        A(f"v_mul_u32_u24 v{vT+1}, 1280, v{vT+1}")
        A(f"v_and_b32 v{vT+2}, 7, v{vLANE}"); A(f"v_lshl_add_u32 v{vT+1}, v{vT+2}, 4, v{vT+1}")
        A(f"s_lshr_b32 s68, {sWAVE}, 1"); A("s_lshl_b32 s68, s68, 3"); A(f"s_add_u32 s68, s68, {sG}"); A("s_lshl_b32 s68, s68, 1")
        A(f"s_and_b32 s69, {sWAVE}, 1"); A("s_add_u32 s68, s68, s69"); A(f"s_mul_i32 s69, s68, {64*1280}")
        A(f"s_lshl_b32 s68, {sK}, 7"); A("s_add_u32 s69, s69, s68")
        for n in range(8):
            if n % 2 == 0: A(f"s_add_u32 s68, s69, {2*n*1280}")
            A(f"buffer_load_dwordx4 {v4(WT+4*n)}, v{vT+1}, {SA}, s68 offen offset:{(n%2)*2560} {tp}")
    def tail_loads(dn):
        Lw, Ld = U("lwo"), U("ldone")
        A(f"s_cmp_lt_u32 {sK}, 10"); A(f"s_cbranch_scc1 {Lw}")
        if not (now & 1):
            gu_loads(Ld, CTH if dn else LTH)
        A(f"s_branch {Ld}")
        A.label(Lw)
        if not (now & 2) and (cwo or not dn): wo_loads()
        A.label(Ld)

    A(f"; @launch grid=(256,1,1) block=(512,1,1) lds={L_END}")
    A('.amdgcn_target "amdgcn-amd-amdhsa--gfx950"')
    A(".text"); A(f".globl {KN}"); A(".p2align 8"); A(f".type {KN},@function"); A.label(KN)
    stamp(0)
    if dbg or hold == 3: A("s_memrealtime s[96:97]")
    A("s_cmp_ge_u32 s2, 256"); A("s_cbranch_scc1 L_end")
    A("s_load_dwordx16 s[4:19], s[0:1], 0")
    A("s_load_dwordx8 s[20:27], s[0:1], 64")
    A("s_load_dwordx4 s[28:31], s[0:1], 96")
    A("v_lshrrev_b32 v1, 6, v0"); A(f"v_and_b32 v{vLANE}, 63, v0")
    A(f"v_readfirstlane_b32 {sWAVE}, v1")
    A(f"v_lshlrev_b32 v{vLANE16}, 4, v{vLANE}")
    A(f"s_lshr_b32 {sHD}, s2, 3"); A(f"s_and_b32 {sG}, s2, 7"); A(f"s_lshl_b32 {sK}, {sG}, 2"); A(f"s_add_u32 {sK}, {sK}, {sHD}"); A(f"s_and_b32 {sK}, {sK}, 31")
    A(f"s_add_u32 {sS}, {sG}, {sHD}"); A(f"s_and_b32 {sS}, {sS}, 7")
    if MAP == 1:
        A(f"s_and_b32 {sHD}, s2, 31"); A(f"s_lshr_b32 {sS}, s2, 5"); A(f"s_lshr_b32 {sK}, s2, 3")
    A(f"s_mov_b32 {sL2E}, {fh(LOG2E)}"); A(f"s_mov_b32 {sSC}, {fh(SCALE)}")
    A(f"s_sub_u32 s68, {sK}, 10"); A(f"s_mul_i32 {sF}, {sG}, 7"); A(f"s_add_u32 {sF}, {sF}, s68")
    A("s_cmp_lt_u32 s68, 7"); A(f"s_cselect_b32 {sF}, {sF}, 63")
    A(f"v_mov_b32 v{vZERO}, 0"); A(f"v_mov_b32 v{vONE}, 1")
    A(f"s_cmp_eq_u32 {sWAVE}, 0"); A("s_cbranch_scc1 L_ctrl0")
    A(f"s_cmp_gt_u32 {sWAVE}, {NL}"); A("s_cbranch_scc1 L_help")
    A(f"s_mul_i32 {sROT}, {sHD}, {ROT}"); A(f"s_lshl_b32 {sST}, {sS}, 7"); A(f"s_add_u32 {sST}, {sST}, {sROT}")
    A(f"s_lshl_b32 s68, {sHD}, 22")
    def tile_addr(sreg, add):
        A(f"s_add_u32 s69, {sreg}, {add}")
        if ROT: A("s_and_b32 s69, s69, 1023")
        A("s_lshl_b32 s69, s69, 12")
        A(f"v_add_u32 v{vADDR}, s69, v{vLANE16}")
    A(f"s_add_u32 s67, {sST}, {sWAVE}"); A("s_sub_u32 s67, s67, 1")
    tile_addr("s67", 0)
    if stamps == 6: stamp(2)
    A("s_waitcnt lgkmcnt(0)")
    A("s_add_u32 s40, s6, s68"); A("s_addc_u32 s41, s7, 0"); A("s_mov_b32 s42, 0x400000"); A("s_mov_b32 s43, 0x20000")
    G = lambda i: RING + 16*i
    def load(S, slot):
        for u in range(4): A(f"buffer_load_dwordx4 {v4(G(slot)+4*u)}, v{vADDR}, {S}, 0 offen offset:{u*1024} {pol}")
    load(SK, 0)
    if stamps == 6: stamp(3)
    A("s_add_u32 s44, s8, s68"); A("s_addc_u32 s45, s9, 0"); A("s_mov_b32 s46, 0x400000"); A("s_mov_b32 s47, 0x20000")
    A("s_barrier")
    common_setup()
    A(f"s_lshl_b32 s38, {sHD}, 8"); A(f"s_add_u32 s38, s38, {WS_CNT}"); A("s_add_u32 s38, s38, s30"); A("s_addc_u32 s39, s31, 0")
    A(f"s_mov_b32 {sQ}, {NP}"); A(f"s_cmp_lt_u32 {sF}, 54"); A(f"s_cselect_b32 {sQ}, {Q_ffn}, {sQ}"); A(f"s_cmp_lt_u32 {sK}, 10"); A(f"s_cselect_b32 {sQ}, {Q_wo}, {sQ}")
    A(f"v_and_b32 v{vPB}, 60, v{vLANE}")
    A(f"s_lshl_b32 s68, {sWAVE}, 6"); A("s_sub_u32 s68, s68, 64"); A(f"v_add_u32 v{vPW}, s68, v{vPB}")
    for r in range(4): A(f"v_mov_b32 v{vACC+r}, 0")
    for i in range(1, NK):
        tile_addr("s67", NL*i)
        A("s_waitcnt vmcnt(0)")
        if i == 1 and stamps in (4, 6): stamp(1)
        if i == 2 and stamps == 6: stamp(4)
        if i == 3 and stamps == 6: stamp(5)
        load(SK, i)
    if stamps == 4: stamp(2)
    A(f"v_and_b32 v{vT}, 15, v{vLANE}"); A(f"v_lshlrev_b32 v{vT}, 4, v{vT}")
    if dbg: A("s_memrealtime s[80:81]")
    lds_wait(L_QF, 1)
    if dbg: A("s_memrealtime s[82:83]")
    A(f"ds_read_b128 {v4(vQ)}, v{vT} offset:{L_Q}")
    A("s_waitcnt lgkmcnt(0)")
    def req(off):
        A("s_mov_b64 exec, 1"); A(f"ds_add_rtn_u32 v{vTKT}, v{vZERO}, v{vONE} offset:{off}"); A("s_mov_b64 exec, -1")
    def qk(slot, va, off):
        kb = G(slot)
        for t in range(4):
            for u in range(4):
                if t == 0: A(f"v_dot2_f32_bf16 v{vR+u}, v{kb+4*u}, v{vQ}, 0")
                else: A(f"v_dot2c_f32_bf16 v{vR+u}, v{kb+4*u+t}, v{vQ+t}")
        A(f"v_add_f32_dpp v{vA_}, v{vR}, v{vR} row_ror:8 row_mask:0xf bank_mask:0x3")
        A(f"v_add_f32_dpp v{vB_}, v{vR+2}, v{vR+2} row_ror:8 row_mask:0xf bank_mask:0x3")
        A(f"v_add_f32_dpp v{vA_}, v{vR+1}, v{vR+1} row_ror:8 row_mask:0xf bank_mask:0xc")
        A(f"v_add_f32_dpp v{vB_}, v{vR+3}, v{vR+3} row_ror:8 row_mask:0xf bank_mask:0xc")
        A(f"v_add_f32_dpp v{vC_}, v{vA_}, v{vA_} row_shl:4 row_mask:0xf bank_mask:0x5")
        A(f"v_add_f32_dpp v{vC_}, v{vB_}, v{vB_} row_shr:4 row_mask:0xf bank_mask:0xa")
        dpp_red("v_add_f32", [vC_], QUAD)
        rbf(vC_, vC_)
        A(f"v_mul_f32 v{vC_}, {sSC}, v{vC_}")
        rbf(vC_, vC_)
        A(f"ds_write_b32 v{va}, v{vC_} offset:{off}")
    def build(p):
        lane_of = [0, 8, 4, 12]
        for u in range(4):
            for t in range(4): A(f"v_and_b32_dpp v{vAOP+4*u+t}, v{p}, v{vM2+t} row_newbcast:{lane_of[u]} {DPPF}")
    def mm(slot):
        for u in range(4):
            A(f"v_mfma_f32_16x16x32_bf16 {v4(vACC)}, {v4(vAOP+4*u)}, {v4(G(slot)+4*u)}, {v4(vACC)}")
    LA, LB = 0, NK - 1
    qk(0, vPW, L_P)
    todo = list(range(1, NK - 1))
    cur, cur_i, nxt = LB, NK - 1, LA
    step = 0
    while todo:
        i = NK + step
        tile_addr("s67", NL*i)
        A("s_waitcnt vmcnt(0)")
        load(SK, nxt)
        if len(todo) <= 2: req(L_KT)
        qk(cur, vPW, L_P + NL*cur_i*64)
        for b in todo[:2]: qk(b, vPW, L_P + NL*b*64)
        todo = todo[2:]
        cur, nxt, cur_i = nxt, cur, i
        step += 1
    KT0 = NL * (NK + step)
    assert KT0 <= 128
    A(f"v_add_u32 v{vE_}, {NL*cur_i*64}, v{vPW}")
    if stamps == 4: stamp(3)
    order = [cur, nxt]
    A.label("L_k0")
    for n in range(2):
        X, Y = order[n], order[1-n]
        if n: A.label("L_k1")
        A("s_waitcnt lgkmcnt(0)")
        A(f"v_readfirstlane_b32 {sTK}, v{vTKT}")
        A(f"s_cmp_ge_u32 {sTK}, 128"); A(f"s_cbranch_scc1 L_kend{n}")
        tile_addr(sTK, sST)
        A("s_waitcnt vmcnt(0)")
        load(SK, Y)
        req(L_KT)
        qk(X, vE_, L_P)
        A(f"s_lshl_b32 s68, {sTK}, 6"); A(f"v_add_u32 v{vE_}, s68, v{vPB}")
    A("s_branch L_k0")
    for n in range(2):
        A.label(f"L_kend{n}")
        tile_addr("s67", 0)
        A("s_waitcnt vmcnt(0)")
        load(SV, 1)
        qk(order[n], vE_, L_P)
        if n == 0: A("s_branch L_vpre")
    A.label("L_vpre")
    A("s_waitcnt lgkmcnt(0)")
    A("s_mov_b64 exec, 1"); A(f"ds_add_u32 v{vZERO}, v{vONE} offset:{L_KD}"); A("s_mov_b64 exec, -1")
    if wake: A("s_waitcnt lgkmcnt(0)"); A("s_wakeup")
    if stamps == 4: stamp(4)
    for i in range(1, NV):
        tile_addr("s67", NL*i)
        A("s_waitcnt vmcnt(0)")
        load(SV, i + 1)
    if stamps == 4: stamp(5)
    if dbg: A("s_memrealtime s[84:85]")
    lds_wait(L_PF, 1)
    if dbg: A("s_memrealtime s[86:87]")
    A(f"ds_read_b32 v{vC_}, v{vZERO} offset:{L_LAM}")
    A(f"v_and_b32 v{vL}, 4, v{vLANE}"); A(f"v_lshlrev_b32 v{vL}, 2, v{vL}"); A(f"v_sub_u32 v{vL}, 16, v{vL}")
    A(f"s_lshl_b32 s14, {sHD}, 13"); A(f"s_add_u32 s14, s14, {WS_SP + (NS - 112)*32}"); A("s_add_u32 s14, s14, s30"); A("s_addc_u32 s15, s31, 0")
    nstep = NV // 2
    if nstep % 2: nstep += 1
    PR = vT
    assert NV + nstep <= 12 + 4
    preg = lambda i: (vT + i) if i < 12 else (vR + i - 12)
    for i in range(NV + nstep):
        A(f"ds_read_b32 v{preg(i)}, v{vPW} offset:{L_P + NL*i*64}")
        if i == 8: A("s_waitcnt lgkmcnt(2)")
    A("s_waitcnt lgkmcnt(0)")
    todo = [(i + 1, i) for i in range(NV)]
    live = [LA, LB]
    for j in range(nstep):
        tile_addr("s67", NL*(NV + j))
        A("s_waitcnt vmcnt(0)")
        load(SV, live[j % 2])
        if j == nstep - 1: req(L_VT)
        items = ([(live[(j-1) % 2], NV + j - 1)] if j else []) + todo[:2]
        todo = todo[2:]
        if j == nstep - 1: items += todo; todo = []
        for (sl, i) in items: build(preg(i)); mm(sl)
    build(preg(NV + nstep - 1))
    VT0 = NL * (NV + nstep)
    order = [LB, LA]
    A.label("L_v0")
    for n in range(2):
        X, Y = order[n], order[1-n]
        A("s_waitcnt lgkmcnt(0)")
        A(f"v_readfirstlane_b32 {sTK}, v{vTKT}")
        A(f"s_cmp_ge_u32 {sTK}, {NS}"); A(f"s_cbranch_scc1 L_din{n}")
        A(f"s_lshl_b32 s68, {sTK}, 6"); A(f"v_add_u32 v{vE_}, s68, v{vPB}")
        A(f"ds_read_b32 v{vE_}, v{vE_} offset:{L_P}")
        tile_addr(sTK, sST)
        A("s_waitcnt vmcnt(0) lgkmcnt(0)")
        load(SV, Y)
        req(L_VT)
        mm(X); build(vE_)
    A("s_branch L_v0")
    for n in range(2):
        A.label(f"L_din{n}")
        A(f"s_mov_b32 {sTK}, 1"); A(f"s_atomic_add {sTK}, {SCNT}, 0 glc")
        A(f"s_branch L_d{n}")
    for n in range(2):
        X, Y = order[n], order[1-n]
        A.label(f"L_d{n}")
        A("s_waitcnt lgkmcnt(0)")
        A(f"s_cmp_ge_u32 {sTK}, {NP}"); A(f"s_cbranch_scc1 L_vend{n}")
        A(f"s_and_b32 s68, {sTK}, 7"); A(f"s_lshr_b32 s67, {sTK}, 3")
        A("s_lshl_b32 s69, s68, 5"); A("s_add_u32 s69, s69, s67"); A("s_lshl_b32 s69, s69, 5")
        A("s_load_dwordx8 s[52:59], s[14:15], s69 glc")
        A("s_lshl_b32 s68, s68, 7"); A("s_add_u32 s68, s68, s67"); A(f"s_add_u32 s68, s68, {NS}")
        tile_addr("s68", sROT)
        A(f"s_cmp_ge_u32 {sTK}, {sQ}"); A(f"s_cselect_b32 {sTP}, {NP}, 0"); A(f"s_cselect_b32 {sTK}, 0, 1")
        A("s_waitcnt vmcnt(0)")
        load(SV, Y)
        mm(X)
        A("s_waitcnt lgkmcnt(0)")
        A(f"s_atomic_add {sTK}, {SCNT}, 0 glc")
        A("s_mov_b64 exec, 0xff")
        for j in range(8):
            A(f"v_lshlrev_b32 v{vE_}, v{vL}, s{52+j}")
            if j < 7: A("s_lshl_b64 exec, exec, 8")
        A("s_mov_b64 exec, -1")
        A(f"v_and_b32 v{vE_}, 0xffff0000, v{vE_}")
        A(f"v_fma_f32 v{vE_}, v{vE_}, {sL2E}, -v{vC_}")
        A(f"v_exp_f32 v{vE_}, v{vE_}")
        A(f"v_cvt_pk_bf16_f32 v{vE_}, v{vE_}, v{vE_}")
        build(vE_)
        if Q_wo < NP or Q_ffn < NP:
            A("s_waitcnt lgkmcnt(0)"); A(f"s_add_u32 {sTK}, {sTK}, {sTP}")
    A("s_branch L_d0")
    for n in range(2):
        A.label(f"L_vend{n}")
        if pf and not TW:
            A("s_mov_b64 exec, 1"); A(f"ds_add_rtn_u32 v{vTKT}, v{vZERO}, v{vONE} offset:{L_RANK}"); A("s_mov_b64 exec, -1")
        A(f"s_lshl_b32 s69, {sWAVE}, 9"); A(f"v_lshrrev_b32 v{vT}, 1, v{vNAT}"); A(f"v_add_u32 v{vT}, s69, v{vT}")
        A("s_waitcnt vmcnt(0)")
        mm(order[n])
        if n == 0: A("s_branch L_last")
    A.label("L_last")
    A(f"ds_write_b64 v{vT}, {v2(vACC)} offset:{L_PART-512}")
    A("s_waitcnt lgkmcnt(0)")
    def wo_prefetch(first, cnt, th):
        srd(SA, "s12", "s13", 4096*1280)
        A(f"s_and_b32 s68, {sK}, 24"); A(f"s_add_u32 s68, s68, {sG}"); A(f"s_mul_i32 s68, s68, {128*1280}")
        A(f"s_and_b32 s69, {sK}, 7"); A(f"s_mul_i32 s69, s69, {20*1024}"); A("s_add_u32 s68, s68, s69")
        if first: A(f"s_add_u32 s68, s68, {first}")
        for n in range(cnt):
            if n and n % 4 == 0: A("s_add_u32 s68, s68, 4096")
            A(f"buffer_load_dwordx4 {v4(PF)}, v{vLANE16}, {SA}, s68 offen offset:{(n%4)*1024} {pp}")
            if th < 63: A(f"s_waitcnt vmcnt({th})")
    if pf and not TW:
        A(f"v_readfirstlane_b32 s66, v{vTKT}")
        A(f"s_cmp_ge_u32 s66, {NR}"); A("s_cbranch_scc1 L_pfdone")
        A(f"s_mul_i32 s66, s66, {(20 // NR)*1024}")
        wo_prefetch("s66", 20 // NR, 63)
        A.label("L_pfdone")
    if stamps in (4, 6):
        A(f"s_cmp_lg_u32 {sWAVE}, 1"); A("s_cbranch_scc1 L_ns4")
        stamp_dump([1, 2, 3, 4, 5], final=False)
        A.label("L_ns4")
    A.label("L_join")
    A("s_barrier")
    if abl: A("s_endpgm"); A.label("L_abl_dead")
    if bar3: A("s_barrier")
    if dbg:
        A(f"s_cmp_lg_u32 {sWAVE}, 4"); A("s_cbranch_scc1 L_ndbg")
        A("s_memrealtime s[78:79]")
        dbg_rec(2, "s80", "s82"); dbg_rec(4, "s84", "s86"); dbg_rec(6, "s96", "s80"); dbg_rec(8, "s96", "s78")
        A.label("L_ndbg")
    if pf2:
        A(f"s_cmp_lt_u32 {sK}, 17"); A("s_cbranch_scc1 L_pf2done")
        A(f"s_sub_u32 s66, {sK}, 17"); A("s_mul_i32 s66, s66, 7"); A(f"s_add_u32 s66, s66, {sWAVE}"); A("s_sub_u32 s66, s66, 1")
        A("s_cmp_ge_u32 s66, 80"); A("s_cbranch_scc1 L_end" if dseq else "s_cbranch_scc1 L_pf2dn")
        srd(SA, "s16", "s17", 640*3456); srd(SB, "s18", "s19", 640*3456)
        A(f"v_lshrrev_b32 v{vT+1}, 5, v{vLANE}"); A(f"v_mul_u32_u24 v{vT+1}, 3456, v{vT+1}")
        A(f"v_and_b32 v{vT+2}, 31, v{vLANE}"); A(f"v_lshl_add_u32 v{vT+1}, v{vT+2}, 4, v{vT+1}")
        A(f"s_mul_i32 s68, {sG}, 7"); A("s_lshr_b32 s68, s68, 1"); A("s_min_u32 s68, s68, 23"); A("s_lshl_b32 s68, s68, 7")
        npair = (3 if cearly else 4) - len(EW)
        A(f"s_mul_i32 s69, s66, {2*npair*3456}"); A("s_add_u32 s68, s68, s69"); A(f"s_add_u32 s68, s68, {(160 if cearly else 0)*3456}")
        for n in range(npair):
            for S in (SA, SB):
                A(f"buffer_load_dwordx4 {v4(PF)}, v{vT+1}, {S}, s68 offen {pp}")
                if PFTH < 63: A(f"s_waitcnt vmcnt({PFTH})")
            if n < npair - 1: A(f"s_add_u32 s68, s68, {2*3456}")
        if dseq:
            srd(SA, "s20", "s21", 1728*1280)
            A(f"s_mul_i32 s68, {sG}, {7*40960}"); A(f"s_mul_i32 s69, s66, 3584"); A("s_add_u32 s68, s68, s69")
            A(f"v_add_u32 v{vT+1}, s68, v{vLANE16}")
            if dseq == 2: A("s_waitcnt vmcnt(0)")
            for n in range(4):
                if n == 3: A("s_mov_b32 exec_hi, 0")
                A(f"buffer_load_dwordx4 {v4(PF)}, v{vT+1}, {SA}, 0 offen offset:{n*1024} {pp}")
                if PFTH < 63: A(f"s_waitcnt vmcnt({PFTH})")
            A("s_waitcnt vmcnt(0)")
            A("s_endpgm")
        else:
            A("s_waitcnt vmcnt(0)")
            A("s_endpgm")
            A.label("L_pf2dn")
            srd(SA, "s20", "s21", 1728*1280)
            A(f"s_mul_i32 s68, {sG}, {7*40960}"); A("s_sub_u32 s69, s66, 80"); A(f"s_mul_i32 s69, s69, {11520}"); A("s_add_u32 s68, s68, s69")
            A(f"v_add_u32 v{vT+1}, s68, v{vLANE16}")
            for n in range(12):
                if n and n % 4 == 0: A(f"v_add_u32 v{vT+1}, 0x1000, v{vT+1}")
                A(f"buffer_load_dwordx4 {v4(PF)}, v{vT+1}, {SA}, 0 offen offset:{(n%4)*1024} {pp}")
                if PFTH < 63: A(f"s_waitcnt vmcnt({PFTH+1})")
            A("s_waitcnt vmcnt(0)")
            A("s_endpgm")
        A.label("L_pf2done")
    A.label("L_tail0")
    A(f"s_cmp_ge_u32 {sF}, 54"); A("s_cbranch_scc1 L_nomap")
    A(f"s_xor_b32 s68, {sWAVE}, 4"); A(f"s_and_b32 s69, {sWAVE}, 3"); A(f"s_cselect_b32 {sWAVE}, s68, {sWAVE}")
    for w in EW:
        A(f"s_cmp_eq_u32 {sWAVE}, {w-4}"); A("s_cbranch_scc1 L_tail")
    A.label("L_nomap")
    tail_loads(False)
    A.label("L_tail")
    beta_get()
    A(f"s_cmp_lt_u32 {sK}, 10"); A("s_cbranch_scc1 L_wo")
    A(f"s_cmp_ge_u32 {sF}, 54"); A("s_cbranch_scc1 L_exit")
    X0, GA = 24, 26
    CC = [12, 13, 14, 15, 28]; SS = [RING+36, RING+37, RING+38, RING+39, 29]
    SEL0, SEL1, GB = 30, 31, 6
    A(f"s_cmp_gt_u32 {sWAVE}, 3"); A("s_cbranch_scc1 L_gprep")
    A(f"v_lshrrev_b32 v{vT}, 3, v{vLANE}"); A(f"v_and_b32 v{vT+1}, 3, v{vLANE}"); A(f"v_lshl_add_u32 v{vT+1}, v{vT}, 2, v{vT+1}")
    A(f"s_mul_i32 s68, {sWAVE}, 640"); A(f"v_lshl_add_u32 v{vT+8}, v{vT+1}, 4, s68")
    A("s_add_u32 s68, s68, 512"); A(f"v_lshl_add_u32 v{vT+9}, v{vT+1}, 2, s68")
    A(f"ds_read_b128 {v4(SS[0])}, v{vT+8} offset:{L_MOD+2560}"); A(f"ds_read_b32 v{SS[4]}, v{vT+9} offset:{L_MOD+2560}")
    A(f"ds_read_b128 {v4(CC[0])}, v{vT+8} offset:{L_MOD+5120}"); A(f"ds_read_b32 v{CC[4]}, v{vT+9} offset:{L_MOD+5120}")
    acc_addr(vT+5)
    if F0 is None: A(f"s_min_u32 s21, {sF}, 39")
    else:
        A(f"s_sub_u32 s21, {sF}, {F0}"); A("s_lshl_b32 s21, s21, 1"); A(f"s_and_b32 s68, {sWAVE}, 1"); A("s_add_u32 s21, s21, s68"); A("s_mov_b32 s22, s21"); A("s_min_u32 s21, s21, 39")
    A(f"v_and_b32 v{vONE}, 7, v{vLANE}")
    A(f"v_lshrrev_b32 v{vT+1}, 5, v{vLANE}"); A(f"v_lshl_add_u32 v{vONE}, v{vONE}, {3 if linD else 1}, v{vT+1}")
    if linD:
        A("s_lshr_b32 s68, s21, 3"); A("s_lshl_b32 s68, s68, 7"); A("s_and_b32 s69, s21, 1"); A("s_lshl_b32 s69, s69, 6"); A("s_add_u32 s68, s68, s69")
        A("s_and_b32 s69, s21, 6"); A("s_add_u32 s68, s68, s69")
    else: A(f"s_lshl_b32 s68, s21, 4")
    A(f"v_add_u32 v{vONE}, s68, v{vONE}")
    A(f"v_lshlrev_b32 v{vTKT}, 2, v{vONE}"); A(f"v_lshlrev_b32 v{vONE}, 1, v{vONE}")
    A(f"ds_read_b32 v{GB}, v{vTKT} offset:{L_MOD+7680}")
    side("s13", sG); A("s_lshl_b32 s68, s21, 14"); A("s_add_u32 s13, s13, s68"); A(f"s_add_u32 s13, s13, {WS_DP}"); A("s_add_u32 s14, s13, 4096")
    A("s_waitcnt lgkmcnt(0)")
    A("s_waitcnt vmcnt(0)")
    stamp(8)
    A(f"s_cmp_lg_u32 {sWAVE}, 0"); A(f"s_cbranch_scc1 {'L_gemv0' if wbar else 'L_gemv'}")
    def gather(last):
        A(f"v_and_b32 v{vT}, 31, v{vLANE}"); A(f"v_lshrrev_b32 v{vT+1}, 5, v{vLANE}")
        A(f"v_lshl_add_u32 v{vT+2}, v{vT}, 1, v{vT+1}"); A("s_lshl_b32 s68, s23, 6"); A(f"v_add_u32 v{vT+2}, s68, v{vT+2}")
        A(f"v_lshlrev_b32 v{vT+3}, 3, v{vT+2}")
        A(f"ds_read_b64 {v2(GA)}, v{vT+3} offset:{L_MOD}"); A(f"ds_read_b64 {v2(X0)}, v{vT+3} offset:{L_X2}")
        A(f"v_mul_u32_u24 v{vT+4}, 2560, v{vT+1}"); A(f"v_lshl_add_u32 v{vT+4}, v{vT}, 4, v{vT+4}"); A("s_lshl_b32 s68, s23, 9"); A(f"v_add_u32 v{vT+4}, s68, v{vT+4}")
        side("s68", sG); A(f"s_lshl_b32 s69, {sG}, 16"); A("s_add_u32 s68, s68, s69")
        for n in range(4): A(f"s_add_u32 s{4+n}, s68, {WS_YP + n*16384}")
        A("s_lshl_b32 s68, s23, 3"); A(f"v_mov_b32 v{vADDR}, s68")
        A(f"v_mov_b32 v{SEL0}, 0x3f80"); A(f"v_mov_b32 v{SEL1}, 0x3f800000")
        A("s_waitcnt lgkmcnt(0)")
        if last:
            dn_prep()
            A(f"v_lshrrev_b32 v{vT+6}, 4, v{vLANE}"); A(f"v_lshlrev_b32 v{vT+6}, 3, v{vT+6}")
            A(f"v_and_b32 v{vT+7}, 7, v{vLANE}"); A(f"v_add_u32 v{vT+6}, v{vT+6}, v{vT+7}")
            A(f"v_bfe_u32 v{vT+7}, v{vLANE}, 3, 1"); A(f"v_lshl_add_u32 v{vT+6}, v{vT+7}, 5, v{vT+6}"); A(f"v_lshlrev_b32 v{vT+6}, 2, v{vT+6}")
            A(f"v_add_u32 v{vT+6}, {L_ACC}, v{vT+6}")
            A(f"s_lshl_b32 s12, {sF}, 7"); A(f"s_add_u32 s12, s12, {WS_DP}")
            for (d, blk) in ((vT+8, "s23"), (vT+9, "4")):
                A(f"v_lshrrev_b32 v{d}, 3, v{vLANE}"); A(f"s_lshl_b32 s68, {blk}, 3"); A(f"v_add_u32 v{d}, s68, v{d}")
                if F0 is None: A(f"v_mul_u32_u24 v{vT+7}, 37, v{d}")
                else: A(f"v_lshrrev_b32 v{vT+7}, 1, v{d}"); A(f"v_add_u32 v{vT+7}, {F0}, v{vT+7}"); A(f"v_mul_u32_u24 v{vT+7}, 37, v{vT+7}")
                A(f"v_lshrrev_b32 v{vT+7}, 8, v{vT+7}"); A(f"v_lshrrev_b32 v{vT+7}, v{vT+7}, {sBM}")
                A(f"v_and_b32 v{vT+7}, 1, v{vT+7}"); A(f"v_lshl_add_u32 v{d}, v{d}, 1, v{vT+7}"); A(f"v_lshlrev_b32 v{d}, 13, v{d}")
                A(f"v_and_b32 v{vT+7}, 7, v{vLANE}"); A(f"v_lshl_add_u32 v{d}, v{vT+7}, 4, v{d}")
        if wbar: A("s_barrier")
        poll([(vT+4, f"s{4+n}", 0, None) for n in range(4)], RING, tags=(1, 3))
        for n in range(4):
            for r in range(4):
                src, sel = RING + 4*n + 2*(r // 2), (SEL0, SEL1)[r % 2]
                if n == 0: A(f"v_dot2_f32_bf16 v{TMP+r}, v{src}, v{sel}, 0")
                else: A(f"v_dot2c_f32_bf16 v{TMP+r}, v{src}, v{sel}")
        if last: stamp(9)
        A(f"v_permlane32_swap_b32 v{TMP}, v{TMP+2}"); A(f"v_permlane32_swap_b32 v{TMP+1}, v{TMP+3}")
        A(f"v_pk_add_f32 {v2(TMP)}, {v2(TMP)}, {v2(TMP+2)}")
        A(f"v_pk_fma_f32 {v2(X0)}, {v2(TMP)}, {v2(GA)}, {v2(X0)}")
        if rx & 1: rbf2(X0, X0+1)
        A(f"v_add_f32 v{TMP}, v{X0}, v{X0+1}"); A(f"v_mul_f32 v{TMP+1}, v{X0}, v{X0}"); A(f"v_fmac_f32 v{TMP+1}, v{X0+1}, v{X0+1}")
        A(f"ds_write_b64 v{vT+3}, {v2(X0)} offset:{L_X2}")
        dpp_red("v_add_f32", [TMP, TMP+1], QUAD + BANK + BCAST)
        A("s_mov_b32 exec_lo, 0"); A("s_brev_b32 exec_hi, 1")
        A(f"ds_write_b64 v{vADDR}, {v2(TMP)} offset:{L_ST}")
        A("s_mov_b64 exec, -1")
        A("s_waitcnt lgkmcnt(0)")
    A("s_mov_b32 s23, 4")
    gather(False)
    if wbar:
        A("s_branch L_gemv")
        A.label("L_gemv0")
        A("s_barrier")
    A.label("L_gemv")
    A("s_barrier")
    ST = vAOP; XX = RING + 40
    A(f"ds_read_b128 {v4(ST)}, v{vZERO} offset:{L_ST}"); A(f"ds_read_b128 {v4(ST+4)}, v{vZERO} offset:{L_ST+16}"); A(f"ds_read_b64 {v2(ST+8)}, v{vZERO} offset:{L_ST+32}")
    A(f"ds_read_b128 {v4(XX)}, v{vT+8} offset:{L_X2}"); A(f"ds_read_b32 v{XX+4}, v{vT+9} offset:{L_X2}")
    if not (rx & 8): A(f"v_mov_b32 v{TMP+2}, {fh(1e-5)}")
    A("s_waitcnt lgkmcnt(2)" if not stamps else "s_waitcnt lgkmcnt(0)")
    sum2([ST+2*n for n in range(5)], TMP)
    A(f"v_mul_f32 v{TMP}, {fh(1.0/640)}, v{TMP}")
    if rx & 8:
        A(f"v_mul_f32 v{TMP+2}, {fh(1.0/640)}, v{TMP+1}")
        A(f"v_fma_f32 v{TMP+2}, -v{TMP}, v{TMP}, v{TMP+2}")
        A(f"v_max_f32 v{TMP+2}, 0, v{TMP+2}")
        rbf(TMP+2, TMP+2)
        A(f"v_add_f32 v{TMP+2}, {fh(1e-5)}, v{TMP+2}")
    else:
        A(f"v_fmac_f32 v{TMP+2}, {fh(1.0/640)}, v{TMP+1}")
        A(f"v_fma_f32 v{TMP+2}, -v{TMP}, v{TMP}, v{TMP+2}")
        A(f"v_max_f32 v{TMP+2}, {fh(1e-5)}, v{TMP+2}")
    if rx & 4:
        rbf(TMP+2, TMP+2); A(f"v_sqrt_f32 v{TMP+2}, v{TMP+2}"); rbf(TMP+2, TMP+2); A(f"v_rcp_f32 v{TMP+2}, v{TMP+2}")
    else: A(f"v_rsq_f32 v{TMP+2}, v{TMP+2}")
    if rx & 2: rbf(TMP, TMP)
    A("s_waitcnt lgkmcnt(0)")
    for y in range(5): A(f"v_sub_f32 v{XX+y}, v{XX+y}, v{TMP}")
    for y in range(5): A(f"v_mul_f32 v{XX+y}, v{XX+y}, v{CC[y]}")
    for y in range(5): A(f"v_fmac_f32 v{SS[y]}, v{XX+y}, v{TMP+2}")
    for y in range(5): A(f"v_cvt_pk_bf16_f32 v{SS[y]}, v{SS[y]}, v{SS[y]}")
    gemv(vACC, vM1, [(SS[y], qp(k), WT+4*(y*4+k), None) for y in range(5) for k in range(4)])
    acc_write(vT+5)
    A("s_waitcnt lgkmcnt(0)")
    A("s_barrier")
    if stamps:
        A(f"s_cmp_lg_u32 {sWAVE}, 1"); A("s_cbranch_scc1 L_ns8")
        stamp_dump([8]); A("s_endpgm")
        A.label("L_ns8")
    if F0 is None:
        A(f"s_cmp_lg_u32 {sWAVE}, 3"); A("s_cbranch_scc1 L_exit")
        A(f"s_cmp_ge_u32 {sF}, 40"); A("s_cbranch_scc1 L_end")
    else:
        A(f"s_cmp_lt_u32 {sWAVE}, 2"); A("s_cbranch_scc1 L_exit")
        A("s_cmp_ge_u32 s22, 40"); A("s_cbranch_scc1 L_end")
    A(f"ds_read_b32 v{X0}, v{vTKT} offset:{L_X2}")
    FB = RING
    A(f"v_mov_b32 v{FB+24}, 0"); A(f"v_mov_b32 v{FB+25}, 0"); A(f"v_mov_b32 v{FB+27}, {sTAG}")
    A("s_mov_b32 s68, -1"); A("s_mov_b32 s69, 0xffff")
    srd(SB, "s26", "s27", 1280)
    A("s_waitcnt lgkmcnt(0)")
    if fin: A("s_barrier")
    poll([(vLANE16, f"s{13+n//4}", (n % 4)*1024, None if n < 6 else "s[68:69]") for n in range(7)], FB)
    sum2([FB+4*n for n in range(7)], GA)
    stamp(11)
    A(f"v_permlane32_swap_b32 v{GA}, v{GA+1}"); A(f"v_add_f32 v{GA}, v{GA}, v{GA+1}")
    xrow("v_add_f32", GA, GA+1, 16)
    A(f"v_add_f32_dpp v{GA}, v{GA}, v{GA} row_ror:8 {DPPF}")
    A(f"v_fma_f32 v{GA}, v{GA}, v{GB}, v{X0}"); A(f"v_cvt_pk_bf16_f32 v{GA}, v{GA}, v{GA}")
    A("s_mov_b32 exec_lo, 0xff"); A("s_mov_b32 exec_hi, 0xff")
    A(f"buffer_store_short v{GA}, v{vONE}, {SB}, 0 offen sc1")
    A("s_cmp_lg_u32 s21, 0"); A("s_cbranch_scc1 L_fin_dump")
    A("s_mov_b64 exec, 1"); A(f"v_mov_b32 v{GA+1}, {sTAG}")
    A(f"buffer_store_dword v{GA+1}, v{vZERO}, {SWS}, 0 offen sc1")
    A.label("L_fin_dump")
    if dbg: A("s_memrealtime s[80:81]"); dbg_rec(10, "s96", "s80")
    if stamps:
        A("s_waitcnt vmcnt(0)"); stamp(12)
        stamp_dump([11, 12])
    A("s_endpgm")
    A.label("L_gprep")
    A(f"s_and_b32 s23, {sWAVE}, 3")
    gather(True)
    if DNP == 0 and not (now & 1): dn_issue("L_dnd0"); A.label("L_dnd0")
    A("s_barrier")
    if DNP == 1 and not (now & 1): dn_issue("L_dnd1"); A.label("L_dnd1")
    A("s_barrier")
    RD = WT
    for k in range(4): A(f"ds_read2st64_b32 {v2(RD+2*k)}, v{vT+6} offset0:{2*k} offset1:{2*k+1}")
    A("s_waitcnt lgkmcnt(0)")
    sum2([RD+2*k for k in range(4)])
    A(f"v_add_f32 v{RD}, v{RD}, v{RD+1}")
    A(f"v_mul_f32 v{RD+2}, {fh(-LOG2E)}, v{RD}"); A(f"v_exp_f32 v{RD+2}, v{RD+2}")
    A(f"v_mul_f32_dpp v{RD+1}, v{RD}, v{RD} row_ror:8 {DPPF}")
    A(f"v_add_f32 v{RD+2}, 1.0, v{RD+2}"); A(f"v_rcp_f32 v{RD+2}, v{RD+2}")
    A(f"v_mul_f32 v{RD}, v{RD+1}, v{RD+2}")
    A(f"v_cvt_pk_bf16_f32 v{RD}, v{RD}, v{RD}")
    A("s_waitcnt vmcnt(0)")
    A(f"s_cmp_eq_u32 {sWAVE}, 5"); A("s_cbranch_scc1 L_down2")
    gemv(vACC, vM2, [(RD, f"row_newbcast:{t}", WD+4*t, None) for t in range(8)])
    publish(vACC, vT+8, "s12")
    if fin in (2, 3): A("s_barrier")
    A("s_endpgm")
    A.label("L_down2")
    gemv(vACC, vM2, [(RD, f"row_newbcast:{t}", WD+4*t, None) for t in range(8)], ACC2, WD2)
    A(f"v_mov_b32 v{vACC+3}, {sTAG}"); A(f"v_mov_b32 v{ACC2+3}, {sTAG}")
    A(f"buffer_store_dwordx4 {v4(vACC)}, v{vT+8}, {SWS}, s12 offen sc1")
    A(f"buffer_store_dwordx4 {v4(ACC2)}, v{vT+9}, {SWS}, s12 offen sc1")
    stamp(10)
    if fin == 1: A("s_waitcnt vmcnt(0)")
    if fin == 3: A("s_waitcnt vmcnt(1)")
    if fin: A("s_barrier")
    stamp_dump([9, 10])
    A("s_endpgm")
    A.label("L_wo")
    A(f"v_lshrrev_b32 v{vT+4}, 5, v{vLANE}"); A(f"v_lshlrev_b32 v{vT+4}, 10, v{vT+4}")
    A(f"v_and_b32 v{vT+6}, 31, v{vLANE}"); A(f"v_lshl_add_u32 v{vT+4}, v{vT+6}, 4, v{vT+4}")
    A(f"s_lshr_b32 s4, {sWAVE}, 1"); A("s_lshl_b32 s4, s4, 3"); A(f"s_add_u32 s4, s4, {sG}"); A("s_lshl_b32 s4, s4, 14")
    side("s5", sG); A("s_add_u32 s4, s4, s5")
    A(f"s_and_b32 s5, {sWAVE}, 1"); A("s_lshl_b32 s5, s5, 9"); A("s_add_u32 s4, s4, s5"); A(f"s_add_u32 s4, s4, {WS_OP}"); A("s_add_u32 s5, s4, 4096")
    acc_addr(vT+5)
    A(f"v_lshrrev_b32 v{vT+8}, 5, v{vLANE}"); A(f"v_lshlrev_b32 v{vT+7}, 11, v{vT+8}"); A(f"v_lshl_add_u32 v{vT+7}, v{vT+6}, 3, v{vT+7}")
    for c in range(4):
        d = vQ + c
        A(f"v_add_u32 v{d}, {2*c}, v{vT+8}"); A(f"v_lshrrev_b32 v{vT+9}, v{d}, {sBM}"); A(f"v_and_b32 v{vT+9}, 1, v{vT+9}")
        A(f"v_lshl_add_u32 v{d}, v{d}, 3, v{vT+9}"); A(f"v_lshlrev_b32 v{d}, 13, v{d}"); A(f"v_lshl_add_u32 v{d}, v{vT+6}, 3, v{d}")
    A(f"s_lshr_b32 s6, {sG}, 1"); A("s_lshl_b32 s6, s6, 14"); A(f"s_and_b32 s7, {sG}, 1"); A("s_mul_i32 s7, s7, 2560"); A("s_add_u32 s6, s6, s7")
    A(f"s_lshl_b32 s7, {sK}, 8"); A("s_add_u32 s6, s6, s7"); A(f"s_add_u32 s6, s6, {WS_YP}")
    poll([(vT+4, "s4" if n < 2 else "s5", (n % 2)*2048, None) for n in range(4)], RING)
    stamp(7)
    sum2([RING+4*n for n in range(4)], TMP)
    A(f"v_permlane32_swap_b32 v{TMP}, v{TMP+1}")
    A(f"v_add_f32 v{TMP}, v{TMP}, v{TMP+1}")
    A(f"v_cvt_pk_bf16_f32 v{TMP}, v{TMP}, v{TMP}")
    ysplit([TMP], TMP+2)
    gemv(vACC, vM1, [(TMP + 2 + n // 4, qp(n % 4), WT+4*n, None) for n in range(8)])
    acc_write(vT+5)
    A("s_waitcnt lgkmcnt(0)")
    A("s_barrier")
    A(f"s_cmp_lg_u32 {sWAVE}, 0"); A("s_cbranch_scc1 L_end")
    for n in range(8): A(f"ds_read_b64 {v2(WT+2*n)}, v{vT+7} offset:{L_ACC+256*n}")
    A("s_waitcnt lgkmcnt(0)")
    sum2([WT+2*n for n in range(8)])
    A(f"v_mov_b32 v{WT+2}, v{WT}"); A(f"v_mov_b32 v{WT+3}, v{WT+1}")
    A(f"v_permlane32_swap_b32 v{WT}, v{WT+2}"); A(f"v_permlane32_swap_b32 v{WT+1}, v{WT+3}")
    A(f"v_pk_add_f32 {v2(WT)}, {v2(WT)}, {v2(WT+2)}")
    A(f"v_cvt_pk_bf16_f32 v{WT}, v{WT}, v{WT+1}"); A(f"v_mov_b32 v{WT+1}, {sTAG}")
    for c in range(4): A(f"buffer_store_dwordx2 {v2(WT)}, v{vQ+c}, {SWS}, s6 offen sc1")
    stamp(13)
    A.label("L_exit")
    if hold:
        A(f"s_cmp_lg_u32 {sWAVE}, 0"); A("s_cbranch_scc1 L_end")
        A(f"s_cmp_lt_u32 {sF}, 54"); A("s_cbranch_scc1 L_end")
        A.label("L_hold")
        A("s_sleep 8"); A("s_memrealtime s[94:95]"); A("s_waitcnt lgkmcnt(0)"); A("s_sub_u32 s94, s94, s96"); A("s_cmp_lt_u32 s94, 6000"); A("s_cbranch_scc1 L_hold")
    if stamps:
        A(f"s_cmp_lg_u32 {sWAVE}, 0"); A("s_cbranch_scc1 L_end")
        stamp_dump([0, 13, 6, 7] + ([1, 2, 3, 4, 5] if stamps not in (4, 6, 8) else []), xcc=True)
    A("s_endpgm")

    A.label("L_help")
    A("s_waitcnt lgkmcnt(0)")
    A("s_barrier")
    A(f"s_cmp_lt_u32 {sK}, 24"); A("s_cbranch_scc1 L_hnoq")
    A(f"s_sub_u32 s39, {sWAVE}, 5")
    A(f"s_bfe_u32 s68, {sK}, 0x10002"); A("s_add_u32 s68, s68, s39"); A("s_cmp_lt_u32 s68, 3"); A("s_cbranch_scc1 L_ctrl_q")
    common_setup()
    A(f"v_lshlrev_b32 v{vT}, 3, v{vLANE}"); A(f"v_mov_b32 v{vACC}, 0"); A(f"v_mov_b32 v{vACC+1}, 0")
    A(f"ds_write_b64 v{vT}, {v2(vACC)} offset:{L_ACC + 512}")
    A("s_waitcnt lgkmcnt(0)")
    A("s_mov_b64 exec, 1"); A(f"ds_add_u32 v{vZERO}, v{vONE} offset:{L_MF}"); A("s_mov_b64 exec, -1")
    A("s_branch L_soft")
    A.label("L_hnoq")
    A(f"s_sub_u32 s37, {sK}, 5"); A("s_cmp_ge_u32 s37, 5"); A("s_cbranch_scc1 L_hnomod")
    A("s_lshl_b32 s37, s37, 3"); A(f"s_add_u32 s37, s37, {sG}")
    A("s_lshr_b32 s38, s37, 1"); A("s_and_b32 s39, s37, 1")
    A("s_mul_i32 s6, s39, 20480"); A("s_lshl_b32 s7, s38, 10"); A("s_add_u32 s6, s6, s7"); A(f"s_add_u32 s6, s6, {WS_MR}")
    A("s_add_u32 s38, s38, 10"); A("s_lshl_b32 s39, s39, 1"); A(f"s_add_u32 s39, s39, {sWAVE}"); A("s_sub_u32 s39, s39, 6")
    mod_loads("s38", "s39")
    common_setup()
    mod_compute()
    A(f"v_lshlrev_b32 v{vT}, 3, v{vLANE}")
    A(f"s_cmp_eq_u32 {sWAVE}, 6"); A("s_cbranch_scc1 L_hsum")
    A(f"ds_write_b64 v{vT}, {v2(vACC)} offset:{L_ACC}")
    A("s_waitcnt lgkmcnt(0)")
    A(f"ds_write_b32 v{vZERO}, v{vONE} offset:{L_MF}")
    A("s_branch L_soft")
    A.label("L_hsum")
    lds_wait(L_MF, 1)
    A(f"ds_read_b64 {v2(vR)}, v{vT} offset:{L_ACC}")
    A("s_waitcnt lgkmcnt(0)")
    A(f"v_pk_add_f32 {v2(vACC)}, {v2(vACC)}, {v2(vR)}")
    publish(vACC, vLANE16 if linP else vNAT, "s6")
    A("s_branch L_help7")
    A.label("L_hnomod")
    if EW and not abl and not (now & 1):
        if len(EW) == 1: A(f"s_cmp_lg_u32 {sWAVE}, {EW[0]}"); A("s_cbranch_scc1 L_hne")
        A(f"s_sub_u32 s37, {sWAVE}, 4")
        gu_loads("L_hne", CTH, "s37")
        A.label("L_hne")
    common_setup()
    A(f"s_cmp_lg_u32 {sWAVE}, 7"); A("s_cbranch_scc1 L_help7")
    A.label("L_soft")
    A(f"s_lshl_b32 s6, {sHD}, 13"); A(f"s_add_u32 s6, s6, {WS_SP}")
    A(f"s_lshl_b32 s8, {sS}, 10"); A("s_add_u32 s8, s8, s6")
    A("s_add_u32 s6, s6, s30"); A("s_addc_u32 s7, s31, 0")
    A(f"v_lshlrev_b32 v{vT}, 3, v{vLANE}")
    if abl & 4:
        A(f"ds_write_b32 v{vZERO}, v{vONE} offset:{L_PF}"); A("s_waitcnt lgkmcnt(0)"); A("s_branch L_join"); A.label("L_abl4")
    lds_wait(L_KT, 120, slow=True)
    lds_wait(L_KD, NL + (1 if any(QK) else 0), slow=True, slp=SLK)
    if KAP: A("s_memrealtime s[10:11]")
    E = RING
    for n in range(8): A(f"ds_read_b128 {v4(E+4*n)}, v{vLANE16} offset:{L_P + 1024*n}")
    A("s_waitcnt lgkmcnt(0)")
    A(f"v_cvt_pk_bf16_f32 v{vACC}, v{E+28}, v{E+29}"); A(f"v_cvt_pk_bf16_f32 v{vACC+1}, v{E+30}, v{E+31}")
    lanes0 = (NS - 112) * 4
    if lanes0: A(f"s_lshl_b64 exec, -1, {lanes0}")
    A(f"buffer_store_dwordx2 {v2(vACC)}, v{vT}, {SWS}, s8 offen sc1")
    if lanes0: A("s_mov_b64 exec, -1")
    m = vR
    A(f"v_max3_f32 v{m}, v{E}, v{E+1}, v{E+2}"); A(f"v_max3_f32 v{m+1}, v{E+3}, v{E+4}, v{E+5}")
    for i in range(6, 32, 4):
        A(f"v_max3_f32 v{m}, v{m}, v{E+i}, v{E+i+1}")
        if i + 3 < 32: A(f"v_max3_f32 v{m+1}, v{m+1}, v{E+i+2}, v{E+i+3}")
    A(f"v_max_f32 v{m}, v{m}, v{m+1}")
    wave_red("v_max_f32", m, m+1)
    A(f"v_mul_f32 v{m}, {sL2E}, v{m}")
    for i in range(32): A(f"v_fma_f32 v{E+i}, v{E+i}, {sL2E}, -v{m}")
    for i in range(32): A(f"v_exp_f32 v{E+i}, v{E+i}")
    A(f"v_pk_add_f32 {v2(m+2)}, {v2(E)}, {v2(E+2)}")
    for i in range(4, 32, 2): A(f"v_pk_add_f32 {v2(m+2)}, {v2(m+2)}, {v2(E+i)}")
    A(f"v_add_f32 v{m+2}, v{m+2}, v{m+3}")
    wave_red("v_add_f32", m+2, m+1)
    A(f"v_log_f32 v{vACC+2}, v{m+2}")
    A(f"v_add_f32 v{vQ}, v{vACC+2}, v{m}"); A(f"v_mov_b32 v{vQ+1}, {sTAG}"); A(f"v_mov_b32 v{vQ+2}, s10")
    A("s_waitcnt vmcnt(0)")
    A("s_mov_b64 exec, 1")
    A(f"buffer_store_dwordx4 {v4(vQ)}, v{vZERO}, {SWS}, s8 offen offset:512 sc1")
    A("s_mov_b64 exec, -1")
    R = [40, 42, 44, 46, 52, 54, 56, 58]
    A(f"s_mov_b32 {sTO}, 0x40000")
    A.label("L_lam")
    if lsl: A(f"s_sleep {lsl}")
    for n in range(8): A(f"s_load_dwordx2 s[{R[n]}:{R[n]+1}], s[6:7], {n*1024 + 512} glc")
    A(f"s_sub_u32 {sTO}, {sTO}, 1"); A(f"s_cmp_eq_u32 {sTO}, 0"); A("s_cbranch_scc1 L_lamd")
    A("s_waitcnt lgkmcnt(0)")
    for n in range(8):
        A(f"s_cmp_lg_u32 s{R[n]+1}, {sTAG}"); A("s_cbranch_scc1 L_lam")
    A.label("L_lamd")
    A("s_waitcnt lgkmcnt(0)")
    lam = [RING + 32 + n for n in range(8)]
    for n in range(8): A(f"v_mov_b32 v{lam[n]}, s{R[n]}")
    if KAP:
        for n in range(8): A(f"s_load_dword s{R[n]+1}, s[6:7], {n*1024 + 520} glc")
    t = vA_
    A(f"v_max3_f32 v{t}, v{lam[0]}, v{lam[1]}, v{lam[2]}"); A(f"v_max3_f32 v{t}, v{t}, v{lam[3]}, v{lam[4]}")
    A(f"v_max3_f32 v{t}, v{t}, v{lam[5]}, v{lam[6]}"); A(f"v_max_f32 v{t}, v{t}, v{lam[7]}")
    for n in range(8): A(f"v_sub_f32 v{lam[n]}, v{lam[n]}, v{t}")
    for n in range(8): A(f"v_exp_f32 v{lam[n]}, v{lam[n]}")
    for n in range(1, 8): A(f"v_add_f32 v{lam[0]}, v{lam[0]}, v{lam[n]}")
    A(f"v_log_f32 v{lam[0]}, v{lam[0]}")
    A(f"v_add_f32 v{t}, v{t}, v{lam[0]}")
    A(f"v_sub_f32 v{m}, v{m}, v{t}"); A(f"v_exp_f32 v{m}, v{m}")
    A(f"ds_write_b32 v{vZERO}, v{t} offset:{L_LAM}")
    for i in range(32): A(f"v_mul_f32 v{E+i}, v{E+i}, v{m}")
    for i in range(32): A(f"v_cvt_pk_bf16_f32 v{E+i}, v{E+i}, v{E+i}")
    for n in range(8): A(f"ds_write_b128 v{vLANE16}, {v4(E+4*n)} offset:{L_P + 1024*n}")
    A("s_waitcnt lgkmcnt(0)")
    A(f"ds_write_b32 v{vZERO}, v{vONE} offset:{L_PF}")
    if KAP:
        A("s_mov_b32 s9, 0")
        for n in range(8):
            A(f"s_sub_u32 s68, s10, s{R[n]+1}"); A("s_add_u32 s9, s9, s68")
        A("s_ashr_i32 s9, s9, 3"); A(f"s_sub_i32 s9, s9, {LAG0}"); A("s_max_i32 s9, s9, 0"); A("s_min_i32 s9, s9, 1000")
        A(f"s_mul_i32 s9, s9, {KAP}"); A("s_lshr_b32 s9, s9, 8"); A(f"s_min_u32 s9, s9, {CAP}"); A("s_add_u32 s9, s9, 1")
        A(f"v_mov_b32 v{vT}, s9"); A(f"ds_write_b32 v{vZERO}, v{vT} offset:{L_N6}")
    A("s_setprio 0")
    if stamps == 8:
        lds_wait(L_VT, 92, slow=True, slp=2); stamp(4); lds_wait(L_VT, 112, slow=True, slp=2); stamp(5); stamp_dump([4, 5], final=False)
    if stamps:
        stamp(14); stamp_dump([14], final=False)
    A("s_waitcnt lgkmcnt(0)")
    A("s_branch L_join")
    A.label("L_help7")
    if any(QK):
        A(f"s_bitcmp1_b32 {sK}, 2"); A(f"s_cselect_b32 s37, {QK[6]}, {QK[5]}")
        for lim, q_ in ((24, QK[4]), (22, QK[3]), (17, QK[2]), (10, QK[1]), (5, QK[0])):
            A(f"s_cmp_lt_u32 {sK}, {lim}"); A(f"s_cselect_b32 s37, {q_}, s37")
        A("s_cmp_eq_u32 s37, 0"); A("s_cbranch_scc1 L_xkd")
        A("s_load_dwordx2 s[6:7], s[0:1], 8")
        A(f"s_mul_i32 {sST}, {sHD}, {ROT}"); A(f"s_lshl_b32 s68, {sS}, 7"); A(f"s_add_u32 {sST}, {sST}, s68")
        A(f"s_lshl_b32 s68, {sHD}, 22")
        A(f"v_and_b32 v{vPB}, 60, v{vLANE}")
        A(f"v_and_b32 v{vT}, 15, v{vLANE}"); A(f"v_lshlrev_b32 v{vT}, 4, v{vT}")
        A("s_waitcnt lgkmcnt(0)")
        A("s_add_u32 s40, s6, s68"); A("s_addc_u32 s41, s7, 0"); A("s_mov_b32 s42, 0x400000"); A("s_mov_b32 s43, 0x20000")
        lds_wait(L_QF, 1, slow=True)
        A(f"ds_read_b128 {v4(vQ)}, v{vT} offset:{L_Q}")
        A.label("L_xk")
        req(L_KT)
        A("s_waitcnt lgkmcnt(0)")
        A(f"v_readfirstlane_b32 {sTK}, v{vTKT}")
        A(f"s_cmp_ge_u32 {sTK}, 128"); A("s_cbranch_scc1 L_xkd")
        tile_addr(sTK, sST)
        load(SK, 0)
        A(f"s_lshl_b32 s68, {sTK}, 6"); A(f"v_add_u32 v{vE_}, s68, v{vPB}")
        A("s_waitcnt vmcnt(0)")
        qk(0, vE_, L_P)
        A("s_sub_u32 s37, s37, 1"); A("s_cmp_lg_u32 s37, 0"); A("s_cbranch_scc1 L_xk")
        A.label("L_xkd")
        A("s_waitcnt lgkmcnt(0)")
        A("s_mov_b64 exec, 1"); A(f"ds_add_u32 v{vZERO}, v{vONE} offset:{L_KD}"); A("s_mov_b64 exec, -1")
        A("s_waitcnt lgkmcnt(0)")
    if BM is None:
        A(f"s_cmp_lg_u32 {sK}, 22"); A("s_cbranch_scc1 L_nprb")
        A(f"s_lshl_b32 s6, {sG}, 14"); A(f"s_add_u32 s6, s6, {WS_PRB}"); A("s_add_u32 s6, s6, s30"); A("s_addc_u32 s7, s31, 0")
        A("s_mov_b32 s8, -1"); A("s_mov_b32 s9, -1"); A(f"s_mov_b32 s37, {NPR}")
        A.label("L_prb")
        for h in range(2):
            A("s_memtime s[40:41]"); A("s_waitcnt lgkmcnt(0)")
            A(f"s_load_dword s44, s[6:7], {h*8192} glc"); A("s_waitcnt lgkmcnt(0)")
            A("s_memtime s[42:43]"); A("s_waitcnt lgkmcnt(0)")
            A("s_sub_u32 s42, s42, s40"); A(f"s_min_u32 s{8+h}, s{8+h}, s42")
        A("s_sub_u32 s37, s37, 1"); A("s_cmp_lg_u32 s37, 0"); A("s_cbranch_scc1 L_prb")
        A("s_cmp_lt_u32 s9, s8"); A("s_cselect_b32 s68, 1, 0")
        A(f"v_mov_b32 v{vACC}, s68"); A(f"v_mov_b32 v{vACC+1}, s8"); A(f"v_mov_b32 v{vACC+2}, s9")
        A(f"s_lshl_b32 s68, {sG}, 7"); A(f"s_add_u32 s68, s68, {WS_BETA}")
        A("s_mov_b64 exec, 1")
        publish(vACC, vZERO, "s68")
        A("s_mov_b64 exec, -1")
        A.label("L_nprb")
    if KAP:
        A("s_load_dwordx2 s[6:7], s[0:1], 16")
        A(f"s_mul_i32 {sST}, {sHD}, {ROT}"); A(f"s_lshl_b32 s68, {sS}, 7"); A(f"s_add_u32 {sST}, {sST}, s68")
        A(f"s_lshl_b32 s68, {sHD}, 22")
        A(f"v_and_b32 v{vPB}, 60, v{vLANE}")
        for r in range(4): A(f"v_mov_b32 v{vACC+r}, 0")
        A("s_waitcnt lgkmcnt(0)")
        A("s_add_u32 s44, s6, s68"); A("s_addc_u32 s45, s7, 0"); A("s_mov_b32 s46, 0x400000"); A("s_mov_b32 s47, 0x20000")
        lds_wait(L_N6, 1, slow=True)
        A("s_waitcnt lgkmcnt(0)")
        A(f"v_readfirstlane_b32 s37, v{vBAD}")
        A.label("L_xv")
        A("s_cmp_le_u32 s37, 1"); A("s_cbranch_scc1 L_xvd")
        req(L_VT)
        A("s_waitcnt lgkmcnt(0)")
        A(f"v_readfirstlane_b32 {sTK}, v{vTKT}")
        A(f"s_cmp_ge_u32 {sTK}, {NS}"); A("s_cbranch_scc1 L_xvd")
        tile_addr(sTK, sST)
        load(SV, 0)
        A(f"s_lshl_b32 s68, {sTK}, 6"); A(f"v_add_u32 v{vE_}, s68, v{vPB}")
        A(f"ds_read_b32 v{vE_}, v{vE_} offset:{L_P}")
        A("s_waitcnt lgkmcnt(0)")
        build(vE_)
        A("s_waitcnt vmcnt(0)")
        mm(0)
        A("s_sub_u32 s37, s37, 1"); A("s_branch L_xv")
        A.label("L_xvd")
        A(f"v_lshrrev_b32 v{vT}, 1, v{vNAT}")
        A(f"ds_write_b64 v{vT}, {v2(vACC)} offset:{L_PART + 512*NL}")
        A("s_waitcnt lgkmcnt(0)")
    A("s_branch L_join")

    A.label("L_ctrl0")
    A("s_setprio 3")
    A(f"v_mov_b32 v{vT+4}, {KT0}"); A(f"v_mov_b32 v{vT+5}, {VT0}"); A(f"v_mov_b32 v{vT+6}, 0"); A(f"v_mov_b32 v{vT+7}, 0")
    A(f"ds_write_b128 v{vZERO}, {v4(vT+4)} offset:{L_KT}")
    A(f"ds_write_b64 v{vZERO}, {v2(vT+6)} offset:{L_KD}"); A(f"ds_write_b64 v{vZERO}, {v2(vT+6)} offset:{L_MF}")
    A("s_waitcnt lgkmcnt(0)")
    A("s_barrier")
    if abl & 2:
        common_setup()
        A(f"s_lshl_b32 s68, {sHD}, 8"); A(f"s_add_u32 s68, s68, {WS_CNT}")
        A("s_mov_b64 exec, 1"); A(f"buffer_store_dword v{vZERO}, v{vZERO}, {SWS}, s68 offen sc1"); A("s_mov_b64 exec, -1")
        A(f"v_lshlrev_b32 v{vT}, 2, v{vLANE}"); A(f"v_mov_b32 v{vT+1}, 0x3f803f80"); A(f"ds_write_b32 v{vT}, v{vT+1} offset:{L_Q}"); A("s_waitcnt lgkmcnt(0)")
        A(f"ds_write_b32 v{vZERO}, v{vONE} offset:{L_QF}")
        A("s_branch L_ctrl_w"); A.label("L_abl2")
    A("s_mov_b32 s39, 0")
    A(f"s_cmp_ge_u32 {sK}, 24"); A("s_cbranch_scc1 L_ctrl_q")
    A(f"s_sub_u32 s38, {sK}, 17"); A("s_cmp_ge_u32 s38, 5"); A("s_cbranch_scc1 L_ctrl_none")
    A("s_lshl_b32 s38, s38, 3"); A(f"s_add_u32 s38, s38, {sG}")
    A("s_lshl_b32 s6, s38, 10"); A(f"s_add_u32 s6, s6, {WS_MODP}")
    A("s_and_b32 s39, s38, 3"); A("s_lshr_b32 s38, s38, 2")
    mod_loads("s38", "s39")
    common_setup()
    mod_compute()
    publish(vACC, vLANE16 if linP else vNAT, "s6")
    stamp(1)
    A("s_branch L_hop2")
    A.label("L_ctrl_none")
    if cearly and cstart and not abl: tail_loads(True)
    common_setup()
    A("s_branch L_hop2")
    A.label("L_ctrl_q")
    WQ = RING + 64
    XA = RING
    X0, X1 = 24, 25
    A(f"s_and_b32 s38, {sK}, 3"); A("s_lshl_b32 s38, s38, 3"); A(f"s_add_u32 s38, s38, {sG}")
    A(f"s_bfe_u32 s37, {sK}, 0x10002"); A("s_mul_i32 s68, s37, 3"); A("s_add_u32 s39, s39, s68")
    srd(SB, "s4", "s5", 1280); srd(SA, "s10", "s11", 640*8192)
    A(f"v_lshlrev_b32 v{vT+2}, 2, v{vLANE}")
    for k in range(5): A(f"buffer_load_dword v{XA+2*k+1}, v{vT+2}, {SB}, 0 offen offset:{k*256}")
    A("s_lshl_b32 s68, s39, 8")
    A(f"v_lshrrev_b32 v{vT}, 4, v{vLANE}"); A(f"v_and_b32 v{vT+1}, 15, v{vLANE}")
    if linP: A(f"v_lshlrev_b32 v{vT+2}, 2, v{vT}"); A(f"v_lshl_add_u32 v{vT+2}, v{vT+1}, 4, v{vT+2}")
    A(f"buffer_load_dword v{X1}, v{vT+2}, {SB}, s68 offen")
    A(f"v_lshlrev_b32 v{vT}, {14 if linP else 18}, v{vT}")
    A(f"v_lshl_add_u32 v{vT+3}, v{vT+1}, 4, v{vT}")
    A("s_lshl_b32 s69, s39, 20"); A("s_lshl_b32 s68, s38, 8"); A("s_add_u32 s69, s69, s68")
    for n in range(32):
        u, j = n // 16, n % 16
        A(f"s_add_u32 s68, s69, {((8 if linP else 2)*j+u)*8192}")
        A(f"buffer_load_dwordx4 {v4(WQ+4*n)}, v{vT+3}, {SA}, s68 offen {pol}")
    common_setup()
    A("s_lshl_b32 s68, s38, 8"); A(f"s_add_u32 s68, s68, {WS_CNT}")
    A("s_cmp_lg_u32 s39, 0"); A("s_cbranch_scc1 L_nocnt")
    A("s_mov_b64 exec, 1")
    A(f"buffer_store_dword v{vZERO}, v{vZERO}, {SWS}, s68 offen sc1")
    A("s_mov_b64 exec, -1")
    A("s_waitcnt vmcnt(33)")
    A("s_branch L_cntj")
    A.label("L_nocnt")
    A("s_waitcnt vmcnt(32)")
    A.label("L_cntj")
    for k in range(5):
        A(f"v_lshlrev_b32 v{XA+2*k}, 16, v{XA+2*k+1}"); A(f"v_and_b32 v{XA+2*k+1}, 0xffff0000, v{XA+2*k+1}")
    A(f"v_lshlrev_b32 v{X0}, 16, v{X1}"); A(f"v_and_b32 v{X1}, 0xffff0000, v{X1}")
    t = vT + 8; a = XA
    A(f"v_add_f32 v{t}, v{a}, v{a+1}")
    for i in range(2, 10): A(f"v_add_f32 v{t}, v{t}, v{a+i}")
    wave_red("v_add_f32", t, t+1)
    A(f"v_mul_f32 v{t}, {fh(1.0/640)}, v{t}")
    for i in range(10): A(f"v_sub_f32 v{a+i}, v{a+i}, v{t}")
    A(f"v_mul_f32 v{t+2}, v{a}, v{a}")
    for i in range(1, 10): A(f"v_fmac_f32 v{t+2}, v{a+i}, v{a+i}")
    wave_red("v_add_f32", t+2, t+1)
    A(f"v_mul_f32 v{t+2}, {fh(1.0/640)}, v{t+2}")
    rbf2(t, t+2)
    A(f"v_add_f32 v{t+2}, {fh(1e-5)}, v{t+2}"); rbf(t+2, t+2)
    A(f"v_sqrt_f32 v{t+2}, v{t+2}"); rbf(t+2, t+2)
    A(f"v_rcp_f32 v{t+2}, v{t+2}")
    A(f"v_sub_f32 v{X0}, v{X0}, v{t}"); A(f"v_sub_f32 v{X1}, v{X1}, v{t}"); rbf2(X0, X1)
    A(f"v_mul_f32 v{X0}, v{X0}, v{t+2}"); A(f"v_mul_f32 v{X1}, v{X1}, v{t+2}"); rbf2(X0, X1)
    A("s_lshl_b32 s6, s39, 12"); A(f"s_add_u32 s6, s6, {WS_MODP}"); A(f"s_add_u32 s7, s6, {5*4096}")
    stamp(1)
    spre("s6", [(n // 4)*5*4096 + (n % 4)*1024 for n in range(8)])
    poll([(vLANE16, f"s{6+n//4}", (n % 4)*1024, None) for n in range(8)], RING)
    stamp(2)
    sum2([RING+4*n for n in range(4)]); sum2([RING+16+4*n for n in range(4)])
    rbf2(RING, RING+1); rbf2(RING+16, RING+17)
    c0, c1, s0, s1 = RING+16, RING+17, RING, RING+1
    A(f"v_add_f32 v{c0}, 1.0, v{c0}"); A(f"v_add_f32 v{c1}, 1.0, v{c1}"); rbf2(c0, c1)
    A(f"v_mul_f32 v{X0}, v{X0}, v{c0}"); A(f"v_mul_f32 v{X1}, v{X1}, v{c1}"); rbf2(X0, X1)
    A(f"v_add_f32 v{X0}, v{X0}, v{s0}"); A(f"v_add_f32 v{X1}, v{X1}, v{s1}")
    A(f"v_cvt_pk_bf16_f32 v{X0}, v{X0}, v{X0}"); A(f"v_cvt_pk_bf16_f32 v{X1}, v{X1}, v{X1}")
    gemv(vACC, vM2, [((X0, X1)[n // 16], f"row_newbcast:{n % 16}", WQ + 4*n, None) for n in range(32)])
    A(f"v_lshlrev_b32 v{vT}, 3, v{vLANE}")
    A(f"s_cmp_eq_u32 {sWAVE}, 0"); A("s_cbranch_scc1 L_qsum")
    A(f"s_lshl_b32 s68, {sWAVE}, 9"); A(f"v_add_u32 v{vT}, s68, v{vT}")
    A(f"ds_write_b64 v{vT}, {v2(vACC)} offset:{L_ACC - 6*512}")
    A("s_waitcnt lgkmcnt(0)")
    A("s_mov_b64 exec, 1"); A(f"ds_add_u32 v{vZERO}, v{vONE} offset:{L_MF}"); A("s_mov_b64 exec, -1")
    A("s_setprio 0")
    A(f"s_cmp_eq_u32 {sWAVE}, 7"); A("s_cbranch_scc1 L_soft")
    A("s_branch L_help7")
    A.label("L_qsum")
    lds_wait(L_MF, 2)
    A(f"ds_read_b64 {v2(RING)}, v{vT} offset:{L_ACC}"); A(f"ds_read_b64 {v2(RING+2)}, v{vT} offset:{L_ACC+512}")
    A("s_lshl_b32 s68, s38, 1"); A("s_add_u32 s68, s68, s37"); A("s_lshl_b32 s68, s68, 10"); A(f"s_add_u32 s68, s68, {WS_QP}")
    A("s_waitcnt lgkmcnt(0)")
    A(f"v_pk_add_f32 {v2(vACC)}, {v2(vACC)}, {v2(RING)}"); A(f"v_pk_add_f32 {v2(vACC)}, {v2(vACC)}, {v2(RING+2)}")
    publish(vACC, vLANE16 if linP else vNAT, "s68")
    A.label("L_hop2")
    stamp(3)
    A(f"s_lshl_b32 s6, {sHD}, 11"); A(f"s_add_u32 s6, s6, {WS_QP}")
    spre("s6", [n*1024 for n in range(2)])
    poll([(vLANE16, "s6", n*1024, None) for n in range(2)], RING)
    sum2([RING+4*n for n in range(2)])
    A(f"v_cvt_pk_bf16_f32 v{RING}, v{RING}, v{RING+1}")
    A(f"v_lshrrev_b32 v{vT}, 2, v{vNAT}" if linP else f"v_lshlrev_b32 v{vT}, 2, v{vLANE}")
    A(f"ds_write_b32 v{vT}, v{RING} offset:{L_Q}")
    A("s_waitcnt lgkmcnt(0)")
    A(f"ds_write_b32 v{vZERO}, v{vONE} offset:{L_QF}")
    stamp(4)
    if dbg: A("s_memrealtime s[80:81]"); dbg_rec(0, "s96", "s80")
    if hold == 1: A("s_memrealtime s[96:97]")
    A("s_setprio 0")
    A.label("L_ctrl_w")
    if abl: A("s_barrier"); A("s_endpgm"); A.label("L_abl_dead2")
    if cearly and not cstart: tail_loads(True)
    A(f"s_cmp_ge_u32 {sF}, 54"); A("s_cbranch_scc1 L_cnomr")
    srd(SB, "s4", "s5", 1280)
    A(f"v_lshlrev_b32 v{vT}, 2, v{vLANE}"); A(f"v_lshlrev_b32 v{vT+1}, 3, v{vLANE}")
    for k in range(5): A(f"buffer_load_dword v{vAOP+2*k+1}, v{vT}, {SB}, 0 offen offset:{k*256}")
    A("s_waitcnt vmcnt(0)")
    for k in range(5):
        A(f"v_lshlrev_b32 v{vAOP+2*k}, 16, v{vAOP+2*k+1}"); A(f"v_and_b32 v{vAOP+2*k+1}, 0xffff0000, v{vAOP+2*k+1}")
        A(f"ds_write_b64 v{vT+1}, {v2(vAOP+2*k)} offset:{L_X2 + 512*k}")
    if linP: A(f"v_lshrrev_b32 v{vT+1}, 1, v{vNAT}")
    for arr in range(4):
        for i, o in enumerate((0, 4096, 20480, 24576)): A(f"s_mov_b32 s{40+i}, {WS_MR + arr*5120 + o}")
        poll([(vLANE16, f"s{40 + 2*h + (k // 4)}", (k % 4)*1024, None) for k in range(5) for h in range(2)], RING)
        for k in range(5):
            b = RING + 8*k
            A(f"v_pk_add_f32 {v2(b)}, {v2(b)}, {v2(b+4)}"); rbf2(b, b+1)
            if arr == 2:
                A(f"v_add_f32 v{b}, 1.0, v{b}"); A(f"v_add_f32 v{b+1}, 1.0, v{b+1}"); rbf2(b, b+1)
            A(f"ds_write_b64 v{vT+1}, {v2(b)} offset:{L_MOD + arr*2560 + 512*k}")
    A.label("L_cnomr")
    if BM is None:
        lds_wait(L_VT, 88, slow=True)
        A(f"v_and_b32 v{vT}, 7, v{vLANE}"); A(f"v_lshlrev_b32 v{vT}, 7, v{vT}"); A(f"s_mov_b32 s40, {WS_BETA}")
        poll([(vT, "s40", 0, None)], RING)
        A(f"v_cmp_ne_u32 vcc, 0, v{RING}")
        A(f"v_mov_b32 v{vT}, vcc_lo"); A(f"v_and_b32 v{vT}, 0xff, v{vT}")
        A(f"ds_write_b32 v{vZERO}, v{vT} offset:{L_BM}")
        A("s_waitcnt lgkmcnt(0)")
    beta_get()
    if ptd:
        A(f"s_cmp_ge_u32 {sF}, 40"); A("s_cbranch_scc1 L_nptd")
        side("s40", sG); A(f"s_lshl_b32 s68, {sF}, 14"); A("s_add_u32 s40, s40, s68"); A(f"s_add_u32 s40, s40, {WS_DP}"); A("s_add_u32 s41, s40, 4096")
        for n in range(7): A(f"buffer_load_dwordx4 {v4(RING)}, v{vLANE16}, {SWS}, s{40+n//4} offen offset:{(n%4)*1024} {'sc1' if ptd == 1 else ''}")
        if ptd == 3:
            srd(SB, "s26", "s27", 1280); A(f"buffer_load_dwordx4 {v4(RING)}, v{vLANE16}, {SB}, 0 offen"); A(f"buffer_load_dwordx4 {v4(RING)}, v{vLANE16}, {SB}, 0 offen offset:1024")
        A.label("L_nptd")
    A(f"s_and_b32 s68, {sHD}, 7"); side("s9", "s68")
    A(f"s_lshl_b32 s8, {sHD}, 4"); A(f"s_add_u32 s8, s8, {sS}"); A("s_lshl_b32 s8, s8, 10"); A("s_add_u32 s8, s8, s9"); A(f"s_add_u32 s8, s8, {WS_OP}")
    A(f"v_lshlrev_b32 v{vT}, 3, v{vLANE}"); A(f"v_mov_b32 v{TMP+3}, {sTAG}")
    A("s_waitcnt vmcnt(0) lgkmcnt(0)")
    stamp(5)
    if cprio: A("s_setprio 3")
    A("s_barrier")
    stamp(6)
    if hold == 2: A("s_memrealtime s[96:97]")
    NPART = NL + (1 if KAP else 0)
    for w in range(NPART): A(f"ds_read_b64 {v2(RING+2*w)}, v{vT} offset:{L_PART+512*w}")
    A("s_waitcnt lgkmcnt(0)")
    sum2([RING+2*w for w in range(NPART)], TMP)
    A(f"buffer_store_dwordx4 {v4(TMP)}, v{vLANE16}, {SWS}, s8 offen sc1")
    if bar3: A("s_barrier")
    stamp(13)
    if cearly and not cwo:
        A(f"s_cmp_lt_u32 {sK}, 10"); A("s_cbranch_scc1 L_tail0")
    A("s_branch L_tail" if cearly else "s_branch L_tail0")
    A.label("L_end")
    A("s_endpgm")
    A('.section .rodata,"a"'); A(".p2align 6"); A(f".amdhsa_kernel {KN}")
    A(".amdhsa_next_free_vgpr 256"); A(".amdhsa_next_free_sgpr 100"); A(".amdhsa_accum_offset 256")
    A(".amdhsa_group_segment_fixed_size 0"); A(".amdhsa_kernarg_size 112"); A(".amdhsa_user_sgpr_count 2")
    A(".amdhsa_user_sgpr_kernarg_segment_ptr 1"); A(".amdhsa_system_sgpr_workgroup_id_x 1")
    A(".amdhsa_float_denorm_mode_32 3")
    A(".end_amdhsa_kernel")
    return A.finalize()

def check_inter(w, inter):
    import numpy as np
    def cmp(name, got, exp):
        err = np.abs(got - exp).max(); rel = np.linalg.norm(got - exp) / np.linalg.norm(exp)
        print("   inter %-5s maxabs %.4e (scale %.3e) relL2 %.3e nan=%d" % (name, err, np.abs(exp).max(), rel, int(np.isnan(got).sum())), got[:4], exp[:4])
    def bf(x):
        u = x.astype(np.float32).view(np.uint32); u = (u + 0x7fff + ((u >> 16) & 1)) & 0xffff0000
        return u.view(np.float32)
    gr = lambda off, n: w[off // 4: off // 4 + n*4].reshape(n, 4)
    md = np.concatenate([gr(WS_MODP, 10*4*64)[:, :2].reshape(10, 4, 128).sum(1).reshape(-1), gr(WS_MR, 2*1280)[:, :2].reshape(2, 2560).sum(0)])
    cmp("mod", md, inter["mod"]); print("      mod bf16 mismatches", int((bf(md) != inter["mod"]).sum()))
    q = gr(WS_QP, 32*2*64)[:, :2].reshape(32, 2, 128).sum(1).reshape(-1)
    cmp("q", q, inter["q"]); print("      q bf16 mismatches", int((bf(q) != inter["q"]).sum()))
    b = w[WS_BETA // 4: WS_BETA // 4 + 8*32].view(np.uint32).reshape(8, 32)
    print("      side, min latency 0/1:", [tuple(int(v) for v in r[:3]) for r in b])

if __name__ == "__main__":
    out = sys.argv[1]
    kw = {}
    for a in sys.argv[2:]:
        k, v = a.split("=")
        kw[k] = eval(v)
    open(out, "w").write(gen(**kw))
```

```python
import sys, struct
from asmdsl import Asm
KN = "adaLN_cond__gqa_block_cached__swiglu_ffn__decode_kernel"

def f2u(x): return struct.unpack("<I", struct.pack("<f", x))[0]
def fh(x): return hex(f2u(x))
LOG2E = 1.4426950408889634
SCALE = 128 ** -0.5

WS_MODP = 0x1000
WS_QP   = WS_MODP + 10*4*1024
WS_SP   = WS_QP + 32*2*1024
WS_MR   = WS_SP + 32*8*1024
WS_CNT  = WS_MR + 2*20480
WS_OP   = 0x200000
WS_YP   = WS_OP + 32*16384
WS_DP   = WS_YP + 32*16384
WS_PRB  = WS_DP + 40*16384
WS_BETA = WS_PRB + 8*16384
WS_END  = WS_BETA + 1024
WS_STAMP = 0x10000000
L_KT, L_VT, L_QF, L_PF, L_KD, L_RANK, L_MF, L_N6, L_LAM, L_BM = 0, 4, 8, 12, 16, 20, 24, 28, 32, 36
L_Q = 0x100
L_ST = 0x200
L_PART = 0x400
L_ACC = 0x1000
L_X2 = 0x2000
L_P = 0x3000
L_MOD = 0x5000
L_END = 0x7800
DPPF = "row_mask:0xf bank_mask:0xf"

def gen(stamps=0, pol="nt", NK=12, NV=10, NS=120, NL=5, SLP=16, wake=False, KAP=26, LAG0=20, CAP=20, SLK=4, psl=0, ROT=304, abl=0, PFTH=2, LTH=63, linD=True, linP=True, lsl=0, MAP=0, cwo=True, dbg=False, hold=0, dseq=True, rx=3, BM=None, fin=1, ptd=0, F0=None, bar3=False, cprio=False, nud=0, D0=1, nearb=False, NPR=22, cearly=True, CTH=63, QK=(0, 8, 4, 3, 0, 10, 6), cstart=True, tp="", pp="", DNP=1, wbar=False, EW=(), NR=4, TW=0, TWD=4, now=0, pf=True, pf2=True, Q_wo=999, Q_ffn=999):
    NP = 8 * (128 - NS); Q_wo = min(Q_wo, NP); Q_ffn = min(Q_ffn, NP)
    A = Asm()
    uid = [0]
    def U(p):
        uid[0] += 1; return f"L_{p}_{uid[0]}"
    sWAVE, sHD, sS, sTAG, sK, sG = "s3", "s32", "s33", "s34", "s35", "s36"
    SK, SV, SWS, SA, SB = "s[40:43]", "s[44:47]", "s[48:51]", "s[52:55]", "s[56:59]"
    sTP, sST, sL2E, sSC, sTO, sF, sTK = "s60", "s61", "s62", "s63", "s64", "s65", "s66"
    sROT, sQ, SCNT = "s37", "s29", "s[38:39]"
    def stamp(k):
        if stamps: A(f"s_memrealtime s[{70+2*k}:{71+2*k}]")
    def stamp_dump(slots, xcc=False, final=True):
        if not stamps: return
        A("s_waitcnt lgkmcnt(0)")
        A("s_mov_b64 exec, 1")
        A(f"s_lshl_b32 s69, s2, 7"); A(f"s_add_u32 s69, s69, {WS_STAMP}")
        A("s_mov_b32 s50, 0x20000000")
        for k in slots:
            A(f"v_mov_b32 v{vT+10}, s{70+2*k}"); A(f"v_mov_b32 v{vT+11}, s{71+2*k}")
            A(f"buffer_store_dwordx2 v[{vT+10}:{vT+11}], v{vZERO}, {SWS}, s69 offen offset:{k*8}")
            A("s_nop 1")
        if xcc:
            A("s_getreg_b32 s68, hwreg(HW_REG_XCC_ID)")
            A(f"v_mov_b32 v{vT+10}, s68"); A(f"v_mov_b32 v{vT+11}, 0")
            A(f"buffer_store_dwordx2 v[{vT+10}:{vT+11}], v{vZERO}, {SWS}, s69 offen offset:120")
        if not final: A("s_mov_b64 exec, -1")
    def dbg_rec(slot, a, b):
        A("s_waitcnt lgkmcnt(0)")
        A("s_load_dwordx2 s[90:91], s[0:1], 96"); A(f"s_sub_u32 s88, {b}, {a}"); A("s_mov_b32 s89, s88"); A("s_waitcnt lgkmcnt(0)")
        A(f"s_atomic_umax s88, s[90:91], {slot*4}"); A(f"s_atomic_add s89, s[90:91], {slot*4+4}"); A("s_waitcnt lgkmcnt(0)")
    sBM = "s28"
    def beta_get():
        if BM is not None:
            A(f"s_mov_b32 {sBM}, {BM}"); return
        A(f"ds_read_b32 v{vBAD}, v{vZERO} offset:{L_BM}")
        A("s_waitcnt lgkmcnt(0)")
        A(f"v_readfirstlane_b32 {sBM}, v{vBAD}")
    def side(dst, grp):
        A(f"s_lshr_b32 {dst}, {sBM}, {grp}"); A(f"s_and_b32 {dst}, {dst}, 1"); A(f"s_lshl_b32 {dst}, {dst}, 13")
    def srd(S, lo, hi, n):
        b = int(S[2:S.index(":")])
        A(f"s_mov_b32 s{b}, {lo}"); A(f"s_mov_b32 s{b+1}, {hi}"); A(f"s_mov_b32 s{b+2}, {n}"); A(f"s_mov_b32 s{b+3}, 0x20000")
    def v4(b): return f"v[{b}:{b+3}]"
    def v2(b): return f"v[{b}:{b+1}]"
    def dpp_red(op, vs, ctls):
        for ctl in ctls:
            for v in vs: A(f"{op}_dpp v{v}, v{v}, v{v} {ctl}")
    QUAD = [f"quad_perm:[1,0,3,2] {DPPF}", f"quad_perm:[2,3,0,1] {DPPF}"]
    BANK = [f"row_ror:4 {DPPF}", f"row_ror:8 {DPPF}"]
    BCAST = ["row_bcast:15 row_mask:0xa bank_mask:0xf", "row_bcast:31 row_mask:0xc bank_mask:0xf"]
    def xrow(op, v, t, which):
        A(f"v_mov_b32 v{t}, v{v}"); A(f"v_permlane{which}_swap_b32 v{v}, v{t}"); A(f"{op} v{v}, v{v}, v{t}")
    def wave_red(op, v, t):
        dpp_red(op, [v], QUAD + BANK); xrow(op, v, t, 16); xrow(op, v, t, 32)
    def rbf(d, s):
        A(f"v_cvt_pk_bf16_f32 v{d}, v{s}, v{s}"); A(f"v_and_b32 v{d}, 0xffff0000, v{d}")
    def rbf2(a, b):
        A(f"v_cvt_pk_bf16_f32 v{b}, v{a}, v{b}"); A(f"v_lshlrev_b32 v{a}, 16, v{b}"); A(f"v_and_b32 v{b}, 0xffff0000, v{b}")
    vLANE16, vZERO, vONE, vTKT, vADDR, vPB, vPW, vL = 1, 2, 3, 4, 5, 6, 7, 8
    vLANE, vNAT, vBAD = 9, 10, 11
    vQ, vM2, vACC = 12, 16, 20
    vR, vA_, vB_, vC_, vE_ = 24, 28, 29, 30, 31
    vAOP = 32
    vT = 48
    vM1 = 60
    RING = 64
    WT = RING + 48
    WD = WT + 80
    WD2 = WD + 32
    TMP = RING + 32
    ACC2 = RING + 40
    PF = RING + 44
    def publish(b, voff, soff):
        A(f"v_mov_b32 v{b+3}, {sTAG}")
        A(f"buffer_store_dwordx4 {v4(b)}, v{voff}, {SWS}, {soff} offen sc1")
    def poll(loads, base, tags=(3,), extra=None, nextra=0):
        n = len(loads)
        dst = base if isinstance(base, list) else [base + 4*i for i in range(n)]
        L = U("poll"); Ld = U("pdone")
        def one(k):
            for idx, (vo, so, imm, em) in enumerate(loads):
                if em is not None: A(f"s_mov_b64 exec, {em}")
                A(f"buffer_load_dwordx4 {v4(dst[idx])}, v{vo}, {SWS}, {so} offen offset:{imm} sc1")
                if em is not None: A("s_mov_b64 exec, -1")
            if k: extra()
            first = True
            for idx in range(n):
                d = dst[idx]
                A(f"s_waitcnt vmcnt({k + n-1-idx})")
                for tp in tags:
                    if first: A(f"v_xor_b32 v{vBAD}, {sTAG}, v{d+tp}"); first = False
                    else: A(f"v_bitop3_b32 v{vBAD}, v{vBAD}, v{d+tp}, {sTAG} bitop3:0xf6")
            A(f"v_cmp_ne_u32 vcc, 0, v{vBAD}")
            A(f"s_cbranch_vccz {Ld}")
        if extra: one(nextra)
        A(f"s_mov_b32 {sTO}, 0x40000")
        A.label(L)
        one(0)
        A(f"s_sub_u32 {sTO}, {sTO}, 1")
        A(f"s_cmp_lg_u32 {sTO}, 0")
        A(f"s_cbranch_scc1 {L}")
        A.label(Ld)
    def spre(sbase, offs, sl=None):
        R = [40, 41, 42, 43, 44, 45, 46, 47, 14, 15, 28, 29, 60, 61, 66, 67]
        L = U("spoll"); Ld = U("spd")
        A(f"s_add_u32 s68, s30, {sbase}"); A("s_addc_u32 s69, s31, 0")
        A(f"s_mov_b32 {sTO}, 0x40000")
        A.label(L)
        sl = psl if sl is None else sl
        if sl: A(f"s_sleep {sl}")
        for i, o in enumerate(offs): A(f"s_load_dword s{R[i]}, s[68:69], {o + 1020} glc")
        A(f"s_sub_u32 {sTO}, {sTO}, 1"); A(f"s_cmp_eq_u32 {sTO}, 0"); A(f"s_cbranch_scc1 {Ld}")
        A("s_waitcnt lgkmcnt(0)")
        for i, o in enumerate(offs):
            A(f"s_cmp_lg_u32 s{R[i]}, {sTAG}"); A(f"s_cbranch_scc1 {L}")
        A.label(Ld)
        A("s_waitcnt lgkmcnt(0)")
    def lds_wait(off, val, slow=False, slp=None):
        L = U("lw"); Ld = U("lwd")
        A(f"s_mov_b32 {sTO}, 0x400000")
        A.label(L)
        if slow: A(f"s_sleep {SLP if slp is None else slp}")
        A(f"ds_read_b32 v{vBAD}, v{vZERO} offset:{off}")
        A(f"s_sub_u32 {sTO}, {sTO}, 1"); A(f"s_cmp_eq_u32 {sTO}, 0"); A(f"s_cbranch_scc1 {Ld}")
        A("s_waitcnt lgkmcnt(0)")
        A(f"v_cmp_gt_u32 vcc, {val}, v{vBAD}")
        A(f"s_cbranch_vccnz {L}")
        A.label(Ld)
    def sum2(bases, dst=None):
        bs = list(bases)
        while len(bs) > 1:
            nb = []
            for i in range(0, len(bs) - 1, 2):
                d = dst if (dst is not None and len(bs) == 2) else bs[i]
                A(f"v_pk_add_f32 {v2(d)}, {v2(bs[i])}, {v2(bs[i+1])}"); nb.append(d)
            if len(bs) % 2: nb.append(bs[-1])
            bs = nb
    def gemv(acc, mask, items, acc2=None, w2=None, keep=False):
        def mf(n):
            (x0, c0, w0, wc0) = items[n]
            if wc0 is not None: A(f"s_waitcnt vmcnt({wc0})")
            A(f"v_mfma_f32_16x16x32_bf16 {v4(acc)}, {v4(vAOP + 4*(n % 4))}, {v4(w0)}, {'0' if (n == 0 and not keep) else v4(acc)}")
            if acc2 is not None:
                A(f"v_mfma_f32_16x16x32_bf16 {v4(acc2)}, {v4(vAOP + 4*(n % 4))}, {v4(w2+4*n)}, {'0' if n == 0 else v4(acc2)}")
        for n, (x, ctl, w, wc) in enumerate(items):
            a = vAOP + 4 * (n % 4)
            for t in range(4): A(f"v_and_b32_dpp v{a+t}, v{x}, v{mask+t} {ctl} {DPPF}")
            if n >= 1: mf(n-1)
        mf(len(items) - 1)
    def ysplit(xs, y):
        for i, x in enumerate(xs): A(f"v_mov_b32 v{y+2*i}, v{x}"); A(f"v_mov_b32 v{y+2*i+1}, v{x}")
        for i, x in enumerate(xs):
            A(f"v_mov_b32_dpp v{y+2*i}, v{x} row_shr:4 row_mask:0xf bank_mask:0xa")
            A(f"v_mov_b32_dpp v{y+2*i+1}, v{x} row_shl:4 row_mask:0xf bank_mask:0x5")
    qp = lambda k: f"quad_perm:[{k},{k},{k},{k}]"
    def silu(x, t):
        A(f"v_mul_f32 v{t}, {fh(-LOG2E)}, v{x}"); A(f"v_exp_f32 v{t}, v{t}")
        A(f"v_add_f32 v{t}, 1.0, v{t}"); A(f"v_rcp_f32 v{t}, v{t}"); A(f"v_mul_f32 v{x}, v{x}, v{t}")
    def acc_addr(d):
        A(f"v_and_b32 v{d}, 7, v{vLANE}"); A(f"v_lshlrev_b32 v{d}, 5, v{d}")
        A(f"v_and_b32 v{vT+11}, 16, v{vLANE}"); A(f"v_add_u32 v{d}, v{d}, v{vT+11}")
        A(f"v_lshrrev_b32 v{vT+11}, 5, v{vLANE}"); A(f"v_lshl_add_u32 v{d}, v{vT+11}, 8, v{d}")
        A(f"s_lshl_b32 s68, {sWAVE}, 9"); A(f"v_add_u32 v{d}, s68, v{d}")
    def acc_write(d):
        A("s_mov_b32 exec_lo, 0x00ff00ff"); A("s_mov_b32 exec_hi, 0xff00ff00")
        A(f"ds_write_b128 v{d}, {v4(vACC)} offset:{L_ACC}")
        A("s_mov_b64 exec, -1")
    def mod_loads(scb, srb):
        wb = RING
        srd(SA, "s24", "s25", 640*7680); srd(SB, "s22", "s23", 1280)
        A(f"v_lshrrev_b32 v{vT}, 4, v{vLANE}"); A(f"v_mul_u32_u24 v{vT}, 40, v{vT}")
        A(f"v_and_b32 v{vT+1}, 15, v{vLANE}"); A(f"v_add_u32 v{vT+2}, v{vT}, v{vT+1}"); A(f"v_lshlrev_b32 v{vT+2}, 1, v{vT+2}")
        A(f"v_and_b32 v{vT+3}, 7, v{vLANE}"); A(f"v_add_u32 v{vT+3}, v{vT}, v{vT+3}"); A(f"v_lshlrev_b32 v{vT+3}, 1, v{vT+3}")
        A(f"s_mul_i32 s69, {srb}, 320")
        A(f"buffer_load_ushort v{vR}, v{vT+2}, {SB}, s69 offen")
        A(f"buffer_load_ushort v{vR+1}, v{vT+2}, {SB}, s69 offen offset:32")
        A(f"buffer_load_ushort v{vR+2}, v{vT+3}, {SB}, s69 offen offset:64")
        A(f"v_mul_u32_u24 v{vT}, 7680, v{vT}"); A(f"v_lshl_add_u32 v{vT}, v{vT+1}, 4, v{vT}")
        A(f"s_mul_i32 s69, {srb}, {160*7680}"); A(f"s_lshl_b32 s68, {scb}, 8"); A("s_add_u32 s68, s69, s68")
        for t in range(40):
            A(f"buffer_load_dwordx4 {v4(wb+4*t)}, v{vT}, {SA}, s68 offen {pol}")
            if t < 39: A("s_add_u32 s68, s68, 7680")
    def mod_compute():
        wb = RING
        A("s_waitcnt vmcnt(40)")
        for k in range(3):
            A(f"v_lshlrev_b32 v{vR+k}, 16, v{vR+k}"); silu(vR+k, vR+3); A(f"v_cvt_pk_bf16_f32 v{vR+k}, v{vR+k}, v{vR+k}")
        gemv(vACC, vM2, [(vR + t // 16, f"row_newbcast:{t % 16}", wb+4*t, 39-t) for t in range(40)])
    def common_setup():
        A(f"s_load_dword {sTAG}, s[30:31], 0")
        srd(SWS, "s30", "s31", WS_END)
        A(f"v_and_b32 v{vT}, 1, v{vLANE}"); A(f"v_lshlrev_b32 v{vT}, 4, v{vT}"); A(f"v_mov_b32 v{vT+1}, 0xffff"); A(f"v_lshlrev_b32 v{vT}, v{vT}, v{vT+1}")
        A(f"v_bfe_u32 v{vT+1}, v{vLANE}, 1, 2")
        A(f"v_bfe_u32 v{vT+2}, v{vLANE}, 1, 3")
        for t in range(4):
            A(f"v_cmp_eq_u32 vcc, {t}, v{vT+1}"); A(f"v_cndmask_b32 v{vM1+t}, 0, v{vT}, vcc")
            A(f"v_cmp_eq_u32 vcc, {2*t}, v{vT+2}"); A(f"v_cndmask_b32 v{vM2+t}, 0, v{vT}, vcc")
        A(f"v_and_b32 v{vT}, 15, v{vLANE}"); A(f"v_lshlrev_b32 v{vT}, 6, v{vT}"); A(f"v_and_b32 v{vT+1}, 48, v{vLANE}"); A(f"v_add_u32 v{vNAT}, v{vT}, v{vT+1}")
        A("s_waitcnt lgkmcnt(0)")
        A(f"s_add_u32 {sTAG}, {sTAG}, 0x01010101")
    def gu_loads(Ld, LTH, sWAVE=sWAVE):
        vT = vAOP
        if Ld:
            A(f"s_cmp_ge_u32 {sF}, 54"); A(f"s_cbranch_scc1 {Ld}")
            A(f"s_cmp_gt_u32 {sWAVE}, 3"); A(f"s_cbranch_scc1 {Ld}")
        A(f"v_and_b32 v{vT+2}, 4, v{vLANE}"); A(f"v_cmp_eq_u32 vcc, 0, v{vT+2}")
        A(f"v_mov_b32 v{vT+2}, s18"); A(f"v_mov_b32 v{vT+3}, s16"); A(f"v_cndmask_b32 v{vT+6}, v{vT+2}, v{vT+3}, vcc")
        A(f"v_mov_b32 v{vT+2}, s19"); A(f"v_mov_b32 v{vT+3}, s17"); A(f"v_cndmask_b32 v{vT+7}, v{vT+2}, v{vT+3}, vcc")
        A(f"s_mul_i32 s69, {sWAVE}, {160*3456}"); A(f"s_lshl_b32 s68, {sF}, 6"); A("s_add_u32 s69, s69, s68")
        A(f"v_and_b32 v{vT+4}, 3, v{vLANE}"); A(f"v_lshl_add_u32 v{vT+4}, v{vT+4}, 4, s69")
        A(f"v_lshrrev_b32 v{vT+5}, 3, v{vLANE}")
        for (mul, add, rows) in ((16*3456, 0, [(k, y) for k in range(4) for y in range(4)]), (4*3456, 128*3456, [(k, 4) for k in range(4)])):
            A(f"v_mul_u32_u24 v{vT+1}, {mul}, v{vT+5}"); A(f"v_add_u32 v{vT+1}, v{vT+1}, v{vT+4}")
            if add: A(f"v_add_u32 v{vT+1}, {add}, v{vT+1}")
            A(f"v_add_co_u32 v{vT+2}, vcc, v{vT+6}, v{vT+1}"); A(f"v_addc_co_u32 v{vT+3}, vcc, 0, v{vT+7}, vcc")
            for i, (k, y) in enumerate(rows):
                A(f"global_load_dwordx4 {v4(WT+4*(y*4+k))}, {v2(vT+2)}, off offset:{(i%2)*3456} {tp}")
                if LTH < 63: A(f"s_waitcnt vmcnt({LTH})")
                if i % 2 == 1 and i < len(rows) - 1:
                    A(f"v_add_co_u32 v{vT+2}, vcc, {2*3456}, v{vT+2}"); A(f"v_addc_co_u32 v{vT+3}, vcc, 0, v{vT+3}, vcc")
    def dn_prep():
        srd(SA, "s20", "s21", 1728*1280)
        A(f"v_lshrrev_b32 v{vT+1}, 4, v{vLANE}"); A(f"v_mul_u32_u24 v{vT+1}, {8*1280}, v{vT+1}")
        A(f"v_and_b32 v{vT+2}, 15, v{vLANE}"); A(f"v_lshl_add_u32 v{vT+1}, v{vT+2}, 4, v{vT+1}")
        A(f"s_mul_i32 s60, {sF}, {32*1280}"); A("s_lshl_b32 s68, s23, 8"); A("s_add_u32 s60, s60, s68")
    def dn_issue(Ld):
        A("s_mov_b32 s69, s60")
        for t in range(8):
            if t % 2 == 0: A(f"s_add_u32 s68, s69, {t*1280}")
            A(f"buffer_load_dwordx4 {v4(WD+4*t)}, v{vT+1}, {SA}, s68 offen offset:{(t%2)*1280} {tp}")
        A(f"s_cmp_lg_u32 {sWAVE}, 5"); A(f"s_cbranch_scc1 {Ld}")
        for t in range(8):
            if t % 2 == 0: A(f"s_add_u32 s68, s69, {t*1280}")
            A(f"buffer_load_dwordx4 {v4(WD2+4*t)}, v{vT+1}, {SA}, s68 offen offset:{(t%2)*1280 + 768} {tp}")
    def wo_loads():
        srd(SA, "s12", "s13", 4096*1280)
        A(f"v_bfe_u32 v{vT+1}, v{vLANE}, 4, 1"); A(f"v_lshlrev_b32 v{vT+1}, 5, v{vT+1}")
        A(f"v_lshrrev_b32 v{vT+2}, 5, v{vLANE}"); A(f"v_add_u32 v{vT+1}, v{vT+1}, v{vT+2}")
        A(f"v_bfe_u32 v{vT+2}, v{vLANE}, 3, 1"); A(f"v_lshl_add_u32 v{vT+1}, v{vT+2}, 4, v{vT+1}")
        A(f"v_mul_u32_u24 v{vT+1}, 1280, v{vT+1}")
        A(f"v_and_b32 v{vT+2}, 7, v{vLANE}"); A(f"v_lshl_add_u32 v{vT+1}, v{vT+2}, 4, v{vT+1}")
        A(f"s_lshr_b32 s68, {sWAVE}, 1"); A("s_lshl_b32 s68, s68, 3"); A(f"s_add_u32 s68, s68, {sG}"); A("s_lshl_b32 s68, s68, 1")
        A(f"s_and_b32 s69, {sWAVE}, 1"); A("s_add_u32 s68, s68, s69"); A(f"s_mul_i32 s69, s68, {64*1280}")
        A(f"s_lshl_b32 s68, {sK}, 7"); A("s_add_u32 s69, s69, s68")
        for n in range(8):
            if n % 2 == 0: A(f"s_add_u32 s68, s69, {2*n*1280}")
            A(f"buffer_load_dwordx4 {v4(WT+4*n)}, v{vT+1}, {SA}, s68 offen offset:{(n%2)*2560} {tp}")
    def tail_loads(dn):
        Lw, Ld = U("lwo"), U("ldone")
        A(f"s_cmp_lt_u32 {sK}, 10"); A(f"s_cbranch_scc1 {Lw}")
        if not (now & 1):
            gu_loads(Ld, CTH if dn else LTH)
        A(f"s_branch {Ld}")
        A.label(Lw)
        if not (now & 2) and (cwo or not dn): wo_loads()
        A.label(Ld)

    A(f"; @launch grid=(256,1,1) block=(512,1,1) lds={L_END}")
    A('.amdgcn_target "amdgcn-amd-amdhsa--gfx950"')
    A(".text"); A(f".globl {KN}"); A(".p2align 8"); A(f".type {KN},@function"); A.label(KN)
    stamp(0)
    if dbg or hold == 3: A("s_memrealtime s[96:97]")
    A("s_cmp_ge_u32 s2, 256"); A("s_cbranch_scc1 L_end")
    A("s_load_dwordx16 s[4:19], s[0:1], 0")
    A("s_load_dwordx8 s[20:27], s[0:1], 64")
    A("s_load_dwordx4 s[28:31], s[0:1], 96")
    A("v_lshrrev_b32 v1, 6, v0"); A(f"v_and_b32 v{vLANE}, 63, v0")
    A(f"v_readfirstlane_b32 {sWAVE}, v1")
    A(f"v_lshlrev_b32 v{vLANE16}, 4, v{vLANE}")
    A(f"s_lshr_b32 {sHD}, s2, 3"); A(f"s_and_b32 {sG}, s2, 7"); A(f"s_lshl_b32 {sK}, {sG}, 2"); A(f"s_add_u32 {sK}, {sK}, {sHD}"); A(f"s_and_b32 {sK}, {sK}, 31")
    A(f"s_add_u32 {sS}, {sG}, {sHD}"); A(f"s_and_b32 {sS}, {sS}, 7")
    if MAP == 1:
        A(f"s_and_b32 {sHD}, s2, 31"); A(f"s_lshr_b32 {sS}, s2, 5"); A(f"s_lshr_b32 {sK}, s2, 3")
    A(f"s_mov_b32 {sL2E}, {fh(LOG2E)}"); A(f"s_mov_b32 {sSC}, {fh(SCALE)}")
    A(f"s_sub_u32 s68, {sK}, 10"); A(f"s_mul_i32 {sF}, {sG}, 7"); A(f"s_add_u32 {sF}, {sF}, s68")
    A("s_cmp_lt_u32 s68, 7"); A(f"s_cselect_b32 {sF}, {sF}, 63")
    A(f"v_mov_b32 v{vZERO}, 0"); A(f"v_mov_b32 v{vONE}, 1")
    KT0_ = NL * (NK + (NK - 1) // 2); ns_ = NV // 2; ns_ += ns_ % 2; VT0_ = NL * (NV + ns_)
    def lds_init():
        A(f"v_mov_b32 v{vT+4}, {KT0_}"); A(f"v_mov_b32 v{vT+5}, {VT0_}"); A(f"v_mov_b32 v{vT+6}, 0"); A(f"v_mov_b32 v{vT+7}, 0")
        A(f"ds_write_b128 v{vZERO}, {v4(vT+4)} offset:{L_KT}")
        A(f"ds_write_b64 v{vZERO}, {v2(vT+6)} offset:{L_KD}"); A(f"ds_write_b64 v{vZERO}, {v2(vT+6)} offset:{L_MF}")
    if nearb:
        A(f"s_sub_u32 s68, {sWAVE}, 1"); A(f"s_cmp_lt_u32 s68, {NL}"); A("s_cbranch_scc1 L_strm")
        lds_init()
        A("s_waitcnt lgkmcnt(0)")
        A("s_barrier")
        A(f"s_cmp_eq_u32 {sWAVE}, 0"); A("s_cbranch_scc1 L_ctrl0")
        A("s_branch L_help")
        A.label("L_strm")
    else:
        A(f"s_cmp_eq_u32 {sWAVE}, 0"); A("s_cbranch_scc1 L_ctrl0")
        A(f"s_cmp_gt_u32 {sWAVE}, {NL}"); A("s_cbranch_scc1 L_help")
    A(f"s_mul_i32 {sROT}, {sHD}, {ROT}"); A(f"s_lshl_b32 {sST}, {sS}, 7"); A(f"s_add_u32 {sST}, {sST}, {sROT}")
    A(f"s_lshl_b32 s68, {sHD}, 22")
    def tile_addr(sreg, add):
        A(f"s_add_u32 s69, {sreg}, {add}")
        if ROT: A("s_and_b32 s69, s69, 1023")
        A("s_lshl_b32 s69, s69, 12")
        A(f"v_add_u32 v{vADDR}, s69, v{vLANE16}")
    A(f"s_add_u32 s67, {sST}, {sWAVE}"); A("s_sub_u32 s67, s67, 1")
    tile_addr("s67", 0)
    if stamps == 6: stamp(2)
    A("s_waitcnt lgkmcnt(0)")
    A("s_add_u32 s40, s6, s68"); A("s_addc_u32 s41, s7, 0"); A("s_mov_b32 s42, 0x400000"); A("s_mov_b32 s43, 0x20000")
    G = lambda i: RING + 16*i
    def load(S, slot):
        for u in range(4): A(f"buffer_load_dwordx4 {v4(G(slot)+4*u)}, v{vADDR}, {S}, 0 offen offset:{u*1024} {pol}")
    load(SK, 0)
    for i in range(1, D0):
        tile_addr("s67", NL*i); load(SK, i)
    if stamps == 6: stamp(3)
    A("s_add_u32 s44, s8, s68"); A("s_addc_u32 s45, s9, 0"); A("s_mov_b32 s46, 0x400000"); A("s_mov_b32 s47, 0x20000")
    A("s_barrier")
    common_setup()
    A(f"s_lshl_b32 s38, {sHD}, 8"); A(f"s_add_u32 s38, s38, {WS_CNT}"); A("s_add_u32 s38, s38, s30"); A("s_addc_u32 s39, s31, 0")
    A(f"s_mov_b32 {sQ}, {NP}"); A(f"s_cmp_lt_u32 {sF}, 54"); A(f"s_cselect_b32 {sQ}, {Q_ffn}, {sQ}"); A(f"s_cmp_lt_u32 {sK}, 10"); A(f"s_cselect_b32 {sQ}, {Q_wo}, {sQ}")
    A(f"v_and_b32 v{vPB}, 60, v{vLANE}")
    A(f"s_lshl_b32 s68, {sWAVE}, 6"); A("s_sub_u32 s68, s68, 64"); A(f"v_add_u32 v{vPW}, s68, v{vPB}")
    for r in range(4): A(f"v_mov_b32 v{vACC+r}, 0")
    for i in range(D0, NK):
        tile_addr("s67", NL*i)
        A("s_waitcnt vmcnt(0)")
        if i == 1 and stamps in (4, 6): stamp(1)
        if i == 2 and stamps == 6: stamp(4)
        if i == 3 and stamps == 6: stamp(5)
        load(SK, i)
    if stamps == 4: stamp(2)
    A(f"v_and_b32 v{vT}, 15, v{vLANE}"); A(f"v_lshlrev_b32 v{vT}, 4, v{vT}")
    if dbg: A("s_memrealtime s[80:81]")
    lds_wait(L_QF, 1)
    if dbg: A("s_memrealtime s[82:83]")
    A(f"ds_read_b128 {v4(vQ)}, v{vT} offset:{L_Q}")
    A("s_waitcnt lgkmcnt(0)")
    def req(off):
        A("s_mov_b64 exec, 1"); A(f"ds_add_rtn_u32 v{vTKT}, v{vZERO}, v{vONE} offset:{off}"); A("s_mov_b64 exec, -1")
    def qk(slot, va, off):
        kb = G(slot)
        for t in range(4):
            for u in range(4):
                if t == 0: A(f"v_dot2_f32_bf16 v{vR+u}, v{kb+4*u}, v{vQ}, 0")
                else: A(f"v_dot2c_f32_bf16 v{vR+u}, v{kb+4*u+t}, v{vQ+t}")
        A(f"v_add_f32_dpp v{vA_}, v{vR}, v{vR} row_ror:8 row_mask:0xf bank_mask:0x3")
        A(f"v_add_f32_dpp v{vB_}, v{vR+2}, v{vR+2} row_ror:8 row_mask:0xf bank_mask:0x3")
        A(f"v_add_f32_dpp v{vA_}, v{vR+1}, v{vR+1} row_ror:8 row_mask:0xf bank_mask:0xc")
        A(f"v_add_f32_dpp v{vB_}, v{vR+3}, v{vR+3} row_ror:8 row_mask:0xf bank_mask:0xc")
        A(f"v_add_f32_dpp v{vC_}, v{vA_}, v{vA_} row_shl:4 row_mask:0xf bank_mask:0x5")
        A(f"v_add_f32_dpp v{vC_}, v{vB_}, v{vB_} row_shr:4 row_mask:0xf bank_mask:0xa")
        dpp_red("v_add_f32", [vC_], QUAD)
        rbf(vC_, vC_)
        A(f"v_mul_f32 v{vC_}, {sSC}, v{vC_}")
        rbf(vC_, vC_)
        A(f"ds_write_b32 v{va}, v{vC_} offset:{off}")
    def build(p):
        lane_of = [0, 8, 4, 12]
        for u in range(4):
            for t in range(4): A(f"v_and_b32_dpp v{vAOP+4*u+t}, v{p}, v{vM2+t} row_newbcast:{lane_of[u]} {DPPF}")
    def mm(slot):
        for u in range(4):
            A(f"v_mfma_f32_16x16x32_bf16 {v4(vACC)}, {v4(vAOP+4*u)}, {v4(G(slot)+4*u)}, {v4(vACC)}")
    LA, LB = 0, NK - 1
    qk(0, vPW, L_P)
    todo = list(range(1, NK - 1))
    cur, cur_i, nxt = LB, NK - 1, LA
    step = 0
    while todo:
        i = NK + step
        tile_addr("s67", NL*i)
        A("s_waitcnt vmcnt(0)")
        load(SK, nxt)
        if len(todo) <= 2: req(L_KT)
        qk(cur, vPW, L_P + NL*cur_i*64)
        for b in todo[:2]: qk(b, vPW, L_P + NL*b*64)
        todo = todo[2:]
        cur, nxt, cur_i = nxt, cur, i
        step += 1
    KT0 = NL * (NK + step)
    assert KT0 <= 128
    A(f"v_add_u32 v{vE_}, {NL*cur_i*64}, v{vPW}")
    if stamps == 4: stamp(3)
    order = [cur, nxt]
    A.label("L_k0")
    for n in range(2):
        X, Y = order[n], order[1-n]
        if n: A.label("L_k1")
        A("s_waitcnt lgkmcnt(0)")
        A(f"v_readfirstlane_b32 {sTK}, v{vTKT}")
        A(f"s_cmp_ge_u32 {sTK}, 128"); A(f"s_cbranch_scc1 L_kend{n}")
        tile_addr(sTK, sST)
        A("s_waitcnt vmcnt(0)")
        load(SK, Y)
        req(L_KT)
        qk(X, vE_, L_P)
        A(f"s_lshl_b32 s68, {sTK}, 6"); A(f"v_add_u32 v{vE_}, s68, v{vPB}")
    A("s_branch L_k0")
    for n in range(2):
        A.label(f"L_kend{n}")
        tile_addr("s67", 0)
        A("s_waitcnt vmcnt(0)")
        load(SV, 1)
        qk(order[n], vE_, L_P)
        if n == 0: A("s_branch L_vpre")
    A.label("L_vpre")
    A("s_waitcnt lgkmcnt(0)")
    A("s_mov_b64 exec, 1"); A(f"ds_add_u32 v{vZERO}, v{vONE} offset:{L_KD}"); A("s_mov_b64 exec, -1")
    if wake: A("s_waitcnt lgkmcnt(0)"); A("s_wakeup")
    if stamps == 4: stamp(4)
    for i in range(1, NV):
        tile_addr("s67", NL*i)
        A("s_waitcnt vmcnt(0)")
        load(SV, i + 1)
    if stamps == 4: stamp(5)
    if dbg: A("s_memrealtime s[84:85]")
    lds_wait(L_PF, 1)
    if dbg: A("s_memrealtime s[86:87]")
    A(f"ds_read_b32 v{vC_}, v{vZERO} offset:{L_LAM}")
    A(f"v_and_b32 v{vL}, 4, v{vLANE}"); A(f"v_lshlrev_b32 v{vL}, 2, v{vL}"); A(f"v_sub_u32 v{vL}, 16, v{vL}")
    A(f"s_lshl_b32 s14, {sHD}, 13"); A(f"s_add_u32 s14, s14, {WS_SP + (NS - 112)*32}"); A("s_add_u32 s14, s14, s30"); A("s_addc_u32 s15, s31, 0")
    nstep = NV // 2
    if nstep % 2: nstep += 1
    PR = vT
    assert NV + nstep <= 12 + 4
    preg = lambda i: (vT + i) if i < 12 else (vR + i - 12)
    for i in range(NV + nstep):
        A(f"ds_read_b32 v{preg(i)}, v{vPW} offset:{L_P + NL*i*64}")
        if i == 8: A("s_waitcnt lgkmcnt(2)")
    A("s_waitcnt lgkmcnt(0)")
    todo = [(i + 1, i) for i in range(NV)]
    live = [LA, LB]
    for j in range(nstep):
        tile_addr("s67", NL*(NV + j))
        A("s_waitcnt vmcnt(0)")
        load(SV, live[j % 2])
        if j == nstep - 1: req(L_VT)
        items = ([(live[(j-1) % 2], NV + j - 1)] if j else []) + todo[:2]
        todo = todo[2:]
        if j == nstep - 1: items += todo; todo = []
        for (sl, i) in items: build(preg(i)); mm(sl)
    build(preg(NV + nstep - 1))
    VT0 = NL * (NV + nstep)
    order = [LB, LA]
    A.label("L_v0")
    for n in range(2):
        X, Y = order[n], order[1-n]
        A("s_waitcnt lgkmcnt(0)")
        A(f"v_readfirstlane_b32 {sTK}, v{vTKT}")
        A(f"s_cmp_ge_u32 {sTK}, {NS}"); A(f"s_cbranch_scc1 L_din{n}")
        A(f"s_lshl_b32 s68, {sTK}, 6"); A(f"v_add_u32 v{vE_}, s68, v{vPB}")
        A(f"ds_read_b32 v{vE_}, v{vE_} offset:{L_P}")
        tile_addr(sTK, sST)
        A("s_waitcnt vmcnt(0) lgkmcnt(0)")
        load(SV, Y)
        req(L_VT)
        mm(X); build(vE_)
    A("s_branch L_v0")
    for n in range(2):
        A.label(f"L_din{n}")
        A(f"s_mov_b32 {sTK}, 1"); A(f"s_atomic_add {sTK}, {SCNT}, 0 glc")
        A(f"s_branch L_d{n}")
    for n in range(2):
        X, Y = order[n], order[1-n]
        A.label(f"L_d{n}")
        A("s_waitcnt lgkmcnt(0)")
        A(f"s_cmp_ge_u32 {sTK}, {NP}"); A(f"s_cbranch_scc1 L_vend{n}")
        A(f"s_and_b32 s68, {sTK}, 7"); A(f"s_lshr_b32 s67, {sTK}, 3")
        A("s_lshl_b32 s69, s68, 5"); A("s_add_u32 s69, s69, s67"); A("s_lshl_b32 s69, s69, 5")
        A("s_load_dwordx8 s[52:59], s[14:15], s69 glc")
        A("s_lshl_b32 s68, s68, 7"); A("s_add_u32 s68, s68, s67"); A(f"s_add_u32 s68, s68, {NS}")
        tile_addr("s68", sROT)
        A(f"s_cmp_ge_u32 {sTK}, {sQ}"); A(f"s_cselect_b32 {sTP}, {NP}, 0"); A(f"s_cselect_b32 {sTK}, 0, 1")
        A("s_waitcnt vmcnt(0)")
        load(SV, Y)
        mm(X)
        A("s_waitcnt lgkmcnt(0)")
        A(f"s_atomic_add {sTK}, {SCNT}, 0 glc")
        A("s_mov_b64 exec, 0xff")
        for j in range(8):
            A(f"v_lshlrev_b32 v{vE_}, v{vL}, s{52+j}")
            if j < 7: A("s_lshl_b64 exec, exec, 8")
        A("s_mov_b64 exec, -1")
        A(f"v_and_b32 v{vE_}, 0xffff0000, v{vE_}")
        A(f"v_fma_f32 v{vE_}, v{vE_}, {sL2E}, -v{vC_}")
        A(f"v_exp_f32 v{vE_}, v{vE_}")
        A(f"v_cvt_pk_bf16_f32 v{vE_}, v{vE_}, v{vE_}")
        build(vE_)
        if Q_wo < NP or Q_ffn < NP:
            A("s_waitcnt lgkmcnt(0)"); A(f"s_add_u32 {sTK}, {sTK}, {sTP}")
    A("s_branch L_d0")
    for n in range(2):
        A.label(f"L_vend{n}")
        if pf and not TW:
            A("s_mov_b64 exec, 1"); A(f"ds_add_rtn_u32 v{vTKT}, v{vZERO}, v{vONE} offset:{L_RANK}"); A("s_mov_b64 exec, -1")
        A(f"s_lshl_b32 s69, {sWAVE}, 9"); A(f"v_lshrrev_b32 v{vT}, 1, v{vNAT}"); A(f"v_add_u32 v{vT}, s69, v{vT}")
        A("s_waitcnt vmcnt(0)")
        mm(order[n])
        if n == 0: A("s_branch L_last")
    A.label("L_last")
    A(f"ds_write_b64 v{vT}, {v2(vACC)} offset:{L_PART-512}")
    A("s_waitcnt lgkmcnt(0)")
    def wo_prefetch(first, cnt, th):
        srd(SA, "s12", "s13", 4096*1280)
        A(f"s_and_b32 s68, {sK}, 24"); A(f"s_add_u32 s68, s68, {sG}"); A(f"s_mul_i32 s68, s68, {128*1280}")
        A(f"s_and_b32 s69, {sK}, 7"); A(f"s_mul_i32 s69, s69, {20*1024}"); A("s_add_u32 s68, s68, s69")
        if first: A(f"s_add_u32 s68, s68, {first}")
        for n in range(cnt):
            if n and n % 4 == 0: A("s_add_u32 s68, s68, 4096")
            A(f"buffer_load_dwordx4 {v4(PF)}, v{vLANE16}, {SA}, s68 offen offset:{(n%4)*1024} {pp}")
            if th < 63: A(f"s_waitcnt vmcnt({th})")
    if pf and not TW:
        A(f"v_readfirstlane_b32 s66, v{vTKT}")
        A(f"s_cmp_ge_u32 s66, {NR}"); A("s_cbranch_scc1 L_pfdone")
        A(f"s_mul_i32 s66, s66, {(20 // NR)*1024}")
        wo_prefetch("s66", 20 // NR, 63)
        A.label("L_pfdone")
    if stamps in (4, 6):
        A(f"s_cmp_lg_u32 {sWAVE}, 1"); A("s_cbranch_scc1 L_ns4")
        stamp_dump([1, 2, 3, 4, 5], final=False)
        A.label("L_ns4")
    A.label("L_join")
    A("s_barrier")
    if abl: A("s_endpgm"); A.label("L_abl_dead")
    if bar3: A("s_barrier")
    if dbg:
        A(f"s_cmp_lg_u32 {sWAVE}, 4"); A("s_cbranch_scc1 L_ndbg")
        A("s_memrealtime s[78:79]")
        dbg_rec(2, "s80", "s82"); dbg_rec(4, "s84", "s86"); dbg_rec(6, "s96", "s80"); dbg_rec(8, "s96", "s78")
        A.label("L_ndbg")
    if pf2:
        A(f"s_cmp_lt_u32 {sK}, 17"); A("s_cbranch_scc1 L_pf2done")
        A(f"s_sub_u32 s66, {sK}, 17"); A("s_mul_i32 s66, s66, 7"); A(f"s_add_u32 s66, s66, {sWAVE}"); A("s_sub_u32 s66, s66, 1")
        A("s_cmp_ge_u32 s66, 80"); A("s_cbranch_scc1 L_end" if dseq else "s_cbranch_scc1 L_pf2dn")
        srd(SA, "s16", "s17", 640*3456); srd(SB, "s18", "s19", 640*3456)
        A(f"v_lshrrev_b32 v{vT+1}, 5, v{vLANE}"); A(f"v_mul_u32_u24 v{vT+1}, 3456, v{vT+1}")
        A(f"v_and_b32 v{vT+2}, 31, v{vLANE}"); A(f"v_lshl_add_u32 v{vT+1}, v{vT+2}, 4, v{vT+1}")
        A(f"s_mul_i32 s68, {sG}, 7"); A("s_lshr_b32 s68, s68, 1"); A("s_min_u32 s68, s68, 23"); A("s_lshl_b32 s68, s68, 7")
        npair = (3 if cearly else 4) - len(EW)
        A(f"s_mul_i32 s69, s66, {2*npair*3456}"); A("s_add_u32 s68, s68, s69"); A(f"s_add_u32 s68, s68, {(160 if cearly else 0)*3456}")
        for n in range(npair):
            for S in (SA, SB):
                A(f"buffer_load_dwordx4 {v4(PF)}, v{vT+1}, {S}, s68 offen {pp}")
                if PFTH < 63: A(f"s_waitcnt vmcnt({PFTH})")
            if n < npair - 1: A(f"s_add_u32 s68, s68, {2*3456}")
        if dseq:
            srd(SA, "s20", "s21", 1728*1280)
            A(f"s_mul_i32 s68, {sG}, {7*40960}"); A(f"s_mul_i32 s69, s66, 3584"); A("s_add_u32 s68, s68, s69")
            A(f"v_add_u32 v{vT+1}, s68, v{vLANE16}")
            if dseq == 2: A("s_waitcnt vmcnt(0)")
            for n in range(4):
                if n == 3: A("s_mov_b32 exec_hi, 0")
                A(f"buffer_load_dwordx4 {v4(PF)}, v{vT+1}, {SA}, 0 offen offset:{n*1024} {pp}")
                if PFTH < 63: A(f"s_waitcnt vmcnt({PFTH})")
            A("s_waitcnt vmcnt(0)")
            A("s_endpgm")
        else:
            A("s_waitcnt vmcnt(0)")
            A("s_endpgm")
            A.label("L_pf2dn")
            srd(SA, "s20", "s21", 1728*1280)
            A(f"s_mul_i32 s68, {sG}, {7*40960}"); A("s_sub_u32 s69, s66, 80"); A(f"s_mul_i32 s69, s69, {11520}"); A("s_add_u32 s68, s68, s69")
            A(f"v_add_u32 v{vT+1}, s68, v{vLANE16}")
            for n in range(12):
                if n and n % 4 == 0: A(f"v_add_u32 v{vT+1}, 0x1000, v{vT+1}")
                A(f"buffer_load_dwordx4 {v4(PF)}, v{vT+1}, {SA}, 0 offen offset:{(n%4)*1024} {pp}")
                if PFTH < 63: A(f"s_waitcnt vmcnt({PFTH+1})")
            A("s_waitcnt vmcnt(0)")
            A("s_endpgm")
        A.label("L_pf2done")
    A.label("L_tail0")
    A(f"s_cmp_ge_u32 {sF}, 54"); A("s_cbranch_scc1 L_nomap")
    A(f"s_xor_b32 s68, {sWAVE}, 4"); A(f"s_and_b32 s69, {sWAVE}, 3"); A(f"s_cselect_b32 {sWAVE}, s68, {sWAVE}")
    for w in EW:
        A(f"s_cmp_eq_u32 {sWAVE}, {w-4}"); A("s_cbranch_scc1 L_tail")
    A.label("L_nomap")
    tail_loads(False)
    A.label("L_tail")
    beta_get()
    A(f"s_cmp_lt_u32 {sK}, 10"); A("s_cbranch_scc1 L_wo")
    A(f"s_cmp_ge_u32 {sF}, 54"); A("s_cbranch_scc1 L_exit")
    X0, GA = 24, 26
    CC = [12, 13, 14, 15, 28]; SS = [RING+36, RING+37, RING+38, RING+39, 29]
    SEL0, SEL1, GB = 30, 31, 6
    A(f"s_cmp_gt_u32 {sWAVE}, 3"); A("s_cbranch_scc1 L_gprep")
    A(f"v_lshrrev_b32 v{vT}, 3, v{vLANE}"); A(f"v_and_b32 v{vT+1}, 3, v{vLANE}"); A(f"v_lshl_add_u32 v{vT+1}, v{vT}, 2, v{vT+1}")
    A(f"s_mul_i32 s68, {sWAVE}, 640"); A(f"v_lshl_add_u32 v{vT+8}, v{vT+1}, 4, s68")
    A("s_add_u32 s68, s68, 512"); A(f"v_lshl_add_u32 v{vT+9}, v{vT+1}, 2, s68")
    A(f"ds_read_b128 {v4(SS[0])}, v{vT+8} offset:{L_MOD+2560}"); A(f"ds_read_b32 v{SS[4]}, v{vT+9} offset:{L_MOD+2560}")
    A(f"ds_read_b128 {v4(CC[0])}, v{vT+8} offset:{L_MOD+5120}"); A(f"ds_read_b32 v{CC[4]}, v{vT+9} offset:{L_MOD+5120}")
    acc_addr(vT+5)
    if F0 is None: A(f"s_min_u32 s21, {sF}, 39")
    else:
        A(f"s_sub_u32 s21, {sF}, {F0}"); A("s_lshl_b32 s21, s21, 1"); A(f"s_and_b32 s68, {sWAVE}, 1"); A("s_add_u32 s21, s21, s68"); A("s_mov_b32 s22, s21"); A("s_min_u32 s21, s21, 39")
    A(f"v_and_b32 v{vONE}, 7, v{vLANE}")
    A(f"v_lshrrev_b32 v{vT+1}, 5, v{vLANE}"); A(f"v_lshl_add_u32 v{vONE}, v{vONE}, {3 if linD else 1}, v{vT+1}")
    if linD:
        A("s_lshr_b32 s68, s21, 3"); A("s_lshl_b32 s68, s68, 7"); A("s_and_b32 s69, s21, 1"); A("s_lshl_b32 s69, s69, 6"); A("s_add_u32 s68, s68, s69")
        A("s_and_b32 s69, s21, 6"); A("s_add_u32 s68, s68, s69")
    else: A(f"s_lshl_b32 s68, s21, 4")
    A(f"v_add_u32 v{vONE}, s68, v{vONE}")
    A(f"v_lshlrev_b32 v{vTKT}, 2, v{vONE}"); A(f"v_lshlrev_b32 v{vONE}, 1, v{vONE}")
    A(f"ds_read_b32 v{GB}, v{vTKT} offset:{L_MOD+7680}")
    side("s13", sG); A("s_lshl_b32 s68, s21, 14"); A("s_add_u32 s13, s13, s68"); A(f"s_add_u32 s13, s13, {WS_DP}"); A("s_add_u32 s14, s13, 4096")
    A("s_waitcnt lgkmcnt(0)")
    A("s_waitcnt vmcnt(0)")
    stamp(8)
    A(f"s_cmp_lg_u32 {sWAVE}, 0"); A(f"s_cbranch_scc1 {'L_gemv0' if wbar else 'L_gemv'}")
    def gather(last):
        A(f"v_and_b32 v{vT}, 31, v{vLANE}"); A(f"v_lshrrev_b32 v{vT+1}, 5, v{vLANE}")
        A(f"v_lshl_add_u32 v{vT+2}, v{vT}, 1, v{vT+1}"); A("s_lshl_b32 s68, s23, 6"); A(f"v_add_u32 v{vT+2}, s68, v{vT+2}")
        A(f"v_lshlrev_b32 v{vT+3}, 3, v{vT+2}")
        A(f"ds_read_b64 {v2(GA)}, v{vT+3} offset:{L_MOD}"); A(f"ds_read_b64 {v2(X0)}, v{vT+3} offset:{L_X2}")
        A(f"v_mul_u32_u24 v{vT+4}, 2560, v{vT+1}"); A(f"v_lshl_add_u32 v{vT+4}, v{vT}, 4, v{vT+4}"); A("s_lshl_b32 s68, s23, 9"); A(f"v_add_u32 v{vT+4}, s68, v{vT+4}")
        side("s68", sG); A(f"s_lshl_b32 s69, {sG}, 16"); A("s_add_u32 s68, s68, s69")
        for n in range(4): A(f"s_add_u32 s{4+n}, s68, {WS_YP + n*16384}")
        A("s_lshl_b32 s68, s23, 3"); A(f"v_mov_b32 v{vADDR}, s68")
        A(f"v_mov_b32 v{SEL0}, 0x3f80"); A(f"v_mov_b32 v{SEL1}, 0x3f800000")
        A("s_waitcnt lgkmcnt(0)")
        if last:
            dn_prep()
            A(f"v_lshrrev_b32 v{vT+6}, 4, v{vLANE}"); A(f"v_lshlrev_b32 v{vT+6}, 3, v{vT+6}")
            A(f"v_and_b32 v{vT+7}, 7, v{vLANE}"); A(f"v_add_u32 v{vT+6}, v{vT+6}, v{vT+7}")
            A(f"v_bfe_u32 v{vT+7}, v{vLANE}, 3, 1"); A(f"v_lshl_add_u32 v{vT+6}, v{vT+7}, 5, v{vT+6}"); A(f"v_lshlrev_b32 v{vT+6}, 2, v{vT+6}")
            A(f"v_add_u32 v{vT+6}, {L_ACC}, v{vT+6}")
            A(f"s_lshl_b32 s12, {sF}, 7"); A(f"s_add_u32 s12, s12, {WS_DP}")
            for (d, blk) in ((vT+8, "s23"), (vT+9, "4")):
                A(f"v_lshrrev_b32 v{d}, 3, v{vLANE}"); A(f"s_lshl_b32 s68, {blk}, 3"); A(f"v_add_u32 v{d}, s68, v{d}")
                if F0 is None: A(f"v_mul_u32_u24 v{vT+7}, 37, v{d}")
                else: A(f"v_lshrrev_b32 v{vT+7}, 1, v{d}"); A(f"v_add_u32 v{vT+7}, {F0}, v{vT+7}"); A(f"v_mul_u32_u24 v{vT+7}, 37, v{vT+7}")
                A(f"v_lshrrev_b32 v{vT+7}, 8, v{vT+7}"); A(f"v_lshrrev_b32 v{vT+7}, v{vT+7}, {sBM}")
                A(f"v_and_b32 v{vT+7}, 1, v{vT+7}"); A(f"v_lshl_add_u32 v{d}, v{d}, 1, v{vT+7}"); A(f"v_lshlrev_b32 v{d}, 13, v{d}")
                A(f"v_and_b32 v{vT+7}, 7, v{vLANE}"); A(f"v_lshl_add_u32 v{d}, v{vT+7}, 4, v{d}")
        if wbar: A("s_barrier")
        poll([(vT+4, f"s{4+n}", 0, None) for n in range(4)], RING, tags=(1, 3))
        for n in range(4):
            for r in range(4):
                src, sel = RING + 4*n + 2*(r // 2), (SEL0, SEL1)[r % 2]
                if n == 0: A(f"v_dot2_f32_bf16 v{TMP+r}, v{src}, v{sel}, 0")
                else: A(f"v_dot2c_f32_bf16 v{TMP+r}, v{src}, v{sel}")
        if last: stamp(9)
        A(f"v_permlane32_swap_b32 v{TMP}, v{TMP+2}"); A(f"v_permlane32_swap_b32 v{TMP+1}, v{TMP+3}")
        A(f"v_pk_add_f32 {v2(TMP)}, {v2(TMP)}, {v2(TMP+2)}")
        A(f"v_pk_fma_f32 {v2(X0)}, {v2(TMP)}, {v2(GA)}, {v2(X0)}")
        if rx & 1: rbf2(X0, X0+1)
        A(f"v_add_f32 v{TMP}, v{X0}, v{X0+1}"); A(f"v_mul_f32 v{TMP+1}, v{X0}, v{X0}"); A(f"v_fmac_f32 v{TMP+1}, v{X0+1}, v{X0+1}")
        A(f"ds_write_b64 v{vT+3}, {v2(X0)} offset:{L_X2}")
        dpp_red("v_add_f32", [TMP, TMP+1], QUAD + BANK + BCAST)
        A("s_mov_b32 exec_lo, 0"); A("s_brev_b32 exec_hi, 1")
        A(f"ds_write_b64 v{vADDR}, {v2(TMP)} offset:{L_ST}")
        A("s_mov_b64 exec, -1")
        A("s_waitcnt lgkmcnt(0)")
    A("s_mov_b32 s23, 4")
    gather(False)
    if wbar:
        A("s_branch L_gemv")
        A.label("L_gemv0")
        A("s_barrier")
    A.label("L_gemv")
    A("s_barrier")
    ST = vAOP; XX = RING + 40
    A(f"ds_read_b128 {v4(ST)}, v{vZERO} offset:{L_ST}"); A(f"ds_read_b128 {v4(ST+4)}, v{vZERO} offset:{L_ST+16}"); A(f"ds_read_b64 {v2(ST+8)}, v{vZERO} offset:{L_ST+32}")
    A(f"ds_read_b128 {v4(XX)}, v{vT+8} offset:{L_X2}"); A(f"ds_read_b32 v{XX+4}, v{vT+9} offset:{L_X2}")
    if not (rx & 8): A(f"v_mov_b32 v{TMP+2}, {fh(1e-5)}")
    A("s_waitcnt lgkmcnt(2)" if not stamps else "s_waitcnt lgkmcnt(0)")
    sum2([ST+2*n for n in range(5)], TMP)
    A(f"v_mul_f32 v{TMP}, {fh(1.0/640)}, v{TMP}")
    if rx & 8:
        A(f"v_mul_f32 v{TMP+2}, {fh(1.0/640)}, v{TMP+1}")
        A(f"v_fma_f32 v{TMP+2}, -v{TMP}, v{TMP}, v{TMP+2}")
        A(f"v_max_f32 v{TMP+2}, 0, v{TMP+2}")
        rbf(TMP+2, TMP+2)
        A(f"v_add_f32 v{TMP+2}, {fh(1e-5)}, v{TMP+2}")
    else:
        A(f"v_fmac_f32 v{TMP+2}, {fh(1.0/640)}, v{TMP+1}")
        A(f"v_fma_f32 v{TMP+2}, -v{TMP}, v{TMP}, v{TMP+2}")
        A(f"v_max_f32 v{TMP+2}, {fh(1e-5)}, v{TMP+2}")
    if rx & 4:
        rbf(TMP+2, TMP+2); A(f"v_sqrt_f32 v{TMP+2}, v{TMP+2}"); rbf(TMP+2, TMP+2); A(f"v_rcp_f32 v{TMP+2}, v{TMP+2}")
    else: A(f"v_rsq_f32 v{TMP+2}, v{TMP+2}")
    if rx & 2: rbf(TMP, TMP)
    A("s_waitcnt lgkmcnt(0)")
    for y in range(5): A(f"v_sub_f32 v{XX+y}, v{XX+y}, v{TMP}")
    for y in range(5): A(f"v_mul_f32 v{XX+y}, v{XX+y}, v{CC[y]}")
    for y in range(5): A(f"v_fmac_f32 v{SS[y]}, v{XX+y}, v{TMP+2}")
    for y in range(5): A(f"v_cvt_pk_bf16_f32 v{SS[y]}, v{SS[y]}, v{SS[y]}")
    gemv(vACC, vM1, [(SS[y], qp(k), WT+4*(y*4+k), None) for y in range(5) for k in range(4)])
    acc_write(vT+5)
    A("s_waitcnt lgkmcnt(0)")
    A("s_barrier")
    if stamps:
        A(f"s_cmp_lg_u32 {sWAVE}, 1"); A("s_cbranch_scc1 L_ns8")
        stamp_dump([8]); A("s_endpgm")
        A.label("L_ns8")
    if F0 is None:
        A(f"s_cmp_lg_u32 {sWAVE}, 3"); A("s_cbranch_scc1 L_exit")
        A(f"s_cmp_ge_u32 {sF}, 40"); A("s_cbranch_scc1 L_end")
    else:
        A(f"s_cmp_lt_u32 {sWAVE}, 2"); A("s_cbranch_scc1 L_exit")
        A("s_cmp_ge_u32 s22, 40"); A("s_cbranch_scc1 L_end")
    A(f"ds_read_b32 v{X0}, v{vTKT} offset:{L_X2}")
    FB = RING
    A(f"v_mov_b32 v{FB+24}, 0"); A(f"v_mov_b32 v{FB+25}, 0"); A(f"v_mov_b32 v{FB+27}, {sTAG}")
    A("s_mov_b32 s68, -1"); A("s_mov_b32 s69, 0xffff")
    srd(SB, "s26", "s27", 1280)
    A("s_waitcnt lgkmcnt(0)")
    if fin: A("s_barrier")
    poll([(vLANE16, f"s{13+n//4}", (n % 4)*1024, None if n < 6 else "s[68:69]") for n in range(7)], FB)
    sum2([FB+4*n for n in range(7)], GA)
    stamp(11)
    A(f"v_permlane32_swap_b32 v{GA}, v{GA+1}"); A(f"v_add_f32 v{GA}, v{GA}, v{GA+1}")
    xrow("v_add_f32", GA, GA+1, 16)
    A(f"v_add_f32_dpp v{GA}, v{GA}, v{GA} row_ror:8 {DPPF}")
    A(f"v_fma_f32 v{GA}, v{GA}, v{GB}, v{X0}"); A(f"v_cvt_pk_bf16_f32 v{GA}, v{GA}, v{GA}")
    A("s_mov_b32 exec_lo, 0xff"); A("s_mov_b32 exec_hi, 0xff")
    A(f"buffer_store_short v{GA}, v{vONE}, {SB}, 0 offen sc1")
    A("s_cmp_lg_u32 s21, 0"); A("s_cbranch_scc1 L_fin_dump")
    A("s_mov_b64 exec, 1"); A(f"v_mov_b32 v{GA+1}, {sTAG}")
    A(f"buffer_store_dword v{GA+1}, v{vZERO}, {SWS}, 0 offen sc1")
    A.label("L_fin_dump")
    if dbg: A("s_memrealtime s[80:81]"); dbg_rec(10, "s96", "s80")
    if stamps:
        A("s_waitcnt vmcnt(0)"); stamp(12)
        stamp_dump([11, 12])
    A("s_endpgm")
    A.label("L_gprep")
    A(f"s_and_b32 s23, {sWAVE}, 3")
    gather(True)
    if DNP == 0 and not (now & 1): dn_issue("L_dnd0"); A.label("L_dnd0")
    A("s_barrier")
    if DNP == 1 and not (now & 1): dn_issue("L_dnd1"); A.label("L_dnd1")
    A("s_barrier")
    RD = WT
    for k in range(4): A(f"ds_read2st64_b32 {v2(RD+2*k)}, v{vT+6} offset0:{2*k} offset1:{2*k+1}")
    A("s_waitcnt lgkmcnt(0)")
    sum2([RD+2*k for k in range(4)])
    A(f"v_add_f32 v{RD}, v{RD}, v{RD+1}")
    A(f"v_mul_f32 v{RD+2}, {fh(-LOG2E)}, v{RD}"); A(f"v_exp_f32 v{RD+2}, v{RD+2}")
    A(f"v_mul_f32_dpp v{RD+1}, v{RD}, v{RD} row_ror:8 {DPPF}")
    A(f"v_add_f32 v{RD+2}, 1.0, v{RD+2}"); A(f"v_rcp_f32 v{RD+2}, v{RD+2}")
    A(f"v_mul_f32 v{RD}, v{RD+1}, v{RD+2}")
    A(f"v_cvt_pk_bf16_f32 v{RD}, v{RD}, v{RD}")
    A("s_waitcnt vmcnt(0)")
    A(f"s_cmp_eq_u32 {sWAVE}, 5"); A("s_cbranch_scc1 L_down2")
    gemv(vACC, vM2, [(RD, f"row_newbcast:{t}", WD+4*t, None) for t in range(8)])
    publish(vACC, vT+8, "s12")
    if fin in (2, 3): A("s_barrier")
    A("s_endpgm")
    A.label("L_down2")
    gemv(vACC, vM2, [(RD, f"row_newbcast:{t}", WD+4*t, None) for t in range(8)], ACC2, WD2)
    A(f"v_mov_b32 v{vACC+3}, {sTAG}"); A(f"v_mov_b32 v{ACC2+3}, {sTAG}")
    A(f"buffer_store_dwordx4 {v4(vACC)}, v{vT+8}, {SWS}, s12 offen sc1")
    A(f"buffer_store_dwordx4 {v4(ACC2)}, v{vT+9}, {SWS}, s12 offen sc1")
    stamp(10)
    if fin == 1: A("s_waitcnt vmcnt(0)")
    if fin == 3: A("s_waitcnt vmcnt(1)")
    if fin: A("s_barrier")
    stamp_dump([9, 10])
    A("s_endpgm")
    A.label("L_wo")
    A(f"v_lshrrev_b32 v{vT+4}, 5, v{vLANE}"); A(f"v_lshlrev_b32 v{vT+4}, 10, v{vT+4}")
    A(f"v_and_b32 v{vT+6}, 31, v{vLANE}"); A(f"v_lshl_add_u32 v{vT+4}, v{vT+6}, 4, v{vT+4}")
    A(f"s_lshr_b32 s4, {sWAVE}, 1"); A("s_lshl_b32 s4, s4, 3"); A(f"s_add_u32 s4, s4, {sG}"); A("s_lshl_b32 s4, s4, 14")
    side("s5", sG); A("s_add_u32 s4, s4, s5")
    A(f"s_and_b32 s5, {sWAVE}, 1"); A("s_lshl_b32 s5, s5, 9"); A("s_add_u32 s4, s4, s5"); A(f"s_add_u32 s4, s4, {WS_OP}"); A("s_add_u32 s5, s4, 4096")
    acc_addr(vT+5)
    A(f"v_lshrrev_b32 v{vT+8}, 5, v{vLANE}"); A(f"v_lshlrev_b32 v{vT+7}, 11, v{vT+8}"); A(f"v_lshl_add_u32 v{vT+7}, v{vT+6}, 3, v{vT+7}")
    for c in range(4):
        d = vQ + c
        A(f"v_add_u32 v{d}, {2*c}, v{vT+8}"); A(f"v_lshrrev_b32 v{vT+9}, v{d}, {sBM}"); A(f"v_and_b32 v{vT+9}, 1, v{vT+9}")
        A(f"v_lshl_add_u32 v{d}, v{d}, 3, v{vT+9}"); A(f"v_lshlrev_b32 v{d}, 13, v{d}"); A(f"v_lshl_add_u32 v{d}, v{vT+6}, 3, v{d}")
    A(f"s_lshr_b32 s6, {sG}, 1"); A("s_lshl_b32 s6, s6, 14"); A(f"s_and_b32 s7, {sG}, 1"); A("s_mul_i32 s7, s7, 2560"); A("s_add_u32 s6, s6, s7")
    A(f"s_lshl_b32 s7, {sK}, 8"); A("s_add_u32 s6, s6, s7"); A(f"s_add_u32 s6, s6, {WS_YP}")
    poll([(vT+4, "s4" if n < 2 else "s5", (n % 2)*2048, None) for n in range(4)], RING)
    stamp(7)
    sum2([RING+4*n for n in range(4)], TMP)
    A(f"v_permlane32_swap_b32 v{TMP}, v{TMP+1}")
    A(f"v_add_f32 v{TMP}, v{TMP}, v{TMP+1}")
    A(f"v_cvt_pk_bf16_f32 v{TMP}, v{TMP}, v{TMP}")
    ysplit([TMP], TMP+2)
    gemv(vACC, vM1, [(TMP + 2 + n // 4, qp(n % 4), WT+4*n, None) for n in range(8)])
    acc_write(vT+5)
    A("s_waitcnt lgkmcnt(0)")
    A("s_barrier")
    A(f"s_cmp_lg_u32 {sWAVE}, 0"); A("s_cbranch_scc1 L_end")
    for n in range(8): A(f"ds_read_b64 {v2(WT+2*n)}, v{vT+7} offset:{L_ACC+256*n}")
    A("s_waitcnt lgkmcnt(0)")
    sum2([WT+2*n for n in range(8)])
    A(f"v_mov_b32 v{WT+2}, v{WT}"); A(f"v_mov_b32 v{WT+3}, v{WT+1}")
    A(f"v_permlane32_swap_b32 v{WT}, v{WT+2}"); A(f"v_permlane32_swap_b32 v{WT+1}, v{WT+3}")
    A(f"v_pk_add_f32 {v2(WT)}, {v2(WT)}, {v2(WT+2)}")
    A(f"v_cvt_pk_bf16_f32 v{WT}, v{WT}, v{WT+1}"); A(f"v_mov_b32 v{WT+1}, {sTAG}")
    for c in range(4): A(f"buffer_store_dwordx2 {v2(WT)}, v{vQ+c}, {SWS}, s6 offen sc1")
    stamp(13)
    A.label("L_exit")
    if hold:
        A(f"s_cmp_lg_u32 {sWAVE}, 0"); A("s_cbranch_scc1 L_end")
        A(f"s_cmp_lt_u32 {sF}, 54"); A("s_cbranch_scc1 L_end")
        A.label("L_hold")
        A("s_sleep 8"); A("s_memrealtime s[94:95]"); A("s_waitcnt lgkmcnt(0)"); A("s_sub_u32 s94, s94, s96"); A("s_cmp_lt_u32 s94, 6000"); A("s_cbranch_scc1 L_hold")
    if stamps:
        A(f"s_cmp_lg_u32 {sWAVE}, 0"); A("s_cbranch_scc1 L_end")
        stamp_dump([0, 13, 6, 7] + ([1, 2, 3, 4, 5] if stamps not in (4, 6, 8) else []), xcc=True)
    A("s_endpgm")

    A.label("L_help")
    if not nearb:
        A("s_waitcnt lgkmcnt(0)")
        A("s_barrier")
    A(f"s_cmp_lt_u32 {sK}, 24"); A("s_cbranch_scc1 L_hnoq")
    A(f"s_sub_u32 s39, {sWAVE}, 5")
    A(f"s_bfe_u32 s68, {sK}, 0x10002"); A("s_add_u32 s68, s68, s39"); A("s_cmp_lt_u32 s68, 3"); A("s_cbranch_scc1 L_ctrl_q")
    common_setup()
    A(f"v_lshlrev_b32 v{vT}, 3, v{vLANE}"); A(f"v_mov_b32 v{vACC}, 0"); A(f"v_mov_b32 v{vACC+1}, 0")
    A(f"ds_write_b64 v{vT}, {v2(vACC)} offset:{L_ACC + 512}")
    A("s_waitcnt lgkmcnt(0)")
    A("s_mov_b64 exec, 1"); A(f"ds_add_u32 v{vZERO}, v{vONE} offset:{L_MF}"); A("s_mov_b64 exec, -1")
    A("s_branch L_soft")
    A.label("L_hnoq")
    A(f"s_sub_u32 s37, {sK}, 5"); A("s_cmp_ge_u32 s37, 5"); A("s_cbranch_scc1 L_hnomod")
    A("s_lshl_b32 s37, s37, 3"); A(f"s_add_u32 s37, s37, {sG}")
    A("s_lshr_b32 s38, s37, 1"); A("s_and_b32 s39, s37, 1")
    A("s_mul_i32 s6, s39, 20480"); A("s_lshl_b32 s7, s38, 10"); A("s_add_u32 s6, s6, s7"); A(f"s_add_u32 s6, s6, {WS_MR}")
    A("s_add_u32 s38, s38, 10"); A("s_lshl_b32 s39, s39, 1"); A(f"s_add_u32 s39, s39, {sWAVE}"); A("s_sub_u32 s39, s39, 6")
    if nud:
        common_setup()
        if nud == 2: lds_wait(L_QF, 1, slow=True)
        mod_loads("s38", "s39")
    else:
        mod_loads("s38", "s39")
        common_setup()
    mod_compute()
    A(f"v_lshlrev_b32 v{vT}, 3, v{vLANE}")
    A(f"s_cmp_eq_u32 {sWAVE}, 6"); A("s_cbranch_scc1 L_hsum")
    A(f"ds_write_b64 v{vT}, {v2(vACC)} offset:{L_ACC}")
    A("s_waitcnt lgkmcnt(0)")
    A(f"ds_write_b32 v{vZERO}, v{vONE} offset:{L_MF}")
    A("s_branch L_soft")
    A.label("L_hsum")
    lds_wait(L_MF, 1)
    A(f"ds_read_b64 {v2(vR)}, v{vT} offset:{L_ACC}")
    A("s_waitcnt lgkmcnt(0)")
    A(f"v_pk_add_f32 {v2(vACC)}, {v2(vACC)}, {v2(vR)}")
    publish(vACC, vLANE16 if linP else vNAT, "s6")
    A("s_branch L_help7")
    A.label("L_hnomod")
    if EW and not abl and not (now & 1):
        if len(EW) == 1: A(f"s_cmp_lg_u32 {sWAVE}, {EW[0]}"); A("s_cbranch_scc1 L_hne")
        A(f"s_sub_u32 s37, {sWAVE}, 4")
        gu_loads("L_hne", CTH, "s37")
        A.label("L_hne")
    common_setup()
    A(f"s_cmp_lg_u32 {sWAVE}, 7"); A("s_cbranch_scc1 L_help7")
    A.label("L_soft")
    A(f"s_lshl_b32 s6, {sHD}, 13"); A(f"s_add_u32 s6, s6, {WS_SP}")
    A(f"s_lshl_b32 s8, {sS}, 10"); A("s_add_u32 s8, s8, s6")
    A("s_add_u32 s6, s6, s30"); A("s_addc_u32 s7, s31, 0")
    A(f"v_lshlrev_b32 v{vT}, 3, v{vLANE}")
    if abl & 4:
        A(f"ds_write_b32 v{vZERO}, v{vONE} offset:{L_PF}"); A("s_waitcnt lgkmcnt(0)"); A("s_branch L_join"); A.label("L_abl4")
    lds_wait(L_KT, 120, slow=True)
    lds_wait(L_KD, NL + (1 if any(QK) else 0), slow=True, slp=SLK)
    if KAP: A("s_memrealtime s[10:11]")
    E = RING
    for n in range(8): A(f"ds_read_b128 {v4(E+4*n)}, v{vLANE16} offset:{L_P + 1024*n}")
    A("s_waitcnt lgkmcnt(0)")
    A(f"v_cvt_pk_bf16_f32 v{vACC}, v{E+28}, v{E+29}"); A(f"v_cvt_pk_bf16_f32 v{vACC+1}, v{E+30}, v{E+31}")
    lanes0 = (NS - 112) * 4
    if lanes0: A(f"s_lshl_b64 exec, -1, {lanes0}")
    A(f"buffer_store_dwordx2 {v2(vACC)}, v{vT}, {SWS}, s8 offen sc1")
    if lanes0: A("s_mov_b64 exec, -1")
    m = vR
    A(f"v_max3_f32 v{m}, v{E}, v{E+1}, v{E+2}"); A(f"v_max3_f32 v{m+1}, v{E+3}, v{E+4}, v{E+5}")
    for i in range(6, 32, 4):
        A(f"v_max3_f32 v{m}, v{m}, v{E+i}, v{E+i+1}")
        if i + 3 < 32: A(f"v_max3_f32 v{m+1}, v{m+1}, v{E+i+2}, v{E+i+3}")
    A(f"v_max_f32 v{m}, v{m}, v{m+1}")
    wave_red("v_max_f32", m, m+1)
    A(f"v_mul_f32 v{m}, {sL2E}, v{m}")
    for i in range(32): A(f"v_fma_f32 v{E+i}, v{E+i}, {sL2E}, -v{m}")
    for i in range(32): A(f"v_exp_f32 v{E+i}, v{E+i}")
    A(f"v_pk_add_f32 {v2(m+2)}, {v2(E)}, {v2(E+2)}")
    for i in range(4, 32, 2): A(f"v_pk_add_f32 {v2(m+2)}, {v2(m+2)}, {v2(E+i)}")
    A(f"v_add_f32 v{m+2}, v{m+2}, v{m+3}")
    wave_red("v_add_f32", m+2, m+1)
    A(f"v_log_f32 v{vACC+2}, v{m+2}")
    A(f"v_add_f32 v{vQ}, v{vACC+2}, v{m}"); A(f"v_mov_b32 v{vQ+1}, {sTAG}"); A(f"v_mov_b32 v{vQ+2}, s10")
    A("s_waitcnt vmcnt(0)")
    A("s_mov_b64 exec, 1")
    A(f"buffer_store_dwordx4 {v4(vQ)}, v{vZERO}, {SWS}, s8 offen offset:512 sc1")
    A("s_mov_b64 exec, -1")
    R = [40, 42, 44, 46, 52, 54, 56, 58]
    A(f"s_mov_b32 {sTO}, 0x40000")
    A.label("L_lam")
    if lsl: A(f"s_sleep {lsl}")
    for n in range(8): A(f"s_load_dwordx2 s[{R[n]}:{R[n]+1}], s[6:7], {n*1024 + 512} glc")
    A(f"s_sub_u32 {sTO}, {sTO}, 1"); A(f"s_cmp_eq_u32 {sTO}, 0"); A("s_cbranch_scc1 L_lamd")
    A("s_waitcnt lgkmcnt(0)")
    for n in range(8):
        A(f"s_cmp_lg_u32 s{R[n]+1}, {sTAG}"); A("s_cbranch_scc1 L_lam")
    A.label("L_lamd")
    A("s_waitcnt lgkmcnt(0)")
    lam = [RING + 32 + n for n in range(8)]
    for n in range(8): A(f"v_mov_b32 v{lam[n]}, s{R[n]}")
    if KAP:
        for n in range(8): A(f"s_load_dword s{R[n]+1}, s[6:7], {n*1024 + 520} glc")
    t = vA_
    A(f"v_max3_f32 v{t}, v{lam[0]}, v{lam[1]}, v{lam[2]}"); A(f"v_max3_f32 v{t}, v{t}, v{lam[3]}, v{lam[4]}")
    A(f"v_max3_f32 v{t}, v{t}, v{lam[5]}, v{lam[6]}"); A(f"v_max_f32 v{t}, v{t}, v{lam[7]}")
    for n in range(8): A(f"v_sub_f32 v{lam[n]}, v{lam[n]}, v{t}")
    for n in range(8): A(f"v_exp_f32 v{lam[n]}, v{lam[n]}")
    for n in range(1, 8): A(f"v_add_f32 v{lam[0]}, v{lam[0]}, v{lam[n]}")
    A(f"v_log_f32 v{lam[0]}, v{lam[0]}")
    A(f"v_add_f32 v{t}, v{t}, v{lam[0]}")
    A(f"v_sub_f32 v{m}, v{m}, v{t}"); A(f"v_exp_f32 v{m}, v{m}")
    A(f"ds_write_b32 v{vZERO}, v{t} offset:{L_LAM}")
    for i in range(32): A(f"v_mul_f32 v{E+i}, v{E+i}, v{m}")
    for i in range(32): A(f"v_cvt_pk_bf16_f32 v{E+i}, v{E+i}, v{E+i}")
    for n in range(8): A(f"ds_write_b128 v{vLANE16}, {v4(E+4*n)} offset:{L_P + 1024*n}")
    A("s_waitcnt lgkmcnt(0)")
    A(f"ds_write_b32 v{vZERO}, v{vONE} offset:{L_PF}")
    if KAP:
        A("s_mov_b32 s9, 0")
        for n in range(8):
            A(f"s_sub_u32 s68, s10, s{R[n]+1}"); A("s_add_u32 s9, s9, s68")
        A("s_ashr_i32 s9, s9, 3"); A(f"s_sub_i32 s9, s9, {LAG0}"); A("s_max_i32 s9, s9, 0"); A("s_min_i32 s9, s9, 1000")
        A(f"s_mul_i32 s9, s9, {KAP}"); A("s_lshr_b32 s9, s9, 8"); A(f"s_min_u32 s9, s9, {CAP}"); A("s_add_u32 s9, s9, 1")
        A(f"v_mov_b32 v{vT}, s9"); A(f"ds_write_b32 v{vZERO}, v{vT} offset:{L_N6}")
    A("s_setprio 0")
    if stamps == 8:
        lds_wait(L_VT, 92, slow=True, slp=2); stamp(4); lds_wait(L_VT, 112, slow=True, slp=2); stamp(5); stamp_dump([4, 5], final=False)
    if stamps:
        stamp(14); stamp_dump([14], final=False)
    A("s_waitcnt lgkmcnt(0)")
    A("s_branch L_join")
    A.label("L_help7")
    if any(QK):
        A(f"s_bitcmp1_b32 {sK}, 2"); A(f"s_cselect_b32 s37, {QK[6]}, {QK[5]}")
        for lim, q_ in ((24, QK[4]), (22, QK[3]), (17, QK[2]), (10, QK[1]), (5, QK[0])):
            A(f"s_cmp_lt_u32 {sK}, {lim}"); A(f"s_cselect_b32 s37, {q_}, s37")
        A("s_cmp_eq_u32 s37, 0"); A("s_cbranch_scc1 L_xkd")
        A("s_load_dwordx2 s[6:7], s[0:1], 8")
        A(f"s_mul_i32 {sST}, {sHD}, {ROT}"); A(f"s_lshl_b32 s68, {sS}, 7"); A(f"s_add_u32 {sST}, {sST}, s68")
        A(f"s_lshl_b32 s68, {sHD}, 22")
        A(f"v_and_b32 v{vPB}, 60, v{vLANE}")
        A(f"v_and_b32 v{vT}, 15, v{vLANE}"); A(f"v_lshlrev_b32 v{vT}, 4, v{vT}")
        A("s_waitcnt lgkmcnt(0)")
        A("s_add_u32 s40, s6, s68"); A("s_addc_u32 s41, s7, 0"); A("s_mov_b32 s42, 0x400000"); A("s_mov_b32 s43, 0x20000")
        lds_wait(L_QF, 1, slow=True)
        A(f"ds_read_b128 {v4(vQ)}, v{vT} offset:{L_Q}")
        A.label("L_xk")
        req(L_KT)
        A("s_waitcnt lgkmcnt(0)")
        A(f"v_readfirstlane_b32 {sTK}, v{vTKT}")
        A(f"s_cmp_ge_u32 {sTK}, 128"); A("s_cbranch_scc1 L_xkd")
        tile_addr(sTK, sST)
        load(SK, 0)
        A(f"s_lshl_b32 s68, {sTK}, 6"); A(f"v_add_u32 v{vE_}, s68, v{vPB}")
        A("s_waitcnt vmcnt(0)")
        qk(0, vE_, L_P)
        A("s_sub_u32 s37, s37, 1"); A("s_cmp_lg_u32 s37, 0"); A("s_cbranch_scc1 L_xk")
        A.label("L_xkd")
        A("s_waitcnt lgkmcnt(0)")
        A("s_mov_b64 exec, 1"); A(f"ds_add_u32 v{vZERO}, v{vONE} offset:{L_KD}"); A("s_mov_b64 exec, -1")
        A("s_waitcnt lgkmcnt(0)")
    if BM is None:
        A(f"s_cmp_lg_u32 {sK}, 22"); A("s_cbranch_scc1 L_nprb")
        A(f"s_lshl_b32 s6, {sG}, 14"); A(f"s_add_u32 s6, s6, {WS_PRB}"); A("s_add_u32 s6, s6, s30"); A("s_addc_u32 s7, s31, 0")
        A("s_mov_b32 s8, -1"); A("s_mov_b32 s9, -1"); A(f"s_mov_b32 s37, {NPR}")
        A.label("L_prb")
        for h in range(2):
            A("s_memtime s[40:41]"); A("s_waitcnt lgkmcnt(0)")
            A(f"s_load_dword s44, s[6:7], {h*8192} glc"); A("s_waitcnt lgkmcnt(0)")
            A("s_memtime s[42:43]"); A("s_waitcnt lgkmcnt(0)")
            A("s_sub_u32 s42, s42, s40"); A(f"s_min_u32 s{8+h}, s{8+h}, s42")
        A("s_sub_u32 s37, s37, 1"); A("s_cmp_lg_u32 s37, 0"); A("s_cbranch_scc1 L_prb")
        A("s_cmp_lt_u32 s9, s8"); A("s_cselect_b32 s68, 1, 0")
        A(f"v_mov_b32 v{vACC}, s68"); A(f"v_mov_b32 v{vACC+1}, s8"); A(f"v_mov_b32 v{vACC+2}, s9")
        A(f"s_lshl_b32 s68, {sG}, 7"); A(f"s_add_u32 s68, s68, {WS_BETA}")
        A("s_mov_b64 exec, 1")
        publish(vACC, vZERO, "s68")
        A("s_mov_b64 exec, -1")
        A.label("L_nprb")
    if KAP:
        A("s_load_dwordx2 s[6:7], s[0:1], 16")
        A(f"s_mul_i32 {sST}, {sHD}, {ROT}"); A(f"s_lshl_b32 s68, {sS}, 7"); A(f"s_add_u32 {sST}, {sST}, s68")
        A(f"s_lshl_b32 s68, {sHD}, 22")
        A(f"v_and_b32 v{vPB}, 60, v{vLANE}")
        for r in range(4): A(f"v_mov_b32 v{vACC+r}, 0")
        A("s_waitcnt lgkmcnt(0)")
        A("s_add_u32 s44, s6, s68"); A("s_addc_u32 s45, s7, 0"); A("s_mov_b32 s46, 0x400000"); A("s_mov_b32 s47, 0x20000")
        lds_wait(L_N6, 1, slow=True)
        A("s_waitcnt lgkmcnt(0)")
        A(f"v_readfirstlane_b32 s37, v{vBAD}")
        A.label("L_xv")
        A("s_cmp_le_u32 s37, 1"); A("s_cbranch_scc1 L_xvd")
        req(L_VT)
        A("s_waitcnt lgkmcnt(0)")
        A(f"v_readfirstlane_b32 {sTK}, v{vTKT}")
        A(f"s_cmp_ge_u32 {sTK}, {NS}"); A("s_cbranch_scc1 L_xvd")
        tile_addr(sTK, sST)
        load(SV, 0)
        A(f"s_lshl_b32 s68, {sTK}, 6"); A(f"v_add_u32 v{vE_}, s68, v{vPB}")
        A(f"ds_read_b32 v{vE_}, v{vE_} offset:{L_P}")
        A("s_waitcnt lgkmcnt(0)")
        build(vE_)
        A("s_waitcnt vmcnt(0)")
        mm(0)
        A("s_sub_u32 s37, s37, 1"); A("s_branch L_xv")
        A.label("L_xvd")
        A(f"v_lshrrev_b32 v{vT}, 1, v{vNAT}")
        A(f"ds_write_b64 v{vT}, {v2(vACC)} offset:{L_PART + 512*NL}")
        A("s_waitcnt lgkmcnt(0)")
    A("s_branch L_join")

    A.label("L_ctrl0")
    A("s_setprio 3")
    assert KT0 == KT0_ and VT0 == VT0_
    if not nearb:
        lds_init()
        A("s_waitcnt lgkmcnt(0)")
        A("s_barrier")
    if abl & 2:
        common_setup()
        A(f"s_lshl_b32 s68, {sHD}, 8"); A(f"s_add_u32 s68, s68, {WS_CNT}")
        A("s_mov_b64 exec, 1"); A(f"buffer_store_dword v{vZERO}, v{vZERO}, {SWS}, s68 offen sc1"); A("s_mov_b64 exec, -1")
        A(f"v_lshlrev_b32 v{vT}, 2, v{vLANE}"); A(f"v_mov_b32 v{vT+1}, 0x3f803f80"); A(f"ds_write_b32 v{vT}, v{vT+1} offset:{L_Q}"); A("s_waitcnt lgkmcnt(0)")
        A(f"ds_write_b32 v{vZERO}, v{vONE} offset:{L_QF}")
        A("s_branch L_ctrl_w"); A.label("L_abl2")
    A("s_mov_b32 s39, 0")
    A(f"s_cmp_ge_u32 {sK}, 24"); A("s_cbranch_scc1 L_ctrl_q")
    A(f"s_sub_u32 s38, {sK}, 17"); A("s_cmp_ge_u32 s38, 5"); A("s_cbranch_scc1 L_ctrl_none")
    A("s_lshl_b32 s38, s38, 3"); A(f"s_add_u32 s38, s38, {sG}")
    A("s_lshl_b32 s6, s38, 10"); A(f"s_add_u32 s6, s6, {WS_MODP}")
    A("s_and_b32 s39, s38, 3"); A("s_lshr_b32 s38, s38, 2")
    mod_loads("s38", "s39")
    common_setup()
    mod_compute()
    publish(vACC, vLANE16 if linP else vNAT, "s6")
    stamp(1)
    A("s_branch L_hop2")
    A.label("L_ctrl_none")
    if nud: common_setup()
    if cearly and cstart and not abl: tail_loads(True)
    if not nud: common_setup()
    A("s_branch L_hop2")
    A.label("L_ctrl_q")
    WQ = RING + 64
    XA = RING
    X0, X1 = 24, 25
    A(f"s_and_b32 s38, {sK}, 3"); A("s_lshl_b32 s38, s38, 3"); A(f"s_add_u32 s38, s38, {sG}")
    A(f"s_bfe_u32 s37, {sK}, 0x10002"); A("s_mul_i32 s68, s37, 3"); A("s_add_u32 s39, s39, s68")
    srd(SB, "s4", "s5", 1280); srd(SA, "s10", "s11", 640*8192)
    A(f"v_lshlrev_b32 v{vT+2}, 2, v{vLANE}")
    for k in range(5): A(f"buffer_load_dword v{XA+2*k+1}, v{vT+2}, {SB}, 0 offen offset:{k*256}")
    A("s_lshl_b32 s68, s39, 8")
    A(f"v_lshrrev_b32 v{vT}, 4, v{vLANE}"); A(f"v_and_b32 v{vT+1}, 15, v{vLANE}")
    if linP: A(f"v_lshlrev_b32 v{vT+2}, 2, v{vT}"); A(f"v_lshl_add_u32 v{vT+2}, v{vT+1}, 4, v{vT+2}")
    A(f"buffer_load_dword v{X1}, v{vT+2}, {SB}, s68 offen")
    A(f"v_lshlrev_b32 v{vT}, {14 if linP else 18}, v{vT}")
    A(f"v_lshl_add_u32 v{vT+3}, v{vT+1}, 4, v{vT}")
    A("s_lshl_b32 s69, s39, 20"); A("s_lshl_b32 s68, s38, 8"); A("s_add_u32 s69, s69, s68")
    for n in range(32):
        u, j = n // 16, n % 16
        A(f"s_add_u32 s68, s69, {((8 if linP else 2)*j+u)*8192}")
        A(f"buffer_load_dwordx4 {v4(WQ+4*n)}, v{vT+3}, {SA}, s68 offen {pol}")
    common_setup()
    A("s_lshl_b32 s68, s38, 8"); A(f"s_add_u32 s68, s68, {WS_CNT}")
    A("s_cmp_lg_u32 s39, 0"); A("s_cbranch_scc1 L_nocnt")
    A("s_mov_b64 exec, 1")
    A(f"buffer_store_dword v{vZERO}, v{vZERO}, {SWS}, s68 offen sc1")
    A("s_mov_b64 exec, -1")
    A("s_waitcnt vmcnt(33)")
    A("s_branch L_cntj")
    A.label("L_nocnt")
    A("s_waitcnt vmcnt(32)")
    A.label("L_cntj")
    for k in range(5):
        A(f"v_lshlrev_b32 v{XA+2*k}, 16, v{XA+2*k+1}"); A(f"v_and_b32 v{XA+2*k+1}, 0xffff0000, v{XA+2*k+1}")
    A(f"v_lshlrev_b32 v{X0}, 16, v{X1}"); A(f"v_and_b32 v{X1}, 0xffff0000, v{X1}")
    t = vT + 8; a = XA
    A(f"v_add_f32 v{t}, v{a}, v{a+1}")
    for i in range(2, 10): A(f"v_add_f32 v{t}, v{t}, v{a+i}")
    wave_red("v_add_f32", t, t+1)
    A(f"v_mul_f32 v{t}, {fh(1.0/640)}, v{t}")
    for i in range(10): A(f"v_sub_f32 v{a+i}, v{a+i}, v{t}")
    A(f"v_mul_f32 v{t+2}, v{a}, v{a}")
    for i in range(1, 10): A(f"v_fmac_f32 v{t+2}, v{a+i}, v{a+i}")
    wave_red("v_add_f32", t+2, t+1)
    A(f"v_mul_f32 v{t+2}, {fh(1.0/640)}, v{t+2}")
    rbf2(t, t+2)
    A(f"v_add_f32 v{t+2}, {fh(1e-5)}, v{t+2}"); rbf(t+2, t+2)
    A(f"v_sqrt_f32 v{t+2}, v{t+2}"); rbf(t+2, t+2)
    A(f"v_rcp_f32 v{t+2}, v{t+2}")
    A(f"v_sub_f32 v{X0}, v{X0}, v{t}"); A(f"v_sub_f32 v{X1}, v{X1}, v{t}"); rbf2(X0, X1)
    A(f"v_mul_f32 v{X0}, v{X0}, v{t+2}"); A(f"v_mul_f32 v{X1}, v{X1}, v{t+2}"); rbf2(X0, X1)
    A("s_lshl_b32 s6, s39, 12"); A(f"s_add_u32 s6, s6, {WS_MODP}"); A(f"s_add_u32 s7, s6, {5*4096}")
    stamp(1)
    spre("s6", [(n // 4)*5*4096 + (n % 4)*1024 for n in range(8)])
    poll([(vLANE16, f"s{6+n//4}", (n % 4)*1024, None) for n in range(8)], RING)
    stamp(2)
    sum2([RING+4*n for n in range(4)]); sum2([RING+16+4*n for n in range(4)])
    rbf2(RING, RING+1); rbf2(RING+16, RING+17)
    c0, c1, s0, s1 = RING+16, RING+17, RING, RING+1
    A(f"v_add_f32 v{c0}, 1.0, v{c0}"); A(f"v_add_f32 v{c1}, 1.0, v{c1}"); rbf2(c0, c1)
    A(f"v_mul_f32 v{X0}, v{X0}, v{c0}"); A(f"v_mul_f32 v{X1}, v{X1}, v{c1}"); rbf2(X0, X1)
    A(f"v_add_f32 v{X0}, v{X0}, v{s0}"); A(f"v_add_f32 v{X1}, v{X1}, v{s1}")
    A(f"v_cvt_pk_bf16_f32 v{X0}, v{X0}, v{X0}"); A(f"v_cvt_pk_bf16_f32 v{X1}, v{X1}, v{X1}")
    gemv(vACC, vM2, [((X0, X1)[n // 16], f"row_newbcast:{n % 16}", WQ + 4*n, None) for n in range(32)])
    A(f"v_lshlrev_b32 v{vT}, 3, v{vLANE}")
    A(f"s_cmp_eq_u32 {sWAVE}, 0"); A("s_cbranch_scc1 L_qsum")
    A(f"s_lshl_b32 s68, {sWAVE}, 9"); A(f"v_add_u32 v{vT}, s68, v{vT}")
    A(f"ds_write_b64 v{vT}, {v2(vACC)} offset:{L_ACC - 6*512}")
    A("s_waitcnt lgkmcnt(0)")
    A("s_mov_b64 exec, 1"); A(f"ds_add_u32 v{vZERO}, v{vONE} offset:{L_MF}"); A("s_mov_b64 exec, -1")
    A("s_setprio 0")
    A(f"s_cmp_eq_u32 {sWAVE}, 7"); A("s_cbranch_scc1 L_soft")
    A("s_branch L_help7")
    A.label("L_qsum")
    lds_wait(L_MF, 2)
    A(f"ds_read_b64 {v2(RING)}, v{vT} offset:{L_ACC}"); A(f"ds_read_b64 {v2(RING+2)}, v{vT} offset:{L_ACC+512}")
    A("s_lshl_b32 s68, s38, 1"); A("s_add_u32 s68, s68, s37"); A("s_lshl_b32 s68, s68, 10"); A(f"s_add_u32 s68, s68, {WS_QP}")
    A("s_waitcnt lgkmcnt(0)")
    A(f"v_pk_add_f32 {v2(vACC)}, {v2(vACC)}, {v2(RING)}"); A(f"v_pk_add_f32 {v2(vACC)}, {v2(vACC)}, {v2(RING+2)}")
    publish(vACC, vLANE16 if linP else vNAT, "s68")
    A.label("L_hop2")
    stamp(3)
    A(f"s_lshl_b32 s6, {sHD}, 11"); A(f"s_add_u32 s6, s6, {WS_QP}")
    spre("s6", [n*1024 for n in range(2)])
    poll([(vLANE16, "s6", n*1024, None) for n in range(2)], RING)
    sum2([RING+4*n for n in range(2)])
    A(f"v_cvt_pk_bf16_f32 v{RING}, v{RING}, v{RING+1}")
    A(f"v_lshrrev_b32 v{vT}, 2, v{vNAT}" if linP else f"v_lshlrev_b32 v{vT}, 2, v{vLANE}")
    A(f"ds_write_b32 v{vT}, v{RING} offset:{L_Q}")
    A("s_waitcnt lgkmcnt(0)")
    A(f"ds_write_b32 v{vZERO}, v{vONE} offset:{L_QF}")
    stamp(4)
    if dbg: A("s_memrealtime s[80:81]"); dbg_rec(0, "s96", "s80")
    if hold == 1: A("s_memrealtime s[96:97]")
    A("s_setprio 0")
    A.label("L_ctrl_w")
    if abl: A("s_barrier"); A("s_endpgm"); A.label("L_abl_dead2")
    if cearly and not cstart: tail_loads(True)
    A(f"s_cmp_ge_u32 {sF}, 54"); A("s_cbranch_scc1 L_cnomr")
    srd(SB, "s4", "s5", 1280)
    A(f"v_lshlrev_b32 v{vT}, 2, v{vLANE}"); A(f"v_lshlrev_b32 v{vT+1}, 3, v{vLANE}")
    for k in range(5): A(f"buffer_load_dword v{vAOP+2*k+1}, v{vT}, {SB}, 0 offen offset:{k*256}")
    A("s_waitcnt vmcnt(0)")
    for k in range(5):
        A(f"v_lshlrev_b32 v{vAOP+2*k}, 16, v{vAOP+2*k+1}"); A(f"v_and_b32 v{vAOP+2*k+1}, 0xffff0000, v{vAOP+2*k+1}")
        A(f"ds_write_b64 v{vT+1}, {v2(vAOP+2*k)} offset:{L_X2 + 512*k}")
    if linP: A(f"v_lshrrev_b32 v{vT+1}, 1, v{vNAT}")
    for arr in range(4):
        for i, o in enumerate((0, 4096, 20480, 24576)): A(f"s_mov_b32 s{40+i}, {WS_MR + arr*5120 + o}")
        poll([(vLANE16, f"s{40 + 2*h + (k // 4)}", (k % 4)*1024, None) for k in range(5) for h in range(2)], RING)
        for k in range(5):
            b = RING + 8*k
            A(f"v_pk_add_f32 {v2(b)}, {v2(b)}, {v2(b+4)}"); rbf2(b, b+1)
            if arr == 2:
                A(f"v_add_f32 v{b}, 1.0, v{b}"); A(f"v_add_f32 v{b+1}, 1.0, v{b+1}"); rbf2(b, b+1)
            A(f"ds_write_b64 v{vT+1}, {v2(b)} offset:{L_MOD + arr*2560 + 512*k}")
    A.label("L_cnomr")
    if BM is None:
        lds_wait(L_VT, 88, slow=True)
        A(f"v_and_b32 v{vT}, 7, v{vLANE}"); A(f"v_lshlrev_b32 v{vT}, 7, v{vT}"); A(f"s_mov_b32 s40, {WS_BETA}")
        poll([(vT, "s40", 0, None)], RING)
        A(f"v_cmp_ne_u32 vcc, 0, v{RING}")
        A(f"v_mov_b32 v{vT}, vcc_lo"); A(f"v_and_b32 v{vT}, 0xff, v{vT}")
        A(f"ds_write_b32 v{vZERO}, v{vT} offset:{L_BM}")
        A("s_waitcnt lgkmcnt(0)")
    beta_get()
    if ptd:
        A(f"s_cmp_ge_u32 {sF}, 40"); A("s_cbranch_scc1 L_nptd")
        side("s40", sG); A(f"s_lshl_b32 s68, {sF}, 14"); A("s_add_u32 s40, s40, s68"); A(f"s_add_u32 s40, s40, {WS_DP}"); A("s_add_u32 s41, s40, 4096")
        for n in range(7): A(f"buffer_load_dwordx4 {v4(RING)}, v{vLANE16}, {SWS}, s{40+n//4} offen offset:{(n%4)*1024} {'sc1' if ptd == 1 else ''}")
        if ptd == 3:
            srd(SB, "s26", "s27", 1280); A(f"buffer_load_dwordx4 {v4(RING)}, v{vLANE16}, {SB}, 0 offen"); A(f"buffer_load_dwordx4 {v4(RING)}, v{vLANE16}, {SB}, 0 offen offset:1024")
        A.label("L_nptd")
    A(f"s_and_b32 s68, {sHD}, 7"); side("s9", "s68")
    A(f"s_lshl_b32 s8, {sHD}, 4"); A(f"s_add_u32 s8, s8, {sS}"); A("s_lshl_b32 s8, s8, 10"); A("s_add_u32 s8, s8, s9"); A(f"s_add_u32 s8, s8, {WS_OP}")
    A(f"v_lshlrev_b32 v{vT}, 3, v{vLANE}"); A(f"v_mov_b32 v{TMP+3}, {sTAG}")
    A("s_waitcnt vmcnt(0) lgkmcnt(0)")
    stamp(5)
    if cprio: A("s_setprio 3")
    A("s_barrier")
    stamp(6)
    if hold == 2: A("s_memrealtime s[96:97]")
    NPART = NL + (1 if KAP else 0)
    for w in range(NPART): A(f"ds_read_b64 {v2(RING+2*w)}, v{vT} offset:{L_PART+512*w}")
    A("s_waitcnt lgkmcnt(0)")
    sum2([RING+2*w for w in range(NPART)], TMP)
    A(f"buffer_store_dwordx4 {v4(TMP)}, v{vLANE16}, {SWS}, s8 offen sc1")
    if bar3: A("s_barrier")
    stamp(13)
    if cearly and not cwo:
        A(f"s_cmp_lt_u32 {sK}, 10"); A("s_cbranch_scc1 L_tail0")
    A("s_branch L_tail" if cearly else "s_branch L_tail0")
    A.label("L_end")
    A("s_endpgm")
    A('.section .rodata,"a"'); A(".p2align 6"); A(f".amdhsa_kernel {KN}")
    A(".amdhsa_next_free_vgpr 256"); A(".amdhsa_next_free_sgpr 100"); A(".amdhsa_accum_offset 256")
    A(".amdhsa_group_segment_fixed_size 0"); A(".amdhsa_kernarg_size 112"); A(".amdhsa_user_sgpr_count 2")
    A(".amdhsa_user_sgpr_kernarg_segment_ptr 1"); A(".amdhsa_system_sgpr_workgroup_id_x 1")
    A(".amdhsa_float_denorm_mode_32 3")
    A(".end_amdhsa_kernel")
    return A.finalize()

def check_inter(w, inter):
    import numpy as np
    def cmp(name, got, exp):
        err = np.abs(got - exp).max(); rel = np.linalg.norm(got - exp) / np.linalg.norm(exp)
        print("   inter %-5s maxabs %.4e (scale %.3e) relL2 %.3e nan=%d" % (name, err, np.abs(exp).max(), rel, int(np.isnan(got).sum())), got[:4], exp[:4])
    def bf(x):
        u = x.astype(np.float32).view(np.uint32); u = (u + 0x7fff + ((u >> 16) & 1)) & 0xffff0000
        return u.view(np.float32)
    gr = lambda off, n: w[off // 4: off // 4 + n*4].reshape(n, 4)
    md = np.concatenate([gr(WS_MODP, 10*4*64)[:, :2].reshape(10, 4, 128).sum(1).reshape(-1), gr(WS_MR, 2*1280)[:, :2].reshape(2, 2560).sum(0)])
    cmp("mod", md, inter["mod"]); print("      mod bf16 mismatches", int((bf(md) != inter["mod"]).sum()))
    q = gr(WS_QP, 32*2*64)[:, :2].reshape(32, 2, 128).sum(1).reshape(-1)
    cmp("q", q, inter["q"]); print("      q bf16 mismatches", int((bf(q) != inter["q"]).sum()))
    b = w[WS_BETA // 4: WS_BETA // 4 + 8*32].view(np.uint32).reshape(8, 32)
    print("      side, min latency 0/1:", [tuple(int(v) for v in r[:3]) for r in b])

if __name__ == "__main__":
    out = sys.argv[1]
    kw = {}
    for a in sys.argv[2:]:
        k, v = a.split("=")
        kw[k] = eval(v)
    open(out, "w").write(gen(**kw))
```
